```python
import torch

def _softmax(x, axis=-1):
    return torch.softmax(x, dim=axis)
def _gelu(x):
    return torch.nn.functional.gelu(x, approximate="tanh")
def _silu(x):
    return torch.nn.functional.silu(x)
def _sigmoid(x):
    return torch.sigmoid(x)
def _layernorm(x, axis=-1, eps=1e-5):
    m = x.mean(dim=axis, keepdim=True)
    v = x.var(dim=axis, keepdim=True, unbiased=False)
    return (x - m) / torch.sqrt(v + eps)
def _scatter_add(tgt, idx, src, axis=0):
    return tgt.clone().index_add_(axis, idx, src)
def _segment_sum(src, seg, n):
    out = torch.zeros((n,) + src.shape[1:], dtype=src.dtype)
    return out.index_add_(0, seg, src)
def _pad(x, pw):
    flat = tuple(v for pair in reversed(pw) for v in pair)
    return torch.nn.functional.pad(x, flat)

kernel_name = 'concat_heads__ssm_conv_h3__linear_attn_block__prompt'

def setup_inputs():

    _w = (lambda a: (lambda t: t.to(torch.bfloat16) if t.is_floating_point() else t)(torch.as_tensor(a)))
    def _A_setup():
        B, S, D = 1, 2048, 1024
        ks = 4
        return {
            "q": _w((lambda *s: torch.randn(*s, dtype=torch.bfloat16) * 0.05)(B, S, D)),
            "k": _w((lambda *s: torch.randn(*s, dtype=torch.bfloat16) * 0.4)(B, S, D)),
            "v": _w((lambda *s: torch.randn(*s, dtype=torch.bfloat16) * 0.4)(B, S, D)),
            "shift_k": _w((lambda *s: torch.randn(*s, dtype=torch.bfloat16) * 0.4)(D, ks) * 0.5),
            "ssm_k": _w((lambda *s: torch.randn(*s, dtype=torch.bfloat16) * 1.6)(D, S) * (1.0 / S ** 0.5)),
            "ssm_D": _w((lambda *s: torch.randn(*s, dtype=torch.bfloat16) * 0.4)(D)),
        }
    _A_in = _A_setup()

    def _B_setup():
        B, S, D = 1, 2048, 1024
        return {
            "x": _w((lambda *s: torch.randn(*s, dtype=torch.bfloat16) * 0.05)(B, S, D)),
            "wqkv": _w((lambda *s: torch.randn(*s, dtype=torch.bfloat16) * 0.8)(D, 3 * D)),
            "wo": _w((lambda *s: torch.randn(*s, dtype=torch.bfloat16) * 0.05)(D, D)),
        }
    _B_in = _B_setup()

    return {
        "A_q": _A_in["q"],
        "A_k": _A_in["k"],
        "A_v": _A_in["v"],
        "A_shift_k": _A_in["shift_k"],
        "A_ssm_k": _A_in["ssm_k"],
        "A_ssm_D": _A_in["ssm_D"],
        "B_x": _B_in["x"],
        "B_wqkv": _B_in["wqkv"],
        "B_wo": _B_in["wo"],
    }

def reference(A_q, A_k, A_v, A_shift_k, A_ssm_k, A_ssm_D, B_x, B_wqkv, B_wo):
    def _A_ref(q, k, v, shift_k, ssm_k, ssm_D):
        B, S, D = q.shape
        ks = shift_k.shape[-1]
        k_pad = _pad(k, ((0, 0), (ks - 1, 0), (0, 0)))
        k_shift = torch.zeros_like(k)
        for t in range(ks):
            k_shift = k_shift + k_pad[:, t:t + S, :] * shift_k[:, ks - 1 - t][None, None, :]
        kv = k_shift * v
        L = 2 * S
        kv_pad = _pad(kv, ((0, 0), (0, S), (0, 0)))
        kf_pad = _pad(ssm_k, ((0, 0), (0, S)))
        kv_f = (lambda x, axes=(-2,-1): torch.fft.rfft2(x.float(), dim=axes))(kv_pad[:, None, :, :], axes=(1, 2))
        kf_f = (lambda x, axes=(-2,-1): torch.fft.rfft2(x.float(), dim=axes))(kf_pad[:, None, :], axes=(1, 2))
        kf_f = (lambda x, *d: x.permute(*d))(kf_f, 1, 2, 0)
        y_f = kv_f * kf_f[None, :, :, :]
        y = (lambda x, s, axes=(-2,-1): torch.fft.irfft2(x, s=s, dim=axes).to(torch.bfloat16))(y_f, (1, L), axes=(1, 2))[:, 0, :S, :]
        y = y + kv * ssm_D[None, None, :]
        return q * y

    def _B_ref(x, wqkv, wo):
        B, S, D = x.shape
        H = 32; Dh = D // H
        qkv = (lambda x, *d: x.permute(*d))((x @ wqkv).reshape(B, S, 3, H, Dh), 2, 0, 3, 1, 4)
        q, k, v = qkv[0], qkv[1], qkv[2]
        phi = lambda t: torch.where(t > 0, t + 1, torch.exp(t)) + 1e-6
        pq, pk = phi(q), phi(k)
        kv = torch.einsum("bhsd,bhse->bhde", pk, v)
        z = torch.einsum("bhsd->bhd", pk)
        num = torch.einsum("bhqd,bhde->bhqe", pq, kv)
        den = torch.einsum("bhqd,bhd->bhq", pq, z)[..., None] + 1e-6
        o = num / den
        return (lambda x, *d: x.permute(*d))(o, 0, 2, 1, 3).reshape(B, S, D) @ wo

    a = _A_ref(A_q, A_k, A_v, A_shift_k, A_ssm_k, A_ssm_D)
    b = _B_ref(B_x, B_wqkv, B_wo)
    return torch.concatenate([a, b], axis=-1)
```

```python
import re

_REG = re.compile(r"([vas])(?:\[(\d+):(\d+)\]|(\d+))")
TRANS = ("v_exp_f32", "v_log_f32", "v_rcp_f32", "v_rsq_f32", "v_sqrt_f32", "v_sin_f32", "v_cos_f32")


def regs_of(tok):
    out = set()
    t = tok.strip()
    if t.startswith("-"):
        t = t[1:]
    if t.startswith("abs(") or t.startswith("|"):
        t = t.strip("|")
        t = t.replace("abs(", "").replace(")", "")
    if t == "vcc":
        return {("s", "vcc")}
    if t == "exec":
        return {("s", "exec")}
    if t == "m0":
        return {("s", "m0")}
    m = _REG.fullmatch(t)
    if not m:
        return out
    f = m.group(1)
    if m.group(4) is not None:
        out.add((f, int(m.group(4))))
    else:
        for i in range(int(m.group(2)), int(m.group(3)) + 1):
            out.add((f, i))
    return out


class Ins:
    __slots__ = ("text", "op", "reads", "writes", "kind", "passes", "srcc", "label", "target", "dpp", "ab", "wide_data")

    def __init__(self, text):
        self.text = text
        self.label = None
        self.target = None
        self.reads = set()
        self.writes = set()
        self.srcc = set()
        self.ab = set()
        self.wide_data = set()
        self.passes = 0
        self.dpp = False
        code = text.split(";")[0].strip()
        if code.endswith(":"):
            self.kind = "label"
            self.label = code[:-1]
            self.op = ""
            return
        if not code or code.startswith("."):
            self.kind = "none"
            self.op = ""
            return
        parts = code.split(None, 1)
        op = parts[0]
        self.op = op
        rest = parts[1] if len(parts) > 1 else ""
        ops = []
        cur = ""
        depth = 0
        for ch in rest:
            if ch == "[":
                depth += 1
            if ch == "]":
                depth -= 1
            if ch == "," and depth == 0:
                ops.append(cur.strip())
                cur = ""
            else:
                cur += ch
        if cur.strip():
            ops.append(cur.strip())
        mods = ""
        if ops:
            sp = ops[-1].split(None, 1)
            ops[-1] = sp[0]
            mods = sp[1] if len(sp) > 1 else ""
        R = [regs_of(o) for o in ops]
        if op.startswith("v_mfma"):
            self.kind = "mfma"
            self.passes = 8 if "32x32x16" in op else 4
            self.writes = R[0]
            self.ab = R[1] | R[2]
            self.srcc = R[3]
            self.reads = self.ab | self.srcc
        elif op.startswith("v_"):
            self.kind = "valu"
            self.dpp = "_dpp" in op or "quad_perm" in mods or "row_" in mods or "wave_" in mods
            if op.startswith("v_cmp"):
                self.writes = R[0]
                self.reads = set().union(*R[1:])
            elif op.startswith("v_permlane") and "swap" in op:
                self.writes = R[0] | R[1]
                self.reads = R[0] | R[1]
            elif op in ("v_readfirstlane_b32", "v_readlane_b32"):
                self.writes = R[0]
                self.reads = set().union(*R[1:])
            elif op.startswith(("v_add_co", "v_sub_co", "v_addc_co", "v_subb_co")):
                self.writes = R[0] | R[1]
                self.reads = set().union(*R[2:])
            else:
                self.writes = R[0]
                self.reads = set().union(*R[1:]) if len(R) > 1 else set()
                if op.startswith(("v_fmac", "v_fmaak", "v_pk_fmac", "v_writelane")) or self.dpp:
                    self.reads |= R[0]
                if op.startswith("v_cndmask") and len(R) == 3:
                    self.reads.add(("s", "vcc"))
        elif op.startswith("ds_"):
            self.kind = "ds"
            if op.startswith(("ds_read", "ds_bpermute", "ds_permute", "ds_swizzle")) or "_rtn_" in op:
                self.writes = R[0]
                self.reads = set().union(*R[1:])
            else:
                self.reads = set().union(*R)
        elif op.startswith("buffer_") or op.startswith("global_"):
            self.kind = "vmem"
            lds = " lds" in (" " + mods) or "load_lds" in op
            if "load" in op and not lds:
                self.writes = R[0]
                self.reads = set().union(*R[1:])
            else:
                self.reads = set().union(*R)
                if lds:
                    self.reads.add(("s", "m0"))
                    self.kind = "dma"
                if "store" in op and ("x4" in op or "x3" in op):
                    self.wide_data = R[0] if op.startswith("buffer_") else R[1]
            if "atomic" in op and "sc0" in mods:
                self.writes = R[0]
        elif op.startswith("s_"):
            self.kind = "salu"
            if op.startswith(("s_cbranch", "s_branch")):
                self.kind = "branch"
                self.target = ops[0]
            elif op in ("s_nop",):
                self.kind = "nop"
            elif op.startswith(("s_waitcnt", "s_barrier", "s_endpgm", "s_setprio", "s_sleep", "s_cmp", "s_bitcmp", "s_setpc")):
                self.reads = set().union(*R) if R else set()
            else:
                self.writes = R[0] if R else set()
                self.reads = set().union(*R[1:]) if len(R) > 1 else set()
                if "saveexec" in op:
                    self.writes |= {("s", "exec")}
        else:
            raise ValueError("unknown instruction: " + text)

    def slots(self):
        if self.kind in ("label", "none"):
            return 0
        if self.kind == "nop":
            return int(self.text.split(";")[0].split()[1], 0) + 1
        return 1


def need(prod, cons):
    n = 0
    pk, ck = prod.kind, cons.kind
    vw = {r for r in prod.writes if r[0] in "va"}
    sw = {r for r in prod.writes if r[0] == "s"}
    if pk == "valu":
        if ck == "mfma" and vw & cons.reads:
            n = max(n, 2)
        if ck == "valu":
            if cons.dpp and vw & cons.reads:
                n = max(n, 2)
            if cons.op.startswith("v_permlane") and vw & cons.reads:
                n = max(n, 2)
            if cons.op in ("v_readfirstlane_b32", "v_readlane_b32") and vw & cons.reads:
                n = max(n, 1)
            if prod.op.startswith(TRANS) and not cons.op.startswith(TRANS) and vw & cons.reads:
                n = max(n, 1)
            if sw & cons.reads:
                n = max(n, 4 if cons.op in ("v_readlane_b32", "v_writelane_b32") else 2)
            if "sdwa" in prod.op and vw & (cons.reads | cons.writes):
                n = max(n, 1)
        if ck in ("vmem", "dma") and sw & cons.reads:
            n = max(n, 5)
        if ck == "salu" and sw & cons.reads:
            n = max(n, 1)
        if ("s", "exec") in sw:
            n = max(n, 5)
    if pk == "mfma":
        p = prod.passes
        big = 12 if p == 8 else 8
        if ck == "mfma":
            if prod.writes & cons.ab:
                n = max(n, big)
            if prod.writes & cons.srcc:
                if prod.writes == cons.srcc and prod.passes == cons.passes:
                    pass
                else:
                    n = max(n, 10 if p == 8 else 6)
            elif prod.writes & cons.writes:
                n = max(n, big)
        elif ck in ("valu", "vmem", "ds", "dma"):
            if prod.writes & (cons.reads | cons.writes):
                n = max(n, big)
            if ck == "valu" and prod.srcc & cons.writes:
                n = max(n, 7 if p == 8 else 3)
    if pk == "salu" and ("s", "m0") in prod.writes and ck == "dma":
        n = max(n, 1)
    if pk == "vmem" and prod.wide_data:
        if prod.wide_data & cons.writes:
            n = max(n, 2)
    return n


MAXD = 14


class Asm:
    def __init__(self):
        self.ins = []

    def __call__(self, text):
        for line in text.split("\n"):
            if line.strip():
                self.ins.append(Ins("  " + line.strip() if not line.strip().endswith(":") else line.strip()))

    def label(self, name):
        self.ins.append(Ins(name + ":"))

    def comment(self, text):
        self.ins.append(Ins("  ; " + text))

    def _required(self, hist, cons):
        dist = 0
        pad = 0
        for p in reversed(hist):
            if dist >= MAXD:
                break
            n = need(p, cons) if p.kind not in ("label", "none", "nop") else 0
            if n > dist:
                pad = max(pad, n - dist)
            dist += p.slots()
        return pad

    def finalize(self):
        out = []
        for i in self.ins:
            if i.kind not in ("label", "none", "nop"):
                pad = self._required(out, i)
                while pad > 0:
                    k = min(pad, 16)
                    out.append(Ins("  s_nop %d" % (k - 1)))
                    pad -= k
            out.append(i)
        labels = {x.label: idx for idx, x in enumerate(out) if x.kind == "label"}
        for idx, x in enumerate(out):
            if x.kind == "branch" and x.target in labels:
                hist = out[max(0, idx - 40): idx + 1]
                t = labels[x.target]
                dist = 0
                h = list(hist)
                for y in out[t: t + 40]:
                    if dist >= MAXD:
                        break
                    if y.kind not in ("label", "none", "nop"):
                        pad = self._required(h, y)
                        if pad > 0:
                            raise RuntimeError("hazard across branch %s -> %s (need %d more)" % (x.text, y.text, pad))
                    h.append(y)
                    dist += y.slots()
        self.ins = out
        return "\n".join(i.text for i in out) + "\n"


class Cnt:
    def __init__(self, asm, name, maxv):
        self.asm = asm
        self.name = name
        self.maxv = maxv
        self.q = []

    def issue(self, tag):
        self.q.append(tag)

    def wait_for(self, tags):
        if not isinstance(tags, (set, list, tuple)):
            tags = [tags]
        last = -1
        for i, t in enumerate(self.q):
            if t in tags:
                last = i
        if last < 0:
            return
        n = len(self.q) - 1 - last
        n = min(n, self.maxv)
        self.asm("s_waitcnt %s(%d)" % (self.name, n))
        self.q = self.q[len(self.q) - n:] if n else []

    def drain(self):
        self.asm("s_waitcnt %s(0)" % self.name)
        self.q = []


def kernel_text(name, body, vgpr, accum=None, sgpr=96):
    if accum is None:
        accum = (vgpr + 3) // 4 * 4
    return body, (name, vgpr, accum, sgpr)


def srd(a, d, base, nbytes):
    a(f"s_mov_b32 s{d}, s{base}")
    a(f"s_mov_b32 s{d+1}, s{base+1}")
    a(f"s_mov_b32 s{d+2}, {nbytes}")
    a(f"s_mov_b32 s{d+3}, 0x20000")


def srd_off(a, d, base, off, nbytes):
    a(f"s_add_u32 s{d}, s{base}, {off}")
    a(f"s_addc_u32 s{d+1}, s{base+1}, 0")
    a(f"s_mov_b32 s{d+2}, {nbytes}")
    a(f"s_mov_b32 s{d+3}, 0x20000")
```

```python
import sys, os
sys.path.insert(0, os.path.dirname(os.path.abspath(__file__)))
from asmlib import *

MB = 1 << 20
KA_Q, KA_K, KA_V, KA_SHK, KA_SSMK, KA_SSMD, KA_X, KA_WQKV, KA_WO, KA_OUT, KA_DBG, KA_WS = [8 * i for i in range(12)]
WS_QF = 0
WS_OF = 4 * MB
WS_KVP = 8 * MB
WS_ZP = 12 * MB
WS_UT = 16 * MB
WS_YF = 20 * MB

LOG2E = 0x3fb8aa3b
EPS = 0x358637bd


def vr(b, n=4):
    return f"v[{b}:{b+n-1}]"


def mfma(a, d, A, B, c=None):
    cs = vr(d, 16) if c is None else c
    a(f"v_mfma_f32_32x32x16_bf16 {vr(d,16)}, {vr(A)}, {vr(B)}, {cs}")


G1_NS = 4
G1_STAGE = 40960


def gen_g1():
    a = Asm()
    NS = G1_NS
    a("s_cmp_ge_u32 s2, 256")
    a("s_cbranch_scc1 G1_end")
    a(f"s_load_dwordx4 s[4:7], s[0:1], {KA_X}")
    a(f"s_load_dwordx2 s[8:9], s[0:1], {KA_WS}")
    a("v_lshrrev_b32 v1, 6, v0")
    a("v_and_b32 v2, 63, v0")
    a("s_and_b32 s10, s2, 7")
    a("v_readfirstlane_b32 s3, v1")
    a("s_lshr_b32 s11, s2, 3")
    a("s_and_b32 s12, s10, 1")
    a("s_lshl_b32 s12, s12, 3")
    a("s_and_b32 s13, s11, 7")
    a("s_add_u32 s12, s12, s13")
    a("s_lshr_b32 s13, s10, 1")
    a("s_lshl_b32 s13, s13, 2")
    a("s_lshr_b32 s14, s11, 3")
    a("s_add_u32 s13, s13, s14")
    a("s_waitcnt lgkmcnt(0)")
    srd(a, 16, 4, 4 * MB)
    srd(a, 20, 6, 6 * MB)
    srd_off(a, 24, 8, WS_QF, 4 * MB)
    srd_off(a, 28, 8, WS_KVP, 4 * MB)
    srd_off(a, 32, 8, WS_ZP, 128 * 1024)
    a("s_cmp_ge_u32 s3, 4")
    a("s_cbranch_scc1 G1_loader")

    a("s_and_b32 s36, s3, 1")
    a("s_lshr_b32 s37, s3, 1")
    a("v_and_b32 v3, 31, v2")
    a("v_lshrrev_b32 v14, 5, v2")
    a("s_lshl_b32 s38, s36, 6")
    a("v_add_u32 v15, s38, v3")
    a("v_lshrrev_b32 v16, 1, v15")
    a("v_and_b32 v16, 7, v16")
    a("v_lshlrev_b32 v15, 7, v15")
    for t in range(4):
        a(f"v_add_u32 v17, {2*t}, v14")
        a("v_xor_b32 v17, v17, v16")
        a(f"v_lshl_add_u32 v{4+t}, v17, 4, v15")
        a(f"v_add_u32 v{8+t}, {2*G1_STAGE}, v{4+t}")
    a("v_and_b32 v17, 15, v2")
    a("v_lshrrev_b32 v18, 2, v17")
    a("v_and_b32 v17, 3, v17")
    a("v_lshlrev_b32 v18, 6, v18")
    a("v_lshl_add_u32 v18, v17, 3, v18")
    a("v_bfe_u32 v17, v2, 4, 1")
    a("v_lshl_add_u32 v18, v17, 5, v18")
    a("v_lshl_add_u32 v18, v14, 10, v18")
    a("s_lshl_b32 s38, s37, 8")
    a("s_add_u32 s38, s38, 16384")
    a("v_add_u32 v12, s38, v18")
    a(f"v_add_u32 v13, {2*G1_STAGE}, v12")
    S = [dict(A0=16, A1=20, Bq=24, Bk=28, Bv=32), dict(A0=36, A1=40, Bq=44, Bk=48, Bv=52)]
    ACC = dict(Q0=64, Q1=80, K0=96, K1=112, V0=128, V1=144)
    for i in range(64, 160):
        a(f"v_mov_b32 v{i}, 0")
    lg = Cnt(a, "lgkmcnt", 15)

    def reads(slot, t, st):
        sb = (slot & 1) * G1_STAGE
        va = 4 + t + (4 if slot >= 2 else 0)
        vb = 13 if slot >= 2 else 12
        R = S[st]
        out = []
        out.append((("A0", st), f"ds_read_b128 {vr(R['A0'])}, v{va} offset:{sb}"))
        for h in range(2):
            out.append((("Bq", st), f"ds_read_b64_tr_b16 {vr(R['Bq']+2*h,2)}, v{vb} offset:{sb + t*6144 + 0*2048 + 512*h}"))
        out.append((("A1", st), f"ds_read_b128 {vr(R['A1'])}, v{va} offset:{sb + 4096}"))
        for h in range(2):
            out.append((("Bk", st), f"ds_read_b64_tr_b16 {vr(R['Bk']+2*h,2)}, v{vb} offset:{sb + t*6144 + 1*2048 + 512*h}"))
        for h in range(2):
            out.append((("Bv", st), f"ds_read_b64_tr_b16 {vr(R['Bv']+2*h,2)}, v{vb} offset:{sb + t*6144 + 2*2048 + 512*h}"))
        return out

    def group(st, nxt):
        R = S[st]
        seq = [("Q0", "Bq", "A0"), ("Q1", "Bq", "A1"), ("K0", "A0", "Bk"), ("K1", "A1", "Bk"), ("V0", "A0", "Bv"), ("V1", "A1", "Bv")]
        nxt = list(nxt)
        for i, (d, A, B) in enumerate(seq):
            lg.wait_for([(A, st), (B, st)])
            mfma(a, ACC[d], R[A], R[B])
            if i < 4:
                for _ in range(2):
                    tag, txt = nxt.pop(0)
                    a(txt)
                    lg.issue(tag)

    a("s_barrier")
    for tag, txt in reads(0, 0, 0):
        a(txt)
        lg.issue(tag)
    a("s_mov_b32 s39, 4")
    a.label("G1_loop")
    q0 = list(lg.q)
    for slot in range(4):
        group(0, reads(slot, 1, 1))
        group(1, reads(slot, 2, 0))
        group(0, reads(slot, 3, 1))
        lg.drain()
        a("s_barrier")
        group(1, reads((slot + 1) % 4, 0, 0))
    assert lg.q == q0, (lg.q, q0)
    a("s_sub_u32 s39, s39, 1")
    a("s_cmp_lg_u32 s39, 0")
    a("s_cbranch_scc1 G1_loop")
    lg.drain()

    a("s_lshl_b32 s40, s13, 1")
    a("s_add_u32 s40, s40, s37")
    a("s_lshl_b32 s41, s12, 2")
    a("s_lshl_b32 s42, s36, 1")
    a("s_add_u32 s41, s41, s42")
    a("s_lshl_b32 s42, s41, 5")
    a("s_add_u32 s42, s42, s40")
    a("s_lshl_b32 s42, s42, 11")
    a("s_add_u32 s43, s42, 65536")
    a("v_lshlrev_b32 v3, 4, v2")
    a(f"s_mov_b32 s44, {LOG2E}")
    a(f"s_mov_b32 s45, {LOG2E}")
    a(f"s_mov_b32 s46, {EPS}")
    a(f"s_mov_b32 s47, {EPS}")
    for mt in range(2):
        acc = ACC["Q%d" % mt]
        for i in range(8):
            a(f"v_cvt_pk_bf16_f32 v{160+8*mt+i}, v{acc+2*i}, v{acc+2*i+1}")
        for f in range(2):
            a(f"buffer_store_dwordx4 {vr(160+8*mt+4*f)}, v3, s[24:27], s{42+mt} offen offset:{1024*f}")
    for mt in range(2):
        acc = ACC["V%d" % mt]
        for i in range(8):
            a(f"v_cvt_pk_bf16_f32 v{16+8*mt+i}, v{acc+2*i}, v{acc+2*i+1}")
    for i in range(4):
        a(f"v_mov_b32 v{56+i}, 0x3f803f80")
    for mt in range(2):
        acc = ACC["K%d" % mt]
        for i0 in range(0, 8, 4):
            T = 176
            for j in range(4):
                i = i0 + j
                a(f"v_cvt_pk_bf16_f32 v{T+j}, v{acc+2*i}, v{acc+2*i+1}")
            for j in range(4):
                a(f"v_lshlrev_b32 v{T+4+2*j}, 16, v{T+j}")
                a(f"v_and_b32 v{T+5+2*j}, 0xffff0000, v{T+j}")
            for j in range(8):
                a(f"v_min_f32 v{T+12+j}, 0, v{T+4+j}")
            for j in range(4):
                a(f"v_pk_mul_f32 {vr(T+20+2*j,2)}, {vr(T+12+2*j,2)}, s[44:45]")
            for j in range(8):
                a(f"v_exp_f32 v{T+20+j}, v{T+20+j}")
            for j in range(4):
                a(f"v_pk_add_f32 {vr(T+4+2*j,2)}, {vr(T+4+2*j,2)}, {vr(T+12+2*j,2)} neg_lo:[0,1] neg_hi:[0,1]")
            for j in range(4):
                a(f"v_pk_add_f32 {vr(T+4+2*j,2)}, {vr(T+4+2*j,2)}, {vr(T+20+2*j,2)}")
            for j in range(4):
                a(f"v_pk_add_f32 {vr(T+4+2*j,2)}, {vr(T+4+2*j,2)}, s[46:47]")
            for j in range(4):
                a(f"v_cvt_pk_bf16_f32 v{32+8*mt+i0+j}, v{T+4+2*j}, v{T+5+2*j}")
            first = (mt == 0 and i0 == 0)
            fr = 8 * mt + i0
            mfma(a, 64, 32 + fr, 16 + fr, "0" if first else None)
            mfma(a, 80, 32 + fr, 56, "0" if first else None)
    a("s_lshl_b32 s48, s12, 1")
    a("s_add_u32 s48, s48, s36")
    a("s_lshl_b32 s49, s40, 5")
    a("s_add_u32 s48, s48, s49")
    a("s_lshl_b32 s49, s48, 12")
    a("s_lshl_b32 s50, s48, 7")
    a("v_lshlrev_b32 v4, 6, v14")
    for qd in range(4):
        a(f"buffer_store_dwordx4 {vr(64+4*qd)}, v3, s[28:31], s49 offen offset:{1024*qd}")
    a("s_mov_b32 exec_lo, 1")
    a("s_mov_b32 exec_hi, 1")
    for qd in range(4):
        a(f"buffer_store_dwordx4 {vr(80+4*qd)}, v4, s[32:35], s50 offen offset:{16*qd}")
    a("s_endpgm")

    a.label("G1_loader")
    a("s_sub_u32 s36, s3, 4")
    a("v_lshrrev_b32 v3, 3, v2")
    a("v_and_b32 v4, 7, v2")
    a("v_lshrrev_b32 v5, 4, v2")
    for jl in range(4):
        a(f"v_add_u32 v6, {4*(jl&1)}, v5")
        a("v_xor_b32 v6, v6, v4")
        a("v_lshlrev_b32 v6, 4, v6")
        a("v_lshl_add_u32 v6, v3, 11, v6")
        a(f"v_add_u32 v{8+jl}, {jl*(16384-1024)}, v6")
    a("v_lshrrev_b32 v6, 5, v2")
    a("v_bfe_u32 v7, v2, 2, 2")
    a("v_lshl_add_u32 v6, v6, 2, v7")
    a("s_movk_i32 s37, 6144")
    a("v_mul_lo_u32 v6, v6, s37")
    a("v_bfe_u32 v7, v2, 4, 1")
    a("v_lshl_add_u32 v6, v7, 6, v6")
    a("v_and_b32 v7, 3, v2")
    a("v_lshl_add_u32 v6, v7, 4, v6")
    binst = []
    for seg in range(3):
        for gg in range(2):
            ldsoff = seg * 2048 + gg * 1024
            m0sel = ldsoff // 4096
            ioff = ldsoff % 4096
            reg = 12 + seg * 2 + gg
            a(f"v_add_u32 v{reg}, {8*gg*6144 + seg*2048 - ioff}, v6")
            binst.append((reg, m0sel, ioff))
    a("s_lshl_b32 s38, s12, 7")
    a("s_lshl_b32 s40, s36, 5")
    a("s_add_u32 s38, s38, s40")
    a("s_lshl_b32 s38, s38, 11")
    a("s_mul_i32 s39, s36, 98304")
    a("s_lshl_b32 s40, s13, 7")
    a("s_add_u32 s39, s39, s40")
    a("s_lshl_b32 s41, s36, 12")
    a("s_mul_i32 s42, s36, 6144")
    a("s_add_u32 s42, s42, 16384")

    def issue(kt):
        sb = (kt % NS) * G1_STAGE
        a(f"s_add_u32 m0, s41, {sb}")
        for jl in range(4):
            a(f"buffer_load_dwordx4 v{8+jl}, s[16:19], s38 offen offset:{jl*1024} lds")
        cur = -1
        for reg, m0sel, ioff in binst:
            if m0sel != cur:
                a(f"s_add_u32 m0, s42, {sb + 4096*m0sel}")
                cur = m0sel
            a(f"buffer_load_dwordx4 v{reg}, s[20:23], s39 offen offset:{ioff} lds")
        a("s_add_u32 s38, s38, 128")
        a(f"s_add_u32 s39, s39, {64*6144}")

    for kt in range(NS - 1):
        issue(kt)
    for kt in range(16):
        n = 10 * (min(kt + NS - 2, 15) - kt)
        a(f"s_waitcnt vmcnt({n})")
        a("s_barrier")
        if kt + NS - 1 < 16:
            issue(kt + NS - 1)
    a("s_barrier")
    a.label("G1_end")
    a("s_endpgm")
    return a.finalize(), 208


def gen_opass():
    a = Asm()
    a("s_cmp_ge_u32 s2, 128")
    a("s_cbranch_scc1 OP_end")
    a(f"s_load_dwordx2 s[8:9], s[0:1], {KA_WS}")
    a("v_lshrrev_b32 v1, 6, v0")
    a("v_and_b32 v2, 63, v0")
    a("s_and_b32 s10, s2, 31")
    a("v_readfirstlane_b32 s3, v1")
    a("s_lshr_b32 s11, s2, 5")
    a("v_lshlrev_b32 v3, 4, v2")
    a("v_lshrrev_b32 v4, 5, v2")
    a("v_lshlrev_b32 v4, 6, v4")
    a("s_waitcnt lgkmcnt(0)")
    srd_off(a, 24, 8, WS_QF, 4 * MB)
    srd_off(a, 28, 8, WS_KVP, 4 * MB)
    srd_off(a, 32, 8, WS_ZP, 128 * 1024)
    srd_off(a, 36, 8, WS_OF, 4 * MB)
    a("s_lshl_b32 s12, s10, 5")
    a("s_lshl_b32 s13, s3, 3")
    a("s_add_u32 s12, s12, s13")
    a("s_lshl_b32 s13, s12, 12")
    a("s_lshl_b32 s14, s12, 7")
    vm = Cnt(a, "vmcnt", 63)
    for p in range(8):
        for qd in range(4):
            a(f"buffer_load_dwordx4 {vr(64+16*p+4*qd)}, v3, s[28:31], s13 offen offset:{1024*qd}")
            vm.issue(("kv", p))
        a("s_add_u32 s13, s13, 4096")
    a("s_lshl_b32 s15, s11, 4")
    a("s_lshl_b32 s16, s3, 2")
    a("s_add_u32 s15, s15, s16")
    a("s_lshl_b32 s16, s15, 5")
    a("s_add_u32 s16, s16, s10")
    a("s_lshl_b32 s16, s16, 11")
    a("s_mov_b32 s17, s16")
    for i in range(4):
        for f in range(2):
            a(f"buffer_load_dwordx4 {vr(8+8*i+4*f)}, v3, s[24:27], s17 offen offset:{1024*f}")
            vm.issue(("q", i))
        a("s_add_u32 s17, s17, 65536")
    for p in range(4):
        for qd in range(4):
            a(f"buffer_load_dwordx4 {vr(192+16*p+4*qd)}, v4, s[32:35], s14 offen offset:{128*p+16*qd}")
            vm.issue(("z", p))
    for p in range(1, 8):
        vm.wait_for([("kv", p), ("kv", 0)])
        for i in range(0, 16, 2):
            a(f"v_pk_add_f32 {vr(64+i,2)}, {vr(64+i,2)}, {vr(64+16*p+i,2)}")
    for p in range(4, 8):
        for qd in range(4):
            a(f"buffer_load_dwordx4 {vr(80+16*(p-4)+4*qd)}, v4, s[32:35], s14 offen offset:{128*p+16*qd}")
            vm.issue(("z", p))
    for p in range(1, 4):
        vm.wait_for([("z", p), ("z", 0)])
        for i in range(0, 16, 2):
            a(f"v_pk_add_f32 {vr(192+i,2)}, {vr(192+i,2)}, {vr(192+16*p+i,2)}")
    for p in range(4, 8):
        vm.wait_for([("z", p)])
        for i in range(0, 16, 2):
            a(f"v_pk_add_f32 {vr(192+i,2)}, {vr(192+i,2)}, {vr(80+16*(p-4)+i,2)}")
    a("s_lshl_b32 s18, s3, 13")
    a("v_add_u32 v5, s18, v3")
    for qd in range(4):
        a(f"ds_write_b128 v5, {vr(64+4*qd)} offset:{1024*qd}")
    for qd in range(4):
        a(f"ds_write_b128 v5, {vr(192+4*qd)} offset:{4096+1024*qd}")
    a("s_waitcnt lgkmcnt(0)")
    a("s_barrier")
    for w in range(4):
        for qd in range(4):
            a(f"ds_read_b128 {vr(64+16*w+4*qd)}, v3 offset:{8192*w+1024*qd}")
        a("s_waitcnt lgkmcnt(0)") if False else None
    a("s_waitcnt lgkmcnt(0)")
    for w in range(4):
        for qd in range(4):
            a(f"ds_read_b128 {vr(128+16*w+4*qd)}, v3 offset:{8192*w+4096+1024*qd}")
    for w in range(1, 4):
        for i in range(0, 16, 2):
            a(f"v_pk_add_f32 {vr(64+i,2)}, {vr(64+i,2)}, {vr(64+16*w+i,2)}")
    a("s_waitcnt lgkmcnt(0)")
    for w in range(1, 4):
        for i in range(0, 16, 2):
            a(f"v_pk_add_f32 {vr(128+i,2)}, {vr(128+i,2)}, {vr(128+16*w+i,2)}")
    for i in range(8):
        a(f"v_cvt_pk_bf16_f32 v{40+i}, v{64+2*i}, v{65+2*i}")
    for i in range(8):
        a(f"v_cvt_pk_bf16_f32 v{48+i}, v{128+2*i}, v{129+2*i}")
    a(f"s_mov_b32 s44, {LOG2E}")
    a(f"s_mov_b32 s45, {LOG2E}")
    a(f"s_mov_b32 s46, {EPS}")
    a(f"s_mov_b32 s47, {EPS}")
    a("s_mov_b32 s17, s16")
    for i in range(4):
        vm.wait_for([("q", i)])
        T = 176
        for h4 in range(2):
            b = 8 + 8 * i + 4 * h4
            for j in range(4):
                a(f"v_lshlrev_b32 v{T+4+2*j}, 16, v{b+j}")
                a(f"v_and_b32 v{T+5+2*j}, 0xffff0000, v{b+j}")
            for j in range(8):
                a(f"v_min_f32 v{T+12+j}, 0, v{T+4+j}")
            for j in range(4):
                a(f"v_pk_mul_f32 {vr(T+20+2*j,2)}, {vr(T+12+2*j,2)}, s[44:45]")
            for j in range(8):
                a(f"v_exp_f32 v{T+20+j}, v{T+20+j}")
            for j in range(4):
                a(f"v_pk_add_f32 {vr(T+4+2*j,2)}, {vr(T+4+2*j,2)}, {vr(T+12+2*j,2)} neg_lo:[0,1] neg_hi:[0,1]")
            for j in range(4):
                a(f"v_pk_add_f32 {vr(T+4+2*j,2)}, {vr(T+4+2*j,2)}, {vr(T+20+2*j,2)}")
            for j in range(4):
                a(f"v_pk_add_f32 {vr(T+4+2*j,2)}, {vr(T+4+2*j,2)}, s[46:47]")
            for j in range(4):
                a(f"v_cvt_pk_bf16_f32 v{b+j}, v{T+4+2*j}, v{T+5+2*j}")
        b = 8 + 8 * i
        N, D = 64 + 32 * (i & 1), 80 + 32 * (i & 1)
        mfma(a, N, 40, b, "0")
        mfma(a, D, 48, b, "0")
        mfma(a, N, 44, b + 4)
        mfma(a, D, 52, b + 4)
        a(f"v_add_f32 v56, s46, v{D}")
        a("v_rcp_f32 v56, v56")
        a("s_nop 0")
        a("v_mov_b32 v57, v56")
        for j in range(8):
            a(f"v_pk_mul_f32 {vr(N+2*j,2)}, {vr(N+2*j,2)}, v[56:57]")
        O = 208 + 8 * (i & 1)
        for j in range(8):
            a(f"v_cvt_pk_bf16_f32 v{O+j}, v{N+2*j}, v{N+2*j+1}")
        for f in range(2):
            a(f"buffer_store_dwordx4 {vr(O+4*f)}, v3, s[36:39], s17 offen offset:{1024*f}")
        a("s_add_u32 s17, s17, 65536")
    a.label("OP_end")
    a("s_endpgm")
    return a.finalize(), 256


G2_DEPTH = 24


def gen_g2():
    a = Asm()
    a("s_cmp_ge_u32 s2, 256")
    a("s_cbranch_scc1 G2_end")
    a(f"s_load_dwordx4 s[4:7], s[0:1], {KA_WO}")
    a(f"s_load_dwordx2 s[8:9], s[0:1], {KA_WS}")
    a("v_lshrrev_b32 v1, 6, v0")
    a("v_and_b32 v2, 63, v0")
    a("s_and_b32 s10, s2, 7")
    a("v_readfirstlane_b32 s3, v1")
    a("s_lshr_b32 s11, s2, 3")
    a("s_and_b32 s12, s10, 3")
    a("s_lshl_b32 s12, s12, 2")
    a("s_and_b32 s13, s11, 3")
    a("s_add_u32 s12, s12, s13")
    a("s_lshr_b32 s13, s10, 2")
    a("s_lshl_b32 s13, s13, 3")
    a("s_lshr_b32 s14, s11, 2")
    a("s_add_u32 s13, s13, s14")
    a("s_waitcnt lgkmcnt(0)")
    srd(a, 16, 4, 2 * MB)
    srd(a, 20, 6, 8 * MB)
    srd_off(a, 24, 8, WS_OF, 4 * MB)
    a("s_cmp_ge_u32 s3, 4")
    a("s_cbranch_scc1 G2_loader")
    a("v_lshlrev_b32 v3, 4, v2")
    a("s_lshl_b32 s36, s12, 2")
    a("s_add_u32 s36, s36, s3")
    a("s_lshl_b32 s37, s36, 16")
    vm = Cnt(a, "vmcnt", 63)
    lg = Cnt(a, "lgkmcnt", 15)
    D = G2_DEPTH
    AR = 64
    def aload(T):
        r = AR + 4 * (T % D)
        a(f"buffer_load_dwordx4 {vr(r)}, v3, s[24:27], s37 offen offset:{1024*(T%4)}")
        vm.issue(("A", T))
        if T % 4 == 3:
            a("s_add_u32 s37, s37, 4096")
    for T in range(D):
        aload(T)
    a("v_and_b32 v17, 15, v2")
    a("v_lshrrev_b32 v18, 2, v17")
    a("v_and_b32 v17, 3, v17")
    a("v_lshlrev_b32 v18, 6, v18")
    a("v_lshl_add_u32 v18, v17, 3, v18")
    a("v_bfe_u32 v17, v2, 4, 1")
    a("v_lshl_add_u32 v18, v17, 5, v18")
    a("v_lshrrev_b32 v14, 5, v2")
    a("v_lshl_add_u32 v12, v14, 9, v18")
    a("v_add_u32 v13, 0x10000, v12")
    ACC = [32, 48]
    BS = [[16, 20], [24, 28]]

    def breads(T):
        out = []
        st = T & 1
        vb = 13 if T >= 32 else 12
        off = (T % 32) * 2048
        for nb in range(2):
            for h in range(2):
                out.append(((T, nb), f"ds_read_b64_tr_b16 {vr(BS[st][nb]+2*h,2)}, v{vb} offset:{off + nb*256 + 1024*h}"))
        return out

    a("s_barrier")
    for tag, txt in breads(0):
        a(txt); lg.issue(tag)
    for T in range(64):
        nxt = []
        if T + 1 < 64:
            if (T + 1) % 8 == 0:
                a("s_barrier")
            nxt = breads(T + 1)
        vm.wait_for([("A", T)])
        for nb in range(2):
            lg.wait_for([(T, nb)])
            mfma(a, ACC[nb], BS[T & 1][nb], AR + 4 * (T % D), "0" if T == 0 else None)
            for tag, txt in nxt[2 * nb: 2 * nb + 2]:
                a(txt); lg.issue(tag)
        if T + D < 64:
            aload(T + D)
    a("v_and_b32 v4, 31, v2")
    a("v_lshlrev_b32 v4, 12, v4")
    a("v_lshl_add_u32 v4, v14, 4, v4")
    a("s_lshl_b32 s38, s36, 17")
    a("s_lshl_b32 s39, s13, 7")
    a("s_add_u32 s38, s38, s39")
    a("s_add_u32 s38, s38, 2048")
    for nb in range(2):
        for kp in range(2):
            P = 160 + 8 * nb + 4 * kp
            base = ACC[nb] + 8 * kp
            for j in range(4):
                a(f"v_cvt_pk_bf16_f32 v{P+j}, v{base+2*j}, v{base+2*j+1}")
            a(f"v_permlane32_swap_b32 v{P}, v{P+2}")
            a(f"v_permlane32_swap_b32 v{P+1}, v{P+3}")
            a(f"buffer_store_dwordx4 {vr(P)}, v4, s[20:23], s38 offen offset:{64*nb+32*kp}")
    a("s_endpgm")
    a.label("G2_loader")
    a("s_sub_u32 s36, s3, 4")
    a("v_lshrrev_b32 v6, 5, v2")
    a("v_bfe_u32 v7, v2, 2, 2")
    a("v_lshl_add_u32 v6, v6, 2, v7")
    a("v_lshlrev_b32 v6, 11, v6")
    a("v_bfe_u32 v7, v2, 4, 1")
    a("v_lshl_add_u32 v6, v7, 6, v6")
    a("v_and_b32 v7, 3, v2")
    a("v_lshl_add_u32 v6, v7, 4, v6")
    for j in range(4):
        a(f"v_add_u32 v{8+j}, {j*(16384-1024)}, v6")
    a("s_lshl_b32 s38, s36, 16")
    a("s_lshl_b32 s39, s13, 7")
    a("s_add_u32 s38, s38, s39")
    a("s_lshl_b32 s41, s36, 12")
    for c in range(8):
        a(f"s_add_u32 m0, s41, {c*16384}")
        for j in range(4):
            a(f"buffer_load_dwordx4 v{8+j}, s[16:19], s38 offen offset:{j*1024} lds")
        a(f"s_add_u32 s38, s38, {128*2048}")
    for c in range(8):
        a(f"s_waitcnt vmcnt({4*(7-c)})")
        a("s_barrier")
    a.label("G2_end")
    a("s_endpgm")
    return a.finalize(), 176


def gen_pre():
    a = Asm()
    a("s_cmp_ge_u32 s2, 128")
    a("s_cbranch_scc1 PR_end")
    a(f"s_load_dwordx4 s[4:7], s[0:1], {KA_K}")
    a(f"s_load_dwordx2 s[10:11], s[0:1], {KA_SHK}")
    a(f"s_load_dwordx2 s[8:9], s[0:1], {KA_WS}")
    a("v_lshrrev_b32 v1, 6, v0")
    a("v_and_b32 v2, 63, v0")
    a("s_lshl_b32 s12, s2, 2")
    a("v_readfirstlane_b32 s3, v1")
    a("v_and_b32 v3, 7, v2")
    a("v_lshrrev_b32 v4, 3, v2")
    a("s_add_u32 s12, s12, s3")
    a("s_and_b32 s13, s12, 15")
    a("s_lshr_b32 s14, s12, 4")
    a("s_waitcnt lgkmcnt(0)")
    srd(a, 16, 4, 4 * MB)
    srd(a, 20, 6, 4 * MB)
    srd(a, 24, 10, 8192)
    srd_off(a, 28, 8, WS_UT, 4 * MB)
    a("s_lshl_b32 s15, s14, 17")
    a("s_lshl_b32 s32, s13, 7")
    a("s_add_u32 s15, s15, s32")
    a("v_lshlrev_b32 v5, 14, v4")
    a("v_lshl_add_u32 v5, v3, 4, v5")
    a("v_add_u32 v5, s15, v5")
    vm = Cnt(a, "vmcnt", 63)
    a("s_lshl_b32 s32, s13, 9")
    a("v_lshlrev_b32 v6, 6, v3")
    for i in range(4):
        a(f"buffer_load_dwordx4 {vr(8+4*i)}, v6, s[24:27], s32 offen offset:{16*i}")
        vm.issue("w")
    for i in range(11):
        a(f"v_add_u32 v7, {(i-3)*2048 & 0xffffffff}, v5")
        a(f"buffer_load_dwordx4 {vr(24+4*i)}, v7, s[16:19], 0 offen")
        vm.issue(("k", i))
    for i in range(8):
        a(f"v_add_u32 v7, {i*2048}, v5")
        a(f"buffer_load_dwordx4 {vr(68+4*i)}, v7, s[20:23], 0 offen")
        vm.issue(("v", i))
    vm.wait_for(["w"])
    for ci in range(8):
        a(f"v_lshlrev_b32 v{100+ci}, 16, v{8+2*ci}")
        a(f"v_and_b32 v{108+ci}, 0xffff0000, v{8+2*ci}")
        a(f"v_lshlrev_b32 v{116+ci}, 16, v{9+2*ci}")
        a(f"v_and_b32 v{124+ci}, 0xffff0000, v{9+2*ci}")
    vm.drain()
    a("s_lshl_b32 s33, s13, 18")
    a("s_lshl_b32 s34, s14, 7")
    a("s_add_u32 s33, s33, s34")
    a("v_lshlrev_b32 v6, 15, v3")
    a("v_lshl_add_u32 v6, v4, 4, v6")
    for cp in range(4):
        for i in range(11):
            a(f"v_lshlrev_b32 v{132+2*i}, 16, v{24+4*i+cp}")
            a(f"v_and_b32 v{133+2*i}, 0xffff0000, v{24+4*i+cp}")
        for i in range(8):
            a(f"v_lshlrev_b32 v{154+2*i}, 16, v{68+4*i+cp}")
            a(f"v_and_b32 v{155+2*i}, 0xffff0000, v{68+4*i+cp}")
        for i in range(8):
            a(f"v_pk_mul_f32 {vr(170+2*i,2)}, {vr(132+2*i,2)}, {vr(124+2*cp,2)}")
        for j in (2, 1, 0):
            for i in range(8):
                a(f"v_pk_fma_f32 {vr(170+2*i,2)}, {vr(132+2*(i+3-j),2)}, {vr(100+8*j+2*cp,2)}, {vr(170+2*i,2)}")
        for i in range(8):
            a(f"v_pk_mul_f32 {vr(170+2*i,2)}, {vr(170+2*i,2)}, {vr(154+2*i,2)}")
        O = 188 + 8 * (cp & 1)
        for e in range(2):
            for i in range(4):
                a(f"v_cvt_pk_bf16_f32 v{O+4*e+i}, v{170+4*i+e}, v{170+4*i+2+e}")
        for e in range(2):
            a(f"buffer_store_dwordx4 {vr(O+4*e)}, v6, s[28:31], s33 offen")
            a("s_add_u32 s33, s33, 4096")
    a.label("PR_end")
    a("s_endpgm")
    return a.finalize(), 208


CV_WREG = 9216
CV_HB = 64
CV_UB = 4672


def gen_conv():
    a = Asm()
    a("s_cmp_ge_u32 s2, 256")
    a("s_cbranch_scc1 CV_end")
    a(f"s_load_dwordx4 s[4:7], s[0:1], {KA_SSMK}")
    a(f"s_load_dwordx2 s[8:9], s[0:1], {KA_WS}")
    a("v_lshrrev_b32 v1, 6, v0")
    a("v_and_b32 v2, 63, v0")
    a("s_lshl_b32 s12, s2, 2")
    a("v_readfirstlane_b32 s3, v1")
    a("v_lshlrev_b32 v3, 4, v2")
    a("s_add_u32 s12, s12, s3")
    a("s_mul_i32 s13, s3, %d" % CV_WREG)
    a("s_lshl_b32 s14, s12, 12")
    a("s_waitcnt lgkmcnt(0)")
    srd(a, 16, 4, 4 * MB)
    srd(a, 20, 6, 2048)
    srd_off(a, 24, 8, WS_UT, 4 * MB)
    srd_off(a, 28, 8, WS_YF, 4 * MB)
    vm = Cnt(a, "vmcnt", 63)
    lg = Cnt(a, "lgkmcnt", 15)
    a("s_lshl_b32 s15, s12, 1")
    a("v_mov_b32 v4, 0")
    a("buffer_load_ushort v5, v4, s[20:23], s15 offen")
    vm.issue("D")
    for c in range(4):
        a(f"s_add_u32 m0, s13, {CV_UB}")
        a(f"buffer_load_dwordx4 v3, s[24:27], s14 offen offset:{1024*c} lds")
        vm.issue(("u", c))
        a(f"s_add_u32 m0, s13, {CV_HB}")
        a(f"buffer_load_dwordx4 v3, s[16:19], s14 offen offset:{1024*c} lds")
        vm.issue(("h", c))
    a("v_mov_b32 v6, 0")
    a("v_mov_b32 v7, 0")
    a("v_lshlrev_b32 v8, 3, v2")
    a("v_add_u32 v8, s13, v8")
    a(f"ds_write_b64 v8, v[6:7] offset:{CV_UB-512}")
    a("v_and_b32 v8, 15, v2")
    a("v_lshlrev_b32 v8, 2, v8")
    a("v_add_u32 v8, s13, v8")
    a("ds_write_b32 v8, v6")
    a("v_and_b32 v8, 3, v2")
    a("v_bfe_u32 v9, v2, 2, 2")
    a("v_bfe_u32 v10, v2, 4, 1")
    a("v_lshrrev_b32 v11, 5, v2")
    a("v_lshlrev_b32 v12, 5, v10")
    a("v_lshl_add_u32 v12, v8, 3, v12")
    a("v_lshl_add_u32 v12, v11, 6, v12")
    a("v_lshlrev_b32 v13, 3, v9")
    a("v_sub_u32 v12, v12, v13")
    a("s_add_u32 s32, s13, 32")
    a("v_add_u32 v12, s32, v12")
    a("v_lshlrev_b32 v14, 8, v10")
    a("v_lshl_add_u32 v14, v8, 6, v14")
    a("v_add_u32 v14, v14, v13")
    a("v_lshlrev_b32 v15, 6, v11")
    a("v_sub_u32 v14, v14, v15")
    a(f"s_add_u32 s32, s13, {CV_UB-384}")
    a("v_add_u32 v14, s32, v14")
    a("v_mov_b32 v15, s13")
    vm.wait_for([("h", 0)])
    a(f"ds_read_u16 v16, v15 offset:{CV_HB}")
    a("v_lshlrev_b32 v5, 16, v5")
    a("s_waitcnt lgkmcnt(0)")
    a("v_lshlrev_b32 v16, 16, v16")
    a("v_add_f32 v16, v16, v5")
    a("v_cvt_pk_bf16_f32 v16, v16, v16")
    a(f"ds_write_b16 v15, v16 offset:{CV_HB}")
    a("s_waitcnt lgkmcnt(0)")

    FU = 128
    HR = 16
    NH = 4
    ACCS = [[32, 48], [64, 80]]
    T2 = [96, 97]
    T1 = [98, 99]
    YV = [100, 101]
    PK = [104, 108]
    R3PREV = 112

    def fu_reads(s):
        return [(("fu", s), f"ds_read_b64_tr_b16 {vr(FU+4*(s+3)+2*h,2)}, v14 offset:{128*(s+3)+32*h}") for h in range(2)]

    def h_reads(t, slot):
        return [(("h", slot), f"ds_read_b64_tr_b16 {vr(HR+4*slot+2*h,2)}, v12 offset:{128*t+32*(1-h)}") for h in range(2)]

    def epilogue_ops(p):
        ops = []
        dpp = "row_mask:0xf bank_mask:0xf"
        for ql in range(8):
            Q = 8 * p + ql
            acc = ACCS[p & 1][ql // 4] + 4 * (ql % 4)
            R0, R1, R2, R3 = acc, acc + 1, acc + 2, acc + 3
            cur, prv = Q & 1, (Q & 1) ^ 1
            if ql == 0:
                r3p = R3PREV
            else:
                pacc = ACCS[p & 1][(ql - 1) // 4] + 4 * ((ql - 1) % 4)
                r3p = pacc + 3
            if Q == 0:
                ops.append(f"v_add_f32_dpp v{T2[cur]}, v{R3}, v{R2} wave_shr:1 {dpp} bound_ctrl:0")
                ops.append(f"v_add_f32_dpp v{T1[cur]}, v{T2[cur]}, v{R1} wave_shr:1 {dpp} bound_ctrl:0")
                ops.append(f"v_add_f32_dpp v{YV[cur]}, v{T1[cur]}, v{R0} wave_shr:1 {dpp} bound_ctrl:0")
            else:
                ops.append(f"v_add_f32_dpp v{T2[cur]}, v{r3p}, v{R2} wave_ror:1 {dpp}")
                ops.append(f"v_add_f32_dpp v{T1[cur]}, v{T2[prv]}, v{R1} wave_ror:1 {dpp}")
                ops.append(f"v_add_f32_dpp v{YV[cur]}, v{T1[prv]}, v{R0} wave_ror:1 {dpp}")
                ops.append(f"v_add_f32_dpp v{T2[cur]}, v{R3}, v{R2} wave_shr:1 {dpp}")
                ops.append(f"v_add_f32_dpp v{T1[cur]}, v{T2[cur]}, v{R1} wave_shr:1 {dpp}")
                ops.append(f"v_add_f32_dpp v{YV[cur]}, v{T1[cur]}, v{R0} wave_shr:1 {dpp}")
            if ql & 1:
                ops.append(f"v_cvt_pk_bf16_f32 v{PK[p&1] + ql//2}, v{YV[0]}, v{YV[1]}")
            if ql == 7:
                ops.append(f"v_mov_b32 v{R3PREV}, v{R3}")
        ops.append(f"buffer_store_dwordx4 {vr(PK[p&1])}, v3, s[28:31], s14 offen offset:{1024*p}")
        return ops

    steps = [(p, t) for p in range(4) for t in range(8 * p + 8)]
    issued_fu = set()
    hslot = {}
    nissued = 0

    def issue_h(idx):
        p, t = steps[idx]
        slot = idx % NH
        hslot[idx] = slot
        if t == 0 or True:
            vm.wait_for([("h", t // 8)])
        for tag, txt in h_reads(t, slot):
            a(txt); lg.issue(tag)

    def issue_fu(s):
        if s in issued_fu:
            return
        issued_fu.add(s)
        vm.wait_for([("u", max(0, (2 * s + 7)) // 16)])
        for tag, txt in fu_reads(s):
            a(txt); lg.issue(tag)

    PRE = 3
    def fu_needed(idx):
        p, t = steps[idx]
        r = [8 * p + 4 - t]
        if t <= 8 * p + 3:
            r.append(8 * p - t)
        return r

    for idx in range(PRE):
        for s in fu_needed(idx):
            issue_fu(s)
        issue_h(idx)
    pending = []
    for idx, (p, t) in enumerate(steps):
        if t == 0 and p > 0:
            assert not pending
            pending = epilogue_ops(p - 1)
            delay = 2
        slot = hslot[idx]
        need_tags = [("h", slot)] + [("fu", s) for s in fu_needed(idx)]
        lg.wait_for(need_tags)
        nm = 0
        mf = [(1, 8 * p + 4 - t)]
        if t <= 8 * p + 3:
            mf.append((0, 8 * p - t))
        for k, (tile, s) in enumerate(mf):
            mfma(a, ACCS[p & 1][tile], FU + 4 * (s + 3), HR + 4 * slot, "0" if t == 0 else None)
            if k == 0 and idx + PRE < len(steps):
                for s2 in fu_needed(idx + PRE):
                    issue_fu(s2)
                issue_h(idx + PRE)
            if pending and t >= 2:
                for _ in range(3):
                    if pending:
                        a(pending.pop(0))
    assert not pending
    for op in epilogue_ops(3):
        a(op)
    a.label("CV_end")
    a("s_endpgm")
    return a.finalize(), 256


def gen_post():
    a = Asm()
    a("s_cmp_ge_u32 s2, 128")
    a("s_cbranch_scc1 PO_end")
    a(f"s_load_dwordx2 s[4:5], s[0:1], {KA_Q}")
    a(f"s_load_dwordx2 s[6:7], s[0:1], {KA_OUT}")
    a(f"s_load_dwordx2 s[8:9], s[0:1], {KA_WS}")
    a("v_lshrrev_b32 v1, 6, v0")
    a("v_and_b32 v2, 63, v0")
    a("s_lshl_b32 s12, s2, 2")
    a("v_readfirstlane_b32 s3, v1")
    a("v_and_b32 v3, 7, v2")
    a("v_lshrrev_b32 v4, 3, v2")
    a("s_add_u32 s12, s12, s3")
    a("s_and_b32 s13, s12, 15")
    a("s_bfe_u32 s14, s12, 0x30004")
    a("s_lshr_b32 s15, s12, 7")
    a("s_waitcnt lgkmcnt(0)")
    srd(a, 16, 4, 4 * MB)
    srd(a, 20, 6, 8 * MB)
    srd_off(a, 24, 8, WS_YF, 4 * MB)
    vm = Cnt(a, "vmcnt", 63)
    a("s_lshl_b32 s32, s13, 18")
    a("s_lshl_b32 s33, s15, 10")
    a("s_add_u32 s32, s32, s33")
    a("s_lshl_b32 s33, s14, 7")
    a("s_add_u32 s32, s32, s33")
    a("v_lshlrev_b32 v5, 15, v3")
    a("v_lshl_add_u32 v5, v4, 4, v5")
    for ci in range(8):
        a(f"buffer_load_dwordx4 {vr(8+4*ci)}, v5, s[24:27], s32 offen")
        vm.issue("y")
        a("s_add_u32 s32, s32, 4096")
    a("s_lshl_b32 s33, s15, 9")
    a("s_lshl_b32 s34, s14, 3")
    a("s_add_u32 s33, s33, s34")
    a("s_lshl_b32 s34, s33, 11")
    a("s_lshl_b32 s35, s13, 7")
    a("s_add_u32 s34, s34, s35")
    a("s_lshl_b32 s36, s33, 12")
    a("s_add_u32 s36, s36, s35")
    a("v_lshlrev_b32 v6, 11, v4")
    a("v_lshl_add_u32 v6, v3, 4, v6")
    a("v_lshlrev_b32 v7, 12, v4")
    a("v_lshl_add_u32 v7, v3, 4, v7")
    for j in range(8):
        a(f"buffer_load_dwordx4 {vr(40+4*j)}, v6, s[16:19], s34 offen")
        vm.issue(("q", j))
        a(f"s_add_u32 s34, s34, {64*2048}")
    vm.wait_for(["y"])
    for j in range(8):
        vm.wait_for([("q", j)])
        T = 72 + 16 * (j & 1)
        for ci in range(8):
            if j & 1:
                a(f"v_and_b32 v{T+ci}, 0xffff0000, v{8+4*ci+j//2}")
            else:
                a(f"v_lshlrev_b32 v{T+ci}, 16, v{8+4*ci+j//2}")
        for cp in range(4):
            a(f"v_lshlrev_b32 v{T+8+2*cp}, 16, v{40+4*j+cp}")
            a(f"v_and_b32 v{T+9+2*cp}, 0xffff0000, v{40+4*j+cp}")
        for cp in range(4):
            a(f"v_pk_mul_f32 {vr(T+2*cp,2)}, {vr(T+2*cp,2)}, {vr(T+8+2*cp,2)}")
        O = 104 + 4 * (j & 1)
        for cp in range(4):
            a(f"v_cvt_pk_bf16_f32 v{O+cp}, v{T+2*cp}, v{T+2*cp+1}")
        a(f"buffer_store_dwordx4 {vr(O)}, v7, s[20:23], s36 offen")
        a(f"s_add_u32 s36, s36, {64*4096}")
    a.label("PO_end")
    a("s_endpgm")
    return a.finalize(), 112


HEADER = open(os.path.join(os.path.dirname(os.path.abspath(__file__)), "header.txt")).read()


def build():
    kernels = [
        ("pre_kernel", gen_pre, 128, 256, 0),
        ("g1_kernel", gen_g1, 256, 512, G1_NS * G1_STAGE),
        ("conv_kernel", gen_conv, 256, 256, 4 * CV_WREG),
        ("opass_kernel", gen_opass, 128, 256, 32768),
        ("g2_kernel", gen_g2, 256, 512, 131072),
        ("post_kernel", gen_post, 128, 256, 0),
    ]
    out = HEADER
    for name, _, grid, block, lds in kernels:
        out += f"; @launch kernel={name} grid=({grid},1,1) block=({block},1,1) lds={lds}\n"
    out += '.amdgcn_target "amdgcn-amd-amdhsa--gfx950"\n.text\n'
    desc = '.section .rodata,"a"\n'
    for name, fn, grid, block, lds in kernels:
        body, vg = fn()
        out += f".globl {name}\n.p2align 8\n.type {name},@function\n{name}:\n{body}"
        acc = (vg + 3) // 4 * 4
        desc += f""".p2align 6
.amdhsa_kernel {name}
  .amdhsa_next_free_vgpr {vg}
  .amdhsa_next_free_sgpr 96
  .amdhsa_accum_offset {acc}
  .amdhsa_group_segment_fixed_size 0
  .amdhsa_kernarg_size 96
  .amdhsa_user_sgpr_count 2
  .amdhsa_user_sgpr_kernarg_segment_ptr 1
  .amdhsa_system_sgpr_workgroup_id_x 1
.end_amdhsa_kernel
"""
    return out + desc


if __name__ == "__main__":
    dst = sys.argv[1] if len(sys.argv) > 1 else "concat_heads__ssm_conv_h3__linear_attn_block__prompt.s"
    open(dst, "w").write(build())
    print("wrote", dst)
```

```python
import os
from asmlib import *

MB = 1 << 20
KA_Q, KA_K, KA_V, KA_SHK, KA_SSMK, KA_SSMD, KA_X, KA_WQKV, KA_WO, KA_OUT, KA_DBG, KA_WS = [8 * i for i in range(12)]
WS_QF = 0
WS_OF = 0
WS_KVP = 8 * MB
WS_ZP = 12 * MB
WS_FLAG = 13 * MB
FLAG_STRIDE = 4224
FLAG_BYTES = 32 * FLAG_STRIDE
WS_UT = 16 * MB
WS_YF = 16 * MB
WS_DBG = 32 * MB

LOG2E = 0x3fb8aa3b
EPS = 0x358637bd

STAMP = os.environ.get("STAMP", "0") == "1"


def env(name, default):
    v = os.environ.get(name)
    return default if v is None else type(default)(v)


def vr(b, n=4):
    return f"v[{b}:{b+n-1}]"


def mfma16(a, d, A, B, c=None):
    cs = vr(d, 4) if c is None else c
    a(f"v_mfma_f32_16x16x32_bf16 {vr(d,4)}, {vr(A)}, {vr(B)}, {cs}")


def stamp(a, i):
    if STAMP:
        a(f"{os.environ.get('STAMPI', 's_memrealtime')} s[{64+2*i}:{65+2*i}]")
        a("s_waitcnt lgkmcnt(0)")


def stamp_flush(a, kidx, n):
    if not STAMP:
        return
    a("s_mov_b64 exec, -1")
    a("s_waitcnt vmcnt(0)")
    stamp(a, n)
    srd_off(a, 88, 8, WS_DBG, 4 * MB)
    a(f"s_add_u32 s92, s2, {kidx*512}")
    a("s_lshl_b32 s92, s92, 4")
    a("s_add_u32 s92, s92, s3")
    a("s_lshl_b32 s92, s92, 6")
    a("v_mov_b32 v0, 0")
    for i in range(n + 1):
        a(f"v_mov_b32 v1, s{64+2*i}")
        a(f"buffer_store_dword v1, v0, s[88:91], s92 offen offset:{4*i}")
    if kidx == 2:
        a("v_mov_b32 v1, s93")
        a("buffer_store_dword v1, v0, s[88:91], s92 offen offset:60")


def phi8(a, T, dst, sl2e, seps):
    for j in range(8):
        a(f"v_min_f32 v{T+12+j}, 0, v{T+4+j}")
    for j in range(4):
        a(f"v_pk_mul_f32 {vr(T+20+2*j,2)}, {vr(T+12+2*j,2)}, s[{sl2e}:{sl2e+1}]")
    for j in range(8):
        a(f"v_exp_f32 v{T+20+j}, v{T+20+j}")
    for j in range(4):
        a(f"v_pk_add_f32 {vr(T+4+2*j,2)}, {vr(T+4+2*j,2)}, {vr(T+12+2*j,2)} neg_lo:[0,1] neg_hi:[0,1]")
    for j in range(4):
        a(f"v_pk_add_f32 {vr(T+4+2*j,2)}, {vr(T+4+2*j,2)}, {vr(T+20+2*j,2)}")
    for j in range(4):
        a(f"v_pk_add_f32 {vr(T+4+2*j,2)}, {vr(T+4+2*j,2)}, s[{seps}:{seps+1}]")
    for j in range(4):
        a(f"v_cvt_pk_bf16_f32 v{dst+j}, v{T+4+2*j}, v{T+5+2*j}")


def unpack4(a, T, src):
    for j in range(4):
        a(f"v_lshlrev_b32 v{T+4+2*j}, 16, v{src+j}")
        a(f"v_and_b32 v{T+5+2*j}, 0xffff0000, v{src+j}")


def k2_prefetch(a, part, vdst, vt, sq, ssoff):
    s0, s1 = ssoff, ssoff + 1
    if part == 0:
        a(f"s_lshl_b32 s{s0}, s10, 19")
        a(f"s_lshl_b32 s{s1}, s11, 14")
        a(f"s_add_u32 s{s0}, s{s0}, s{s1}")
        a(f"s_add_u32 s{s1}, s{s0}, 8192")
        a(f"v_lshlrev_b32 v{vt}, 7, v2")
        srdn = sq
    elif part == 1:
        a(f"s_lshl_b32 s{s0}, s11, 17")
        a(f"s_lshl_b32 s{s1}, s10, 8")
        a(f"s_add_u32 s{s0}, s{s0}, s{s1}")
        a(f"s_add_u32 s{s1}, s{s0}, 65536")
        a(f"v_lshrrev_b32 v{vt}, 1, v2")
        a(f"v_lshlrev_b32 v{vt}, 11, v{vt}")
        a(f"v_and_b32 v{vt+1}, 1, v2")
        a(f"v_lshl_add_u32 v{vt}, v{vt+1}, 7, v{vt}")
        srdn = sq + 4
    else:
        a(f"s_lshl_b32 s{s0}, s11, 16")
        a(f"s_lshr_b32 s{s1}, s10, 2")
        a(f"s_lshl_b32 s{s1}, s{s1}, 10")
        a(f"s_add_u32 s{s0}, s{s0}, s{s1}")
        if part == 3:
            a(f"s_add_u32 s{s0}, s{s0}, 32768")
        a(f"s_add_u32 s{s1}, s{s0}, 16384")
        a(f"v_lshrrev_b32 v{vt}, 3, v2")
        a(f"v_lshlrev_b32 v{vt}, 11, v{vt}")
        a(f"v_and_b32 v{vt+1}, 7, v2")
        a(f"v_lshl_add_u32 v{vt}, v{vt+1}, 7, v{vt}")
        srdn = sq + 8
    a(f"buffer_load_dword v{vdst}, v{vt}, s[{srdn}:{srdn+3}], s{s0} offen")
    a(f"buffer_load_dword v{vdst}, v{vt}, s[{srdn}:{srdn+3}], s{s1} offen")


def phi8s(a, T, dst, sl2e, seps):
    for j in range(8):
        a(f"v_min_f32 v{T+12+j}, 0, v{T+4+j}")
    for j in range(8):
        a(f"v_mul_f32 v{T+20+j}, s{sl2e}, v{T+12+j}")
    for j in range(8):
        a(f"v_exp_f32 v{T+20+j}, v{T+20+j}")
    for j in range(8):
        a(f"v_max_f32 v{T+4+j}, 0, v{T+4+j}")
    for j in range(8):
        a(f"v_add_f32 v{T+4+j}, v{T+4+j}, v{T+20+j}")
    for j in range(8):
        a(f"v_add_f32 v{T+4+j}, s{seps}, v{T+4+j}")
    for j in range(4):
        a(f"v_cvt_pk_bf16_f32 v{dst+j}, v{T+4+2*j}, v{T+5+2*j}")


def k2_prefetch_setup(a, part, vt, sd, ssoff, p_h, p_q, p_wo):
    s0, s1 = ssoff, ssoff + 1
    if part == 0:
        srd(a, sd, p_h, 4 * MB)
        a(f"s_lshl_b32 s{s0}, s10, 19")
        a(f"s_lshl_b32 s{s1}, s11, 14")
        a(f"s_add_u32 s{s0}, s{s0}, s{s1}")
        a(f"s_add_u32 s{s1}, s{s0}, 8192")
        a(f"v_lshlrev_b32 v{vt}, 7, v2")
    elif part == 1:
        srd(a, sd, p_q, 4 * MB)
        a(f"s_lshl_b32 s{s0}, s11, 17")
        a(f"s_lshl_b32 s{s1}, s10, 8")
        a(f"s_add_u32 s{s0}, s{s0}, s{s1}")
        a(f"s_add_u32 s{s1}, s{s0}, 65536")
        a(f"v_lshrrev_b32 v{vt}, 1, v2")
        a(f"v_lshlrev_b32 v{vt}, 11, v{vt}")
        a("v_and_b32 v15, 1, v2")
        a(f"v_lshl_add_u32 v{vt}, v15, 7, v{vt}")
    else:
        srd(a, sd, p_wo, 2 * MB)
        a(f"s_lshl_b32 s{s0}, s11, 16")
        a(f"s_lshr_b32 s{s1}, s10, 2")
        a(f"s_lshl_b32 s{s1}, s{s1}, 10")
        a(f"s_add_u32 s{s0}, s{s0}, s{s1}")
        if part == 3:
            a(f"s_add_u32 s{s0}, s{s0}, 32768")
        a(f"s_add_u32 s{s1}, s{s0}, 16384")
        a(f"v_lshrrev_b32 v{vt}, 3, v2")
        a(f"v_lshlrev_b32 v{vt}, 11, v{vt}")
        a("v_and_b32 v15, 7, v2")
        a(f"v_lshl_add_u32 v{vt}, v15, 7, v{vt}")
```

```python
from common import *

NS = 4
STAGE = 40960
ROT = env("G1_ROT", 2)
EXP = env("G1_EXP", "")
PF = env("G1_PF", 1)
DUTY0 = env("DUTY0", 0)
NDUTY = env("NDUTY", 4)
BARPOS = env("BARPOS", 1)
E2_0 = env("E2_0", 4)
E2_N = env("E2_N", 1)
E3_0 = env("E3_0", 5)
E3_N = env("E3_N", 8)
FILLM = env("FILLM", "")
OFF = env("OFF", "2")
NPRE = env("NPRE", 6)
PRE0 = env("PRE0", 4)
PF2 = env("PF2", 1)
K1_LDS = NS * STAGE


def gen_k1():
    a = Asm()
    a("s_cmp_ge_u32 s2, 256")
    a("s_cbranch_scc1 K1_end")
    stamp(a, 0)
    a(f"s_load_dwordx4 s[4:7], s[0:1], {KA_X}")
    a(f"s_load_dwordx2 s[8:9], s[0:1], {KA_WS}")
    a(f"s_load_dwordx8 s[76:83], s[0:1], {KA_Q}")
    a(f"s_load_dwordx2 s[84:85], s[0:1], {KA_SSMK}")
    a(f"s_load_dwordx2 s[86:87], s[0:1], {KA_WO}")
    a("v_lshrrev_b32 v1, 6, v0")
    a("v_and_b32 v2, 63, v0")
    a("s_and_b32 s10, s2, 7")
    a("v_readfirstlane_b32 s3, v1")
    a("s_lshr_b32 s11, s2, 3")
    a("s_and_b32 s12, s10, 1")
    a("s_lshl_b32 s12, s12, 3")
    a("s_and_b32 s13, s11, 7")
    a("s_add_u32 s12, s12, s13")
    a("s_lshr_b32 s13, s10, 1")
    a("s_lshl_b32 s13, s13, 2")
    a("s_lshr_b32 s14, s11, 3")
    a("s_add_u32 s13, s13, s14")
    a("s_cmp_ge_u32 s3, 4")
    a("s_cbranch_scc1 K1_loader")

    a("s_and_b32 s36, s3, 1")
    a("s_lshr_b32 s37, s3, 1")
    a("s_waitcnt lgkmcnt(0)")
    a("s_cmp_lg_u32 s3, 0")
    a("s_cbranch_scc1 K1_pfw")
    srd(a, 40, 4, 4 * MB)
    a("v_lshrrev_b32 v192, 3, v2")
    a("v_lshlrev_b32 v192, 11, v192")
    a("v_and_b32 v15, 7, v2")
    a("v_lshl_add_u32 v192, v15, 7, v192")
    a("s_lshl_b32 s45, s2, 14")
    a("s_add_u32 s44, s45, 1024")
    a("s_branch K1_pfd")
    a.label("K1_pfw")
    srd(a, 40, 6, 6 * MB)
    a("s_cmp_eq_u32 s3, 3")
    a("s_cbranch_scc1 K1_pfs")
    a("v_lshlrev_b32 v192, 7, v2")
    a("s_mul_i32 s45, s2, 12288")
    a("s_sub_u32 s44, s3, 1")
    a("s_lshl_b32 s44, s44, 12")
    a("s_add_u32 s45, s45, s44")
    a(f"s_add_u32 s44, s45, {3*MB}")
    a("s_branch K1_pfd")
    a.label("K1_pfs")
    a("v_lshlrev_b32 v192, 11, v2")
    a("s_mul_i32 s45, s11, 60")
    a("s_add_u32 s45, s45, 1152")
    a("s_lshl_b32 s45, s45, 11")
    a("s_lshr_b32 s44, s10, 1")
    a("s_lshl_b32 s44, s44, 9")
    a("s_add_u32 s45, s45, s44")
    a("s_add_u32 s45, s45, 384")
    a("s_bitcmp1_b32 s10, 1")
    a(f"s_cselect_b32 s45, {8*MB}, s45")
    a(f"s_mov_b32 s44, {8*MB}")
    a.label("K1_pfd")
    if PF:
        a("buffer_load_dword v195, v192, s[40:43], s45 offen")
    a("s_cmp_ge_u32 s3, 2")
    a("s_cselect_b32 s48, s80, s78")
    a("s_cselect_b32 s49, s81, s79")
    a(f"s_mov_b32 s50, {4*MB}")
    a("s_mov_b32 s51, 0x20000")
    a("v_lshrrev_b32 v193, 2, v2")
    a("v_lshlrev_b32 v193, 11, v193")
    a("v_and_b32 v15, 3, v2")
    a("v_lshl_add_u32 v193, v15, 7, v193")
    a("s_lshr_b32 s45, s2, 2")
    a("s_lshl_b32 s45, s45, 16")
    a("s_lshl_b32 s46, s36, 15")
    a("s_add_u32 s45, s45, s46")
    a("s_and_b32 s46, s2, 3")
    a("s_lshl_b32 s46, s46, 9")
    a("s_add_u32 s45, s45, s46")
    for part in range(4):
        if part < 3:
            a(f"s_cmp_lg_u32 s3, {part}")
            a(f"s_cbranch_scc1 K1_e3_{part+1}")
        k2_prefetch_setup(a, part, 194, 56, 46, 84, 76, 86)
        if part < 3:
            a("s_branch K1_e3_done")
            a.label(f"K1_e3_{part+1}")
    a.label("K1_e3_done")
    a(f"s_and_b32 s55, s11, {NDUTY-1}")
    a(f"s_add_u32 s55, s55, {DUTY0}")
    a(f"s_and_b32 s52, s11, {E2_N-1}")
    a(f"s_add_u32 s52, s52, {E2_0}")
    a(f"s_and_b32 s53, s11, {E3_N-1}")
    a(f"s_add_u32 s53, s53, {E3_0}")
    a("s_sub_u32 s53, s53, s52")
    a("s_sub_u32 s53, s53, 1")
    a("s_sub_u32 s52, s52, s55")
    a("s_sub_u32 s52, s52, 1")
    a("s_mov_b32 s54, 0")
    if "2" in OFF:
        a(f"s_mov_b32 s45, {16*MB}")
    if "3" in OFF:
        a(f"s_mov_b32 s46, {16*MB}")
        a(f"s_mov_b32 s47, {16*MB}")
    a("v_and_b32 v3, 15, v2")
    a("v_lshrrev_b32 v14, 4, v2")
    a("s_lshl_b32 s38, s36, 6")
    a("v_add_u32 v15, s38, v3")
    a("v_lshrrev_b32 v16, 1, v3")
    a("v_lshlrev_b32 v15, 7, v15")
    a("v_xor_b32 v17, v14, v16")
    a("v_lshl_add_u32 v4, v17, 4, v15")
    a("v_xor_b32 v5, 64, v4")
    a(f"v_add_u32 v6, {2*STAGE}, v4")
    a(f"v_add_u32 v7, {2*STAGE}, v5")
    a("v_bfe_u32 v17, v2, 2, 2")
    a("v_and_b32 v18, 3, v2")
    a("v_lshlrev_b32 v17, 6, v17")
    a("v_lshl_add_u32 v17, v18, 3, v17")
    a("v_and_b32 v18, 1, v14")
    a("v_lshl_add_u32 v17, v18, 10, v17")
    a("v_lshl_add_u32 v17, v18, 5, v17")
    a("v_lshrrev_b32 v18, 1, v14")
    a("v_mul_u32_u24 v18, 6144, v18")
    a("v_add_u32 v17, v17, v18")
    a("s_lshl_b32 s38, s37, 8")
    a("s_add_u32 s38, s38, 16384")
    a("v_add_u32 v8, s38, v17")
    a("v_xor_b32 v9, 32, v8")
    a(f"v_add_u32 v10, {2*STAGE}, v8")
    a(f"v_add_u32 v11, {2*STAGE}, v9")
    SB = [16, 56]

    def accr(kind, mt, dt):
        return 96 + 32 * kind + (mt * 2 + dt) * 4

    for i in range(96, 192):
        a(f"v_mov_b32 v{i}, 0")
    srd_off(a, 24, 8, WS_QF, 4 * MB)
    srd_off(a, 28, 8, WS_KVP, 2 * MB)
    srd_off(a, 32, 8, WS_ZP, 64 * 1024)
    lg = Cnt(a, "lgkmcnt", 15)

    def reads(slot, t, st):
        sb = (slot & 1) * STAGE
        va = 4 + t + (2 if slot >= 2 else 0)
        vb = 10 if slot >= 2 else 8
        R = SB[st]

        def A(mt):
            return [(("A", mt, st), f"ds_read_b128 {vr(R+4*mt)}, v{va} offset:{sb + 2048*mt}")]

        def B(cb):
            seg, nh = cb // 2, cb % 2
            return [(("B", cb, st), f"ds_read_b64_tr_b16 {vr(R+16+4*cb+2*h,2)}, v{vb+nh} offset:{sb + t*12288 + seg*2048 + 512*h}") for h in range(2)]
        return A(0) + B(0) + A(1) + A(2) + A(3) + B(1) + B(2) + B(3) + B(4) + B(5)

    def group(st, nxt):
        R = SB[st]
        nxt = list(nxt)
        if EXP == "nocomp":
            return
        for cb in range(6):
            kind, dt = cb // 2, cb % 2
            for mt in range(4):
                lg.wait_for([("A", mt, st), ("B", cb, st)])
                fa, fb = R + 4 * mt, R + 16 + 4 * cb
                if kind == 0:
                    mfma16(a, accr(0, mt, dt), fb, fa)
                else:
                    mfma16(a, accr(kind, mt, dt), fa, fb)
                if nxt:
                    tag, txt = nxt.pop(0)
                    a(txt)
                    lg.issue(tag)

    stamp(a, 1)
    a("s_barrier")
    stamp(a, 2)
    for tag, txt in reads(0, 0, 0):
        if EXP == "nocomp":
            break
        a(txt)
        lg.issue(tag)
    lg.drain()
    a("s_mov_b32 s39, 4")
    a.label("K1_loop")
    for slot in range(4):
        group(0, reads(slot, 1, 1))
        lg.drain()
        a("s_barrier")
        if PF:
            a("s_sub_u32 s55, s55, 1")
            a(f"s_cbranch_scc1 K1_event{slot}")
            a.label(f"K1_noev{slot}")
        group(1, reads((slot + 1) % 4, 0, 0))
        if slot == 3:
            a("s_sub_u32 s39, s39, 1")
            a("s_cmp_lg_u32 s39, 0")
            lg.drain()
    a("s_cbranch_scc1 K1_loop")
    stamp(a, 3)

    a("s_lshl_b32 s40, s13, 1")
    a("s_add_u32 s40, s40, s37")
    a("s_lshl_b32 s41, s12, 3")
    a("s_lshl_b32 s42, s36, 2")
    a("s_add_u32 s41, s41, s42")
    a("s_lshl_b32 s42, s41, 5")
    a("s_add_u32 s42, s42, s40")
    a("s_lshl_b32 s42, s42, 10")
    a("v_lshlrev_b32 v3, 4, v2")
    a(f"s_mov_b32 s44, {LOG2E}")
    a(f"s_mov_b32 s45, {LOG2E}")
    a(f"s_mov_b32 s46, {EPS}")
    a(f"s_mov_b32 s47, {EPS}")
    for et in range(2):
        for m in range(2):
            d = 16 + 4 * (2 * et + m)
            for hh in range(2):
                s = accr(2, 2 * m + hh, et)
                a(f"v_cvt_pk_bf16_f32 v{d+2*hh}, v{s}, v{s+1}")
                a(f"v_cvt_pk_bf16_f32 v{d+2*hh+1}, v{s+2}, v{s+3}")
    for i in range(4):
        a(f"v_mov_b32 v{48+i}, 0x3f803f80")
    KV = 160
    ZZ = 176
    T = 52
    for m in range(2):
        for dt in range(2):
            for hh in range(2):
                s = accr(1, 2 * m + hh, dt)
                a(f"v_cvt_pk_bf16_f32 v{T+2*hh}, v{s}, v{s+1}")
                a(f"v_cvt_pk_bf16_f32 v{T+2*hh+1}, v{s+2}, v{s+3}")
            unpack4(a, T, T)
            kf = 32 + 4 * (2 * dt + m)
            phi8(a, T, kf, 44, 46)
            for et in range(2):
                mfma16(a, KV + 4 * (2 * et + dt), kf, 16 + 4 * (2 * et + m), "0" if m == 0 else None)
            mfma16(a, ZZ + 4 * dt, kf, 48, "0" if m == 0 else None)
    a("s_lshl_b32 s43, s37, 13")
    a("v_add_u32 v4, s43, v3")
    a("s_cmp_eq_u32 s36, 0")
    a("s_cbranch_scc1 K1_wr0")
    for qd in range(6):
        a(f"ds_write_b128 v4, {vr(KV+4*qd)} offset:{1024*qd}")
    a("s_waitcnt lgkmcnt(0)")
    a("s_barrier")
    a("s_branch K1_q")
    a.label("K1_wr0")
    a("s_lshl_b32 s48, s40, 4")
    a("s_add_u32 s48, s48, s12")
    a("s_lshl_b32 s49, s48, 12")
    a("s_lshl_b32 s50, s48, 7")
    a("v_lshlrev_b32 v5, 4, v14")
    a("s_barrier")
    for qd in range(6):
        a(f"ds_read_b128 {vr(16+4*qd)}, v4 offset:{1024*qd}")
    for qd in range(6):
        a(f"s_waitcnt lgkmcnt({5-qd})")
        a(f"v_pk_add_f32 {vr(KV+4*qd,2)}, {vr(KV+4*qd,2)}, {vr(16+4*qd,2)}")
        a(f"v_pk_add_f32 {vr(KV+4*qd+2,2)}, {vr(KV+4*qd+2,2)}, {vr(16+4*qd+2,2)}")
        if qd < 4:
            a(f"buffer_store_dwordx4 {vr(KV+4*qd)}, v3, s[28:31], s49 offen offset:{1024*qd}")
    a("s_mov_b32 exec_lo, 0x00010001")
    a("s_mov_b32 exec_hi, 0x00010001")
    for dt in range(2):
        a(f"buffer_store_dwordx4 {vr(ZZ+4*dt)}, v5, s[32:35], s50 offen offset:{64*dt}")
    a("s_mov_b64 exec, -1")
    a.label("K1_q")
    for mt in range(4):
        d = 80 + 4 * mt
        for dt in range(2):
            sr = accr(0, mt, dt)
            a(f"v_cvt_pk_bf16_f32 v{T+2*dt}, v{sr}, v{sr+1}")
            a(f"v_cvt_pk_bf16_f32 v{T+2*dt+1}, v{sr+2}, v{sr+3}")
        unpack4(a, T, T)
        phi8(a, T, d, 44, 46)
        for i in range(4):
            a(f"v_and_b32 v{d+i}, -2, v{d+i}")
        a(f"buffer_store_dwordx4 {vr(d)}, v3, s[24:27], s42 offen")
        a("s_add_u32 s42, s42, 32768")
    stamp(a, 4)
    stamp_flush(a, 1, 5)
    a("s_endpgm")

    for slot in range(4 if PF else 0):
        a.label(f"K1_event{slot}")
        a("s_add_u32 s54, s54, 1")
        a("s_cmp_lg_u32 s54, 1")
        a(f"s_cbranch_scc1 K1_ev2_{slot}")
        a("buffer_load_dword v195, v192, s[40:43], s44 offen")
        a("s_mov_b32 s55, s52")
        a(f"s_branch K1_noev{slot}")
        a.label(f"K1_ev2_{slot}")
        a("s_cmp_lg_u32 s54, 2")
        a(f"s_cbranch_scc1 K1_ev3_{slot}")
        a("buffer_load_dword v195, v193, s[48:51], s45 offen")
        a("s_mov_b32 s55, s53")
        a(f"s_branch K1_noev{slot}")
        a.label(f"K1_ev3_{slot}")
        a("buffer_load_dword v195, v194, s[56:59], s46 offen")
        a("buffer_load_dword v195, v194, s[56:59], s47 offen")
        a("s_mov_b32 s55, 1000")
        a(f"s_branch K1_noev{slot}")

    a.label("K1_loader")
    a("s_sub_u32 s36, s3, 4")
    a("v_lshrrev_b32 v3, 3, v2")
    a("v_and_b32 v4, 7, v2")
    a("v_lshrrev_b32 v5, 4, v2")
    for jl in range(4):
        a(f"v_add_u32 v6, {4*(jl&1)}, v5")
        a("v_xor_b32 v6, v6, v4")
        a("v_lshlrev_b32 v6, 4, v6")
        a("v_lshl_add_u32 v6, v3, 11, v6")
        a(f"v_add_u32 v{8+jl}, {jl*(16384-1024)}, v6")
    a("v_lshrrev_b32 v6, 5, v2")
    a("v_bfe_u32 v7, v2, 2, 2")
    a("v_lshl_add_u32 v6, v6, 2, v7")
    a("v_mul_u32_u24 v6, 6144, v6")
    a("v_bfe_u32 v7, v2, 4, 1")
    a("v_lshl_add_u32 v6, v7, 6, v6")
    a("v_and_b32 v7, 3, v2")
    a("v_lshl_add_u32 v6, v7, 4, v6")
    a("v_xor_b32 v7, 32, v6")
    binst = []
    for seg in range(3):
        for gg in range(2):
            ldsoff = seg * 2048 + gg * 1024
            m0sel = ldsoff // 4096
            ioff = ldsoff % 4096
            reg = 12 + seg * 2 + gg
            a(f"v_add_u32 v{reg}, {8*gg*6144 + seg*2048 - ioff}, v{6+gg}")
            binst.append((reg, m0sel, ioff))
    a("s_lshl_b32 s38, s12, 7")
    a("s_lshl_b32 s40, s36, 5")
    a("s_add_u32 s38, s38, s40")
    a("s_lshl_b32 s38, s38, 11")
    a("s_mul_i32 s39, s36, 98304")
    a("s_lshl_b32 s40, s13, 7")
    a("s_add_u32 s39, s39, s40")
    a("s_lshl_b32 s41, s36, 12")
    a("s_mul_i32 s42, s36, 6144")
    a("s_add_u32 s42, s42, 16384")
    a("s_waitcnt lgkmcnt(0)")
    srd(a, 16, 4, 4 * MB)
    srd(a, 20, 6, 6 * MB)

    def issue():
        if EXP == "nodma":
            return
        a("s_add_u32 m0, s41, s43")
        for jl in range(4):
            a(f"buffer_load_dwordx4 v{8+jl}, s[16:19], s38 offen offset:{jl*1024} lds")
        cur = -1
        for reg, m0sel, ioff in binst:
            if m0sel != cur:
                a(f"s_add_u32 m0, s{42 if m0sel == 0 else 44}, s43")
                cur = m0sel
            a(f"buffer_load_dwordx4 v{reg}, s[20:23], s39 offen offset:{ioff} lds")
        a("s_add_u32 s38, s38, 128")
        a(f"s_add_u32 s39, s39, {64*6144}")
        a(f"s_add_u32 s43, s43, {STAGE}")
        a(f"s_cmp_eq_u32 s43, {NS*STAGE}")
        a("s_cselect_b32 s43, 0, s43")

    a("s_add_u32 s44, s42, 4096")
    a("s_mov_b32 s43, 0")
    stamp(a, 1)
    for kt in range(NS - 1):
        issue()
    srd(a, 24, 78, 4 * MB)
    srd(a, 28, 80, 4 * MB)
    srd(a, 32, 82, 8192)
    srd_off(a, 48, 8, WS_UT, 4 * MB)
    a("s_lshl_b32 s58, s2, 2")
    a("s_add_u32 s58, s58, s36")
    a("s_and_b32 s59, s58, 15")
    a("s_lshr_b32 s60, s58, 4")
    a("s_lshl_b32 s61, s60, 16")
    a("s_lshl_b32 s62, s59, 7")
    a("s_add_u32 s61, s61, s62")
    a("v_and_b32 v20, 15, v2")
    a("v_lshlrev_b32 v21, 14, v5")
    a("v_lshl_add_u32 v21, v20, 3, v21")
    a("v_add_u32 v21, s61, v21")
    a("s_lshl_b32 s62, s59, 9")
    a("v_lshlrev_b32 v22, 5, v20")
    a("s_lshl_b32 s61, s59, 18")
    a("s_lshl_b32 s63, s60, 6")
    a("s_add_u32 s61, s61, s63")
    a("v_lshlrev_b32 v19, 14, v20")
    a("v_lshl_add_u32 v19, v5, 4, v19")
    stamp(a, 2)

    def pre_loads(part):
        if part == 0:
            for i in range(2):
                a(f"buffer_load_dwordx4 {vr(24+4*i)}, v22, s[32:35], s62 offen offset:{16*i}")
            for i in range(11):
                a(f"v_add_u32 v23, {((i-3)*2048) & 0xffffffff}, v21")
                a(f"buffer_load_dwordx2 {vr(32+2*i,2)}, v23, s[24:27], 0 offen")
        else:
            for i in range(8):
                a(f"v_add_u32 v23, {i*2048}, v21")
                a(f"buffer_load_dwordx2 {vr(54+2*i,2)}, v23, s[28:31], 0 offen")

    def pre_piece(cp):
        if EXP == "prenocomp":
            return
        W = 72
        KF = 88
        VF = 110
        KS = 126
        if cp == 0:
            for ci in range(4):
                a(f"v_lshlrev_b32 v{W+ci}, 16, v{24+2*ci}")
                a(f"v_and_b32 v{W+4+ci}, 0xffff0000, v{24+2*ci}")
                a(f"v_lshlrev_b32 v{W+8+ci}, 16, v{25+2*ci}")
                a(f"v_and_b32 v{W+12+ci}, 0xffff0000, v{25+2*ci}")
        for i in range(11):
            a(f"v_lshlrev_b32 v{KF+2*i}, 16, v{32+2*i+cp}")
            a(f"v_and_b32 v{KF+2*i+1}, 0xffff0000, v{32+2*i+cp}")
        for i in range(8):
            a(f"v_lshlrev_b32 v{VF+2*i}, 16, v{54+2*i+cp}")
            a(f"v_and_b32 v{VF+2*i+1}, 0xffff0000, v{54+2*i+cp}")
        for i in range(8):
            a(f"v_pk_mul_f32 {vr(KS+2*i,2)}, {vr(KF+2*i,2)}, {vr(W+12+2*cp,2)}")
        for j in (2, 1, 0):
            for i in range(8):
                a(f"v_pk_fma_f32 {vr(KS+2*i,2)}, {vr(KF+2*(i+3-j),2)}, {vr(W+4*j+2*cp,2)}, {vr(KS+2*i,2)}")
        for i in range(8):
            a(f"v_pk_mul_f32 {vr(KS+2*i,2)}, {vr(KS+2*i,2)}, {vr(VF+2*i,2)}")
        O = 144 + 8 * cp
        for e in range(2):
            for i in range(4):
                a(f"v_cvt_pk_bf16_f32 v{O+4*e+i}, v{KS+4*i+e}, v{KS+4*i+2+e}")
        for i in range(8):
            a(f"v_and_b32 v{O+i}, -2, v{O+i}")
        for e in range(2):
            a(f"buffer_store_dwordx4 {vr(O+4*e)}, v19, s[48:51], s61 offen")
            a("s_add_u32 s61, s61, 4096")

    a("s_mov_b32 s47, 13")
    a.label("K1_lloop")
    a("s_waitcnt vmcnt(20)")
    a("s_barrier")
    issue()
    a("s_sub_u32 s47, s47, 1")
    a("s_cmp_lg_u32 s47, 0")
    a("s_cbranch_scc1 K1_lloop")
    a("s_waitcnt vmcnt(20)")
    a("s_barrier")
    a("s_waitcnt vmcnt(10)")
    a("s_barrier")
    pre_loads(0)
    a("s_waitcnt vmcnt(13)")
    a("s_barrier")
    pre_loads(1)
    a("s_barrier")
    stamp(a, 3)
    a("s_waitcnt vmcnt(0)")
    stamp(a, 4)
    if BARPOS == 0:
        a("s_barrier")
    pre_piece(0)
    if BARPOS == 1:
        a("s_barrier")
    pre_piece(1)
    stamp_flush(a, 1, 5)
    a.label("K1_end")
    a("s_endpgm")
    return a.finalize(), 196
```

```python
from common import *

CV_BASE = 114688
CV_REG = 8704
CV_HB = 32
CV_UB = 4384
KVX = CV_BASE + 4 * CV_REG
SYNC = KVX + 4096
K2_LDS = SYNC + 256
S_KVX, S_OCNT, S_GO2, S_WOM, S_WOT, S_YCNT, S_GOP = 0, 16, 20, 24, 28, 32, 36
S_WOM2 = 40
SPIN_MAX = 1 << 22
ADEPTH = env("ADEPTH", 16)
CODEPF = env("CODEPF", 0)
ODELAY = env("ODELAY", 0)
YSLEEP = env("YSLEEP", 8)
RETRY_MAX = 20000
WO_EARLY = env("WO_EARLY", 0)
WO0 = env("WO0", 12)
WOSIG = env("WOSIG", 6)
WOSIG2 = env("WOSIG2", 26)
LPRIO = env("LPRIO", 1)
WOS = env("WOS", 4)
ASC = " " + env("ASC", "")
DPP = "row_mask:0xf bank_mask:0xf"


def lds_wait(a, name, vaddr, off, val, vtmp, stmp):
    a(f"s_mov_b32 s{stmp+1}, {SPIN_MAX}")
    a.label(name)
    a(f"ds_read_b32 v{vtmp}, v{vaddr} offset:{off}")
    a("s_waitcnt lgkmcnt(0)")
    a(f"v_readfirstlane_b32 s{stmp}, v{vtmp}")
    a(f"s_sub_u32 s{stmp+1}, s{stmp+1}, 1")
    a(f"s_cbranch_scc1 {name}_ok")
    a(f"s_cmp_lt_u32 s{stmp}, {val}")
    a(f"s_cbranch_scc1 {name}")
    a.label(name + "_ok")


def flag_poll(a, name, voff, srdn, soff, vtmp, stmp):
    a(f"s_mov_b32 s{stmp}, {SPIN_MAX >> 4}")
    a.label(name)
    a(f"buffer_load_dword v{vtmp}, v{voff}, s[{srdn}:{srdn+3}], s{soff} offen sc1")
    a("s_waitcnt vmcnt(0)")
    a(f"v_cmp_eq_u32 vcc, 0, v{vtmp}")
    a(f"s_sub_u32 s{stmp}, s{stmp}, 1")
    a(f"s_cbranch_scc1 {name}_ok")
    a("s_cmp_lg_u64 vcc, 0")
    a(f"s_cbranch_scc1 {name}")
    a.label(name + "_ok")


def wo_setup(a, vb, sw, sdst):
    a("v_lshrrev_b32 v6, 5, v2")
    a("v_bfe_u32 v7, v2, 2, 2")
    a("v_lshl_add_u32 v7, v6, 2, v7")
    a("v_lshlrev_b32 v7, 11, v7")
    a("v_bfe_u32 v8, v2, 4, 1")
    a("v_lshl_add_u32 v7, v8, 6, v7")
    a("v_and_b32 v8, 3, v2")
    a("v_lshlrev_b32 v6, 1, v6")
    a("v_xor_b32 v8, v8, v6")
    a("v_lshl_add_u32 v7, v8, 4, v7")
    for i in range(4):
        a(f"v_add_u32 v{vb+i}, {i*(16384-1024)}, v7")
    a(f"s_lshl_b32 s{sdst}, s{sw}, 16")
    a(f"s_lshr_b32 s{sdst+1}, s10, 2")
    a(f"s_lshl_b32 s{sdst+1}, s{sdst+1}, 3")
    a(f"s_lshr_b32 s{sdst+2}, s11, 2")
    a(f"s_add_u32 s{sdst+1}, s{sdst+1}, s{sdst+2}")
    a(f"s_lshl_b32 s{sdst+1}, s{sdst+1}, 7")
    a(f"s_add_u32 s{sdst}, s{sdst}, s{sdst+1}")


def gen_k2():
    a = Asm()
    a("s_cmp_ge_u32 s2, 256")
    a("s_cbranch_scc1 K2_end")
    stamp(a, 0)
    a("s_mov_b32 s93, 0")
    a(f"s_load_dwordx2 s[8:9], s[0:1], {KA_WS}")
    a(f"s_load_dwordx4 s[4:7], s[0:1], {KA_WO}")
    a(f"s_load_dwordx4 s[52:55], s[0:1], {KA_SSMK}")
    a(f"s_load_dwordx2 s[56:57], s[0:1], {KA_Q}")
    a("v_lshrrev_b32 v1, 6, v0")
    a("v_and_b32 v2, 63, v0")
    a("s_and_b32 s10, s2, 7")
    a("v_readfirstlane_b32 s3, v1")
    a("s_lshr_b32 s11, s2, 3")
    a("s_lshl_b32 s12, s10, 1")
    a("s_lshr_b32 s13, s11, 4")
    a("s_add_u32 s12, s12, s13")
    a("s_and_b32 s13, s11, 15")
    a("v_lshlrev_b32 v3, 4, v2")
    a("v_lshrrev_b32 v14, 4, v2")
    a("v_and_b32 v15, 15, v2")
    a(f"v_mov_b32 v10, {SYNC}")
    a("v_lshlrev_b32 v11, 2, v15")
    a("s_cmp_ge_u32 s3, 4")
    a("s_cbranch_scc1 K2_L")

    a("s_lshl_b32 s40, s10, 2")
    a("s_and_b32 s36, s11, 3")
    a("s_add_u32 s40, s40, s36")
    a("s_lshr_b32 s37, s11, 2")
    a("v_mov_b32 v4, 0")
    a(f"v_add_u32 v5, {SYNC}, v11")
    a("ds_write_b32 v5, v4")
    a("s_lshl_b32 s41, s37, 4")
    a("s_lshl_b32 s42, s3, 2")
    a("s_add_u32 s41, s41, s42")
    a("s_lshl_b32 s42, s41, 5")
    a("s_add_u32 s42, s42, s40")
    a("s_lshl_b32 s42, s42, 10")
    a("s_lshl_b32 s43, s40, 16")
    a("s_lshl_b32 s44, s3, 10")
    a("s_add_u32 s43, s43, s44")
    a("s_lshl_b32 s44, s40, 11")
    a("v_lshlrev_b32 v6, 7, v15")
    a("v_lshl_add_u32 v6, v14, 4, v6")
    a("s_waitcnt lgkmcnt(0)")
    srd_off(a, 24, 8, WS_QF, 4 * MB)
    srd_off(a, 28, 8, WS_KVP, 2 * MB)
    srd_off(a, 32, 8, WS_ZP, 64 * 1024)
    vm = Cnt(a, "vmcnt", 63)
    a("s_setprio 2")
    a("s_barrier")
    for p in range(16):
        a(f"buffer_load_dwordx4 {vr(64+4*p)}, v3, s[28:31], s43 offen")
        vm.issue(("kv", p))
        a("s_add_u32 s43, s43, 4096")
    for dt in range(2):
        a(f"buffer_load_dwordx4 {vr(32+4*dt)}, v6, s[32:35], s44 offen offset:{64*dt}")
        vm.issue("z")
    a("s_mov_b32 s45, s42")
    for mt in range(4):
        a(f"buffer_load_dwordx4 {vr(16+4*mt)}, v3, s[24:27], s45 offen")
        vm.issue(("q", mt))
        a("s_add_u32 s45, s45, 32768")
    srd(a, 20, 4, 2 * MB)
    wo_setup(a, 240, 3, 58)
    a("s_lshl_b32 s59, s3, 12")

    def wo_issue(k):
        a(f"s_add_u32 m0, s59, {k*16384}")
        for i in range(4):
            a(f"buffer_load_dwordx4 v{240+i}, s[20:23], s58 offen offset:{i*1024} lds")
            vm.issue("wo")
        a(f"s_add_u32 s58, s58, {128*2048}")
    for k in range(WO_EARLY):
        wo_issue(k)
    stamp(a, 6)
    srd_off(a, 16, 8, WS_OF, 4 * MB)
    srd(a, 48, 6, 8 * MB)
    a(f"s_mov_b32 s44, {LOG2E}")
    a(f"s_mov_b32 s45, {LOG2E}")
    a(f"s_mov_b32 s46, {EPS}")
    a(f"s_mov_b32 s47, {EPS}")
    a("s_lshr_b32 s38, s3, 1")
    a("s_lshl_b32 s38, s38, 10")
    a("s_and_b32 s39, s3, 1")
    a("s_lshl_b32 s39, s39, 3")
    a("s_add_u32 s38, s38, s39")
    a(f"s_add_u32 s38, s38, {KVX}")
    a("v_add_u32 v5, s38, v3")
    a(f"v_add_u32 v6, {KVX}, v3")
    a("v_mov_b32 v7, 1")
    for p in range(2, 16):
        vm.wait_for([("kv", p), ("kv", 0), ("kv", 1)])
        dst = 64 + 4 * (p & 1)
        for i in range(4):
            a(f"v_add_f32 v{dst+i}, v{dst+i}, v{64+4*p+i}")
    for i in range(4):
        a(f"v_add_f32 v{64+i}, v{64+i}, v{68+i}")
    for i in range(2):
        a(f"v_cvt_pk_bf16_f32 v{40+i}, v{64+2*i}, v{65+2*i}")
    a(f"ds_write_b64 v5, {vr(40,2)}")
    a("s_mov_b64 exec, 1")
    a("s_waitcnt lgkmcnt(0)")
    a(f"ds_add_u32 v10, v7 offset:{S_KVX}")
    a("s_mov_b64 exec, -1")
    stamp(a, 1)
    vm.wait_for(["z"])
    for sh in (8, 4, 2, 1):
        for i in range(8):
            a(f"v_add_f32_dpp v{32+i}, v{32+i}, v{32+i} row_ror:{sh} {DPP}")
    for i in range(4):
        a(f"v_cvt_pk_bf16_f32 v{48+i}, v{32+2*i}, v{33+2*i}")
    vm.wait_for([("q", 3)])
    stamp(a, 2)
    lds_wait(a, "K2_wkv", 10, S_KVX, 4, 8, 38)
    a(f"ds_read_b128 {vr(40)}, v6")
    a(f"ds_read_b128 {vr(44)}, v6 offset:1024")
    a("s_waitcnt lgkmcnt(0)")
    for mt in range(4):
        b = 64 + 12 * mt
        mfma16(a, b + 8, 48, 16 + 4 * mt, "0")
        mfma16(a, b, 40, 16 + 4 * mt, "0")
        mfma16(a, b + 4, 44, 16 + 4 * mt, "0")
    a("s_mov_b32 s38, s42")
    for mt in range(4):
        b = 64 + 12 * mt
        r = 112 + 2 * mt
        a(f"v_add_f32 v{r}, s46, v{b+8}")
        a(f"v_rcp_f32 v{r}, v{r}")
    for mt in range(4):
        b = 64 + 12 * mt
        r = 112 + 2 * mt
        for i in range(8):
            a(f"v_mul_f32 v{b+i}, v{b+i}, v{r}")
        for i in range(4):
            a(f"v_cvt_pk_bf16_f32 v{120+4*mt+i}, v{b+2*i}, v{b+2*i+1}")
        for i in range(4):
            a(f"v_or_b32 v{120+4*mt+i}, 1, v{120+4*mt+i}")
        a(f"buffer_store_dwordx4 {vr(120+4*mt)}, v3, s[16:19], s38 offen sc1")
        a("s_add_u32 s38, s38, 32768")
    stamp(a, 3)
    for k in range(WO_EARLY, 7):
        wo_issue(k)
    stamp(a, 9)
    a("v_bfe_u32 v4, v2, 2, 2")
    a("v_and_b32 v5, 3, v2")
    a("v_lshlrev_b32 v4, 6, v4")
    a("v_lshl_add_u32 v4, v5, 3, v4")
    a("v_lshrrev_b32 v5, 5, v2")
    a("v_lshl_add_u32 v4, v5, 9, v4")
    a("v_and_b32 v6, 1, v14")
    a("v_xor_b32 v7, v6, v5")
    a("v_lshl_add_u32 v4, v7, 5, v4")
    a("v_add_u32 v8, 0x10000, v4")
    a(f"v_add_u32 v9, {CV_BASE}, v4")
    a("v_lshlrev_b32 v12, 15, v6")
    a("v_lshl_add_u32 v12, v5, 8, v12")
    a("v_lshl_add_u32 v12, v15, 4, v12")
    a("s_and_b32 s40, s10, 3")
    a("s_lshl_b32 s40, s40, 2")
    a("s_add_u32 s40, s40, s36")
    a("s_lshr_b32 s36, s10, 2")
    a("s_lshl_b32 s36, s36, 3")
    a("s_add_u32 s36, s36, s37")
    a("s_waitcnt vmcnt(0)")
    stamp(a, 7)
    vm.q = []
    a("v_mov_b32 v7, 1")
    a("s_mov_b64 exec, 1")
    a(f"ds_add_u32 v10, v7 offset:{S_WOM}")
    a("s_mov_b64 exec, -1")
    if ODELAY:
        a(f"s_sleep {ODELAY}")
    stamp(a, 4)
    a("s_lshl_b32 s41, s40, 3")
    a("s_lshl_b32 s42, s3, 1")
    a("s_add_u32 s41, s41, s42")
    a("s_lshl_b32 s42, s41, 15")
    AR = 96
    D = ADEPTH
    a("s_mov_b32 s44, s42")

    def aload(h):
        for f in range(2):
            r = AR + 8 * (h % D) + 4 * f
            a(f"buffer_load_dwordx4 {vr(r)}, v12, s[16:19], s42 offen offset:{1024*(h%4)+512*f}{ASC}")
            vm.issue(("A", h))
        if h % 4 == 3:
            a("s_add_u32 s42, s42, 4096")

    def check_ops(g):
        r = AR + 8 * ((4 * g) % D)
        ops = [f"v_bitop3_b32 v81, v{r}, v{r+1}, v{r+2} bitop3:0x80"]
        for i in range(3, 31, 2):
            ops.append(f"v_bitop3_b32 v81, v81, v{r+i}, v{r+i+1} bitop3:0x80")
        ops.append(f"v_bitop3_b32 v81, v81, v{r+31}, 1 bitop3:0x80")
        return ops

    def check_branch(g):
        a("v_cmp_eq_u32 vcc, 0, v81")
        a("s_cmp_lg_u64 vcc, 0")
        a(f"s_cbranch_scc1 K2_retry{g}")
        a.label(f"K2_retry{g}_ret")

    def retry_block(g):
        a.label(f"K2_retry{g}")
        a(f"s_mov_b32 s46, {RETRY_MAX}")
        a(f"s_add_u32 s38, s44, {4096*g}")
        a.label(f"K2_retry{g}_l")
        if STAMP:
            a("s_add_u32 s93, s93, 1")
        a("s_sleep 4")
        for hh in range(4):
            for f in range(2):
                r = AR + 8 * ((4 * g + hh) % D) + 4 * f
                a(f"buffer_load_dwordx4 {vr(r)}, v12, s[16:19], s38 offen offset:{1024*hh+512*f} sc1")
        a("s_waitcnt vmcnt(0)")
        for op in check_ops(g):
            a(op)
        a("v_cmp_eq_u32 vcc, 0, v81")
        a("s_sub_u32 s46, s46, 1")
        a(f"s_cbranch_scc1 K2_retry{g}_ret")
        a("s_cmp_lg_u64 vcc, 0")
        a(f"s_cbranch_scc1 K2_retry{g}_l")
        a(f"s_branch K2_retry{g}_ret")

    for h in range(D):
        aload(h)
    a("s_setprio 0")
    lds_wait(a, "K2_wwo", 10, S_WOM, 4, 16, 38)
    stamp(a, 8)
    lg = Cnt(a, "lgkmcnt", 15)
    BS = [48, 64]

    def breads(h):
        out = []
        st = h & 1
        if h < 16:
            vb, off = 4, h * 4096
        elif h < 28:
            vb, off = 8, (h - 16) * 4096
        else:
            vb, off = 9, (h - 28) * CV_REG
        for f in range(2):
            for nb in range(2):
                for hf in range(2):
                    out.append(((h, f, nb), f"ds_read_b64_tr_b16 {vr(BS[st]+8*f+4*nb+2*hf,2)}, v{vb} offset:{off + f*1024 + hf*2048 + nb*256}"))
        return out

    for tag, txt in breads(0):
        a(txt); lg.issue(tag)
    vm.wait_for([("A", 3)])
    for op in check_ops(0):
        a(op)
    check_branch(0)
    chk = []
    for h in range(32):
        nxt = []
        pass
        if h + 1 < 32:
            if h + 1 == 28:
                lg.drain()
                lds_wait(a, "K2_wwt", 10, S_WOT, 4, 80, 38)
                stamp(a, 10)
            nxt = breads(h + 1)
        if h % 4 == 2 and h + 2 < 32:
            vm.wait_for([("A", h + 5)])
            chk = check_ops(h // 4 + 1)
        for f in range(2):
            for nb in range(2):
                lg.wait_for([(h, f, nb)])
                d = 16 + 16 * nb
                cs = "0" if (h == 0 and f == 0) else vr(d, 16)
                a(f"v_mfma_f32_32x32x16_bf16 {vr(d,16)}, {vr(BS[h&1]+8*f+4*nb)}, {vr(AR+8*(h%D)+4*f)}, {cs}")
                for _ in range(2):
                    if nxt:
                        tag, txt = nxt.pop(0)
                        a(txt); lg.issue(tag)
                    if chk:
                        a(chk.pop(0))
        if h % 4 == 3 and h + 1 < 32:
            assert not chk
            check_branch(h // 4 + 1)
        if h + D < 32:
            aload(h + D)
    stamp(a, 5)
    a("v_and_b32 v4, 31, v2")
    a("v_lshlrev_b32 v4, 12, v4")
    a("v_lshrrev_b32 v5, 5, v2")
    a("v_lshl_add_u32 v4, v5, 4, v4")
    a("s_lshl_b32 s38, s41, 16")
    a("s_lshl_b32 s39, s36, 7")
    a("s_add_u32 s38, s38, s39")
    a("s_add_u32 s38, s38, 2048")
    for nb in range(2):
        for kp in range(2):
            P = 80 + 8 * nb + 4 * kp
            t0 = 16 + 16 * nb + 8 * kp
            for i in range(4):
                a(f"v_cvt_pk_bf16_f32 v{P+i}, v{t0+2*i}, v{t0+2*i+1}")
            a(f"v_permlane32_swap_b32 v{P}, v{P+2}")
            a(f"v_permlane32_swap_b32 v{P+1}, v{P+3}")
            a(f"buffer_store_dwordx4 {vr(P)}, v4, s[48:51], s38 offen offset:{64*nb+32*kp}")
    stamp_flush(a, 2, 11)
    a("s_endpgm")
    for g in range(8):
        retry_block(g)

    a.label("K2_L")
    a("s_sub_u32 s36, s3, 4")
    a("s_lshl_b32 s37, s12, 6")
    a("s_lshl_b32 s38, s13, 2")
    a("s_add_u32 s37, s37, s38")
    a("s_add_u32 s37, s37, s36")
    a(f"s_mul_i32 s38, s36, {CV_REG}")
    a(f"s_add_u32 s38, s38, {CV_BASE}")
    a("s_lshl_b32 s39, s37, 12")
    a("s_lshl_b32 s40, s37, 1")
    a("v_mov_b32 v4, 0")
    a("s_waitcnt lgkmcnt(0)")
    srd(a, 16, 52, 4 * MB)
    srd_off(a, 24, 8, WS_UT, 4 * MB)
    srd(a, 20, 54, 2048)
    vm = Cnt(a, "vmcnt", 63)
    lg = Cnt(a, "lgkmcnt", 15)
    for c in range(4):
        a(f"s_add_u32 m0, s38, {CV_UB}")
        a(f"buffer_load_dwordx4 v3, s[24:27], s39 offen offset:{1024*c} lds")
        vm.issue(("u", c))
        if c == 0:
            a("buffer_load_ushort v5, v4, s[20:23], s40 offen")
            vm.issue("D")
        a(f"s_add_u32 m0, s38, {CV_HB}")
        a(f"buffer_load_dwordx4 v3, s[16:19], s39 offen offset:{1024*c} lds")
        vm.issue(("h", c))
    a("s_barrier")
    wo_setup(a, 240, 36, 41)
    a(f"s_add_u32 s41, s41, {7*128*2048}")
    a("v_mov_b32 v6, 0")
    a("v_lshlrev_b32 v7, 2, v2")
    a("v_add_u32 v7, s38, v7")
    a(f"ds_write_b32 v7, v6 offset:{CV_UB-256}")
    a("v_and_b32 v8, 7, v2")
    a("v_lshlrev_b32 v8, 2, v8")
    a("v_add_u32 v8, s38, v8")
    a("ds_write_b32 v8, v6")
    a("v_and_b32 v8, 3, v2")
    a("v_bfe_u32 v9, v2, 2, 2")
    a("v_add_u32 v12, v8, v9")
    a("v_lshlrev_b32 v12, 3, v12")
    a("v_lshl_add_u32 v12, v14, 6, v12")
    a(f"s_add_u32 s43, s38, {CV_HB-24}")
    a("v_add_u32 v12, s43, v12")
    a("v_lshlrev_b32 v13, 5, v8")
    a("v_lshlrev_b32 v9, 3, v9")
    a("v_sub_u32 v13, v13, v9")
    a("v_lshlrev_b32 v9, 6, v14")
    a("v_sub_u32 v13, v13, v9")
    a(f"s_add_u32 s43, s38, {CV_UB+24-32}")
    a("v_add_u32 v13, s43, v13")
    a("v_mov_b32 v9, s38")
    srd_off(a, 28, 8, WS_YF, 4 * MB)
    srd(a, 32, 4, 2 * MB)
    srd(a, 44, 56, 4 * MB)
    srd(a, 48, 6, 8 * MB)
    if LPRIO:
        a(f"s_setprio {LPRIO}")
    stamp(a, 1)
    vm.wait_for([("h", 0)])
    stamp(a, 2)
    a(f"ds_read_u16 v6, v9 offset:{CV_HB}")
    a("v_lshlrev_b32 v5, 16, v5")
    a("s_waitcnt lgkmcnt(0)")
    a("v_lshlrev_b32 v6, 16, v6")
    a("v_add_f32 v6, v6, v5")
    a("v_cvt_pk_bf16_f32 v6, v6, v6")
    a(f"ds_write_b16 v9, v6 offset:{CV_HB}")
    a("s_waitcnt lgkmcnt(0)")

    HH, FU = 32, 96
    ACC = [16, 20, 24, 28]
    T2, T1, YV, PK = [224, 225], [226, 227], [228, 229], [232, 236]

    def fu_reads(s):
        vm.wait_for([("u", s // 8)])
        for hf in range(2):
            a(f"ds_read_b64_tr_b16 {vr(FU+4*s+2*hf,2)}, v13 offset:{128*s + 32*(1-hf)}")
            lg.issue(("fu", s))

    def h_reads(t):
        vm.wait_for([("h", t // 4)])
        for hf in range(2):
            a(f"ds_read_b64_tr_b16 {vr(HH+4*t+2*hf,2)}, v12 offset:{256*t + 32*hf}")
            lg.issue(("h", t))

    def epi(Q):
        ops = []
        R0 = ACC[Q % 4]
        R1, R2, R3 = R0 + 1, R0 + 2, R0 + 3
        cur, prv = Q & 1, (Q & 1) ^ 1
        if Q == 0:
            ops.append(f"v_add_f32_dpp v{T2[cur]}, v{R3}, v{R2} wave_shr:1 {DPP} bound_ctrl:0")
            ops.append(f"v_add_f32_dpp v{T1[cur]}, v{T2[cur]}, v{R1} wave_shr:1 {DPP} bound_ctrl:0")
            ops.append(f"v_add_f32_dpp v{YV[cur]}, v{T1[cur]}, v{R0} wave_shr:1 {DPP} bound_ctrl:0")
        else:
            r3p = ACC[(Q - 1) % 4] + 3
            ops.append(f"v_add_f32_dpp v{T2[cur]}, v{r3p}, v{R2} wave_ror:1 {DPP}")
            ops.append(f"v_add_f32_dpp v{T1[cur]}, v{T2[prv]}, v{R1} wave_ror:1 {DPP}")
            ops.append(f"v_add_f32_dpp v{YV[cur]}, v{T1[prv]}, v{R0} wave_ror:1 {DPP}")
            ops.append(f"v_add_f32_dpp v{T2[cur]}, v{R3}, v{R2} wave_shr:1 {DPP}")
            ops.append(f"v_add_f32_dpp v{T1[cur]}, v{T2[cur]}, v{R1} wave_shr:1 {DPP}")
            ops.append(f"v_add_f32_dpp v{YV[cur]}, v{T1[cur]}, v{R0} wave_shr:1 {DPP}")
        if Q & 1:
            ops.append(f"v_cvt_pk_bf16_f32 v{PK[(Q//8)&1] + (Q%8)//2}, v{YV[0]}, v{YV[1]}")
            ops.append(f"v_or_b32 v{PK[(Q//8)&1] + (Q%8)//2}, 1, v{PK[(Q//8)&1] + (Q%8)//2}")
        if Q % 8 == 7:
            ops.append(("store", f"buffer_store_dwordx4 {vr(PK[(Q//8)&1])}, v3, s[28:31], s39 offen offset:{1024*(Q//8)} sc1"))
        return ops

    def emit(op):
        if isinstance(op, tuple):
            vm.wait_for([("u", 3)])
            a(op[1]); vm.issue("yst")
        else:
            a(op)

    PRE = 3
    for c in range(PRE):
        fu_reads(c)
        if c % 2 == 0:
            h_reads(c // 2)
    pending = []
    for c in range(32):
        nst = c // 2 + 1
        if STAMP and c in (4, 10, 18):
            stamp(a, 3 + (4, 10, 18).index(c)); lg.q = []
        for t in range(nst):
            s = c - 2 * t
            lg.wait_for([("fu", s), ("h", t)])
            mfma16(a, ACC[c % 4], FU + 4 * s, HH + 4 * t, "0" if t == 0 else None)
            if t == 0 and c + PRE < 32:
                fu_reads(c + PRE)
                if (c + PRE) % 2 == 0:
                    h_reads((c + PRE) // 2)
            if t == 0 and c >= 2:
                assert not pending
                pending = epi(c - 2)
            k = max(1, -(-len(pending) // (nst - t))) if pending else 0
            for _ in range(k):
                emit(pending.pop(0))
    for Q in (30, 31):
        for op in epi(Q):
            emit(op)
    stamp(a, 8)
    lg.drain()
    a("s_mov_b32 m0, s38")
    for i in range(4):
        a(f"buffer_load_dwordx4 v{240+i}, s[32:35], s41 offen offset:{i*1024} lds")
        vm.issue("wo")
    if LPRIO:
        a("s_setprio 0")
    a("s_lshl_b32 s40, s13, 2")
    a("s_add_u32 s40, s40, s36")
    a("s_lshr_b32 s41, s40, 4")
    a("s_and_b32 s40, s40, 15")
    a("s_lshl_b32 s42, s41, 9")
    a("s_lshl_b32 s43, s40, 2")
    a("s_add_u32 s42, s42, s43")
    a("s_lshl_b32 s43, s42, 11")
    a("s_lshl_b32 s58, s12, 7")
    a("s_add_u32 s43, s43, s58")
    a("s_lshl_b32 s59, s42, 12")
    a("s_add_u32 s59, s59, s58")
    a("v_lshlrev_b32 v4, 11, v14")
    a("v_lshl_add_u32 v4, v15, 3, v4")
    a("v_lshlrev_b32 v5, 12, v14")
    a("v_lshl_add_u32 v5, v15, 3, v5")
    a("v_lshlrev_b32 v7, 14, v15")
    a("v_lshl_add_u32 v7, v14, 4, v7")
    a("s_lshl_b32 s42, s12, 18")
    a("s_lshl_b32 s58, s41, 10")
    a("s_add_u32 s42, s42, s58")
    a("s_lshl_b32 s58, s40, 6")
    a("s_add_u32 s42, s42, s58")
    for jj in range(8):
        a(f"buffer_load_dwordx2 {vr(32+2*jj,2)}, v4, s[44:47], s43 offen")
        vm.issue(("q", jj))
        a(f"s_add_u32 s43, s43, {64*2048}")
    a("v_mov_b32 v6, 1")
    vm.wait_for(["wo"])
    a("s_mov_b64 exec, 1")
    a(f"ds_add_u32 v10, v6 offset:{S_WOT}")
    a("s_mov_b64 exec, -1")
    a("s_add_u32 s40, s42, 4096")
    a("s_add_u32 s41, s42, 8192")
    a("s_add_u32 s43, s42, 12288")
    a(f"s_mov_b32 s58, {RETRY_MAX}")
    a.label("K2_yl")
    for ci, sr in enumerate((42, 40, 41, 43)):
        a(f"buffer_load_dwordx4 {vr(16+4*ci)}, v7, s[28:31], s{sr} offen sc1")
    a("s_waitcnt vmcnt(0)")
    vm.q = []
    a("v_bitop3_b32 v9, v16, v17, v18 bitop3:0x80")
    for i in range(19, 31, 2):
        a(f"v_bitop3_b32 v9, v9, v{i}, v{i+1} bitop3:0x80")
    a("v_bitop3_b32 v9, v9, v31, 1 bitop3:0x80")
    a("v_cmp_eq_u32 vcc, 0, v9")
    a("s_sub_u32 s58, s58, 1")
    a("s_cbranch_scc1 K2_yok")
    a("s_cmp_eq_u64 vcc, 0")
    a("s_cbranch_scc1 K2_yok")
    if STAMP:
        a("s_add_u32 s93, s93, 1")
    a(f"s_sleep {YSLEEP}")
    a("s_branch K2_yl")
    a.label("K2_yok")
    stamp(a, 9)
    for jj in range(8):
        T = 48 + 8 * (jj & 1)
        for ci in range(4):
            if jj & 1:
                a(f"v_and_b32 v{T+ci}, 0xffff0000, v{16+4*ci+jj//2}")
            else:
                a(f"v_lshlrev_b32 v{T+ci}, 16, v{16+4*ci+jj//2}")
        for cp in range(2):
            a(f"v_lshlrev_b32 v{T+4+2*cp}, 16, v{32+2*jj+cp}")
            a(f"v_and_b32 v{T+5+2*cp}, 0xffff0000, v{32+2*jj+cp}")
        for ci in range(4):
            a(f"v_mul_f32 v{T+ci}, v{T+ci}, v{T+4+ci}")
        O = 64 + 2 * jj
        for cp in range(2):
            a(f"v_cvt_pk_bf16_f32 v{O+cp}, v{T+2*cp}, v{T+2*cp+1}")
        a(f"buffer_store_dwordx2 {vr(O,2)}, v5, s[48:51], s59 offen")
        a(f"s_add_u32 s59, s59, {64*4096}")
    stamp_flush(a, 2, 10)
    a.label("K2_end")
    a("s_endpgm")
    a.label("K2_code_end")
    return a.finalize(), 244
```

```python
import sys, os
sys.path.insert(0, os.path.dirname(os.path.abspath(__file__)))
from common import *
import k1

def gen_warm():
    a = Asm()
    a("s_cmp_ge_u32 s2, 256")
    a("s_cbranch_scc1 WM_end")
    a(f"s_load_dwordx2 s[4:5], s[0:1], {KA_SSMK}")
    a(f"s_load_dwordx2 s[6:7], s[0:1], {KA_WO}")
    a(f"s_load_dwordx2 s[8:9], s[0:1], {KA_Q}")
    a("v_and_b32 v2, 63, v0")
    a("s_and_b32 s10, s2, 7")
    a("s_lshr_b32 s11, s2, 3")
    a("s_waitcnt lgkmcnt(0)")
    srd(a, 16, 4, 4 * MB)
    srd(a, 20, 8, 4 * MB)
    srd(a, 24, 6, 2 * MB)
    for part in range(4):
        k2_prefetch(a, part, 8, 4, 16, 30)
    a("s_waitcnt vmcnt(0)")
    a.label("WM_end")
    a("s_endpgm")
    return a.finalize(), 64


HEADER = open(os.path.join(os.path.dirname(os.path.abspath(__file__)), "header.txt")).read()


def build():
    kernels = [("k1_kernel", k1.gen_k1, 256, 512, k1.K1_LDS)]
    if not os.environ.get("ONLY_K1"):
        import k2
        kernels.append(("k2_kernel", k2.gen_k2, 256, 512, k2.K2_LDS))
    if os.environ.get("WARM"):
        kernels.insert(1, ("warm_kernel", gen_warm, 256, 64, 0))
    out = HEADER
    for name, _, grid, block, lds in kernels:
        out += f"; @launch kernel={name} grid=({grid},1,1) block=({block},1,1) lds={lds}\n"
    out += '.amdgcn_target "amdgcn-amd-amdhsa--gfx950"\n.text\n'
    desc = '.section .rodata,"a"\n'
    for name, fn, grid, block, lds in kernels:
        body, vg = fn()
        out += f".globl {name}\n.p2align 8\n.type {name},@function\n{name}:\n{body}"
        acc = (vg + 3) // 4 * 4
        desc += f""".p2align 6
.amdhsa_kernel {name}
  .amdhsa_next_free_vgpr {vg}
  .amdhsa_next_free_sgpr 96
  .amdhsa_accum_offset {acc}
  .amdhsa_group_segment_fixed_size 0
  .amdhsa_kernarg_size 96
  .amdhsa_user_sgpr_count 2
  .amdhsa_user_sgpr_kernarg_segment_ptr 1
  .amdhsa_system_sgpr_workgroup_id_x 1
.end_amdhsa_kernel
"""
    return out + desc


if __name__ == "__main__":
    dst = sys.argv[1] if len(sys.argv) > 1 else "concat_heads__ssm_conv_h3__linear_attn_block__prompt.s"
    open(dst, "w").write(build())
    print("wrote", dst)
```

```python
import os
from asmlib import *

MB = 1 << 20
KA_Q, KA_K, KA_V, KA_SHK, KA_SSMK, KA_SSMD, KA_X, KA_WQKV, KA_WO, KA_OUT, KA_DBG, KA_WS = [8 * i for i in range(12)]
WS_QF = 0
WS_OF = 0
WS_KVP = 8 * MB
WS_ZP = 12 * MB
WS_FLAG = 13 * MB
FLAG_STRIDE = 4224
FLAG_BYTES = 32 * FLAG_STRIDE
WS_UT = 16 * MB
WS_YF = 16 * MB
WS_DBG = 32 * MB

LOG2E = 0x3fb8aa3b
EPS = 0x358637bd

STAMP = os.environ.get("STAMP", "0") == "1"


def env(name, default):
    v = os.environ.get(name)
    return default if v is None else type(default)(v)


def vr(b, n=4):
    return f"v[{b}:{b+n-1}]"


def mfma16(a, d, A, B, c=None):
    cs = vr(d, 4) if c is None else c
    a(f"v_mfma_f32_16x16x32_bf16 {vr(d,4)}, {vr(A)}, {vr(B)}, {cs}")


def stamp(a, i):
    if STAMP:
        a(f"{os.environ.get('STAMPI', 's_memrealtime')} s[{64+2*i}:{65+2*i}]")
        a("s_waitcnt lgkmcnt(0)")


def stamp_flush(a, kidx, n):
    if not STAMP:
        return
    a("s_mov_b64 exec, -1")
    a("s_waitcnt vmcnt(0)")
    stamp(a, n)
    srd_off(a, 88, 8, WS_DBG, 4 * MB)
    a(f"s_add_u32 s92, s2, {kidx*512}")
    a("s_lshl_b32 s92, s92, 4")
    a("s_add_u32 s92, s92, s3")
    a("s_lshl_b32 s92, s92, 6")
    a("v_mov_b32 v0, 0")
    for i in range(n + 1):
        a(f"v_mov_b32 v1, s{64+2*i}")
        a(f"buffer_store_dword v1, v0, s[88:91], s92 offen offset:{4*i}")
    if kidx == 2:
        a("v_mov_b32 v1, s93")
        a("buffer_store_dword v1, v0, s[88:91], s92 offen offset:60")


def phi8(a, T, dst, sl2e, seps):
    for j in range(8):
        a(f"v_min_f32 v{T+12+j}, 0, v{T+4+j}")
    for j in range(4):
        a(f"v_pk_mul_f32 {vr(T+20+2*j,2)}, {vr(T+12+2*j,2)}, s[{sl2e}:{sl2e+1}]")
    for j in range(8):
        a(f"v_exp_f32 v{T+20+j}, v{T+20+j}")
    for j in range(4):
        a(f"v_pk_add_f32 {vr(T+4+2*j,2)}, {vr(T+4+2*j,2)}, {vr(T+12+2*j,2)} neg_lo:[0,1] neg_hi:[0,1]")
    for j in range(4):
        a(f"v_pk_add_f32 {vr(T+4+2*j,2)}, {vr(T+4+2*j,2)}, {vr(T+20+2*j,2)}")
    for j in range(4):
        a(f"v_pk_add_f32 {vr(T+4+2*j,2)}, {vr(T+4+2*j,2)}, s[{seps}:{seps+1}]")
    for j in range(4):
        a(f"v_cvt_pk_bf16_f32 v{dst+j}, v{T+4+2*j}, v{T+5+2*j}")


def unpack4(a, T, src):
    for j in range(4):
        a(f"v_lshlrev_b32 v{T+4+2*j}, 16, v{src+j}")
        a(f"v_and_b32 v{T+5+2*j}, 0xffff0000, v{src+j}")


def k2_prefetch(a, part, vdst, vt, sq, ssoff):
    s0, s1 = ssoff, ssoff + 1
    if part == 0:
        a(f"s_lshl_b32 s{s0}, s10, 19")
        a(f"s_lshl_b32 s{s1}, s11, 14")
        a(f"s_add_u32 s{s0}, s{s0}, s{s1}")
        a(f"s_add_u32 s{s1}, s{s0}, 8192")
        a(f"v_lshlrev_b32 v{vt}, 7, v2")
        srdn = sq
    elif part == 1:
        a(f"s_lshl_b32 s{s0}, s11, 17")
        a(f"s_lshl_b32 s{s1}, s10, 8")
        a(f"s_add_u32 s{s0}, s{s0}, s{s1}")
        a(f"s_add_u32 s{s1}, s{s0}, 65536")
        a(f"v_lshrrev_b32 v{vt}, 1, v2")
        a(f"v_lshlrev_b32 v{vt}, 11, v{vt}")
        a(f"v_and_b32 v{vt+1}, 1, v2")
        a(f"v_lshl_add_u32 v{vt}, v{vt+1}, 7, v{vt}")
        srdn = sq + 4
    else:
        a(f"s_lshl_b32 s{s0}, s11, 16")
        a(f"s_lshr_b32 s{s1}, s10, 2")
        a(f"s_lshl_b32 s{s1}, s{s1}, 10")
        a(f"s_add_u32 s{s0}, s{s0}, s{s1}")
        if part == 3:
            a(f"s_add_u32 s{s0}, s{s0}, 32768")
        a(f"s_add_u32 s{s1}, s{s0}, 16384")
        a(f"v_lshrrev_b32 v{vt}, 3, v2")
        a(f"v_lshlrev_b32 v{vt}, 11, v{vt}")
        a(f"v_and_b32 v{vt+1}, 7, v2")
        a(f"v_lshl_add_u32 v{vt}, v{vt+1}, 7, v{vt}")
        srdn = sq + 8
    a(f"buffer_load_dword v{vdst}, v{vt}, s[{srdn}:{srdn+3}], s{s0} offen")
    a(f"buffer_load_dword v{vdst}, v{vt}, s[{srdn}:{srdn+3}], s{s1} offen")


def phi8s(a, T, dst, sl2e, seps):
    for j in range(8):
        a(f"v_min_f32 v{T+12+j}, 0, v{T+4+j}")
    for j in range(8):
        a(f"v_mul_f32 v{T+20+j}, s{sl2e}, v{T+12+j}")
    for j in range(8):
        a(f"v_exp_f32 v{T+20+j}, v{T+20+j}")
    for j in range(8):
        a(f"v_max_f32 v{T+4+j}, 0, v{T+4+j}")
    for j in range(8):
        a(f"v_add_f32 v{T+4+j}, v{T+4+j}, v{T+20+j}")
    for j in range(8):
        a(f"v_add_f32 v{T+4+j}, s{seps}, v{T+4+j}")
    for j in range(4):
        a(f"v_cvt_pk_bf16_f32 v{dst+j}, v{T+4+2*j}, v{T+5+2*j}")


def k2_prefetch_setup(a, part, vt, sd, ssoff, p_h, p_q, p_wo):
    s0, s1 = ssoff, ssoff + 1
    if part == 0:
        srd(a, sd, p_h, 4 * MB)
        a(f"s_lshl_b32 s{s0}, s10, 19")
        a(f"s_lshl_b32 s{s1}, s11, 14")
        a(f"s_add_u32 s{s0}, s{s0}, s{s1}")
        a(f"s_add_u32 s{s1}, s{s0}, 8192")
        a(f"v_lshlrev_b32 v{vt}, 7, v2")
    elif part == 1:
        srd(a, sd, p_q, 4 * MB)
        a(f"s_lshl_b32 s{s0}, s11, 17")
        a(f"s_lshl_b32 s{s1}, s10, 8")
        a(f"s_add_u32 s{s0}, s{s0}, s{s1}")
        a(f"s_add_u32 s{s1}, s{s0}, 65536")
        a(f"v_lshrrev_b32 v{vt}, 1, v2")
        a(f"v_lshlrev_b32 v{vt}, 11, v{vt}")
        a("v_and_b32 v15, 1, v2")
        a(f"v_lshl_add_u32 v{vt}, v15, 7, v{vt}")
    else:
        srd(a, sd, p_wo, 2 * MB)
        a(f"s_lshl_b32 s{s0}, s11, 16")
        a(f"s_lshr_b32 s{s1}, s10, 2")
        a(f"s_lshl_b32 s{s1}, s{s1}, 10")
        a(f"s_add_u32 s{s0}, s{s0}, s{s1}")
        if part == 3:
            a(f"s_add_u32 s{s0}, s{s0}, 32768")
        a(f"s_add_u32 s{s1}, s{s0}, 16384")
        a(f"v_lshrrev_b32 v{vt}, 3, v2")
        a(f"v_lshlrev_b32 v{vt}, 11, v{vt}")
        a("v_and_b32 v15, 7, v2")
        a(f"v_lshl_add_u32 v{vt}, v15, 7, v{vt}")


def prepass(a, sw, p_k, p_v, p_shk, stflag=""):
    srd(a, 16, p_k, 4 * MB)
    srd(a, 20, p_v, 4 * MB)
    srd(a, 24, p_shk, 8192)
    srd_off(a, 28, 8, WS_UT, 4 * MB)
    a("s_lshl_b32 s32, s2, 2")
    a(f"s_add_u32 s32, s32, s{sw}")
    a("s_and_b32 s33, s32, 15")
    a("s_lshr_b32 s32, s32, 4")
    a("s_lshl_b32 s34, s32, 16")
    a("s_lshl_b32 s35, s33, 7")
    a("s_add_u32 s34, s34, s35")
    a("v_and_b32 v20, 15, v2")
    a("v_lshrrev_b32 v18, 4, v2")
    a("v_lshlrev_b32 v21, 14, v18")
    a("v_lshl_add_u32 v21, v20, 3, v21")
    a("v_add_u32 v21, s34, v21")
    a("s_lshl_b32 s35, s33, 9")
    a("v_lshlrev_b32 v22, 5, v20")
    for i in range(11):
        a(f"v_add_u32 v23, {((i-3)*2048) & 0xffffffff}, v21")
        a(f"buffer_load_dwordx2 {vr(32+2*i,2)}, v23, s[16:19], 0 offen")
    for i in range(8):
        a(f"v_add_u32 v23, {i*2048}, v21")
        a(f"buffer_load_dwordx2 {vr(54+2*i,2)}, v23, s[20:23], 0 offen")
    for i in range(2):
        a(f"buffer_load_dwordx4 {vr(24+4*i)}, v22, s[24:27], s35 offen offset:{16*i}")
    a("s_lshl_b32 s34, s33, 18")
    a("s_lshl_b32 s35, s32, 6")
    a("s_add_u32 s34, s34, s35")
    a("v_lshlrev_b32 v19, 14, v20")
    a("v_lshl_add_u32 v19, v18, 4, v19")

    def compute():
        W, KF, VF, KS = 72, 88, 110, 126
        a("s_waitcnt vmcnt(0)")
        for ci in range(4):
            a(f"v_lshlrev_b32 v{W+ci}, 16, v{24+2*ci}")
            a(f"v_and_b32 v{W+4+ci}, 0xffff0000, v{24+2*ci}")
            a(f"v_lshlrev_b32 v{W+8+ci}, 16, v{25+2*ci}")
            a(f"v_and_b32 v{W+12+ci}, 0xffff0000, v{25+2*ci}")
        for cp in range(2):
            for i in range(11):
                a(f"v_lshlrev_b32 v{KF+2*i}, 16, v{32+2*i+cp}")
                a(f"v_and_b32 v{KF+2*i+1}, 0xffff0000, v{32+2*i+cp}")
            for i in range(8):
                a(f"v_lshlrev_b32 v{VF+2*i}, 16, v{54+2*i+cp}")
                a(f"v_and_b32 v{VF+2*i+1}, 0xffff0000, v{54+2*i+cp}")
            for i in range(8):
                a(f"v_pk_mul_f32 {vr(KS+2*i,2)}, {vr(KF+2*i,2)}, {vr(W+12+2*cp,2)}")
            for j in (2, 1, 0):
                for i in range(8):
                    a(f"v_pk_fma_f32 {vr(KS+2*i,2)}, {vr(KF+2*(i+3-j),2)}, {vr(W+4*j+2*cp,2)}, {vr(KS+2*i,2)}")
            for i in range(8):
                a(f"v_pk_mul_f32 {vr(KS+2*i,2)}, {vr(KS+2*i,2)}, {vr(VF+2*i,2)}")
            O = 144 + 8 * cp
            for e in range(2):
                for i in range(4):
                    a(f"v_cvt_pk_bf16_f32 v{O+4*e+i}, v{KS+4*i+e}, v{KS+4*i+2+e}")
            for i in range(8):
                a(f"v_and_b32 v{O+i}, -2, v{O+i}")
            for e in range(2):
                a(f"buffer_store_dwordx4 {vr(O+4*e)}, v19, s[28:31], s34 offen{stflag}")
                a("s_add_u32 s34, s34, 4096")
    return compute
```

```python
import os
from asmlib import *
from common import MB, vr, mfma16, phi8, unpack4, env, LOG2E, EPS, WS_KVP, WS_ZP, WS_FLAG, WS_UT, WS_DBG, STAMP

WS_OF = 0
NS = 4
STAGE = 40960
K3_LDS = NS * STAGE
CV_REG = 8704
CV_HB = 32
CV_UB = 4384
KVT = 4 * CV_REG
ZFR = KVT + 4096
SYNC = ZFR + 256
WO_BASE = 40960
PQ_BASE = WO_BASE + 24 * 4096
XCH = WO_BASE + 28 * 4096
XCZ = SYNC + 256
S_KVS = 84
S_X, S_HU, S_PQ, S_KVT, S_WOM, S_WOT, S_CD, S_GO, S_NONCE, S_WO2 = 0, 8, 24, 40, 48, 52, 56, 72, 76, 80
SPIN_MAX = 1 << 17
RETRY_MAX = 4000
DPP = "row_mask:0xf bank_mask:0xf"
DUTY0 = env("DUTY0", 0)
NDUTY = env("NDUTY", 4)
E2_0 = env("E2_0", 4)
E2_N = env("E2_N", 2)
FLAGN = env("FLAGN", 10)
PL0 = env("PL0", 4)
SPF_C = env("SPF_C", 0)
SPF_L = env("SPF_L", 0)
ADEPTH = env("ADEPTH", 16)
YDELAY = env("YDELAY", 8)
ZSLEEP = env("ZSLEEP", 4)
ATOUCH = env("ATOUCH", 1)
XP = env("XP", "2")
LATE = env("LATE", 1)
PREPOST = env("PREPOST", 1)
EARLYWO = env("EARLYWO", 4)
WAITKV = env("WAITKV", 1)
ASC = env("ASC", "")
P_Q, P_K, P_V, P_SHK, P_H, P_D, P_X, P_W, P_WO, P_OUT, P_DBG, P_WS = [76 + 2 * i for i in range(12)]
SV = 231


def stamp(a, i):
    if STAMP:
        a("s_memrealtime s[100:101]")
        a("s_waitcnt lgkmcnt(0)")
        a(f"v_writelane_b32 v{SV}, s100, {i}")


def stamp_flush(a, n):
    if not STAMP:
        return
    a("s_mov_b64 exec, -1")
    a("s_waitcnt vmcnt(0)")
    stamp(a, n)
    a(f"v_writelane_b32 v{SV}, s75, 15")
    srd_off(a, 16, P_WS, WS_DBG, 4 * MB)
    a("s_add_u32 s20, s2, 512")
    a("s_lshl_b32 s20, s20, 4")
    a("s_add_u32 s20, s20, s3")
    a("s_lshl_b32 s20, s20, 6")
    a("v_lshlrev_b32 v0, 2, v2")
    a("s_mov_b64 exec, 0xffff")
    a(f"buffer_store_dword v{SV}, v0, s[16:19], s20 offen")


def lds_wait(a, name, vaddr, off, val, vtmp, stmp, sleep=0):
    a(f"s_mov_b32 s{stmp+1}, {SPIN_MAX}")
    a.label(name)
    if sleep:
        a(f"s_sleep {sleep}")
    a(f"ds_read_b32 v{vtmp}, v{vaddr} offset:{off}")
    a("s_waitcnt lgkmcnt(0)")
    a(f"v_readfirstlane_b32 s{stmp}, v{vtmp}")
    a(f"s_sub_u32 s{stmp+1}, s{stmp+1}, 1")
    a(f"s_cbranch_scc1 {name}_ok")
    a(f"s_cmp_lt_u32 s{stmp}, {val}")
    a(f"s_cbranch_scc1 {name}")
    a.label(name + "_ok")


def lds_signal(a, vaddr, off, vone):
    a("s_mov_b64 exec, 1")
    a(f"ds_add_u32 v{vaddr}, v{vone} offset:{off}")
    a("s_mov_b64 exec, -1")


def and_reduce(a, dst, regs):
    regs = list(regs)
    a(f"v_bitop3_b32 v{dst}, v{regs[0]}, v{regs[1]}, 1 bitop3:0x80")
    i = 2
    while i + 1 < len(regs):
        a(f"v_bitop3_b32 v{dst}, v{dst}, v{regs[i]}, v{regs[i+1]} bitop3:0x80")
        i += 2
    if i < len(regs):
        a(f"v_and_b32 v{dst}, v{dst}, v{regs[i]}")


def gen_k3():
    a = Asm()
    a("s_cmp_ge_u32 s2, 256")
    a("s_cbranch_scc1 K3_end")
    a("s_load_dwordx8 s[84:91], s[0:1], 32")
    a("s_load_dwordx8 s[92:99], s[0:1], 64")
    a("s_load_dwordx8 s[76:83], s[0:1], 0")
    a("v_lshrrev_b32 v1, 6, v0")
    a("v_and_b32 v2, 63, v0")
    a("s_and_b32 s10, s2, 7")
    a("v_readfirstlane_b32 s3, v1")
    a("s_lshr_b32 s11, s2, 3")
    a("s_and_b32 s12, s10, 1")
    a("s_lshl_b32 s12, s12, 3")
    a("s_and_b32 s13, s11, 7")
    a("s_add_u32 s12, s12, s13")
    a("s_lshr_b32 s13, s10, 1")
    a("s_lshl_b32 s13, s13, 2")
    a("s_lshr_b32 s14, s11, 3")
    a("s_add_u32 s13, s13, s14")
    a("s_mov_b32 s75, 0")
    a("s_and_b32 s4, s3, 3")
    a("s_and_b32 s36, s3, 1")
    a("s_bfe_u32 s37, s3, 0x10001")
    a("s_lshl_b32 s5, s13, 1")
    a("s_add_u32 s5, s5, s37")
    a("s_lshl_b32 s6, s10, 7")
    a("s_lshl_b32 s7, s11, 2")
    a("s_add_u32 s6, s6, s7")
    a("s_add_u32 s6, s6, s4")
    a(f"s_mul_i32 s7, s4, {CV_REG}")
    a("v_lshlrev_b32 v3, 4, v2")
    a("v_lshrrev_b32 v14, 4, v2")
    a("v_and_b32 v15, 15, v2")
    a("s_waitcnt lgkmcnt(0)")
    stamp(a, 0)
    a("s_lshl_b32 s16, s2, 2")
    a("s_add_u32 s16, s16, s4")
    a("s_and_b32 s17, s16, 15")
    a("s_lshr_b32 s16, s16, 4")
    a("s_lshl_b32 s16, s16, 16")
    a("s_lshl_b32 s17, s17, 7")
    a("s_add_u32 s16, s16, s17")
    a(f"s_add_u32 s8, s{P_K}, s16")
    a(f"s_addc_u32 s9, s{P_K+1}, 0")
    a(f"s_add_u32 s14, s{P_V}, s16")
    a(f"s_addc_u32 s15, s{P_V+1}, 0")
    spf = []
    for r in range(32):
        spf.append(f"s_load_dword s74, s[8:9], {r*2048}")
        spf.append(f"s_load_dword s74, s[14:15], {r*2048}")
    a("s_cmp_ge_u32 s3, 4")
    a("s_cbranch_scc1 K3_L")

    a("s_cmp_lg_u32 s3, 0")
    a("s_cbranch_scc1 K3_pfw")
    srd(a, 40, P_X, 4 * MB)
    a("v_lshrrev_b32 v192, 3, v2")
    a("v_lshlrev_b32 v192, 11, v192")
    a("v_and_b32 v16, 7, v2")
    a("v_lshl_add_u32 v192, v16, 7, v192")
    a("s_lshl_b32 s45, s2, 14")
    a("s_add_u32 s44, s45, 1024")
    a("s_branch K3_pfd")
    a.label("K3_pfw")
    srd(a, 40, P_W, 6 * MB)
    a("v_lshlrev_b32 v192, 7, v2")
    a("s_mul_i32 s45, s2, 12288")
    a("s_sub_u32 s44, s3, 1")
    a("s_lshl_b32 s44, s44, 12")
    a("s_add_u32 s45, s45, s44")
    a(f"s_add_u32 s44, s45, {3*MB}")
    a("s_cmp_eq_u32 s3, 3")
    a(f"s_cselect_b32 s45, {8*MB}, s45")
    a(f"s_cselect_b32 s44, {8*MB}, s44")
    a.label("K3_pfd")
    a("buffer_load_dword v195, v192, s[40:43], s45 offen")
    srd(a, 56, P_DBG, 256)
    srd_off(a, 60, P_WS, WS_FLAG, 4096)
    a("s_memrealtime s[16:17]")
    a("v_mov_b32 v199, 0")
    a("s_waitcnt lgkmcnt(0)")
    a("s_or_b32 s16, s16, 1")
    a("v_mov_b32 v198, s16")
    a("s_cmp_lg_u32 s3, 3")
    a("s_cbranch_scc1 K3_noseed")
    a("s_cmp_lg_u32 s11, 0")
    a("s_cbranch_scc1 K3_noseed")
    a("v_mov_b32 v196, s16")
    a("v_mov_b32 v197, 0")
    a("s_mov_b64 exec, 1")
    a("buffer_atomic_cmpswap v[196:197], v199, s[56:59], 0 offen sc1")
    a("s_mov_b64 exec, -1")
    a.label("K3_noseed")
    a("s_lshl_b32 s46, s11, 7")
    a("s_lshl_b32 s47, s10, 2")
    a("s_add_u32 s47, s47, s46")
    a("s_cmp_ge_u32 s3, 2")
    a(f"s_cselect_b32 s48, s{P_V}, s{P_K}")
    a(f"s_cselect_b32 s49, s{P_V+1}, s{P_K+1}")
    a(f"s_mov_b32 s50, {4*MB}")
    a("s_mov_b32 s51, 0x20000")
    a("v_lshrrev_b32 v193, 2, v2")
    a("v_lshlrev_b32 v193, 11, v193")
    a("v_and_b32 v16, 3, v2")
    a("v_lshl_add_u32 v193, v16, 7, v193")
    a("s_lshr_b32 s45, s2, 2")
    a("s_lshl_b32 s45, s45, 16")
    a("s_lshl_b32 s46, s36, 15")
    a("s_add_u32 s45, s45, s46")
    a("s_and_b32 s46, s2, 3")
    a("s_lshl_b32 s46, s46, 9")
    a("s_add_u32 s45, s45, s46")
    if "2" in XP:
        a(f"s_mov_b32 s45, {16*MB}")
    a(f"s_and_b32 s55, s11, {NDUTY-1}")
    a(f"s_add_u32 s55, s55, {DUTY0}")
    a(f"s_and_b32 s52, s11, {E2_N-1}")
    a(f"s_add_u32 s52, s52, {E2_0}")
    a(f"s_sub_u32 s53, {FLAGN-3}, s52")
    a("s_cmp_eq_u32 s3, 3")
    a("s_cselect_b32 s53, s53, 1000")
    a("s_sub_u32 s52, s52, s55")
    a("s_sub_u32 s52, s52, 1")
    a("s_mov_b32 s54, 0")
    a("s_lshl_b32 s38, s36, 6")
    a("v_add_u32 v16, s38, v15")
    a("v_lshrrev_b32 v17, 1, v15")
    a("v_lshlrev_b32 v16, 7, v16")
    a("v_xor_b32 v17, v14, v17")
    a("v_lshl_add_u32 v4, v17, 4, v16")
    a("v_xor_b32 v5, 64, v4")
    a(f"v_add_u32 v6, {2*STAGE}, v4")
    a(f"v_add_u32 v7, {2*STAGE}, v5")
    a("v_bfe_u32 v17, v2, 2, 2")
    a("v_and_b32 v18, 3, v2")
    a("v_lshlrev_b32 v17, 6, v17")
    a("v_lshl_add_u32 v17, v18, 3, v17")
    a("v_and_b32 v18, 1, v14")
    a("v_lshl_add_u32 v17, v18, 10, v17")
    a("v_lshl_add_u32 v17, v18, 5, v17")
    a("v_lshrrev_b32 v18, 1, v14")
    a("v_mul_u32_u24 v18, 6144, v18")
    a("v_add_u32 v17, v17, v18")
    a("s_lshl_b32 s38, s37, 8")
    a("s_add_u32 s38, s38, 16384")
    a("v_add_u32 v8, s38, v17")
    a("v_xor_b32 v9, 32, v8")
    a(f"v_add_u32 v10, {2*STAGE}, v8")
    a(f"v_add_u32 v11, {2*STAGE}, v9")
    SB = [16, 56]

    def accr(kind, mt, dt):
        return 96 + 32 * kind + (mt * 2 + dt) * 4

    for i in range(96, 192):
        a(f"v_mov_b32 v{i}, 0")
    for op in spf[:SPF_C]:
        a(op)
    a("s_waitcnt lgkmcnt(0)")
    srd_off(a, 28, P_WS, WS_KVP, 2 * MB)
    srd_off(a, 32, P_WS, WS_ZP, 64 * 1024)
    lg = Cnt(a, "lgkmcnt", 15)

    def reads(slot, t, st):
        sb = (slot & 1) * STAGE
        va = 4 + t + (2 if slot >= 2 else 0)
        vb = 10 if slot >= 2 else 8
        R = SB[st]

        def A(mt):
            return [(("A", mt, st), f"ds_read_b128 {vr(R+4*mt)}, v{va} offset:{sb + 2048*mt}")]

        def B(cb):
            seg, nh = cb // 2, cb % 2
            return [(("B", cb, st), f"ds_read_b64_tr_b16 {vr(R+16+4*cb+2*h,2)}, v{vb+nh} offset:{sb + t*12288 + seg*2048 + 512*h}") for h in range(2)]
        return A(0) + B(0) + A(1) + A(2) + A(3) + B(1) + B(2) + B(3) + B(4) + B(5)

    def group(st, nxt):
        R = SB[st]
        nxt = list(nxt)
        for cb in range(6):
            kind, dt = cb // 2, cb % 2
            for mt in range(4):
                lg.wait_for([("A", mt, st), ("B", cb, st)])
                fa, fb = R + 4 * mt, R + 16 + 4 * cb
                if kind == 0:
                    mfma16(a, accr(0, mt, dt), fb, fa)
                else:
                    mfma16(a, accr(kind, mt, dt), fa, fb)
                if nxt:
                    tag, txt = nxt.pop(0)
                    a(txt)
                    lg.issue(tag)

    a("s_barrier")
    stamp(a, 1)
    for tag, txt in reads(0, 0, 0):
        a(txt)
        lg.issue(tag)
    lg.drain()
    a("s_mov_b32 s39, 4")
    a.label("K3_loop")
    for slot in range(4):
        group(0, reads(slot, 1, 1))
        lg.drain()
        a("s_barrier")
        a("s_sub_u32 s55, s55, 1")
        a(f"s_cbranch_scc1 K3_event{slot}")
        a.label(f"K3_noev{slot}")
        group(1, reads((slot + 1) % 4, 0, 0))
        if slot == 3:
            a("s_sub_u32 s39, s39, 1")
            a("s_cmp_lg_u32 s39, 0")
            lg.drain()
    a("s_cbranch_scc1 K3_loop")
    stamp(a, 2)

    a(f"s_mov_b32 s44, {LOG2E}")
    a(f"s_mov_b32 s45, {LOG2E}")
    a(f"s_mov_b32 s46, {EPS}")
    a(f"s_mov_b32 s47, {EPS}")
    a(f"v_mov_b32 v10, {SYNC}")
    a("v_mov_b32 v11, 1")
    for et in range(2):
        for m in range(2):
            d = 16 + 4 * (2 * et + m)
            for hh in range(2):
                s = accr(2, 2 * m + hh, et)
                a(f"v_cvt_pk_bf16_f32 v{d+2*hh}, v{s}, v{s+1}")
                a(f"v_cvt_pk_bf16_f32 v{d+2*hh+1}, v{s+2}, v{s+3}")
    for i in range(4):
        a(f"v_mov_b32 v{48+i}, 0x3f803f80")
    KV, ZZ, T = 160, 176, 52
    for m in range(2):
        for dt in range(2):
            for hh in range(2):
                s = accr(1, 2 * m + hh, dt)
                a(f"v_cvt_pk_bf16_f32 v{T+2*hh}, v{s}, v{s+1}")
                a(f"v_cvt_pk_bf16_f32 v{T+2*hh+1}, v{s+2}, v{s+3}")
            unpack4(a, T, T)
            kf = 32 + 4 * (2 * dt + m)
            phi8(a, T, kf, 44, 46)
            for et in range(2):
                mfma16(a, KV + 4 * (2 * et + dt), kf, 16 + 4 * (2 * et + m), "0" if m == 0 else None)
            mfma16(a, ZZ + 4 * dt, kf, 48, "0" if m == 0 else None)
    a("s_lshl_b32 s43, s37, 12")
    a(f"s_add_u32 s43, s43, {XCH}")
    a("v_add_u32 v4, s43, v3")
    a("s_lshl_b32 s43, s37, 7")
    a(f"s_add_u32 s43, s43, {XCZ}")
    a("v_lshlrev_b32 v5, 5, v14")
    a("v_add_u32 v5, s43, v5")
    a("s_lshl_b32 s43, s37, 2")
    a("v_add_u32 v6, s43, v10")
    a("s_cmp_eq_u32 s36, 0")
    a("s_cbranch_scc1 K3_wr0")
    for qd in range(4):
        a(f"ds_write_b128 v4, {vr(KV+4*qd)} offset:{1024*qd}")
    for dt in range(2):
        a(f"ds_write_b128 v5, {vr(ZZ+4*dt)} offset:{16*dt}")
    a("s_waitcnt lgkmcnt(0)")
    lds_signal(a, 6, S_X, 11)
    a("s_branch K3_q")
    a.label("K3_wr0")
    a("s_lshl_b32 s48, s5, 4")
    a("s_add_u32 s48, s48, s12")
    a("s_lshl_b32 s49, s48, 12")
    a("s_lshl_b32 s50, s48, 7")
    a("v_lshlrev_b32 v7, 4, v14")
    lds_wait(a, "K3_wx", 6, S_X, 1, 8, 42)
    for qd in range(4):
        a(f"ds_read_b128 {vr(16+4*qd)}, v4 offset:{1024*qd}")
    for dt in range(2):
        a(f"ds_read_b128 {vr(32+4*dt)}, v5 offset:{16*dt}")
    for qd in range(6):
        a(f"s_waitcnt lgkmcnt({5-qd})")
        a(f"v_pk_add_f32 {vr(KV+4*qd,2)}, {vr(KV+4*qd,2)}, {vr(16+4*qd,2)}")
        a(f"v_pk_add_f32 {vr(KV+4*qd+2,2)}, {vr(KV+4*qd+2,2)}, {vr(16+4*qd+2,2)}")
        for i in range(4):
            a(f"v_or_b32 v{KV+4*qd+i}, 1, v{KV+4*qd+i}")
        if qd < 4:
            a(f"buffer_store_dwordx4 {vr(KV+4*qd)}, v3, s[28:31], s49 offen offset:{1024*qd} sc1")
    a("s_mov_b32 exec_lo, 0x00010001")
    a("s_mov_b32 exec_hi, 0x00010001")
    for dt in range(2):
        a(f"buffer_store_dwordx4 {vr(ZZ+4*dt)}, v7, s[32:35], s50 offen offset:{64*dt} sc1")
    a("s_mov_b64 exec, -1")
    lds_signal(a, 10, S_KVS, 11)
    a.label("K3_q")
    stamp(a, 3)
    a("s_lshl_b32 s43, s3, 12")
    a(f"s_add_u32 s43, s43, {PQ_BASE}")
    a("v_add_u32 v4, s43, v3")
    for mt in range(4):
        d = 80 + 4 * mt
        for dt in range(2):
            sr = accr(0, mt, dt)
            a(f"v_cvt_pk_bf16_f32 v{T+2*dt}, v{sr}, v{sr+1}")
            a(f"v_cvt_pk_bf16_f32 v{T+2*dt+1}, v{sr+2}, v{sr+3}")
        unpack4(a, T, T)
        phi8(a, T, d, 44, 46)
        a(f"ds_write_b128 v4, {vr(d)} offset:{1024*mt}")
    a("s_lshl_b32 s43, s3, 2")
    a("v_add_u32 v9, s43, v10")
    a("v_and_b32 v6, 3, v2")
    a("v_bfe_u32 v7, v2, 2, 2")
    a("v_add_u32 v12, v6, v7")
    a("v_lshlrev_b32 v12, 3, v12")
    a("v_lshl_add_u32 v12, v14, 6, v12")
    a(f"s_add_u32 s43, s7, {CV_HB-24}")
    a("v_add_u32 v12, s43, v12")
    a("v_lshlrev_b32 v13, 5, v6")
    a("v_lshlrev_b32 v7, 3, v7")
    a("v_sub_u32 v13, v13, v7")
    a("v_lshlrev_b32 v7, 6, v14")
    a("v_sub_u32 v13, v13, v7")
    a(f"s_add_u32 s43, s7, {CV_UB+24-32}")
    a("v_add_u32 v13, s43, v13")
    a(f"s_add_u32 s43, s7, {CV_UB}")
    a("v_add_u32 v8, s43, v3")
    a("s_waitcnt lgkmcnt(0)")
    lds_signal(a, 9, S_PQ, 11)
    stamp(a, 4)
    lds_wait(a, "K3_whu", 9, S_HU, 1, 16, 42)
    stamp(a, 5)

    HH, FU = 32, 96
    ACC = [16, 20, 24, 28]
    T2, T1, YV, PK = [224, 225], [226, 227], [228, 229], [232, 236, 240, 244]
    lg.q = []

    def fu_reads(s):
        for hf in range(2):
            a(f"ds_read_b64_tr_b16 {vr(FU+4*s+2*hf,2)}, v13 offset:{128*s + 32*(1-hf)}")
            lg.issue(("fu", s))

    def h_reads(t):
        for hf in range(2):
            a(f"ds_read_b64_tr_b16 {vr(HH+4*t+2*hf,2)}, v12 offset:{256*t + 32*hf}")
            lg.issue(("h", t))

    def epi(Q):
        ops = []
        R0 = ACC[Q % 4]
        R1, R2, R3 = R0 + 1, R0 + 2, R0 + 3
        cur, prv = Q & 1, (Q & 1) ^ 1
        if Q == 0:
            ops.append(f"v_add_f32_dpp v{T2[cur]}, v{R3}, v{R2} wave_shr:1 {DPP} bound_ctrl:0")
            ops.append(f"v_add_f32_dpp v{T1[cur]}, v{T2[cur]}, v{R1} wave_shr:1 {DPP} bound_ctrl:0")
            ops.append(f"v_add_f32_dpp v{YV[cur]}, v{T1[cur]}, v{R0} wave_shr:1 {DPP} bound_ctrl:0")
        else:
            r3p = ACC[(Q - 1) % 4] + 3
            ops.append(f"v_add_f32_dpp v{T2[cur]}, v{r3p}, v{R2} wave_ror:1 {DPP}")
            ops.append(f"v_add_f32_dpp v{T1[cur]}, v{T2[prv]}, v{R1} wave_ror:1 {DPP}")
            ops.append(f"v_add_f32_dpp v{YV[cur]}, v{T1[prv]}, v{R0} wave_ror:1 {DPP}")
            ops.append(f"v_add_f32_dpp v{T2[cur]}, v{R3}, v{R2} wave_shr:1 {DPP}")
            ops.append(f"v_add_f32_dpp v{T1[cur]}, v{T2[cur]}, v{R1} wave_shr:1 {DPP}")
            ops.append(f"v_add_f32_dpp v{YV[cur]}, v{T1[cur]}, v{R0} wave_shr:1 {DPP}")
        if Q & 1:
            p = PK[Q // 8] + (Q % 8) // 2
            ops.append(f"v_cvt_pk_bf16_f32 v{p}, v{YV[0]}, v{YV[1]}")
            ops.append(f"v_or_b32 v{p}, 1, v{p}")
        return ops

    PRE = 3
    for c in range(PRE):
        fu_reads(c)
        if c % 2 == 0:
            h_reads(c // 2)
    pending = []
    for c in range(32):
        nst = c // 2 + 1
        for t in range(nst):
            s = c - 2 * t
            lg.wait_for([("fu", s), ("h", t)])
            mfma16(a, ACC[c % 4], FU + 4 * s, HH + 4 * t, "0" if t == 0 else None)
            if t == 0 and c + PRE < 32:
                fu_reads(c + PRE)
                if (c + PRE) % 2 == 0:
                    h_reads((c + PRE) // 2)
            if t == 0 and c >= 2:
                assert not pending
                pending = epi(c - 2)
            k = max(1, -(-len(pending) // (nst - t))) if pending else 0
            for _ in range(k):
                a(pending.pop(0))
    for Q in (30, 31):
        for op in epi(Q):
            a(op)
    srd_off(a, 28, P_WS, WS_UT, 4 * MB)
    a("s_lshl_b32 s40, s6, 12")
    for g in range(4):
        a(f"buffer_store_dwordx4 {vr(PK[g])}, v3, s[28:31], s40 offen offset:{1024*g} sc1")
    a("s_and_b32 s40, s10, 3")
    a("s_lshl_b32 s40, s40, 2")
    a("s_and_b32 s41, s11, 3")
    a("s_add_u32 s40, s40, s41")
    a("s_lshl_b32 s41, s40, 3")
    a("s_lshl_b32 s42, s3, 1")
    a("s_add_u32 s41, s41, s42")
    a("s_lshl_b32 s48, s41, 15")
    a("s_mov_b32 s47, s48")
    a("v_lshrrev_b32 v5, 5, v2")
    a("v_and_b32 v6, 1, v14")
    a("v_lshlrev_b32 v12, 15, v6")
    a("v_lshl_add_u32 v12, v5, 8, v12")
    a("v_lshl_add_u32 v12, v15, 4, v12")
    srd_off(a, 28, P_WS, WS_OF, 4 * MB)
    srd(a, 32, P_OUT, 8 * MB)
    a("s_waitcnt lgkmcnt(0)")
    lds_signal(a, 9, S_CD, 11)
    stamp(a, 6)
    lds_wait(a, "K3_wwo", 10, S_WOM, 4, 80, 42)
    stamp(a, 7)
    vm = Cnt(a, "vmcnt", 63)
    AR = 96
    D = ADEPTH
    if "a" in XP:
        srd(a, 28, P_X, 4 * MB)
        a("s_lshl_b32 s48, s12, 18")
        a("s_lshl_b32 s47, s3, 16")
        a("s_add_u32 s48, s48, s47")

    def aload(h):
        for f in range(2):
            r = AR + 8 * (h % D) + 4 * f
            a(f"buffer_load_dwordx4 {vr(r)}, v12, s[28:31], s48 offen offset:{1024*(h%4)+512*f}{ASC}")
            vm.issue(("A", h))
        if h % 4 == 3:
            a("s_add_u32 s48, s48, 4096")

    for h in range(8):
        aload(h)
    anext = [8]
    a("v_bfe_u32 v4, v2, 2, 2")
    a("v_and_b32 v7, 3, v2")
    a("v_lshlrev_b32 v4, 6, v4")
    a("v_lshl_add_u32 v4, v7, 3, v4")
    a("v_lshl_add_u32 v4, v5, 9, v4")
    a("v_xor_b32 v7, v6, v5")
    a("v_lshl_add_u32 v13, v7, 5, v4")
    a(f"v_add_u32 v4, {WO_BASE}, v13")
    a(f"v_add_u32 v8, {WO_BASE + 65536}, v13")

    def check_ops(g):
        r = AR + 8 * ((4 * g) % D)
        ops = [f"v_bitop3_b32 v81, v{r}, v{r+1}, v{r+2} bitop3:0x80"]
        for i in range(3, 31, 2):
            ops.append(f"v_bitop3_b32 v81, v81, v{r+i}, v{r+i+1} bitop3:0x80")
        ops.append(f"v_bitop3_b32 v81, v81, v{r+31}, 1 bitop3:0x80")
        return ops

    def check_branch(g):
        if "a" in XP:
            a.label(f"K3_retry{g}_ret")
            return
        a("v_cmp_eq_u32 vcc, 0, v81")
        a("s_cmp_lg_u64 vcc, 0")
        a(f"s_cbranch_scc1 K3_retry{g}")
        a.label(f"K3_retry{g}_ret")

    def retry_block(g):
        a.label(f"K3_retry{g}")
        a(f"s_mov_b32 s46, {RETRY_MAX}")
        a(f"s_add_u32 s44, s47, {4096*g}")
        a.label(f"K3_retry{g}_l")
        a("s_add_u32 s75, s75, 1")
        a("s_sleep 4")
        for hh in range(4):
            for f in range(2):
                r = AR + 8 * ((4 * g + hh) % D) + 4 * f
                a(f"buffer_load_dwordx4 {vr(r)}, v12, s[28:31], s44 offen offset:{1024*hh+512*f} sc1")
        a("s_waitcnt vmcnt(0)")
        for op in check_ops(g):
            a(op)
        a("v_cmp_eq_u32 vcc, 0, v81")
        a("s_sub_u32 s46, s46, 1")
        a(f"s_cbranch_scc1 K3_retry{g}_ret")
        a("s_cmp_lg_u64 vcc, 0")
        a(f"s_cbranch_scc1 K3_retry{g}_l")
        a(f"s_branch K3_retry{g}_ret")

    lg.q = []
    BS = [48, 64]

    def breads(h):
        out = []
        st = h & 1
        if h < 16:
            vb, off = 4, h * 4096
        elif h < 28:
            vb, off = 8, (h - 16) * 4096
        else:
            vb, off = 13, (h - 28) * CV_REG
        for f in range(2):
            for nb in range(2):
                for hf in range(2):
                    out.append(((h, f, nb), f"ds_read_b64_tr_b16 {vr(BS[st]+8*f+4*nb+2*hf,2)}, v{vb} offset:{off + f*1024 + hf*2048 + nb*256}"))
        return out

    for tag, txt in breads(0):
        a(txt); lg.issue(tag)
    vm.wait_for([("A", 3)])
    for op in check_ops(0):
        a(op)
    check_branch(0)
    chk = []
    for h in range(32):
        nxt = []
        if h + 1 < 32:
            nxt = breads(h + 1)
        if h % 4 == 2 and h + 2 < 32:
            vm.wait_for([("A", h + 5)])
            chk = check_ops(h // 4 + 1) if "k" not in XP else []
        for f in range(2):
            for nb in range(2):
                lg.wait_for([(h, f, nb)])
                d = 16 + 16 * nb
                cs = "0" if (h == 0 and f == 0) else vr(d, 16)
                a(f"v_mfma_f32_32x32x16_bf16 {vr(d,16)}, {vr(BS[h&1]+8*f+4*nb)}, {vr(AR+8*(h%D)+4*f)}, {cs}")
                for _ in range(2):
                    if nxt:
                        tag, txt = nxt.pop(0)
                        a(txt); lg.issue(tag)
                    if chk:
                        a(chk.pop(0))
        if h % 4 == 3 and h + 1 < 32:
            assert not chk
            check_branch(h // 4 + 1)
        for _ in range(2):
            if anext[0] < 32 and anext[0] <= h + D and "n" not in XP:
                aload(anext[0]); anext[0] += 1
    stamp(a, 8)
    a("v_and_b32 v4, 31, v2")
    a("v_lshlrev_b32 v4, 12, v4")
    a("v_lshl_add_u32 v4, v5, 4, v4")
    a("s_lshr_b32 s36, s10, 2")
    a("s_lshl_b32 s36, s36, 3")
    a("s_lshr_b32 s37, s11, 2")
    a("s_add_u32 s36, s36, s37")
    a("s_lshl_b32 s38, s41, 16")
    a("s_lshl_b32 s39, s36, 7")
    a("s_add_u32 s38, s38, s39")
    a("s_add_u32 s38, s38, 2048")
    for nb in range(2):
        for kp in range(2):
            P = 80 + 8 * nb + 4 * kp
            t0 = 16 + 16 * nb + 8 * kp
            for i in range(4):
                a(f"v_cvt_pk_bf16_f32 v{P+i}, v{t0+2*i}, v{t0+2*i+1}")
            a(f"v_permlane32_swap_b32 v{P}, v{P+2}")
            a(f"v_permlane32_swap_b32 v{P+1}, v{P+3}")
            a(f"buffer_store_dwordx4 {vr(P)}, v4, s[32:35], s38 offen offset:{64*nb+32*kp}")
    stamp_flush(a, 9)
    a("s_endpgm")
    for g in range(8):
        retry_block(g)
    for slot in range(4):
        a.label(f"K3_event{slot}")
        a("s_add_u32 s54, s54, 1")
        a("s_cmp_lg_u32 s54, 1")
        a(f"s_cbranch_scc1 K3_ev2_{slot}")
        a("buffer_load_dword v195, v192, s[40:43], s44 offen")
        a("s_mov_b32 s55, s52")
        a(f"s_branch K3_noev{slot}")
        a.label(f"K3_ev2_{slot}")
        a("s_cmp_lg_u32 s54, 2")
        a(f"s_cbranch_scc1 K3_ev3_{slot}")
        a("buffer_load_dword v195, v193, s[48:51], s45 offen")
        a("s_mov_b32 s55, s53")
        a(f"s_branch K3_noev{slot}")
        a.label(f"K3_ev3_{slot}")
        a("s_cmp_lg_u32 s54, 3")
        a(f"s_cbranch_scc1 K3_ev4_{slot}")
        a("buffer_load_dword v196, v199, s[56:59], 0 offen sc1")
        a("s_mov_b32 s55, 1")
        a(f"s_branch K3_noev{slot}")
        a.label(f"K3_ev4_{slot}")
        a("s_waitcnt vmcnt(0)")
        a("v_readfirstlane_b32 s46, v196")
        a("s_mov_b64 exec, 1")
        a("s_cmp_lg_u32 s46, 0")
        a(f"s_cbranch_scc1 K3_ev5_{slot}")
        a("v_mov_b32 v196, v198")
        a("v_mov_b32 v197, 0")
        a("buffer_atomic_cmpswap v[196:197], v199, s[56:59], 0 offen sc0 sc1")
        a("s_waitcnt vmcnt(0)")
        a("v_cmp_eq_u32 vcc, 0, v196")
        a("v_cndmask_b32 v196, v196, v198, vcc")
        a.label(f"K3_ev5_{slot}")
        a("buffer_store_dword v196, v199, s[60:63], s47 offen sc1")
        a("s_mov_b64 exec, -1")
        a("s_mov_b32 s55, 1000")
        a(f"s_branch K3_noev{slot}")

    a.label("K3_L")
    a("v_lshrrev_b32 v4, 3, v2")
    a("v_and_b32 v5, 7, v2")
    for jl in range(4):
        a(f"v_add_u32 v6, {4*(jl&1)}, v14")
        a("v_xor_b32 v6, v6, v5")
        a("v_lshlrev_b32 v6, 4, v6")
        a("v_lshl_add_u32 v6, v4, 11, v6")
        a(f"v_add_u32 v{240+jl}, {jl*(16384-1024)}, v6")
    a("v_lshrrev_b32 v6, 5, v2")
    a("v_bfe_u32 v7, v2, 2, 2")
    a("v_lshl_add_u32 v6, v6, 2, v7")
    a("v_mul_u32_u24 v6, 6144, v6")
    a("v_bfe_u32 v7, v2, 4, 1")
    a("v_lshl_add_u32 v6, v7, 6, v6")
    a("v_and_b32 v7, 3, v2")
    a("v_lshl_add_u32 v6, v7, 4, v6")
    a("v_xor_b32 v7, 32, v6")
    binst = []
    for seg in range(3):
        for gg in range(2):
            ldsoff = seg * 2048 + gg * 1024
            m0sel, ioff = ldsoff // 4096, ldsoff % 4096
            reg = 244 + seg * 2 + gg
            a(f"v_add_u32 v{reg}, {8*gg*6144 + seg*2048 - ioff}, v{6+gg}")
            binst.append((reg, m0sel, ioff))
    a("s_lshl_b32 s38, s12, 7")
    a("s_lshl_b32 s40, s4, 5")
    a("s_add_u32 s38, s38, s40")
    a("s_lshl_b32 s38, s38, 11")
    a("s_mul_i32 s39, s4, 98304")
    a("s_lshl_b32 s40, s13, 7")
    a("s_add_u32 s39, s39, s40")
    a("s_lshl_b32 s41, s4, 12")
    a("s_mul_i32 s42, s4, 6144")
    a("s_add_u32 s42, s42, 16384")
    srd(a, 16, P_X, 4 * MB)
    srd(a, 20, P_W, 6 * MB)
    vm = Cnt(a, "vmcnt", 63)

    def issue(kt):
        sb = (kt % NS) * STAGE
        a(f"s_add_u32 m0, s41, {sb}")
        for jl in range(4):
            a(f"buffer_load_dwordx4 v{240+jl}, s[16:19], s38 offen offset:{jl*1024} lds")
            vm.issue(("st", kt))
        cur = -1
        for reg, m0sel, ioff in binst:
            if m0sel != cur:
                a(f"s_add_u32 m0, s42, {sb + 4096*m0sel}")
                cur = m0sel
            a(f"buffer_load_dwordx4 v{reg}, s[20:23], s39 offen offset:{ioff} lds")
            vm.issue(("st", kt))
        a("s_add_u32 s38, s38, 128")
        a(f"s_add_u32 s39, s39, {64*6144}")

    for kt in range(NS - 1):
        issue(kt)
    srd(a, 24, P_K, 4 * MB)
    srd(a, 28, P_V, 4 * MB)
    srd(a, 32, P_SHK, 8192)
    srd_off(a, 44, P_WS, WS_UT, 4 * MB)
    srd_off(a, 48, P_WS, WS_OF, 4 * MB)
    srd_off(a, 52, P_WS, WS_KVP, 2 * MB)
    srd_off(a, 56, P_WS, WS_ZP, 64 * 1024)
    a("s_lshl_b32 s60, s2, 2")
    a("s_add_u32 s60, s60, s4")
    a("s_and_b32 s61, s60, 15")
    a("s_lshr_b32 s60, s60, 4")
    a("s_lshl_b32 s62, s60, 16")
    a("s_lshl_b32 s63, s61, 7")
    a("s_add_u32 s62, s62, s63")
    a("v_lshlrev_b32 v21, 14, v14")
    a("v_lshl_add_u32 v21, v15, 3, v21")
    a("v_add_u32 v21, s62, v21")
    a("s_lshl_b32 s63, s61, 9")
    a("v_lshlrev_b32 v22, 5, v15")
    a("s_lshl_b32 s62, s61, 18")
    a("s_lshl_b32 s64, s60, 6")
    a("s_add_u32 s62, s62, s64")
    a("v_lshlrev_b32 v19, 14, v15")
    a("v_lshl_add_u32 v19, v14, 4, v19")
    a("s_lshl_b32 s64, s12, 3")
    a("s_lshl_b32 s65, s4, 1")
    a("s_add_u32 s64, s64, s65")
    a("s_lshl_b32 s64, s64, 15")
    a("s_lshl_b32 s65, s13, 11")
    a("s_add_u32 s64, s64, s65")
    a("s_add_u32 s65, s64, 32768")
    a("s_lshl_b32 s66, s5, 4")
    a("s_add_u32 s66, s66, s12")
    a("s_lshl_b32 s67, s66, 7")
    a("s_lshl_b32 s66, s66, 12")
    a("s_lshl_b32 s68, s36, 11")
    a("s_add_u32 s66, s66, s68")
    for i in range(4):
        a(f"v_mov_b32 v{160+i}, 0")
    a("v_and_b32 v18, 7, v2")
    a("v_lshlrev_b32 v18, 4, v18")
    fills = [
        "buffer_store_dwordx4 v[160:163], v3, s[48:51], s64 offen sc1",
        "buffer_store_dwordx4 v[160:163], v3, s[48:51], s64 offen offset:1024 sc1",
        "buffer_store_dwordx4 v[160:163], v3, s[48:51], s65 offen sc1",
        "buffer_store_dwordx4 v[160:163], v3, s[48:51], s65 offen offset:1024 sc1",
        "buffer_store_dwordx4 v[160:163], v3, s[52:55], s66 offen sc1",
        "buffer_store_dwordx4 v[160:163], v3, s[52:55], s66 offen offset:1024 sc1",
        "buffer_store_dwordx4 v[160:163], v18, s[56:59], s67 offen sc1",
    ]
    W, KF, VF, KS = 72, 88, 110, 126
    loads = []
    for i in range(2):
        loads.append([f"buffer_load_dwordx4 {vr(24+4*i)}, v22, s[32:35], s63 offen offset:{16*i}"])
    for i in range(11):
        loads.append([f"v_add_u32 v23, {((i-3)*2048) & 0xffffffff}, v21", f"buffer_load_dwordx2 {vr(32+2*i,2)}, v23, s[24:27], 0 offen"])
    for i in range(8):
        loads.append([f"v_add_u32 v23, {i*2048}, v21", f"buffer_load_dwordx2 {vr(54+2*i,2)}, v23, s[28:31], 0 offen"])
    comp = []
    for ci in range(4):
        comp += [f"v_lshlrev_b32 v{W+ci}, 16, v{24+2*ci}", f"v_and_b32 v{W+4+ci}, 0xffff0000, v{24+2*ci}",
                 f"v_lshlrev_b32 v{W+8+ci}, 16, v{25+2*ci}", f"v_and_b32 v{W+12+ci}, 0xffff0000, v{25+2*ci}"]
    for cp in range(2):
        for i in range(11):
            comp += [f"v_lshlrev_b32 v{KF+2*i}, 16, v{32+2*i+cp}", f"v_and_b32 v{KF+2*i+1}, 0xffff0000, v{32+2*i+cp}"]
        for i in range(8):
            comp += [f"v_lshlrev_b32 v{VF+2*i}, 16, v{54+2*i+cp}", f"v_and_b32 v{VF+2*i+1}, 0xffff0000, v{54+2*i+cp}"]
        for i in range(16):
            comp.append(f"v_mul_f32 v{KS+i}, v{KF+i}, v{W+12+2*cp+(i&1)}")
        for j in (2, 1, 0):
            for i in range(16):
                comp.append(f"v_fmac_f32 v{KS+i}, v{KF+2*(3-j)+i}, v{W+4*j+2*cp+(i&1)}")
        for i in range(16):
            comp.append(f"v_mul_f32 v{KS+i}, v{KS+i}, v{VF+i}")
        O = 144 + 8 * cp
        for e in range(2):
            for i in range(4):
                comp.append(f"v_cvt_pk_bf16_f32 v{O+4*e+i}, v{KS+4*i+e}, v{KS+4*i+2+e}")
        for i in range(8):
            comp.append(f"v_and_b32 v{O+i}, -2, v{O+i}")
        for e in range(2):
            comp.append(("st", f"buffer_store_dwordx4 {vr(O+4*e)}, v19, s[44:47], s62 offen sc1"))
            comp.append("s_add_u32 s62, s62, 4096")
    PCE = FLAGN
    NPC = PCE - (PL0 + 2)
    per = -(-len(comp) // NPC)
    a("v_lshrrev_b32 v6, 5, v2")
    a("v_bfe_u32 v7, v2, 2, 2")
    a("v_lshl_add_u32 v7, v6, 2, v7")
    a("v_lshlrev_b32 v7, 11, v7")
    a("v_bfe_u32 v8, v2, 4, 1")
    a("v_lshl_add_u32 v7, v8, 6, v7")
    a("v_and_b32 v8, 3, v2")
    a("v_lshlrev_b32 v6, 1, v6")
    a("v_xor_b32 v8, v8, v6")
    a("v_lshl_add_u32 v7, v8, 4, v7")
    for i in range(4):
        a(f"v_add_u32 v{232+i}, {i*(16384-1024)}, v7")
    a("s_lshl_b32 s69, s4, 16")
    a("s_lshr_b32 s70, s10, 2")
    a("s_lshl_b32 s70, s70, 3")
    a("s_lshr_b32 s71, s11, 2")
    a("s_add_u32 s70, s70, s71")
    a("s_lshl_b32 s70, s70, 7")
    a("s_add_u32 s69, s69, s70")
    a("s_lshl_b32 s70, s4, 12")
    a(f"s_add_u32 s70, s70, {WO_BASE}")
    a("s_lshl_b32 s71, s6, 12")
    a(f"v_mov_b32 v10, {SYNC}")
    a("v_mov_b32 v11, 1")
    a("s_lshl_b32 s43, s4, 2")
    a("v_add_u32 v9, s43, v10")

    def wo_issue(k):
        if k < 7:
            a(f"s_add_u32 m0, s70, {k*16384}")
        else:
            a("s_mov_b32 m0, s7")
        for i in range(4):
            a(f"buffer_load_dwordx4 v{232+i}, s[20:23], s69 offen offset:{i*1024} lds")
            vm.issue("wo")
        a(f"s_add_u32 s69, s69, {128*2048}")

    def h_issue():
        a(f"s_add_u32 m0, s7, {CV_HB}")
        for c in range(4):
            a(f"buffer_load_dwordx4 v3, s[16:19], s71 offen offset:{1024*c} lds")
            vm.issue("h")
        a("s_lshl_b32 s43, s6, 1")
        a("v_mov_b32 v4, 0")
        a("buffer_load_ushort v164, v4, s[20:23], s43 offen")
        vm.issue("h")
        srd(a, 20, P_WO, 2 * MB)

    for kt in range(16):
        tags = [("st", kt)]
        if kt == FLAGN + 1:
            tags += ["ust", "fill"]
        vm.wait_for(tags)
        if kt == 14:
            a("s_waitcnt lgkmcnt(0)")
        a("s_barrier")
        if kt + NS - 1 < 16:
            issue(kt + NS - 1)
        for op in spf[SPF_C + kt * SPF_L: SPF_C + (kt + 1) * SPF_L]:
            a(op)
        if 0 <= kt < 7 and "f" not in XP:
            a(fills[kt]); vm.issue("fill")
        if kt in (PL0, PL0 + 1) and "l" not in XP:
            part = loads[:11] if kt == PL0 else loads[11:]
            for grp in part:
                for op in grp:
                    a(op)
                vm.issue("pre")
        if kt == 13:
            srd(a, 16, P_H, 4 * MB)
            srd(a, 20, P_D, 2048)
            a("v_mov_b32 v4, 0")
            a("v_lshlrev_b32 v5, 2, v2")
            a(f"v_add_u32 v6, {SYNC}, v5")
            a("ds_write_b32 v6, v4")
            a("v_add_u32 v6, s7, v5")
            a(f"ds_write_b32 v6, v4 offset:{CV_UB-256}")
            a("v_and_b32 v6, 7, v2")
            a("v_lshlrev_b32 v6, 2, v6")
            a("v_add_u32 v6, s7, v6")
            a("ds_write_b32 v6, v4")
            h_issue()
        if PL0 + 2 <= kt < PCE:
            if kt == PL0 + 2:
                vm.wait_for(["pre"])
            for op in comp[:per]:
                if "c" in XP and not isinstance(op, tuple):
                    continue
                if isinstance(op, tuple):
                    a(op[1]); vm.issue("ust")
                else:
                    a(op)
            comp = comp[per:]
        if kt == 14 and EARLYWO >= 2:
            wo_issue(0); wo_issue(1)
        if kt == 15 and EARLYWO >= 4:
            wo_issue(2); wo_issue(3)
    assert not comp
    a("s_barrier")
    stamp(a, 1)
    a("s_lshl_b32 s60, s10, 1")
    a("s_lshr_b32 s61, s11, 4")
    a("s_add_u32 s60, s60, s61")
    a("s_and_b32 s61, s11, 15")
    a("s_lshl_b32 s61, s61, 2")
    a("s_add_u32 s61, s61, s4")
    a("s_lshr_b32 s62, s61, 4")
    a("s_and_b32 s61, s61, 15")
    a("s_lshl_b32 s63, s62, 9")
    a("s_lshl_b32 s64, s61, 2")
    a("s_add_u32 s63, s63, s64")
    a("s_lshl_b32 s64, s63, 11")
    a("s_lshl_b32 s65, s60, 7")
    a("s_add_u32 s64, s64, s65")
    a("s_lshl_b32 s72, s63, 12")
    a("s_add_u32 s72, s72, s65")
    a("s_lshl_b32 s73, s60, 18")
    a("s_lshl_b32 s65, s62, 10")
    a("s_add_u32 s73, s73, s65")
    a("s_lshl_b32 s65, s61, 6")
    a("s_add_u32 s73, s73, s65")
    a("s_add_u32 s65, s73, 4096")
    a("s_add_u32 s66, s73, 8192")
    a("s_add_u32 s67, s73, 12288")
    a("v_lshlrev_b32 v224, 12, v14")
    a("v_lshl_add_u32 v224, v15, 3, v224")
    a("v_lshlrev_b32 v225, 14, v15")
    a("v_lshl_add_u32 v225, v14, 4, v225")
    srd(a, 24, P_DBG, 256)
    srd(a, 28, P_Q, 4 * MB)
    srd(a, 32, P_OUT, 8 * MB)
    a("s_lshl_b32 s62, s4, 17")
    a("s_lshl_b32 s63, s4, 16")
    a("s_sub_u32 s63, s69, s63")
    a(f"s_sub_u32 s63, s63, {EARLYWO*128*2048}")
    a("s_add_u32 s62, s62, s63")
    a(f"s_add_u32 s62, s62, {768*2048}")
    a(f"s_mov_b32 s68, {6-EARLYWO}")
    a(f"s_add_u32 s74, s70, {EARLYWO*16384}")
    a("s_mov_b32 s40, 0")

    def wo_rt():
        a("s_mov_b32 m0, s74")
        for i in range(4):
            a(f"buffer_load_dwordx4 v{232+i}, s[20:23], s69 offen offset:{i*1024} lds")
        a(f"s_add_u32 s69, s69, {128*2048}")
        a("s_add_u32 s74, s74, 16384")
        a("s_sub_u32 s68, s68, 1")
    a("v_lshrrev_b32 v5, 1, v2")
    a("v_lshlrev_b32 v5, 7, v5")
    a("v_and_b32 v4, 1, v2")
    a("v_lshl_add_u32 v5, v4, 4, v5")
    a("v_mov_b32 v4, 0")
    a("buffer_load_dword v16, v4, s[24:27], 0 offen sc1")
    srd_off(a, 24, P_WS, WS_FLAG, 4096)
    a(f"s_mov_b32 s43, {RETRY_MAX}")
    a.label("K3_fp")
    a(f"buffer_load_dwordx4 {vr(24)}, v5, s[24:27], 0 offen sc1")
    a("s_waitcnt vmcnt(0)")
    vm.q = []
    for i in range(4):
        a(f"v_xor_b32 v{24+i}, v{24+i}, v16")
    a("v_or3_b32 v24, v24, v25, v26")
    a("v_or_b32 v24, v24, v27")
    a("v_cmp_ne_u32 vcc, 0, v24")
    a("s_sub_u32 s43, s43, 1")
    a("s_cbranch_scc1 K3_fp_ok")
    a("s_cmp_eq_u64 vcc, 0")
    a("s_cbranch_scc1 K3_fp_ok")
    a("s_add_u32 s75, s75, 1")
    a("s_sleep 8")
    a("s_branch K3_fp")
    a.label("K3_fp_ok")
    stamp(a, 2)
    a(f"s_add_u32 m0, s7, {CV_UB}")
    for c in range(4):
        a(f"buffer_load_dwordx4 v3, s[44:47], s71 offen offset:{1024*c} sc1 lds")
        vm.issue("u")
    a("v_mov_b32 v4, s7")
    a(f"ds_read_u16 v5, v4 offset:{CV_HB}")
    a("v_lshlrev_b32 v164, 16, v164")
    a("s_waitcnt lgkmcnt(0)")
    a("v_lshlrev_b32 v5, 16, v5")
    a("v_add_f32 v5, v5, v164")
    a("v_cvt_pk_bf16_f32 v5, v5, v5")
    a(f"ds_write_b16 v4, v5 offset:{CV_HB}")
    a("v_lshlrev_b32 v4, 11, v14")
    a("v_lshl_add_u32 v4, v15, 3, v4")
    vm.wait_for(["u"])
    a("s_waitcnt lgkmcnt(0)")
    lds_signal(a, 9, S_HU, 11)
    stamp(a, 3)
    QR = 208
    if WAITKV:
        lds_wait(a, "K3_wkvs", 10, S_KVS, 2, 16, 60, sleep=1)
    for jj in range(8):
        a(f"buffer_load_dwordx2 {vr(QR+2*jj,2)}, v4, s[28:31], s64 offen")
        a(f"s_add_u32 s64, s64, {64*2048}")
    a("v_lshlrev_b32 v7, 11, v2")
    a("buffer_load_dword v60, v7, s[20:23], s62 offen")
    a.label("K3_bulk")
    a("s_cmp_eq_u32 s68, 0")
    a("s_cbranch_scc1 K3_bulk_done")
    wo_rt()
    a("s_branch K3_bulk")
    a.label("K3_bulk_done")
    a("v_lshlrev_b32 v6, 7, v15")
    a("v_lshl_add_u32 v6, v14, 4, v6")
    a("s_lshl_b32 s60, s5, 11")
    a("s_lshl_b32 s61, s5, 16")
    a("s_lshl_b32 s62, s36, 11")
    a("s_add_u32 s61, s61, s62")
    a(f"s_mov_b32 s43, {RETRY_MAX}")
    a.label("K3_zp")
    for dt in range(2):
        a(f"buffer_load_dwordx4 {vr(32+4*dt)}, v6, s[56:59], s60 offen offset:{64*dt} sc1")
    a(f"ds_read_b32 v17, v9 offset:{S_CD}")
    a("s_waitcnt vmcnt(0) lgkmcnt(0)")
    vm.q = []
    and_reduce(a, 16, range(32, 40))
    a("v_readfirstlane_b32 s41, v17")
    a("v_cmp_eq_u32 vcc, 0, v16")
    a("s_sub_u32 s43, s43, 1")
    a("s_cbranch_scc1 K3_zp_ok")
    a("s_cmp_eq_u64 vcc, 0")
    a("s_cbranch_scc1 K3_zp_ok")
    a("s_cmp_eq_u32 s68, 0")
    a("s_cbranch_scc1 K3_zp_sl")
    wo_rt()
    a("s_branch K3_zp")
    a.label("K3_zp_sl")
    a("s_cmp_lg_u32 s40, 0")
    a("s_cbranch_scc1 K3_zp_s2")
    a("s_cmp_lg_u32 s41, 0")
    a("s_cbranch_scc1 K3_post")
    a.label("K3_zp_s2")
    a(f"s_sleep {ZSLEEP}")
    a("s_branch K3_zp")
    a.label("K3_zp_ok")
    stamp(a, 4)
    a("s_setprio 2")
    a(f"s_mov_b32 s43, {RETRY_MAX}")
    a.label("K3_gl")
    a("s_mov_b32 s62, s61")
    for p in range(16):
        for dt in range(2):
            a(f"buffer_load_dwordx4 {vr(64+8*p+4*dt)}, v3, s[52:55], s62 offen offset:{1024*dt} sc1")
            vm.issue(("kv", p))
        a("s_add_u32 s62, s62, 4096")
    for i in range(8):
        a(f"v_add_f32_dpp v{40+i}, v{32+i}, v{32+i} row_ror:8 {DPP}")
    for sh in (4, 2, 1):
        for i in range(8):
            a(f"v_add_f32_dpp v{40+i}, v{40+i}, v{40+i} row_ror:{sh} {DPP}")
    for i in range(4):
        a(f"v_cvt_pk_bf16_f32 v{48+i}, v{40+2*i}, v{41+2*i}")
    a("v_mov_b32 v16, 1")
    for p in range(16):
        vm.wait_for([("kv", p)])
        r = 64 + 8 * p
        for i in range(0, 8, 2):
            a(f"v_bitop3_b32 v16, v16, v{r+i}, v{r+i+1} bitop3:0x80")
        if p >= 1:
            for i in range(8):
                a(f"v_add_f32 v{64+i}, v{64+i}, v{r+i}")
    a("v_cmp_eq_u32 vcc, 0, v16")
    a("s_sub_u32 s43, s43, 1")
    a("s_cbranch_scc1 K3_gl_ok")
    a("s_cmp_eq_u64 vcc, 0")
    a("s_cbranch_scc1 K3_gl_ok")
    a("s_add_u32 s75, s75, 1")
    a("s_sleep 4")
    a("s_branch K3_gl")
    a.label("K3_gl_ok")
    for i in range(4):
        a(f"v_cvt_pk_bf16_f32 v{40+i}, v{64+2*i}, v{65+2*i}")
    a("s_lshl_b32 s43, s4, 10")
    a(f"s_add_u32 s43, s43, {KVT}")
    a("v_add_u32 v5, s43, v3")
    a(f"ds_write_b128 v5, {vr(40)}")
    a("s_lshl_b32 s43, s37, 2")
    a("v_add_u32 v7, s43, v10")
    a("s_lshl_b32 s43, s37, 11")
    a(f"s_add_u32 s43, s43, {KVT}")
    a("v_add_u32 v5, s43, v3")
    a("s_lshl_b32 s43, s4, 12")
    a(f"s_add_u32 s43, s43, {PQ_BASE}")
    a("v_add_u32 v8, s43, v3")
    a("s_waitcnt lgkmcnt(0)")
    lds_signal(a, 7, S_KVT, 11)
    lds_wait(a, "K3_wpq", 9, S_PQ, 1, 16, 60)
    for mt in range(4):
        a(f"ds_read_b128 {vr(16+4*mt)}, v8 offset:{1024*mt}")
    lds_wait(a, "K3_wkt", 7, S_KVT, 2, 52, 60)
    a(f"ds_read_b128 {vr(40)}, v5")
    a(f"ds_read_b128 {vr(44)}, v5 offset:1024")
    a("s_waitcnt lgkmcnt(0)")
    stamp(a, 5)
    for mt in range(4):
        b = 64 + 12 * mt
        mfma16(a, b + 8, 48, 16 + 4 * mt, "0")
        mfma16(a, b, 40, 16 + 4 * mt, "0")
        mfma16(a, b + 4, 44, 16 + 4 * mt, "0")
    a("s_lshl_b32 s60, s12, 3")
    a("s_lshl_b32 s61, s36, 2")
    a("s_add_u32 s60, s60, s61")
    a("s_lshl_b32 s60, s60, 5")
    a("s_add_u32 s60, s60, s5")
    a("s_lshl_b32 s60, s60, 10")
    a(f"s_mov_b32 s61, {EPS}")
    for mt in range(4):
        a(f"v_add_f32 v{112+mt}, s61, v{64+12*mt+8}")
        a(f"v_rcp_f32 v{112+mt}, v{112+mt}")
    for mt in range(4):
        b = 64 + 12 * mt
        for i in range(8):
            a(f"v_mul_f32 v{b+i}, v{b+i}, v{112+mt}")
        for i in range(4):
            a(f"v_cvt_pk_bf16_f32 v{120+4*mt+i}, v{b+2*i}, v{b+2*i+1}")
        for i in range(4):
            a(f"v_or_b32 v{120+4*mt+i}, 1, v{120+4*mt+i}")
        a(f"buffer_store_dwordx4 {vr(120+4*mt)}, v3, s[48:51], s60 offen sc1")
        a("s_add_u32 s60, s60, 32768")
    a("s_setprio 0")
    stamp(a, 6)
    a.label("K3_wor")
    a("s_cmp_eq_u32 s68, 0")
    a("s_cbranch_scc1 K3_wor_done")
    wo_rt()
    a("s_branch K3_wor")
    a.label("K3_wor_done")
    wo_issue(6)
    lds_wait(a, "K3_wcd", 9, S_CD, 1, 16, 60, sleep=1)
    wo_issue(7)
    if ATOUCH:
        a("s_and_b32 s60, s10, 3")
        a("s_lshl_b32 s60, s60, 2")
        a("s_and_b32 s61, s11, 3")
        a("s_add_u32 s60, s60, s61")
        a("s_lshl_b32 s60, s60, 18")
        a("s_lshr_b32 s61, s11, 2")
        a("s_lshl_b32 s61, s61, 2")
        a("s_add_u32 s61, s61, s4")
        a("s_lshl_b32 s61, s61, 13")
        a("s_add_u32 s60, s60, s61")
        a("v_lshlrev_b32 v8, 7, v2")
    a("s_waitcnt vmcnt(0)")
    if PREPOST:
        a("s_cmp_lg_u32 s40, 0")
        a("s_cbranch_scc1 K3_pw")
        a("s_mov_b32 s40, 3")
        a("s_branch K3_post")
        a.label("K3_pw")
    if ATOUCH:
        if ATOUCH > 1:
            a(f"s_sleep {ATOUCH}")
        a("buffer_load_dword v60, v8, s[48:51], s60 offen")
        a("s_waitcnt vmcnt(0)")
    lds_signal(a, 10, S_WOM, 11)
    vm.q = []
    stamp(a, 7)
    a("s_cmp_eq_u32 s40, 1")
    a("s_cbranch_scc1 K3_fin")
    a("s_mov_b32 s40, 2")
    a(f"s_mov_b32 s43, {RETRY_MAX}")
    a.label("K3_post")
    for ci, sr in enumerate((73, 65, 66, 67)):
        a(f"buffer_load_dwordx4 {vr(16+4*ci)}, v225, s[44:47], s{sr} offen sc1")
    a("s_waitcnt vmcnt(0)")
    and_reduce(a, 48, range(16, 32))
    a("v_cmp_eq_u32 vcc, 0, v48")
    a("s_cmp_eq_u64 vcc, 0")
    a("s_cbranch_scc1 K3_yok")
    a("s_add_u32 s75, s75, 1")
    a("s_cmp_eq_u32 s40, 0")
    a("s_cbranch_scc1 K3_zp_s2")
    if PREPOST:
        a("s_cmp_eq_u32 s40, 3")
        a("s_cbranch_scc1 K3_pw")
    a("s_sub_u32 s43, s43, 1")
    a("s_cbranch_scc1 K3_yok")
    a("s_sleep 8")
    a("s_branch K3_post")
    a.label("K3_yok")
    stamp(a, 8)
    for jj in range(8):
        T = 48 + 8 * (jj & 1)
        for ci in range(4):
            if jj & 1:
                a(f"v_and_b32 v{T+ci}, 0xffff0000, v{16+4*ci+jj//2}")
            else:
                a(f"v_lshlrev_b32 v{T+ci}, 16, v{16+4*ci+jj//2}")
        for cp in range(2):
            a(f"v_lshlrev_b32 v{T+4+2*cp}, 16, v{QR+2*jj+cp}")
            a(f"v_and_b32 v{T+5+2*cp}, 0xffff0000, v{QR+2*jj+cp}")
        for ci in range(4):
            a(f"v_mul_f32 v{T+ci}, v{T+ci}, v{T+4+ci}")
        O = 64 + 2 * jj
        for cp in range(2):
            a(f"v_cvt_pk_bf16_f32 v{O+cp}, v{T+2*cp}, v{T+2*cp+1}")
        a(f"buffer_store_dwordx2 {vr(O,2)}, v224, s[32:35], s72 offen")
        a(f"s_add_u32 s72, s72, {64*4096}")
    a("s_mov_b32 s41, s40")
    a("s_mov_b32 s40, 1")
    a("s_cmp_eq_u32 s41, 0")
    a("s_cbranch_scc1 K3_zp")
    if PREPOST:
        a("s_cmp_eq_u32 s41, 3")
        a("s_cbranch_scc1 K3_pw")
    a.label("K3_fin")
    stamp_flush(a, 9)
    a.label("K3_end")
    a("s_endpgm")
    return a.finalize(), 252
```

```python
import sys, os
sys.path.insert(0, os.path.dirname(os.path.abspath(__file__)))
import k3

HEADER = open(os.path.join(os.path.dirname(os.path.abspath(__file__)), "header.txt")).read()
NAME = "concat_heads__ssm_conv_h3__linear_attn_block__prompt_kernel"


def build(as_list):
    body, vg = k3.gen_k3()
    name = NAME
    out = HEADER
    if as_list:
        out += f"; @launch kernel={name} grid=(256,1,1) block=(512,1,1) lds={k3.K3_LDS}\n"
    else:
        out += f"; @launch grid=(256,1,1) block=(512,1,1) lds={k3.K3_LDS}\n"
    out += '.amdgcn_target "amdgcn-amd-amdhsa--gfx950"\n.text\n'
    out += f".globl {name}\n.p2align 8\n.type {name},@function\n{name}:\n{body}"
    acc = (vg + 3) // 4 * 4
    out += f""".section .rodata,"a"
.p2align 6
.amdhsa_kernel {name}
  .amdhsa_next_free_vgpr {vg}
  .amdhsa_next_free_sgpr 102
  .amdhsa_accum_offset {acc}
  .amdhsa_group_segment_fixed_size 0
  .amdhsa_kernarg_size 96
  .amdhsa_user_sgpr_count 2
  .amdhsa_user_sgpr_kernarg_segment_ptr 1
  .amdhsa_system_sgpr_workgroup_id_x 1
.end_amdhsa_kernel
"""
    return out


if __name__ == "__main__":
    dst = sys.argv[1] if len(sys.argv) > 1 else "concat_heads__ssm_conv_h3__linear_attn_block__prompt.s"
    open(dst, "w").write(build(len(sys.argv) > 1 and not os.environ.get("NOLIST")))
    print("wrote", dst)
```

```python
import os
from asmlib import *

MB = 1 << 20
KA_Q, KA_K, KA_V, KA_SHK, KA_SSMK, KA_SSMD, KA_X, KA_WQKV, KA_WO, KA_OUT, KA_DBG, KA_WS = [8 * i for i in range(12)]
WS_QF = 0
WS_OF = 0
WS_KVP = 8 * MB
WS_ZP = 12 * MB
WS_FLAG = 13 * MB
FLAG_STRIDE = 4224
FLAG_BYTES = 32 * FLAG_STRIDE
WS_UT = 16 * MB
WS_YF = 16 * MB
WS_DBG = 32 * MB

LOG2E = 0x3fb8aa3b
EPS = 0x358637bd

STAMP = os.environ.get("STAMP", "0") == "1"


def env(name, default):
    v = os.environ.get(name)
    return default if v is None else type(default)(v)


def vr(b, n=4):
    return f"v[{b}:{b+n-1}]"


def mfma16(a, d, A, B, c=None):
    cs = vr(d, 4) if c is None else c
    a(f"v_mfma_f32_16x16x32_bf16 {vr(d,4)}, {vr(A)}, {vr(B)}, {cs}")


def stamp(a, i):
    if STAMP:
        a(f"{os.environ.get('STAMPI', 's_memrealtime')} s[{64+2*i}:{65+2*i}]")
        a("s_waitcnt lgkmcnt(0)")


def stamp_flush(a, kidx, n):
    if not STAMP:
        return
    a("s_mov_b64 exec, -1")
    a("s_waitcnt vmcnt(0)")
    stamp(a, n)
    srd_off(a, 88, 8, WS_DBG, 4 * MB)
    a(f"s_add_u32 s92, s2, {kidx*512}")
    a("s_lshl_b32 s92, s92, 4")
    a("s_add_u32 s92, s92, s3")
    a("s_lshl_b32 s92, s92, 6")
    a("v_mov_b32 v0, 0")
    for i in range(n + 1):
        a(f"v_mov_b32 v1, s{64+2*i}")
        a(f"buffer_store_dword v1, v0, s[88:91], s92 offen offset:{4*i}")
    if kidx == 2:
        a("v_mov_b32 v1, s93")
        a("buffer_store_dword v1, v0, s[88:91], s92 offen offset:60")


def phi8(a, T, dst, sl2e, seps):
    for j in range(8):
        a(f"v_min_f32 v{T+12+j}, 0, v{T+4+j}")
    for j in range(4):
        a(f"v_pk_mul_f32 {vr(T+20+2*j,2)}, {vr(T+12+2*j,2)}, s[{sl2e}:{sl2e+1}]")
    for j in range(8):
        a(f"v_exp_f32 v{T+20+j}, v{T+20+j}")
    for j in range(4):
        a(f"v_pk_add_f32 {vr(T+4+2*j,2)}, {vr(T+4+2*j,2)}, {vr(T+12+2*j,2)} neg_lo:[0,1] neg_hi:[0,1]")
    for j in range(4):
        a(f"v_pk_add_f32 {vr(T+4+2*j,2)}, {vr(T+4+2*j,2)}, {vr(T+20+2*j,2)}")
    for j in range(4):
        a(f"v_pk_add_f32 {vr(T+4+2*j,2)}, {vr(T+4+2*j,2)}, s[{seps}:{seps+1}]")
    for j in range(4):
        a(f"v_cvt_pk_bf16_f32 v{dst+j}, v{T+4+2*j}, v{T+5+2*j}")


def unpack4(a, T, src):
    for j in range(4):
        a(f"v_lshlrev_b32 v{T+4+2*j}, 16, v{src+j}")
        a(f"v_and_b32 v{T+5+2*j}, 0xffff0000, v{src+j}")


def k2_prefetch(a, part, vdst, vt, sq, ssoff):
    s0, s1 = ssoff, ssoff + 1
    if part == 0:
        a(f"s_lshl_b32 s{s0}, s10, 19")
        a(f"s_lshl_b32 s{s1}, s11, 14")
        a(f"s_add_u32 s{s0}, s{s0}, s{s1}")
        a(f"s_add_u32 s{s1}, s{s0}, 8192")
        a(f"v_lshlrev_b32 v{vt}, 7, v2")
        srdn = sq
    elif part == 1:
        a(f"s_lshl_b32 s{s0}, s11, 17")
        a(f"s_lshl_b32 s{s1}, s10, 8")
        a(f"s_add_u32 s{s0}, s{s0}, s{s1}")
        a(f"s_add_u32 s{s1}, s{s0}, 65536")
        a(f"v_lshrrev_b32 v{vt}, 1, v2")
        a(f"v_lshlrev_b32 v{vt}, 11, v{vt}")
        a(f"v_and_b32 v{vt+1}, 1, v2")
        a(f"v_lshl_add_u32 v{vt}, v{vt+1}, 7, v{vt}")
        srdn = sq + 4
    else:
        a(f"s_lshl_b32 s{s0}, s11, 16")
        a(f"s_lshr_b32 s{s1}, s10, 2")
        a(f"s_lshl_b32 s{s1}, s{s1}, 10")
        a(f"s_add_u32 s{s0}, s{s0}, s{s1}")
        if part == 3:
            a(f"s_add_u32 s{s0}, s{s0}, 32768")
        a(f"s_add_u32 s{s1}, s{s0}, 16384")
        a(f"v_lshrrev_b32 v{vt}, 3, v2")
        a(f"v_lshlrev_b32 v{vt}, 11, v{vt}")
        a(f"v_and_b32 v{vt+1}, 7, v2")
        a(f"v_lshl_add_u32 v{vt}, v{vt+1}, 7, v{vt}")
        srdn = sq + 8
    a(f"buffer_load_dword v{vdst}, v{vt}, s[{srdn}:{srdn+3}], s{s0} offen")
    a(f"buffer_load_dword v{vdst}, v{vt}, s[{srdn}:{srdn+3}], s{s1} offen")


def phi8s(a, T, dst, sl2e, seps):
    for j in range(8):
        a(f"v_min_f32 v{T+12+j}, 0, v{T+4+j}")
    for j in range(8):
        a(f"v_mul_f32 v{T+20+j}, s{sl2e}, v{T+12+j}")
    for j in range(8):
        a(f"v_exp_f32 v{T+20+j}, v{T+20+j}")
    for j in range(8):
        a(f"v_max_f32 v{T+4+j}, 0, v{T+4+j}")
    for j in range(8):
        a(f"v_add_f32 v{T+4+j}, v{T+4+j}, v{T+20+j}")
    for j in range(8):
        a(f"v_add_f32 v{T+4+j}, s{seps}, v{T+4+j}")
    for j in range(4):
        a(f"v_cvt_pk_bf16_f32 v{dst+j}, v{T+4+2*j}, v{T+5+2*j}")


def k2_prefetch_setup(a, part, vt, sd, ssoff, p_h, p_q, p_wo):
    s0, s1 = ssoff, ssoff + 1
    if part == 0:
        srd(a, sd, p_h, 4 * MB)
        a(f"s_lshl_b32 s{s0}, s10, 19")
        a(f"s_lshl_b32 s{s1}, s11, 14")
        a(f"s_add_u32 s{s0}, s{s0}, s{s1}")
        a(f"s_add_u32 s{s1}, s{s0}, 8192")
        a(f"v_lshlrev_b32 v{vt}, 7, v2")
    elif part == 1:
        srd(a, sd, p_q, 4 * MB)
        a(f"s_lshl_b32 s{s0}, s11, 17")
        a(f"s_lshl_b32 s{s1}, s10, 8")
        a(f"s_add_u32 s{s0}, s{s0}, s{s1}")
        a(f"s_add_u32 s{s1}, s{s0}, 65536")
        a(f"v_lshrrev_b32 v{vt}, 1, v2")
        a(f"v_lshlrev_b32 v{vt}, 11, v{vt}")
        a("v_and_b32 v15, 1, v2")
        a(f"v_lshl_add_u32 v{vt}, v15, 7, v{vt}")
    else:
        srd(a, sd, p_wo, 2 * MB)
        a(f"s_lshl_b32 s{s0}, s11, 16")
        a(f"s_lshr_b32 s{s1}, s10, 2")
        a(f"s_lshl_b32 s{s1}, s{s1}, 10")
        a(f"s_add_u32 s{s0}, s{s0}, s{s1}")
        if part == 3:
            a(f"s_add_u32 s{s0}, s{s0}, 32768")
        a(f"s_add_u32 s{s1}, s{s0}, 16384")
        a(f"v_lshrrev_b32 v{vt}, 3, v2")
        a(f"v_lshlrev_b32 v{vt}, 11, v{vt}")
        a("v_and_b32 v15, 7, v2")
        a(f"v_lshl_add_u32 v{vt}, v15, 7, v{vt}")


def prepass(a, sw, p_k, p_v, p_shk, stflag="", p_ws=8, ldflag=""):
    srd(a, 16, p_k, 4 * MB)
    srd(a, 20, p_v, 4 * MB)
    srd(a, 24, p_shk, 8192)
    srd_off(a, 28, p_ws, WS_UT, 4 * MB)
    a("s_lshl_b32 s32, s2, 2")
    a(f"s_add_u32 s32, s32, s{sw}")
    a("s_and_b32 s33, s32, 15")
    a("s_lshr_b32 s32, s32, 4")
    a("s_lshl_b32 s34, s32, 16")
    a("s_lshl_b32 s35, s33, 7")
    a("s_add_u32 s34, s34, s35")
    a("v_and_b32 v20, 15, v2")
    a("v_lshrrev_b32 v18, 4, v2")
    a("v_lshlrev_b32 v21, 14, v18")
    a("v_lshl_add_u32 v21, v20, 3, v21")
    a("v_add_u32 v21, s34, v21")
    a("s_lshl_b32 s35, s33, 9")
    a("v_lshlrev_b32 v22, 5, v20")
    for i in range(11):
        a(f"v_add_u32 v23, {((i-3)*2048) & 0xffffffff}, v21")
        a(f"buffer_load_dwordx2 {vr(32+2*i,2)}, v23, s[16:19], 0 offen{ldflag}")
    for i in range(8):
        a(f"v_add_u32 v23, {i*2048}, v21")
        a(f"buffer_load_dwordx2 {vr(54+2*i,2)}, v23, s[20:23], 0 offen{ldflag}")
    for i in range(2):
        a(f"buffer_load_dwordx4 {vr(24+4*i)}, v22, s[24:27], s35 offen offset:{16*i}")
    a("s_lshl_b32 s34, s33, 18")
    a("s_lshl_b32 s35, s32, 6")
    a("s_add_u32 s34, s34, s35")
    a("v_lshlrev_b32 v19, 14, v20")
    a("v_lshl_add_u32 v19, v18, 4, v19")

    def compute():
        W, KF, VF, KS = 72, 88, 110, 126
        a("s_waitcnt vmcnt(0)")
        for ci in range(4):
            a(f"v_lshlrev_b32 v{W+ci}, 16, v{24+2*ci}")
            a(f"v_and_b32 v{W+4+ci}, 0xffff0000, v{24+2*ci}")
            a(f"v_lshlrev_b32 v{W+8+ci}, 16, v{25+2*ci}")
            a(f"v_and_b32 v{W+12+ci}, 0xffff0000, v{25+2*ci}")
        for cp in range(2):
            for i in range(11):
                a(f"v_lshlrev_b32 v{KF+2*i}, 16, v{32+2*i+cp}")
                a(f"v_and_b32 v{KF+2*i+1}, 0xffff0000, v{32+2*i+cp}")
            for i in range(8):
                a(f"v_lshlrev_b32 v{VF+2*i}, 16, v{54+2*i+cp}")
                a(f"v_and_b32 v{VF+2*i+1}, 0xffff0000, v{54+2*i+cp}")
            for i in range(8):
                a(f"v_pk_mul_f32 {vr(KS+2*i,2)}, {vr(KF+2*i,2)}, {vr(W+12+2*cp,2)}")
            for j in (2, 1, 0):
                for i in range(8):
                    a(f"v_pk_fma_f32 {vr(KS+2*i,2)}, {vr(KF+2*(i+3-j),2)}, {vr(W+4*j+2*cp,2)}, {vr(KS+2*i,2)}")
            for i in range(8):
                a(f"v_pk_mul_f32 {vr(KS+2*i,2)}, {vr(KS+2*i,2)}, {vr(VF+2*i,2)}")
            O = 144 + 8 * cp
            for e in range(2):
                for i in range(4):
                    a(f"v_cvt_pk_bf16_f32 v{O+4*e+i}, v{KS+4*i+e}, v{KS+4*i+2+e}")
            for i in range(8):
                a(f"v_and_b32 v{O+i}, -2, v{O+i}")
            for e in range(2):
                a(f"buffer_store_dwordx4 {vr(O+4*e)}, v19, s[28:31], s34 offen{stflag}")
                a("s_add_u32 s34, s34, 4096")
    return compute
```

```python
import os
from asmlib import *
from common import prepass, k2_prefetch_setup, MB, vr, mfma16, phi8, unpack4, env, LOG2E, EPS, WS_KVP, WS_ZP, WS_FLAG, WS_UT, WS_DBG, STAMP

WS_OF = 0
NS = 4
STAGE = 40960
K3_LDS = NS * STAGE
CV_REG = 8704
CV_HB = 32
CV_UB = 4384
KVT = 4 * CV_REG
ZFR = KVT + 4096
SYNC = ZFR + 256
WO_BASE = 40960
PQ_BASE = WO_BASE + 24 * 4096
XCH = WO_BASE + 28 * 4096
XCZ = SYNC + 256
S_KVS = 84
S_X, S_HU, S_PQ, S_KVT, S_WOM, S_WOT, S_CD, S_GO, S_NONCE, S_WO2 = 0, 8, 24, 40, 48, 52, 56, 72, 76, 80
SPIN_MAX = 1 << 17
RETRY_MAX = 4000
DPP = "row_mask:0xf bank_mask:0xf"
DUTY0 = env("DUTY0", 0)
NDUTY = env("NDUTY", 4)
E2_0 = env("E2_0", 4)
E2_N = env("E2_N", 4)
E3_0 = env("E3_0", 8)
E3_N = env("E3_N", 4)
F1N = env("F1N", 9)
FLAGN = env("FLAGN", 10)
PL0 = env("PL0", 4)
SPF_C = env("SPF_C", 0)
SPF_L = env("SPF_L", 0)
ADEPTH = env("ADEPTH", 16)
YDELAY = env("YDELAY", 8)
ZSLEEP = env("ZSLEEP", 10)
ATOUCH = env("ATOUCH", 1)
XP = env("XP", "23")
LATE = env("LATE", 1)
PREPOST = env("PREPOST", 0)
EARLYWO = env("EARLYWO", 4)
WAITKV = env("WAITKV", 1)
GSC = env("GSC", "")
QX = env("QX", 1)
PREC = env("PREC", 0)
NTF = " nt" if env("NTF", 0) else ""
NTG = " nt" if env("NTG", 0) else ""
NTO = " nt" if env("NTO", 1) else ""
NTT = " nt" if env("NTT", 0) else ""
NTS = " nt" if env("NTS", 1) else ""
E3W = env("E3W", 1)
QEARLY = env("QEARLY", 0)
POSTPRE = env("POSTPRE", 0)
ASC = env("ASC", "")
P_Q, P_K, P_V, P_SHK, P_H, P_D, P_X, P_W, P_WO, P_OUT, P_DBG, P_WS = [76 + 2 * i for i in range(12)]
SV = 231


def stamp(a, i):
    if STAMP:
        a("s_memrealtime s[100:101]")
        a("s_waitcnt lgkmcnt(0)")
        a(f"v_writelane_b32 v{SV}, s100, {i}")


def stamp_flush(a, n):
    if not STAMP:
        return
    a("s_mov_b64 exec, -1")
    a("s_waitcnt vmcnt(0)")
    stamp(a, n)
    a(f"v_writelane_b32 v{SV}, s75, 15")
    srd_off(a, 16, P_WS, WS_DBG, 4 * MB)
    a("s_add_u32 s20, s2, 512")
    a("s_lshl_b32 s20, s20, 4")
    a("s_add_u32 s20, s20, s3")
    a("s_lshl_b32 s20, s20, 6")
    a("v_lshlrev_b32 v0, 2, v2")
    a("s_mov_b64 exec, 0xffff")
    a(f"buffer_store_dword v{SV}, v0, s[16:19], s20 offen")


def lds_wait(a, name, vaddr, off, val, vtmp, stmp, sleep=0):
    a(f"s_mov_b32 s{stmp+1}, {SPIN_MAX}")
    a.label(name)
    if sleep:
        a(f"s_sleep {sleep}")
    a(f"ds_read_b32 v{vtmp}, v{vaddr} offset:{off}")
    a("s_waitcnt lgkmcnt(0)")
    a(f"v_readfirstlane_b32 s{stmp}, v{vtmp}")
    a(f"s_sub_u32 s{stmp+1}, s{stmp+1}, 1")
    a(f"s_cbranch_scc1 {name}_ok")
    a(f"s_cmp_lt_u32 s{stmp}, {val}")
    a(f"s_cbranch_scc1 {name}")
    a.label(name + "_ok")


def lds_signal(a, vaddr, off, vone):
    a("s_mov_b64 exec, 1")
    a(f"ds_add_u32 v{vaddr}, v{vone} offset:{off}")
    a("s_mov_b64 exec, -1")


def and_reduce(a, dst, regs):
    regs = list(regs)
    a(f"v_bitop3_b32 v{dst}, v{regs[0]}, v{regs[1]}, 1 bitop3:0x80")
    i = 2
    while i + 1 < len(regs):
        a(f"v_bitop3_b32 v{dst}, v{dst}, v{regs[i]}, v{regs[i+1]} bitop3:0x80")
        i += 2
    if i < len(regs):
        a(f"v_and_b32 v{dst}, v{dst}, v{regs[i]}")


def gen_k3():
    a = Asm()
    a("s_cmp_ge_u32 s2, 256")
    a("s_cbranch_scc1 K3_end")
    a("s_load_dwordx8 s[84:91], s[0:1], 32")
    a("s_load_dwordx8 s[92:99], s[0:1], 64")
    a("s_load_dwordx8 s[76:83], s[0:1], 0")
    a("v_lshrrev_b32 v1, 6, v0")
    a("v_and_b32 v2, 63, v0")
    a("s_and_b32 s10, s2, 7")
    a("v_readfirstlane_b32 s3, v1")
    a("s_lshr_b32 s11, s2, 3")
    a("s_and_b32 s12, s10, 1")
    a("s_lshl_b32 s12, s12, 3")
    a("s_and_b32 s13, s11, 7")
    a("s_add_u32 s12, s12, s13")
    a("s_lshr_b32 s13, s10, 1")
    a("s_lshl_b32 s13, s13, 2")
    a("s_lshr_b32 s14, s11, 3")
    a("s_add_u32 s13, s13, s14")
    a("s_mov_b32 s75, 0")
    a("s_and_b32 s4, s3, 3")
    a("s_and_b32 s36, s3, 1")
    a("s_bfe_u32 s37, s3, 0x10001")
    a("s_lshl_b32 s5, s13, 1")
    a("s_add_u32 s5, s5, s37")
    a(f"s_xor_b32 s15, s5, {2 if QX else 0}")
    a("s_lshl_b32 s6, s10, 7")
    a("s_lshl_b32 s7, s11, 2")
    a("s_add_u32 s6, s6, s7")
    a("s_add_u32 s6, s6, s4")
    a(f"s_mul_i32 s7, s4, {CV_REG}")
    a("v_lshlrev_b32 v3, 4, v2")
    a("v_lshrrev_b32 v14, 4, v2")
    a("v_and_b32 v15, 15, v2")
    a("s_waitcnt lgkmcnt(0)")
    stamp(a, 0)
    spf = []
    a("s_cmp_ge_u32 s3, 4")
    a("s_cbranch_scc1 K3_L")

    a("s_cmp_lg_u32 s3, 0")
    a("s_cbranch_scc1 K3_pfw")
    srd(a, 40, P_X, 4 * MB)
    a("v_lshrrev_b32 v192, 3, v2")
    a("v_lshlrev_b32 v192, 11, v192")
    a("v_and_b32 v16, 7, v2")
    a("v_lshl_add_u32 v192, v16, 7, v192")
    a("s_lshl_b32 s45, s2, 14")
    a("s_add_u32 s44, s45, 1024")
    a("s_branch K3_pfd")
    a.label("K3_pfw")
    srd(a, 40, P_W, 6 * MB)
    a("v_lshlrev_b32 v192, 7, v2")
    a("s_mul_i32 s45, s2, 12288")
    a("s_sub_u32 s44, s3, 1")
    a("s_lshl_b32 s44, s44, 12")
    a("s_add_u32 s45, s45, s44")
    a(f"s_add_u32 s44, s45, {3*MB}")
    a("s_cmp_eq_u32 s3, 3")
    a(f"s_cselect_b32 s45, {8*MB}, s45")
    a(f"s_cselect_b32 s44, {8*MB}, s44")
    a.label("K3_pfd")
    if "1" in XP:
        a(f"s_mov_b32 s45, {16*MB}")
        a(f"s_mov_b32 s44, {16*MB}")
    a(f"buffer_load_dword v195, v192, s[40:43], s45 offen{NTT}")
    srd(a, 56, P_DBG, 256)
    srd_off(a, 60, P_WS, WS_FLAG, 4096)
    a("s_memrealtime s[16:17]")
    a("v_mov_b32 v199, 0")
    a("s_waitcnt lgkmcnt(0)")
    a("s_or_b32 s16, s16, 1")
    a("v_mov_b32 v198, s16")
    a("s_cmp_lg_u32 s3, 3")
    a("s_cbranch_scc1 K3_noseed")
    a("s_cmp_lg_u32 s11, 0")
    a("s_cbranch_scc1 K3_noseed")
    a("v_mov_b32 v196, s16")
    a("v_mov_b32 v197, 0")
    a("s_mov_b64 exec, 1")
    a("buffer_atomic_cmpswap v[196:197], v199, s[56:59], 0 offen sc1")
    a("s_mov_b64 exec, -1")
    a.label("K3_noseed")
    a("s_lshl_b32 s46, s11, 7")
    a("s_lshl_b32 s47, s10, 2")
    a("s_add_u32 s47, s47, s46")
    if PREC:
        pre_compute = prepass(a, 3, P_K, P_V, P_SHK, " sc1", P_WS, NTO)
    a("s_cmp_ge_u32 s3, 2")
    a(f"s_cselect_b32 s48, s{P_V}, s{P_K}")
    a(f"s_cselect_b32 s49, s{P_V+1}, s{P_K+1}")
    a(f"s_mov_b32 s50, {4*MB}")
    a("s_mov_b32 s51, 0x20000")
    a("v_lshrrev_b32 v193, 2, v2")
    a("v_lshlrev_b32 v193, 11, v193")
    a("v_and_b32 v16, 3, v2")
    a("v_lshl_add_u32 v193, v16, 7, v193")
    a("s_lshr_b32 s45, s2, 2")
    a("s_lshl_b32 s45, s45, 16")
    a("s_lshl_b32 s46, s36, 15")
    a("s_add_u32 s45, s45, s46")
    a("s_and_b32 s46, s2, 3")
    a("s_lshl_b32 s46, s46, 9")
    a("s_add_u32 s45, s45, s46")
    if "2" in XP:
        a(f"s_mov_b32 s45, {16*MB}")
    a("v_mov_b32 v200, v15")
    for part in range(4):
        if part < 3:
            a(f"s_cmp_lg_u32 s3, {part}")
            a(f"s_cbranch_scc1 K3_e3_{part+1}")
        k2_prefetch_setup(a, part, 194, 64, 68, P_H, P_Q, P_WO)
        if part < 3:
            a("s_branch K3_e3_done")
            a.label(f"K3_e3_{part+1}")
    a.label("K3_e3_done")
    a("v_mov_b32 v15, v200")
    a(f"s_and_b32 s55, s11, {NDUTY-1}")
    a(f"s_add_u32 s55, s55, {DUTY0}")
    a(f"s_and_b32 s52, s11, {E2_N-1}")
    a(f"s_add_u32 s52, s52, {E2_0}")
    a("s_sub_u32 s52, s52, s55")
    a("s_sub_u32 s52, s52, 1")
    a("s_mov_b32 s54, 0")
    a("s_lshr_b32 s70, s11, 2")
    a(f"s_and_b32 s70, s70, {E3_N-1}")
    a(f"s_add_u32 s70, s70, {E3_0 if '3' not in XP else 1000}")
    if E3W:
        a("s_cmp_lt_u32 s3, 2")
        a("s_cselect_b32 s70, 1000, s70")
    a("s_cmp_eq_u32 s3, 3")
    a(f"s_cselect_b32 s71, {F1N-2}, 1000")
    a("s_mov_b32 s53, 0")
    if PREC:
        pre_compute()
    a("s_lshl_b32 s38, s36, 6")
    a("v_add_u32 v16, s38, v15")
    a("v_lshrrev_b32 v17, 1, v15")
    a("v_lshlrev_b32 v16, 7, v16")
    a("v_xor_b32 v17, v14, v17")
    a("v_lshl_add_u32 v4, v17, 4, v16")
    a("v_xor_b32 v5, 64, v4")
    a(f"v_add_u32 v6, {2*STAGE}, v4")
    a(f"v_add_u32 v7, {2*STAGE}, v5")
    a("v_bfe_u32 v17, v2, 2, 2")
    a("v_and_b32 v18, 3, v2")
    a("v_lshlrev_b32 v17, 6, v17")
    a("v_lshl_add_u32 v17, v18, 3, v17")
    a("v_and_b32 v18, 1, v14")
    a("v_lshl_add_u32 v17, v18, 10, v17")
    a("v_lshl_add_u32 v17, v18, 5, v17")
    a("v_lshrrev_b32 v18, 1, v14")
    a("v_mul_u32_u24 v18, 6144, v18")
    a("v_add_u32 v17, v17, v18")
    a("s_lshl_b32 s38, s37, 8")
    a("s_add_u32 s38, s38, 16384")
    a("v_add_u32 v8, s38, v17")
    a("v_xor_b32 v9, 32, v8")
    a(f"v_add_u32 v10, {2*STAGE}, v8")
    a(f"v_add_u32 v11, {2*STAGE}, v9")
    SB = [16, 56]

    def accr(kind, mt, dt):
        return 96 + 32 * kind + (mt * 2 + dt) * 4

    for i in range(96, 192):
        a(f"v_mov_b32 v{i}, 0")
    for op in spf[:SPF_C]:
        a(op)
    a("s_waitcnt lgkmcnt(0)")
    srd_off(a, 28, P_WS, WS_KVP, 2 * MB)
    srd_off(a, 32, P_WS, WS_ZP, 64 * 1024)
    lg = Cnt(a, "lgkmcnt", 15)

    def reads(slot, t, st):
        sb = (slot & 1) * STAGE
        va = 4 + t + (2 if slot >= 2 else 0)
        vb = 10 if slot >= 2 else 8
        R = SB[st]

        def A(mt):
            return [(("A", mt, st), f"ds_read_b128 {vr(R+4*mt)}, v{va} offset:{sb + 2048*mt}")]

        def B(cb):
            seg, nh = cb // 2, cb % 2
            return [(("B", cb, st), f"ds_read_b64_tr_b16 {vr(R+16+4*cb+2*h,2)}, v{vb+nh} offset:{sb + t*12288 + seg*2048 + 512*h}") for h in range(2)]
        return A(0) + B(0) + A(1) + A(2) + A(3) + B(1) + B(2) + B(3) + B(4) + B(5)

    def group(st, nxt):
        R = SB[st]
        nxt = list(nxt)
        for cb in range(6):
            kind, dt = cb // 2, cb % 2
            for mt in range(4):
                lg.wait_for([("A", mt, st), ("B", cb, st)])
                fa, fb = R + 4 * mt, R + 16 + 4 * cb
                if kind == 0:
                    mfma16(a, accr(0, mt, dt), fb, fa)
                else:
                    mfma16(a, accr(kind, mt, dt), fa, fb)
                if nxt:
                    tag, txt = nxt.pop(0)
                    a(txt)
                    lg.issue(tag)

    a("s_barrier")
    stamp(a, 1)
    for tag, txt in reads(0, 0, 0):
        a(txt)
        lg.issue(tag)
    lg.drain()
    a("s_mov_b32 s39, 4")
    a.label("K3_loop")
    for slot in range(4):
        group(0, reads(slot, 1, 1))
        lg.drain()
        a("s_barrier")
        a("s_sub_u32 s55, s55, 1")
        a(f"s_cbranch_scc1 K3_event{slot}")
        a.label(f"K3_noev{slot}")
        a("s_sub_u32 s70, s70, 1")
        a(f"s_cbranch_scc1 K3_evB{slot}")
        a.label(f"K3_noevB{slot}")
        a("s_sub_u32 s71, s71, 1")
        a(f"s_cbranch_scc1 K3_evC{slot}")
        a.label(f"K3_noevC{slot}")
        group(1, reads((slot + 1) % 4, 0, 0))
        if slot == 3:
            a("s_sub_u32 s39, s39, 1")
            a("s_cmp_lg_u32 s39, 0")
            lg.drain()
    a("s_cbranch_scc1 K3_loop")
    stamp(a, 2)

    a(f"s_mov_b32 s44, {LOG2E}")
    a(f"s_mov_b32 s45, {LOG2E}")
    a(f"s_mov_b32 s46, {EPS}")
    a(f"s_mov_b32 s47, {EPS}")
    a(f"v_mov_b32 v10, {SYNC}")
    a("v_mov_b32 v11, 1")
    for et in range(2):
        for m in range(2):
            d = 16 + 4 * (2 * et + m)
            for hh in range(2):
                s = accr(2, 2 * m + hh, et)
                a(f"v_cvt_pk_bf16_f32 v{d+2*hh}, v{s}, v{s+1}")
                a(f"v_cvt_pk_bf16_f32 v{d+2*hh+1}, v{s+2}, v{s+3}")
    for i in range(4):
        a(f"v_mov_b32 v{48+i}, 0x3f803f80")
    KV, ZZ, T = 160, 176, 52
    for m in range(2):
        for dt in range(2):
            for hh in range(2):
                s = accr(1, 2 * m + hh, dt)
                a(f"v_cvt_pk_bf16_f32 v{T+2*hh}, v{s}, v{s+1}")
                a(f"v_cvt_pk_bf16_f32 v{T+2*hh+1}, v{s+2}, v{s+3}")
            unpack4(a, T, T)
            kf = 32 + 4 * (2 * dt + m)
            phi8(a, T, kf, 44, 46)
            for et in range(2):
                mfma16(a, KV + 4 * (2 * et + dt), kf, 16 + 4 * (2 * et + m), "0" if m == 0 else None)
            mfma16(a, ZZ + 4 * dt, kf, 48, "0" if m == 0 else None)
    a("s_lshl_b32 s43, s37, 12")
    a(f"s_add_u32 s43, s43, {XCH}")
    a("v_add_u32 v4, s43, v3")
    a("s_lshl_b32 s43, s37, 7")
    a(f"s_add_u32 s43, s43, {XCZ}")
    a("v_lshlrev_b32 v5, 5, v14")
    a("v_add_u32 v5, s43, v5")
    a("s_lshl_b32 s43, s37, 2")
    a("v_add_u32 v6, s43, v10")
    a("s_cmp_eq_u32 s36, 0")
    a("s_cbranch_scc1 K3_wr0")
    for qd in range(4):
        a(f"ds_write_b128 v4, {vr(KV+4*qd)} offset:{1024*qd}")
    for dt in range(2):
        a(f"ds_write_b128 v5, {vr(ZZ+4*dt)} offset:{16*dt}")
    a("s_waitcnt lgkmcnt(0)")
    lds_signal(a, 6, S_X, 11)
    a("s_branch K3_q")
    a.label("K3_wr0")
    a("s_lshl_b32 s48, s5, 4")
    a("s_add_u32 s48, s48, s12")
    a("s_lshl_b32 s49, s48, 12")
    a("s_lshl_b32 s50, s48, 7")
    a("v_lshlrev_b32 v7, 4, v14")
    lds_wait(a, "K3_wx", 6, S_X, 1, 8, 42)
    for qd in range(4):
        a(f"ds_read_b128 {vr(16+4*qd)}, v4 offset:{1024*qd}")
    for dt in range(2):
        a(f"ds_read_b128 {vr(32+4*dt)}, v5 offset:{16*dt}")
    for qd in range(6):
        a(f"s_waitcnt lgkmcnt({5-qd})")
        a(f"v_pk_add_f32 {vr(KV+4*qd,2)}, {vr(KV+4*qd,2)}, {vr(16+4*qd,2)}")
        a(f"v_pk_add_f32 {vr(KV+4*qd+2,2)}, {vr(KV+4*qd+2,2)}, {vr(16+4*qd+2,2)}")
        for i in range(4):
            a(f"v_or_b32 v{KV+4*qd+i}, 1, v{KV+4*qd+i}")
        if qd < 4:
            a(f"buffer_store_dwordx4 {vr(KV+4*qd)}, v3, s[28:31], s49 offen offset:{1024*qd} sc1")
    a("s_mov_b32 exec_lo, 0x00010001")
    a("s_mov_b32 exec_hi, 0x00010001")
    for dt in range(2):
        a(f"buffer_store_dwordx4 {vr(ZZ+4*dt)}, v7, s[32:35], s50 offen offset:{64*dt} sc1")
    a("s_mov_b64 exec, -1")
    lds_signal(a, 10, S_KVS, 11)
    a.label("K3_q")
    stamp(a, 3)
    a("s_lshl_b32 s43, s3, 12")
    a(f"s_add_u32 s43, s43, {PQ_BASE}")
    a("v_add_u32 v4, s43, v3")
    for mt in range(4):
        d = 80 + 4 * mt
        for dt in range(2):
            sr = accr(0, mt, dt)
            a(f"v_cvt_pk_bf16_f32 v{T+2*dt}, v{sr}, v{sr+1}")
            a(f"v_cvt_pk_bf16_f32 v{T+2*dt+1}, v{sr+2}, v{sr+3}")
        unpack4(a, T, T)
        phi8(a, T, d, 44, 46)
        a(f"ds_write_b128 v4, {vr(d)} offset:{1024*mt}")
    a("s_lshl_b32 s43, s3, 2")
    a("v_add_u32 v9, s43, v10")
    a("v_and_b32 v6, 3, v2")
    a("v_bfe_u32 v7, v2, 2, 2")
    a("v_add_u32 v12, v6, v7")
    a("v_lshlrev_b32 v12, 3, v12")
    a("v_lshl_add_u32 v12, v14, 6, v12")
    a(f"s_add_u32 s43, s7, {CV_HB-24}")
    a("v_add_u32 v12, s43, v12")
    a("v_lshlrev_b32 v13, 5, v6")
    a("v_lshlrev_b32 v7, 3, v7")
    a("v_sub_u32 v13, v13, v7")
    a("v_lshlrev_b32 v7, 6, v14")
    a("v_sub_u32 v13, v13, v7")
    a(f"s_add_u32 s43, s7, {CV_UB+24-32}")
    a("v_add_u32 v13, s43, v13")
    a(f"s_add_u32 s43, s7, {CV_UB}")
    a("v_add_u32 v8, s43, v3")
    a("s_waitcnt lgkmcnt(0)")
    lds_signal(a, 9, S_PQ, 11)
    stamp(a, 4)
    lds_wait(a, "K3_whu", 9, S_HU, 1, 16, 42)
    stamp(a, 5)

    HH, FU = 32, 96
    ACC = [16, 20, 24, 28]
    T2, T1, YV, PK = [224, 225], [226, 227], [228, 229], [232, 236, 240, 244]
    lg.q = []

    def fu_reads(s):
        for hf in range(2):
            a(f"ds_read_b64_tr_b16 {vr(FU+4*s+2*hf,2)}, v13 offset:{128*s + 32*(1-hf)}")
            lg.issue(("fu", s))

    def h_reads(t):
        for hf in range(2):
            a(f"ds_read_b64_tr_b16 {vr(HH+4*t+2*hf,2)}, v12 offset:{256*t + 32*hf}")
            lg.issue(("h", t))

    def epi(Q):
        ops = []
        R0 = ACC[Q % 4]
        R1, R2, R3 = R0 + 1, R0 + 2, R0 + 3
        cur, prv = Q & 1, (Q & 1) ^ 1
        if Q == 0:
            ops.append(f"v_add_f32_dpp v{T2[cur]}, v{R3}, v{R2} wave_shr:1 {DPP} bound_ctrl:0")
            ops.append(f"v_add_f32_dpp v{T1[cur]}, v{T2[cur]}, v{R1} wave_shr:1 {DPP} bound_ctrl:0")
            ops.append(f"v_add_f32_dpp v{YV[cur]}, v{T1[cur]}, v{R0} wave_shr:1 {DPP} bound_ctrl:0")
        else:
            r3p = ACC[(Q - 1) % 4] + 3
            ops.append(f"v_add_f32_dpp v{T2[cur]}, v{r3p}, v{R2} wave_ror:1 {DPP}")
            ops.append(f"v_add_f32_dpp v{T1[cur]}, v{T2[prv]}, v{R1} wave_ror:1 {DPP}")
            ops.append(f"v_add_f32_dpp v{YV[cur]}, v{T1[prv]}, v{R0} wave_ror:1 {DPP}")
            ops.append(f"v_add_f32_dpp v{T2[cur]}, v{R3}, v{R2} wave_shr:1 {DPP}")
            ops.append(f"v_add_f32_dpp v{T1[cur]}, v{T2[cur]}, v{R1} wave_shr:1 {DPP}")
            ops.append(f"v_add_f32_dpp v{YV[cur]}, v{T1[cur]}, v{R0} wave_shr:1 {DPP}")
        if Q & 1:
            p = PK[Q // 8] + (Q % 8) // 2
            ops.append(f"v_cvt_pk_bf16_f32 v{p}, v{YV[0]}, v{YV[1]}")
            ops.append(f"v_or_b32 v{p}, 1, v{p}")
        return ops

    PRE = 3
    for c in range(PRE):
        fu_reads(c)
        if c % 2 == 0:
            h_reads(c // 2)
    pending = []
    for c in range(32):
        nst = c // 2 + 1
        for t in range(nst):
            s = c - 2 * t
            lg.wait_for([("fu", s), ("h", t)])
            mfma16(a, ACC[c % 4], FU + 4 * s, HH + 4 * t, "0" if t == 0 else None)
            if t == 0 and c + PRE < 32:
                fu_reads(c + PRE)
                if (c + PRE) % 2 == 0:
                    h_reads((c + PRE) // 2)
            if t == 0 and c >= 2:
                assert not pending
                pending = epi(c - 2)
            k = max(1, -(-len(pending) // (nst - t))) if pending else 0
            for _ in range(k):
                a(pending.pop(0))
    for Q in (30, 31):
        for op in epi(Q):
            a(op)
    srd_off(a, 28, P_WS, WS_UT, 4 * MB)
    a("s_lshl_b32 s40, s6, 12")
    for g in range(4):
        a(f"buffer_store_dwordx4 {vr(PK[g])}, v3, s[28:31], s40 offen offset:{1024*g} sc1")
    a("s_and_b32 s40, s10, 3")
    a("s_lshl_b32 s40, s40, 2")
    a("s_and_b32 s41, s11, 3")
    a("s_add_u32 s40, s40, s41")
    a("s_lshl_b32 s41, s40, 3")
    a("s_lshl_b32 s42, s3, 1")
    a("s_add_u32 s41, s41, s42")
    a("s_lshl_b32 s48, s41, 15")
    a("s_mov_b32 s47, s48")
    a("v_lshrrev_b32 v5, 5, v2")
    a("v_and_b32 v6, 1, v14")
    a("v_lshlrev_b32 v12, 15, v6")
    a("v_lshl_add_u32 v12, v5, 8, v12")
    a("v_lshl_add_u32 v12, v15, 4, v12")
    srd_off(a, 28, P_WS, WS_OF, 4 * MB)
    srd(a, 32, P_OUT, 8 * MB)
    a("s_waitcnt lgkmcnt(0)")
    lds_signal(a, 9, S_CD, 11)
    stamp(a, 6)
    lds_wait(a, "K3_wwo", 10, S_WOM, 4, 80, 42)
    stamp(a, 7)
    vm = Cnt(a, "vmcnt", 63)
    AR = 96
    D = ADEPTH
    if "a" in XP:
        srd(a, 28, P_X, 4 * MB)
        a("s_lshl_b32 s48, s12, 18")
        a("s_lshl_b32 s47, s3, 16")
        a("s_add_u32 s48, s48, s47")

    def aload(h):
        for f in range(2):
            r = AR + 8 * (h % D) + 4 * f
            a(f"buffer_load_dwordx4 {vr(r)}, v12, s[28:31], s48 offen offset:{1024*(h%4)+512*f}{ASC}")
            vm.issue(("A", h))
        if h % 4 == 3:
            a("s_add_u32 s48, s48, 4096")

    for h in range(8):
        aload(h)
    anext = [8]
    a("v_bfe_u32 v4, v2, 2, 2")
    a("v_and_b32 v7, 3, v2")
    a("v_lshlrev_b32 v4, 6, v4")
    a("v_lshl_add_u32 v4, v7, 3, v4")
    a("v_lshl_add_u32 v4, v5, 9, v4")
    a("v_xor_b32 v7, v6, v5")
    a("v_lshl_add_u32 v13, v7, 5, v4")
    a(f"v_add_u32 v4, {WO_BASE}, v13")
    a(f"v_add_u32 v8, {WO_BASE + 65536}, v13")

    def check_ops(g):
        r = AR + 8 * ((4 * g) % D)
        ops = [f"v_bitop3_b32 v81, v{r}, v{r+1}, v{r+2} bitop3:0x80"]
        for i in range(3, 31, 2):
            ops.append(f"v_bitop3_b32 v81, v81, v{r+i}, v{r+i+1} bitop3:0x80")
        ops.append(f"v_bitop3_b32 v81, v81, v{r+31}, 1 bitop3:0x80")
        return ops

    def check_branch(g):
        if "a" in XP:
            a.label(f"K3_retry{g}_ret")
            return
        a("v_cmp_eq_u32 vcc, 0, v81")
        a("s_cmp_lg_u64 vcc, 0")
        a(f"s_cbranch_scc1 K3_retry{g}")
        a.label(f"K3_retry{g}_ret")

    def retry_block(g):
        a.label(f"K3_retry{g}")
        a(f"s_mov_b32 s46, {RETRY_MAX}")
        a(f"s_add_u32 s44, s47, {4096*g}")
        a.label(f"K3_retry{g}_l")
        a("s_add_u32 s75, s75, 1")
        a("s_sleep 4")
        for hh in range(4):
            for f in range(2):
                r = AR + 8 * ((4 * g + hh) % D) + 4 * f
                a(f"buffer_load_dwordx4 {vr(r)}, v12, s[28:31], s44 offen offset:{1024*hh+512*f} sc1")
        a("s_waitcnt vmcnt(0)")
        for op in check_ops(g):
            a(op)
        a("v_cmp_eq_u32 vcc, 0, v81")
        a("s_sub_u32 s46, s46, 1")
        a(f"s_cbranch_scc1 K3_retry{g}_ret")
        a("s_cmp_lg_u64 vcc, 0")
        a(f"s_cbranch_scc1 K3_retry{g}_l")
        a(f"s_branch K3_retry{g}_ret")

    lg.q = []
    BS = [48, 64]

    def breads(h):
        out = []
        st = h & 1
        if h < 16:
            vb, off = 4, h * 4096
        elif h < 28:
            vb, off = 8, (h - 16) * 4096
        else:
            vb, off = 13, (h - 28) * CV_REG
        for f in range(2):
            for nb in range(2):
                for hf in range(2):
                    out.append(((h, f, nb), f"ds_read_b64_tr_b16 {vr(BS[st]+8*f+4*nb+2*hf,2)}, v{vb} offset:{off + f*1024 + hf*2048 + nb*256}"))
        return out

    for tag, txt in breads(0):
        a(txt); lg.issue(tag)
    vm.wait_for([("A", 3)])
    for op in check_ops(0):
        a(op)
    check_branch(0)
    chk = []
    for h in range(32):
        nxt = []
        if h + 1 < 32:
            nxt = breads(h + 1)
        if h % 4 == 2 and h + 2 < 32:
            vm.wait_for([("A", h + 5)])
            chk = check_ops(h // 4 + 1) if "k" not in XP else []
        for f in range(2):
            for nb in range(2):
                lg.wait_for([(h, f, nb)])
                d = 16 + 16 * nb
                cs = "0" if (h == 0 and f == 0) else vr(d, 16)
                a(f"v_mfma_f32_32x32x16_bf16 {vr(d,16)}, {vr(BS[h&1]+8*f+4*nb)}, {vr(AR+8*(h%D)+4*f)}, {cs}")
                for _ in range(2):
                    if nxt:
                        tag, txt = nxt.pop(0)
                        a(txt); lg.issue(tag)
                    if chk:
                        a(chk.pop(0))
        if h % 4 == 3 and h + 1 < 32:
            assert not chk
            check_branch(h // 4 + 1)
        for _ in range(2):
            if anext[0] < 32 and anext[0] <= h + D and "n" not in XP:
                aload(anext[0]); anext[0] += 1
    stamp(a, 8)
    a("v_and_b32 v4, 31, v2")
    a("v_lshlrev_b32 v4, 12, v4")
    a("v_lshl_add_u32 v4, v5, 4, v4")
    a("s_lshr_b32 s36, s10, 2")
    a("s_lshl_b32 s36, s36, 3")
    a("s_lshr_b32 s37, s11, 2")
    a("s_add_u32 s36, s36, s37")
    a("s_lshl_b32 s38, s41, 16")
    a("s_lshl_b32 s39, s36, 7")
    a("s_add_u32 s38, s38, s39")
    a("s_add_u32 s38, s38, 2048")
    for nb in range(2):
        for kp in range(2):
            P = 80 + 8 * nb + 4 * kp
            t0 = 16 + 16 * nb + 8 * kp
            for i in range(4):
                a(f"v_cvt_pk_bf16_f32 v{P+i}, v{t0+2*i}, v{t0+2*i+1}")
            a(f"v_permlane32_swap_b32 v{P}, v{P+2}")
            a(f"v_permlane32_swap_b32 v{P+1}, v{P+3}")
            a(f"buffer_store_dwordx4 {vr(P)}, v4, s[32:35], s38 offen offset:{64*nb+32*kp}{NTS}")
    stamp_flush(a, 9)
    a("s_endpgm")
    for g in range(8):
        retry_block(g)
    for slot in range(4):
        a.label(f"K3_event{slot}")
        a("s_add_u32 s54, s54, 1")
        a("s_cmp_lg_u32 s54, 1")
        a(f"s_cbranch_scc1 K3_ev2_{slot}")
        a(f"buffer_load_dword v195, v192, s[40:43], s44 offen{NTT}")
        a("s_mov_b32 s55, s52")
        a(f"s_branch K3_noev{slot}")
        a.label(f"K3_ev2_{slot}")
        if PREC:
            a("s_waitcnt vmcnt(0)")
        a(f"buffer_load_dword v195, v193, s[48:51], s45 offen{NTT}")
        a("s_mov_b32 s55, 1000")
        a(f"s_branch K3_noev{slot}")
        a.label(f"K3_evB{slot}")
        a(f"buffer_load_dword v195, v194, s[64:67], s68 offen{NTT}")
        a(f"buffer_load_dword v195, v194, s[64:67], s69 offen{NTT}")
        a(f"s_branch K3_noevB{slot}")
        a.label(f"K3_evC{slot}")
        a("s_add_u32 s53, s53, 1")
        a("s_cmp_lg_u32 s53, 1")
        a(f"s_cbranch_scc1 K3_ev4_{slot}")
        a("buffer_load_dword v196, v199, s[56:59], 0 offen sc1")
        a("s_mov_b32 s71, 1")
        a(f"s_branch K3_noevC{slot}")
        a.label(f"K3_ev4_{slot}")
        a("s_cmp_lg_u32 s53, 2")
        a(f"s_cbranch_scc1 K3_ev6_{slot}")
        a("s_waitcnt vmcnt(0)")
        a("v_readfirstlane_b32 s46, v196")
        a("s_mov_b64 exec, 1")
        a("s_cmp_lg_u32 s46, 0")
        a(f"s_cbranch_scc1 K3_ev5_{slot}")
        a("v_mov_b32 v196, v198")
        a("v_mov_b32 v197, 0")
        a("buffer_atomic_cmpswap v[196:197], v199, s[56:59], 0 offen sc0 sc1")
        a("s_waitcnt vmcnt(0)")
        a("v_cmp_eq_u32 vcc, 0, v196")
        a("v_cndmask_b32 v196, v196, v198, vcc")
        a.label(f"K3_ev5_{slot}")
        a("buffer_store_dword v196, v199, s[60:63], s47 offen sc1")
        a("s_mov_b64 exec, -1")
        a(f"s_mov_b32 s71, {FLAGN-F1N-1 if not POSTPRE else 1000}")
        a(f"s_branch K3_noevC{slot}")
        a.label(f"K3_ev6_{slot}")
        a("s_mov_b64 exec, 1")
        a("buffer_store_dword v196, v199, s[60:63], s47 offen offset:32 sc1")
        a("s_mov_b64 exec, -1")
        a("s_mov_b32 s71, 1000")
        a(f"s_branch K3_noevC{slot}")

    a.label("K3_L")
    a("v_lshrrev_b32 v4, 3, v2")
    a("v_and_b32 v5, 7, v2")
    for jl in range(4):
        a(f"v_add_u32 v6, {4*(jl&1)}, v14")
        a("v_xor_b32 v6, v6, v5")
        a("v_lshlrev_b32 v6, 4, v6")
        a("v_lshl_add_u32 v6, v4, 11, v6")
        a(f"v_add_u32 v{240+jl}, {jl*(16384-1024)}, v6")
    a("v_lshrrev_b32 v6, 5, v2")
    a("v_bfe_u32 v7, v2, 2, 2")
    a("v_lshl_add_u32 v6, v6, 2, v7")
    a("v_mul_u32_u24 v6, 6144, v6")
    a("v_bfe_u32 v7, v2, 4, 1")
    a("v_lshl_add_u32 v6, v7, 6, v6")
    a("v_and_b32 v7, 3, v2")
    a("v_lshl_add_u32 v6, v7, 4, v6")
    a("v_xor_b32 v7, 32, v6")
    a("s_and_b32 s40, s13, 1")
    a("s_lshl_b32 s40, s40, 7")
    a(f"s_xor_b32 s41, s40, {128 if QX else 0}")
    binst = []
    for seg in range(3):
        for gg in range(2):
            ldsoff = seg * 2048 + gg * 1024
            m0sel, ioff = ldsoff // 4096, ldsoff % 4096
            reg = 244 + seg * 2 + gg
            a(f"v_add_u32 v{reg}, {8*gg*6144 + seg*2048 - ioff}, v{6+gg}")
            a(f"v_add_u32 v{reg}, s{41 if seg == 0 else 40}, v{reg}")
            binst.append((reg, m0sel, ioff))
    a("s_lshl_b32 s38, s12, 7")
    a("s_lshl_b32 s40, s4, 5")
    a("s_add_u32 s38, s38, s40")
    a("s_lshl_b32 s38, s38, 11")
    a("s_mul_i32 s39, s4, 98304")
    a("s_lshr_b32 s40, s13, 1")
    a("s_lshl_b32 s40, s40, 8")
    a("s_add_u32 s39, s39, s40")
    a("s_lshl_b32 s41, s4, 12")
    a("s_mul_i32 s42, s4, 6144")
    a("s_add_u32 s42, s42, 16384")
    srd(a, 16, P_X, 4 * MB)
    srd(a, 20, P_W, 6 * MB)
    vm = Cnt(a, "vmcnt", 63)

    def issue(kt):
        sb = (kt % NS) * STAGE
        a(f"s_add_u32 m0, s41, {sb}")
        for jl in range(4):
            a(f"buffer_load_dwordx4 v{240+jl}, s[16:19], s38 offen offset:{jl*1024}{NTG} lds")
            vm.issue(("st", kt))
        cur = -1
        for reg, m0sel, ioff in binst:
            if m0sel != cur:
                a(f"s_add_u32 m0, s42, {sb + 4096*m0sel}")
                cur = m0sel
            a(f"buffer_load_dwordx4 v{reg}, s[20:23], s39 offen offset:{ioff}{NTG} lds")
            vm.issue(("st", kt))
        a("s_add_u32 s38, s38, 128")
        a(f"s_add_u32 s39, s39, {64*6144}")

    for kt in range(NS - 1):
        issue(kt)
    srd(a, 24, P_K, 4 * MB)
    srd(a, 28, P_V, 4 * MB)
    srd(a, 32, P_SHK, 8192)
    srd_off(a, 44, P_WS, WS_UT, 4 * MB)
    srd_off(a, 48, P_WS, WS_OF, 4 * MB)
    srd_off(a, 52, P_WS, WS_KVP, 2 * MB)
    srd_off(a, 56, P_WS, WS_ZP, 64 * 1024)
    a("s_lshl_b32 s60, s2, 2")
    a("s_add_u32 s60, s60, s4")
    a("s_and_b32 s61, s60, 15")
    a("s_lshr_b32 s60, s60, 4")
    a("s_lshl_b32 s62, s60, 16")
    a("s_lshl_b32 s63, s61, 7")
    a("s_add_u32 s62, s62, s63")
    a("v_lshlrev_b32 v21, 14, v14")
    a("v_lshl_add_u32 v21, v15, 3, v21")
    a("v_add_u32 v21, s62, v21")
    a("s_lshl_b32 s63, s61, 9")
    a("v_lshlrev_b32 v22, 5, v15")
    a("s_lshl_b32 s62, s61, 18")
    a("s_lshl_b32 s64, s60, 6")
    a("s_add_u32 s62, s62, s64")
    a("v_lshlrev_b32 v19, 14, v15")
    a("v_lshl_add_u32 v19, v14, 4, v19")
    a("s_lshl_b32 s64, s12, 3")
    a("s_lshl_b32 s65, s4, 1")
    a("s_add_u32 s64, s64, s65")
    a("s_lshl_b32 s64, s64, 15")
    a("s_lshr_b32 s65, s15, 1")
    a("s_lshl_b32 s65, s65, 11")
    a("s_add_u32 s64, s64, s65")
    a("s_add_u32 s65, s64, 32768")
    a("s_lshl_b32 s66, s5, 4")
    a("s_add_u32 s66, s66, s12")
    a("s_lshl_b32 s67, s66, 7")
    a("s_lshl_b32 s66, s66, 12")
    a("s_lshl_b32 s68, s36, 11")
    a("s_add_u32 s66, s66, s68")
    for i in range(4):
        a(f"v_mov_b32 v{160+i}, 0")
    a("v_and_b32 v18, 7, v2")
    a("v_lshlrev_b32 v18, 4, v18")
    fills = [
        f"buffer_store_dwordx4 v[160:163], v3, s[48:51], s64 offen sc1{NTF}",
        f"buffer_store_dwordx4 v[160:163], v3, s[48:51], s64 offen offset:1024 sc1{NTF}",
        f"buffer_store_dwordx4 v[160:163], v3, s[48:51], s65 offen sc1{NTF}",
        f"buffer_store_dwordx4 v[160:163], v3, s[48:51], s65 offen offset:1024 sc1{NTF}",
        f"buffer_store_dwordx4 v[160:163], v3, s[52:55], s66 offen sc1{NTF}",
        f"buffer_store_dwordx4 v[160:163], v3, s[52:55], s66 offen offset:1024 sc1{NTF}",
        f"buffer_store_dwordx4 v[160:163], v18, s[56:59], s67 offen sc1{NTF}",
    ]
    W, KF, VF, KS = 72, 88, 110, 126
    loads = []
    for i in range(2):
        loads.append([f"buffer_load_dwordx4 {vr(24+4*i)}, v22, s[32:35], s63 offen offset:{16*i}"])
    for i in range(11):
        loads.append([f"v_add_u32 v23, {((i-3)*2048) & 0xffffffff}, v21", f"buffer_load_dwordx2 {vr(32+2*i,2)}, v23, s[24:27], 0 offen{NTO}"])
    for i in range(8):
        loads.append([f"v_add_u32 v23, {i*2048}, v21", f"buffer_load_dwordx2 {vr(54+2*i,2)}, v23, s[28:31], 0 offen{NTO}"])
    comp = []
    for ci in range(4):
        comp += [f"v_lshlrev_b32 v{W+ci}, 16, v{24+2*ci}", f"v_and_b32 v{W+4+ci}, 0xffff0000, v{24+2*ci}",
                 f"v_lshlrev_b32 v{W+8+ci}, 16, v{25+2*ci}", f"v_and_b32 v{W+12+ci}, 0xffff0000, v{25+2*ci}"]
    for cp in range(2):
        for i in range(11):
            comp += [f"v_lshlrev_b32 v{KF+2*i}, 16, v{32+2*i+cp}", f"v_and_b32 v{KF+2*i+1}, 0xffff0000, v{32+2*i+cp}"]
        for i in range(8):
            comp += [f"v_lshlrev_b32 v{VF+2*i}, 16, v{54+2*i+cp}", f"v_and_b32 v{VF+2*i+1}, 0xffff0000, v{54+2*i+cp}"]
        for i in range(16):
            comp.append(f"v_mul_f32 v{KS+i}, v{KF+i}, v{W+12+2*cp+(i&1)}")
        for j in (2, 1, 0):
            for i in range(16):
                comp.append(f"v_fmac_f32 v{KS+i}, v{KF+2*(3-j)+i}, v{W+4*j+2*cp+(i&1)}")
        for i in range(16):
            comp.append(f"v_mul_f32 v{KS+i}, v{KS+i}, v{VF+i}")
        O = 144 + 8 * cp
        for e in range(2):
            for i in range(4):
                comp.append(f"v_cvt_pk_bf16_f32 v{O+4*e+i}, v{KS+4*i+e}, v{KS+4*i+2+e}")
        for i in range(8):
            comp.append(f"v_and_b32 v{O+i}, -2, v{O+i}")
        for e in range(2):
            comp.append(("st", f"buffer_store_dwordx4 {vr(O+4*e)}, v19, s[44:47], s62 offen sc1"))
            comp.append("s_add_u32 s62, s62, 4096")
    PCE = FLAGN
    NPC = PCE - (PL0 + 2)
    per = -(-len(comp) // NPC)
    a("v_lshrrev_b32 v6, 5, v2")
    a("v_bfe_u32 v7, v2, 2, 2")
    a("v_lshl_add_u32 v7, v6, 2, v7")
    a("v_lshlrev_b32 v7, 11, v7")
    a("v_bfe_u32 v8, v2, 4, 1")
    a("v_lshl_add_u32 v7, v8, 6, v7")
    a("v_and_b32 v8, 3, v2")
    a("v_lshlrev_b32 v6, 1, v6")
    a("v_xor_b32 v8, v8, v6")
    a("v_lshl_add_u32 v7, v8, 4, v7")
    for i in range(4):
        a(f"v_add_u32 v{232+i}, {i*(16384-1024)}, v7")
    a("s_lshl_b32 s69, s4, 16")
    a("s_lshr_b32 s70, s10, 2")
    a("s_lshl_b32 s70, s70, 3")
    a("s_lshr_b32 s71, s11, 2")
    a("s_add_u32 s70, s70, s71")
    a("s_lshl_b32 s70, s70, 7")
    a("s_add_u32 s69, s69, s70")
    a("s_lshl_b32 s70, s4, 12")
    a(f"s_add_u32 s70, s70, {WO_BASE}")
    a("s_lshl_b32 s71, s6, 12")
    a(f"v_mov_b32 v10, {SYNC}")
    a("v_mov_b32 v11, 1")
    a("s_lshl_b32 s43, s4, 2")
    a("v_add_u32 v9, s43, v10")

    def wo_issue(k):
        if k < 7:
            a(f"s_add_u32 m0, s70, {k*16384}")
        else:
            a("s_mov_b32 m0, s7")
        for i in range(4):
            a(f"buffer_load_dwordx4 v{232+i}, s[20:23], s69 offen offset:{i*1024}{NTG} lds")
            vm.issue("wo")
        a(f"s_add_u32 s69, s69, {128*2048}")

    def post_setup():
        a("s_lshl_b32 s16, s10, 1")
        a("s_lshr_b32 s17, s11, 4")
        a("s_add_u32 s16, s16, s17")
        a("s_and_b32 s17, s11, 15")
        a("s_lshl_b32 s17, s17, 2")
        a("s_add_u32 s17, s17, s4")
        a("s_lshr_b32 s18, s17, 4")
        a("s_and_b32 s17, s17, 15")
        a("s_lshl_b32 s19, s18, 9")
        a("s_lshl_b32 s64, s17, 2")
        a("s_add_u32 s19, s19, s64")
        a("s_lshl_b32 s64, s19, 11")
        a("s_lshl_b32 s65, s16, 7")
        a("s_add_u32 s64, s64, s65")
        a("s_lshl_b32 s72, s19, 12")
        a("s_add_u32 s72, s72, s65")
        a("s_lshl_b32 s73, s16, 18")
        a("s_lshl_b32 s65, s18, 10")
        a("s_add_u32 s73, s73, s65")
        a("s_lshl_b32 s65, s17, 6")
        a("s_add_u32 s73, s73, s65")
        a("s_add_u32 s65, s73, 4096")
        a("s_add_u32 s66, s73, 8192")
        a("s_add_u32 s67, s73, 12288")
        a("v_lshlrev_b32 v224, 12, v14")
        a("v_lshl_add_u32 v224, v15, 3, v224")
        a("v_lshlrev_b32 v225, 14, v15")
        a("v_lshl_add_u32 v225, v14, 4, v225")

    def q_loads():
        srd(a, 16, P_Q, 4 * MB)
        a("v_lshlrev_b32 v4, 11, v14")
        a("v_lshl_add_u32 v4, v15, 3, v4")
        for jj in range(8):
            a(f"buffer_load_dwordx2 {vr(QR+2*jj,2)}, v4, s[16:19], s64 offen{NTO}")
            vm.issue("q")
            a(f"s_add_u32 s64, s64, {64*2048}")

    QR = 208

    def h_issue():
        a(f"s_add_u32 m0, s7, {CV_HB}")
        for c in range(4):
            a(f"buffer_load_dwordx4 v3, s[16:19], s71 offen offset:{1024*c}{NTO} lds")
            vm.issue("h")
        a("s_lshl_b32 s43, s6, 1")
        a("v_mov_b32 v4, 0")
        a("buffer_load_ushort v164, v4, s[20:23], s43 offen")
        vm.issue("h")
        srd(a, 20, P_WO, 2 * MB)

    for kt in range(16):
        tags = [("st", kt)]
        if kt == F1N + 1:
            tags += ["fill"]
        if kt == FLAGN + 1:
            tags += ["ust"]
        vm.wait_for(tags)
        if kt == 14:
            a("s_waitcnt lgkmcnt(0)")
        a("s_barrier")
        if kt + NS - 1 < 16:
            issue(kt + NS - 1)
        for op in spf[SPF_C + kt * SPF_L: SPF_C + (kt + 1) * SPF_L]:
            a(op)
        if 0 <= kt < 7 and "f" not in XP:
            a(fills[kt]); vm.issue("fill")
        if POSTPRE and kt in (14, 15):
            for grp in (loads[:13] if kt == 14 else loads[13:]):
                for op in grp:
                    a(op)
                vm.issue("pre")
        if kt in (PL0, PL0 + 1) and "l" not in XP and not POSTPRE and not PREC:
            part = loads[:11] if kt == PL0 else loads[11:]
            for grp in part:
                for op in grp:
                    a(op)
                vm.issue("pre")
        if kt == 13:
            post_setup()
            srd(a, 16, P_H, 4 * MB)
            srd(a, 20, P_D, 2048)
            a("v_mov_b32 v4, 0")
            a("v_lshlrev_b32 v5, 2, v2")
            a(f"v_add_u32 v6, {SYNC}, v5")
            a("ds_write_b32 v6, v4")
            a("v_add_u32 v6, s7, v5")
            a(f"ds_write_b32 v6, v4 offset:{CV_UB-256}")
            a("v_and_b32 v6, 7, v2")
            a("v_lshlrev_b32 v6, 2, v6")
            a("v_add_u32 v6, s7, v6")
            a("ds_write_b32 v6, v4")
            h_issue()
            if QEARLY:
                q_loads()
        if PL0 + 2 <= kt < PCE and not POSTPRE and not PREC:
            if kt == PL0 + 2:
                vm.wait_for(["pre"])
            for op in comp[:per]:
                if "c" in XP and not isinstance(op, tuple):
                    continue
                if isinstance(op, tuple):
                    a(op[1]); vm.issue("ust")
                else:
                    a(op)
            comp = comp[per:]
        if kt == 14 and EARLYWO >= 2:
            wo_issue(0); wo_issue(1)
        if kt == 15 and EARLYWO >= 4:
            wo_issue(2); wo_issue(3)
    assert POSTPRE or PREC or not comp
    a("s_barrier")
    stamp(a, 1)
    if POSTPRE:
        vm.wait_for(["pre"])
        for ci in range(4):
            a(f"v_lshlrev_b32 v{W+ci}, 16, v{24+2*ci}")
            a(f"v_and_b32 v{W+4+ci}, 0xffff0000, v{24+2*ci}")
            a(f"v_lshlrev_b32 v{W+8+ci}, 16, v{25+2*ci}")
            a(f"v_and_b32 v{W+12+ci}, 0xffff0000, v{25+2*ci}")
        for cp in range(2):
            for i in range(11):
                a(f"v_lshlrev_b32 v{KF+2*i}, 16, v{32+2*i+cp}")
                a(f"v_and_b32 v{KF+2*i+1}, 0xffff0000, v{32+2*i+cp}")
            for i in range(8):
                a(f"v_lshlrev_b32 v{VF+2*i}, 16, v{54+2*i+cp}")
                a(f"v_and_b32 v{VF+2*i+1}, 0xffff0000, v{54+2*i+cp}")
            for i in range(8):
                a(f"v_pk_mul_f32 {vr(KS+2*i,2)}, {vr(KF+2*i,2)}, {vr(W+12+2*cp,2)}")
            for j in (2, 1, 0):
                for i in range(8):
                    a(f"v_pk_fma_f32 {vr(KS+2*i,2)}, {vr(KF+2*(i+3-j),2)}, {vr(W+4*j+2*cp,2)}, {vr(KS+2*i,2)}")
            for i in range(8):
                a(f"v_pk_mul_f32 {vr(KS+2*i,2)}, {vr(KS+2*i,2)}, {vr(VF+2*i,2)}")
            O = 144 + 8 * cp
            for e in range(2):
                for i in range(4):
                    a(f"v_cvt_pk_bf16_f32 v{O+4*e+i}, v{KS+4*i+e}, v{KS+4*i+2+e}")
            for i in range(8):
                a(f"v_and_b32 v{O+i}, -2, v{O+i}")
            for e in range(2):
                a(f"buffer_store_dwordx4 {vr(O+4*e)}, v19, s[44:47], s62 offen sc1")
                a("s_add_u32 s62, s62, 4096")
    srd(a, 24, P_DBG, 256)
    srd(a, 32, P_OUT, 8 * MB)
    a("s_mov_b32 s40, 0")
    a("s_mov_b32 s42, 0")
    a("v_lshrrev_b32 v5, 1, v2")
    a("v_lshlrev_b32 v5, 7, v5")
    a("v_and_b32 v4, 1, v2")
    a("v_lshl_add_u32 v5, v4, 4, v5")
    a("v_mov_b32 v4, 0")
    a("buffer_load_dword v226, v4, s[24:27], 0 offen sc1")
    srd_off(a, 24, P_WS, WS_FLAG, 4096)
    a("v_lshlrev_b32 v6, 7, v15")
    a("v_lshl_add_u32 v6, v14, 4, v6")
    a("s_lshl_b32 s60, s15, 11")
    a("s_lshl_b32 s61, s15, 16")
    a("s_lshl_b32 s62, s36, 11")
    a("s_add_u32 s61, s61, s62")

    def flagcmp(r):
        for i in range(4):
            a(f"v_xor_b32 v{r+i}, v{r+i}, v226")
        a(f"v_or3_b32 v{r}, v{r}, v{r+1}, v{r+2}")
        a(f"v_or_b32 v{r}, v{r}, v{r+3}")
        a(f"v_cmp_ne_u32 vcc, 0, v{r}")

    def u_block(ret):
        a(f"s_add_u32 m0, s7, {CV_UB}")
        for c in range(4):
            a(f"buffer_load_dwordx4 v3, s[44:47], s71 offen offset:{1024*c} sc1 lds")
        a("s_mov_b32 s42, 1")
        a("s_waitcnt vmcnt(0) lgkmcnt(0)")
        lds_signal(a, 9, S_HU, 11)
        stamp(a, 3)
    a(f"s_mov_b32 s43, {RETRY_MAX}")
    a.label("K3_fp")
    a(f"buffer_load_dwordx4 {vr(24)}, v5, s[24:27], 0 offen sc1")
    a(f"buffer_load_dwordx4 {vr(28)}, v5, s[24:27], 0 offen offset:32 sc1")
    a("s_waitcnt vmcnt(0)")
    vm.q = []
    flagcmp(24)
    a("s_sub_u32 s43, s43, 1")
    a("s_cbranch_scc1 K3_fp_ok")
    a("s_cmp_eq_u64 vcc, 0")
    a("s_cbranch_scc1 K3_fp_ok")
    a("s_add_u32 s75, s75, 1")
    a("s_sleep 8")
    a("s_branch K3_fp")
    a.label("K3_fp_ok")
    if POSTPRE:
        a("s_mov_b64 exec, 1")
        a(f"ds_add_rtn_u32 v7, v10, v11 offset:{S_GO}")
        a("s_waitcnt lgkmcnt(0)")
        a("v_readfirstlane_b32 s43, v7")
        a("s_lshl_b32 s62, s11, 7")
        a("s_lshl_b32 s63, s10, 2")
        a("s_add_u32 s62, s62, s63")
        a("s_cmp_lg_u32 s43, 3")
        a("s_cbranch_scc1 K3_nof2")
        a("buffer_store_dword v226, v4, s[24:27], s62 offen offset:32 sc1")
        a.label("K3_nof2")
        a("s_mov_b64 exec, -1")
    stamp(a, 2)
    a("v_mov_b32 v4, s7")
    a(f"ds_read_u16 v7, v4 offset:{CV_HB}")
    a("v_lshlrev_b32 v164, 16, v164")
    a("s_waitcnt lgkmcnt(0)")
    a("v_lshlrev_b32 v7, 16, v7")
    a("v_add_f32 v7, v7, v164")
    a("v_cvt_pk_bf16_f32 v7, v7, v7")
    a(f"ds_write_b16 v4, v7 offset:{CV_HB}")
    flagcmp(28)
    a("s_cmp_lg_u64 vcc, 0")
    a("s_cbranch_scc1 K3_nou0")
    u_block(0)
    a.label("K3_nou0")
    if WAITKV:
        lds_wait(a, "K3_wkvs", 10, S_KVS, 2, 16, 62, sleep=1)
    for k in range(EARLYWO, 6):
        wo_issue(k)
    a(f"s_mov_b32 s43, {RETRY_MAX}")
    a.label("K3_zp")
    for dt in range(2):
        a(f"buffer_load_dwordx4 {vr(32+4*dt)}, v6, s[56:59], s60 offen offset:{64*dt} sc1")
    a("s_cmp_lg_u32 s42, 0")
    a("s_cbranch_scc1 K3_zp_nf")
    a(f"buffer_load_dwordx4 {vr(28)}, v5, s[24:27], 0 offen offset:32 sc1")
    a("s_waitcnt vmcnt(0)")
    flagcmp(28)
    a("s_cmp_lg_u64 vcc, 0")
    a("s_cbranch_scc1 K3_zp_nf")
    u_block(1)
    a.label("K3_zp_nf")
    a(f"ds_read_b32 v17, v9 offset:{S_CD}")
    a("s_waitcnt vmcnt(0) lgkmcnt(0)")
    vm.q = []
    and_reduce(a, 16, range(32, 40))
    a("v_readfirstlane_b32 s41, v17")
    a("v_cmp_eq_u32 vcc, 0, v16")
    a("s_sub_u32 s43, s43, 1")
    a("s_cbranch_scc1 K3_zp_ok")
    a("s_cmp_eq_u64 vcc, 0")
    a("s_cbranch_scc1 K3_zp_ok")
    a("s_cmp_lg_u32 s40, 0")
    a("s_cbranch_scc1 K3_zp_s2")
    if QEARLY:
        a("s_cmp_lg_u32 s41, 0")
        a("s_cbranch_scc1 K3_post")
    a.label("K3_zp_s2")
    a(f"s_sleep {ZSLEEP}")
    a("s_branch K3_zp")
    a.label("K3_zp_ok")
    stamp(a, 4)
    a("s_setprio 2")
    a(f"s_mov_b32 s43, {RETRY_MAX}")
    a("s_mov_b32 s62, s61")
    for p in range(16):
        for dt in range(2):
            a(f"buffer_load_dwordx4 {vr(64+8*p+4*dt)}, v3, s[52:55], s62 offen offset:{1024*dt}{GSC}")
            vm.issue(("kv", p))
        a("s_add_u32 s62, s62, 4096")
    if not QEARLY:
        q_loads()
    a.label("K3_gl")
    for i in range(8):
        a(f"v_add_f32_dpp v{40+i}, v{32+i}, v{32+i} row_ror:8 {DPP}")
    for sh in (4, 2, 1):
        for i in range(8):
            a(f"v_add_f32_dpp v{40+i}, v{40+i}, v{40+i} row_ror:{sh} {DPP}")
    for i in range(4):
        a(f"v_cvt_pk_bf16_f32 v{48+i}, v{40+2*i}, v{41+2*i}")
    a("v_mov_b32 v16, 1")
    for p in range(16):
        vm.wait_for([("kv", p)])
        r = 64 + 8 * p
        for i in range(0, 8, 2):
            a(f"v_bitop3_b32 v16, v16, v{r+i}, v{r+i+1} bitop3:0x80")
        if p >= 1:
            for i in range(8):
                a(f"v_add_f32 v{64+i}, v{64+i}, v{r+i}")
    a("v_cmp_eq_u32 vcc, 0, v16")
    a("s_sub_u32 s43, s43, 1")
    a("s_cbranch_scc1 K3_gl_ok")
    a("s_cmp_eq_u64 vcc, 0")
    a("s_cbranch_scc1 K3_gl_ok")
    a("s_add_u32 s75, s75, 1")
    a("s_sleep 4")
    a("s_mov_b32 s62, s61")
    for p in range(16):
        for dt in range(2):
            a(f"buffer_load_dwordx4 {vr(64+8*p+4*dt)}, v3, s[52:55], s62 offen offset:{1024*dt} sc1")
        a("s_add_u32 s62, s62, 4096")
    a("s_waitcnt vmcnt(0)")
    a("s_branch K3_gl")
    a.label("K3_gl_ok")
    for i in range(4):
        a(f"v_cvt_pk_bf16_f32 v{40+i}, v{64+2*i}, v{65+2*i}")
    a("s_lshl_b32 s43, s4, 10")
    a(f"s_add_u32 s43, s43, {KVT}")
    a("v_add_u32 v5, s43, v3")
    a(f"ds_write_b128 v5, {vr(40)}")
    a("s_lshl_b32 s43, s37, 2")
    a("v_add_u32 v7, s43, v10")
    a("s_lshl_b32 s43, s37, 11")
    a(f"s_add_u32 s43, s43, {KVT}")
    a("v_add_u32 v5, s43, v3")
    a("s_lshl_b32 s43, s4, 12")
    a(f"s_add_u32 s43, s43, {PQ_BASE}")
    a("v_add_u32 v8, s43, v3")
    a("s_waitcnt lgkmcnt(0)")
    lds_signal(a, 7, S_KVT, 11)
    lds_wait(a, "K3_wpq", 9, S_PQ, 1, 16, 60)
    for mt in range(4):
        a(f"ds_read_b128 {vr(16+4*mt)}, v8 offset:{1024*mt}")
    lds_wait(a, "K3_wkt", 7, S_KVT, 2, 52, 60)
    a(f"ds_read_b128 {vr(40)}, v5")
    a(f"ds_read_b128 {vr(44)}, v5 offset:1024")
    a("s_waitcnt lgkmcnt(0)")
    stamp(a, 5)
    for mt in range(4):
        b = 64 + 12 * mt
        mfma16(a, b + 8, 48, 16 + 4 * mt, "0")
        mfma16(a, b, 40, 16 + 4 * mt, "0")
        mfma16(a, b + 4, 44, 16 + 4 * mt, "0")
    a("s_lshl_b32 s60, s12, 3")
    a("s_lshl_b32 s61, s36, 2")
    a("s_add_u32 s60, s60, s61")
    a("s_lshl_b32 s60, s60, 5")
    a("s_add_u32 s60, s60, s15")
    a("s_lshl_b32 s60, s60, 10")
    a(f"s_mov_b32 s61, {EPS}")
    for mt in range(4):
        a(f"v_add_f32 v{112+mt}, s61, v{64+12*mt+8}")
        a(f"v_rcp_f32 v{112+mt}, v{112+mt}")
    for mt in range(4):
        b = 64 + 12 * mt
        for i in range(8):
            a(f"v_mul_f32 v{b+i}, v{b+i}, v{112+mt}")
        for i in range(4):
            a(f"v_cvt_pk_bf16_f32 v{120+4*mt+i}, v{b+2*i}, v{b+2*i+1}")
        for i in range(4):
            a(f"v_or_b32 v{120+4*mt+i}, 1, v{120+4*mt+i}")
        a(f"buffer_store_dwordx4 {vr(120+4*mt)}, v3, s[48:51], s60 offen sc1")
        a("s_add_u32 s60, s60, 32768")
    a("s_setprio 0")
    stamp(a, 6)
    a(f"s_mov_b32 s43, {RETRY_MAX}")
    a("v_lshrrev_b32 v5, 1, v2")
    a("v_lshlrev_b32 v5, 7, v5")
    a("v_and_b32 v4, 1, v2")
    a("v_lshl_add_u32 v5, v4, 4, v5")
    a.label("K3_ul")
    a("s_cmp_lg_u32 s42, 0")
    a("s_cbranch_scc1 K3_ul_done")
    a(f"buffer_load_dwordx4 {vr(28)}, v5, s[24:27], 0 offen offset:32 sc1")
    a("s_waitcnt vmcnt(0)")
    flagcmp(28)
    a("s_sub_u32 s43, s43, 1")
    a("s_cbranch_scc1 K3_ul_go")
    a("s_cmp_eq_u64 vcc, 0")
    a("s_cbranch_scc1 K3_ul_go")
    a("s_sleep 4")
    a("s_branch K3_ul")
    a.label("K3_ul_go")
    u_block(2)
    a.label("K3_ul_done")
    a("s_and_b32 s60, s10, 3")
    a("s_lshl_b32 s60, s60, 2")
    a("s_and_b32 s61, s11, 3")
    a("s_add_u32 s60, s60, s61")
    a("s_lshl_b32 s60, s60, 18")
    a("s_lshr_b32 s61, s11, 2")
    a("s_lshl_b32 s61, s61, 2")
    a("s_add_u32 s61, s61, s4")
    a("s_lshl_b32 s61, s61, 13")
    a("s_add_u32 s63, s60, s61")
    a("v_lshlrev_b32 v8, 7, v2")
    wo_issue(6)
    lds_wait(a, "K3_wcd", 9, S_CD, 1, 16, 60, sleep=1)
    wo_issue(7)
    a("s_waitcnt vmcnt(8)")
    if ATOUCH > 1:
        a(f"s_sleep {ATOUCH}")
    a("buffer_load_dword v60, v8, s[48:51], s63 offen")
    a("s_waitcnt vmcnt(0)")
    lds_signal(a, 10, S_WOM, 11)
    vm.q = []
    stamp(a, 7)
    a("s_cmp_eq_u32 s40, 1")
    a("s_cbranch_scc1 K3_fin")
    a("s_mov_b32 s40, 2")
    a(f"s_mov_b32 s43, {RETRY_MAX}")
    a.label("K3_post")
    for ci, sr in enumerate((73, 65, 66, 67)):
        a(f"buffer_load_dwordx4 {vr(16+4*ci)}, v225, s[44:47], s{sr} offen sc1")
    a("s_waitcnt vmcnt(0)")
    and_reduce(a, 48, range(16, 32))
    a("v_cmp_eq_u32 vcc, 0, v48")
    a("s_cmp_eq_u64 vcc, 0")
    a("s_cbranch_scc1 K3_yok")
    a("s_add_u32 s75, s75, 1")
    a("s_cmp_eq_u32 s40, 0")
    a("s_cbranch_scc1 K3_zp_s2")
    if PREPOST:
        a("s_cmp_eq_u32 s40, 3")
        a("s_cbranch_scc1 K3_pw")
    a("s_sub_u32 s43, s43, 1")
    a("s_cbranch_scc1 K3_yok")
    a("s_sleep 8")
    a("s_branch K3_post")
    a.label("K3_yok")
    stamp(a, 8)
    for jj in range(8):
        T = 48 + 8 * (jj & 1)
        for ci in range(4):
            if jj & 1:
                a(f"v_and_b32 v{T+ci}, 0xffff0000, v{16+4*ci+jj//2}")
            else:
                a(f"v_lshlrev_b32 v{T+ci}, 16, v{16+4*ci+jj//2}")
        for cp in range(2):
            a(f"v_lshlrev_b32 v{T+4+2*cp}, 16, v{QR+2*jj+cp}")
            a(f"v_and_b32 v{T+5+2*cp}, 0xffff0000, v{QR+2*jj+cp}")
        for ci in range(4):
            a(f"v_mul_f32 v{T+ci}, v{T+ci}, v{T+4+ci}")
        O = 64 + 2 * jj
        for cp in range(2):
            a(f"v_cvt_pk_bf16_f32 v{O+cp}, v{T+2*cp}, v{T+2*cp+1}")
        a(f"buffer_store_dwordx2 {vr(O,2)}, v224, s[32:35], s72 offen{NTS}")
        a(f"s_add_u32 s72, s72, {64*4096}")
    a("s_mov_b32 s41, s40")
    a("s_mov_b32 s40, 1")
    a("s_cmp_eq_u32 s41, 0")
    a("s_cbranch_scc1 K3_zp")
    if PREPOST:
        a("s_cmp_eq_u32 s41, 3")
        a("s_cbranch_scc1 K3_pw")
    a.label("K3_fin")
    stamp_flush(a, 9)
    a.label("K3_end")
    a("s_endpgm")
    return a.finalize(), 252
```

```python
import os
from asmlib import *
from common import prepass, k2_prefetch_setup, MB, vr, mfma16, phi8, unpack4, env, LOG2E, EPS, WS_KVP, WS_ZP, WS_FLAG, WS_UT, WS_DBG, STAMP

WS_OF = 0
NS = 4
STAGE = 40960
K3_LDS = NS * STAGE
CV_REG = 8704
CV_HB = 32
CV_UB = 4384
KVT = 4 * CV_REG
ZFR = KVT + 4096
SYNC = ZFR + 256
WO_BASE = 40960
PQ_BASE = WO_BASE + 24 * 4096
XCH = WO_BASE + 28 * 4096
XCZ = SYNC + 256
S_KVS = 84
S_X, S_HU, S_PQ, S_KVT, S_WOM, S_WOT, S_CD, S_GO, S_NONCE, S_WO2 = 0, 8, 24, 40, 48, 52, 56, 72, 76, 80
SPIN_MAX = 1 << 17
RETRY_MAX = 4000
DPP = "row_mask:0xf bank_mask:0xf"
DUTY0 = env("DUTY0", 0)
NDUTY = env("NDUTY", 4)
E2_0 = env("E2_0", 4)
E2_N = env("E2_N", 4)
E3_0 = env("E3_0", 8)
E3_N = env("E3_N", 4)
F1N = env("F1N", 9)
FLAGN = env("FLAGN", 10)
PL0 = env("PL0", 4)
SPF_C = env("SPF_C", 0)
SPF_L = env("SPF_L", 0)
ADEPTH = env("ADEPTH", 16)
YDELAY = env("YDELAY", 8)
ZSLEEP = env("ZSLEEP", 10)
ATOUCH = env("ATOUCH", 1)
XP = env("XP", "23")
LATE = env("LATE", 1)
PREPOST = env("PREPOST", 0)
EARLYWO = env("EARLYWO", 4)
WAITKV = env("WAITKV", 1)
GSC = env("GSC", "")
QX = env("QX", 1)
PREC = env("PREC", 0)
DBGOUT = env("DBGOUT", 0)
NTF = " nt" if env("NTF", 0) else ""
NTG = " nt" if env("NTG", 0) else ""
NTO = " nt" if env("NTO", 1) else ""
NTT = " nt" if env("NTT", 0) else ""
NTS = " nt" if env("NTS", 1) else ""
E3W = env("E3W", 1)
QEARLY = env("QEARLY", 0)
POSTPRE = env("POSTPRE", 0)
ASC = env("ASC", "")
P_Q, P_K, P_V, P_SHK, P_H, P_D, P_X, P_W, P_WO, P_OUT, P_DBG, P_WS = [76 + 2 * i for i in range(12)]
SV = 231


def stamp(a, i):
    if STAMP:
        a("s_memrealtime s[100:101]")
        a("s_waitcnt lgkmcnt(0)")
        a(f"v_writelane_b32 v{SV}, s100, {i}")


def stamp_flush(a, n):
    if not STAMP:
        return
    a("s_mov_b64 exec, -1")
    a("s_waitcnt vmcnt(0)")
    stamp(a, n)
    a(f"v_writelane_b32 v{SV}, s75, 15")
    if DBGOUT:
        lab = "K3_dbg%d" % len(a.ins)
        a(f"s_cmp_lg_u32 s2, {DBGOUT-1}")
        a(f"s_cbranch_scc1 {lab}")
        a("s_cmp_lg_u32 s4, 0")
        a(f"s_cbranch_scc1 {lab}")
        srd(a, 16, P_DBG, 256)
        a(f"v_readlane_b32 s20, v{SV}, 0")
        a("s_lshr_b32 s21, s3, 1")
        a("v_lshlrev_b32 v0, 2, v2")
        a(f"v_subrev_u32 v1, s20, v{SV}")
        a("s_mov_b64 exec, 0x3fe")
        a("buffer_store_short v1, v0, s[16:19], s21 offen")
        a("s_mov_b64 exec, -1")
        a.label(lab)
    srd_off(a, 16, P_WS, WS_DBG, 4 * MB)
    a("s_add_u32 s20, s2, 512")
    a("s_lshl_b32 s20, s20, 4")
    a("s_add_u32 s20, s20, s3")
    a("s_lshl_b32 s20, s20, 6")
    a("v_lshlrev_b32 v0, 2, v2")
    a("s_mov_b64 exec, 0xffff")
    a(f"buffer_store_dword v{SV}, v0, s[16:19], s20 offen")


def lds_wait(a, name, vaddr, off, val, vtmp, stmp, sleep=0):
    a(f"s_mov_b32 s{stmp+1}, {SPIN_MAX}")
    a.label(name)
    if sleep:
        a(f"s_sleep {sleep}")
    a(f"ds_read_b32 v{vtmp}, v{vaddr} offset:{off}")
    a("s_waitcnt lgkmcnt(0)")
    a(f"v_readfirstlane_b32 s{stmp}, v{vtmp}")
    a(f"s_sub_u32 s{stmp+1}, s{stmp+1}, 1")
    a(f"s_cbranch_scc1 {name}_ok")
    a(f"s_cmp_lt_u32 s{stmp}, {val}")
    a(f"s_cbranch_scc1 {name}")
    a.label(name + "_ok")


def lds_signal(a, vaddr, off, vone):
    a("s_mov_b64 exec, 1")
    a(f"ds_add_u32 v{vaddr}, v{vone} offset:{off}")
    a("s_mov_b64 exec, -1")


def and_reduce(a, dst, regs):
    regs = list(regs)
    a(f"v_bitop3_b32 v{dst}, v{regs[0]}, v{regs[1]}, 1 bitop3:0x80")
    i = 2
    while i + 1 < len(regs):
        a(f"v_bitop3_b32 v{dst}, v{dst}, v{regs[i]}, v{regs[i+1]} bitop3:0x80")
        i += 2
    if i < len(regs):
        a(f"v_and_b32 v{dst}, v{dst}, v{regs[i]}")


def gen_k3():
    a = Asm()
    a("s_cmp_ge_u32 s2, 256")
    a("s_cbranch_scc1 K3_end")
    a("s_load_dwordx8 s[84:91], s[0:1], 32")
    a("s_load_dwordx8 s[92:99], s[0:1], 64")
    a("s_load_dwordx8 s[76:83], s[0:1], 0")
    a("v_lshrrev_b32 v1, 6, v0")
    a("v_and_b32 v2, 63, v0")
    a("s_and_b32 s10, s2, 7")
    a("v_readfirstlane_b32 s3, v1")
    a("s_lshr_b32 s11, s2, 3")
    a("s_and_b32 s12, s10, 1")
    a("s_lshl_b32 s12, s12, 3")
    a("s_and_b32 s13, s11, 7")
    a("s_add_u32 s12, s12, s13")
    a("s_lshr_b32 s13, s10, 1")
    a("s_lshl_b32 s13, s13, 2")
    a("s_lshr_b32 s14, s11, 3")
    a("s_add_u32 s13, s13, s14")
    a("s_mov_b32 s75, 0")
    a("s_and_b32 s4, s3, 3")
    a("s_and_b32 s36, s3, 1")
    a("s_bfe_u32 s37, s3, 0x10001")
    a("s_lshl_b32 s5, s13, 1")
    a("s_add_u32 s5, s5, s37")
    a(f"s_xor_b32 s15, s5, {2 if QX else 0}")
    a("s_lshl_b32 s6, s10, 7")
    a("s_lshl_b32 s7, s11, 2")
    a("s_add_u32 s6, s6, s7")
    a("s_add_u32 s6, s6, s4")
    a(f"s_mul_i32 s7, s4, {CV_REG}")
    a("v_lshlrev_b32 v3, 4, v2")
    a("v_lshrrev_b32 v14, 4, v2")
    a("v_and_b32 v15, 15, v2")
    a("s_waitcnt lgkmcnt(0)")
    stamp(a, 0)
    spf = []
    a("s_cmp_ge_u32 s3, 4")
    a("s_cbranch_scc1 K3_L")

    a("s_cmp_lg_u32 s3, 0")
    a("s_cbranch_scc1 K3_pfw")
    srd(a, 40, P_X, 4 * MB)
    a("v_lshrrev_b32 v192, 3, v2")
    a("v_lshlrev_b32 v192, 11, v192")
    a("v_and_b32 v16, 7, v2")
    a("v_lshl_add_u32 v192, v16, 7, v192")
    a("s_lshl_b32 s45, s2, 14")
    a("s_add_u32 s44, s45, 1024")
    a("s_branch K3_pfd")
    a.label("K3_pfw")
    srd(a, 40, P_W, 6 * MB)
    a("v_lshlrev_b32 v192, 7, v2")
    a("s_mul_i32 s45, s2, 12288")
    a("s_sub_u32 s44, s3, 1")
    a("s_lshl_b32 s44, s44, 12")
    a("s_add_u32 s45, s45, s44")
    a(f"s_add_u32 s44, s45, {3*MB}")
    a("s_cmp_eq_u32 s3, 3")
    a(f"s_cselect_b32 s45, {8*MB}, s45")
    a(f"s_cselect_b32 s44, {8*MB}, s44")
    a.label("K3_pfd")
    if "1" in XP:
        a(f"s_mov_b32 s45, {16*MB}")
        a(f"s_mov_b32 s44, {16*MB}")
    a(f"buffer_load_dword v195, v192, s[40:43], s45 offen{NTT}")
    srd(a, 56, P_DBG, 256)
    srd_off(a, 60, P_WS, WS_FLAG, 4096)
    a("s_memrealtime s[16:17]")
    a("v_mov_b32 v199, 0")
    a("s_waitcnt lgkmcnt(0)")
    a("s_or_b32 s16, s16, 1")
    a("v_mov_b32 v198, s16")
    a("s_cmp_lg_u32 s3, 3")
    a("s_cbranch_scc1 K3_noseed")
    a("s_cmp_lg_u32 s11, 0")
    a("s_cbranch_scc1 K3_noseed")
    a("v_mov_b32 v196, s16")
    a("v_mov_b32 v197, 0")
    a("s_mov_b64 exec, 1")
    a("buffer_atomic_cmpswap v[196:197], v199, s[56:59], 0 offen sc1")
    a("s_mov_b64 exec, -1")
    a.label("K3_noseed")
    a("s_lshl_b32 s46, s11, 7")
    a("s_lshl_b32 s47, s10, 2")
    a("s_add_u32 s47, s47, s46")
    if PREC:
        pre_compute = prepass(a, 3, P_K, P_V, P_SHK, " sc1", P_WS, NTO)
    a("s_cmp_ge_u32 s3, 2")
    a(f"s_cselect_b32 s48, s{P_V}, s{P_K}")
    a(f"s_cselect_b32 s49, s{P_V+1}, s{P_K+1}")
    a(f"s_mov_b32 s50, {4*MB}")
    a("s_mov_b32 s51, 0x20000")
    a("v_lshrrev_b32 v193, 2, v2")
    a("v_lshlrev_b32 v193, 11, v193")
    a("v_and_b32 v16, 3, v2")
    a("v_lshl_add_u32 v193, v16, 7, v193")
    a("s_lshr_b32 s45, s2, 2")
    a("s_lshl_b32 s45, s45, 16")
    a("s_lshl_b32 s46, s36, 15")
    a("s_add_u32 s45, s45, s46")
    a("s_and_b32 s46, s2, 3")
    a("s_lshl_b32 s46, s46, 9")
    a("s_add_u32 s45, s45, s46")
    if "2" in XP:
        a(f"s_mov_b32 s45, {16*MB}")
    a("v_mov_b32 v200, v15")
    for part in range(4):
        if part < 3:
            a(f"s_cmp_lg_u32 s3, {part}")
            a(f"s_cbranch_scc1 K3_e3_{part+1}")
        k2_prefetch_setup(a, part, 194, 64, 68, P_H, P_Q, P_WO)
        if part < 3:
            a("s_branch K3_e3_done")
            a.label(f"K3_e3_{part+1}")
    a.label("K3_e3_done")
    a("v_mov_b32 v15, v200")
    a(f"s_and_b32 s55, s11, {NDUTY-1}")
    a(f"s_add_u32 s55, s55, {DUTY0}")
    a(f"s_and_b32 s52, s11, {E2_N-1}")
    a(f"s_add_u32 s52, s52, {E2_0}")
    a("s_sub_u32 s52, s52, s55")
    a("s_sub_u32 s52, s52, 1")
    a("s_mov_b32 s54, 0")
    a("s_lshr_b32 s70, s11, 2")
    a(f"s_and_b32 s70, s70, {E3_N-1}")
    a(f"s_add_u32 s70, s70, {E3_0 if '3' not in XP else 1000}")
    if E3W:
        a("s_cmp_lt_u32 s3, 2")
        a("s_cselect_b32 s70, 1000, s70")
    a("s_cmp_eq_u32 s3, 3")
    a(f"s_cselect_b32 s71, {F1N-2}, 1000")
    a("s_mov_b32 s53, 0")
    if PREC:
        pre_compute()
    a("s_lshl_b32 s38, s36, 6")
    a("v_add_u32 v16, s38, v15")
    a("v_lshrrev_b32 v17, 1, v15")
    a("v_lshlrev_b32 v16, 7, v16")
    a("v_xor_b32 v17, v14, v17")
    a("v_lshl_add_u32 v4, v17, 4, v16")
    a("v_xor_b32 v5, 64, v4")
    a(f"v_add_u32 v6, {2*STAGE}, v4")
    a(f"v_add_u32 v7, {2*STAGE}, v5")
    a("v_bfe_u32 v17, v2, 2, 2")
    a("v_and_b32 v18, 3, v2")
    a("v_lshlrev_b32 v17, 6, v17")
    a("v_lshl_add_u32 v17, v18, 3, v17")
    a("v_and_b32 v18, 1, v14")
    a("v_lshl_add_u32 v17, v18, 10, v17")
    a("v_lshl_add_u32 v17, v18, 5, v17")
    a("v_lshrrev_b32 v18, 1, v14")
    a("v_mul_u32_u24 v18, 6144, v18")
    a("v_add_u32 v17, v17, v18")
    a("s_lshl_b32 s38, s37, 8")
    a("s_add_u32 s38, s38, 16384")
    a("v_add_u32 v8, s38, v17")
    a("v_xor_b32 v9, 32, v8")
    a(f"v_add_u32 v10, {2*STAGE}, v8")
    a(f"v_add_u32 v11, {2*STAGE}, v9")
    SB = [16, 56]

    def accr(kind, mt, dt):
        return 96 + 32 * kind + (mt * 2 + dt) * 4

    for i in range(96, 192):
        a(f"v_mov_b32 v{i}, 0")
    for op in spf[:SPF_C]:
        a(op)
    a("s_waitcnt lgkmcnt(0)")
    srd_off(a, 28, P_WS, WS_KVP, 2 * MB)
    srd_off(a, 32, P_WS, WS_ZP, 64 * 1024)
    lg = Cnt(a, "lgkmcnt", 15)

    def reads(slot, t, st):
        sb = (slot & 1) * STAGE
        va = 4 + t + (2 if slot >= 2 else 0)
        vb = 10 if slot >= 2 else 8
        R = SB[st]

        def A(mt):
            return [(("A", mt, st), f"ds_read_b128 {vr(R+4*mt)}, v{va} offset:{sb + 2048*mt}")]

        def B(cb):
            seg, nh = cb // 2, cb % 2
            return [(("B", cb, st), f"ds_read_b64_tr_b16 {vr(R+16+4*cb+2*h,2)}, v{vb+nh} offset:{sb + t*12288 + seg*2048 + 512*h}") for h in range(2)]
        return A(0) + B(0) + A(1) + A(2) + A(3) + B(1) + B(2) + B(3) + B(4) + B(5)

    def group(st, nxt):
        R = SB[st]
        nxt = list(nxt)
        for cb in range(6):
            kind, dt = cb // 2, cb % 2
            for mt in range(4):
                lg.wait_for([("A", mt, st), ("B", cb, st)])
                fa, fb = R + 4 * mt, R + 16 + 4 * cb
                if kind == 0:
                    mfma16(a, accr(0, mt, dt), fb, fa)
                else:
                    mfma16(a, accr(kind, mt, dt), fa, fb)
                if nxt:
                    tag, txt = nxt.pop(0)
                    a(txt)
                    lg.issue(tag)

    a("s_barrier")
    stamp(a, 1)
    for tag, txt in reads(0, 0, 0):
        a(txt)
        lg.issue(tag)
    lg.drain()
    a("s_mov_b32 s39, 4")
    a.label("K3_loop")
    for slot in range(4):
        group(0, reads(slot, 1, 1))
        lg.drain()
        a("s_barrier")
        a("s_sub_u32 s55, s55, 1")
        a(f"s_cbranch_scc1 K3_event{slot}")
        a.label(f"K3_noev{slot}")
        a("s_sub_u32 s70, s70, 1")
        a(f"s_cbranch_scc1 K3_evB{slot}")
        a.label(f"K3_noevB{slot}")
        a("s_sub_u32 s71, s71, 1")
        a(f"s_cbranch_scc1 K3_evC{slot}")
        a.label(f"K3_noevC{slot}")
        group(1, reads((slot + 1) % 4, 0, 0))
        if slot == 3:
            a("s_sub_u32 s39, s39, 1")
            a("s_cmp_lg_u32 s39, 0")
            lg.drain()
    a("s_cbranch_scc1 K3_loop")
    stamp(a, 2)

    a(f"s_mov_b32 s44, {LOG2E}")
    a(f"s_mov_b32 s45, {LOG2E}")
    a(f"s_mov_b32 s46, {EPS}")
    a(f"s_mov_b32 s47, {EPS}")
    a(f"v_mov_b32 v10, {SYNC}")
    a("v_mov_b32 v11, 1")
    for et in range(2):
        for m in range(2):
            d = 16 + 4 * (2 * et + m)
            for hh in range(2):
                s = accr(2, 2 * m + hh, et)
                a(f"v_cvt_pk_bf16_f32 v{d+2*hh}, v{s}, v{s+1}")
                a(f"v_cvt_pk_bf16_f32 v{d+2*hh+1}, v{s+2}, v{s+3}")
    for i in range(4):
        a(f"v_mov_b32 v{48+i}, 0x3f803f80")
    KV, ZZ, T = 160, 176, 52
    for m in range(2):
        for dt in range(2):
            for hh in range(2):
                s = accr(1, 2 * m + hh, dt)
                a(f"v_cvt_pk_bf16_f32 v{T+2*hh}, v{s}, v{s+1}")
                a(f"v_cvt_pk_bf16_f32 v{T+2*hh+1}, v{s+2}, v{s+3}")
            unpack4(a, T, T)
            kf = 32 + 4 * (2 * dt + m)
            phi8(a, T, kf, 44, 46)
            for et in range(2):
                mfma16(a, KV + 4 * (2 * et + dt), kf, 16 + 4 * (2 * et + m), "0" if m == 0 else None)
            mfma16(a, ZZ + 4 * dt, kf, 48, "0" if m == 0 else None)
    a("s_lshl_b32 s43, s37, 12")
    a(f"s_add_u32 s43, s43, {XCH}")
    a("v_add_u32 v4, s43, v3")
    a("s_lshl_b32 s43, s37, 7")
    a(f"s_add_u32 s43, s43, {XCZ}")
    a("v_lshlrev_b32 v5, 5, v14")
    a("v_add_u32 v5, s43, v5")
    a("s_lshl_b32 s43, s37, 2")
    a("v_add_u32 v6, s43, v10")
    a("s_cmp_eq_u32 s36, 0")
    a("s_cbranch_scc1 K3_wr0")
    for qd in range(4):
        a(f"ds_write_b128 v4, {vr(KV+4*qd)} offset:{1024*qd}")
    for dt in range(2):
        a(f"ds_write_b128 v5, {vr(ZZ+4*dt)} offset:{16*dt}")
    a("s_waitcnt lgkmcnt(0)")
    lds_signal(a, 6, S_X, 11)
    a("s_branch K3_q")
    a.label("K3_wr0")
    a("s_lshl_b32 s48, s5, 4")
    a("s_add_u32 s48, s48, s12")
    a("s_lshl_b32 s49, s48, 12")
    a("s_lshl_b32 s50, s48, 7")
    a("v_lshlrev_b32 v7, 4, v14")
    lds_wait(a, "K3_wx", 6, S_X, 1, 8, 42)
    for qd in range(4):
        a(f"ds_read_b128 {vr(16+4*qd)}, v4 offset:{1024*qd}")
    for dt in range(2):
        a(f"ds_read_b128 {vr(32+4*dt)}, v5 offset:{16*dt}")
    for qd in range(6):
        a(f"s_waitcnt lgkmcnt({5-qd})")
        a(f"v_pk_add_f32 {vr(KV+4*qd,2)}, {vr(KV+4*qd,2)}, {vr(16+4*qd,2)}")
        a(f"v_pk_add_f32 {vr(KV+4*qd+2,2)}, {vr(KV+4*qd+2,2)}, {vr(16+4*qd+2,2)}")
        for i in range(4):
            a(f"v_or_b32 v{KV+4*qd+i}, 1, v{KV+4*qd+i}")
        if qd < 4:
            a(f"buffer_store_dwordx4 {vr(KV+4*qd)}, v3, s[28:31], s49 offen offset:{1024*qd} sc1")
    a("s_mov_b32 exec_lo, 0x00010001")
    a("s_mov_b32 exec_hi, 0x00010001")
    for dt in range(2):
        a(f"buffer_store_dwordx4 {vr(ZZ+4*dt)}, v7, s[32:35], s50 offen offset:{64*dt} sc1")
    a("s_mov_b64 exec, -1")
    lds_signal(a, 10, S_KVS, 11)
    a.label("K3_q")
    stamp(a, 3)
    a("s_lshl_b32 s43, s3, 12")
    a(f"s_add_u32 s43, s43, {PQ_BASE}")
    a("v_add_u32 v4, s43, v3")
    for mt in range(4):
        d = 80 + 4 * mt
        for dt in range(2):
            sr = accr(0, mt, dt)
            a(f"v_cvt_pk_bf16_f32 v{T+2*dt}, v{sr}, v{sr+1}")
            a(f"v_cvt_pk_bf16_f32 v{T+2*dt+1}, v{sr+2}, v{sr+3}")
        unpack4(a, T, T)
        phi8(a, T, d, 44, 46)
        a(f"ds_write_b128 v4, {vr(d)} offset:{1024*mt}")
    a("s_lshl_b32 s43, s3, 2")
    a("v_add_u32 v9, s43, v10")
    a("v_and_b32 v6, 3, v2")
    a("v_bfe_u32 v7, v2, 2, 2")
    a("v_add_u32 v12, v6, v7")
    a("v_lshlrev_b32 v12, 3, v12")
    a("v_lshl_add_u32 v12, v14, 6, v12")
    a(f"s_add_u32 s43, s7, {CV_HB-24}")
    a("v_add_u32 v12, s43, v12")
    a("v_lshlrev_b32 v13, 5, v6")
    a("v_lshlrev_b32 v7, 3, v7")
    a("v_sub_u32 v13, v13, v7")
    a("v_lshlrev_b32 v7, 6, v14")
    a("v_sub_u32 v13, v13, v7")
    a(f"s_add_u32 s43, s7, {CV_UB+24-32}")
    a("v_add_u32 v13, s43, v13")
    a(f"s_add_u32 s43, s7, {CV_UB}")
    a("v_add_u32 v8, s43, v3")
    a("s_waitcnt lgkmcnt(0)")
    lds_signal(a, 9, S_PQ, 11)
    stamp(a, 4)
    lds_wait(a, "K3_whu", 9, S_HU, 1, 16, 42)
    stamp(a, 5)

    HH, FU = 32, 96
    ACC = [16, 20, 24, 28]
    T2, T1, YV, PK = [224, 225], [226, 227], [228, 229], [232, 236, 240, 244]
    lg.q = []

    def fu_reads(s):
        for hf in range(2):
            a(f"ds_read_b64_tr_b16 {vr(FU+4*s+2*hf,2)}, v13 offset:{128*s + 32*(1-hf)}")
            lg.issue(("fu", s))

    def h_reads(t):
        for hf in range(2):
            a(f"ds_read_b64_tr_b16 {vr(HH+4*t+2*hf,2)}, v12 offset:{256*t + 32*hf}")
            lg.issue(("h", t))

    def epi(Q):
        ops = []
        R0 = ACC[Q % 4]
        R1, R2, R3 = R0 + 1, R0 + 2, R0 + 3
        cur, prv = Q & 1, (Q & 1) ^ 1
        if Q == 0:
            ops.append(f"v_add_f32_dpp v{T2[cur]}, v{R3}, v{R2} wave_shr:1 {DPP} bound_ctrl:0")
            ops.append(f"v_add_f32_dpp v{T1[cur]}, v{T2[cur]}, v{R1} wave_shr:1 {DPP} bound_ctrl:0")
            ops.append(f"v_add_f32_dpp v{YV[cur]}, v{T1[cur]}, v{R0} wave_shr:1 {DPP} bound_ctrl:0")
        else:
            r3p = ACC[(Q - 1) % 4] + 3
            ops.append(f"v_add_f32_dpp v{T2[cur]}, v{r3p}, v{R2} wave_ror:1 {DPP}")
            ops.append(f"v_add_f32_dpp v{T1[cur]}, v{T2[prv]}, v{R1} wave_ror:1 {DPP}")
            ops.append(f"v_add_f32_dpp v{YV[cur]}, v{T1[prv]}, v{R0} wave_ror:1 {DPP}")
            ops.append(f"v_add_f32_dpp v{T2[cur]}, v{R3}, v{R2} wave_shr:1 {DPP}")
            ops.append(f"v_add_f32_dpp v{T1[cur]}, v{T2[cur]}, v{R1} wave_shr:1 {DPP}")
            ops.append(f"v_add_f32_dpp v{YV[cur]}, v{T1[cur]}, v{R0} wave_shr:1 {DPP}")
        if Q & 1:
            p = PK[Q // 8] + (Q % 8) // 2
            ops.append(f"v_cvt_pk_bf16_f32 v{p}, v{YV[0]}, v{YV[1]}")
            ops.append(f"v_or_b32 v{p}, 1, v{p}")
        return ops

    PRE = 3
    for c in range(PRE):
        fu_reads(c)
        if c % 2 == 0:
            h_reads(c // 2)
    pending = []
    for c in range(32):
        nst = c // 2 + 1
        for t in range(nst):
            s = c - 2 * t
            lg.wait_for([("fu", s), ("h", t)])
            mfma16(a, ACC[c % 4], FU + 4 * s, HH + 4 * t, "0" if t == 0 else None)
            if t == 0 and c + PRE < 32:
                fu_reads(c + PRE)
                if (c + PRE) % 2 == 0:
                    h_reads((c + PRE) // 2)
            if t == 0 and c >= 2:
                assert not pending
                pending = epi(c - 2)
            k = max(1, -(-len(pending) // (nst - t))) if pending else 0
            for _ in range(k):
                a(pending.pop(0))
    for Q in (30, 31):
        for op in epi(Q):
            a(op)
    srd_off(a, 28, P_WS, WS_UT, 4 * MB)
    a("s_lshl_b32 s40, s6, 12")
    for g in range(4):
        a(f"buffer_store_dwordx4 {vr(PK[g])}, v3, s[28:31], s40 offen offset:{1024*g} sc1")
    a("s_and_b32 s40, s10, 3")
    a("s_lshl_b32 s40, s40, 2")
    a("s_and_b32 s41, s11, 3")
    a("s_add_u32 s40, s40, s41")
    a("s_lshl_b32 s41, s40, 3")
    a("s_lshl_b32 s42, s3, 1")
    a("s_add_u32 s41, s41, s42")
    a("s_lshl_b32 s48, s41, 15")
    a("s_mov_b32 s47, s48")
    a("v_lshrrev_b32 v5, 5, v2")
    a("v_and_b32 v6, 1, v14")
    a("v_lshlrev_b32 v12, 15, v6")
    a("v_lshl_add_u32 v12, v5, 8, v12")
    a("v_lshl_add_u32 v12, v15, 4, v12")
    srd_off(a, 28, P_WS, WS_OF, 4 * MB)
    srd(a, 32, P_OUT, 8 * MB)
    a("s_waitcnt lgkmcnt(0)")
    lds_signal(a, 9, S_CD, 11)
    stamp(a, 6)
    lds_wait(a, "K3_wwo", 10, S_WOM, 4, 80, 42)
    stamp(a, 7)
    vm = Cnt(a, "vmcnt", 63)
    AR = 96
    D = ADEPTH
    if "a" in XP:
        srd(a, 28, P_X, 4 * MB)
        a("s_lshl_b32 s48, s12, 18")
        a("s_lshl_b32 s47, s3, 16")
        a("s_add_u32 s48, s48, s47")

    def aload(h):
        for f in range(2):
            r = AR + 8 * (h % D) + 4 * f
            a(f"buffer_load_dwordx4 {vr(r)}, v12, s[28:31], s48 offen offset:{1024*(h%4)+512*f}{ASC}")
            vm.issue(("A", h))
        if h % 4 == 3:
            a("s_add_u32 s48, s48, 4096")

    for h in range(8):
        aload(h)
    anext = [8]
    a("v_bfe_u32 v4, v2, 2, 2")
    a("v_and_b32 v7, 3, v2")
    a("v_lshlrev_b32 v4, 6, v4")
    a("v_lshl_add_u32 v4, v7, 3, v4")
    a("v_lshl_add_u32 v4, v5, 9, v4")
    a("v_xor_b32 v7, v6, v5")
    a("v_lshl_add_u32 v13, v7, 5, v4")
    a(f"v_add_u32 v4, {WO_BASE}, v13")
    a(f"v_add_u32 v8, {WO_BASE + 65536}, v13")

    def check_ops(g):
        r = AR + 8 * ((4 * g) % D)
        ops = [f"v_bitop3_b32 v81, v{r}, v{r+1}, v{r+2} bitop3:0x80"]
        for i in range(3, 31, 2):
            ops.append(f"v_bitop3_b32 v81, v81, v{r+i}, v{r+i+1} bitop3:0x80")
        ops.append(f"v_bitop3_b32 v81, v81, v{r+31}, 1 bitop3:0x80")
        return ops

    def check_branch(g):
        if "a" in XP:
            a.label(f"K3_retry{g}_ret")
            return
        a("v_cmp_eq_u32 vcc, 0, v81")
        a("s_cmp_lg_u64 vcc, 0")
        a(f"s_cbranch_scc1 K3_retry{g}")
        a.label(f"K3_retry{g}_ret")

    def retry_block(g):
        a.label(f"K3_retry{g}")
        a(f"s_mov_b32 s46, {RETRY_MAX}")
        a(f"s_add_u32 s44, s47, {4096*g}")
        a.label(f"K3_retry{g}_l")
        a("s_add_u32 s75, s75, 1")
        a("s_sleep 4")
        for hh in range(4):
            for f in range(2):
                r = AR + 8 * ((4 * g + hh) % D) + 4 * f
                a(f"buffer_load_dwordx4 {vr(r)}, v12, s[28:31], s44 offen offset:{1024*hh+512*f} sc1")
        a("s_waitcnt vmcnt(0)")
        for op in check_ops(g):
            a(op)
        a("v_cmp_eq_u32 vcc, 0, v81")
        a("s_sub_u32 s46, s46, 1")
        a(f"s_cbranch_scc1 K3_retry{g}_ret")
        a("s_cmp_lg_u64 vcc, 0")
        a(f"s_cbranch_scc1 K3_retry{g}_l")
        a(f"s_branch K3_retry{g}_ret")

    lg.q = []
    BS = [48, 64]

    def breads(h):
        out = []
        st = h & 1
        if h < 16:
            vb, off = 4, h * 4096
        elif h < 28:
            vb, off = 8, (h - 16) * 4096
        else:
            vb, off = 13, (h - 28) * CV_REG
        for f in range(2):
            for nb in range(2):
                for hf in range(2):
                    out.append(((h, f, nb), f"ds_read_b64_tr_b16 {vr(BS[st]+8*f+4*nb+2*hf,2)}, v{vb} offset:{off + f*1024 + hf*2048 + nb*256}"))
        return out

    for tag, txt in breads(0):
        a(txt); lg.issue(tag)
    vm.wait_for([("A", 3)])
    for op in check_ops(0):
        a(op)
    check_branch(0)
    chk = []
    for h in range(32):
        nxt = []
        if h + 1 < 32:
            nxt = breads(h + 1)
        if h % 4 == 2 and h + 2 < 32:
            vm.wait_for([("A", h + 5)])
            chk = check_ops(h // 4 + 1) if "k" not in XP else []
        for f in range(2):
            for nb in range(2):
                lg.wait_for([(h, f, nb)])
                d = 16 + 16 * nb
                cs = "0" if (h == 0 and f == 0) else vr(d, 16)
                a(f"v_mfma_f32_32x32x16_bf16 {vr(d,16)}, {vr(BS[h&1]+8*f+4*nb)}, {vr(AR+8*(h%D)+4*f)}, {cs}")
                for _ in range(2):
                    if nxt:
                        tag, txt = nxt.pop(0)
                        a(txt); lg.issue(tag)
                    if chk:
                        a(chk.pop(0))
        if h % 4 == 3 and h + 1 < 32:
            assert not chk
            check_branch(h // 4 + 1)
        for _ in range(2):
            if anext[0] < 32 and anext[0] <= h + D and "n" not in XP:
                aload(anext[0]); anext[0] += 1
    stamp(a, 8)
    a("v_and_b32 v4, 31, v2")
    a("v_lshlrev_b32 v4, 12, v4")
    a("v_lshl_add_u32 v4, v5, 4, v4")
    a("s_lshr_b32 s36, s10, 2")
    a("s_lshl_b32 s36, s36, 3")
    a("s_lshr_b32 s37, s11, 2")
    a("s_add_u32 s36, s36, s37")
    a("s_lshl_b32 s38, s41, 16")
    a("s_lshl_b32 s39, s36, 7")
    a("s_add_u32 s38, s38, s39")
    a("s_add_u32 s38, s38, 2048")
    for nb in range(2):
        for kp in range(2):
            P = 80 + 8 * nb + 4 * kp
            t0 = 16 + 16 * nb + 8 * kp
            for i in range(4):
                a(f"v_cvt_pk_bf16_f32 v{P+i}, v{t0+2*i}, v{t0+2*i+1}")
            a(f"v_permlane32_swap_b32 v{P}, v{P+2}")
            a(f"v_permlane32_swap_b32 v{P+1}, v{P+3}")
            a(f"buffer_store_dwordx4 {vr(P)}, v4, s[32:35], s38 offen offset:{64*nb+32*kp}{NTS}")
    stamp_flush(a, 9)
    a("s_endpgm")
    for g in range(8):
        retry_block(g)
    for slot in range(4):
        a.label(f"K3_event{slot}")
        a("s_add_u32 s54, s54, 1")
        a("s_cmp_lg_u32 s54, 1")
        a(f"s_cbranch_scc1 K3_ev2_{slot}")
        a(f"buffer_load_dword v195, v192, s[40:43], s44 offen{NTT}")
        a("s_mov_b32 s55, s52")
        a(f"s_branch K3_noev{slot}")
        a.label(f"K3_ev2_{slot}")
        if PREC:
            a("s_waitcnt vmcnt(0)")
        a(f"buffer_load_dword v195, v193, s[48:51], s45 offen{NTT}")
        a("s_mov_b32 s55, 1000")
        a(f"s_branch K3_noev{slot}")
        a.label(f"K3_evB{slot}")
        a(f"buffer_load_dword v195, v194, s[64:67], s68 offen{NTT}")
        a(f"buffer_load_dword v195, v194, s[64:67], s69 offen{NTT}")
        a(f"s_branch K3_noevB{slot}")
        a.label(f"K3_evC{slot}")
        a("s_add_u32 s53, s53, 1")
        a("s_cmp_lg_u32 s53, 1")
        a(f"s_cbranch_scc1 K3_ev4_{slot}")
        a("buffer_load_dword v196, v199, s[56:59], 0 offen sc1")
        a("s_mov_b32 s71, 1")
        a(f"s_branch K3_noevC{slot}")
        a.label(f"K3_ev4_{slot}")
        a("s_cmp_lg_u32 s53, 2")
        a(f"s_cbranch_scc1 K3_ev6_{slot}")
        a("s_waitcnt vmcnt(0)")
        a("v_readfirstlane_b32 s46, v196")
        a("s_mov_b64 exec, 1")
        a("s_cmp_lg_u32 s46, 0")
        a(f"s_cbranch_scc1 K3_ev5_{slot}")
        a("v_mov_b32 v196, v198")
        a("v_mov_b32 v197, 0")
        a("buffer_atomic_cmpswap v[196:197], v199, s[56:59], 0 offen sc0 sc1")
        a("s_waitcnt vmcnt(0)")
        a("v_cmp_eq_u32 vcc, 0, v196")
        a("v_cndmask_b32 v196, v196, v198, vcc")
        a.label(f"K3_ev5_{slot}")
        a("buffer_store_dword v196, v199, s[60:63], s47 offen sc1")
        a("s_mov_b64 exec, -1")
        a(f"s_mov_b32 s71, {FLAGN-F1N-1 if not POSTPRE else 1000}")
        a(f"s_branch K3_noevC{slot}")
        a.label(f"K3_ev6_{slot}")
        a("s_mov_b64 exec, 1")
        a("buffer_store_dword v196, v199, s[60:63], s47 offen offset:32 sc1")
        a("s_mov_b64 exec, -1")
        a("s_mov_b32 s71, 1000")
        a(f"s_branch K3_noevC{slot}")

    a.label("K3_L")
    a("v_lshrrev_b32 v4, 3, v2")
    a("v_and_b32 v5, 7, v2")
    for jl in range(4):
        a(f"v_add_u32 v6, {4*(jl&1)}, v14")
        a("v_xor_b32 v6, v6, v5")
        a("v_lshlrev_b32 v6, 4, v6")
        a("v_lshl_add_u32 v6, v4, 11, v6")
        a(f"v_add_u32 v{240+jl}, {jl*(16384-1024)}, v6")
    a("v_lshrrev_b32 v6, 5, v2")
    a("v_bfe_u32 v7, v2, 2, 2")
    a("v_lshl_add_u32 v6, v6, 2, v7")
    a("v_mul_u32_u24 v6, 6144, v6")
    a("v_bfe_u32 v7, v2, 4, 1")
    a("v_lshl_add_u32 v6, v7, 6, v6")
    a("v_and_b32 v7, 3, v2")
    a("v_lshl_add_u32 v6, v7, 4, v6")
    a("v_xor_b32 v7, 32, v6")
    a("s_and_b32 s40, s13, 1")
    a("s_lshl_b32 s40, s40, 7")
    a(f"s_xor_b32 s41, s40, {128 if QX else 0}")
    binst = []
    for seg in range(3):
        for gg in range(2):
            ldsoff = seg * 2048 + gg * 1024
            m0sel, ioff = ldsoff // 4096, ldsoff % 4096
            reg = 244 + seg * 2 + gg
            a(f"v_add_u32 v{reg}, {8*gg*6144 + seg*2048 - ioff}, v{6+gg}")
            a(f"v_add_u32 v{reg}, s{41 if seg == 0 else 40}, v{reg}")
            binst.append((reg, m0sel, ioff))
    a("s_lshl_b32 s38, s12, 7")
    a("s_lshl_b32 s40, s4, 5")
    a("s_add_u32 s38, s38, s40")
    a("s_lshl_b32 s38, s38, 11")
    a("s_mul_i32 s39, s4, 98304")
    a("s_lshr_b32 s40, s13, 1")
    a("s_lshl_b32 s40, s40, 8")
    a("s_add_u32 s39, s39, s40")
    a("s_lshl_b32 s41, s4, 12")
    a("s_mul_i32 s42, s4, 6144")
    a("s_add_u32 s42, s42, 16384")
    srd(a, 16, P_X, 4 * MB)
    srd(a, 20, P_W, 6 * MB)
    vm = Cnt(a, "vmcnt", 63)

    def issue(kt):
        sb = (kt % NS) * STAGE
        a(f"s_add_u32 m0, s41, {sb}")
        for jl in range(4):
            a(f"buffer_load_dwordx4 v{240+jl}, s[16:19], s38 offen offset:{jl*1024}{NTG} lds")
            vm.issue(("st", kt))
        cur = -1
        for reg, m0sel, ioff in binst:
            if m0sel != cur:
                a(f"s_add_u32 m0, s42, {sb + 4096*m0sel}")
                cur = m0sel
            a(f"buffer_load_dwordx4 v{reg}, s[20:23], s39 offen offset:{ioff}{NTG} lds")
            vm.issue(("st", kt))
        a("s_add_u32 s38, s38, 128")
        a(f"s_add_u32 s39, s39, {64*6144}")

    for kt in range(NS - 1):
        issue(kt)
    srd(a, 24, P_K, 4 * MB)
    srd(a, 28, P_V, 4 * MB)
    srd(a, 32, P_SHK, 8192)
    srd_off(a, 44, P_WS, WS_UT, 4 * MB)
    srd_off(a, 48, P_WS, WS_OF, 4 * MB)
    srd_off(a, 52, P_WS, WS_KVP, 2 * MB)
    srd_off(a, 56, P_WS, WS_ZP, 64 * 1024)
    a("s_lshl_b32 s60, s2, 2")
    a("s_add_u32 s60, s60, s4")
    a("s_and_b32 s61, s60, 15")
    a("s_lshr_b32 s60, s60, 4")
    a("s_lshl_b32 s62, s60, 16")
    a("s_lshl_b32 s63, s61, 7")
    a("s_add_u32 s62, s62, s63")
    a("v_lshlrev_b32 v21, 14, v14")
    a("v_lshl_add_u32 v21, v15, 3, v21")
    a("v_add_u32 v21, s62, v21")
    a("s_lshl_b32 s63, s61, 9")
    a("v_lshlrev_b32 v22, 5, v15")
    a("s_lshl_b32 s62, s61, 18")
    a("s_lshl_b32 s64, s60, 6")
    a("s_add_u32 s62, s62, s64")
    a("v_lshlrev_b32 v19, 14, v15")
    a("v_lshl_add_u32 v19, v14, 4, v19")
    a("s_lshl_b32 s64, s12, 3")
    a("s_lshl_b32 s65, s4, 1")
    a("s_add_u32 s64, s64, s65")
    a("s_lshl_b32 s64, s64, 15")
    a("s_lshr_b32 s65, s15, 1")
    a("s_lshl_b32 s65, s65, 11")
    a("s_add_u32 s64, s64, s65")
    a("s_add_u32 s65, s64, 32768")
    a("s_lshl_b32 s66, s5, 4")
    a("s_add_u32 s66, s66, s12")
    a("s_lshl_b32 s67, s66, 7")
    a("s_lshl_b32 s66, s66, 12")
    a("s_lshl_b32 s68, s36, 11")
    a("s_add_u32 s66, s66, s68")
    for i in range(4):
        a(f"v_mov_b32 v{160+i}, 0")
    a("v_and_b32 v18, 7, v2")
    a("v_lshlrev_b32 v18, 4, v18")
    fills = [
        f"buffer_store_dwordx4 v[160:163], v3, s[48:51], s64 offen sc1{NTF}",
        f"buffer_store_dwordx4 v[160:163], v3, s[48:51], s64 offen offset:1024 sc1{NTF}",
        f"buffer_store_dwordx4 v[160:163], v3, s[48:51], s65 offen sc1{NTF}",
        f"buffer_store_dwordx4 v[160:163], v3, s[48:51], s65 offen offset:1024 sc1{NTF}",
        f"buffer_store_dwordx4 v[160:163], v3, s[52:55], s66 offen sc1{NTF}",
        f"buffer_store_dwordx4 v[160:163], v3, s[52:55], s66 offen offset:1024 sc1{NTF}",
        f"buffer_store_dwordx4 v[160:163], v18, s[56:59], s67 offen sc1{NTF}",
    ]
    W, KF, VF, KS = 72, 88, 110, 126
    loads = []
    for i in range(2):
        loads.append([f"buffer_load_dwordx4 {vr(24+4*i)}, v22, s[32:35], s63 offen offset:{16*i}"])
    for i in range(11):
        loads.append([f"v_add_u32 v23, {((i-3)*2048) & 0xffffffff}, v21", f"buffer_load_dwordx2 {vr(32+2*i,2)}, v23, s[24:27], 0 offen{NTO}"])
    for i in range(8):
        loads.append([f"v_add_u32 v23, {i*2048}, v21", f"buffer_load_dwordx2 {vr(54+2*i,2)}, v23, s[28:31], 0 offen{NTO}"])
    comp = []
    for ci in range(4):
        comp += [f"v_lshlrev_b32 v{W+ci}, 16, v{24+2*ci}", f"v_and_b32 v{W+4+ci}, 0xffff0000, v{24+2*ci}",
                 f"v_lshlrev_b32 v{W+8+ci}, 16, v{25+2*ci}", f"v_and_b32 v{W+12+ci}, 0xffff0000, v{25+2*ci}"]
    for cp in range(2):
        for i in range(11):
            comp += [f"v_lshlrev_b32 v{KF+2*i}, 16, v{32+2*i+cp}", f"v_and_b32 v{KF+2*i+1}, 0xffff0000, v{32+2*i+cp}"]
        for i in range(8):
            comp += [f"v_lshlrev_b32 v{VF+2*i}, 16, v{54+2*i+cp}", f"v_and_b32 v{VF+2*i+1}, 0xffff0000, v{54+2*i+cp}"]
        for i in range(16):
            comp.append(f"v_mul_f32 v{KS+i}, v{KF+i}, v{W+12+2*cp+(i&1)}")
        for j in (2, 1, 0):
            for i in range(16):
                comp.append(f"v_fmac_f32 v{KS+i}, v{KF+2*(3-j)+i}, v{W+4*j+2*cp+(i&1)}")
        for i in range(16):
            comp.append(f"v_mul_f32 v{KS+i}, v{KS+i}, v{VF+i}")
        O = 144 + 8 * cp
        for e in range(2):
            for i in range(4):
                comp.append(f"v_cvt_pk_bf16_f32 v{O+4*e+i}, v{KS+4*i+e}, v{KS+4*i+2+e}")
        for i in range(8):
            comp.append(f"v_and_b32 v{O+i}, -2, v{O+i}")
        for e in range(2):
            comp.append(("st", f"buffer_store_dwordx4 {vr(O+4*e)}, v19, s[44:47], s62 offen sc1"))
            comp.append("s_add_u32 s62, s62, 4096")
    PCE = FLAGN
    NPC = PCE - (PL0 + 2)
    per = -(-len(comp) // NPC)
    a("v_lshrrev_b32 v6, 5, v2")
    a("v_bfe_u32 v7, v2, 2, 2")
    a("v_lshl_add_u32 v7, v6, 2, v7")
    a("v_lshlrev_b32 v7, 11, v7")
    a("v_bfe_u32 v8, v2, 4, 1")
    a("v_lshl_add_u32 v7, v8, 6, v7")
    a("v_and_b32 v8, 3, v2")
    a("v_lshlrev_b32 v6, 1, v6")
    a("v_xor_b32 v8, v8, v6")
    a("v_lshl_add_u32 v7, v8, 4, v7")
    for i in range(4):
        a(f"v_add_u32 v{232+i}, {i*(16384-1024)}, v7")
    a("s_lshl_b32 s69, s4, 16")
    a("s_lshr_b32 s70, s10, 2")
    a("s_lshl_b32 s70, s70, 3")
    a("s_lshr_b32 s71, s11, 2")
    a("s_add_u32 s70, s70, s71")
    a("s_lshl_b32 s70, s70, 7")
    a("s_add_u32 s69, s69, s70")
    a("s_lshl_b32 s70, s4, 12")
    a(f"s_add_u32 s70, s70, {WO_BASE}")
    a("s_lshl_b32 s71, s6, 12")
    a(f"v_mov_b32 v10, {SYNC}")
    a("v_mov_b32 v11, 1")
    a("s_lshl_b32 s43, s4, 2")
    a("v_add_u32 v9, s43, v10")

    def wo_issue(k):
        if k < 7:
            a(f"s_add_u32 m0, s70, {k*16384}")
        else:
            a("s_mov_b32 m0, s7")
        for i in range(4):
            a(f"buffer_load_dwordx4 v{232+i}, s[20:23], s69 offen offset:{i*1024}{NTG} lds")
            vm.issue("wo")
        a(f"s_add_u32 s69, s69, {128*2048}")

    def post_setup():
        a("s_lshl_b32 s16, s10, 1")
        a("s_lshr_b32 s17, s11, 4")
        a("s_add_u32 s16, s16, s17")
        a("s_and_b32 s17, s11, 15")
        a("s_lshl_b32 s17, s17, 2")
        a("s_add_u32 s17, s17, s4")
        a("s_lshr_b32 s18, s17, 4")
        a("s_and_b32 s17, s17, 15")
        a("s_lshl_b32 s19, s18, 9")
        a("s_lshl_b32 s64, s17, 2")
        a("s_add_u32 s19, s19, s64")
        a("s_lshl_b32 s64, s19, 11")
        a("s_lshl_b32 s65, s16, 7")
        a("s_add_u32 s64, s64, s65")
        a("s_lshl_b32 s72, s19, 12")
        a("s_add_u32 s72, s72, s65")
        a("s_lshl_b32 s73, s16, 18")
        a("s_lshl_b32 s65, s18, 10")
        a("s_add_u32 s73, s73, s65")
        a("s_lshl_b32 s65, s17, 6")
        a("s_add_u32 s73, s73, s65")
        a("s_add_u32 s65, s73, 4096")
        a("s_add_u32 s66, s73, 8192")
        a("s_add_u32 s67, s73, 12288")
        a("v_lshlrev_b32 v224, 12, v14")
        a("v_lshl_add_u32 v224, v15, 3, v224")
        a("v_lshlrev_b32 v225, 14, v15")
        a("v_lshl_add_u32 v225, v14, 4, v225")

    def q_loads():
        srd(a, 16, P_Q, 4 * MB)
        a("v_lshlrev_b32 v4, 11, v14")
        a("v_lshl_add_u32 v4, v15, 3, v4")
        for jj in range(8):
            a(f"buffer_load_dwordx2 {vr(QR+2*jj,2)}, v4, s[16:19], s64 offen{NTO}")
            vm.issue("q")
            a(f"s_add_u32 s64, s64, {64*2048}")

    QR = 208

    def h_issue():
        a(f"s_add_u32 m0, s7, {CV_HB}")
        for c in range(4):
            a(f"buffer_load_dwordx4 v3, s[16:19], s71 offen offset:{1024*c}{NTO} lds")
            vm.issue("h")
        a("s_lshl_b32 s43, s6, 1")
        a("v_mov_b32 v4, 0")
        a("buffer_load_ushort v164, v4, s[20:23], s43 offen")
        vm.issue("h")
        srd(a, 20, P_WO, 2 * MB)

    for kt in range(16):
        tags = [("st", kt)]
        if kt == F1N + 1:
            tags += ["fill"]
        if kt == FLAGN + 1:
            tags += ["ust"]
        vm.wait_for(tags)
        if kt == 14:
            a("s_waitcnt lgkmcnt(0)")
        a("s_barrier")
        if kt + NS - 1 < 16:
            issue(kt + NS - 1)
        for op in spf[SPF_C + kt * SPF_L: SPF_C + (kt + 1) * SPF_L]:
            a(op)
        if 0 <= kt < 7 and "f" not in XP:
            a(fills[kt]); vm.issue("fill")
        if POSTPRE and kt in (14, 15):
            for grp in (loads[:13] if kt == 14 else loads[13:]):
                for op in grp:
                    a(op)
                vm.issue("pre")
        if kt in (PL0, PL0 + 1) and "l" not in XP and not POSTPRE and not PREC:
            part = loads[:11] if kt == PL0 else loads[11:]
            for grp in part:
                for op in grp:
                    a(op)
                vm.issue("pre")
        if kt == 13:
            post_setup()
            srd(a, 16, P_H, 4 * MB)
            srd(a, 20, P_D, 2048)
            a("v_mov_b32 v4, 0")
            a("v_lshlrev_b32 v5, 2, v2")
            a(f"v_add_u32 v6, {SYNC}, v5")
            a("ds_write_b32 v6, v4")
            a("v_add_u32 v6, s7, v5")
            a(f"ds_write_b32 v6, v4 offset:{CV_UB-256}")
            a("v_and_b32 v6, 7, v2")
            a("v_lshlrev_b32 v6, 2, v6")
            a("v_add_u32 v6, s7, v6")
            a("ds_write_b32 v6, v4")
            h_issue()
            if QEARLY:
                q_loads()
        if PL0 + 2 <= kt < PCE and not POSTPRE and not PREC:
            if kt == PL0 + 2:
                vm.wait_for(["pre"])
            for op in comp[:per]:
                if "c" in XP and not isinstance(op, tuple):
                    continue
                if isinstance(op, tuple):
                    a(op[1]); vm.issue("ust")
                else:
                    a(op)
            comp = comp[per:]
        if kt == 14 and EARLYWO >= 2:
            wo_issue(0); wo_issue(1)
        if kt == 15 and EARLYWO >= 4:
            wo_issue(2); wo_issue(3)
    assert POSTPRE or PREC or not comp
    a("s_barrier")
    stamp(a, 1)
    if POSTPRE:
        vm.wait_for(["pre"])
        for ci in range(4):
            a(f"v_lshlrev_b32 v{W+ci}, 16, v{24+2*ci}")
            a(f"v_and_b32 v{W+4+ci}, 0xffff0000, v{24+2*ci}")
            a(f"v_lshlrev_b32 v{W+8+ci}, 16, v{25+2*ci}")
            a(f"v_and_b32 v{W+12+ci}, 0xffff0000, v{25+2*ci}")
        for cp in range(2):
            for i in range(11):
                a(f"v_lshlrev_b32 v{KF+2*i}, 16, v{32+2*i+cp}")
                a(f"v_and_b32 v{KF+2*i+1}, 0xffff0000, v{32+2*i+cp}")
            for i in range(8):
                a(f"v_lshlrev_b32 v{VF+2*i}, 16, v{54+2*i+cp}")
                a(f"v_and_b32 v{VF+2*i+1}, 0xffff0000, v{54+2*i+cp}")
            for i in range(8):
                a(f"v_pk_mul_f32 {vr(KS+2*i,2)}, {vr(KF+2*i,2)}, {vr(W+12+2*cp,2)}")
            for j in (2, 1, 0):
                for i in range(8):
                    a(f"v_pk_fma_f32 {vr(KS+2*i,2)}, {vr(KF+2*(i+3-j),2)}, {vr(W+4*j+2*cp,2)}, {vr(KS+2*i,2)}")
            for i in range(8):
                a(f"v_pk_mul_f32 {vr(KS+2*i,2)}, {vr(KS+2*i,2)}, {vr(VF+2*i,2)}")
            O = 144 + 8 * cp
            for e in range(2):
                for i in range(4):
                    a(f"v_cvt_pk_bf16_f32 v{O+4*e+i}, v{KS+4*i+e}, v{KS+4*i+2+e}")
            for i in range(8):
                a(f"v_and_b32 v{O+i}, -2, v{O+i}")
            for e in range(2):
                a(f"buffer_store_dwordx4 {vr(O+4*e)}, v19, s[44:47], s62 offen sc1")
                a("s_add_u32 s62, s62, 4096")
    srd(a, 24, P_DBG, 256)
    srd(a, 32, P_OUT, 8 * MB)
    a("s_mov_b32 s40, 0")
    a("s_mov_b32 s42, 0")
    a("v_lshrrev_b32 v5, 1, v2")
    a("v_lshlrev_b32 v5, 7, v5")
    a("v_and_b32 v4, 1, v2")
    a("v_lshl_add_u32 v5, v4, 4, v5")
    a("v_mov_b32 v4, 0")
    a("buffer_load_dword v226, v4, s[24:27], 0 offen sc1")
    srd_off(a, 24, P_WS, WS_FLAG, 4096)
    a("v_lshlrev_b32 v6, 7, v15")
    a("v_lshl_add_u32 v6, v14, 4, v6")
    a("s_lshl_b32 s60, s15, 11")
    a("s_lshl_b32 s61, s15, 16")
    a("s_lshl_b32 s62, s36, 11")
    a("s_add_u32 s61, s61, s62")

    def flagcmp(r):
        for i in range(4):
            a(f"v_xor_b32 v{r+i}, v{r+i}, v226")
        a(f"v_or3_b32 v{r}, v{r}, v{r+1}, v{r+2}")
        a(f"v_or_b32 v{r}, v{r}, v{r+3}")
        a(f"v_cmp_ne_u32 vcc, 0, v{r}")

    def u_block(ret):
        a(f"s_add_u32 m0, s7, {CV_UB}")
        for c in range(4):
            a(f"buffer_load_dwordx4 v3, s[44:47], s71 offen offset:{1024*c} sc1 lds")
        a("s_mov_b32 s42, 1")
        a("s_waitcnt vmcnt(0) lgkmcnt(0)")
        lds_signal(a, 9, S_HU, 11)
        stamp(a, 3)
    a(f"s_mov_b32 s43, {RETRY_MAX}")
    a.label("K3_fp")
    a(f"buffer_load_dwordx4 {vr(24)}, v5, s[24:27], 0 offen sc1")
    a(f"buffer_load_dwordx4 {vr(28)}, v5, s[24:27], 0 offen offset:32 sc1")
    a("s_waitcnt vmcnt(0)")
    vm.q = []
    flagcmp(24)
    a("s_sub_u32 s43, s43, 1")
    a("s_cbranch_scc1 K3_fp_ok")
    a("s_cmp_eq_u64 vcc, 0")
    a("s_cbranch_scc1 K3_fp_ok")
    a("s_add_u32 s75, s75, 1")
    a("s_sleep 8")
    a("s_branch K3_fp")
    a.label("K3_fp_ok")
    if POSTPRE:
        a("s_mov_b64 exec, 1")
        a(f"ds_add_rtn_u32 v7, v10, v11 offset:{S_GO}")
        a("s_waitcnt lgkmcnt(0)")
        a("v_readfirstlane_b32 s43, v7")
        a("s_lshl_b32 s62, s11, 7")
        a("s_lshl_b32 s63, s10, 2")
        a("s_add_u32 s62, s62, s63")
        a("s_cmp_lg_u32 s43, 3")
        a("s_cbranch_scc1 K3_nof2")
        a("buffer_store_dword v226, v4, s[24:27], s62 offen offset:32 sc1")
        a.label("K3_nof2")
        a("s_mov_b64 exec, -1")
    stamp(a, 2)
    a("v_mov_b32 v4, s7")
    a(f"ds_read_u16 v7, v4 offset:{CV_HB}")
    a("v_lshlrev_b32 v164, 16, v164")
    a("s_waitcnt lgkmcnt(0)")
    a("v_lshlrev_b32 v7, 16, v7")
    a("v_add_f32 v7, v7, v164")
    a("v_cvt_pk_bf16_f32 v7, v7, v7")
    a(f"ds_write_b16 v4, v7 offset:{CV_HB}")
    flagcmp(28)
    a("s_cmp_lg_u64 vcc, 0")
    a("s_cbranch_scc1 K3_nou0")
    u_block(0)
    a.label("K3_nou0")
    if WAITKV:
        lds_wait(a, "K3_wkvs", 10, S_KVS, 2, 16, 62, sleep=1)
    for k in range(EARLYWO, 6):
        wo_issue(k)
    a(f"s_mov_b32 s43, {RETRY_MAX}")
    a.label("K3_zp")
    for dt in range(2):
        a(f"buffer_load_dwordx4 {vr(32+4*dt)}, v6, s[56:59], s60 offen offset:{64*dt} sc1")
    a("s_cmp_lg_u32 s42, 0")
    a("s_cbranch_scc1 K3_zp_nf")
    a(f"buffer_load_dwordx4 {vr(28)}, v5, s[24:27], 0 offen offset:32 sc1")
    a("s_waitcnt vmcnt(0)")
    flagcmp(28)
    a("s_cmp_lg_u64 vcc, 0")
    a("s_cbranch_scc1 K3_zp_nf")
    u_block(1)
    a.label("K3_zp_nf")
    a(f"ds_read_b32 v17, v9 offset:{S_CD}")
    a("s_waitcnt vmcnt(0) lgkmcnt(0)")
    vm.q = []
    and_reduce(a, 16, range(32, 40))
    a("v_readfirstlane_b32 s41, v17")
    a("v_cmp_eq_u32 vcc, 0, v16")
    a("s_sub_u32 s43, s43, 1")
    a("s_cbranch_scc1 K3_zp_ok")
    a("s_cmp_eq_u64 vcc, 0")
    a("s_cbranch_scc1 K3_zp_ok")
    a("s_cmp_lg_u32 s40, 0")
    a("s_cbranch_scc1 K3_zp_s2")
    if QEARLY:
        a("s_cmp_lg_u32 s41, 0")
        a("s_cbranch_scc1 K3_post")
    a.label("K3_zp_s2")
    a(f"s_sleep {ZSLEEP}")
    a("s_branch K3_zp")
    a.label("K3_zp_ok")
    stamp(a, 4)
    a("s_setprio 2")
    a(f"s_mov_b32 s43, {RETRY_MAX}")
    a("s_mov_b32 s62, s61")
    for p in range(16):
        for dt in range(2):
            a(f"buffer_load_dwordx4 {vr(64+8*p+4*dt)}, v3, s[52:55], s62 offen offset:{1024*dt}{GSC}")
            vm.issue(("kv", p))
        a("s_add_u32 s62, s62, 4096")
    if not QEARLY:
        q_loads()
    a.label("K3_gl")
    for i in range(8):
        a(f"v_add_f32_dpp v{40+i}, v{32+i}, v{32+i} row_ror:8 {DPP}")
    for sh in (4, 2, 1):
        for i in range(8):
            a(f"v_add_f32_dpp v{40+i}, v{40+i}, v{40+i} row_ror:{sh} {DPP}")
    for i in range(4):
        a(f"v_cvt_pk_bf16_f32 v{48+i}, v{40+2*i}, v{41+2*i}")
    a("v_mov_b32 v16, 1")
    for p in range(16):
        vm.wait_for([("kv", p)])
        r = 64 + 8 * p
        for i in range(0, 8, 2):
            a(f"v_bitop3_b32 v16, v16, v{r+i}, v{r+i+1} bitop3:0x80")
        if p >= 1:
            for i in range(8):
                a(f"v_add_f32 v{64+i}, v{64+i}, v{r+i}")
    a("v_cmp_eq_u32 vcc, 0, v16")
    a("s_sub_u32 s43, s43, 1")
    a("s_cbranch_scc1 K3_gl_ok")
    a("s_cmp_eq_u64 vcc, 0")
    a("s_cbranch_scc1 K3_gl_ok")
    a("s_add_u32 s75, s75, 1")
    a("s_sleep 4")
    a("s_mov_b32 s62, s61")
    for p in range(16):
        for dt in range(2):
            a(f"buffer_load_dwordx4 {vr(64+8*p+4*dt)}, v3, s[52:55], s62 offen offset:{1024*dt} sc1")
        a("s_add_u32 s62, s62, 4096")
    a("s_waitcnt vmcnt(0)")
    a("s_branch K3_gl")
    a.label("K3_gl_ok")
    for i in range(4):
        a(f"v_cvt_pk_bf16_f32 v{40+i}, v{64+2*i}, v{65+2*i}")
    a("s_lshl_b32 s43, s4, 10")
    a(f"s_add_u32 s43, s43, {KVT}")
    a("v_add_u32 v5, s43, v3")
    a(f"ds_write_b128 v5, {vr(40)}")
    a("s_lshl_b32 s43, s37, 2")
    a("v_add_u32 v7, s43, v10")
    a("s_lshl_b32 s43, s37, 11")
    a(f"s_add_u32 s43, s43, {KVT}")
    a("v_add_u32 v5, s43, v3")
    a("s_lshl_b32 s43, s4, 12")
    a(f"s_add_u32 s43, s43, {PQ_BASE}")
    a("v_add_u32 v8, s43, v3")
    a("s_waitcnt lgkmcnt(0)")
    lds_signal(a, 7, S_KVT, 11)
    lds_wait(a, "K3_wpq", 9, S_PQ, 1, 16, 60)
    for mt in range(4):
        a(f"ds_read_b128 {vr(16+4*mt)}, v8 offset:{1024*mt}")
    lds_wait(a, "K3_wkt", 7, S_KVT, 2, 52, 60)
    a(f"ds_read_b128 {vr(40)}, v5")
    a(f"ds_read_b128 {vr(44)}, v5 offset:1024")
    a("s_waitcnt lgkmcnt(0)")
    stamp(a, 5)
    for mt in range(4):
        b = 64 + 12 * mt
        mfma16(a, b + 8, 48, 16 + 4 * mt, "0")
        mfma16(a, b, 40, 16 + 4 * mt, "0")
        mfma16(a, b + 4, 44, 16 + 4 * mt, "0")
    a("s_lshl_b32 s60, s12, 3")
    a("s_lshl_b32 s61, s36, 2")
    a("s_add_u32 s60, s60, s61")
    a("s_lshl_b32 s60, s60, 5")
    a("s_add_u32 s60, s60, s15")
    a("s_lshl_b32 s60, s60, 10")
    a(f"s_mov_b32 s61, {EPS}")
    for mt in range(4):
        a(f"v_add_f32 v{112+mt}, s61, v{64+12*mt+8}")
        a(f"v_rcp_f32 v{112+mt}, v{112+mt}")
    for mt in range(4):
        b = 64 + 12 * mt
        for i in range(8):
            a(f"v_mul_f32 v{b+i}, v{b+i}, v{112+mt}")
        for i in range(4):
            a(f"v_cvt_pk_bf16_f32 v{120+4*mt+i}, v{b+2*i}, v{b+2*i+1}")
        for i in range(4):
            a(f"v_or_b32 v{120+4*mt+i}, 1, v{120+4*mt+i}")
        a(f"buffer_store_dwordx4 {vr(120+4*mt)}, v3, s[48:51], s60 offen sc1")
        a("s_add_u32 s60, s60, 32768")
    a("s_setprio 0")
    stamp(a, 6)
    a(f"s_mov_b32 s43, {RETRY_MAX}")
    a("v_lshrrev_b32 v5, 1, v2")
    a("v_lshlrev_b32 v5, 7, v5")
    a("v_and_b32 v4, 1, v2")
    a("v_lshl_add_u32 v5, v4, 4, v5")
    a.label("K3_ul")
    a("s_cmp_lg_u32 s42, 0")
    a("s_cbranch_scc1 K3_ul_done")
    a(f"buffer_load_dwordx4 {vr(28)}, v5, s[24:27], 0 offen offset:32 sc1")
    a("s_waitcnt vmcnt(0)")
    flagcmp(28)
    a("s_sub_u32 s43, s43, 1")
    a("s_cbranch_scc1 K3_ul_go")
    a("s_cmp_eq_u64 vcc, 0")
    a("s_cbranch_scc1 K3_ul_go")
    a("s_sleep 4")
    a("s_branch K3_ul")
    a.label("K3_ul_go")
    u_block(2)
    a.label("K3_ul_done")
    a("s_and_b32 s60, s10, 3")
    a("s_lshl_b32 s60, s60, 2")
    a("s_and_b32 s61, s11, 3")
    a("s_add_u32 s60, s60, s61")
    a("s_lshl_b32 s60, s60, 18")
    a("s_lshr_b32 s61, s11, 2")
    a("s_lshl_b32 s61, s61, 2")
    a("s_add_u32 s61, s61, s4")
    a("s_lshl_b32 s61, s61, 13")
    a("s_add_u32 s63, s60, s61")
    a("v_lshlrev_b32 v8, 7, v2")
    wo_issue(6)
    lds_wait(a, "K3_wcd", 9, S_CD, 1, 16, 60, sleep=1)
    wo_issue(7)
    a("s_waitcnt vmcnt(8)")
    if ATOUCH > 1:
        a(f"s_sleep {ATOUCH}")
    a("buffer_load_dword v60, v8, s[48:51], s63 offen")
    a("s_waitcnt vmcnt(0)")
    lds_signal(a, 10, S_WOM, 11)
    vm.q = []
    stamp(a, 7)
    a("s_cmp_eq_u32 s40, 1")
    a("s_cbranch_scc1 K3_fin")
    a("s_mov_b32 s40, 2")
    a(f"s_mov_b32 s43, {RETRY_MAX}")
    a.label("K3_post")
    for ci, sr in enumerate((73, 65, 66, 67)):
        a(f"buffer_load_dwordx4 {vr(16+4*ci)}, v225, s[44:47], s{sr} offen sc1")
    a("s_waitcnt vmcnt(0)")
    and_reduce(a, 48, range(16, 32))
    a("v_cmp_eq_u32 vcc, 0, v48")
    a("s_cmp_eq_u64 vcc, 0")
    a("s_cbranch_scc1 K3_yok")
    a("s_add_u32 s75, s75, 1")
    a("s_cmp_eq_u32 s40, 0")
    a("s_cbranch_scc1 K3_zp_s2")
    if PREPOST:
        a("s_cmp_eq_u32 s40, 3")
        a("s_cbranch_scc1 K3_pw")
    a("s_sub_u32 s43, s43, 1")
    a("s_cbranch_scc1 K3_yok")
    a("s_sleep 8")
    a("s_branch K3_post")
    a.label("K3_yok")
    stamp(a, 8)
    for jj in range(8):
        T = 48 + 8 * (jj & 1)
        for ci in range(4):
            if jj & 1:
                a(f"v_and_b32 v{T+ci}, 0xffff0000, v{16+4*ci+jj//2}")
            else:
                a(f"v_lshlrev_b32 v{T+ci}, 16, v{16+4*ci+jj//2}")
        for cp in range(2):
            a(f"v_lshlrev_b32 v{T+4+2*cp}, 16, v{QR+2*jj+cp}")
            a(f"v_and_b32 v{T+5+2*cp}, 0xffff0000, v{QR+2*jj+cp}")
        for ci in range(4):
            a(f"v_mul_f32 v{T+ci}, v{T+ci}, v{T+4+ci}")
        O = 64 + 2 * jj
        for cp in range(2):
            a(f"v_cvt_pk_bf16_f32 v{O+cp}, v{T+2*cp}, v{T+2*cp+1}")
        a(f"buffer_store_dwordx2 {vr(O,2)}, v224, s[32:35], s72 offen{NTS}")
        a(f"s_add_u32 s72, s72, {64*4096}")
    a("s_mov_b32 s41, s40")
    a("s_mov_b32 s40, 1")
    a("s_cmp_eq_u32 s41, 0")
    a("s_cbranch_scc1 K3_zp")
    if PREPOST:
        a("s_cmp_eq_u32 s41, 3")
        a("s_cbranch_scc1 K3_pw")
    a.label("K3_fin")
    stamp_flush(a, 9)
    a.label("K3_end")
    a("s_endpgm")
    return a.finalize(), 252
```

```python
import os
from asmlib import *
from common import prepass, k2_prefetch_setup, MB, vr, mfma16, phi8, unpack4, env, LOG2E, EPS, WS_KVP, WS_ZP, WS_FLAG, WS_UT, WS_DBG, STAMP

WS_OF = 0
NS = 4
STAGE = 40960
K3_LDS = NS * STAGE
CV_REG = 8704
CV_HB = 32
CV_UB = 4384
KVT = 4 * CV_REG
ZFR = KVT + 4096
SYNC = ZFR + 256
WO_BASE = 40960
PQ_BASE = WO_BASE + 24 * 4096
XCH = WO_BASE + 28 * 4096
XCZ = SYNC + 256
S_KVS = 84
S_X, S_HU, S_PQ, S_KVT, S_WOM, S_WOT, S_CD, S_GO, S_NONCE, S_WO2 = 0, 8, 24, 40, 48, 52, 56, 72, 76, 80
SPIN_MAX = 1 << 17
RETRY_MAX = 4000
DPP = "row_mask:0xf bank_mask:0xf"
DUTY0 = env("DUTY0", 0)
NDUTY = env("NDUTY", 4)
E2_0 = env("E2_0", 4)
E2_N = env("E2_N", 4)
E3_0 = env("E3_0", 8)
E3_N = env("E3_N", 4)
F1N = env("F1N", 9)
FLAGN = env("FLAGN", 10)
PL0 = env("PL0", 4)
SPF_C = env("SPF_C", 0)
SPF_L = env("SPF_L", 0)
ADEPTH = env("ADEPTH", 16)
YDELAY = env("YDELAY", 8)
ZSLEEP = env("ZSLEEP", 10)
ATOUCH = env("ATOUCH", 1)
XP = env("XP", "23")
LATE = env("LATE", 1)
PREPOST = env("PREPOST", 0)
EARLYWO = env("EARLYWO", 4)
WAITKV = env("WAITKV", 1)
GSC = env("GSC", "")
QX = env("QX", 1)
PREC = env("PREC", 0)
TLBW = env("TLBW", 0)
DBGOUT = env("DBGOUT", 0)
NTF = " nt" if env("NTF", 0) else ""
NTG = " nt" if env("NTG", 0) else ""
NTO = " nt" if env("NTO", 1) else ""
NTT = " nt" if env("NTT", 0) else ""
NTS = " nt" if env("NTS", 0) else ""
E3W = env("E3W", 1)
QEARLY = env("QEARLY", 0)
POSTPRE = env("POSTPRE", 0)
ASC = env("ASC", "")
P_Q, P_K, P_V, P_SHK, P_H, P_D, P_X, P_W, P_WO, P_OUT, P_DBG, P_WS = [76 + 2 * i for i in range(12)]
SV = 231


def stamp(a, i):
    if STAMP:
        a("s_memrealtime s[100:101]")
        a("s_waitcnt lgkmcnt(0)")
        a(f"v_writelane_b32 v{SV}, s100, {i}")


def stamp_flush(a, n):
    if not STAMP:
        return
    a("s_mov_b64 exec, -1")
    a("s_waitcnt vmcnt(0)")
    stamp(a, n)
    a(f"v_writelane_b32 v{SV}, s75, 15")
    if DBGOUT:
        lab = "K3_dbg%d" % len(a.ins)
        a(f"s_cmp_lg_u32 s2, {DBGOUT-1}")
        a(f"s_cbranch_scc1 {lab}")
        a("s_cmp_lg_u32 s4, 0")
        a(f"s_cbranch_scc1 {lab}")
        srd(a, 16, P_DBG, 256)
        a(f"v_readlane_b32 s20, v{SV}, 0")
        a("s_lshr_b32 s21, s3, 1")
        a("v_lshlrev_b32 v0, 2, v2")
        a(f"v_subrev_u32 v1, s20, v{SV}")
        a("s_mov_b64 exec, 0x3fe")
        a("buffer_store_short v1, v0, s[16:19], s21 offen")
        a("s_mov_b64 exec, -1")
        a.label(lab)
    srd_off(a, 16, P_WS, WS_DBG, 4 * MB)
    a("s_add_u32 s20, s2, 512")
    a("s_lshl_b32 s20, s20, 4")
    a("s_add_u32 s20, s20, s3")
    a("s_lshl_b32 s20, s20, 6")
    a("v_lshlrev_b32 v0, 2, v2")
    a("s_mov_b64 exec, 0xffff")
    a(f"buffer_store_dword v{SV}, v0, s[16:19], s20 offen")


def lds_wait(a, name, vaddr, off, val, vtmp, stmp, sleep=0):
    a(f"s_mov_b32 s{stmp+1}, {SPIN_MAX}")
    a.label(name)
    if sleep:
        a(f"s_sleep {sleep}")
    a(f"ds_read_b32 v{vtmp}, v{vaddr} offset:{off}")
    a("s_waitcnt lgkmcnt(0)")
    a(f"v_readfirstlane_b32 s{stmp}, v{vtmp}")
    a(f"s_sub_u32 s{stmp+1}, s{stmp+1}, 1")
    a(f"s_cbranch_scc1 {name}_ok")
    a(f"s_cmp_lt_u32 s{stmp}, {val}")
    a(f"s_cbranch_scc1 {name}")
    a.label(name + "_ok")


def lds_signal(a, vaddr, off, vone):
    a("s_mov_b64 exec, 1")
    a(f"ds_add_u32 v{vaddr}, v{vone} offset:{off}")
    a("s_mov_b64 exec, -1")


def and_reduce(a, dst, regs):
    regs = list(regs)
    a(f"v_bitop3_b32 v{dst}, v{regs[0]}, v{regs[1]}, 1 bitop3:0x80")
    i = 2
    while i + 1 < len(regs):
        a(f"v_bitop3_b32 v{dst}, v{dst}, v{regs[i]}, v{regs[i+1]} bitop3:0x80")
        i += 2
    if i < len(regs):
        a(f"v_and_b32 v{dst}, v{dst}, v{regs[i]}")


def gen_k3():
    a = Asm()
    a("s_cmp_ge_u32 s2, 256")
    a("s_cbranch_scc1 K3_end")
    a("s_load_dwordx8 s[84:91], s[0:1], 32")
    a("s_load_dwordx8 s[92:99], s[0:1], 64")
    a("s_load_dwordx8 s[76:83], s[0:1], 0")
    a("v_lshrrev_b32 v1, 6, v0")
    a("v_and_b32 v2, 63, v0")
    a("s_and_b32 s10, s2, 7")
    a("v_readfirstlane_b32 s3, v1")
    a("s_lshr_b32 s11, s2, 3")
    a("s_and_b32 s12, s10, 1")
    a("s_lshl_b32 s12, s12, 3")
    a("s_and_b32 s13, s11, 7")
    a("s_add_u32 s12, s12, s13")
    a("s_lshr_b32 s13, s10, 1")
    a("s_lshl_b32 s13, s13, 2")
    a("s_lshr_b32 s14, s11, 3")
    a("s_add_u32 s13, s13, s14")
    a("s_mov_b32 s75, 0")
    a("s_and_b32 s4, s3, 3")
    a("s_and_b32 s36, s3, 1")
    a("s_bfe_u32 s37, s3, 0x10001")
    a("s_lshl_b32 s5, s13, 1")
    a("s_add_u32 s5, s5, s37")
    a(f"s_xor_b32 s15, s5, {2 if QX else 0}")
    a("s_lshl_b32 s6, s10, 7")
    a("s_lshl_b32 s7, s11, 2")
    a("s_add_u32 s6, s6, s7")
    a("s_add_u32 s6, s6, s4")
    a(f"s_mul_i32 s7, s4, {CV_REG}")
    a("v_lshlrev_b32 v3, 4, v2")
    a("v_lshrrev_b32 v14, 4, v2")
    a("v_and_b32 v15, 15, v2")
    a("s_waitcnt lgkmcnt(0)")
    stamp(a, 0)
    spf = []
    a("s_cmp_ge_u32 s3, 4")
    a("s_cbranch_scc1 K3_L")

    a("s_cmp_lg_u32 s3, 0")
    a("s_cbranch_scc1 K3_pfw")
    srd(a, 40, P_X, 4 * MB)
    a("v_lshrrev_b32 v192, 3, v2")
    a("v_lshlrev_b32 v192, 11, v192")
    a("v_and_b32 v16, 7, v2")
    a("v_lshl_add_u32 v192, v16, 7, v192")
    a("s_lshl_b32 s45, s2, 14")
    a("s_add_u32 s44, s45, 1024")
    a("s_branch K3_pfd")
    a.label("K3_pfw")
    srd(a, 40, P_W, 6 * MB)
    a("v_lshlrev_b32 v192, 7, v2")
    a("s_mul_i32 s45, s2, 12288")
    a("s_sub_u32 s44, s3, 1")
    a("s_lshl_b32 s44, s44, 12")
    a("s_add_u32 s45, s45, s44")
    a(f"s_add_u32 s44, s45, {3*MB}")
    a("s_cmp_eq_u32 s3, 3")
    a(f"s_cselect_b32 s45, {8*MB}, s45")
    a(f"s_cselect_b32 s44, {8*MB}, s44")
    a.label("K3_pfd")
    if "1" in XP:
        a(f"s_mov_b32 s45, {16*MB}")
        a(f"s_mov_b32 s44, {16*MB}")
    a(f"buffer_load_dword v195, v192, s[40:43], s45 offen{NTT}")
    srd(a, 56, P_DBG, 256)
    srd_off(a, 60, P_WS, WS_FLAG, 4096)
    a("s_memrealtime s[16:17]")
    a("v_mov_b32 v199, 0")
    a("s_waitcnt lgkmcnt(0)")
    a("s_or_b32 s16, s16, 1")
    a("v_mov_b32 v198, s16")
    a("s_cmp_lg_u32 s3, 3")
    a("s_cbranch_scc1 K3_noseed")
    a("s_cmp_lg_u32 s11, 0")
    a("s_cbranch_scc1 K3_noseed")
    a("v_mov_b32 v196, s16")
    a("v_mov_b32 v197, 0")
    a("s_mov_b64 exec, 1")
    a("buffer_atomic_cmpswap v[196:197], v199, s[56:59], 0 offen sc1")
    a("s_mov_b64 exec, -1")
    a.label("K3_noseed")
    if TLBW:
        a("s_cmp_lg_u32 s3, 3")
        a("s_cbranch_scc1 K3_notlb")
        a(f"s_cmp_ge_u32 s11, {TLBW}")
        a("s_cbranch_scc1 K3_notlb")
        a("v_lshlrev_b32 v16, 16, v2")
        for p, nb, offs in ((P_K, 4, (0,)), (P_V, 4, (0,)), (P_H, 4, (0,)), (P_Q, 4, (0,)), (P_WO, 2, (0,)), (P_OUT, 8, (0, 4)), (P_WS, 20, (0, 8, 12, 16))):
            srd(a, 16, p, nb * MB)
            for o in offs:
                a(f"s_mov_b32 s20, {o*MB}")
                a("buffer_load_dword v195, v16, s[16:19], s20 offen nt")
        a.label("K3_notlb")
    a("s_lshl_b32 s46, s11, 7")
    a("s_lshl_b32 s47, s10, 2")
    a("s_add_u32 s47, s47, s46")
    if PREC:
        pre_compute = prepass(a, 3, P_K, P_V, P_SHK, " sc1", P_WS, NTO)
    a("s_cmp_ge_u32 s3, 2")
    a(f"s_cselect_b32 s48, s{P_V}, s{P_K}")
    a(f"s_cselect_b32 s49, s{P_V+1}, s{P_K+1}")
    a(f"s_mov_b32 s50, {4*MB}")
    a("s_mov_b32 s51, 0x20000")
    a("v_lshrrev_b32 v193, 2, v2")
    a("v_lshlrev_b32 v193, 11, v193")
    a("v_and_b32 v16, 3, v2")
    a("v_lshl_add_u32 v193, v16, 7, v193")
    a("s_lshr_b32 s45, s2, 2")
    a("s_lshl_b32 s45, s45, 16")
    a("s_lshl_b32 s46, s36, 15")
    a("s_add_u32 s45, s45, s46")
    a("s_and_b32 s46, s2, 3")
    a("s_lshl_b32 s46, s46, 9")
    a("s_add_u32 s45, s45, s46")
    if "2" in XP:
        a(f"s_mov_b32 s45, {16*MB}")
    a("v_mov_b32 v200, v15")
    for part in range(4):
        if part < 3:
            a(f"s_cmp_lg_u32 s3, {part}")
            a(f"s_cbranch_scc1 K3_e3_{part+1}")
        k2_prefetch_setup(a, part, 194, 64, 68, P_H, P_Q, P_WO)
        if part < 3:
            a("s_branch K3_e3_done")
            a.label(f"K3_e3_{part+1}")
    a.label("K3_e3_done")
    a("v_mov_b32 v15, v200")
    a(f"s_and_b32 s55, s11, {NDUTY-1}")
    a(f"s_add_u32 s55, s55, {DUTY0}")
    a(f"s_and_b32 s52, s11, {E2_N-1}")
    a(f"s_add_u32 s52, s52, {E2_0}")
    a("s_sub_u32 s52, s52, s55")
    a("s_sub_u32 s52, s52, 1")
    a("s_mov_b32 s54, 0")
    a("s_lshr_b32 s70, s11, 2")
    a(f"s_and_b32 s70, s70, {E3_N-1}")
    a(f"s_add_u32 s70, s70, {E3_0 if '3' not in XP else 1000}")
    if E3W:
        a("s_cmp_lt_u32 s3, 2")
        a("s_cselect_b32 s70, 1000, s70")
    a("s_cmp_eq_u32 s3, 3")
    a(f"s_cselect_b32 s71, {F1N-2}, 1000")
    a("s_mov_b32 s53, 0")
    if PREC:
        pre_compute()
    a("s_lshl_b32 s38, s36, 6")
    a("v_add_u32 v16, s38, v15")
    a("v_lshrrev_b32 v17, 1, v15")
    a("v_lshlrev_b32 v16, 7, v16")
    a("v_xor_b32 v17, v14, v17")
    a("v_lshl_add_u32 v4, v17, 4, v16")
    a("v_xor_b32 v5, 64, v4")
    a(f"v_add_u32 v6, {2*STAGE}, v4")
    a(f"v_add_u32 v7, {2*STAGE}, v5")
    a("v_bfe_u32 v17, v2, 2, 2")
    a("v_and_b32 v18, 3, v2")
    a("v_lshlrev_b32 v17, 6, v17")
    a("v_lshl_add_u32 v17, v18, 3, v17")
    a("v_and_b32 v18, 1, v14")
    a("v_lshl_add_u32 v17, v18, 10, v17")
    a("v_lshl_add_u32 v17, v18, 5, v17")
    a("v_lshrrev_b32 v18, 1, v14")
    a("v_mul_u32_u24 v18, 6144, v18")
    a("v_add_u32 v17, v17, v18")
    a("s_lshl_b32 s38, s37, 8")
    a("s_add_u32 s38, s38, 16384")
    a("v_add_u32 v8, s38, v17")
    a("v_xor_b32 v9, 32, v8")
    a(f"v_add_u32 v10, {2*STAGE}, v8")
    a(f"v_add_u32 v11, {2*STAGE}, v9")
    SB = [16, 56]

    def accr(kind, mt, dt):
        return 96 + 32 * kind + (mt * 2 + dt) * 4

    for i in range(96, 192):
        a(f"v_mov_b32 v{i}, 0")
    for op in spf[:SPF_C]:
        a(op)
    a("s_waitcnt lgkmcnt(0)")
    srd_off(a, 28, P_WS, WS_KVP, 2 * MB)
    srd_off(a, 32, P_WS, WS_ZP, 64 * 1024)
    lg = Cnt(a, "lgkmcnt", 15)

    def reads(slot, t, st):
        sb = (slot & 1) * STAGE
        va = 4 + t + (2 if slot >= 2 else 0)
        vb = 10 if slot >= 2 else 8
        R = SB[st]

        def A(mt):
            return [(("A", mt, st), f"ds_read_b128 {vr(R+4*mt)}, v{va} offset:{sb + 2048*mt}")]

        def B(cb):
            seg, nh = cb // 2, cb % 2
            return [(("B", cb, st), f"ds_read_b64_tr_b16 {vr(R+16+4*cb+2*h,2)}, v{vb+nh} offset:{sb + t*12288 + seg*2048 + 512*h}") for h in range(2)]
        return A(0) + B(0) + A(1) + A(2) + A(3) + B(1) + B(2) + B(3) + B(4) + B(5)

    def group(st, nxt):
        R = SB[st]
        nxt = list(nxt)
        for cb in range(6):
            kind, dt = cb // 2, cb % 2
            for mt in range(4):
                lg.wait_for([("A", mt, st), ("B", cb, st)])
                fa, fb = R + 4 * mt, R + 16 + 4 * cb
                if kind == 0:
                    mfma16(a, accr(0, mt, dt), fb, fa)
                else:
                    mfma16(a, accr(kind, mt, dt), fa, fb)
                if nxt:
                    tag, txt = nxt.pop(0)
                    a(txt)
                    lg.issue(tag)

    a("s_barrier")
    stamp(a, 1)
    for tag, txt in reads(0, 0, 0):
        a(txt)
        lg.issue(tag)
    lg.drain()
    a("s_mov_b32 s39, 4")
    a.label("K3_loop")
    for slot in range(4):
        group(0, reads(slot, 1, 1))
        lg.drain()
        a("s_barrier")
        a("s_sub_u32 s55, s55, 1")
        a(f"s_cbranch_scc1 K3_event{slot}")
        a.label(f"K3_noev{slot}")
        a("s_sub_u32 s70, s70, 1")
        a(f"s_cbranch_scc1 K3_evB{slot}")
        a.label(f"K3_noevB{slot}")
        a("s_sub_u32 s71, s71, 1")
        a(f"s_cbranch_scc1 K3_evC{slot}")
        a.label(f"K3_noevC{slot}")
        group(1, reads((slot + 1) % 4, 0, 0))
        if slot == 3:
            a("s_sub_u32 s39, s39, 1")
            a("s_cmp_lg_u32 s39, 0")
            lg.drain()
    a("s_cbranch_scc1 K3_loop")
    stamp(a, 2)

    a(f"s_mov_b32 s44, {LOG2E}")
    a(f"s_mov_b32 s45, {LOG2E}")
    a(f"s_mov_b32 s46, {EPS}")
    a(f"s_mov_b32 s47, {EPS}")
    a(f"v_mov_b32 v10, {SYNC}")
    a("v_mov_b32 v11, 1")
    for et in range(2):
        for m in range(2):
            d = 16 + 4 * (2 * et + m)
            for hh in range(2):
                s = accr(2, 2 * m + hh, et)
                a(f"v_cvt_pk_bf16_f32 v{d+2*hh}, v{s}, v{s+1}")
                a(f"v_cvt_pk_bf16_f32 v{d+2*hh+1}, v{s+2}, v{s+3}")
    for i in range(4):
        a(f"v_mov_b32 v{48+i}, 0x3f803f80")
    KV, ZZ, T = 160, 176, 52
    for m in range(2):
        for dt in range(2):
            for hh in range(2):
                s = accr(1, 2 * m + hh, dt)
                a(f"v_cvt_pk_bf16_f32 v{T+2*hh}, v{s}, v{s+1}")
                a(f"v_cvt_pk_bf16_f32 v{T+2*hh+1}, v{s+2}, v{s+3}")
            unpack4(a, T, T)
            kf = 32 + 4 * (2 * dt + m)
            phi8(a, T, kf, 44, 46)
            for et in range(2):
                mfma16(a, KV + 4 * (2 * et + dt), kf, 16 + 4 * (2 * et + m), "0" if m == 0 else None)
            mfma16(a, ZZ + 4 * dt, kf, 48, "0" if m == 0 else None)
    a("s_lshl_b32 s43, s37, 12")
    a(f"s_add_u32 s43, s43, {XCH}")
    a("v_add_u32 v4, s43, v3")
    a("s_lshl_b32 s43, s37, 7")
    a(f"s_add_u32 s43, s43, {XCZ}")
    a("v_lshlrev_b32 v5, 5, v14")
    a("v_add_u32 v5, s43, v5")
    a("s_lshl_b32 s43, s37, 2")
    a("v_add_u32 v6, s43, v10")
    a("s_cmp_eq_u32 s36, 0")
    a("s_cbranch_scc1 K3_wr0")
    for qd in range(4):
        a(f"ds_write_b128 v4, {vr(KV+4*qd)} offset:{1024*qd}")
    for dt in range(2):
        a(f"ds_write_b128 v5, {vr(ZZ+4*dt)} offset:{16*dt}")
    a("s_waitcnt lgkmcnt(0)")
    lds_signal(a, 6, S_X, 11)
    a("s_branch K3_q")
    a.label("K3_wr0")
    a("s_lshl_b32 s48, s5, 4")
    a("s_add_u32 s48, s48, s12")
    a("s_lshl_b32 s49, s48, 12")
    a("s_lshl_b32 s50, s48, 7")
    a("v_lshlrev_b32 v7, 4, v14")
    lds_wait(a, "K3_wx", 6, S_X, 1, 8, 42)
    for qd in range(4):
        a(f"ds_read_b128 {vr(16+4*qd)}, v4 offset:{1024*qd}")
    for dt in range(2):
        a(f"ds_read_b128 {vr(32+4*dt)}, v5 offset:{16*dt}")
    for qd in range(6):
        a(f"s_waitcnt lgkmcnt({5-qd})")
        a(f"v_pk_add_f32 {vr(KV+4*qd,2)}, {vr(KV+4*qd,2)}, {vr(16+4*qd,2)}")
        a(f"v_pk_add_f32 {vr(KV+4*qd+2,2)}, {vr(KV+4*qd+2,2)}, {vr(16+4*qd+2,2)}")
        for i in range(4):
            a(f"v_or_b32 v{KV+4*qd+i}, 1, v{KV+4*qd+i}")
        if qd < 4:
            a(f"buffer_store_dwordx4 {vr(KV+4*qd)}, v3, s[28:31], s49 offen offset:{1024*qd} sc1")
    a("s_mov_b32 exec_lo, 0x00010001")
    a("s_mov_b32 exec_hi, 0x00010001")
    for dt in range(2):
        a(f"buffer_store_dwordx4 {vr(ZZ+4*dt)}, v7, s[32:35], s50 offen offset:{64*dt} sc1")
    a("s_mov_b64 exec, -1")
    lds_signal(a, 10, S_KVS, 11)
    a.label("K3_q")
    stamp(a, 3)
    a("s_lshl_b32 s43, s3, 12")
    a(f"s_add_u32 s43, s43, {PQ_BASE}")
    a("v_add_u32 v4, s43, v3")
    for mt in range(4):
        d = 80 + 4 * mt
        for dt in range(2):
            sr = accr(0, mt, dt)
            a(f"v_cvt_pk_bf16_f32 v{T+2*dt}, v{sr}, v{sr+1}")
            a(f"v_cvt_pk_bf16_f32 v{T+2*dt+1}, v{sr+2}, v{sr+3}")
        unpack4(a, T, T)
        phi8(a, T, d, 44, 46)
        a(f"ds_write_b128 v4, {vr(d)} offset:{1024*mt}")
    a("s_lshl_b32 s43, s3, 2")
    a("v_add_u32 v9, s43, v10")
    a("v_and_b32 v6, 3, v2")
    a("v_bfe_u32 v7, v2, 2, 2")
    a("v_add_u32 v12, v6, v7")
    a("v_lshlrev_b32 v12, 3, v12")
    a("v_lshl_add_u32 v12, v14, 6, v12")
    a(f"s_add_u32 s43, s7, {CV_HB-24}")
    a("v_add_u32 v12, s43, v12")
    a("v_lshlrev_b32 v13, 5, v6")
    a("v_lshlrev_b32 v7, 3, v7")
    a("v_sub_u32 v13, v13, v7")
    a("v_lshlrev_b32 v7, 6, v14")
    a("v_sub_u32 v13, v13, v7")
    a(f"s_add_u32 s43, s7, {CV_UB+24-32}")
    a("v_add_u32 v13, s43, v13")
    a(f"s_add_u32 s43, s7, {CV_UB}")
    a("v_add_u32 v8, s43, v3")
    a("s_waitcnt lgkmcnt(0)")
    lds_signal(a, 9, S_PQ, 11)
    stamp(a, 4)
    lds_wait(a, "K3_whu", 9, S_HU, 1, 16, 42)
    stamp(a, 5)

    HH, FU = 32, 96
    ACC = [16, 20, 24, 28]
    T2, T1, YV, PK = [224, 225], [226, 227], [228, 229], [232, 236, 240, 244]
    lg.q = []

    def fu_reads(s):
        for hf in range(2):
            a(f"ds_read_b64_tr_b16 {vr(FU+4*s+2*hf,2)}, v13 offset:{128*s + 32*(1-hf)}")
            lg.issue(("fu", s))

    def h_reads(t):
        for hf in range(2):
            a(f"ds_read_b64_tr_b16 {vr(HH+4*t+2*hf,2)}, v12 offset:{256*t + 32*hf}")
            lg.issue(("h", t))

    def epi(Q):
        ops = []
        R0 = ACC[Q % 4]
        R1, R2, R3 = R0 + 1, R0 + 2, R0 + 3
        cur, prv = Q & 1, (Q & 1) ^ 1
        if Q == 0:
            ops.append(f"v_add_f32_dpp v{T2[cur]}, v{R3}, v{R2} wave_shr:1 {DPP} bound_ctrl:0")
            ops.append(f"v_add_f32_dpp v{T1[cur]}, v{T2[cur]}, v{R1} wave_shr:1 {DPP} bound_ctrl:0")
            ops.append(f"v_add_f32_dpp v{YV[cur]}, v{T1[cur]}, v{R0} wave_shr:1 {DPP} bound_ctrl:0")
        else:
            r3p = ACC[(Q - 1) % 4] + 3
            ops.append(f"v_add_f32_dpp v{T2[cur]}, v{r3p}, v{R2} wave_ror:1 {DPP}")
            ops.append(f"v_add_f32_dpp v{T1[cur]}, v{T2[prv]}, v{R1} wave_ror:1 {DPP}")
            ops.append(f"v_add_f32_dpp v{YV[cur]}, v{T1[prv]}, v{R0} wave_ror:1 {DPP}")
            ops.append(f"v_add_f32_dpp v{T2[cur]}, v{R3}, v{R2} wave_shr:1 {DPP}")
            ops.append(f"v_add_f32_dpp v{T1[cur]}, v{T2[cur]}, v{R1} wave_shr:1 {DPP}")
            ops.append(f"v_add_f32_dpp v{YV[cur]}, v{T1[cur]}, v{R0} wave_shr:1 {DPP}")
        if Q & 1:
            p = PK[Q // 8] + (Q % 8) // 2
            ops.append(f"v_cvt_pk_bf16_f32 v{p}, v{YV[0]}, v{YV[1]}")
            ops.append(f"v_or_b32 v{p}, 1, v{p}")
        return ops

    PRE = 3
    for c in range(PRE):
        fu_reads(c)
        if c % 2 == 0:
            h_reads(c // 2)
    pending = []
    for c in range(32):
        nst = c // 2 + 1
        for t in range(nst):
            s = c - 2 * t
            lg.wait_for([("fu", s), ("h", t)])
            mfma16(a, ACC[c % 4], FU + 4 * s, HH + 4 * t, "0" if t == 0 else None)
            if t == 0 and c + PRE < 32:
                fu_reads(c + PRE)
                if (c + PRE) % 2 == 0:
                    h_reads((c + PRE) // 2)
            if t == 0 and c >= 2:
                assert not pending
                pending = epi(c - 2)
            k = max(1, -(-len(pending) // (nst - t))) if pending else 0
            for _ in range(k):
                a(pending.pop(0))
    for Q in (30, 31):
        for op in epi(Q):
            a(op)
    srd_off(a, 28, P_WS, WS_UT, 4 * MB)
    a("s_lshl_b32 s40, s6, 12")
    for g in range(4):
        a(f"buffer_store_dwordx4 {vr(PK[g])}, v3, s[28:31], s40 offen offset:{1024*g} sc1")
    a("s_and_b32 s40, s10, 3")
    a("s_lshl_b32 s40, s40, 2")
    a("s_and_b32 s41, s11, 3")
    a("s_add_u32 s40, s40, s41")
    a("s_lshl_b32 s41, s40, 3")
    a("s_lshl_b32 s42, s3, 1")
    a("s_add_u32 s41, s41, s42")
    a("s_lshl_b32 s48, s41, 15")
    a("s_mov_b32 s47, s48")
    a("v_lshrrev_b32 v5, 5, v2")
    a("v_and_b32 v6, 1, v14")
    a("v_lshlrev_b32 v12, 15, v6")
    a("v_lshl_add_u32 v12, v5, 8, v12")
    a("v_lshl_add_u32 v12, v15, 4, v12")
    srd_off(a, 28, P_WS, WS_OF, 4 * MB)
    srd(a, 32, P_OUT, 8 * MB)
    a("s_waitcnt lgkmcnt(0)")
    lds_signal(a, 9, S_CD, 11)
    stamp(a, 6)
    lds_wait(a, "K3_wwo", 10, S_WOM, 4, 80, 42)
    stamp(a, 7)
    vm = Cnt(a, "vmcnt", 63)
    AR = 96
    D = ADEPTH
    if "a" in XP:
        srd(a, 28, P_X, 4 * MB)
        a("s_lshl_b32 s48, s12, 18")
        a("s_lshl_b32 s47, s3, 16")
        a("s_add_u32 s48, s48, s47")

    def aload(h):
        for f in range(2):
            r = AR + 8 * (h % D) + 4 * f
            a(f"buffer_load_dwordx4 {vr(r)}, v12, s[28:31], s48 offen offset:{1024*(h%4)+512*f}{ASC}")
            vm.issue(("A", h))
        if h % 4 == 3:
            a("s_add_u32 s48, s48, 4096")

    for h in range(8):
        aload(h)
    anext = [8]
    a("v_bfe_u32 v4, v2, 2, 2")
    a("v_and_b32 v7, 3, v2")
    a("v_lshlrev_b32 v4, 6, v4")
    a("v_lshl_add_u32 v4, v7, 3, v4")
    a("v_lshl_add_u32 v4, v5, 9, v4")
    a("v_xor_b32 v7, v6, v5")
    a("v_lshl_add_u32 v13, v7, 5, v4")
    a(f"v_add_u32 v4, {WO_BASE}, v13")
    a(f"v_add_u32 v8, {WO_BASE + 65536}, v13")

    def check_ops(g):
        r = AR + 8 * ((4 * g) % D)
        ops = [f"v_bitop3_b32 v81, v{r}, v{r+1}, v{r+2} bitop3:0x80"]
        for i in range(3, 31, 2):
            ops.append(f"v_bitop3_b32 v81, v81, v{r+i}, v{r+i+1} bitop3:0x80")
        ops.append(f"v_bitop3_b32 v81, v81, v{r+31}, 1 bitop3:0x80")
        return ops

    def check_branch(g):
        if "a" in XP:
            a.label(f"K3_retry{g}_ret")
            return
        a("v_cmp_eq_u32 vcc, 0, v81")
        a("s_cmp_lg_u64 vcc, 0")
        a(f"s_cbranch_scc1 K3_retry{g}")
        a.label(f"K3_retry{g}_ret")

    def retry_block(g):
        a.label(f"K3_retry{g}")
        a(f"s_mov_b32 s46, {RETRY_MAX}")
        a(f"s_add_u32 s44, s47, {4096*g}")
        a.label(f"K3_retry{g}_l")
        a("s_add_u32 s75, s75, 1")
        a("s_sleep 4")
        for hh in range(4):
            for f in range(2):
                r = AR + 8 * ((4 * g + hh) % D) + 4 * f
                a(f"buffer_load_dwordx4 {vr(r)}, v12, s[28:31], s44 offen offset:{1024*hh+512*f} sc1")
        a("s_waitcnt vmcnt(0)")
        for op in check_ops(g):
            a(op)
        a("v_cmp_eq_u32 vcc, 0, v81")
        a("s_sub_u32 s46, s46, 1")
        a(f"s_cbranch_scc1 K3_retry{g}_ret")
        a("s_cmp_lg_u64 vcc, 0")
        a(f"s_cbranch_scc1 K3_retry{g}_l")
        a(f"s_branch K3_retry{g}_ret")

    lg.q = []
    BS = [48, 64]

    def breads(h):
        out = []
        st = h & 1
        if h < 16:
            vb, off = 4, h * 4096
        elif h < 28:
            vb, off = 8, (h - 16) * 4096
        else:
            vb, off = 13, (h - 28) * CV_REG
        for f in range(2):
            for nb in range(2):
                for hf in range(2):
                    out.append(((h, f, nb), f"ds_read_b64_tr_b16 {vr(BS[st]+8*f+4*nb+2*hf,2)}, v{vb} offset:{off + f*1024 + hf*2048 + nb*256}"))
        return out

    for tag, txt in breads(0):
        a(txt); lg.issue(tag)
    vm.wait_for([("A", 3)])
    for op in check_ops(0):
        a(op)
    check_branch(0)
    chk = []
    for h in range(32):
        nxt = []
        if h + 1 < 32:
            nxt = breads(h + 1)
        if h % 4 == 2 and h + 2 < 32:
            vm.wait_for([("A", h + 5)])
            chk = check_ops(h // 4 + 1) if "k" not in XP else []
        for f in range(2):
            for nb in range(2):
                lg.wait_for([(h, f, nb)])
                d = 16 + 16 * nb
                cs = "0" if (h == 0 and f == 0) else vr(d, 16)
                a(f"v_mfma_f32_32x32x16_bf16 {vr(d,16)}, {vr(BS[h&1]+8*f+4*nb)}, {vr(AR+8*(h%D)+4*f)}, {cs}")
                for _ in range(2):
                    if nxt:
                        tag, txt = nxt.pop(0)
                        a(txt); lg.issue(tag)
                    if chk:
                        a(chk.pop(0))
        if h % 4 == 3 and h + 1 < 32:
            assert not chk
            check_branch(h // 4 + 1)
        for _ in range(2):
            if anext[0] < 32 and anext[0] <= h + D and "n" not in XP:
                aload(anext[0]); anext[0] += 1
    stamp(a, 8)
    a("v_and_b32 v4, 31, v2")
    a("v_lshlrev_b32 v4, 12, v4")
    a("v_lshl_add_u32 v4, v5, 4, v4")
    a("s_lshr_b32 s36, s10, 2")
    a("s_lshl_b32 s36, s36, 3")
    a("s_lshr_b32 s37, s11, 2")
    a("s_add_u32 s36, s36, s37")
    a("s_lshl_b32 s38, s41, 16")
    a("s_lshl_b32 s39, s36, 7")
    a("s_add_u32 s38, s38, s39")
    a("s_add_u32 s38, s38, 2048")
    for nb in range(2):
        for kp in range(2):
            P = 80 + 8 * nb + 4 * kp
            t0 = 16 + 16 * nb + 8 * kp
            for i in range(4):
                a(f"v_cvt_pk_bf16_f32 v{P+i}, v{t0+2*i}, v{t0+2*i+1}")
            a(f"v_permlane32_swap_b32 v{P}, v{P+2}")
            a(f"v_permlane32_swap_b32 v{P+1}, v{P+3}")
            a(f"buffer_store_dwordx4 {vr(P)}, v4, s[32:35], s38 offen offset:{64*nb+32*kp}{NTS}")
    stamp_flush(a, 9)
    a("s_endpgm")
    for g in range(8):
        retry_block(g)
    for slot in range(4):
        a.label(f"K3_event{slot}")
        a("s_add_u32 s54, s54, 1")
        a("s_cmp_lg_u32 s54, 1")
        a(f"s_cbranch_scc1 K3_ev2_{slot}")
        a(f"buffer_load_dword v195, v192, s[40:43], s44 offen{NTT}")
        a("s_mov_b32 s55, s52")
        a(f"s_branch K3_noev{slot}")
        a.label(f"K3_ev2_{slot}")
        if PREC:
            a("s_waitcnt vmcnt(0)")
        a(f"buffer_load_dword v195, v193, s[48:51], s45 offen{NTT}")
        a("s_mov_b32 s55, 1000")
        a(f"s_branch K3_noev{slot}")
        a.label(f"K3_evB{slot}")
        a(f"buffer_load_dword v195, v194, s[64:67], s68 offen{NTT}")
        a(f"buffer_load_dword v195, v194, s[64:67], s69 offen{NTT}")
        a(f"s_branch K3_noevB{slot}")
        a.label(f"K3_evC{slot}")
        a("s_add_u32 s53, s53, 1")
        a("s_cmp_lg_u32 s53, 1")
        a(f"s_cbranch_scc1 K3_ev4_{slot}")
        a("buffer_load_dword v196, v199, s[56:59], 0 offen sc1")
        a("s_mov_b32 s71, 1")
        a(f"s_branch K3_noevC{slot}")
        a.label(f"K3_ev4_{slot}")
        a("s_cmp_lg_u32 s53, 2")
        a(f"s_cbranch_scc1 K3_ev6_{slot}")
        a("s_waitcnt vmcnt(0)")
        a("v_readfirstlane_b32 s46, v196")
        a("s_mov_b64 exec, 1")
        a("s_cmp_lg_u32 s46, 0")
        a(f"s_cbranch_scc1 K3_ev5_{slot}")
        a("v_mov_b32 v196, v198")
        a("v_mov_b32 v197, 0")
        a("buffer_atomic_cmpswap v[196:197], v199, s[56:59], 0 offen sc0 sc1")
        a("s_waitcnt vmcnt(0)")
        a("v_cmp_eq_u32 vcc, 0, v196")
        a("v_cndmask_b32 v196, v196, v198, vcc")
        a.label(f"K3_ev5_{slot}")
        a("buffer_store_dword v196, v199, s[60:63], s47 offen sc1")
        a("s_mov_b64 exec, -1")
        a(f"s_mov_b32 s71, {FLAGN-F1N-1 if not POSTPRE else 1000}")
        a(f"s_branch K3_noevC{slot}")
        a.label(f"K3_ev6_{slot}")
        a("s_mov_b64 exec, 1")
        a("buffer_store_dword v196, v199, s[60:63], s47 offen offset:32 sc1")
        a("s_mov_b64 exec, -1")
        a("s_mov_b32 s71, 1000")
        a(f"s_branch K3_noevC{slot}")

    a.label("K3_L")
    a("v_lshrrev_b32 v4, 3, v2")
    a("v_and_b32 v5, 7, v2")
    for jl in range(4):
        a(f"v_add_u32 v6, {4*(jl&1)}, v14")
        a("v_xor_b32 v6, v6, v5")
        a("v_lshlrev_b32 v6, 4, v6")
        a("v_lshl_add_u32 v6, v4, 11, v6")
        a(f"v_add_u32 v{240+jl}, {jl*(16384-1024)}, v6")
    a("v_lshrrev_b32 v6, 5, v2")
    a("v_bfe_u32 v7, v2, 2, 2")
    a("v_lshl_add_u32 v6, v6, 2, v7")
    a("v_mul_u32_u24 v6, 6144, v6")
    a("v_bfe_u32 v7, v2, 4, 1")
    a("v_lshl_add_u32 v6, v7, 6, v6")
    a("v_and_b32 v7, 3, v2")
    a("v_lshl_add_u32 v6, v7, 4, v6")
    a("v_xor_b32 v7, 32, v6")
    a("s_and_b32 s40, s13, 1")
    a("s_lshl_b32 s40, s40, 7")
    a(f"s_xor_b32 s41, s40, {128 if QX else 0}")
    binst = []
    for seg in range(3):
        for gg in range(2):
            ldsoff = seg * 2048 + gg * 1024
            m0sel, ioff = ldsoff // 4096, ldsoff % 4096
            reg = 244 + seg * 2 + gg
            a(f"v_add_u32 v{reg}, {8*gg*6144 + seg*2048 - ioff}, v{6+gg}")
            a(f"v_add_u32 v{reg}, s{41 if seg == 0 else 40}, v{reg}")
            binst.append((reg, m0sel, ioff))
    a("s_lshl_b32 s38, s12, 7")
    a("s_lshl_b32 s40, s4, 5")
    a("s_add_u32 s38, s38, s40")
    a("s_lshl_b32 s38, s38, 11")
    a("s_mul_i32 s39, s4, 98304")
    a("s_lshr_b32 s40, s13, 1")
    a("s_lshl_b32 s40, s40, 8")
    a("s_add_u32 s39, s39, s40")
    a("s_lshl_b32 s41, s4, 12")
    a("s_mul_i32 s42, s4, 6144")
    a("s_add_u32 s42, s42, 16384")
    srd(a, 16, P_X, 4 * MB)
    srd(a, 20, P_W, 6 * MB)
    vm = Cnt(a, "vmcnt", 63)

    def issue(kt):
        sb = (kt % NS) * STAGE
        a(f"s_add_u32 m0, s41, {sb}")
        for jl in range(4):
            a(f"buffer_load_dwordx4 v{240+jl}, s[16:19], s38 offen offset:{jl*1024}{NTG} lds")
            vm.issue(("st", kt))
        cur = -1
        for reg, m0sel, ioff in binst:
            if m0sel != cur:
                a(f"s_add_u32 m0, s42, {sb + 4096*m0sel}")
                cur = m0sel
            a(f"buffer_load_dwordx4 v{reg}, s[20:23], s39 offen offset:{ioff}{NTG} lds")
            vm.issue(("st", kt))
        a("s_add_u32 s38, s38, 128")
        a(f"s_add_u32 s39, s39, {64*6144}")

    for kt in range(NS - 1):
        issue(kt)
    srd(a, 24, P_K, 4 * MB)
    srd(a, 28, P_V, 4 * MB)
    srd(a, 32, P_SHK, 8192)
    srd_off(a, 44, P_WS, WS_UT, 4 * MB)
    srd_off(a, 48, P_WS, WS_OF, 4 * MB)
    srd_off(a, 52, P_WS, WS_KVP, 2 * MB)
    srd_off(a, 56, P_WS, WS_ZP, 64 * 1024)
    a("s_lshl_b32 s60, s2, 2")
    a("s_add_u32 s60, s60, s4")
    a("s_and_b32 s61, s60, 15")
    a("s_lshr_b32 s60, s60, 4")
    a("s_lshl_b32 s62, s60, 16")
    a("s_lshl_b32 s63, s61, 7")
    a("s_add_u32 s62, s62, s63")
    a("v_lshlrev_b32 v21, 14, v14")
    a("v_lshl_add_u32 v21, v15, 3, v21")
    a("v_add_u32 v21, s62, v21")
    a("s_lshl_b32 s63, s61, 9")
    a("v_lshlrev_b32 v22, 5, v15")
    a("s_lshl_b32 s62, s61, 18")
    a("s_lshl_b32 s64, s60, 6")
    a("s_add_u32 s62, s62, s64")
    a("v_lshlrev_b32 v19, 14, v15")
    a("v_lshl_add_u32 v19, v14, 4, v19")
    a("s_lshl_b32 s64, s12, 3")
    a("s_lshl_b32 s65, s4, 1")
    a("s_add_u32 s64, s64, s65")
    a("s_lshl_b32 s64, s64, 15")
    a("s_lshr_b32 s65, s15, 1")
    a("s_lshl_b32 s65, s65, 11")
    a("s_add_u32 s64, s64, s65")
    a("s_add_u32 s65, s64, 32768")
    a("s_lshl_b32 s66, s5, 4")
    a("s_add_u32 s66, s66, s12")
    a("s_lshl_b32 s67, s66, 7")
    a("s_lshl_b32 s66, s66, 12")
    a("s_lshl_b32 s68, s36, 11")
    a("s_add_u32 s66, s66, s68")
    for i in range(4):
        a(f"v_mov_b32 v{160+i}, 0")
    a("v_and_b32 v18, 7, v2")
    a("v_lshlrev_b32 v18, 4, v18")
    fills = [
        f"buffer_store_dwordx4 v[160:163], v3, s[48:51], s64 offen sc1{NTF}",
        f"buffer_store_dwordx4 v[160:163], v3, s[48:51], s64 offen offset:1024 sc1{NTF}",
        f"buffer_store_dwordx4 v[160:163], v3, s[48:51], s65 offen sc1{NTF}",
        f"buffer_store_dwordx4 v[160:163], v3, s[48:51], s65 offen offset:1024 sc1{NTF}",
        f"buffer_store_dwordx4 v[160:163], v3, s[52:55], s66 offen sc1{NTF}",
        f"buffer_store_dwordx4 v[160:163], v3, s[52:55], s66 offen offset:1024 sc1{NTF}",
        f"buffer_store_dwordx4 v[160:163], v18, s[56:59], s67 offen sc1{NTF}",
    ]
    W, KF, VF, KS = 72, 88, 110, 126
    loads = []
    for i in range(2):
        loads.append([f"buffer_load_dwordx4 {vr(24+4*i)}, v22, s[32:35], s63 offen offset:{16*i}"])
    for i in range(11):
        loads.append([f"v_add_u32 v23, {((i-3)*2048) & 0xffffffff}, v21", f"buffer_load_dwordx2 {vr(32+2*i,2)}, v23, s[24:27], 0 offen{NTO}"])
    for i in range(8):
        loads.append([f"v_add_u32 v23, {i*2048}, v21", f"buffer_load_dwordx2 {vr(54+2*i,2)}, v23, s[28:31], 0 offen{NTO}"])
    comp = []
    for ci in range(4):
        comp += [f"v_lshlrev_b32 v{W+ci}, 16, v{24+2*ci}", f"v_and_b32 v{W+4+ci}, 0xffff0000, v{24+2*ci}",
                 f"v_lshlrev_b32 v{W+8+ci}, 16, v{25+2*ci}", f"v_and_b32 v{W+12+ci}, 0xffff0000, v{25+2*ci}"]
    for cp in range(2):
        for i in range(11):
            comp += [f"v_lshlrev_b32 v{KF+2*i}, 16, v{32+2*i+cp}", f"v_and_b32 v{KF+2*i+1}, 0xffff0000, v{32+2*i+cp}"]
        for i in range(8):
            comp += [f"v_lshlrev_b32 v{VF+2*i}, 16, v{54+2*i+cp}", f"v_and_b32 v{VF+2*i+1}, 0xffff0000, v{54+2*i+cp}"]
        for i in range(16):
            comp.append(f"v_mul_f32 v{KS+i}, v{KF+i}, v{W+12+2*cp+(i&1)}")
        for j in (2, 1, 0):
            for i in range(16):
                comp.append(f"v_fmac_f32 v{KS+i}, v{KF+2*(3-j)+i}, v{W+4*j+2*cp+(i&1)}")
        for i in range(16):
            comp.append(f"v_mul_f32 v{KS+i}, v{KS+i}, v{VF+i}")
        O = 144 + 8 * cp
        for e in range(2):
            for i in range(4):
                comp.append(f"v_cvt_pk_bf16_f32 v{O+4*e+i}, v{KS+4*i+e}, v{KS+4*i+2+e}")
        for i in range(8):
            comp.append(f"v_and_b32 v{O+i}, -2, v{O+i}")
        for e in range(2):
            comp.append(("st", f"buffer_store_dwordx4 {vr(O+4*e)}, v19, s[44:47], s62 offen sc1"))
            comp.append("s_add_u32 s62, s62, 4096")
    PCE = FLAGN
    NPC = PCE - (PL0 + 2)
    per = -(-len(comp) // NPC)
    a("v_lshrrev_b32 v6, 5, v2")
    a("v_bfe_u32 v7, v2, 2, 2")
    a("v_lshl_add_u32 v7, v6, 2, v7")
    a("v_lshlrev_b32 v7, 11, v7")
    a("v_bfe_u32 v8, v2, 4, 1")
    a("v_lshl_add_u32 v7, v8, 6, v7")
    a("v_and_b32 v8, 3, v2")
    a("v_lshlrev_b32 v6, 1, v6")
    a("v_xor_b32 v8, v8, v6")
    a("v_lshl_add_u32 v7, v8, 4, v7")
    for i in range(4):
        a(f"v_add_u32 v{232+i}, {i*(16384-1024)}, v7")
    a("s_lshl_b32 s69, s4, 16")
    a("s_lshr_b32 s70, s10, 2")
    a("s_lshl_b32 s70, s70, 3")
    a("s_lshr_b32 s71, s11, 2")
    a("s_add_u32 s70, s70, s71")
    a("s_lshl_b32 s70, s70, 7")
    a("s_add_u32 s69, s69, s70")
    a("s_lshl_b32 s70, s4, 12")
    a(f"s_add_u32 s70, s70, {WO_BASE}")
    a("s_lshl_b32 s71, s6, 12")
    a(f"v_mov_b32 v10, {SYNC}")
    a("v_mov_b32 v11, 1")
    a("s_lshl_b32 s43, s4, 2")
    a("v_add_u32 v9, s43, v10")

    def wo_issue(k):
        if k < 7:
            a(f"s_add_u32 m0, s70, {k*16384}")
        else:
            a("s_mov_b32 m0, s7")
        for i in range(4):
            a(f"buffer_load_dwordx4 v{232+i}, s[20:23], s69 offen offset:{i*1024}{NTG} lds")
            vm.issue("wo")
        a(f"s_add_u32 s69, s69, {128*2048}")

    def post_setup():
        a("s_lshl_b32 s16, s10, 1")
        a("s_lshr_b32 s17, s11, 4")
        a("s_add_u32 s16, s16, s17")
        a("s_and_b32 s17, s11, 15")
        a("s_lshl_b32 s17, s17, 2")
        a("s_add_u32 s17, s17, s4")
        a("s_lshr_b32 s18, s17, 4")
        a("s_and_b32 s17, s17, 15")
        a("s_lshl_b32 s19, s18, 9")
        a("s_lshl_b32 s64, s17, 2")
        a("s_add_u32 s19, s19, s64")
        a("s_lshl_b32 s64, s19, 11")
        a("s_lshl_b32 s65, s16, 7")
        a("s_add_u32 s64, s64, s65")
        a("s_lshl_b32 s72, s19, 12")
        a("s_add_u32 s72, s72, s65")
        a("s_lshl_b32 s73, s16, 18")
        a("s_lshl_b32 s65, s18, 10")
        a("s_add_u32 s73, s73, s65")
        a("s_lshl_b32 s65, s17, 6")
        a("s_add_u32 s73, s73, s65")
        a("s_add_u32 s65, s73, 4096")
        a("s_add_u32 s66, s73, 8192")
        a("s_add_u32 s67, s73, 12288")
        a("v_lshlrev_b32 v224, 12, v14")
        a("v_lshl_add_u32 v224, v15, 3, v224")
        a("v_lshlrev_b32 v225, 14, v15")
        a("v_lshl_add_u32 v225, v14, 4, v225")

    def q_loads():
        srd(a, 16, P_Q, 4 * MB)
        a("v_lshlrev_b32 v4, 11, v14")
        a("v_lshl_add_u32 v4, v15, 3, v4")
        for jj in range(8):
            a(f"buffer_load_dwordx2 {vr(QR+2*jj,2)}, v4, s[16:19], s64 offen{NTO}")
            vm.issue("q")
            a(f"s_add_u32 s64, s64, {64*2048}")

    QR = 208

    def h_issue():
        a(f"s_add_u32 m0, s7, {CV_HB}")
        for c in range(4):
            a(f"buffer_load_dwordx4 v3, s[16:19], s71 offen offset:{1024*c}{NTO} lds")
            vm.issue("h")
        a("s_lshl_b32 s43, s6, 1")
        a("v_mov_b32 v4, 0")
        a("buffer_load_ushort v164, v4, s[20:23], s43 offen")
        vm.issue("h")
        srd(a, 20, P_WO, 2 * MB)

    for kt in range(16):
        tags = [("st", kt)]
        if kt == F1N + 1:
            tags += ["fill"]
        if kt == FLAGN + 1:
            tags += ["ust"]
        vm.wait_for(tags)
        if kt == 14:
            a("s_waitcnt lgkmcnt(0)")
        a("s_barrier")
        if kt + NS - 1 < 16:
            issue(kt + NS - 1)
        for op in spf[SPF_C + kt * SPF_L: SPF_C + (kt + 1) * SPF_L]:
            a(op)
        if 0 <= kt < 7 and "f" not in XP:
            a(fills[kt]); vm.issue("fill")
        if POSTPRE and kt in (14, 15):
            for grp in (loads[:13] if kt == 14 else loads[13:]):
                for op in grp:
                    a(op)
                vm.issue("pre")
        if kt in (PL0, PL0 + 1) and "l" not in XP and not POSTPRE and not PREC:
            part = loads[:11] if kt == PL0 else loads[11:]
            for grp in part:
                for op in grp:
                    a(op)
                vm.issue("pre")
        if kt == 13:
            post_setup()
            srd(a, 16, P_H, 4 * MB)
            srd(a, 20, P_D, 2048)
            a("v_mov_b32 v4, 0")
            a("v_lshlrev_b32 v5, 2, v2")
            a(f"v_add_u32 v6, {SYNC}, v5")
            a("ds_write_b32 v6, v4")
            a("v_add_u32 v6, s7, v5")
            a(f"ds_write_b32 v6, v4 offset:{CV_UB-256}")
            a("v_and_b32 v6, 7, v2")
            a("v_lshlrev_b32 v6, 2, v6")
            a("v_add_u32 v6, s7, v6")
            a("ds_write_b32 v6, v4")
            h_issue()
            if QEARLY:
                q_loads()
        if PL0 + 2 <= kt < PCE and not POSTPRE and not PREC:
            if kt == PL0 + 2:
                vm.wait_for(["pre"])
            for op in comp[:per]:
                if "c" in XP and not isinstance(op, tuple):
                    continue
                if isinstance(op, tuple):
                    a(op[1]); vm.issue("ust")
                else:
                    a(op)
            comp = comp[per:]
        if kt == 14 and EARLYWO >= 2:
            wo_issue(0); wo_issue(1)
        if kt == 15 and EARLYWO >= 4:
            wo_issue(2); wo_issue(3)
    assert POSTPRE or PREC or not comp
    a("s_barrier")
    stamp(a, 1)
    if POSTPRE:
        vm.wait_for(["pre"])
        for ci in range(4):
            a(f"v_lshlrev_b32 v{W+ci}, 16, v{24+2*ci}")
            a(f"v_and_b32 v{W+4+ci}, 0xffff0000, v{24+2*ci}")
            a(f"v_lshlrev_b32 v{W+8+ci}, 16, v{25+2*ci}")
            a(f"v_and_b32 v{W+12+ci}, 0xffff0000, v{25+2*ci}")
        for cp in range(2):
            for i in range(11):
                a(f"v_lshlrev_b32 v{KF+2*i}, 16, v{32+2*i+cp}")
                a(f"v_and_b32 v{KF+2*i+1}, 0xffff0000, v{32+2*i+cp}")
            for i in range(8):
                a(f"v_lshlrev_b32 v{VF+2*i}, 16, v{54+2*i+cp}")
                a(f"v_and_b32 v{VF+2*i+1}, 0xffff0000, v{54+2*i+cp}")
            for i in range(8):
                a(f"v_pk_mul_f32 {vr(KS+2*i,2)}, {vr(KF+2*i,2)}, {vr(W+12+2*cp,2)}")
            for j in (2, 1, 0):
                for i in range(8):
                    a(f"v_pk_fma_f32 {vr(KS+2*i,2)}, {vr(KF+2*(i+3-j),2)}, {vr(W+4*j+2*cp,2)}, {vr(KS+2*i,2)}")
            for i in range(8):
                a(f"v_pk_mul_f32 {vr(KS+2*i,2)}, {vr(KS+2*i,2)}, {vr(VF+2*i,2)}")
            O = 144 + 8 * cp
            for e in range(2):
                for i in range(4):
                    a(f"v_cvt_pk_bf16_f32 v{O+4*e+i}, v{KS+4*i+e}, v{KS+4*i+2+e}")
            for i in range(8):
                a(f"v_and_b32 v{O+i}, -2, v{O+i}")
            for e in range(2):
                a(f"buffer_store_dwordx4 {vr(O+4*e)}, v19, s[44:47], s62 offen sc1")
                a("s_add_u32 s62, s62, 4096")
    srd(a, 24, P_DBG, 256)
    srd(a, 32, P_OUT, 8 * MB)
    a("s_mov_b32 s40, 0")
    a("s_mov_b32 s42, 0")
    a("v_lshrrev_b32 v5, 1, v2")
    a("v_lshlrev_b32 v5, 7, v5")
    a("v_and_b32 v4, 1, v2")
    a("v_lshl_add_u32 v5, v4, 4, v5")
    a("v_mov_b32 v4, 0")
    a("buffer_load_dword v226, v4, s[24:27], 0 offen sc1")
    srd_off(a, 24, P_WS, WS_FLAG, 4096)
    a("v_lshlrev_b32 v6, 7, v15")
    a("v_lshl_add_u32 v6, v14, 4, v6")
    a("s_lshl_b32 s60, s15, 11")
    a("s_lshl_b32 s61, s15, 16")
    a("s_lshl_b32 s62, s36, 11")
    a("s_add_u32 s61, s61, s62")

    def flagcmp(r):
        for i in range(4):
            a(f"v_xor_b32 v{r+i}, v{r+i}, v226")
        a(f"v_or3_b32 v{r}, v{r}, v{r+1}, v{r+2}")
        a(f"v_or_b32 v{r}, v{r}, v{r+3}")
        a(f"v_cmp_ne_u32 vcc, 0, v{r}")

    def u_block(ret):
        a(f"s_add_u32 m0, s7, {CV_UB}")
        for c in range(4):
            a(f"buffer_load_dwordx4 v3, s[44:47], s71 offen offset:{1024*c} sc1 lds")
        a("s_mov_b32 s42, 1")
        a("s_waitcnt vmcnt(0) lgkmcnt(0)")
        lds_signal(a, 9, S_HU, 11)
        stamp(a, 3)
    a(f"s_mov_b32 s43, {RETRY_MAX}")
    a.label("K3_fp")
    a(f"buffer_load_dwordx4 {vr(24)}, v5, s[24:27], 0 offen sc1")
    a(f"buffer_load_dwordx4 {vr(28)}, v5, s[24:27], 0 offen offset:32 sc1")
    a("s_waitcnt vmcnt(0)")
    vm.q = []
    flagcmp(24)
    a("s_sub_u32 s43, s43, 1")
    a("s_cbranch_scc1 K3_fp_ok")
    a("s_cmp_eq_u64 vcc, 0")
    a("s_cbranch_scc1 K3_fp_ok")
    a("s_add_u32 s75, s75, 1")
    a("s_sleep 8")
    a("s_branch K3_fp")
    a.label("K3_fp_ok")
    if POSTPRE:
        a("s_mov_b64 exec, 1")
        a(f"ds_add_rtn_u32 v7, v10, v11 offset:{S_GO}")
        a("s_waitcnt lgkmcnt(0)")
        a("v_readfirstlane_b32 s43, v7")
        a("s_lshl_b32 s62, s11, 7")
        a("s_lshl_b32 s63, s10, 2")
        a("s_add_u32 s62, s62, s63")
        a("s_cmp_lg_u32 s43, 3")
        a("s_cbranch_scc1 K3_nof2")
        a("buffer_store_dword v226, v4, s[24:27], s62 offen offset:32 sc1")
        a.label("K3_nof2")
        a("s_mov_b64 exec, -1")
    stamp(a, 2)
    a("v_mov_b32 v4, s7")
    a(f"ds_read_u16 v7, v4 offset:{CV_HB}")
    a("v_lshlrev_b32 v164, 16, v164")
    a("s_waitcnt lgkmcnt(0)")
    a("v_lshlrev_b32 v7, 16, v7")
    a("v_add_f32 v7, v7, v164")
    a("v_cvt_pk_bf16_f32 v7, v7, v7")
    a(f"ds_write_b16 v4, v7 offset:{CV_HB}")
    flagcmp(28)
    a("s_cmp_lg_u64 vcc, 0")
    a("s_cbranch_scc1 K3_nou0")
    u_block(0)
    a.label("K3_nou0")
    if WAITKV:
        lds_wait(a, "K3_wkvs", 10, S_KVS, 2, 16, 62, sleep=1)
    for k in range(EARLYWO, 6):
        wo_issue(k)
    a(f"s_mov_b32 s43, {RETRY_MAX}")
    a.label("K3_zp")
    for dt in range(2):
        a(f"buffer_load_dwordx4 {vr(32+4*dt)}, v6, s[56:59], s60 offen offset:{64*dt} sc1")
    a("s_cmp_lg_u32 s42, 0")
    a("s_cbranch_scc1 K3_zp_nf")
    a(f"buffer_load_dwordx4 {vr(28)}, v5, s[24:27], 0 offen offset:32 sc1")
    a("s_waitcnt vmcnt(0)")
    flagcmp(28)
    a("s_cmp_lg_u64 vcc, 0")
    a("s_cbranch_scc1 K3_zp_nf")
    u_block(1)
    a.label("K3_zp_nf")
    a(f"ds_read_b32 v17, v9 offset:{S_CD}")
    a("s_waitcnt vmcnt(0) lgkmcnt(0)")
    vm.q = []
    and_reduce(a, 16, range(32, 40))
    a("v_readfirstlane_b32 s41, v17")
    a("v_cmp_eq_u32 vcc, 0, v16")
    a("s_sub_u32 s43, s43, 1")
    a("s_cbranch_scc1 K3_zp_ok")
    a("s_cmp_eq_u64 vcc, 0")
    a("s_cbranch_scc1 K3_zp_ok")
    a("s_cmp_lg_u32 s40, 0")
    a("s_cbranch_scc1 K3_zp_s2")
    if QEARLY:
        a("s_cmp_lg_u32 s41, 0")
        a("s_cbranch_scc1 K3_post")
    a.label("K3_zp_s2")
    a(f"s_sleep {ZSLEEP}")
    a("s_branch K3_zp")
    a.label("K3_zp_ok")
    stamp(a, 4)
    a("s_setprio 2")
    a(f"s_mov_b32 s43, {RETRY_MAX}")
    a("s_mov_b32 s62, s61")
    for p in range(16):
        for dt in range(2):
            a(f"buffer_load_dwordx4 {vr(64+8*p+4*dt)}, v3, s[52:55], s62 offen offset:{1024*dt}{GSC}")
            vm.issue(("kv", p))
        a("s_add_u32 s62, s62, 4096")
    if not QEARLY:
        q_loads()
    a.label("K3_gl")
    for i in range(8):
        a(f"v_add_f32_dpp v{40+i}, v{32+i}, v{32+i} row_ror:8 {DPP}")
    for sh in (4, 2, 1):
        for i in range(8):
            a(f"v_add_f32_dpp v{40+i}, v{40+i}, v{40+i} row_ror:{sh} {DPP}")
    for i in range(4):
        a(f"v_cvt_pk_bf16_f32 v{48+i}, v{40+2*i}, v{41+2*i}")
    a("v_mov_b32 v16, 1")
    for p in range(16):
        vm.wait_for([("kv", p)])
        r = 64 + 8 * p
        for i in range(0, 8, 2):
            a(f"v_bitop3_b32 v16, v16, v{r+i}, v{r+i+1} bitop3:0x80")
        if p >= 1:
            for i in range(8):
                a(f"v_add_f32 v{64+i}, v{64+i}, v{r+i}")
    a("v_cmp_eq_u32 vcc, 0, v16")
    a("s_sub_u32 s43, s43, 1")
    a("s_cbranch_scc1 K3_gl_ok")
    a("s_cmp_eq_u64 vcc, 0")
    a("s_cbranch_scc1 K3_gl_ok")
    a("s_add_u32 s75, s75, 1")
    a("s_sleep 4")
    a("s_mov_b32 s62, s61")
    for p in range(16):
        for dt in range(2):
            a(f"buffer_load_dwordx4 {vr(64+8*p+4*dt)}, v3, s[52:55], s62 offen offset:{1024*dt} sc1")
        a("s_add_u32 s62, s62, 4096")
    a("s_waitcnt vmcnt(0)")
    a("s_branch K3_gl")
    a.label("K3_gl_ok")
    for i in range(4):
        a(f"v_cvt_pk_bf16_f32 v{40+i}, v{64+2*i}, v{65+2*i}")
    a("s_lshl_b32 s43, s4, 10")
    a(f"s_add_u32 s43, s43, {KVT}")
    a("v_add_u32 v5, s43, v3")
    a(f"ds_write_b128 v5, {vr(40)}")
    a("s_lshl_b32 s43, s37, 2")
    a("v_add_u32 v7, s43, v10")
    a("s_lshl_b32 s43, s37, 11")
    a(f"s_add_u32 s43, s43, {KVT}")
    a("v_add_u32 v5, s43, v3")
    a("s_lshl_b32 s43, s4, 12")
    a(f"s_add_u32 s43, s43, {PQ_BASE}")
    a("v_add_u32 v8, s43, v3")
    a("s_waitcnt lgkmcnt(0)")
    lds_signal(a, 7, S_KVT, 11)
    lds_wait(a, "K3_wpq", 9, S_PQ, 1, 16, 60)
    for mt in range(4):
        a(f"ds_read_b128 {vr(16+4*mt)}, v8 offset:{1024*mt}")
    lds_wait(a, "K3_wkt", 7, S_KVT, 2, 52, 60)
    a(f"ds_read_b128 {vr(40)}, v5")
    a(f"ds_read_b128 {vr(44)}, v5 offset:1024")
    a("s_waitcnt lgkmcnt(0)")
    stamp(a, 5)
    for mt in range(4):
        b = 64 + 12 * mt
        mfma16(a, b + 8, 48, 16 + 4 * mt, "0")
        mfma16(a, b, 40, 16 + 4 * mt, "0")
        mfma16(a, b + 4, 44, 16 + 4 * mt, "0")
    a("s_lshl_b32 s60, s12, 3")
    a("s_lshl_b32 s61, s36, 2")
    a("s_add_u32 s60, s60, s61")
    a("s_lshl_b32 s60, s60, 5")
    a("s_add_u32 s60, s60, s15")
    a("s_lshl_b32 s60, s60, 10")
    a(f"s_mov_b32 s61, {EPS}")
    for mt in range(4):
        a(f"v_add_f32 v{112+mt}, s61, v{64+12*mt+8}")
        a(f"v_rcp_f32 v{112+mt}, v{112+mt}")
    for mt in range(4):
        b = 64 + 12 * mt
        for i in range(8):
            a(f"v_mul_f32 v{b+i}, v{b+i}, v{112+mt}")
        for i in range(4):
            a(f"v_cvt_pk_bf16_f32 v{120+4*mt+i}, v{b+2*i}, v{b+2*i+1}")
        for i in range(4):
            a(f"v_or_b32 v{120+4*mt+i}, 1, v{120+4*mt+i}")
        a(f"buffer_store_dwordx4 {vr(120+4*mt)}, v3, s[48:51], s60 offen sc1")
        a("s_add_u32 s60, s60, 32768")
    a("s_setprio 0")
    stamp(a, 6)
    a(f"s_mov_b32 s43, {RETRY_MAX}")
    a("v_lshrrev_b32 v5, 1, v2")
    a("v_lshlrev_b32 v5, 7, v5")
    a("v_and_b32 v4, 1, v2")
    a("v_lshl_add_u32 v5, v4, 4, v5")
    a.label("K3_ul")
    a("s_cmp_lg_u32 s42, 0")
    a("s_cbranch_scc1 K3_ul_done")
    a(f"buffer_load_dwordx4 {vr(28)}, v5, s[24:27], 0 offen offset:32 sc1")
    a("s_waitcnt vmcnt(0)")
    flagcmp(28)
    a("s_sub_u32 s43, s43, 1")
    a("s_cbranch_scc1 K3_ul_go")
    a("s_cmp_eq_u64 vcc, 0")
    a("s_cbranch_scc1 K3_ul_go")
    a("s_sleep 4")
    a("s_branch K3_ul")
    a.label("K3_ul_go")
    u_block(2)
    a.label("K3_ul_done")
    a("s_and_b32 s60, s10, 3")
    a("s_lshl_b32 s60, s60, 2")
    a("s_and_b32 s61, s11, 3")
    a("s_add_u32 s60, s60, s61")
    a("s_lshl_b32 s60, s60, 18")
    a("s_lshr_b32 s61, s11, 2")
    a("s_lshl_b32 s61, s61, 2")
    a("s_add_u32 s61, s61, s4")
    a("s_lshl_b32 s61, s61, 13")
    a("s_add_u32 s63, s60, s61")
    a("v_lshlrev_b32 v8, 7, v2")
    wo_issue(6)
    lds_wait(a, "K3_wcd", 9, S_CD, 1, 16, 60, sleep=1)
    wo_issue(7)
    a("s_waitcnt vmcnt(8)")
    if ATOUCH > 1:
        a(f"s_sleep {ATOUCH}")
    a("buffer_load_dword v60, v8, s[48:51], s63 offen")
    a("s_waitcnt vmcnt(0)")
    lds_signal(a, 10, S_WOM, 11)
    vm.q = []
    stamp(a, 7)
    a("s_cmp_eq_u32 s40, 1")
    a("s_cbranch_scc1 K3_fin")
    a("s_mov_b32 s40, 2")
    a(f"s_mov_b32 s43, {RETRY_MAX}")
    a.label("K3_post")
    for ci, sr in enumerate((73, 65, 66, 67)):
        a(f"buffer_load_dwordx4 {vr(16+4*ci)}, v225, s[44:47], s{sr} offen sc1")
    a("s_waitcnt vmcnt(0)")
    and_reduce(a, 48, range(16, 32))
    a("v_cmp_eq_u32 vcc, 0, v48")
    a("s_cmp_eq_u64 vcc, 0")
    a("s_cbranch_scc1 K3_yok")
    a("s_add_u32 s75, s75, 1")
    a("s_cmp_eq_u32 s40, 0")
    a("s_cbranch_scc1 K3_zp_s2")
    if PREPOST:
        a("s_cmp_eq_u32 s40, 3")
        a("s_cbranch_scc1 K3_pw")
    a("s_sub_u32 s43, s43, 1")
    a("s_cbranch_scc1 K3_yok")
    a("s_sleep 8")
    a("s_branch K3_post")
    a.label("K3_yok")
    stamp(a, 8)
    for jj in range(8):
        T = 48 + 8 * (jj & 1)
        for ci in range(4):
            if jj & 1:
                a(f"v_and_b32 v{T+ci}, 0xffff0000, v{16+4*ci+jj//2}")
            else:
                a(f"v_lshlrev_b32 v{T+ci}, 16, v{16+4*ci+jj//2}")
        for cp in range(2):
            a(f"v_lshlrev_b32 v{T+4+2*cp}, 16, v{QR+2*jj+cp}")
            a(f"v_and_b32 v{T+5+2*cp}, 0xffff0000, v{QR+2*jj+cp}")
        for ci in range(4):
            a(f"v_mul_f32 v{T+ci}, v{T+ci}, v{T+4+ci}")
        O = 64 + 2 * jj
        for cp in range(2):
            a(f"v_cvt_pk_bf16_f32 v{O+cp}, v{T+2*cp}, v{T+2*cp+1}")
        a(f"buffer_store_dwordx2 {vr(O,2)}, v224, s[32:35], s72 offen{NTS}")
        a(f"s_add_u32 s72, s72, {64*4096}")
    a("s_mov_b32 s41, s40")
    a("s_mov_b32 s40, 1")
    a("s_cmp_eq_u32 s41, 0")
    a("s_cbranch_scc1 K3_zp")
    if PREPOST:
        a("s_cmp_eq_u32 s41, 3")
        a("s_cbranch_scc1 K3_pw")
    a.label("K3_fin")
    stamp_flush(a, 9)
    a.label("K3_end")
    a("s_endpgm")
    return a.finalize(), 252
```

```python
import os
from asmlib import *
from common import prepass, k2_prefetch_setup, MB, vr, mfma16, phi8, unpack4, env, LOG2E, EPS, WS_KVP, WS_ZP, WS_FLAG, WS_UT, WS_DBG, STAMP

WS_OF = 0
NS = 4
STAGE = 40960
K3_LDS = NS * STAGE
CV_REG = 8704
CV_HB = 32
CV_UB = 4384
KVT = 4 * CV_REG
ZFR = KVT + 4096
SYNC = ZFR + 256
WO_BASE = 40960
PQ_BASE = WO_BASE + 24 * 4096
XCH = WO_BASE + 28 * 4096
XCZ = SYNC + 256
S_KVS = 84
S_PD = 96
S_G2 = 112
S_X, S_HU, S_PQ, S_KVT, S_WOM, S_WOT, S_CD, S_GO, S_NONCE, S_WO2 = 0, 8, 24, 40, 48, 52, 56, 72, 76, 80
SPIN_MAX = 1 << 17
RETRY_MAX = 4000
DPP = "row_mask:0xf bank_mask:0xf"
DUTY0 = env("DUTY0", 0)
NDUTY = env("NDUTY", 4)
E2_0 = env("E2_0", 4)
E2_N = env("E2_N", 4)
E3_0 = env("E3_0", 8)
E3_N = env("E3_N", 4)
F1N = env("F1N", 12)
NLEAD = env("NLEAD", 4)
FLAGN = env("FLAGN", 13)
AINIT = env("AINIT", 12)
PDELAY = env("PDELAY", 0)
G2PRIO = env("G2PRIO", 1)
CPOST = env("CPOST", 0)
PL0 = env("PL0", 4)
SPF_C = env("SPF_C", 0)
SPF_L = env("SPF_L", 0)
ADEPTH = env("ADEPTH", 16)
YDELAY = env("YDELAY", 8)
ZSLEEP = env("ZSLEEP", 10)
ATOUCH = env("ATOUCH", 1)
XP = env("XP", "23")
LATE = env("LATE", 1)
PREPOST = env("PREPOST", 0)
EARLYWO = env("EARLYWO", 4)
WAITKV = env("WAITKV", 1)
GSC = env("GSC", "")
QX = env("QX", 1)
PREC = env("PREC", 0)
L2PF = env("L2PF", 0)
TLBW = env("TLBW", 0)
DBGOUT = env("DBGOUT", 0)
NTF = " nt" if env("NTF", 0) else ""
NTG = " nt" if env("NTG", 0) else ""
NTO = " nt" if env("NTO", 1) else ""
NTT = " nt" if env("NTT", 0) else ""
NTS = " nt" if env("NTS", 0) else ""
E3W = env("E3W", 1)
QEARLY = env("QEARLY", 0)
POSTPRE = env("POSTPRE", 0)
ASC = env("ASC", "")
P_Q, P_K, P_V, P_SHK, P_H, P_D, P_X, P_W, P_WO, P_OUT, P_DBG, P_WS = [76 + 2 * i for i in range(12)]
SV = 231


def stamp(a, i):
    if STAMP:
        a("s_memrealtime s[100:101]")
        a("s_waitcnt lgkmcnt(0)")
        a(f"v_writelane_b32 v{SV}, s100, {i}")


def cstamp(a, i):
    if STAMP:
        a("s_memtime s[100:101]")
        a("s_waitcnt lgkmcnt(0)")
        a(f"v_writelane_b32 v{SV}, s100, {i}")


def stamp_flush(a, n):
    if not STAMP:
        return
    a("s_mov_b64 exec, -1")
    a("s_waitcnt vmcnt(0)")
    stamp(a, n)
    a(f"v_writelane_b32 v{SV}, s75, 15")
    if DBGOUT:
        lab = "K3_dbg%d" % len(a.ins)
        a(f"s_cmp_lg_u32 s2, {DBGOUT-1}")
        a(f"s_cbranch_scc1 {lab}")
        a("s_cmp_lg_u32 s4, 0")
        a(f"s_cbranch_scc1 {lab}")
        srd(a, 16, P_DBG, 256)
        a(f"v_readlane_b32 s20, v{SV}, 0")
        a("s_lshr_b32 s21, s3, 1")
        a("v_lshlrev_b32 v0, 2, v2")
        a(f"v_subrev_u32 v1, s20, v{SV}")
        a("s_mov_b64 exec, 0x3fe")
        a("buffer_store_short v1, v0, s[16:19], s21 offen")
        a("s_mov_b64 exec, -1")
        a.label(lab)
    srd_off(a, 16, P_WS, WS_DBG, 4 * MB)
    a("s_add_u32 s20, s2, 512")
    a("s_lshl_b32 s20, s20, 4")
    a("s_add_u32 s20, s20, s3")
    a("s_lshl_b32 s20, s20, 6")
    a("v_lshlrev_b32 v0, 2, v2")
    a("s_mov_b64 exec, 0xffff")
    a(f"buffer_store_dword v{SV}, v0, s[16:19], s20 offen")


def lds_wait(a, name, vaddr, off, val, vtmp, stmp, sleep=0):
    a(f"s_mov_b32 s{stmp+1}, {SPIN_MAX}")
    a.label(name)
    if sleep:
        a(f"s_sleep {sleep}")
    a(f"ds_read_b32 v{vtmp}, v{vaddr} offset:{off}")
    a("s_waitcnt lgkmcnt(0)")
    a(f"v_readfirstlane_b32 s{stmp}, v{vtmp}")
    a(f"s_sub_u32 s{stmp+1}, s{stmp+1}, 1")
    a(f"s_cbranch_scc1 {name}_ok")
    a(f"s_cmp_lt_u32 s{stmp}, {val}")
    a(f"s_cbranch_scc1 {name}")
    a.label(name + "_ok")


def lds_signal(a, vaddr, off, vone):
    a("s_mov_b64 exec, 1")
    a(f"ds_add_u32 v{vaddr}, v{vone} offset:{off}")
    a("s_mov_b64 exec, -1")


def and_reduce(a, dst, regs):
    regs = list(regs)
    a(f"v_bitop3_b32 v{dst}, v{regs[0]}, v{regs[1]}, 1 bitop3:0x80")
    i = 2
    while i + 1 < len(regs):
        a(f"v_bitop3_b32 v{dst}, v{dst}, v{regs[i]}, v{regs[i+1]} bitop3:0x80")
        i += 2
    if i < len(regs):
        a(f"v_and_b32 v{dst}, v{dst}, v{regs[i]}")


def post_compute(a, QR, pk):
    for jj in range(8):
        T = 48 + 8 * (jj & 1)
        for ci in range(4):
            if jj & 1:
                a(f"v_and_b32 v{T+ci}, 0xffff0000, v{16+4*ci+jj//2}")
            else:
                a(f"v_lshlrev_b32 v{T+ci}, 16, v{16+4*ci+jj//2}")
        for cp in range(2):
            a(f"v_lshlrev_b32 v{T+4+2*cp}, 16, v{QR+2*jj+cp}")
            a(f"v_and_b32 v{T+5+2*cp}, 0xffff0000, v{QR+2*jj+cp}")
        if pk:
            for cp in range(2):
                a(f"v_pk_mul_f32 {vr(T+2*cp,2)}, {vr(T+2*cp,2)}, {vr(T+4+2*cp,2)}")
        else:
            for ci in range(4):
                a(f"v_mul_f32 v{T+ci}, v{T+ci}, v{T+4+ci}")
        O = 64 + 2 * jj
        for cp in range(2):
            a(f"v_cvt_pk_bf16_f32 v{O+cp}, v{T+2*cp}, v{T+2*cp+1}")
        a(f"buffer_store_dwordx2 {vr(O,2)}, v224, s[32:35], s72 offen{NTS}")
        a(f"s_add_u32 s72, s72, {64*4096}")


def gen_k3():
    a = Asm()
    a("s_cmp_ge_u32 s2, 256")
    a("s_cbranch_scc1 K3_end")
    a("s_load_dwordx8 s[84:91], s[0:1], 32")
    a("s_load_dwordx8 s[92:99], s[0:1], 64")
    a("s_load_dwordx8 s[76:83], s[0:1], 0")
    a("v_lshrrev_b32 v1, 6, v0")
    a("v_and_b32 v2, 63, v0")
    a("s_and_b32 s10, s2, 7")
    a("v_readfirstlane_b32 s3, v1")
    a("s_lshr_b32 s11, s2, 3")
    a("s_and_b32 s12, s10, 1")
    a("s_lshl_b32 s12, s12, 3")
    a("s_and_b32 s13, s11, 7")
    a("s_add_u32 s12, s12, s13")
    a("s_lshr_b32 s13, s10, 1")
    a("s_lshl_b32 s13, s13, 2")
    a("s_lshr_b32 s14, s11, 3")
    a("s_add_u32 s13, s13, s14")
    a("s_mov_b32 s75, 0")
    a("s_and_b32 s4, s3, 3")
    a("s_and_b32 s36, s3, 1")
    a("s_bfe_u32 s37, s3, 0x10001")
    a("s_lshl_b32 s5, s13, 1")
    a("s_add_u32 s5, s5, s37")
    a(f"s_xor_b32 s15, s5, {2 if QX else 0}")
    a("s_lshl_b32 s6, s10, 7")
    a("s_lshl_b32 s7, s11, 2")
    a("s_add_u32 s6, s6, s7")
    a("s_add_u32 s6, s6, s4")
    a(f"s_mul_i32 s7, s4, {CV_REG}")
    a("v_lshlrev_b32 v3, 4, v2")
    a("v_lshrrev_b32 v14, 4, v2")
    a("v_and_b32 v15, 15, v2")
    a("s_waitcnt lgkmcnt(0)")
    stamp(a, 0)
    spf = []
    a("s_cmp_ge_u32 s3, 4")
    a("s_cbranch_scc1 K3_L")

    if L2PF:
        srd(a, 40, P_X, 4 * MB)
        srd(a, 48, P_W, 6 * MB)
        a("v_lshrrev_b32 v192, 3, v2")
        a("v_lshlrev_b32 v192, 11, v192")
        a("v_and_b32 v16, 7, v2")
        a("v_lshl_add_u32 v192, v16, 7, v192")
        a("s_and_b32 s44, s10, 1")
        a("s_lshl_b32 s44, s44, 21")
        a("s_lshl_b32 s45, s11, 16")
        a("s_add_u32 s44, s44, s45")
        a("s_lshl_b32 s45, s3, 14")
        a("s_add_u32 s44, s44, s45")
        a(f"buffer_load_dword v195, v192, s[40:43], s44 offen{NTT}")
        a("v_lshrrev_b32 v193, 2, v2")
        a("v_mul_u32_u24 v193, 6144, v193")
        a("v_and_b32 v16, 3, v2")
        a("v_lshl_add_u32 v193, v16, 7, v193")
        a("s_mul_i32 s45, s11, 98304")
        a("s_lshl_b32 s46, s3, 11")
        a("s_add_u32 s45, s45, s46")
        a("s_lshr_b32 s46, s10, 1")
        a("s_lshl_b32 s46, s46, 9")
        a("s_add_u32 s45, s45, s46")
        a("s_cmp_eq_u32 s3, 3")
        a(f"s_cselect_b32 s45, {16*MB}, s45")
        a(f"buffer_load_dword v195, v193, s[48:51], s45 offen{NTT}")
        a("s_add_u32 s44, s44, 1024")
        a(f"s_add_u32 s45, s45, {512*6144}")
    else:
        a("s_cmp_lg_u32 s3, 0")
        a("s_cbranch_scc1 K3_pfw")
        srd(a, 40, P_X, 4 * MB)
        a("v_lshrrev_b32 v192, 3, v2")
        a("v_lshlrev_b32 v192, 11, v192")
        a("v_and_b32 v16, 7, v2")
        a("v_lshl_add_u32 v192, v16, 7, v192")
        a("s_lshl_b32 s45, s2, 14")
        a("s_add_u32 s44, s45, 1024")
        a("s_branch K3_pfd")
        a.label("K3_pfw")
        srd(a, 40, P_W, 6 * MB)
        a("v_lshlrev_b32 v192, 7, v2")
        a("s_mul_i32 s45, s2, 12288")
        a("s_sub_u32 s44, s3, 1")
        a("s_lshl_b32 s44, s44, 12")
        a("s_add_u32 s45, s45, s44")
        a(f"s_add_u32 s44, s45, {3*MB}")
        a("s_cmp_eq_u32 s3, 3")
        a(f"s_cselect_b32 s45, {8*MB}, s45")
        a(f"s_cselect_b32 s44, {8*MB}, s44")
        a.label("K3_pfd")
        if "1" in XP:
            a(f"s_mov_b32 s45, {16*MB}")
            a(f"s_mov_b32 s44, {16*MB}")
        a(f"buffer_load_dword v195, v192, s[40:43], s45 offen{NTT}")
    srd(a, 56, P_DBG, 256)
    srd_off(a, 60, P_WS, WS_FLAG, 4096)
    a("s_memrealtime s[16:17]")
    a("v_mov_b32 v199, 0")
    a("s_waitcnt lgkmcnt(0)")
    a("s_or_b32 s16, s16, 1")
    a("v_mov_b32 v198, s16")
    a("s_cmp_lg_u32 s3, 3")
    a("s_cbranch_scc1 K3_noseed")
    a("s_cmp_lg_u32 s11, 0")
    a("s_cbranch_scc1 K3_noseed")
    a("v_mov_b32 v196, s16")
    a("v_mov_b32 v197, 0")
    a("s_mov_b64 exec, 1")
    a("buffer_atomic_cmpswap v[196:197], v199, s[56:59], 0 offen sc1")
    a("s_mov_b64 exec, -1")
    a.label("K3_noseed")
    if TLBW:
        a("s_cmp_lg_u32 s3, 3")
        a("s_cbranch_scc1 K3_notlb")
        a(f"s_cmp_ge_u32 s11, {TLBW}")
        a("s_cbranch_scc1 K3_notlb")
        a("v_lshlrev_b32 v16, 16, v2")
        for p, nb, offs in ((P_K, 4, (0,)), (P_V, 4, (0,)), (P_H, 4, (0,)), (P_Q, 4, (0,)), (P_WO, 2, (0,)), (P_OUT, 8, (0, 4)), (P_WS, 20, (0, 8, 12, 16))):
            srd(a, 16, p, nb * MB)
            for o in offs:
                a(f"s_mov_b32 s20, {o*MB}")
                a("buffer_load_dword v195, v16, s[16:19], s20 offen nt")
        a.label("K3_notlb")
    a("s_lshl_b32 s46, s11, 7")
    a("s_lshl_b32 s47, s10, 2")
    a("s_add_u32 s47, s47, s46")
    if PREC:
        pre_compute = prepass(a, 3, P_K, P_V, P_SHK, " sc1", P_WS, NTO)
    if not L2PF:
        a("s_cmp_ge_u32 s3, 2")
        a(f"s_cselect_b32 s48, s{P_V}, s{P_K}")
        a(f"s_cselect_b32 s49, s{P_V+1}, s{P_K+1}")
        a(f"s_mov_b32 s50, {4*MB}")
        a("s_mov_b32 s51, 0x20000")
        a("v_lshrrev_b32 v193, 2, v2")
        a("v_lshlrev_b32 v193, 11, v193")
        a("v_and_b32 v16, 3, v2")
        a("v_lshl_add_u32 v193, v16, 7, v193")
        a("s_lshr_b32 s45, s2, 2")
        a("s_lshl_b32 s45, s45, 16")
        a("s_lshl_b32 s46, s36, 15")
        a("s_add_u32 s45, s45, s46")
        a("s_and_b32 s46, s2, 3")
        a("s_lshl_b32 s46, s46, 9")
        a("s_add_u32 s45, s45, s46")
        if "2" in XP:
            a(f"s_mov_b32 s45, {16*MB}")
    a("v_mov_b32 v200, v15")
    for part in range(4):
        if part < 3:
            a(f"s_cmp_lg_u32 s3, {part}")
            a(f"s_cbranch_scc1 K3_e3_{part+1}")
        k2_prefetch_setup(a, part, 194, 64, 68, P_H, P_Q, P_WO)
        if part < 3:
            a("s_branch K3_e3_done")
            a.label(f"K3_e3_{part+1}")
    a.label("K3_e3_done")
    a("v_mov_b32 v15, v200")
    a(f"s_and_b32 s55, s11, {NDUTY-1}")
    a(f"s_add_u32 s55, s55, {DUTY0}")
    a(f"s_and_b32 s52, s11, {E2_N-1}")
    a(f"s_add_u32 s52, s52, {E2_0}")
    a("s_sub_u32 s52, s52, s55")
    a("s_sub_u32 s52, s52, 1")
    a("s_mov_b32 s54, 0")
    a("s_lshr_b32 s70, s11, 2")
    a(f"s_and_b32 s70, s70, {E3_N-1}")
    a(f"s_add_u32 s70, s70, {E3_0 if '3' not in XP else 1000}")
    if E3W:
        a("s_cmp_lt_u32 s3, 2")
        a("s_cselect_b32 s70, 1000, s70")
    a("s_cmp_eq_u32 s3, 3")
    a(f"s_cselect_b32 s71, {F1N-NLEAD}, 1000")
    a("s_mov_b32 s53, 0")
    if PREC:
        pre_compute()
    a("s_lshl_b32 s38, s36, 6")
    a("v_add_u32 v16, s38, v15")
    a("v_lshrrev_b32 v17, 1, v15")
    a("v_lshlrev_b32 v16, 7, v16")
    a("v_xor_b32 v17, v14, v17")
    a("v_lshl_add_u32 v4, v17, 4, v16")
    a("v_xor_b32 v5, 64, v4")
    a(f"v_add_u32 v6, {2*STAGE}, v4")
    a(f"v_add_u32 v7, {2*STAGE}, v5")
    a("v_bfe_u32 v17, v2, 2, 2")
    a("v_and_b32 v18, 3, v2")
    a("v_lshlrev_b32 v17, 6, v17")
    a("v_lshl_add_u32 v17, v18, 3, v17")
    a("v_and_b32 v18, 1, v14")
    a("v_lshl_add_u32 v17, v18, 10, v17")
    a("v_lshl_add_u32 v17, v18, 5, v17")
    a("v_lshrrev_b32 v18, 1, v14")
    a("v_mul_u32_u24 v18, 6144, v18")
    a("v_add_u32 v17, v17, v18")
    a("s_lshl_b32 s38, s37, 8")
    a("s_add_u32 s38, s38, 16384")
    a("v_add_u32 v8, s38, v17")
    a("v_xor_b32 v9, 32, v8")
    a(f"v_add_u32 v10, {2*STAGE}, v8")
    a(f"v_add_u32 v11, {2*STAGE}, v9")
    SB = [16, 56]

    def accr(kind, mt, dt):
        return 96 + 32 * kind + (mt * 2 + dt) * 4

    for i in range(96, 192):
        a(f"v_mov_b32 v{i}, 0")
    for op in spf[:SPF_C]:
        a(op)
    a("s_waitcnt lgkmcnt(0)")
    srd_off(a, 28, P_WS, WS_KVP, 2 * MB)
    srd_off(a, 32, P_WS, WS_ZP, 64 * 1024)
    lg = Cnt(a, "lgkmcnt", 15)

    def reads(slot, t, st):
        sb = (slot & 1) * STAGE
        va = 4 + t + (2 if slot >= 2 else 0)
        vb = 10 if slot >= 2 else 8
        R = SB[st]

        def A(mt):
            return [(("A", mt, st), f"ds_read_b128 {vr(R+4*mt)}, v{va} offset:{sb + 2048*mt}")]

        def B(cb):
            seg, nh = cb // 2, cb % 2
            return [(("B", cb, st), f"ds_read_b64_tr_b16 {vr(R+16+4*cb+2*h,2)}, v{vb+nh} offset:{sb + t*12288 + seg*2048 + 512*h}") for h in range(2)]
        return A(0) + B(0) + A(1) + A(2) + A(3) + B(1) + B(2) + B(3) + B(4) + B(5)

    def group(st, nxt):
        R = SB[st]
        nxt = list(nxt)
        for cb in range(6):
            kind, dt = cb // 2, cb % 2
            for mt in range(4):
                lg.wait_for([("A", mt, st), ("B", cb, st)])
                fa, fb = R + 4 * mt, R + 16 + 4 * cb
                if kind == 0:
                    mfma16(a, accr(0, mt, dt), fb, fa)
                else:
                    mfma16(a, accr(kind, mt, dt), fa, fb)
                if nxt:
                    tag, txt = nxt.pop(0)
                    a(txt)
                    lg.issue(tag)

    a("s_barrier")
    stamp(a, 1)
    cstamp(a, 10)
    for tag, txt in reads(0, 0, 0):
        a(txt)
        lg.issue(tag)
    lg.drain()
    a("s_mov_b32 s39, 4")
    a.label("K3_loop")
    for slot in range(4):
        group(0, reads(slot, 1, 1))
        lg.drain()
        a("s_barrier")
        a("s_sub_u32 s55, s55, 1")
        a(f"s_cbranch_scc1 K3_event{slot}")
        a.label(f"K3_noev{slot}")
        a("s_sub_u32 s70, s70, 1")
        a(f"s_cbranch_scc1 K3_evB{slot}")
        a.label(f"K3_noevB{slot}")
        a("s_sub_u32 s71, s71, 1")
        a(f"s_cbranch_scc1 K3_evC{slot}")
        a.label(f"K3_noevC{slot}")
        group(1, reads((slot + 1) % 4, 0, 0))
        if slot == 3:
            a("s_sub_u32 s39, s39, 1")
            a("s_cmp_lg_u32 s39, 0")
            lg.drain()
    a("s_cbranch_scc1 K3_loop")
    stamp(a, 2)
    cstamp(a, 11)

    a(f"s_mov_b32 s44, {LOG2E}")
    a(f"s_mov_b32 s45, {LOG2E}")
    a(f"s_mov_b32 s46, {EPS}")
    a(f"s_mov_b32 s47, {EPS}")
    a(f"v_mov_b32 v10, {SYNC}")
    a("v_mov_b32 v11, 1")
    for et in range(2):
        for m in range(2):
            d = 16 + 4 * (2 * et + m)
            for hh in range(2):
                s = accr(2, 2 * m + hh, et)
                a(f"v_cvt_pk_bf16_f32 v{d+2*hh}, v{s}, v{s+1}")
                a(f"v_cvt_pk_bf16_f32 v{d+2*hh+1}, v{s+2}, v{s+3}")
    for i in range(4):
        a(f"v_mov_b32 v{48+i}, 0x3f803f80")
    KV, ZZ, T = 160, 176, 52
    for m in range(2):
        for dt in range(2):
            for hh in range(2):
                s = accr(1, 2 * m + hh, dt)
                a(f"v_cvt_pk_bf16_f32 v{T+2*hh}, v{s}, v{s+1}")
                a(f"v_cvt_pk_bf16_f32 v{T+2*hh+1}, v{s+2}, v{s+3}")
            unpack4(a, T, T)
            kf = 32 + 4 * (2 * dt + m)
            phi8(a, T, kf, 44, 46)
            for et in range(2):
                mfma16(a, KV + 4 * (2 * et + dt), kf, 16 + 4 * (2 * et + m), "0" if m == 0 else None)
            mfma16(a, ZZ + 4 * dt, kf, 48, "0" if m == 0 else None)
    a("s_lshl_b32 s43, s37, 12")
    a(f"s_add_u32 s43, s43, {XCH}")
    a("v_add_u32 v4, s43, v3")
    a("s_lshl_b32 s43, s37, 7")
    a(f"s_add_u32 s43, s43, {XCZ}")
    a("v_lshlrev_b32 v5, 5, v14")
    a("v_add_u32 v5, s43, v5")
    a("s_lshl_b32 s43, s37, 2")
    a("v_add_u32 v6, s43, v10")
    a("s_cmp_eq_u32 s36, 0")
    a("s_cbranch_scc1 K3_wr0")
    for qd in range(4):
        a(f"ds_write_b128 v4, {vr(KV+4*qd)} offset:{1024*qd}")
    for dt in range(2):
        a(f"ds_write_b128 v5, {vr(ZZ+4*dt)} offset:{16*dt}")
    a("s_waitcnt lgkmcnt(0)")
    lds_signal(a, 6, S_X, 11)
    a("s_branch K3_q")
    a.label("K3_wr0")
    a("s_lshl_b32 s48, s5, 4")
    a("s_add_u32 s48, s48, s12")
    a("s_lshl_b32 s49, s48, 12")
    a("s_lshl_b32 s50, s48, 7")
    a("v_lshlrev_b32 v7, 4, v14")
    lds_wait(a, "K3_wx", 6, S_X, 1, 8, 42)
    for qd in range(4):
        a(f"ds_read_b128 {vr(16+4*qd)}, v4 offset:{1024*qd}")
    for dt in range(2):
        a(f"ds_read_b128 {vr(32+4*dt)}, v5 offset:{16*dt}")
    for qd in range(6):
        a(f"s_waitcnt lgkmcnt({5-qd})")
        a(f"v_pk_add_f32 {vr(KV+4*qd,2)}, {vr(KV+4*qd,2)}, {vr(16+4*qd,2)}")
        a(f"v_pk_add_f32 {vr(KV+4*qd+2,2)}, {vr(KV+4*qd+2,2)}, {vr(16+4*qd+2,2)}")
        for i in range(4):
            a(f"v_or_b32 v{KV+4*qd+i}, 1, v{KV+4*qd+i}")
        if qd < 4:
            a(f"buffer_store_dwordx4 {vr(KV+4*qd)}, v3, s[28:31], s49 offen offset:{1024*qd} sc1")
    a("s_mov_b32 exec_lo, 0x00010001")
    a("s_mov_b32 exec_hi, 0x00010001")
    for dt in range(2):
        a(f"buffer_store_dwordx4 {vr(ZZ+4*dt)}, v7, s[32:35], s50 offen offset:{64*dt} sc1")
    a("s_mov_b64 exec, -1")
    lds_signal(a, 10, S_KVS, 11)
    a.label("K3_q")
    stamp(a, 3)
    a("s_lshl_b32 s43, s3, 12")
    a(f"s_add_u32 s43, s43, {PQ_BASE}")
    a("v_add_u32 v4, s43, v3")
    for mt in range(4):
        d = 80 + 4 * mt
        for dt in range(2):
            sr = accr(0, mt, dt)
            a(f"v_cvt_pk_bf16_f32 v{T+2*dt}, v{sr}, v{sr+1}")
            a(f"v_cvt_pk_bf16_f32 v{T+2*dt+1}, v{sr+2}, v{sr+3}")
        unpack4(a, T, T)
        phi8(a, T, d, 44, 46)
        a(f"ds_write_b128 v4, {vr(d)} offset:{1024*mt}")
    a("s_lshl_b32 s43, s3, 2")
    a("v_add_u32 v9, s43, v10")
    a("v_and_b32 v6, 3, v2")
    a("v_bfe_u32 v7, v2, 2, 2")
    a("v_add_u32 v12, v6, v7")
    a("v_lshlrev_b32 v12, 3, v12")
    a("v_lshl_add_u32 v12, v14, 6, v12")
    a(f"s_add_u32 s43, s7, {CV_HB-24}")
    a("v_add_u32 v12, s43, v12")
    a("v_lshlrev_b32 v13, 5, v6")
    a("v_lshlrev_b32 v7, 3, v7")
    a("v_sub_u32 v13, v13, v7")
    a("v_lshlrev_b32 v7, 6, v14")
    a("v_sub_u32 v13, v13, v7")
    a(f"s_add_u32 s43, s7, {CV_UB+24-32}")
    a("v_add_u32 v13, s43, v13")
    a(f"s_add_u32 s43, s7, {CV_UB}")
    a("v_add_u32 v8, s43, v3")
    a("s_waitcnt lgkmcnt(0)")
    lds_signal(a, 9, S_PQ, 11)
    stamp(a, 4)
    lds_wait(a, "K3_whu", 9, S_HU, 1, 16, 42)
    stamp(a, 5)

    HH, FU = 32, 96
    ACC = [16, 20, 24, 28]
    T2, T1, YV, PK = [224, 225], [226, 227], [228, 229], [232, 236, 240, 244]
    lg.q = []

    def fu_reads(s):
        for hf in range(2):
            a(f"ds_read_b64_tr_b16 {vr(FU+4*s+2*hf,2)}, v13 offset:{128*s + 32*(1-hf)}")
            lg.issue(("fu", s))

    def h_reads(t):
        for hf in range(2):
            a(f"ds_read_b64_tr_b16 {vr(HH+4*t+2*hf,2)}, v12 offset:{256*t + 32*hf}")
            lg.issue(("h", t))

    def epi(Q):
        ops = []
        R0 = ACC[Q % 4]
        R1, R2, R3 = R0 + 1, R0 + 2, R0 + 3
        cur, prv = Q & 1, (Q & 1) ^ 1
        if Q == 0:
            ops.append(f"v_add_f32_dpp v{T2[cur]}, v{R3}, v{R2} wave_shr:1 {DPP} bound_ctrl:0")
            ops.append(f"v_add_f32_dpp v{T1[cur]}, v{T2[cur]}, v{R1} wave_shr:1 {DPP} bound_ctrl:0")
            ops.append(f"v_add_f32_dpp v{YV[cur]}, v{T1[cur]}, v{R0} wave_shr:1 {DPP} bound_ctrl:0")
        else:
            r3p = ACC[(Q - 1) % 4] + 3
            ops.append(f"v_add_f32_dpp v{T2[cur]}, v{r3p}, v{R2} wave_ror:1 {DPP}")
            ops.append(f"v_add_f32_dpp v{T1[cur]}, v{T2[prv]}, v{R1} wave_ror:1 {DPP}")
            ops.append(f"v_add_f32_dpp v{YV[cur]}, v{T1[prv]}, v{R0} wave_ror:1 {DPP}")
            ops.append(f"v_add_f32_dpp v{T2[cur]}, v{R3}, v{R2} wave_shr:1 {DPP}")
            ops.append(f"v_add_f32_dpp v{T1[cur]}, v{T2[cur]}, v{R1} wave_shr:1 {DPP}")
            ops.append(f"v_add_f32_dpp v{YV[cur]}, v{T1[cur]}, v{R0} wave_shr:1 {DPP}")
        if Q & 1:
            p = PK[Q // 8] + (Q % 8) // 2
            ops.append(f"v_cvt_pk_bf16_f32 v{p}, v{YV[0]}, v{YV[1]}")
            ops.append(f"v_or_b32 v{p}, 1, v{p}")
        return ops

    PRE = 3
    for c in range(PRE):
        fu_reads(c)
        if c % 2 == 0:
            h_reads(c // 2)
    pending = []
    for c in range(32):
        nst = c // 2 + 1
        for t in range(nst):
            s = c - 2 * t
            lg.wait_for([("fu", s), ("h", t)])
            mfma16(a, ACC[c % 4], FU + 4 * s, HH + 4 * t, "0" if t == 0 else None)
            if t == 0 and c + PRE < 32:
                fu_reads(c + PRE)
                if (c + PRE) % 2 == 0:
                    h_reads((c + PRE) // 2)
            if t == 0 and c >= 2:
                assert not pending
                pending = epi(c - 2)
            k = max(1, -(-len(pending) // (nst - t))) if pending else 0
            for _ in range(k):
                a(pending.pop(0))
    for Q in (30, 31):
        for op in epi(Q):
            a(op)
    srd_off(a, 28, P_WS, WS_UT, 4 * MB)
    a("s_lshl_b32 s40, s6, 12")
    for g in range(4):
        a(f"buffer_store_dwordx4 {vr(PK[g])}, v3, s[28:31], s40 offen offset:{1024*g} sc1")
    a("s_and_b32 s40, s10, 3")
    a("s_lshl_b32 s40, s40, 2")
    a("s_and_b32 s41, s11, 3")
    a("s_add_u32 s40, s40, s41")
    a("s_lshl_b32 s41, s40, 3")
    a("s_lshl_b32 s42, s3, 1")
    a("s_add_u32 s41, s41, s42")
    a("s_lshl_b32 s48, s41, 15")
    a("s_mov_b32 s47, s48")
    a("v_lshrrev_b32 v5, 5, v2")
    a("v_and_b32 v6, 1, v14")
    a("v_lshlrev_b32 v12, 15, v6")
    a("v_lshl_add_u32 v12, v5, 8, v12")
    a("v_lshl_add_u32 v12, v15, 4, v12")
    srd_off(a, 28, P_WS, WS_OF, 4 * MB)
    srd(a, 32, P_OUT, 8 * MB)
    a("s_waitcnt lgkmcnt(0)")
    lds_signal(a, 9, S_CD, 11)
    stamp(a, 6)
    if CPOST:
        a("s_lshl_b32 s16, s10, 1")
        a("s_lshr_b32 s17, s11, 4")
        a("s_add_u32 s16, s16, s17")
        a("s_and_b32 s17, s11, 15")
        a("s_lshl_b32 s17, s17, 2")
        a("s_add_u32 s17, s17, s4")
        a("s_lshr_b32 s18, s17, 4")
        a("s_and_b32 s17, s17, 15")
        a("s_lshl_b32 s19, s18, 9")
        a("s_lshl_b32 s64, s17, 2")
        a("s_add_u32 s19, s19, s64")
        a("s_lshl_b32 s64, s19, 11")
        a("s_lshl_b32 s65, s16, 7")
        a("s_add_u32 s64, s64, s65")
        a("s_lshl_b32 s72, s19, 12")
        a("s_add_u32 s72, s72, s65")
        a("s_lshl_b32 s73, s16, 18")
        a("s_lshl_b32 s65, s18, 10")
        a("s_add_u32 s73, s73, s65")
        a("s_lshl_b32 s65, s17, 6")
        a("s_add_u32 s73, s73, s65")
        a("s_add_u32 s65, s73, 4096")
        a("s_add_u32 s66, s73, 8192")
        a("s_add_u32 s67, s73, 12288")
        a("v_lshlrev_b32 v224, 12, v14")
        a("v_lshl_add_u32 v224, v15, 3, v224")
        a("v_lshlrev_b32 v225, 14, v15")
        a("v_lshl_add_u32 v225, v14, 4, v225")
        a("v_lshlrev_b32 v4, 11, v14")
        a("v_lshl_add_u32 v4, v15, 3, v4")
        srd(a, 16, P_Q, 4 * MB)
        srd_off(a, 20, P_WS, WS_UT, 4 * MB)
        for jj in range(8):
            a(f"buffer_load_dwordx2 {vr(208+2*jj,2)}, v4, s[16:19], s64 offen")
            a(f"s_add_u32 s64, s64, {64*2048}")
        a("s_waitcnt vmcnt(0)")
        a(f"s_mov_b32 s43, {RETRY_MAX}")
        a.label("K3_cp")
        for ci, sr in enumerate((73, 65, 66, 67)):
            a(f"buffer_load_dwordx4 {vr(16+4*ci)}, v225, s[20:23], s{sr} offen sc1")
        a(f"ds_read_b32 v49, v10 offset:{S_WOM}")
        a("s_waitcnt vmcnt(0) lgkmcnt(0)")
        and_reduce(a, 48, range(16, 32))
        a("v_readfirstlane_b32 s42, v49")
        a("v_cmp_eq_u32 vcc, 0, v48")
        a("s_cmp_eq_u64 vcc, 0")
        a("s_cbranch_scc1 K3_cp_ok")
        a("s_cmp_ge_u32 s42, 4")
        a("s_cbranch_scc1 K3_cp_skip")
        a("s_sub_u32 s43, s43, 1")
        a("s_cbranch_scc1 K3_cp_skip")
        a("s_sleep 6")
        a("s_branch K3_cp")
        a.label("K3_cp_ok")
        lds_signal(a, 9, S_PD, 11)
        post_compute(a, 208, True)
        a.label("K3_cp_skip")
    lds_wait(a, "K3_wwo", 10, S_WOM, 4, 80, 42)
    if CPOST:
        lds_signal(a, 9, S_G2, 11)
    stamp(a, 7)
    cstamp(a, 12)
    vm = Cnt(a, "vmcnt", 63)
    AR = 96
    D = ADEPTH
    if "a" in XP:
        srd(a, 28, P_X, 4 * MB)
        a("s_lshl_b32 s48, s12, 18")
        a("s_lshl_b32 s47, s3, 16")
        a("s_add_u32 s48, s48, s47")

    def aload(h):
        for f in range(2):
            r = AR + 8 * (h % D) + 4 * f
            a(f"buffer_load_dwordx4 {vr(r)}, v12, s[28:31], s48 offen offset:{1024*(h%4)+512*f}{ASC}")
            vm.issue(("A", h))
        if h % 4 == 3:
            a("s_add_u32 s48, s48, 4096")

    if G2PRIO:
        a(f"s_setprio {G2PRIO}")
    for h in range(AINIT):
        aload(h)
    anext = [AINIT]
    a("v_bfe_u32 v4, v2, 2, 2")
    a("v_and_b32 v7, 3, v2")
    a("v_lshlrev_b32 v4, 6, v4")
    a("v_lshl_add_u32 v4, v7, 3, v4")
    a("v_lshl_add_u32 v4, v5, 9, v4")
    a("v_xor_b32 v7, v6, v5")
    a("v_lshl_add_u32 v13, v7, 5, v4")
    a(f"v_add_u32 v4, {WO_BASE}, v13")
    a(f"v_add_u32 v8, {WO_BASE + 65536}, v13")

    def check_ops(g):
        r = AR + 8 * ((4 * g) % D)
        ops = [f"v_bitop3_b32 v81, v{r}, v{r+1}, v{r+2} bitop3:0x80"]
        for i in range(3, 31, 2):
            ops.append(f"v_bitop3_b32 v81, v81, v{r+i}, v{r+i+1} bitop3:0x80")
        ops.append(f"v_bitop3_b32 v81, v81, v{r+31}, 1 bitop3:0x80")
        return ops

    def check_branch(g):
        if "a" in XP:
            a.label(f"K3_retry{g}_ret")
            return
        a("v_cmp_eq_u32 vcc, 0, v81")
        a("s_cmp_lg_u64 vcc, 0")
        a(f"s_cbranch_scc1 K3_retry{g}")
        a.label(f"K3_retry{g}_ret")

    def retry_block(g):
        a.label(f"K3_retry{g}")
        a(f"s_mov_b32 s46, {RETRY_MAX}")
        a(f"s_add_u32 s44, s47, {4096*g}")
        a.label(f"K3_retry{g}_l")
        a("s_add_u32 s75, s75, 1")
        a("s_sleep 4")
        for hh in range(4):
            for f in range(2):
                r = AR + 8 * ((4 * g + hh) % D) + 4 * f
                a(f"buffer_load_dwordx4 {vr(r)}, v12, s[28:31], s44 offen offset:{1024*hh+512*f} sc1")
        a("s_waitcnt vmcnt(0)")
        for op in check_ops(g):
            a(op)
        a("v_cmp_eq_u32 vcc, 0, v81")
        a("s_sub_u32 s46, s46, 1")
        a(f"s_cbranch_scc1 K3_retry{g}_ret")
        a("s_cmp_lg_u64 vcc, 0")
        a(f"s_cbranch_scc1 K3_retry{g}_l")
        a(f"s_branch K3_retry{g}_ret")

    lg.q = []
    BS = [48, 64]

    def breads(h):
        out = []
        st = h & 1
        if h < 16:
            vb, off = 4, h * 4096
        elif h < 28:
            vb, off = 8, (h - 16) * 4096
        else:
            vb, off = 13, (h - 28) * CV_REG
        for f in range(2):
            for nb in range(2):
                for hf in range(2):
                    out.append(((h, f, nb), f"ds_read_b64_tr_b16 {vr(BS[st]+8*f+4*nb+2*hf,2)}, v{vb} offset:{off + f*1024 + hf*2048 + nb*256}"))
        return out

    for tag, txt in breads(0):
        a(txt); lg.issue(tag)
    vm.wait_for([("A", 3)])
    for op in check_ops(0):
        a(op)
    check_branch(0)
    chk = []
    for h in range(32):
        nxt = []
        if h + 1 < 32:
            nxt = breads(h + 1)
        if h % 4 == 2 and h + 2 < 32:
            vm.wait_for([("A", h + 5)])
            chk = check_ops(h // 4 + 1) if "k" not in XP else []
        for f in range(2):
            for nb in range(2):
                lg.wait_for([(h, f, nb)])
                d = 16 + 16 * nb
                cs = "0" if (h == 0 and f == 0) else vr(d, 16)
                a(f"v_mfma_f32_32x32x16_bf16 {vr(d,16)}, {vr(BS[h&1]+8*f+4*nb)}, {vr(AR+8*(h%D)+4*f)}, {cs}")
                for _ in range(2):
                    if nxt:
                        tag, txt = nxt.pop(0)
                        a(txt); lg.issue(tag)
                    if chk:
                        a(chk.pop(0))
        if h % 4 == 3 and h + 1 < 32:
            assert not chk
            check_branch(h // 4 + 1)
        for _ in range(2):
            if anext[0] < 32 and anext[0] <= h + D and "n" not in XP:
                aload(anext[0]); anext[0] += 1
    stamp(a, 8)
    cstamp(a, 13)
    a("v_and_b32 v4, 31, v2")
    a("v_lshlrev_b32 v4, 12, v4")
    a("v_lshl_add_u32 v4, v5, 4, v4")
    a("s_lshr_b32 s36, s10, 2")
    a("s_lshl_b32 s36, s36, 3")
    a("s_lshr_b32 s37, s11, 2")
    a("s_add_u32 s36, s36, s37")
    a("s_lshl_b32 s38, s41, 16")
    a("s_lshl_b32 s39, s36, 7")
    a("s_add_u32 s38, s38, s39")
    a("s_add_u32 s38, s38, 2048")
    for nb in range(2):
        for kp in range(2):
            P = 80 + 8 * nb + 4 * kp
            t0 = 16 + 16 * nb + 8 * kp
            for i in range(4):
                a(f"v_cvt_pk_bf16_f32 v{P+i}, v{t0+2*i}, v{t0+2*i+1}")
            a(f"v_permlane32_swap_b32 v{P}, v{P+2}")
            a(f"v_permlane32_swap_b32 v{P+1}, v{P+3}")
            a(f"buffer_store_dwordx4 {vr(P)}, v4, s[32:35], s38 offen offset:{64*nb+32*kp}{NTS}")
    stamp_flush(a, 9)
    a("s_endpgm")
    for g in range(8):
        retry_block(g)
    for slot in range(4):
        a.label(f"K3_event{slot}")
        a("s_add_u32 s54, s54, 1")
        a("s_cmp_lg_u32 s54, 1")
        a(f"s_cbranch_scc1 K3_ev2_{slot}")
        a(f"buffer_load_dword v195, v192, s[40:43], s44 offen{NTT}")
        if L2PF:
            a(f"buffer_load_dword v195, v193, s[48:51], s45 offen{NTT}")
            a("s_mov_b32 s55, 1000")
        else:
            a("s_mov_b32 s55, s52")
        a(f"s_branch K3_noev{slot}")
        a.label(f"K3_ev2_{slot}")
        if PREC:
            a("s_waitcnt vmcnt(0)")
        a(f"buffer_load_dword v195, v193, s[48:51], s45 offen{NTT}")
        a("s_mov_b32 s55, 1000")
        a(f"s_branch K3_noev{slot}")
        a.label(f"K3_evB{slot}")
        a(f"buffer_load_dword v195, v194, s[64:67], s68 offen{NTT}")
        a(f"buffer_load_dword v195, v194, s[64:67], s69 offen{NTT}")
        a(f"s_branch K3_noevB{slot}")
        a.label(f"K3_evC{slot}")
        a("s_add_u32 s53, s53, 1")
        a("s_cmp_lg_u32 s53, 1")
        a(f"s_cbranch_scc1 K3_ev4_{slot}")
        a("buffer_load_dword v196, v199, s[56:59], 0 offen sc1")
        a(f"s_mov_b32 s71, {NLEAD-1}")
        a(f"s_branch K3_noevC{slot}")
        a.label(f"K3_ev4_{slot}")
        a("s_cmp_lg_u32 s53, 2")
        a(f"s_cbranch_scc1 K3_ev6_{slot}")
        a("s_waitcnt vmcnt(0)")
        a("v_readfirstlane_b32 s46, v196")
        a("s_mov_b64 exec, 1")
        a("s_cmp_lg_u32 s46, 0")
        a(f"s_cbranch_scc1 K3_ev5_{slot}")
        a("v_mov_b32 v196, v198")
        a("v_mov_b32 v197, 0")
        a("buffer_atomic_cmpswap v[196:197], v199, s[56:59], 0 offen sc0 sc1")
        a("s_waitcnt vmcnt(0)")
        a("v_cmp_eq_u32 vcc, 0, v196")
        a("v_cndmask_b32 v196, v196, v198, vcc")
        a.label(f"K3_ev5_{slot}")
        a("buffer_store_dword v196, v199, s[60:63], s47 offen sc1")
        a("s_mov_b64 exec, -1")
        a(f"s_mov_b32 s71, {FLAGN-F1N-1 if not POSTPRE else 1000}")
        a(f"s_branch K3_noevC{slot}")
        a.label(f"K3_ev6_{slot}")
        a("s_mov_b64 exec, 1")
        a("buffer_store_dword v196, v199, s[60:63], s47 offen offset:32 sc1")
        a("s_mov_b64 exec, -1")
        a("s_mov_b32 s71, 1000")
        a(f"s_branch K3_noevC{slot}")

    a.label("K3_L")
    a("v_lshrrev_b32 v4, 3, v2")
    a("v_and_b32 v5, 7, v2")
    for jl in range(4):
        a(f"v_add_u32 v6, {4*(jl&1)}, v14")
        a("v_xor_b32 v6, v6, v5")
        a("v_lshlrev_b32 v6, 4, v6")
        a("v_lshl_add_u32 v6, v4, 11, v6")
        a(f"v_add_u32 v{240+jl}, {jl*(16384-1024)}, v6")
    a("v_lshrrev_b32 v6, 5, v2")
    a("v_bfe_u32 v7, v2, 2, 2")
    a("v_lshl_add_u32 v6, v6, 2, v7")
    a("v_mul_u32_u24 v6, 6144, v6")
    a("v_bfe_u32 v7, v2, 4, 1")
    a("v_lshl_add_u32 v6, v7, 6, v6")
    a("v_and_b32 v7, 3, v2")
    a("v_lshl_add_u32 v6, v7, 4, v6")
    a("v_xor_b32 v7, 32, v6")
    a("s_and_b32 s40, s13, 1")
    a("s_lshl_b32 s40, s40, 7")
    a(f"s_xor_b32 s41, s40, {128 if QX else 0}")
    binst = []
    for seg in range(3):
        for gg in range(2):
            ldsoff = seg * 2048 + gg * 1024
            m0sel, ioff = ldsoff // 4096, ldsoff % 4096
            reg = 244 + seg * 2 + gg
            a(f"v_add_u32 v{reg}, {8*gg*6144 + seg*2048 - ioff}, v{6+gg}")
            a(f"v_add_u32 v{reg}, s{41 if seg == 0 else 40}, v{reg}")
            binst.append((reg, m0sel, ioff))
    a("s_lshl_b32 s38, s12, 7")
    a("s_lshl_b32 s40, s4, 5")
    a("s_add_u32 s38, s38, s40")
    a("s_lshl_b32 s38, s38, 11")
    a("s_mul_i32 s39, s4, 98304")
    a("s_lshr_b32 s40, s13, 1")
    a("s_lshl_b32 s40, s40, 8")
    a("s_add_u32 s39, s39, s40")
    a("s_lshl_b32 s41, s4, 12")
    a("s_mul_i32 s42, s4, 6144")
    a("s_add_u32 s42, s42, 16384")
    srd(a, 16, P_X, 4 * MB)
    srd(a, 20, P_W, 6 * MB)
    vm = Cnt(a, "vmcnt", 63)

    def issue(kt):
        sb = (kt % NS) * STAGE
        a(f"s_add_u32 m0, s41, {sb}")
        for jl in range(4):
            a(f"buffer_load_dwordx4 v{240+jl}, s[16:19], s38 offen offset:{jl*1024}{NTG} lds")
            vm.issue(("st", kt))
        cur = -1
        for reg, m0sel, ioff in binst:
            if m0sel != cur:
                a(f"s_add_u32 m0, s42, {sb + 4096*m0sel}")
                cur = m0sel
            a(f"buffer_load_dwordx4 v{reg}, s[20:23], s39 offen offset:{ioff}{NTG} lds")
            vm.issue(("st", kt))
        a("s_add_u32 s38, s38, 128")
        a(f"s_add_u32 s39, s39, {64*6144}")

    for kt in range(NS - 1):
        issue(kt)
    srd(a, 24, P_K, 4 * MB)
    srd(a, 28, P_V, 4 * MB)
    srd(a, 32, P_SHK, 8192)
    srd_off(a, 44, P_WS, WS_UT, 4 * MB)
    srd_off(a, 48, P_WS, WS_OF, 4 * MB)
    srd_off(a, 52, P_WS, WS_KVP, 2 * MB)
    srd_off(a, 56, P_WS, WS_ZP, 64 * 1024)
    a("s_lshl_b32 s60, s2, 2")
    a("s_add_u32 s60, s60, s4")
    a("s_and_b32 s61, s60, 15")
    a("s_lshr_b32 s60, s60, 4")
    a("s_lshl_b32 s62, s60, 16")
    a("s_lshl_b32 s63, s61, 7")
    a("s_add_u32 s62, s62, s63")
    a("v_lshlrev_b32 v21, 14, v14")
    a("v_lshl_add_u32 v21, v15, 3, v21")
    a("v_add_u32 v21, s62, v21")
    a("s_lshl_b32 s63, s61, 9")
    a("v_lshlrev_b32 v22, 5, v15")
    a("s_lshl_b32 s62, s61, 18")
    a("s_lshl_b32 s64, s60, 6")
    a("s_add_u32 s62, s62, s64")
    a("v_lshlrev_b32 v19, 14, v15")
    a("v_lshl_add_u32 v19, v14, 4, v19")
    a("s_lshl_b32 s64, s12, 3")
    a("s_lshl_b32 s65, s4, 1")
    a("s_add_u32 s64, s64, s65")
    a("s_lshl_b32 s64, s64, 15")
    a("s_lshr_b32 s65, s15, 1")
    a("s_lshl_b32 s65, s65, 11")
    a("s_add_u32 s64, s64, s65")
    a("s_add_u32 s65, s64, 32768")
    a("s_lshl_b32 s66, s5, 4")
    a("s_add_u32 s66, s66, s12")
    a("s_lshl_b32 s67, s66, 7")
    a("s_lshl_b32 s66, s66, 12")
    a("s_lshl_b32 s68, s36, 11")
    a("s_add_u32 s66, s66, s68")
    for i in range(4):
        a(f"v_mov_b32 v{160+i}, 0")
    a("v_and_b32 v18, 7, v2")
    a("v_lshlrev_b32 v18, 4, v18")
    fills = [
        f"buffer_store_dwordx4 v[160:163], v3, s[48:51], s64 offen sc1{NTF}",
        f"buffer_store_dwordx4 v[160:163], v3, s[48:51], s64 offen offset:1024 sc1{NTF}",
        f"buffer_store_dwordx4 v[160:163], v3, s[48:51], s65 offen sc1{NTF}",
        f"buffer_store_dwordx4 v[160:163], v3, s[48:51], s65 offen offset:1024 sc1{NTF}",
        f"buffer_store_dwordx4 v[160:163], v3, s[52:55], s66 offen sc1{NTF}",
        f"buffer_store_dwordx4 v[160:163], v3, s[52:55], s66 offen offset:1024 sc1{NTF}",
        f"buffer_store_dwordx4 v[160:163], v18, s[56:59], s67 offen sc1{NTF}",
    ]
    W, KF, VF, KS = 72, 88, 110, 126
    loads = []
    for i in range(2):
        loads.append([f"buffer_load_dwordx4 {vr(24+4*i)}, v22, s[32:35], s63 offen offset:{16*i}"])
    for i in range(11):
        loads.append([f"v_add_u32 v23, {((i-3)*2048) & 0xffffffff}, v21", f"buffer_load_dwordx2 {vr(32+2*i,2)}, v23, s[24:27], 0 offen{NTO}"])
    for i in range(8):
        loads.append([f"v_add_u32 v23, {i*2048}, v21", f"buffer_load_dwordx2 {vr(54+2*i,2)}, v23, s[28:31], 0 offen{NTO}"])
    comp = []
    for ci in range(4):
        comp += [f"v_lshlrev_b32 v{W+ci}, 16, v{24+2*ci}", f"v_and_b32 v{W+4+ci}, 0xffff0000, v{24+2*ci}",
                 f"v_lshlrev_b32 v{W+8+ci}, 16, v{25+2*ci}", f"v_and_b32 v{W+12+ci}, 0xffff0000, v{25+2*ci}"]
    for cp in range(2):
        for i in range(11):
            comp += [f"v_lshlrev_b32 v{KF+2*i}, 16, v{32+2*i+cp}", f"v_and_b32 v{KF+2*i+1}, 0xffff0000, v{32+2*i+cp}"]
        for i in range(8):
            comp += [f"v_lshlrev_b32 v{VF+2*i}, 16, v{54+2*i+cp}", f"v_and_b32 v{VF+2*i+1}, 0xffff0000, v{54+2*i+cp}"]
        for i in range(16):
            comp.append(f"v_mul_f32 v{KS+i}, v{KF+i}, v{W+12+2*cp+(i&1)}")
        for j in (2, 1, 0):
            for i in range(16):
                comp.append(f"v_fmac_f32 v{KS+i}, v{KF+2*(3-j)+i}, v{W+4*j+2*cp+(i&1)}")
        for i in range(16):
            comp.append(f"v_mul_f32 v{KS+i}, v{KS+i}, v{VF+i}")
        O = 144 + 8 * cp
        for e in range(2):
            for i in range(4):
                comp.append(f"v_cvt_pk_bf16_f32 v{O+4*e+i}, v{KS+4*i+e}, v{KS+4*i+2+e}")
        for i in range(8):
            comp.append(f"v_and_b32 v{O+i}, -2, v{O+i}")
        for e in range(2):
            comp.append(("st", f"buffer_store_dwordx4 {vr(O+4*e)}, v19, s[44:47], s62 offen sc1"))
            comp.append("s_add_u32 s62, s62, 4096")
    PCE = env("PCE", FLAGN - 3)
    NPC = PCE - (PL0 + 2)
    per = -(-len(comp) // NPC)
    a("v_lshrrev_b32 v6, 5, v2")
    a("v_bfe_u32 v7, v2, 2, 2")
    a("v_lshl_add_u32 v7, v6, 2, v7")
    a("v_lshlrev_b32 v7, 11, v7")
    a("v_bfe_u32 v8, v2, 4, 1")
    a("v_lshl_add_u32 v7, v8, 6, v7")
    a("v_and_b32 v8, 3, v2")
    a("v_lshlrev_b32 v6, 1, v6")
    a("v_xor_b32 v8, v8, v6")
    a("v_lshl_add_u32 v7, v8, 4, v7")
    for i in range(4):
        a(f"v_add_u32 v{232+i}, {i*(16384-1024)}, v7")
    a("s_lshl_b32 s69, s4, 16")
    a("s_lshr_b32 s70, s10, 2")
    a("s_lshl_b32 s70, s70, 3")
    a("s_lshr_b32 s71, s11, 2")
    a("s_add_u32 s70, s70, s71")
    a("s_lshl_b32 s70, s70, 7")
    a("s_add_u32 s69, s69, s70")
    a("s_lshl_b32 s70, s4, 12")
    a(f"s_add_u32 s70, s70, {WO_BASE}")
    a("s_lshl_b32 s71, s6, 12")
    a(f"v_mov_b32 v10, {SYNC}")
    a("v_mov_b32 v11, 1")
    a("s_lshl_b32 s43, s4, 2")
    a("v_add_u32 v9, s43, v10")

    def wo_issue(k):
        if k < 7:
            a(f"s_add_u32 m0, s70, {k*16384}")
        else:
            a("s_mov_b32 m0, s7")
        for i in range(4):
            a(f"buffer_load_dwordx4 v{232+i}, s[20:23], s69 offen offset:{i*1024}{NTG} lds")
            vm.issue("wo")
        a(f"s_add_u32 s69, s69, {128*2048}")

    def post_setup():
        a("s_lshl_b32 s16, s10, 1")
        a("s_lshr_b32 s17, s11, 4")
        a("s_add_u32 s16, s16, s17")
        a("s_and_b32 s17, s11, 15")
        a("s_lshl_b32 s17, s17, 2")
        a("s_add_u32 s17, s17, s4")
        a("s_lshr_b32 s18, s17, 4")
        a("s_and_b32 s17, s17, 15")
        a("s_lshl_b32 s19, s18, 9")
        a("s_lshl_b32 s64, s17, 2")
        a("s_add_u32 s19, s19, s64")
        a("s_lshl_b32 s64, s19, 11")
        a("s_lshl_b32 s65, s16, 7")
        a("s_add_u32 s64, s64, s65")
        a("s_lshl_b32 s72, s19, 12")
        a("s_add_u32 s72, s72, s65")
        a("s_lshl_b32 s73, s16, 18")
        a("s_lshl_b32 s65, s18, 10")
        a("s_add_u32 s73, s73, s65")
        a("s_lshl_b32 s65, s17, 6")
        a("s_add_u32 s73, s73, s65")
        a("s_add_u32 s65, s73, 4096")
        a("s_add_u32 s66, s73, 8192")
        a("s_add_u32 s67, s73, 12288")
        a("v_lshlrev_b32 v224, 12, v14")
        a("v_lshl_add_u32 v224, v15, 3, v224")
        a("v_lshlrev_b32 v225, 14, v15")
        a("v_lshl_add_u32 v225, v14, 4, v225")

    def q_loads():
        srd(a, 16, P_Q, 4 * MB)
        a("v_lshlrev_b32 v4, 11, v14")
        a("v_lshl_add_u32 v4, v15, 3, v4")
        for jj in range(8):
            a(f"buffer_load_dwordx2 {vr(QR+2*jj,2)}, v4, s[16:19], s64 offen{NTO}")
            vm.issue("q")
            a(f"s_add_u32 s64, s64, {64*2048}")

    QR = 208

    def h_issue():
        a(f"s_add_u32 m0, s7, {CV_HB}")
        for c in range(4):
            a(f"buffer_load_dwordx4 v3, s[16:19], s71 offen offset:{1024*c}{NTO} lds")
            vm.issue("h")
        a("s_lshl_b32 s43, s6, 1")
        a("v_mov_b32 v4, 0")
        a("buffer_load_ushort v164, v4, s[20:23], s43 offen")
        vm.issue("h")
        srd(a, 20, P_WO, 2 * MB)

    for kt in range(16):
        tags = [("st", kt)]
        if kt == F1N + 1:
            tags += ["fill"]
        if kt == FLAGN + 1:
            tags += ["ust"]
        vm.wait_for(tags)
        if kt == 14:
            a("s_waitcnt lgkmcnt(0)")
        a("s_barrier")
        if kt in (2, 5, 8, 11, 14):
            stamp(a, 10 + (2, 5, 8, 11, 14).index(kt))
        if kt + NS - 1 < 16:
            issue(kt + NS - 1)
        for op in spf[SPF_C + kt * SPF_L: SPF_C + (kt + 1) * SPF_L]:
            a(op)
        if 0 <= kt < 7 and "f" not in XP:
            a(fills[kt]); vm.issue("fill")
        if POSTPRE and kt in (14, 15):
            for grp in (loads[:13] if kt == 14 else loads[13:]):
                for op in grp:
                    a(op)
                vm.issue("pre")
        if kt in (PL0, PL0 + 1) and "l" not in XP and not POSTPRE and not PREC:
            part = loads[:11] if kt == PL0 else loads[11:]
            for grp in part:
                for op in grp:
                    a(op)
                vm.issue("pre")
        if kt == 13:
            post_setup()
            srd(a, 16, P_H, 4 * MB)
            srd(a, 20, P_D, 2048)
            a("v_mov_b32 v4, 0")
            a("v_lshlrev_b32 v5, 2, v2")
            a(f"v_add_u32 v6, {SYNC}, v5")
            a("ds_write_b32 v6, v4")
            a("v_add_u32 v6, s7, v5")
            a(f"ds_write_b32 v6, v4 offset:{CV_UB-256}")
            a("v_and_b32 v6, 7, v2")
            a("v_lshlrev_b32 v6, 2, v6")
            a("v_add_u32 v6, s7, v6")
            a("ds_write_b32 v6, v4")
            h_issue()
            if QEARLY:
                q_loads()
        if PL0 + 2 <= kt < PCE and not POSTPRE and not PREC:
            if kt == PL0 + 2:
                vm.wait_for(["pre"])
            for op in comp[:per]:
                if "c" in XP and not isinstance(op, tuple):
                    continue
                if isinstance(op, tuple):
                    a(op[1]); vm.issue("ust")
                else:
                    a(op)
            comp = comp[per:]
        if kt == 14 and EARLYWO >= 2:
            wo_issue(0); wo_issue(1)
        if kt == 15 and EARLYWO >= 4:
            wo_issue(2); wo_issue(3)
    assert POSTPRE or PREC or not comp
    a("s_barrier")
    stamp(a, 1)
    if POSTPRE:
        vm.wait_for(["pre"])
        for ci in range(4):
            a(f"v_lshlrev_b32 v{W+ci}, 16, v{24+2*ci}")
            a(f"v_and_b32 v{W+4+ci}, 0xffff0000, v{24+2*ci}")
            a(f"v_lshlrev_b32 v{W+8+ci}, 16, v{25+2*ci}")
            a(f"v_and_b32 v{W+12+ci}, 0xffff0000, v{25+2*ci}")
        for cp in range(2):
            for i in range(11):
                a(f"v_lshlrev_b32 v{KF+2*i}, 16, v{32+2*i+cp}")
                a(f"v_and_b32 v{KF+2*i+1}, 0xffff0000, v{32+2*i+cp}")
            for i in range(8):
                a(f"v_lshlrev_b32 v{VF+2*i}, 16, v{54+2*i+cp}")
                a(f"v_and_b32 v{VF+2*i+1}, 0xffff0000, v{54+2*i+cp}")
            for i in range(8):
                a(f"v_pk_mul_f32 {vr(KS+2*i,2)}, {vr(KF+2*i,2)}, {vr(W+12+2*cp,2)}")
            for j in (2, 1, 0):
                for i in range(8):
                    a(f"v_pk_fma_f32 {vr(KS+2*i,2)}, {vr(KF+2*(i+3-j),2)}, {vr(W+4*j+2*cp,2)}, {vr(KS+2*i,2)}")
            for i in range(8):
                a(f"v_pk_mul_f32 {vr(KS+2*i,2)}, {vr(KS+2*i,2)}, {vr(VF+2*i,2)}")
            O = 144 + 8 * cp
            for e in range(2):
                for i in range(4):
                    a(f"v_cvt_pk_bf16_f32 v{O+4*e+i}, v{KS+4*i+e}, v{KS+4*i+2+e}")
            for i in range(8):
                a(f"v_and_b32 v{O+i}, -2, v{O+i}")
            for e in range(2):
                a(f"buffer_store_dwordx4 {vr(O+4*e)}, v19, s[44:47], s62 offen sc1")
                a("s_add_u32 s62, s62, 4096")
    srd(a, 24, P_DBG, 256)
    srd(a, 32, P_OUT, 8 * MB)
    a("s_mov_b32 s40, 0")
    a("s_mov_b32 s42, 0")
    a("v_lshrrev_b32 v5, 1, v2")
    a("v_lshlrev_b32 v5, 7, v5")
    a("v_and_b32 v4, 1, v2")
    a("v_lshl_add_u32 v5, v4, 4, v5")
    a("v_mov_b32 v4, 0")
    a("buffer_load_dword v226, v4, s[24:27], 0 offen sc1")
    srd_off(a, 24, P_WS, WS_FLAG, 4096)
    a("v_lshlrev_b32 v6, 7, v15")
    a("v_lshl_add_u32 v6, v14, 4, v6")
    a("s_lshl_b32 s60, s15, 11")
    a("s_lshl_b32 s61, s15, 16")
    a("s_lshl_b32 s62, s36, 11")
    a("s_add_u32 s61, s61, s62")

    def flagcmp(r):
        for i in range(4):
            a(f"v_xor_b32 v{r+i}, v{r+i}, v226")
        a(f"v_or3_b32 v{r}, v{r}, v{r+1}, v{r+2}")
        a(f"v_or_b32 v{r}, v{r}, v{r+3}")
        a(f"v_cmp_ne_u32 vcc, 0, v{r}")

    def u_block(ret):
        a(f"s_add_u32 m0, s7, {CV_UB}")
        for c in range(4):
            a(f"buffer_load_dwordx4 v3, s[44:47], s71 offen offset:{1024*c} sc1 lds")
        a("s_mov_b32 s42, 1")
        a("s_waitcnt vmcnt(0) lgkmcnt(0)")
        lds_signal(a, 9, S_HU, 11)
        stamp(a, 3)
    a(f"s_mov_b32 s43, {RETRY_MAX}")
    a.label("K3_fp")
    a(f"buffer_load_dwordx4 {vr(24)}, v5, s[24:27], 0 offen sc1")
    a(f"buffer_load_dwordx4 {vr(28)}, v5, s[24:27], 0 offen offset:32 sc1")
    a("s_waitcnt vmcnt(0)")
    vm.q = []
    flagcmp(24)
    a("s_sub_u32 s43, s43, 1")
    a("s_cbranch_scc1 K3_fp_ok")
    a("s_cmp_eq_u64 vcc, 0")
    a("s_cbranch_scc1 K3_fp_ok")
    a("s_add_u32 s75, s75, 1")
    a("s_sleep 8")
    a("s_branch K3_fp")
    a.label("K3_fp_ok")
    if POSTPRE:
        a("s_mov_b64 exec, 1")
        a(f"ds_add_rtn_u32 v7, v10, v11 offset:{S_GO}")
        a("s_waitcnt lgkmcnt(0)")
        a("v_readfirstlane_b32 s43, v7")
        a("s_lshl_b32 s62, s11, 7")
        a("s_lshl_b32 s63, s10, 2")
        a("s_add_u32 s62, s62, s63")
        a("s_cmp_lg_u32 s43, 3")
        a("s_cbranch_scc1 K3_nof2")
        a("buffer_store_dword v226, v4, s[24:27], s62 offen offset:32 sc1")
        a.label("K3_nof2")
        a("s_mov_b64 exec, -1")
    stamp(a, 2)
    a("v_mov_b32 v4, s7")
    a(f"ds_read_u16 v7, v4 offset:{CV_HB}")
    a("v_lshlrev_b32 v164, 16, v164")
    a("s_waitcnt lgkmcnt(0)")
    a("v_lshlrev_b32 v7, 16, v7")
    a("v_add_f32 v7, v7, v164")
    a("v_cvt_pk_bf16_f32 v7, v7, v7")
    a(f"ds_write_b16 v4, v7 offset:{CV_HB}")
    flagcmp(28)
    a("s_cmp_lg_u64 vcc, 0")
    a("s_cbranch_scc1 K3_nou0")
    u_block(0)
    a.label("K3_nou0")
    if WAITKV:
        lds_wait(a, "K3_wkvs", 10, S_KVS, 2, 16, 62, sleep=1)
    for k in range(EARLYWO, 6):
        wo_issue(k)
    a("v_and_b32 v7, 31, v2")
    a("v_lshlrev_b32 v7, 11, v7")
    a(f"s_add_u32 s62, s69, {128*2048}")
    a("buffer_load_dword v165, v7, s[20:23], s62 offen")
    if CPOST:
        srd(a, 16, P_Q, 4 * MB)
        a("v_bfe_u32 v7, v2, 2, 3")
        a("v_lshlrev_b32 v7, 17, v7")
        a("v_and_b32 v8, 3, v2")
        a("v_lshl_add_u32 v7, v8, 11, v7")
        a("buffer_load_dword v165, v7, s[16:19], s64 offen")
    PQR = 192
    a("s_lshl_b32 s43, s4, 12")
    a(f"s_add_u32 s43, s43, {PQ_BASE}")
    a("v_add_u32 v8, s43, v3")
    lds_wait(a, "K3_wpq", 9, S_PQ, 1, 16, 62, sleep=1)
    for mt in range(4):
        a(f"ds_read_b128 {vr(PQR+4*mt)}, v8 offset:{1024*mt}")
    a("s_waitcnt lgkmcnt(0)")
    wo_issue(6)
    a(f"s_mov_b32 s43, {RETRY_MAX}")
    a.label("K3_zp")
    for dt in range(2):
        a(f"buffer_load_dwordx4 {vr(32+4*dt)}, v6, s[56:59], s60 offen offset:{64*dt} sc1")
    a("s_cmp_lg_u32 s42, 0")
    a("s_cbranch_scc1 K3_zp_nf")
    a(f"buffer_load_dwordx4 {vr(28)}, v5, s[24:27], 0 offen offset:32 sc1")
    a("s_waitcnt vmcnt(0)")
    flagcmp(28)
    a("s_cmp_lg_u64 vcc, 0")
    a("s_cbranch_scc1 K3_zp_nf")
    u_block(1)
    a.label("K3_zp_nf")
    a(f"ds_read_b32 v17, v9 offset:{S_CD}")
    a("s_waitcnt vmcnt(0) lgkmcnt(0)")
    vm.q = []
    and_reduce(a, 16, range(32, 40))
    a("v_readfirstlane_b32 s41, v17")
    a("v_cmp_eq_u32 vcc, 0, v16")
    a("s_sub_u32 s43, s43, 1")
    a("s_cbranch_scc1 K3_zp_ok")
    a("s_cmp_eq_u64 vcc, 0")
    a("s_cbranch_scc1 K3_zp_ok")
    a("s_cmp_lg_u32 s40, 0")
    a("s_cbranch_scc1 K3_zp_s2")
    if QEARLY:
        a("s_cmp_lg_u32 s41, 0")
        a("s_cbranch_scc1 K3_post")
    a.label("K3_zp_s2")
    a(f"s_sleep {ZSLEEP}")
    a("s_branch K3_zp")
    a.label("K3_zp_ok")
    stamp(a, 4)
    a("s_setprio 2")
    a(f"s_mov_b32 s43, {RETRY_MAX}")
    a("s_mov_b32 s62, s61")
    for p in range(16):
        for dt in range(2):
            a(f"buffer_load_dwordx4 {vr(64+8*p+4*dt)}, v3, s[52:55], s62 offen offset:{1024*dt}{GSC}")
            vm.issue(("kv", p))
        a("s_add_u32 s62, s62, 4096")
    if not QEARLY and not CPOST:
        q_loads()
    a.label("K3_gl")
    for i in range(8):
        a(f"v_add_f32_dpp v{40+i}, v{32+i}, v{32+i} row_ror:8 {DPP}")
    for sh in (4, 2, 1):
        for i in range(8):
            a(f"v_add_f32_dpp v{40+i}, v{40+i}, v{40+i} row_ror:{sh} {DPP}")
    for i in range(4):
        a(f"v_cvt_pk_bf16_f32 v{48+i}, v{40+2*i}, v{41+2*i}")
    a("v_mov_b32 v16, 1")
    for p in range(16):
        vm.wait_for([("kv", p)])
        r = 64 + 8 * p
        for i in range(0, 8, 2):
            a(f"v_bitop3_b32 v16, v16, v{r+i}, v{r+i+1} bitop3:0x80")
        if p >= 1:
            for i in range(8):
                a(f"v_add_f32 v{64+i}, v{64+i}, v{r+i}")
    a("v_cmp_eq_u32 vcc, 0, v16")
    a("s_sub_u32 s43, s43, 1")
    a("s_cbranch_scc1 K3_gl_ok")
    a("s_cmp_eq_u64 vcc, 0")
    a("s_cbranch_scc1 K3_gl_ok")
    a("s_add_u32 s75, s75, 1")
    a("s_sleep 4")
    a("s_mov_b32 s62, s61")
    for p in range(16):
        for dt in range(2):
            a(f"buffer_load_dwordx4 {vr(64+8*p+4*dt)}, v3, s[52:55], s62 offen offset:{1024*dt} sc1")
        a("s_add_u32 s62, s62, 4096")
    a("s_waitcnt vmcnt(0)")
    a("s_branch K3_gl")
    a.label("K3_gl_ok")
    for i in range(4):
        a(f"v_cvt_pk_bf16_f32 v{40+i}, v{64+2*i}, v{65+2*i}")
    a("s_lshl_b32 s43, s4, 10")
    a(f"s_add_u32 s43, s43, {KVT}")
    a("v_add_u32 v5, s43, v3")
    a(f"ds_write_b128 v5, {vr(40)}")
    a("s_lshl_b32 s43, s37, 2")
    a("v_add_u32 v7, s43, v10")
    a("s_lshl_b32 s43, s37, 11")
    a(f"s_add_u32 s43, s43, {KVT}")
    a("v_add_u32 v5, s43, v3")
    a("s_waitcnt lgkmcnt(0)")
    lds_signal(a, 7, S_KVT, 11)
    lds_wait(a, "K3_wkt", 7, S_KVT, 2, 52, 60)
    a(f"ds_read_b128 {vr(40)}, v5")
    a(f"ds_read_b128 {vr(44)}, v5 offset:1024")
    a("s_waitcnt lgkmcnt(0)")
    stamp(a, 5)
    for mt in range(4):
        b = 64 + 12 * mt
        mfma16(a, b + 8, 48, PQR + 4 * mt, "0")
        mfma16(a, b, 40, PQR + 4 * mt, "0")
        mfma16(a, b + 4, 44, PQR + 4 * mt, "0")
    a("s_lshl_b32 s60, s12, 3")
    a("s_lshl_b32 s61, s36, 2")
    a("s_add_u32 s60, s60, s61")
    a("s_lshl_b32 s60, s60, 5")
    a("s_add_u32 s60, s60, s15")
    a("s_lshl_b32 s60, s60, 10")
    a(f"s_mov_b32 s61, {EPS}")
    for mt in range(4):
        a(f"v_add_f32 v{112+mt}, s61, v{64+12*mt+8}")
        a(f"v_rcp_f32 v{112+mt}, v{112+mt}")
    for mt in range(4):
        b = 64 + 12 * mt
        for i in range(8):
            a(f"v_mul_f32 v{b+i}, v{b+i}, v{112+mt}")
        for i in range(4):
            a(f"v_cvt_pk_bf16_f32 v{120+4*mt+i}, v{b+2*i}, v{b+2*i+1}")
        for i in range(4):
            a(f"v_or_b32 v{120+4*mt+i}, 1, v{120+4*mt+i}")
        a(f"buffer_store_dwordx4 {vr(120+4*mt)}, v3, s[48:51], s60 offen sc1")
        a("s_add_u32 s60, s60, 32768")
    a("s_setprio 0")
    stamp(a, 6)
    a(f"s_mov_b32 s43, {RETRY_MAX}")
    a("v_lshrrev_b32 v5, 1, v2")
    a("v_lshlrev_b32 v5, 7, v5")
    a("v_and_b32 v4, 1, v2")
    a("v_lshl_add_u32 v5, v4, 4, v5")
    a.label("K3_ul")
    a("s_cmp_lg_u32 s42, 0")
    a("s_cbranch_scc1 K3_ul_done")
    a(f"buffer_load_dwordx4 {vr(28)}, v5, s[24:27], 0 offen offset:32 sc1")
    a("s_waitcnt vmcnt(0)")
    flagcmp(28)
    a("s_sub_u32 s43, s43, 1")
    a("s_cbranch_scc1 K3_ul_go")
    a("s_cmp_eq_u64 vcc, 0")
    a("s_cbranch_scc1 K3_ul_go")
    a("s_sleep 4")
    a("s_branch K3_ul")
    a.label("K3_ul_go")
    u_block(2)
    a.label("K3_ul_done")
    a("s_and_b32 s60, s10, 3")
    a("s_lshl_b32 s60, s60, 2")
    a("s_and_b32 s61, s11, 3")
    a("s_add_u32 s60, s60, s61")
    a("s_lshl_b32 s60, s60, 18")
    a("s_lshr_b32 s61, s11, 2")
    a("s_lshl_b32 s61, s61, 2")
    a("s_add_u32 s61, s61, s4")
    a("s_lshl_b32 s61, s61, 13")
    a("s_add_u32 s63, s60, s61")
    a("v_lshlrev_b32 v8, 7, v2")
    lds_wait(a, "K3_wcd", 9, S_CD, 1, 16, 60, sleep=1)
    wo_issue(7)
    if PREPOST:
        a("s_cmp_lg_u32 s40, 0")
        a("s_cbranch_scc1 K3_pw")
        a("s_mov_b32 s40, 3")
        a("s_branch K3_post")
        a.label("K3_pw")
    else:
        a("s_waitcnt vmcnt(4)")
    if ATOUCH > 1:
        a(f"s_sleep {ATOUCH}")
    a("buffer_load_dword v60, v8, s[48:51], s63 offen")
    a("s_waitcnt vmcnt(0)")
    lds_signal(a, 10, S_WOM, 11)
    vm.q = []
    stamp(a, 7)
    a("s_cmp_eq_u32 s40, 1")
    a("s_cbranch_scc1 K3_fin")
    if CPOST:
        lds_wait(a, "K3_wg2", 9, S_G2, 1, 16, 60, sleep=2)
        a(f"ds_read_b32 v16, v9 offset:{S_PD}")
        a("s_waitcnt lgkmcnt(0)")
        a("v_readfirstlane_b32 s60, v16")
        a("s_cmp_lg_u32 s60, 0")
        a("s_cbranch_scc1 K3_fin")
        q_loads()
    a("s_mov_b32 s40, 2")
    if PDELAY:
        a(f"s_sleep {PDELAY}")
    a(f"s_mov_b32 s43, {RETRY_MAX}")
    a.label("K3_post")
    for ci, sr in enumerate((73, 65, 66, 67)):
        a(f"buffer_load_dwordx4 {vr(16+4*ci)}, v225, s[44:47], s{sr} offen sc1")
    a("s_waitcnt vmcnt(0)")
    and_reduce(a, 48, range(16, 32))
    a("v_cmp_eq_u32 vcc, 0, v48")
    a("s_cmp_eq_u64 vcc, 0")
    a("s_cbranch_scc1 K3_yok")
    a("s_add_u32 s75, s75, 1")
    a("s_cmp_eq_u32 s40, 0")
    a("s_cbranch_scc1 K3_zp_s2")
    if PREPOST:
        a("s_cmp_eq_u32 s40, 3")
        a("s_cbranch_scc1 K3_pw")
    a("s_sub_u32 s43, s43, 1")
    a("s_cbranch_scc1 K3_yok")
    a("s_sleep 8")
    a("s_branch K3_post")
    a.label("K3_yok")
    stamp(a, 8)
    post_compute(a, QR, False)
    a("s_mov_b32 s41, s40")
    a("s_mov_b32 s40, 1")
    a("s_cmp_eq_u32 s41, 0")
    a("s_cbranch_scc1 K3_zp")
    if PREPOST:
        a("s_cmp_eq_u32 s41, 3")
        a("s_cbranch_scc1 K3_pw")
    a.label("K3_fin")
    stamp_flush(a, 9)
    a.label("K3_end")
    a("s_endpgm")
    return a.finalize(), 252
```

```python
import os
from asmlib import *
from common import prepass, k2_prefetch_setup, MB, vr, mfma16, phi8, unpack4, env, LOG2E, EPS, WS_KVP, WS_ZP, WS_FLAG, WS_UT, WS_DBG, STAMP

WS_OF = 0
NS = 4
STAGE = 40960
K3_LDS = NS * STAGE
CV32 = env("CV32", 0)
CV_REG = 8960 if CV32 else 8704
CV_HB = 64 if CV32 else 32
CV_UB = 4672 if CV32 else 4384
KVT = 4 * CV_REG
SYNC = KVT + 4096
WO_BASE = 40960
PQ_BASE = WO_BASE + 24 * 4096
XCH = WO_BASE + 28 * 4096
XCZ = SYNC + 256
S_KVS = 84
S_PD = 96
S_G2 = 112
S_X, S_HU, S_PQ, S_KVT, S_WOM, S_WOT, S_CD, S_GO, S_NONCE, S_WO2 = 0, 8, 24, 40, 48, 52, 56, 72, 76, 80
SPIN_MAX = 1 << 17
RETRY_MAX = 4000
DPP = "row_mask:0xf bank_mask:0xf"
DUTY0 = env("DUTY0", 0)
NDUTY = env("NDUTY", 4)
E2_0 = env("E2_0", 4)
E2_N = env("E2_N", 4)
E3_0 = env("E3_0", 8)
E3_N = env("E3_N", 4)
F1N = env("F1N", 11)
NLEAD = env("NLEAD", 4)
FLAGN = env("FLAGN", 12)
AINIT = env("AINIT", 12)
PDELAY = env("PDELAY", 0)
G2PRIO = env("G2PRIO", 1)
CPOST = env("CPOST", 0)
PG = env("PG", 0)
BP = env("BP", 1)
TWAIT = env("TWAIT", 1)
ZFIRST = env("ZFIRST", 0)
GS = env("GS", 16)
FILLC = env("FILLC", 0)
PL0 = env("PL0", 4)
SPF_C = env("SPF_C", 0)
SPF_L = env("SPF_L", 0)
ADEPTH = env("ADEPTH", 16)
YDELAY = env("YDELAY", 8)
ZSLEEP = env("ZSLEEP", 10)
ATOUCH = env("ATOUCH", 1)
XP = env("XP", "23")
LATE = env("LATE", 1)
PREPOST = env("PREPOST", 0)
EARLYWO = env("EARLYWO", 4)
WAITKV = env("WAITKV", 1)
GSC = env("GSC", "")
QX = env("QX", 1)
PREC = env("PREC", 0)
L2PF = env("L2PF", 0)
TLBW = env("TLBW", 0)
DBGOUT = env("DBGOUT", 0)
NTF = " nt" if env("NTF", 0) else ""
NTG = " nt" if env("NTG", 0) else ""
NTO = " nt" if env("NTO", 1) else ""
NTT = " nt" if env("NTT", 0) else ""
NTS = " nt" if env("NTS", 0) else ""
E3W = env("E3W", 1)
QEARLY = env("QEARLY", 0)
POSTPRE = env("POSTPRE", 0)
ASC = env("ASC", "")
P_Q, P_K, P_V, P_SHK, P_H, P_D, P_X, P_W, P_WO, P_OUT, P_DBG, P_WS = [76 + 2 * i for i in range(12)]
SV = 231


def stamp(a, i):
    if STAMP:
        a("s_memrealtime s[100:101]")
        a("s_waitcnt lgkmcnt(0)")
        a(f"v_writelane_b32 v{SV}, s100, {i}")


def cstamp(a, i):
    if STAMP:
        a("s_memtime s[100:101]")
        a("s_waitcnt lgkmcnt(0)")
        a(f"v_writelane_b32 v{SV}, s100, {i}")


def stamp_flush(a, n):
    if not STAMP:
        return
    a("s_mov_b64 exec, -1")
    a("s_waitcnt vmcnt(0)")
    stamp(a, n)
    a(f"v_writelane_b32 v{SV}, s75, 15")
    if DBGOUT:
        lab = "K3_dbg%d" % len(a.ins)
        a(f"s_cmp_lg_u32 s2, {DBGOUT-1}")
        a(f"s_cbranch_scc1 {lab}")
        a("s_cmp_lg_u32 s4, 0")
        a(f"s_cbranch_scc1 {lab}")
        srd(a, 16, P_DBG, 256)
        a(f"v_readlane_b32 s20, v{SV}, 0")
        a("s_lshr_b32 s21, s3, 1")
        a("v_lshlrev_b32 v0, 2, v2")
        a(f"v_subrev_u32 v1, s20, v{SV}")
        a("s_mov_b64 exec, 0x3fe")
        a("buffer_store_short v1, v0, s[16:19], s21 offen")
        a("s_mov_b64 exec, -1")
        a.label(lab)
    srd_off(a, 16, P_WS, WS_DBG, 4 * MB)
    a("s_add_u32 s20, s2, 512")
    a("s_lshl_b32 s20, s20, 4")
    a("s_add_u32 s20, s20, s3")
    a("s_lshl_b32 s20, s20, 6")
    a("v_lshlrev_b32 v0, 2, v2")
    a("s_mov_b64 exec, 0xffff")
    a(f"buffer_store_dword v{SV}, v0, s[16:19], s20 offen")


def lds_wait(a, name, vaddr, off, val, vtmp, stmp, sleep=0):
    a(f"s_mov_b32 s{stmp+1}, {SPIN_MAX}")
    a.label(name)
    if sleep:
        a(f"s_sleep {sleep}")
    a(f"ds_read_b32 v{vtmp}, v{vaddr} offset:{off}")
    a("s_waitcnt lgkmcnt(0)")
    a(f"v_readfirstlane_b32 s{stmp}, v{vtmp}")
    a(f"s_sub_u32 s{stmp+1}, s{stmp+1}, 1")
    a(f"s_cbranch_scc1 {name}_ok")
    a(f"s_cmp_lt_u32 s{stmp}, {val}")
    a(f"s_cbranch_scc1 {name}")
    a.label(name + "_ok")


def lds_signal(a, vaddr, off, vone):
    a("s_mov_b64 exec, 1")
    a(f"ds_add_u32 v{vaddr}, v{vone} offset:{off}")
    a("s_mov_b64 exec, -1")


def and_reduce(a, dst, regs):
    regs = list(regs)
    a(f"v_bitop3_b32 v{dst}, v{regs[0]}, v{regs[1]}, 1 bitop3:0x80")
    i = 2
    while i + 1 < len(regs):
        a(f"v_bitop3_b32 v{dst}, v{dst}, v{regs[i]}, v{regs[i+1]} bitop3:0x80")
        i += 2
    if i < len(regs):
        a(f"v_and_b32 v{dst}, v{dst}, v{regs[i]}")


def post_compute(a, QR, pk):
    for jj in range(8):
        T = 48 + 8 * (jj & 1)
        for ci in range(4):
            if jj & 1:
                a(f"v_and_b32 v{T+ci}, 0xffff0000, v{16+4*ci+jj//2}")
            else:
                a(f"v_lshlrev_b32 v{T+ci}, 16, v{16+4*ci+jj//2}")
        for cp in range(2):
            a(f"v_lshlrev_b32 v{T+4+2*cp}, 16, v{QR+2*jj+cp}")
            a(f"v_and_b32 v{T+5+2*cp}, 0xffff0000, v{QR+2*jj+cp}")
        if pk:
            for cp in range(2):
                a(f"v_pk_mul_f32 {vr(T+2*cp,2)}, {vr(T+2*cp,2)}, {vr(T+4+2*cp,2)}")
        else:
            for ci in range(4):
                a(f"v_mul_f32 v{T+ci}, v{T+ci}, v{T+4+ci}")
        O = 64 + 2 * jj
        for cp in range(2):
            a(f"v_cvt_pk_bf16_f32 v{O+cp}, v{T+2*cp}, v{T+2*cp+1}")
        a(f"buffer_store_dwordx2 {vr(O,2)}, v224, s[32:35], s72 offen{NTS}")
        a(f"s_add_u32 s72, s72, {64*4096}")


def conv32(a, lg, PK):
    FU, HR, NH = 96, 16, 4
    ACCS = [[32, 48], [64, 80]]
    T2, T1, YV, R3PREV = [224, 225], [226, 227], [228, 229], 230

    def epilogue_ops(p):
        ops = []
        for ql in range(8):
            Q = 8 * p + ql
            acc = ACCS[p & 1][ql // 4] + 4 * (ql % 4)
            R0, R1, R2, R3 = acc, acc + 1, acc + 2, acc + 3
            cur, prv = Q & 1, (Q & 1) ^ 1
            r3p = R3PREV if ql == 0 else ACCS[p & 1][(ql - 1) // 4] + 4 * ((ql - 1) % 4) + 3
            if Q == 0:
                ops.append(f"v_add_f32_dpp v{T2[cur]}, v{R3}, v{R2} wave_shr:1 {DPP} bound_ctrl:0")
                ops.append(f"v_add_f32_dpp v{T1[cur]}, v{T2[cur]}, v{R1} wave_shr:1 {DPP} bound_ctrl:0")
                ops.append(f"v_add_f32_dpp v{YV[cur]}, v{T1[cur]}, v{R0} wave_shr:1 {DPP} bound_ctrl:0")
            else:
                ops.append(f"v_add_f32_dpp v{T2[cur]}, v{r3p}, v{R2} wave_ror:1 {DPP}")
                ops.append(f"v_add_f32_dpp v{T1[cur]}, v{T2[prv]}, v{R1} wave_ror:1 {DPP}")
                ops.append(f"v_add_f32_dpp v{YV[cur]}, v{T1[prv]}, v{R0} wave_ror:1 {DPP}")
                ops.append(f"v_add_f32_dpp v{T2[cur]}, v{R3}, v{R2} wave_shr:1 {DPP}")
                ops.append(f"v_add_f32_dpp v{T1[cur]}, v{T2[cur]}, v{R1} wave_shr:1 {DPP}")
                ops.append(f"v_add_f32_dpp v{YV[cur]}, v{T1[cur]}, v{R0} wave_shr:1 {DPP}")
            if ql & 1:
                d = PK[p] + ql // 2
                ops.append(f"v_cvt_pk_bf16_f32 v{d}, v{YV[0]}, v{YV[1]}")
                ops.append(f"v_or_b32 v{d}, 1, v{d}")
            if ql == 7:
                ops.append(f"v_mov_b32 v{R3PREV}, v{R3}")
        return ops

    steps = [(p, t) for p in range(4) for t in range(8 * p + 8)]
    issued = set()
    hslot = {}

    def issue_h(idx):
        p, t = steps[idx]
        slot = idx % NH
        hslot[idx] = slot
        for h in range(2):
            a(f"ds_read_b64_tr_b16 {vr(HR+4*slot+2*h,2)}, v12 offset:{128*t+32*(1-h)}")
            lg.issue(("h", slot))

    def issue_fu(s):
        if s in issued:
            return
        issued.add(s)
        for h in range(2):
            a(f"ds_read_b64_tr_b16 {vr(FU+4*(s+3)+2*h,2)}, v13 offset:{128*(s+3)+32*h}")
            lg.issue(("fu", s))

    def need(idx):
        p, t = steps[idx]
        r = [8 * p + 4 - t]
        if t <= 8 * p + 3:
            r.append(8 * p - t)
        return r

    PRE = 3
    for idx in range(PRE):
        for s in need(idx):
            issue_fu(s)
        issue_h(idx)
    pending = []
    for idx, (p, t) in enumerate(steps):
        if t == 0 and p > 0:
            assert not pending
            pending = epilogue_ops(p - 1)
        slot = hslot[idx]
        lg.wait_for([("h", slot)] + [("fu", s) for s in need(idx)])
        mf = [(1, 8 * p + 4 - t)]
        if t <= 8 * p + 3:
            mf.append((0, 8 * p - t))
        for k, (tile, s) in enumerate(mf):
            d = ACCS[p & 1][tile]
            cs = "0" if t == 0 else vr(d, 16)
            a(f"v_mfma_f32_32x32x16_bf16 {vr(d,16)}, {vr(FU+4*(s+3))}, {vr(HR+4*slot)}, {cs}")
            if k == 0 and idx + PRE < len(steps):
                for s2 in need(idx + PRE):
                    issue_fu(s2)
                issue_h(idx + PRE)
            if pending and t >= 2:
                for _ in range(3):
                    if pending:
                        a(pending.pop(0))
    assert not pending
    for op in epilogue_ops(3):
        a(op)


def gen_k3():
    a = Asm()
    a("s_cmp_ge_u32 s2, 256")
    a("s_cbranch_scc1 K3_end")
    a("s_load_dwordx8 s[84:91], s[0:1], 32")
    a("s_load_dwordx8 s[92:99], s[0:1], 64")
    a("s_load_dwordx8 s[76:83], s[0:1], 0")
    a("v_lshrrev_b32 v1, 6, v0")
    a("v_and_b32 v2, 63, v0")
    a("s_and_b32 s10, s2, 7")
    a("v_readfirstlane_b32 s3, v1")
    a("s_lshr_b32 s11, s2, 3")
    a("s_and_b32 s12, s10, 1")
    a("s_lshl_b32 s12, s12, 3")
    a("s_and_b32 s13, s11, 7")
    a("s_add_u32 s12, s12, s13")
    a("s_lshr_b32 s13, s10, 1")
    a("s_lshl_b32 s13, s13, 2")
    a("s_lshr_b32 s14, s11, 3")
    a("s_add_u32 s13, s13, s14")
    a("s_mov_b32 s75, 0")
    a("s_and_b32 s4, s3, 3")
    a("s_and_b32 s36, s3, 1")
    a("s_bfe_u32 s37, s3, 0x10001")
    a("s_lshl_b32 s5, s13, 1")
    a("s_add_u32 s5, s5, s37")
    a(f"s_xor_b32 s15, s5, {2 if QX else 0}")
    a("s_lshl_b32 s6, s10, 7")
    a("s_lshl_b32 s7, s11, 2")
    a("s_add_u32 s6, s6, s7")
    a("s_add_u32 s6, s6, s4")
    a(f"s_mul_i32 s7, s4, {CV_REG}")
    a("v_lshlrev_b32 v3, 4, v2")
    a("v_lshrrev_b32 v14, 4, v2")
    a("v_and_b32 v15, 15, v2")
    a("s_waitcnt lgkmcnt(0)")
    stamp(a, 0)
    spf = []
    a("s_cmp_ge_u32 s3, 4")
    a("s_cbranch_scc1 K3_L")

    if L2PF:
        srd(a, 40, P_X, 4 * MB)
        srd(a, 48, P_W, 6 * MB)
        a("v_lshrrev_b32 v192, 3, v2")
        a("v_lshlrev_b32 v192, 11, v192")
        a("v_and_b32 v16, 7, v2")
        a("v_lshl_add_u32 v192, v16, 7, v192")
        a("s_and_b32 s44, s10, 1")
        a("s_lshl_b32 s44, s44, 21")
        a("s_lshl_b32 s45, s11, 16")
        a("s_add_u32 s44, s44, s45")
        a("s_lshl_b32 s45, s3, 14")
        a("s_add_u32 s44, s44, s45")
        a(f"buffer_load_dword v195, v192, s[40:43], s44 offen{NTT}")
        a("v_lshrrev_b32 v193, 2, v2")
        a("v_mul_u32_u24 v193, 6144, v193")
        a("v_and_b32 v16, 3, v2")
        a("v_lshl_add_u32 v193, v16, 7, v193")
        a("s_mul_i32 s45, s11, 98304")
        a("s_lshl_b32 s46, s3, 11")
        a("s_add_u32 s45, s45, s46")
        a("s_lshr_b32 s46, s10, 1")
        a("s_lshl_b32 s46, s46, 9")
        a("s_add_u32 s45, s45, s46")
        a("s_cmp_eq_u32 s3, 3")
        a(f"s_cselect_b32 s45, {16*MB}, s45")
        a(f"buffer_load_dword v195, v193, s[48:51], s45 offen{NTT}")
        a("s_add_u32 s44, s44, 1024")
        a(f"s_add_u32 s45, s45, {512*6144}")
    else:
        a("s_cmp_lg_u32 s3, 0")
        a("s_cbranch_scc1 K3_pfw")
        srd(a, 40, P_X, 4 * MB)
        a("v_lshrrev_b32 v192, 3, v2")
        a("v_lshlrev_b32 v192, 11, v192")
        a("v_and_b32 v16, 7, v2")
        a("v_lshl_add_u32 v192, v16, 7, v192")
        a("s_lshl_b32 s45, s2, 14")
        a("s_add_u32 s44, s45, 1024")
        a("s_branch K3_pfd")
        a.label("K3_pfw")
        srd(a, 40, P_W, 6 * MB)
        a("v_lshlrev_b32 v192, 7, v2")
        a("s_mul_i32 s45, s2, 12288")
        a("s_sub_u32 s44, s3, 1")
        a("s_lshl_b32 s44, s44, 12")
        a("s_add_u32 s45, s45, s44")
        a(f"s_add_u32 s44, s45, {3*MB}")
        a("s_cmp_eq_u32 s3, 3")
        a(f"s_cselect_b32 s45, {8*MB}, s45")
        a(f"s_cselect_b32 s44, {8*MB}, s44")
        a.label("K3_pfd")
        if "1" in XP:
            a(f"s_mov_b32 s45, {16*MB}")
            a(f"s_mov_b32 s44, {16*MB}")
        a(f"buffer_load_dword v195, v192, s[40:43], s45 offen{NTT}")
    srd(a, 56, P_DBG, 256)
    srd_off(a, 60, P_WS, WS_FLAG, 4096)
    a("s_memrealtime s[16:17]")
    a("v_mov_b32 v199, 0")
    a("s_waitcnt lgkmcnt(0)")
    a("s_or_b32 s16, s16, 1")
    a("v_mov_b32 v198, s16")
    a("s_cmp_lg_u32 s3, 3")
    a("s_cbranch_scc1 K3_noseed")
    a("s_cmp_lg_u32 s11, 0")
    a("s_cbranch_scc1 K3_noseed")
    a("v_mov_b32 v196, s16")
    a("v_mov_b32 v197, 0")
    a("s_mov_b64 exec, 1")
    a("buffer_atomic_cmpswap v[196:197], v199, s[56:59], 0 offen sc1")
    a("s_mov_b64 exec, -1")
    a.label("K3_noseed")
    if TLBW:
        a("s_cmp_lg_u32 s3, 3")
        a("s_cbranch_scc1 K3_notlb")
        a(f"s_cmp_ge_u32 s11, {TLBW}")
        a("s_cbranch_scc1 K3_notlb")
        a("v_lshlrev_b32 v16, 16, v2")
        for p, nb, offs in ((P_K, 4, (0,)), (P_V, 4, (0,)), (P_H, 4, (0,)), (P_Q, 4, (0,)), (P_WO, 2, (0,)), (P_OUT, 8, (0, 4)), (P_WS, 20, (0, 8, 12, 16))):
            srd(a, 16, p, nb * MB)
            for o in offs:
                a(f"s_mov_b32 s20, {o*MB}")
                a("buffer_load_dword v195, v16, s[16:19], s20 offen nt")
        a.label("K3_notlb")
    a("s_lshl_b32 s46, s11, 7")
    a("s_lshl_b32 s47, s10, 2")
    a("s_add_u32 s47, s47, s46")
    if PREC:
        pre_compute = prepass(a, 3, P_K, P_V, P_SHK, " sc1", P_WS, NTO)
    if not L2PF:
        a("s_cmp_ge_u32 s3, 2")
        a(f"s_cselect_b32 s48, s{P_V}, s{P_K}")
        a(f"s_cselect_b32 s49, s{P_V+1}, s{P_K+1}")
        a(f"s_mov_b32 s50, {4*MB}")
        a("s_mov_b32 s51, 0x20000")
        a("v_lshrrev_b32 v193, 2, v2")
        a("v_lshlrev_b32 v193, 11, v193")
        a("v_and_b32 v16, 3, v2")
        a("v_lshl_add_u32 v193, v16, 7, v193")
        a("s_lshr_b32 s45, s2, 2")
        a("s_lshl_b32 s45, s45, 16")
        a("s_lshl_b32 s46, s36, 15")
        a("s_add_u32 s45, s45, s46")
        a("s_and_b32 s46, s2, 3")
        a("s_lshl_b32 s46, s46, 9")
        a("s_add_u32 s45, s45, s46")
        if "2" in XP:
            a(f"s_mov_b32 s45, {16*MB}")
    a("v_mov_b32 v200, v15")
    for part in range(4):
        if part < 3:
            a(f"s_cmp_lg_u32 s3, {part}")
            a(f"s_cbranch_scc1 K3_e3_{part+1}")
        k2_prefetch_setup(a, part, 194, 64, 68, P_H, P_Q, P_WO)
        if part < 3:
            a("s_branch K3_e3_done")
            a.label(f"K3_e3_{part+1}")
    a.label("K3_e3_done")
    a("v_mov_b32 v15, v200")
    a(f"s_and_b32 s55, s11, {NDUTY-1}")
    a(f"s_add_u32 s55, s55, {DUTY0}")
    a(f"s_and_b32 s52, s11, {E2_N-1}")
    a(f"s_add_u32 s52, s52, {E2_0}")
    a("s_sub_u32 s52, s52, s55")
    a("s_sub_u32 s52, s52, 1")
    a("s_mov_b32 s54, 0")
    a("s_lshr_b32 s70, s11, 2")
    a(f"s_and_b32 s70, s70, {E3_N-1}")
    a(f"s_add_u32 s70, s70, {E3_0 if '3' not in XP else 1000}")
    if E3W:
        a("s_cmp_lt_u32 s3, 2")
        a("s_cselect_b32 s70, 1000, s70")
    a("s_cmp_eq_u32 s3, 3")
    a(f"s_cselect_b32 s71, {F1N-NLEAD}, 1000")
    a("s_mov_b32 s53, 0")
    if PREC:
        pre_compute()
    if FILLC:
        srd_off(a, 16, P_WS, WS_OF, 4 * MB)
        srd_off(a, 20, P_WS, WS_KVP, 2 * MB)
        srd_off(a, 24, P_WS, WS_ZP, 64 * 1024)
        a("s_lshl_b32 s28, s12, 3")
        a("s_lshl_b32 s29, s4, 1")
        a("s_add_u32 s28, s28, s29")
        a("s_lshl_b32 s28, s28, 15")
        a("s_lshr_b32 s29, s15, 1")
        a("s_lshl_b32 s29, s29, 11")
        a("s_add_u32 s28, s28, s29")
        a("s_add_u32 s29, s28, 32768")
        a("s_lshl_b32 s30, s5, 4")
        a("s_add_u32 s30, s30, s12")
        a("s_lshl_b32 s31, s30, 7")
        a("s_lshl_b32 s30, s30, 12")
        a("s_lshl_b32 s32, s36, 10")
        a("s_add_u32 s30, s30, s32")
        for i in range(4):
            a(f"v_mov_b32 v{20+i}, 0")
        a("v_and_b32 v18, 7, v2")
        a("v_lshlrev_b32 v18, 4, v18")
        a("buffer_store_dwordx4 v[20:23], v3, s[16:19], s28 offen sc1")
        a("buffer_store_dwordx4 v[20:23], v3, s[16:19], s28 offen offset:1024 sc1")
        a("buffer_store_dwordx4 v[20:23], v3, s[16:19], s29 offen sc1")
        a("buffer_store_dwordx4 v[20:23], v3, s[16:19], s29 offen offset:1024 sc1")
        a("buffer_store_dwordx4 v[20:23], v3, s[20:23], s30 offen sc1")
        a("buffer_store_dwordx4 v[20:23], v18, s[24:27], s31 offen sc1")
    a("s_lshl_b32 s38, s36, 6")
    a("v_add_u32 v16, s38, v15")
    a("v_lshrrev_b32 v17, 1, v15")
    a("v_lshlrev_b32 v16, 7, v16")
    a("v_xor_b32 v17, v14, v17")
    a("v_lshl_add_u32 v4, v17, 4, v16")
    a("v_xor_b32 v5, 64, v4")
    a(f"v_add_u32 v6, {2*STAGE}, v4")
    a(f"v_add_u32 v7, {2*STAGE}, v5")
    a("v_bfe_u32 v17, v2, 2, 2")
    a("v_and_b32 v18, 3, v2")
    a("v_lshlrev_b32 v17, 6, v17")
    a("v_lshl_add_u32 v17, v18, 3, v17")
    a("v_and_b32 v18, 1, v14")
    a("v_lshl_add_u32 v17, v18, 10, v17")
    a("v_lshl_add_u32 v17, v18, 5, v17")
    a("v_lshrrev_b32 v18, 1, v14")
    a("v_mul_u32_u24 v18, 6144, v18")
    a("v_add_u32 v17, v17, v18")
    a("s_lshl_b32 s38, s37, 8")
    a("s_add_u32 s38, s38, 16384")
    a("v_add_u32 v8, s38, v17")
    a("v_xor_b32 v9, 32, v8")
    a(f"v_add_u32 v10, {2*STAGE}, v8")
    a(f"v_add_u32 v11, {2*STAGE}, v9")
    SB = [16, 56]

    def accr(kind, mt, dt):
        return 96 + 32 * kind + (mt * 2 + dt) * 4

    for i in range(96, 192):
        a(f"v_mov_b32 v{i}, 0")
    for op in spf[:SPF_C]:
        a(op)
    a("s_waitcnt lgkmcnt(0)")
    srd_off(a, 28, P_WS, WS_KVP, 2 * MB)
    srd_off(a, 32, P_WS, WS_ZP, 64 * 1024)
    lg = Cnt(a, "lgkmcnt", 15)

    def reads(slot, t, st):
        sb = (slot & 1) * STAGE
        va = 4 + t + (2 if slot >= 2 else 0)
        vb = 10 if slot >= 2 else 8
        R = SB[st]

        def A(mt):
            return [(("A", mt, st), f"ds_read_b128 {vr(R+4*mt)}, v{va} offset:{sb + 2048*mt}")]

        def B(cb):
            seg, nh = cb // 2, cb % 2
            return [(("B", cb, st), f"ds_read_b64_tr_b16 {vr(R+16+4*cb+2*h,2)}, v{vb+nh} offset:{sb + t*12288 + seg*2048 + 512*h}") for h in range(2)]
        return A(0) + B(0) + A(1) + A(2) + A(3) + B(1) + B(2) + B(3) + B(4) + B(5)

    def group(st, nxt):
        R = SB[st]
        nxt = list(nxt)
        for cb in range(6):
            kind, dt = cb // 2, cb % 2
            for mt in range(4):
                lg.wait_for([("A", mt, st), ("B", cb, st)])
                fa, fb = R + 4 * mt, R + 16 + 4 * cb
                if kind == 0:
                    mfma16(a, accr(0, mt, dt), fb, fa)
                else:
                    mfma16(a, accr(kind, mt, dt), fa, fb)
                if nxt:
                    tag, txt = nxt.pop(0)
                    a(txt)
                    lg.issue(tag)

    a("s_barrier")
    stamp(a, 1)
    cstamp(a, 10)
    for tag, txt in reads(0, 0, 0):
        a(txt)
        lg.issue(tag)
    lg.drain()
    a("s_mov_b32 s39, 4")
    a.label("K3_loop")
    for slot in range(4):
        group(0, reads(slot, 1, 1))
        lg.drain()
        a("s_barrier")
        a("s_sub_u32 s55, s55, 1")
        a(f"s_cbranch_scc1 K3_event{slot}")
        a.label(f"K3_noev{slot}")
        a("s_sub_u32 s70, s70, 1")
        a(f"s_cbranch_scc1 K3_evB{slot}")
        a.label(f"K3_noevB{slot}")
        a("s_sub_u32 s71, s71, 1")
        a(f"s_cbranch_scc1 K3_evC{slot}")
        a.label(f"K3_noevC{slot}")
        group(1, reads((slot + 1) % 4, 0, 0))
        if slot == 3:
            a("s_sub_u32 s39, s39, 1")
            a("s_cmp_lg_u32 s39, 0")
            lg.drain()
    a("s_cbranch_scc1 K3_loop")
    stamp(a, 2)
    cstamp(a, 11)

    a(f"s_mov_b32 s44, {LOG2E}")
    a(f"s_mov_b32 s45, {LOG2E}")
    a(f"s_mov_b32 s46, {EPS}")
    a(f"s_mov_b32 s47, {EPS}")
    a(f"v_mov_b32 v10, {SYNC}")
    a("v_mov_b32 v11, 1")
    for et in range(2):
        for m in range(2):
            d = 16 + 4 * (2 * et + m)
            for hh in range(2):
                s = accr(2, 2 * m + hh, et)
                a(f"v_cvt_pk_bf16_f32 v{d+2*hh}, v{s}, v{s+1}")
                a(f"v_cvt_pk_bf16_f32 v{d+2*hh+1}, v{s+2}, v{s+3}")
    for i in range(4):
        a(f"v_mov_b32 v{48+i}, 0x3f803f80")
    KV, ZZ, T = 160, 176, 52
    for m in range(2):
        for dt in range(2):
            for hh in range(2):
                s = accr(1, 2 * m + hh, dt)
                a(f"v_cvt_pk_bf16_f32 v{T+2*hh}, v{s}, v{s+1}")
                a(f"v_cvt_pk_bf16_f32 v{T+2*hh+1}, v{s+2}, v{s+3}")
            unpack4(a, T, T)
            kf = 32 + 4 * (2 * dt + m)
            phi8(a, T, kf, 44, 46)
            for et in range(2):
                mfma16(a, KV + 4 * (2 * et + dt), kf, 16 + 4 * (2 * et + m), "0" if m == 0 else None)
            mfma16(a, ZZ + 4 * dt, kf, 48, "0" if m == 0 else None)
    a("s_lshl_b32 s43, s37, 12")
    a(f"s_add_u32 s43, s43, {XCH}")
    a("v_add_u32 v4, s43, v3")
    a("s_lshl_b32 s43, s37, 7")
    a(f"s_add_u32 s43, s43, {XCZ}")
    a("v_lshlrev_b32 v5, 5, v14")
    a("v_add_u32 v5, s43, v5")
    a("s_lshl_b32 s43, s37, 2")
    a("v_add_u32 v6, s43, v10")
    a("s_cmp_eq_u32 s36, 0")
    a("s_cbranch_scc1 K3_wr0")
    for qd in range(4):
        a(f"ds_write_b128 v4, {vr(KV+4*qd)} offset:{1024*qd}")
    for dt in range(2):
        a(f"ds_write_b128 v5, {vr(ZZ+4*dt)} offset:{16*dt}")
    a("s_waitcnt lgkmcnt(0)")
    lds_signal(a, 6, S_X, 11)
    a("s_branch K3_q")
    a.label("K3_wr0")
    a("s_lshl_b32 s48, s5, 4")
    a("s_add_u32 s48, s48, s12")
    a("s_lshl_b32 s49, s48, 12")
    a("s_lshl_b32 s50, s48, 7")
    a("v_lshlrev_b32 v7, 4, v14")
    lds_wait(a, "K3_wx", 6, S_X, 1, 8, 42)
    for qd in range(4):
        a(f"ds_read_b128 {vr(16+4*qd)}, v4 offset:{1024*qd}")
    for dt in range(2):
        a(f"ds_read_b128 {vr(32+4*dt)}, v5 offset:{16*dt}")
    for qd in range(6):
        a(f"s_waitcnt lgkmcnt({5-qd})")
        a(f"v_pk_add_f32 {vr(KV+4*qd,2)}, {vr(KV+4*qd,2)}, {vr(16+4*qd,2)}")
        a(f"v_pk_add_f32 {vr(KV+4*qd+2,2)}, {vr(KV+4*qd+2,2)}, {vr(16+4*qd+2,2)}")
        if BP and qd < 4:
            d = 40 + 2 * qd
            a(f"v_cvt_pk_bf16_f32 v{d}, v{KV+4*qd}, v{KV+4*qd+1}")
            a(f"v_cvt_pk_bf16_f32 v{d+1}, v{KV+4*qd+2}, v{KV+4*qd+3}")
            a(f"v_or_b32 v{d}, 1, v{d}")
            a(f"v_or_b32 v{d+1}, 1, v{d+1}")
            if qd & 1:
                a(f"buffer_store_dwordx4 {vr(d-2)}, v3, s[28:31], s49 offen offset:{1024*(qd//2)} sc1")
            continue
        for i in range(4):
            a(f"v_or_b32 v{KV+4*qd+i}, 1, v{KV+4*qd+i}")
        if qd < 4:
            a(f"buffer_store_dwordx4 {vr(KV+4*qd)}, v3, s[28:31], s49 offen offset:{1024*qd} sc1")
    a("s_mov_b32 exec_lo, 0x00010001")
    a("s_mov_b32 exec_hi, 0x00010001")
    for dt in range(2):
        a(f"buffer_store_dwordx4 {vr(ZZ+4*dt)}, v7, s[32:35], s50 offen offset:{64*dt} sc1")
    a("s_mov_b64 exec, -1")
    lds_signal(a, 10, S_KVS, 11)
    a.label("K3_q")
    stamp(a, 3)
    a("s_lshl_b32 s43, s3, 12")
    a(f"s_add_u32 s43, s43, {PQ_BASE}")
    a("v_add_u32 v4, s43, v3")
    for mt in range(4):
        d = 80 + 4 * mt
        for dt in range(2):
            sr = accr(0, mt, dt)
            a(f"v_cvt_pk_bf16_f32 v{T+2*dt}, v{sr}, v{sr+1}")
            a(f"v_cvt_pk_bf16_f32 v{T+2*dt+1}, v{sr+2}, v{sr+3}")
        unpack4(a, T, T)
        phi8(a, T, d, 44, 46)
        a(f"ds_write_b128 v4, {vr(d)} offset:{1024*mt}")
    a("s_lshl_b32 s43, s3, 2")
    a("v_add_u32 v9, s43, v10")
    if CV32:
        a("v_and_b32 v6, 3, v2")
        a("v_bfe_u32 v7, v2, 2, 2")
        a("v_bfe_u32 v4, v2, 4, 1")
        a("v_lshrrev_b32 v5, 5, v2")
        a("v_lshlrev_b32 v12, 5, v4")
        a("v_lshl_add_u32 v12, v6, 3, v12")
        a("v_lshl_add_u32 v12, v5, 6, v12")
        a("v_lshlrev_b32 v7, 3, v7")
        a("v_sub_u32 v12, v12, v7")
        a("s_add_u32 s43, s7, 32")
        a("v_add_u32 v12, s43, v12")
        a("v_lshlrev_b32 v13, 8, v4")
        a("v_lshl_add_u32 v13, v6, 6, v13")
        a("v_add_u32 v13, v13, v7")
        a("v_lshlrev_b32 v5, 6, v5")
        a("v_sub_u32 v13, v13, v5")
        a(f"s_add_u32 s43, s7, {CV_UB-384}")
        a("v_add_u32 v13, s43, v13")
    else:
        a("v_and_b32 v6, 3, v2")
        a("v_bfe_u32 v7, v2, 2, 2")
        a("v_add_u32 v12, v6, v7")
        a("v_lshlrev_b32 v12, 3, v12")
        a("v_lshl_add_u32 v12, v14, 6, v12")
        a(f"s_add_u32 s43, s7, {CV_HB-24}")
        a("v_add_u32 v12, s43, v12")
        a("v_lshlrev_b32 v13, 5, v6")
        a("v_lshlrev_b32 v7, 3, v7")
        a("v_sub_u32 v13, v13, v7")
        a("v_lshlrev_b32 v7, 6, v14")
        a("v_sub_u32 v13, v13, v7")
        a(f"s_add_u32 s43, s7, {CV_UB+24-32}")
        a("v_add_u32 v13, s43, v13")
    a(f"s_add_u32 s43, s7, {CV_UB}")
    a("v_add_u32 v8, s43, v3")
    a("s_waitcnt lgkmcnt(0)")
    lds_signal(a, 9, S_PQ, 11)
    stamp(a, 4)
    lds_wait(a, "K3_whu", 9, S_HU, 1, 16, 42)
    stamp(a, 5)

    HH, FU = 32, 96
    ACC = [16, 20, 24, 28]
    T2, T1, YV, PK = [224, 225], [226, 227], [228, 229], [232, 236, 240, 244]
    lg.q = []

    def fu_reads(s):
        for hf in range(2):
            a(f"ds_read_b64_tr_b16 {vr(FU+4*s+2*hf,2)}, v13 offset:{128*s + 32*(1-hf)}")
            lg.issue(("fu", s))

    def h_reads(t):
        for hf in range(2):
            a(f"ds_read_b64_tr_b16 {vr(HH+4*t+2*hf,2)}, v12 offset:{256*t + 32*hf}")
            lg.issue(("h", t))

    def epi(Q):
        ops = []
        R0 = ACC[Q % 4]
        R1, R2, R3 = R0 + 1, R0 + 2, R0 + 3
        cur, prv = Q & 1, (Q & 1) ^ 1
        if Q == 0:
            ops.append(f"v_add_f32_dpp v{T2[cur]}, v{R3}, v{R2} wave_shr:1 {DPP} bound_ctrl:0")
            ops.append(f"v_add_f32_dpp v{T1[cur]}, v{T2[cur]}, v{R1} wave_shr:1 {DPP} bound_ctrl:0")
            ops.append(f"v_add_f32_dpp v{YV[cur]}, v{T1[cur]}, v{R0} wave_shr:1 {DPP} bound_ctrl:0")
        else:
            r3p = ACC[(Q - 1) % 4] + 3
            ops.append(f"v_add_f32_dpp v{T2[cur]}, v{r3p}, v{R2} wave_ror:1 {DPP}")
            ops.append(f"v_add_f32_dpp v{T1[cur]}, v{T2[prv]}, v{R1} wave_ror:1 {DPP}")
            ops.append(f"v_add_f32_dpp v{YV[cur]}, v{T1[prv]}, v{R0} wave_ror:1 {DPP}")
            ops.append(f"v_add_f32_dpp v{T2[cur]}, v{R3}, v{R2} wave_shr:1 {DPP}")
            ops.append(f"v_add_f32_dpp v{T1[cur]}, v{T2[cur]}, v{R1} wave_shr:1 {DPP}")
            ops.append(f"v_add_f32_dpp v{YV[cur]}, v{T1[cur]}, v{R0} wave_shr:1 {DPP}")
        if Q & 1:
            p = PK[Q // 8] + (Q % 8) // 2
            ops.append(f"v_cvt_pk_bf16_f32 v{p}, v{YV[0]}, v{YV[1]}")
            ops.append(f"v_or_b32 v{p}, 1, v{p}")
        return ops

    if CV32:
        conv32(a, lg, PK)
    else:
        PRE = 3
        for c in range(PRE):
            fu_reads(c)
            if c % 2 == 0:
                h_reads(c // 2)
        pending = []
        for c in range(32):
            nst = c // 2 + 1
            for t in range(nst):
                s = c - 2 * t
                lg.wait_for([("fu", s), ("h", t)])
                mfma16(a, ACC[c % 4], FU + 4 * s, HH + 4 * t, "0" if t == 0 else None)
                if t == 0 and c + PRE < 32:
                    fu_reads(c + PRE)
                    if (c + PRE) % 2 == 0:
                        h_reads((c + PRE) // 2)
                if t == 0 and c >= 2:
                    assert not pending
                    pending = epi(c - 2)
                k = max(1, -(-len(pending) // (nst - t))) if pending else 0
                for _ in range(k):
                    a(pending.pop(0))
        for Q in (30, 31):
            for op in epi(Q):
                a(op)
    srd_off(a, 28, P_WS, WS_UT, 4 * MB)
    a("s_lshl_b32 s40, s6, 12")
    for g in range(4):
        a(f"buffer_store_dwordx4 {vr(PK[g])}, v3, s[28:31], s40 offen offset:{1024*g} sc1")
    a("s_and_b32 s40, s10, 3")
    a("s_lshl_b32 s40, s40, 2")
    a("s_and_b32 s41, s11, 3")
    a("s_add_u32 s40, s40, s41")
    a("s_lshl_b32 s41, s40, 3")
    a("s_lshl_b32 s42, s3, 1")
    a("s_add_u32 s41, s41, s42")
    a("s_lshl_b32 s48, s41, 15")
    a("s_mov_b32 s47, s48")
    a("v_lshrrev_b32 v5, 5, v2")
    a("v_and_b32 v6, 1, v14")
    a("v_lshlrev_b32 v12, 15, v6")
    a("v_lshl_add_u32 v12, v5, 8, v12")
    a("v_lshl_add_u32 v12, v15, 4, v12")
    srd_off(a, 28, P_WS, WS_OF, 4 * MB)
    srd(a, 32, P_OUT, 8 * MB)
    a("s_waitcnt lgkmcnt(0)")
    lds_signal(a, 9, S_CD, 11)
    stamp(a, 6)
    if CPOST:
        a("s_lshl_b32 s16, s10, 1")
        a("s_lshr_b32 s17, s11, 4")
        a("s_add_u32 s16, s16, s17")
        a("s_and_b32 s17, s11, 15")
        a("s_lshl_b32 s17, s17, 2")
        a("s_add_u32 s17, s17, s4")
        a("s_lshr_b32 s18, s17, 4")
        a("s_and_b32 s17, s17, 15")
        a("s_lshl_b32 s19, s18, 9")
        a("s_lshl_b32 s64, s17, 2")
        a("s_add_u32 s19, s19, s64")
        a("s_lshl_b32 s64, s19, 11")
        a("s_lshl_b32 s65, s16, 7")
        a("s_add_u32 s64, s64, s65")
        a("s_lshl_b32 s72, s19, 12")
        a("s_add_u32 s72, s72, s65")
        a("s_lshl_b32 s73, s16, 18")
        a("s_lshl_b32 s65, s18, 10")
        a("s_add_u32 s73, s73, s65")
        a("s_lshl_b32 s65, s17, 6")
        a("s_add_u32 s73, s73, s65")
        a("s_add_u32 s65, s73, 4096")
        a("s_add_u32 s66, s73, 8192")
        a("s_add_u32 s67, s73, 12288")
        a("v_lshlrev_b32 v224, 12, v14")
        a("v_lshl_add_u32 v224, v15, 3, v224")
        a("v_lshlrev_b32 v225, 14, v15")
        a("v_lshl_add_u32 v225, v14, 4, v225")
        a("v_lshlrev_b32 v4, 11, v14")
        a("v_lshl_add_u32 v4, v15, 3, v4")
        srd(a, 16, P_Q, 4 * MB)
        srd_off(a, 20, P_WS, WS_UT, 4 * MB)
        for jj in range(8):
            a(f"buffer_load_dwordx2 {vr(208+2*jj,2)}, v4, s[16:19], s64 offen")
            a(f"s_add_u32 s64, s64, {64*2048}")
        a("s_waitcnt vmcnt(0)")
        a(f"s_mov_b32 s43, {RETRY_MAX}")
        a.label("K3_cp")
        for ci, sr in enumerate((73, 65, 66, 67)):
            a(f"buffer_load_dwordx4 {vr(16+4*ci)}, v225, s[20:23], s{sr} offen sc1")
        a(f"ds_read_b32 v49, v10 offset:{S_WOM}")
        a("s_waitcnt vmcnt(0) lgkmcnt(0)")
        and_reduce(a, 48, range(16, 32))
        a("v_readfirstlane_b32 s42, v49")
        a("v_cmp_eq_u32 vcc, 0, v48")
        a("s_cmp_eq_u64 vcc, 0")
        a("s_cbranch_scc1 K3_cp_ok")
        a("s_cmp_ge_u32 s42, 4")
        a("s_cbranch_scc1 K3_cp_skip")
        a("s_sub_u32 s43, s43, 1")
        a("s_cbranch_scc1 K3_cp_skip")
        a("s_sleep 6")
        a("s_branch K3_cp")
        a.label("K3_cp_ok")
        lds_signal(a, 9, S_PD, 11)
        post_compute(a, 208, True)
        a.label("K3_cp_skip")
    lds_wait(a, "K3_wwo", 10, S_WOM, 4, 80, 42)
    if CPOST:
        lds_signal(a, 9, S_G2, 11)
    stamp(a, 7)
    cstamp(a, 12)
    vm = Cnt(a, "vmcnt", 63)
    AR = 96
    D = ADEPTH
    if "a" in XP:
        srd(a, 28, P_X, 4 * MB)
        a("s_lshl_b32 s48, s12, 18")
        a("s_lshl_b32 s47, s3, 16")
        a("s_add_u32 s48, s48, s47")

    def aload(h):
        for f in range(2):
            r = AR + 8 * (h % D) + 4 * f
            a(f"buffer_load_dwordx4 {vr(r)}, v12, s[28:31], s48 offen offset:{1024*(h%4)+512*f}{ASC}")
            vm.issue(("A", h))
        if h % 4 == 3:
            a("s_add_u32 s48, s48, 4096")

    if G2PRIO:
        a(f"s_setprio {G2PRIO}")
    for h in range(AINIT):
        aload(h)
    anext = [AINIT]
    a("v_bfe_u32 v4, v2, 2, 2")
    a("v_and_b32 v7, 3, v2")
    a("v_lshlrev_b32 v4, 6, v4")
    a("v_lshl_add_u32 v4, v7, 3, v4")
    a("v_lshl_add_u32 v4, v5, 9, v4")
    a("v_xor_b32 v7, v6, v5")
    a("v_lshl_add_u32 v13, v7, 5, v4")
    a(f"v_add_u32 v4, {WO_BASE}, v13")
    a(f"v_add_u32 v8, {WO_BASE + 65536}, v13")

    def check_ops(g):
        r = AR + 8 * ((4 * g) % D)
        ops = [f"v_bitop3_b32 v81, v{r}, v{r+1}, v{r+2} bitop3:0x80"]
        for i in range(3, 31, 2):
            ops.append(f"v_bitop3_b32 v81, v81, v{r+i}, v{r+i+1} bitop3:0x80")
        ops.append(f"v_bitop3_b32 v81, v81, v{r+31}, 1 bitop3:0x80")
        return ops

    def check_branch(g):
        if "a" in XP:
            a.label(f"K3_retry{g}_ret")
            return
        a("v_cmp_eq_u32 vcc, 0, v81")
        a("s_cmp_lg_u64 vcc, 0")
        a(f"s_cbranch_scc1 K3_retry{g}")
        a.label(f"K3_retry{g}_ret")

    def retry_block(g):
        a.label(f"K3_retry{g}")
        a(f"s_mov_b32 s46, {RETRY_MAX}")
        a(f"s_add_u32 s44, s47, {4096*g}")
        a.label(f"K3_retry{g}_l")
        a("s_add_u32 s75, s75, 1")
        a("s_sleep 4")
        for hh in range(4):
            for f in range(2):
                r = AR + 8 * ((4 * g + hh) % D) + 4 * f
                a(f"buffer_load_dwordx4 {vr(r)}, v12, s[28:31], s44 offen offset:{1024*hh+512*f} sc1")
        a("s_waitcnt vmcnt(0)")
        for op in check_ops(g):
            a(op)
        a("v_cmp_eq_u32 vcc, 0, v81")
        a("s_sub_u32 s46, s46, 1")
        a(f"s_cbranch_scc1 K3_retry{g}_ret")
        a("s_cmp_lg_u64 vcc, 0")
        a(f"s_cbranch_scc1 K3_retry{g}_l")
        a(f"s_branch K3_retry{g}_ret")

    lg.q = []
    BS = [48, 64]

    def breads(h):
        out = []
        st = h & 1
        if h < 16:
            vb, off = 4, h * 4096
        elif h < 28:
            vb, off = 8, (h - 16) * 4096
        else:
            vb, off = 13, (h - 28) * CV_REG
        for f in range(2):
            for nb in range(2):
                for hf in range(2):
                    out.append(((h, f, nb), f"ds_read_b64_tr_b16 {vr(BS[st]+8*f+4*nb+2*hf,2)}, v{vb} offset:{off + f*1024 + hf*2048 + nb*256}"))
        return out

    for tag, txt in breads(0):
        a(txt); lg.issue(tag)
    vm.wait_for([("A", 3)])
    for op in check_ops(0):
        a(op)
    check_branch(0)
    chk = []
    for h in range(32):
        nxt = []
        if h == GS and not CPOST:
            lds_signal(a, 9, S_G2, 11)
            lg.issue("sig")
        if h + 1 < 32:
            if h + 1 == 28:
                lg.drain()
                lds_wait(a, "K3_wwt", 10, S_WOT, 4, 80, 42)
            nxt = breads(h + 1)
        if h % 4 == 2 and h + 2 < 32:
            vm.wait_for([("A", h + 5)])
            chk = check_ops(h // 4 + 1) if "k" not in XP else []
        for f in range(2):
            for nb in range(2):
                lg.wait_for([(h, f, nb)])
                d = 16 + 16 * nb
                cs = "0" if (h == 0 and f == 0) else vr(d, 16)
                a(f"v_mfma_f32_32x32x16_bf16 {vr(d,16)}, {vr(BS[h&1]+8*f+4*nb)}, {vr(AR+8*(h%D)+4*f)}, {cs}")
                for _ in range(2):
                    if nxt:
                        tag, txt = nxt.pop(0)
                        a(txt); lg.issue(tag)
                    if chk:
                        a(chk.pop(0))
        if h % 4 == 3 and h + 1 < 32:
            assert not chk
            check_branch(h // 4 + 1)
        for _ in range(2):
            if anext[0] < 32 and anext[0] <= h + D and "n" not in XP:
                aload(anext[0]); anext[0] += 1
    stamp(a, 8)
    cstamp(a, 13)
    a("v_and_b32 v4, 31, v2")
    a("v_lshlrev_b32 v4, 12, v4")
    a("v_lshl_add_u32 v4, v5, 4, v4")
    a("s_lshr_b32 s36, s10, 2")
    a("s_lshl_b32 s36, s36, 3")
    a("s_lshr_b32 s37, s11, 2")
    a("s_add_u32 s36, s36, s37")
    a("s_lshl_b32 s38, s41, 16")
    a("s_lshl_b32 s39, s36, 7")
    a("s_add_u32 s38, s38, s39")
    a("s_add_u32 s38, s38, 2048")
    for nb in range(2):
        for kp in range(2):
            P = 80 + 8 * nb + 4 * kp
            t0 = 16 + 16 * nb + 8 * kp
            for i in range(4):
                a(f"v_cvt_pk_bf16_f32 v{P+i}, v{t0+2*i}, v{t0+2*i+1}")
            a(f"v_permlane32_swap_b32 v{P}, v{P+2}")
            a(f"v_permlane32_swap_b32 v{P+1}, v{P+3}")
            a(f"buffer_store_dwordx4 {vr(P)}, v4, s[32:35], s38 offen offset:{64*nb+32*kp}{NTS}")
    stamp_flush(a, 9)
    a("s_endpgm")
    for g in range(8):
        retry_block(g)
    for slot in range(4):
        a.label(f"K3_event{slot}")
        a("s_add_u32 s54, s54, 1")
        a("s_cmp_lg_u32 s54, 1")
        a(f"s_cbranch_scc1 K3_ev2_{slot}")
        a(f"buffer_load_dword v195, v192, s[40:43], s44 offen{NTT}")
        if L2PF:
            a(f"buffer_load_dword v195, v193, s[48:51], s45 offen{NTT}")
            a("s_mov_b32 s55, 1000")
        else:
            a("s_mov_b32 s55, s52")
        a(f"s_branch K3_noev{slot}")
        a.label(f"K3_ev2_{slot}")
        if PREC or FILLC:
            a("s_waitcnt vmcnt(0)")
        a(f"buffer_load_dword v195, v193, s[48:51], s45 offen{NTT}")
        a("s_mov_b32 s55, 1000")
        a(f"s_branch K3_noev{slot}")
        a.label(f"K3_evB{slot}")
        a(f"buffer_load_dword v195, v194, s[64:67], s68 offen{NTT}")
        a(f"buffer_load_dword v195, v194, s[64:67], s69 offen{NTT}")
        a(f"s_branch K3_noevB{slot}")
        a.label(f"K3_evC{slot}")
        a("s_add_u32 s53, s53, 1")
        a("s_cmp_lg_u32 s53, 1")
        a(f"s_cbranch_scc1 K3_ev4_{slot}")
        a("buffer_load_dword v196, v199, s[56:59], 0 offen sc1")
        a(f"s_mov_b32 s71, {NLEAD-1}")
        a(f"s_branch K3_noevC{slot}")
        a.label(f"K3_ev4_{slot}")
        a("s_cmp_lg_u32 s53, 2")
        a(f"s_cbranch_scc1 K3_ev6_{slot}")
        a("s_waitcnt vmcnt(0)")
        a("v_readfirstlane_b32 s46, v196")
        a("s_mov_b64 exec, 1")
        a("s_cmp_lg_u32 s46, 0")
        a(f"s_cbranch_scc1 K3_ev5_{slot}")
        a("v_mov_b32 v196, v198")
        a("v_mov_b32 v197, 0")
        a("buffer_atomic_cmpswap v[196:197], v199, s[56:59], 0 offen sc0 sc1")
        a("s_waitcnt vmcnt(0)")
        a("v_cmp_eq_u32 vcc, 0, v196")
        a("v_cndmask_b32 v196, v196, v198, vcc")
        a.label(f"K3_ev5_{slot}")
        a("buffer_store_dword v196, v199, s[60:63], s47 offen sc1")
        a("s_mov_b64 exec, -1")
        a(f"s_mov_b32 s71, {FLAGN-F1N-1 if not POSTPRE else 1000}")
        a(f"s_branch K3_noevC{slot}")
        a.label(f"K3_ev6_{slot}")
        a("s_mov_b64 exec, 1")
        a("buffer_store_dword v196, v199, s[60:63], s47 offen offset:32 sc1")
        a("s_mov_b64 exec, -1")
        a("s_mov_b32 s71, 1000")
        a(f"s_branch K3_noevC{slot}")

    a.label("K3_L")
    a("v_lshrrev_b32 v4, 3, v2")
    a("v_and_b32 v5, 7, v2")
    for jl in range(4):
        a(f"v_add_u32 v6, {4*(jl&1)}, v14")
        a("v_xor_b32 v6, v6, v5")
        a("v_lshlrev_b32 v6, 4, v6")
        a("v_lshl_add_u32 v6, v4, 11, v6")
        a(f"v_add_u32 v{240+jl}, {jl*(16384-1024)}, v6")
    a("v_lshrrev_b32 v6, 5, v2")
    a("v_bfe_u32 v7, v2, 2, 2")
    a("v_lshl_add_u32 v6, v6, 2, v7")
    a("v_mul_u32_u24 v6, 6144, v6")
    a("v_bfe_u32 v7, v2, 4, 1")
    a("v_lshl_add_u32 v6, v7, 6, v6")
    a("v_and_b32 v7, 3, v2")
    a("v_lshl_add_u32 v6, v7, 4, v6")
    a("v_xor_b32 v7, 32, v6")
    a("s_and_b32 s40, s13, 1")
    a("s_lshl_b32 s40, s40, 7")
    a(f"s_xor_b32 s41, s40, {128 if QX else 0}")
    binst = []
    for seg in range(3):
        for gg in range(2):
            ldsoff = seg * 2048 + gg * 1024
            m0sel, ioff = ldsoff // 4096, ldsoff % 4096
            reg = 244 + seg * 2 + gg
            a(f"v_add_u32 v{reg}, {8*gg*6144 + seg*2048 - ioff}, v{6+gg}")
            a(f"v_add_u32 v{reg}, s{41 if seg == 0 else 40}, v{reg}")
            binst.append((reg, m0sel, ioff))
    a("s_lshl_b32 s38, s12, 7")
    a("s_lshl_b32 s40, s4, 5")
    a("s_add_u32 s38, s38, s40")
    a("s_lshl_b32 s38, s38, 11")
    a("s_mul_i32 s39, s4, 98304")
    a("s_lshr_b32 s40, s13, 1")
    a("s_lshl_b32 s40, s40, 8")
    a("s_add_u32 s39, s39, s40")
    a("s_lshl_b32 s41, s4, 12")
    a("s_mul_i32 s42, s4, 6144")
    a("s_add_u32 s42, s42, 16384")
    srd(a, 16, P_X, 4 * MB)
    srd(a, 20, P_W, 6 * MB)
    vm = Cnt(a, "vmcnt", 63)

    def issue(kt):
        sb = (kt % NS) * STAGE
        a(f"s_add_u32 m0, s41, {sb}")
        for jl in range(4):
            a(f"buffer_load_dwordx4 v{240+jl}, s[16:19], s38 offen offset:{jl*1024}{NTG} lds")
            vm.issue(("st", kt))
        cur = -1
        for reg, m0sel, ioff in binst:
            if m0sel != cur:
                a(f"s_add_u32 m0, s42, {sb + 4096*m0sel}")
                cur = m0sel
            a(f"buffer_load_dwordx4 v{reg}, s[20:23], s39 offen offset:{ioff}{NTG} lds")
            vm.issue(("st", kt))
        a("s_add_u32 s38, s38, 128")
        a(f"s_add_u32 s39, s39, {64*6144}")

    for kt in range(NS - 1):
        issue(kt)
    srd(a, 24, P_K, 4 * MB)
    srd(a, 28, P_V, 4 * MB)
    srd(a, 32, P_SHK, 8192)
    srd_off(a, 44, P_WS, WS_UT, 4 * MB)
    srd_off(a, 48, P_WS, WS_OF, 4 * MB)
    srd_off(a, 52, P_WS, WS_KVP, 2 * MB)
    srd_off(a, 56, P_WS, WS_ZP, 64 * 1024)
    a("s_lshl_b32 s60, s2, 2")
    a("s_add_u32 s60, s60, s4")
    a("s_and_b32 s61, s60, 15")
    a("s_lshr_b32 s60, s60, 4")
    a("s_lshl_b32 s62, s60, 16")
    a("s_lshl_b32 s63, s61, 7")
    a("s_add_u32 s62, s62, s63")
    a("v_lshlrev_b32 v21, 14, v14")
    a("v_lshl_add_u32 v21, v15, 3, v21")
    a("v_add_u32 v21, s62, v21")
    a("s_lshl_b32 s63, s61, 9")
    a("v_lshlrev_b32 v22, 5, v15")
    a("s_lshl_b32 s62, s61, 18")
    a("s_lshl_b32 s64, s60, 6")
    a("s_add_u32 s62, s62, s64")
    a("v_lshlrev_b32 v19, 14, v15")
    a("v_lshl_add_u32 v19, v14, 4, v19")
    a("s_lshl_b32 s64, s12, 3")
    a("s_lshl_b32 s65, s4, 1")
    a("s_add_u32 s64, s64, s65")
    a("s_lshl_b32 s64, s64, 15")
    a("s_lshr_b32 s65, s15, 1")
    a("s_lshl_b32 s65, s65, 11")
    a("s_add_u32 s64, s64, s65")
    a("s_add_u32 s65, s64, 32768")
    a("s_lshl_b32 s66, s5, 4")
    a("s_add_u32 s66, s66, s12")
    a("s_lshl_b32 s67, s66, 7")
    a("s_lshl_b32 s66, s66, 12")
    a(f"s_lshl_b32 s68, s36, {10 if BP else 11}")
    a("s_add_u32 s66, s66, s68")
    for i in range(4):
        a(f"v_mov_b32 v{160+i}, 0")
    a("v_and_b32 v18, 7, v2")
    a("v_lshlrev_b32 v18, 4, v18")
    fills = [
        f"buffer_store_dwordx4 v[160:163], v3, s[48:51], s64 offen sc1{NTF}",
        f"buffer_store_dwordx4 v[160:163], v3, s[48:51], s64 offen offset:1024 sc1{NTF}",
        f"buffer_store_dwordx4 v[160:163], v3, s[48:51], s65 offen sc1{NTF}",
        f"buffer_store_dwordx4 v[160:163], v3, s[48:51], s65 offen offset:1024 sc1{NTF}",
        f"buffer_store_dwordx4 v[160:163], v3, s[52:55], s66 offen sc1{NTF}",
        f"buffer_store_dwordx4 v[160:163], v3, s[52:55], s66 offen offset:1024 sc1{NTF}",
        f"buffer_store_dwordx4 v[160:163], v18, s[56:59], s67 offen sc1{NTF}",
    ]
    if BP:
        del fills[5]
    W, KF, VF, KS = 72, 88, 110, 126
    loads = []
    for i in range(2):
        loads.append([f"buffer_load_dwordx4 {vr(24+4*i)}, v22, s[32:35], s63 offen offset:{16*i}"])
    for i in range(11):
        loads.append([f"v_add_u32 v23, {((i-3)*2048) & 0xffffffff}, v21", f"buffer_load_dwordx2 {vr(32+2*i,2)}, v23, s[24:27], 0 offen{NTO}"])
    for i in range(8):
        loads.append([f"v_add_u32 v23, {i*2048}, v21", f"buffer_load_dwordx2 {vr(54+2*i,2)}, v23, s[28:31], 0 offen{NTO}"])
    comp = []
    for ci in range(4):
        comp += [f"v_lshlrev_b32 v{W+ci}, 16, v{24+2*ci}", f"v_and_b32 v{W+4+ci}, 0xffff0000, v{24+2*ci}",
                 f"v_lshlrev_b32 v{W+8+ci}, 16, v{25+2*ci}", f"v_and_b32 v{W+12+ci}, 0xffff0000, v{25+2*ci}"]
    for cp in range(2):
        for i in range(11):
            comp += [f"v_lshlrev_b32 v{KF+2*i}, 16, v{32+2*i+cp}", f"v_and_b32 v{KF+2*i+1}, 0xffff0000, v{32+2*i+cp}"]
        for i in range(8):
            comp += [f"v_lshlrev_b32 v{VF+2*i}, 16, v{54+2*i+cp}", f"v_and_b32 v{VF+2*i+1}, 0xffff0000, v{54+2*i+cp}"]
        for i in range(16):
            comp.append(f"v_mul_f32 v{KS+i}, v{KF+i}, v{W+12+2*cp+(i&1)}")
        for j in (2, 1, 0):
            for i in range(16):
                comp.append(f"v_fmac_f32 v{KS+i}, v{KF+2*(3-j)+i}, v{W+4*j+2*cp+(i&1)}")
        for i in range(16):
            comp.append(f"v_mul_f32 v{KS+i}, v{KS+i}, v{VF+i}")
        O = 144 + 8 * cp
        for e in range(2):
            for i in range(4):
                comp.append(f"v_cvt_pk_bf16_f32 v{O+4*e+i}, v{KS+4*i+e}, v{KS+4*i+2+e}")
        for i in range(8):
            comp.append(f"v_and_b32 v{O+i}, -2, v{O+i}")
        for e in range(2):
            comp.append(("st", f"buffer_store_dwordx4 {vr(O+4*e)}, v19, s[44:47], s62 offen sc1"))
            comp.append("s_add_u32 s62, s62, 4096")
    PCE = env("PCE", FLAGN - 3)
    PCS = PL0 + env("PGAP", 2)
    NPC = PCE - PCS
    per = -(-len(comp) // NPC)
    a("v_lshrrev_b32 v6, 5, v2")
    a("v_bfe_u32 v7, v2, 2, 2")
    a("v_lshl_add_u32 v7, v6, 2, v7")
    a("v_lshlrev_b32 v7, 11, v7")
    a("v_bfe_u32 v8, v2, 4, 1")
    a("v_lshl_add_u32 v7, v8, 6, v7")
    a("v_and_b32 v8, 3, v2")
    a("v_lshlrev_b32 v6, 1, v6")
    a("v_xor_b32 v8, v8, v6")
    a("v_lshl_add_u32 v7, v8, 4, v7")
    for i in range(4):
        a(f"v_add_u32 v{232+i}, {i*(16384-1024)}, v7")
    a("s_lshl_b32 s69, s4, 16")
    a("s_lshr_b32 s70, s10, 2")
    a("s_lshl_b32 s70, s70, 3")
    a("s_lshr_b32 s71, s11, 2")
    a("s_add_u32 s70, s70, s71")
    a("s_lshl_b32 s70, s70, 7")
    a("s_add_u32 s69, s69, s70")
    a("s_lshl_b32 s70, s4, 12")
    a(f"s_add_u32 s70, s70, {WO_BASE}")
    a("s_lshl_b32 s71, s6, 12")
    a(f"v_mov_b32 v10, {SYNC}")
    a("v_mov_b32 v11, 1")
    a("s_lshl_b32 s43, s4, 2")
    a("v_add_u32 v9, s43, v10")

    def wo_issue(k):
        if k < 7:
            a(f"s_add_u32 m0, s70, {k*16384}")
        else:
            a("s_mov_b32 m0, s7")
        for i in range(4):
            a(f"buffer_load_dwordx4 v{232+i}, s[20:23], s69 offen offset:{i*1024}{NTG} lds")
            vm.issue("wo")
        a(f"s_add_u32 s69, s69, {128*2048}")

    def post_setup():
        a("s_lshl_b32 s16, s10, 1")
        a("s_lshr_b32 s17, s11, 4")
        a("s_add_u32 s16, s16, s17")
        a("s_and_b32 s17, s11, 15")
        a("s_lshl_b32 s17, s17, 2")
        a("s_add_u32 s17, s17, s4")
        a("s_lshr_b32 s18, s17, 4")
        a("s_and_b32 s17, s17, 15")
        a("s_lshl_b32 s19, s18, 9")
        a("s_lshl_b32 s64, s17, 2")
        a("s_add_u32 s19, s19, s64")
        a("s_lshl_b32 s64, s19, 11")
        a("s_lshl_b32 s65, s16, 7")
        a("s_add_u32 s64, s64, s65")
        a("s_lshl_b32 s72, s19, 12")
        a("s_add_u32 s72, s72, s65")
        a("s_lshl_b32 s73, s16, 18")
        a("s_lshl_b32 s65, s18, 10")
        a("s_add_u32 s73, s73, s65")
        a("s_lshl_b32 s65, s17, 6")
        a("s_add_u32 s73, s73, s65")
        a("s_add_u32 s65, s73, 4096")
        a("s_add_u32 s66, s73, 8192")
        a("s_add_u32 s67, s73, 12288")
        a("v_lshlrev_b32 v224, 12, v14")
        a("v_lshl_add_u32 v224, v15, 3, v224")
        a("v_lshlrev_b32 v225, 14, v15")
        a("v_lshl_add_u32 v225, v14, 4, v225")

    def q_loads():
        srd(a, 16, P_Q, 4 * MB)
        a("v_lshlrev_b32 v4, 11, v14")
        a("v_lshl_add_u32 v4, v15, 3, v4")
        for jj in range(8):
            a(f"buffer_load_dwordx2 {vr(QR+2*jj,2)}, v4, s[16:19], s64 offen{NTO}")
            vm.issue("q")
            a(f"s_add_u32 s64, s64, {64*2048}")

    QR = 208

    def h_issue():
        a(f"s_add_u32 m0, s7, {CV_HB}")
        for c in range(4):
            a(f"buffer_load_dwordx4 v3, s[16:19], s71 offen offset:{1024*c}{NTO} lds")
            vm.issue("h")
        a("s_lshl_b32 s43, s6, 1")
        a("v_mov_b32 v4, 0")
        a("buffer_load_ushort v164, v4, s[20:23], s43 offen")
        vm.issue("h")
        srd(a, 20, P_WO, 2 * MB)

    for kt in range(16):
        tags = [("st", kt)]
        if kt == F1N + 1:
            tags += ["fill"]
        if kt == FLAGN + 1:
            tags += ["ust"]
        vm.wait_for(tags)
        if kt == 14:
            a("s_waitcnt lgkmcnt(0)")
        a("s_barrier")
        if kt in (2, 5, 8, 11, 14):
            stamp(a, 10 + (2, 5, 8, 11, 14).index(kt))
        if kt + NS - 1 < 16:
            issue(kt + NS - 1)
        for op in spf[SPF_C + kt * SPF_L: SPF_C + (kt + 1) * SPF_L]:
            a(op)
        if 0 <= kt < len(fills) and "f" not in XP and not FILLC:
            a(fills[kt]); vm.issue("fill")
        if POSTPRE and kt in (14, 15):
            for grp in (loads[:13] if kt == 14 else loads[13:]):
                for op in grp:
                    a(op)
                vm.issue("pre")
        if kt in (PL0, PL0 + 1) and "l" not in XP and not POSTPRE and not PREC:
            part = loads[:11] if kt == PL0 else loads[11:]
            for grp in part:
                for op in grp:
                    a(op)
                vm.issue("pre")
        if kt == 13:
            post_setup()
            srd(a, 16, P_H, 4 * MB)
            srd(a, 20, P_D, 2048)
            a("v_mov_b32 v4, 0")
            a("v_lshlrev_b32 v5, 2, v2")
            a(f"v_add_u32 v6, {SYNC}, v5")
            a("ds_write_b32 v6, v4")
            a("v_add_u32 v6, s7, v5")
            a(f"ds_write_b32 v6, v4 offset:{CV_UB-256}")
            if CV32:
                a(f"ds_write_b32 v6, v4 offset:{CV_UB-512}")
            a(f"v_and_b32 v6, {15 if CV32 else 7}, v2")
            a("v_lshlrev_b32 v6, 2, v6")
            a("v_add_u32 v6, s7, v6")
            a("ds_write_b32 v6, v4")
            h_issue()
            if QEARLY:
                q_loads()
        if PCS <= kt < PCE and not POSTPRE and not PREC:
            if kt == PCS:
                vm.wait_for(["pre"])
            for op in comp[:per]:
                if "c" in XP and not isinstance(op, tuple):
                    continue
                if isinstance(op, tuple):
                    if "u" in XP:
                        continue
                    a(op[1]); vm.issue("ust")
                else:
                    a(op)
            comp = comp[per:]
        if kt == 14 and EARLYWO >= 2:
            wo_issue(0); wo_issue(1)
        if kt == 15 and EARLYWO >= 4:
            wo_issue(2); wo_issue(3)
    assert POSTPRE or PREC or not comp
    a("s_barrier")
    stamp(a, 1)
    if POSTPRE:
        vm.wait_for(["pre"])
        for ci in range(4):
            a(f"v_lshlrev_b32 v{W+ci}, 16, v{24+2*ci}")
            a(f"v_and_b32 v{W+4+ci}, 0xffff0000, v{24+2*ci}")
            a(f"v_lshlrev_b32 v{W+8+ci}, 16, v{25+2*ci}")
            a(f"v_and_b32 v{W+12+ci}, 0xffff0000, v{25+2*ci}")
        for cp in range(2):
            for i in range(11):
                a(f"v_lshlrev_b32 v{KF+2*i}, 16, v{32+2*i+cp}")
                a(f"v_and_b32 v{KF+2*i+1}, 0xffff0000, v{32+2*i+cp}")
            for i in range(8):
                a(f"v_lshlrev_b32 v{VF+2*i}, 16, v{54+2*i+cp}")
                a(f"v_and_b32 v{VF+2*i+1}, 0xffff0000, v{54+2*i+cp}")
            for i in range(8):
                a(f"v_pk_mul_f32 {vr(KS+2*i,2)}, {vr(KF+2*i,2)}, {vr(W+12+2*cp,2)}")
            for j in (2, 1, 0):
                for i in range(8):
                    a(f"v_pk_fma_f32 {vr(KS+2*i,2)}, {vr(KF+2*(i+3-j),2)}, {vr(W+4*j+2*cp,2)}, {vr(KS+2*i,2)}")
            for i in range(8):
                a(f"v_pk_mul_f32 {vr(KS+2*i,2)}, {vr(KS+2*i,2)}, {vr(VF+2*i,2)}")
            O = 144 + 8 * cp
            for e in range(2):
                for i in range(4):
                    a(f"v_cvt_pk_bf16_f32 v{O+4*e+i}, v{KS+4*i+e}, v{KS+4*i+2+e}")
            for i in range(8):
                a(f"v_and_b32 v{O+i}, -2, v{O+i}")
            for e in range(2):
                a(f"buffer_store_dwordx4 {vr(O+4*e)}, v19, s[44:47], s62 offen sc1")
                a("s_add_u32 s62, s62, 4096")
    srd(a, 24, P_DBG, 256)
    srd(a, 32, P_OUT, 8 * MB)
    a("s_mov_b32 s40, 0")
    a("s_mov_b32 s42, 0")
    a("v_lshrrev_b32 v5, 1, v2")
    a("v_lshlrev_b32 v5, 7, v5")
    a("v_and_b32 v4, 1, v2")
    a("v_lshl_add_u32 v5, v4, 4, v5")
    a("v_mov_b32 v4, 0")
    a("buffer_load_dword v226, v4, s[24:27], 0 offen sc1")
    srd_off(a, 24, P_WS, WS_FLAG, 4096)
    a("v_lshlrev_b32 v6, 7, v15")
    a("v_lshl_add_u32 v6, v14, 4, v6")
    a("s_lshl_b32 s60, s15, 11")
    a("s_lshl_b32 s61, s15, 16")
    a(f"s_lshl_b32 s62, s36, {10 if BP else 11}")
    a("s_add_u32 s61, s61, s62")

    def flagcmp(r):
        for i in range(4):
            a(f"v_xor_b32 v{r+i}, v{r+i}, v226")
        a(f"v_or3_b32 v{r}, v{r}, v{r+1}, v{r+2}")
        a(f"v_or_b32 v{r}, v{r}, v{r+3}")
        a(f"v_cmp_ne_u32 vcc, 0, v{r}")

    def u_block(ret):
        a(f"s_add_u32 m0, s7, {CV_UB}")
        for c in range(4):
            a(f"buffer_load_dwordx4 v3, s[44:47], s71 offen offset:{1024*c} sc1 lds")
        a("s_mov_b32 s42, 1")
        a("s_waitcnt vmcnt(0) lgkmcnt(0)")
        lds_signal(a, 9, S_HU, 11)
        stamp(a, 3)
    a(f"s_mov_b32 s43, {RETRY_MAX}")
    a.label("K3_fp")
    a(f"buffer_load_dwordx4 {vr(24)}, v5, s[24:27], 0 offen sc1")
    a(f"buffer_load_dwordx4 {vr(28)}, v5, s[24:27], 0 offen offset:32 sc1")
    a("s_waitcnt vmcnt(0)")
    vm.q = []
    flagcmp(24)
    a("s_sub_u32 s43, s43, 1")
    a("s_cbranch_scc1 K3_fp_ok")
    a("s_cmp_eq_u64 vcc, 0")
    a("s_cbranch_scc1 K3_fp_ok")
    a("s_add_u32 s75, s75, 1")
    a("s_sleep 8")
    a("s_branch K3_fp")
    a.label("K3_fp_ok")
    if POSTPRE:
        a("s_mov_b64 exec, 1")
        a(f"ds_add_rtn_u32 v7, v10, v11 offset:{S_GO}")
        a("s_waitcnt lgkmcnt(0)")
        a("v_readfirstlane_b32 s43, v7")
        a("s_lshl_b32 s62, s11, 7")
        a("s_lshl_b32 s63, s10, 2")
        a("s_add_u32 s62, s62, s63")
        a("s_cmp_lg_u32 s43, 3")
        a("s_cbranch_scc1 K3_nof2")
        a("buffer_store_dword v226, v4, s[24:27], s62 offen offset:32 sc1")
        a.label("K3_nof2")
        a("s_mov_b64 exec, -1")
    stamp(a, 2)
    a("v_mov_b32 v4, s7")
    a(f"ds_read_u16 v7, v4 offset:{CV_HB}")
    a("v_lshlrev_b32 v164, 16, v164")
    a("s_waitcnt lgkmcnt(0)")
    a("v_lshlrev_b32 v7, 16, v7")
    a("v_add_f32 v7, v7, v164")
    a("v_cvt_pk_bf16_f32 v7, v7, v7")
    a(f"ds_write_b16 v4, v7 offset:{CV_HB}")
    flagcmp(28)
    a("s_cmp_lg_u64 vcc, 0")
    a("s_cbranch_scc1 K3_nou0")
    u_block(0)
    a.label("K3_nou0")
    if WAITKV:
        lds_wait(a, "K3_wkvs", 10, S_KVS, 2, 16, 62, sleep=1)
    PQR = 192

    def bulkA():
        for k in range(EARLYWO, 6):
            wo_issue(k)
        a("v_and_b32 v7, 31, v2")
        a("v_lshlrev_b32 v7, 11, v7")
        a(f"s_add_u32 s62, s69, {128*2048}")
        a("buffer_load_dword v165, v7, s[20:23], s62 offen")
        if CPOST:
            srd(a, 16, P_Q, 4 * MB)
            a("v_bfe_u32 v7, v2, 2, 3")
            a("v_lshlrev_b32 v7, 17, v7")
            a("v_and_b32 v8, 3, v2")
            a("v_lshl_add_u32 v7, v8, 11, v7")
            a("buffer_load_dword v165, v7, s[16:19], s64 offen")

    def pq_pick():
        a("s_lshl_b32 s43, s4, 12")
        a(f"s_add_u32 s43, s43, {PQ_BASE}")
        a("v_add_u32 v8, s43, v3")
        lds_wait(a, "K3_wpq", 9, S_PQ, 1, 16, 62, sleep=1)
        for mt in range(4):
            a(f"ds_read_b128 {vr(PQR+4*mt)}, v8 offset:{1024*mt}")
        a("s_waitcnt lgkmcnt(0)")

    if not ZFIRST:
        bulkA()
        pq_pick()
    if PG:
        vm.q = []
        a("s_setprio 2")
        a("s_mov_b32 s62, s61")
        for p in range(16):
            for dt in range(2):
                a(f"buffer_load_dwordx4 {vr(64+8*p+4*dt)}, v3, s[52:55], s62 offen offset:{1024*dt}{GSC}")
                vm.issue(("kv", p))
            a("s_add_u32 s62, s62, 4096")
    if not ZFIRST:
        wo_issue(6)
    if PG:
        if not QEARLY and not CPOST:
            q_loads()
        for i in range(8):
            a(f"v_mov_b32 v{56+i}, 0")
        a("s_mov_b32 s63, 0")
        for p in range(16):
            vm.wait_for([("kv", p)])
            r = 64 + 8 * p
            and_reduce(a, 16, range(r, r + 8))
            a("v_cmp_eq_u32 vcc, 0, v16")
            a(f"s_bitset1_b32 s63, {p}")
            a("s_cmp_lg_u64 vcc, 0")
            a(f"s_cbranch_scc1 K3_pg{p}")
            a(f"s_bitset0_b32 s63, {p}")
            for i in range(8):
                a(f"v_add_f32 v{56+i}, v{56+i}, v{r+i}")
            a.label(f"K3_pg{p}")
    a(f"s_mov_b32 s43, {RETRY_MAX}")
    a.label("K3_zp")
    for dt in range(2):
        a(f"buffer_load_dwordx4 {vr(32+4*dt)}, v6, s[56:59], s60 offen offset:{64*dt} sc1")
    a("s_cmp_lg_u32 s42, 0")
    a("s_cbranch_scc1 K3_zp_nf")
    a(f"buffer_load_dwordx4 {vr(28)}, v5, s[24:27], 0 offen offset:32 sc1")
    a("s_waitcnt vmcnt(0)")
    flagcmp(28)
    a("s_cmp_lg_u64 vcc, 0")
    a("s_cbranch_scc1 K3_zp_nf")
    u_block(1)
    a.label("K3_zp_nf")
    a(f"ds_read_b32 v17, v9 offset:{S_CD}")
    a("s_waitcnt vmcnt(0) lgkmcnt(0)")
    vm.q = []
    and_reduce(a, 16, range(32, 40))
    a("v_readfirstlane_b32 s41, v17")
    a("v_cmp_eq_u32 vcc, 0, v16")
    a("s_sub_u32 s43, s43, 1")
    a("s_cbranch_scc1 K3_zp_ok")
    a("s_cmp_eq_u64 vcc, 0")
    a("s_cbranch_scc1 K3_zp_ok")
    a("s_cmp_lg_u32 s40, 0")
    a("s_cbranch_scc1 K3_zp_s2")
    if QEARLY:
        a("s_cmp_lg_u32 s41, 0")
        a("s_cbranch_scc1 K3_post")
    a.label("K3_zp_s2")
    a(f"s_sleep {ZSLEEP}")
    a("s_branch K3_zp")
    a.label("K3_zp_ok")
    if PG:
        stamp(a, 4)
        a(f"s_mov_b32 s43, {RETRY_MAX}")
        a.label("K3_ml")
        a("s_cmp_eq_u32 s63, 0")
        a("s_cbranch_scc1 K3_ml_done")
        a("s_ff1_i32_b32 s41, s63")
        a("s_lshl_b32 s62, s41, 12")
        a("s_add_u32 s62, s62, s61")
        for dt in range(2):
            a(f"buffer_load_dwordx4 {vr(64+4*dt)}, v3, s[52:55], s62 offen offset:{1024*dt} sc1")
        a("s_add_u32 s75, s75, 1")
        a("s_waitcnt vmcnt(0)")
        and_reduce(a, 16, range(64, 72))
        a("v_cmp_eq_u32 vcc, 0, v16")
        a("s_sub_u32 s43, s43, 1")
        a("s_cbranch_scc1 K3_ml_done")
        a("s_cmp_lg_u64 vcc, 0")
        a("s_cbranch_scc1 K3_ml")
        a("s_bitset0_b32 s63, s41")
        for i in range(8):
            a(f"v_add_f32 v{56+i}, v{56+i}, v{64+i}")
        a("s_branch K3_ml")
        a.label("K3_ml_done")
        for i in range(8):
            a(f"v_add_f32_dpp v{40+i}, v{32+i}, v{32+i} row_ror:8 {DPP}")
        for sh in (4, 2, 1):
            for i in range(8):
                a(f"v_add_f32_dpp v{40+i}, v{40+i}, v{40+i} row_ror:{sh} {DPP}")
        for i in range(4):
            a(f"v_cvt_pk_bf16_f32 v{48+i}, v{40+2*i}, v{41+2*i}")
        for i in range(8):
            a(f"v_mov_b32 v{64+i}, v{56+i}")
    else:
        stamp(a, 4)
        a("s_setprio 2")
        a(f"s_mov_b32 s43, {RETRY_MAX}")
        def gloads(fl, track):
            a("s_mov_b32 s62, s61")
            for p in range(16):
                for dt in range(1 if BP else 2):
                    r = 96 + 4 * p if BP else 64 + 8 * p + 4 * dt
                    a(f"buffer_load_dwordx4 {vr(r)}, v3, s[52:55], s62 offen offset:{1024*dt}{fl}")
                    if track:
                        vm.issue(("kv", p))
                a("s_add_u32 s62, s62, 4096")
        gloads(GSC, True)
        if ZFIRST:
            bulkA()
            vm.issue("t")
        if not QEARLY and not CPOST:
            q_loads()
        a.label("K3_gl")
        for i in range(8):
            a(f"v_add_f32_dpp v{40+i}, v{32+i}, v{32+i} row_ror:8 {DPP}")
        for sh in (4, 2, 1):
            for i in range(8):
                a(f"v_add_f32_dpp v{40+i}, v{40+i}, v{40+i} row_ror:{sh} {DPP}")
        for i in range(4):
            a(f"v_cvt_pk_bf16_f32 v{48+i}, v{40+2*i}, v{41+2*i}")
        a("v_mov_b32 v16, 1")
        for p in range(16):
            vm.wait_for([("kv", p)])
            if BP:
                r = 96 + 4 * p
                for i in range(0, 4, 2):
                    a(f"v_bitop3_b32 v16, v16, v{r+i}, v{r+i+1} bitop3:0x80")
                t = 64 if p == 0 else 72
                for i in range(4):
                    a(f"v_lshlrev_b32 v{t+2*i}, 16, v{r+i}")
                    a(f"v_and_b32 v{t+2*i+1}, 0xffff0000, v{r+i}")
                if p >= 1:
                    for i in range(8):
                        a(f"v_add_f32 v{64+i}, v{64+i}, v{72+i}")
            else:
                r = 64 + 8 * p
                for i in range(0, 8, 2):
                    a(f"v_bitop3_b32 v16, v16, v{r+i}, v{r+i+1} bitop3:0x80")
                if p >= 1:
                    for i in range(8):
                        a(f"v_add_f32 v{64+i}, v{64+i}, v{r+i}")
        a("v_cmp_eq_u32 vcc, 0, v16")
        a("s_sub_u32 s43, s43, 1")
        a("s_cbranch_scc1 K3_gl_ok")
        a("s_cmp_eq_u64 vcc, 0")
        a("s_cbranch_scc1 K3_gl_ok")
        a("s_add_u32 s75, s75, 1")
        a("s_sleep 4")
        gloads(" sc1", False)
        a("s_waitcnt vmcnt(0)")
        a("s_branch K3_gl")
    a.label("K3_gl_ok")
    for i in range(4):
        a(f"v_cvt_pk_bf16_f32 v{40+i}, v{64+2*i}, v{65+2*i}")
    a("s_lshl_b32 s43, s4, 10")
    a(f"s_add_u32 s43, s43, {KVT}")
    a("v_add_u32 v5, s43, v3")
    a(f"ds_write_b128 v5, {vr(40)}")
    a("s_lshl_b32 s43, s37, 2")
    a("v_add_u32 v7, s43, v10")
    a("s_lshl_b32 s43, s37, 11")
    a(f"s_add_u32 s43, s43, {KVT}")
    a("v_add_u32 v5, s43, v3")
    a("s_waitcnt lgkmcnt(0)")
    lds_signal(a, 7, S_KVT, 11)
    if ZFIRST:
        pq_pick()
        wo_issue(6)
    lds_wait(a, "K3_wkt", 7, S_KVT, 2, 52, 60)
    a(f"ds_read_b128 {vr(40)}, v5")
    a(f"ds_read_b128 {vr(44)}, v5 offset:1024")
    a("s_waitcnt lgkmcnt(0)")
    stamp(a, 5)
    for mt in range(4):
        b = 64 + 12 * mt
        mfma16(a, b + 8, 48, PQR + 4 * mt, "0")
        mfma16(a, b, 40, PQR + 4 * mt, "0")
        mfma16(a, b + 4, 44, PQR + 4 * mt, "0")
    a("s_lshl_b32 s60, s12, 3")
    a("s_lshl_b32 s61, s36, 2")
    a("s_add_u32 s60, s60, s61")
    a("s_lshl_b32 s60, s60, 5")
    a("s_add_u32 s60, s60, s15")
    a("s_lshl_b32 s60, s60, 10")
    a(f"s_mov_b32 s61, {EPS}")
    for mt in range(4):
        a(f"v_add_f32 v{112+mt}, s61, v{64+12*mt+8}")
        a(f"v_rcp_f32 v{112+mt}, v{112+mt}")
    for mt in range(4):
        b = 64 + 12 * mt
        for i in range(8):
            a(f"v_mul_f32 v{b+i}, v{b+i}, v{112+mt}")
        for i in range(4):
            a(f"v_cvt_pk_bf16_f32 v{120+4*mt+i}, v{b+2*i}, v{b+2*i+1}")
        for i in range(4):
            a(f"v_or_b32 v{120+4*mt+i}, 1, v{120+4*mt+i}")
        a(f"buffer_store_dwordx4 {vr(120+4*mt)}, v3, s[48:51], s60 offen sc1")
        a("s_add_u32 s60, s60, 32768")
    a("s_setprio 0")
    stamp(a, 6)
    a(f"s_mov_b32 s43, {RETRY_MAX}")
    a("v_lshrrev_b32 v5, 1, v2")
    a("v_lshlrev_b32 v5, 7, v5")
    a("v_and_b32 v4, 1, v2")
    a("v_lshl_add_u32 v5, v4, 4, v5")
    a.label("K3_ul")
    a("s_cmp_lg_u32 s42, 0")
    a("s_cbranch_scc1 K3_ul_done")
    a(f"buffer_load_dwordx4 {vr(28)}, v5, s[24:27], 0 offen offset:32 sc1")
    a("s_waitcnt vmcnt(0)")
    flagcmp(28)
    a("s_sub_u32 s43, s43, 1")
    a("s_cbranch_scc1 K3_ul_go")
    a("s_cmp_eq_u64 vcc, 0")
    a("s_cbranch_scc1 K3_ul_go")
    a("s_sleep 4")
    a("s_branch K3_ul")
    a.label("K3_ul_go")
    u_block(2)
    a.label("K3_ul_done")
    a("s_and_b32 s60, s10, 3")
    a("s_lshl_b32 s60, s60, 2")
    a("s_and_b32 s61, s11, 3")
    a("s_add_u32 s60, s60, s61")
    a("s_lshl_b32 s60, s60, 18")
    a("s_lshr_b32 s61, s11, 2")
    a("s_lshl_b32 s61, s61, 2")
    a("s_add_u32 s61, s61, s4")
    a("s_lshl_b32 s61, s61, 13")
    a("s_add_u32 s63, s60, s61")
    a("v_lshlrev_b32 v8, 7, v2")
    a("s_waitcnt vmcnt(0)")
    a("buffer_load_dword v60, v8, s[48:51], s63 offen")
    a(f"s_waitcnt vmcnt({0 if TWAIT else 1})")
    lds_signal(a, 10, S_WOM, 11)
    lds_wait(a, "K3_wcd", 9, S_CD, 1, 16, 60, sleep=1)
    wo_issue(7)
    a("s_waitcnt vmcnt(0)")
    lds_signal(a, 10, S_WOT, 11)
    vm.q = []
    stamp(a, 7)
    a("s_cmp_eq_u32 s40, 1")
    a("s_cbranch_scc1 K3_fin")
    if CPOST:
        lds_wait(a, "K3_wg2", 9, S_G2, 1, 16, 60, sleep=2)
        a(f"ds_read_b32 v16, v9 offset:{S_PD}")
        a("s_waitcnt lgkmcnt(0)")
        a("v_readfirstlane_b32 s60, v16")
        a("s_cmp_lg_u32 s60, 0")
        a("s_cbranch_scc1 K3_fin")
        q_loads()
    if GS >= 0 and not CPOST:
        lds_wait(a, "K3_wg2", 9, S_G2, 1, 16, 60, sleep=2)
    a("s_mov_b32 s40, 2")
    if PDELAY:
        a(f"s_sleep {PDELAY}")
    a(f"s_mov_b32 s43, {RETRY_MAX}")
    a.label("K3_post")
    for ci, sr in enumerate((73, 65, 66, 67)):
        a(f"buffer_load_dwordx4 {vr(16+4*ci)}, v225, s[44:47], s{sr} offen sc1")
    a("s_waitcnt vmcnt(0)")
    and_reduce(a, 48, range(16, 32))
    a("v_cmp_eq_u32 vcc, 0, v48")
    a("s_cmp_eq_u64 vcc, 0")
    a("s_cbranch_scc1 K3_yok")
    a("s_add_u32 s75, s75, 1")
    a("s_cmp_eq_u32 s40, 0")
    a("s_cbranch_scc1 K3_zp_s2")
    if PREPOST:
        a("s_cmp_eq_u32 s40, 3")
        a("s_cbranch_scc1 K3_pw")
    a("s_sub_u32 s43, s43, 1")
    a("s_cbranch_scc1 K3_yok")
    a("s_sleep 8")
    a("s_branch K3_post")
    a.label("K3_yok")
    stamp(a, 8)
    post_compute(a, QR, False)
    a("s_mov_b32 s41, s40")
    a("s_mov_b32 s40, 1")
    a("s_cmp_eq_u32 s41, 0")
    a("s_cbranch_scc1 K3_zp")
    if PREPOST:
        a("s_cmp_eq_u32 s41, 3")
        a("s_cbranch_scc1 K3_pw")
    a.label("K3_fin")
    stamp_flush(a, 9)
    a.label("K3_end")
    a("s_endpgm")
    return a.finalize(), 252
```

```python
import os
from asmlib import *
from common import prepass, k2_prefetch_setup, MB, vr, mfma16, phi8, unpack4, env, LOG2E, EPS, WS_KVP, WS_ZP, WS_FLAG, WS_UT, WS_DBG, STAMP

WS_OF = 0
NS = 4
STAGE = 40960
K3_LDS = NS * STAGE
CV32 = env("CV32", 0)
CV_REG = 8960 if CV32 else 8704
CV_HB = 64 if CV32 else 32
CV_UB = 4672 if CV32 else 4384
KVT = 4 * CV_REG
SYNC = KVT + 4096
WO_BASE = 40960
PQ_BASE = WO_BASE + 24 * 4096
XCH = WO_BASE + 28 * 4096
XCZ = SYNC + 256
S_KVS = 84
S_PD = 96
S_G2 = 112
S_X, S_HU, S_PQ, S_KVT, S_WOM, S_WOT, S_CD, S_GO, S_NONCE, S_WO2 = 0, 8, 24, 40, 48, 52, 56, 72, 76, 80
SPIN_MAX = 1 << 17
RETRY_MAX = 4000
DPP = "row_mask:0xf bank_mask:0xf"
DUTY0 = env("DUTY0", 0)
NDUTY = env("NDUTY", 4)
E2_0 = env("E2_0", 4)
E2_N = env("E2_N", 4)
E3_0 = env("E3_0", 8)
E3_N = env("E3_N", 4)
F1N = env("F1N", 11)
NLEAD = env("NLEAD", 4)
FLAGN = env("FLAGN", 12)
AINIT = env("AINIT", 12)
PDELAY = env("PDELAY", 0)
G2PRIO = env("G2PRIO", 1)
CPOST = env("CPOST", 0)
PG = env("PG", 0)
BP = env("BP", 1)
TWAIT = env("TWAIT", 1)
ZFIRST = env("ZFIRST", 0)
GS = env("GS", 16)
FILLC = env("FILLC", 0)
PL0 = env("PL0", 4)
SPF_C = env("SPF_C", 0)
SPF_L = env("SPF_L", 0)
ADEPTH = env("ADEPTH", 16)
YDELAY = env("YDELAY", 8)
ZSLEEP = env("ZSLEEP", 10)
ATOUCH = env("ATOUCH", 1)
XP = env("XP", "23")
LATE = env("LATE", 1)
PREPOST = env("PREPOST", 0)
EARLYWO = env("EARLYWO", 4)
WAITKV = env("WAITKV", 1)
GSC = env("GSC", "")
QX = env("QX", 1)
PREC = env("PREC", 0)
L2PF = env("L2PF", 0)
TLBW = env("TLBW", 0)
CODEPF = env("CODEPF", 0)
DBGOUT = env("DBGOUT", 0)
NTF = " nt" if env("NTF", 0) else ""
NTG = " nt" if env("NTG", 0) else ""
NTO = " nt" if env("NTO", 1) else ""
NTT = " nt" if env("NTT", 0) else ""
NTS = " nt" if env("NTS", 0) else ""
E3W = env("E3W", 1)
QEARLY = env("QEARLY", 0)
POSTPRE = env("POSTPRE", 0)
ASC = env("ASC", "")
P_Q, P_K, P_V, P_SHK, P_H, P_D, P_X, P_W, P_WO, P_OUT, P_DBG, P_WS = [76 + 2 * i for i in range(12)]
SV = 231


def stamp(a, i):
    if STAMP:
        a("s_memrealtime s[100:101]")
        a("s_waitcnt lgkmcnt(0)")
        a(f"v_writelane_b32 v{SV}, s100, {i}")


def cstamp(a, i):
    if STAMP:
        a("s_memtime s[100:101]")
        a("s_waitcnt lgkmcnt(0)")
        a(f"v_writelane_b32 v{SV}, s100, {i}")


def stamp_flush(a, n):
    if not STAMP:
        return
    a("s_mov_b64 exec, -1")
    a("s_waitcnt vmcnt(0)")
    stamp(a, n)
    a(f"v_writelane_b32 v{SV}, s75, 15")
    if DBGOUT:
        lab = "K3_dbg%d" % len(a.ins)
        a(f"s_cmp_lg_u32 s2, {DBGOUT-1}")
        a(f"s_cbranch_scc1 {lab}")
        a("s_cmp_lg_u32 s4, 0")
        a(f"s_cbranch_scc1 {lab}")
        srd(a, 16, P_DBG, 256)
        a(f"v_readlane_b32 s20, v{SV}, 0")
        a("s_lshr_b32 s21, s3, 1")
        a("v_lshlrev_b32 v0, 2, v2")
        a(f"v_subrev_u32 v1, s20, v{SV}")
        a("s_mov_b64 exec, 0x3fe")
        a("buffer_store_short v1, v0, s[16:19], s21 offen")
        a("s_mov_b64 exec, -1")
        a.label(lab)
    srd_off(a, 16, P_WS, WS_DBG, 4 * MB)
    a("s_add_u32 s20, s2, 512")
    a("s_lshl_b32 s20, s20, 4")
    a("s_add_u32 s20, s20, s3")
    a("s_lshl_b32 s20, s20, 6")
    a("v_lshlrev_b32 v0, 2, v2")
    a("s_mov_b64 exec, 0xffff")
    a(f"buffer_store_dword v{SV}, v0, s[16:19], s20 offen")


def lds_wait(a, name, vaddr, off, val, vtmp, stmp, sleep=0):
    a(f"s_mov_b32 s{stmp+1}, {SPIN_MAX}")
    a.label(name)
    if sleep:
        a(f"s_sleep {sleep}")
    a(f"ds_read_b32 v{vtmp}, v{vaddr} offset:{off}")
    a("s_waitcnt lgkmcnt(0)")
    a(f"v_readfirstlane_b32 s{stmp}, v{vtmp}")
    a(f"s_sub_u32 s{stmp+1}, s{stmp+1}, 1")
    a(f"s_cbranch_scc1 {name}_ok")
    a(f"s_cmp_lt_u32 s{stmp}, {val}")
    a(f"s_cbranch_scc1 {name}")
    a.label(name + "_ok")


def lds_signal(a, vaddr, off, vone):
    a("s_mov_b64 exec, 1")
    a(f"ds_add_u32 v{vaddr}, v{vone} offset:{off}")
    a("s_mov_b64 exec, -1")


def and_reduce(a, dst, regs):
    regs = list(regs)
    a(f"v_bitop3_b32 v{dst}, v{regs[0]}, v{regs[1]}, 1 bitop3:0x80")
    i = 2
    while i + 1 < len(regs):
        a(f"v_bitop3_b32 v{dst}, v{dst}, v{regs[i]}, v{regs[i+1]} bitop3:0x80")
        i += 2
    if i < len(regs):
        a(f"v_and_b32 v{dst}, v{dst}, v{regs[i]}")


def post_compute(a, QR, pk):
    for jj in range(8):
        T = 48 + 8 * (jj & 1)
        for ci in range(4):
            if jj & 1:
                a(f"v_and_b32 v{T+ci}, 0xffff0000, v{16+4*ci+jj//2}")
            else:
                a(f"v_lshlrev_b32 v{T+ci}, 16, v{16+4*ci+jj//2}")
        for cp in range(2):
            a(f"v_lshlrev_b32 v{T+4+2*cp}, 16, v{QR+2*jj+cp}")
            a(f"v_and_b32 v{T+5+2*cp}, 0xffff0000, v{QR+2*jj+cp}")
        if pk:
            for cp in range(2):
                a(f"v_pk_mul_f32 {vr(T+2*cp,2)}, {vr(T+2*cp,2)}, {vr(T+4+2*cp,2)}")
        else:
            for ci in range(4):
                a(f"v_mul_f32 v{T+ci}, v{T+ci}, v{T+4+ci}")
        O = 64 + 2 * jj
        for cp in range(2):
            a(f"v_cvt_pk_bf16_f32 v{O+cp}, v{T+2*cp}, v{T+2*cp+1}")
        a(f"buffer_store_dwordx2 {vr(O,2)}, v224, s[32:35], s72 offen{NTS}")
        a(f"s_add_u32 s72, s72, {64*4096}")


def conv32(a, lg, PK):
    FU, HR, NH = 96, 16, 4
    ACCS = [[32, 48], [64, 80]]
    T2, T1, YV, R3PREV = [224, 225], [226, 227], [228, 229], 230

    def epilogue_ops(p):
        ops = []
        for ql in range(8):
            Q = 8 * p + ql
            acc = ACCS[p & 1][ql // 4] + 4 * (ql % 4)
            R0, R1, R2, R3 = acc, acc + 1, acc + 2, acc + 3
            cur, prv = Q & 1, (Q & 1) ^ 1
            r3p = R3PREV if ql == 0 else ACCS[p & 1][(ql - 1) // 4] + 4 * ((ql - 1) % 4) + 3
            if Q == 0:
                ops.append(f"v_add_f32_dpp v{T2[cur]}, v{R3}, v{R2} wave_shr:1 {DPP} bound_ctrl:0")
                ops.append(f"v_add_f32_dpp v{T1[cur]}, v{T2[cur]}, v{R1} wave_shr:1 {DPP} bound_ctrl:0")
                ops.append(f"v_add_f32_dpp v{YV[cur]}, v{T1[cur]}, v{R0} wave_shr:1 {DPP} bound_ctrl:0")
            else:
                ops.append(f"v_add_f32_dpp v{T2[cur]}, v{r3p}, v{R2} wave_ror:1 {DPP}")
                ops.append(f"v_add_f32_dpp v{T1[cur]}, v{T2[prv]}, v{R1} wave_ror:1 {DPP}")
                ops.append(f"v_add_f32_dpp v{YV[cur]}, v{T1[prv]}, v{R0} wave_ror:1 {DPP}")
                ops.append(f"v_add_f32_dpp v{T2[cur]}, v{R3}, v{R2} wave_shr:1 {DPP}")
                ops.append(f"v_add_f32_dpp v{T1[cur]}, v{T2[cur]}, v{R1} wave_shr:1 {DPP}")
                ops.append(f"v_add_f32_dpp v{YV[cur]}, v{T1[cur]}, v{R0} wave_shr:1 {DPP}")
            if ql & 1:
                d = PK[p] + ql // 2
                ops.append(f"v_cvt_pk_bf16_f32 v{d}, v{YV[0]}, v{YV[1]}")
                ops.append(f"v_or_b32 v{d}, 1, v{d}")
            if ql == 7:
                ops.append(f"v_mov_b32 v{R3PREV}, v{R3}")
        return ops

    steps = [(p, t) for p in range(4) for t in range(8 * p + 8)]
    issued = set()
    hslot = {}

    def issue_h(idx):
        p, t = steps[idx]
        slot = idx % NH
        hslot[idx] = slot
        for h in range(2):
            a(f"ds_read_b64_tr_b16 {vr(HR+4*slot+2*h,2)}, v12 offset:{128*t+32*(1-h)}")
            lg.issue(("h", slot))

    def issue_fu(s):
        if s in issued:
            return
        issued.add(s)
        for h in range(2):
            a(f"ds_read_b64_tr_b16 {vr(FU+4*(s+3)+2*h,2)}, v13 offset:{128*(s+3)+32*h}")
            lg.issue(("fu", s))

    def need(idx):
        p, t = steps[idx]
        r = [8 * p + 4 - t]
        if t <= 8 * p + 3:
            r.append(8 * p - t)
        return r

    PRE = 3
    for idx in range(PRE):
        for s in need(idx):
            issue_fu(s)
        issue_h(idx)
    pending = []
    for idx, (p, t) in enumerate(steps):
        if t == 0 and p > 0:
            assert not pending
            pending = epilogue_ops(p - 1)
        slot = hslot[idx]
        lg.wait_for([("h", slot)] + [("fu", s) for s in need(idx)])
        mf = [(1, 8 * p + 4 - t)]
        if t <= 8 * p + 3:
            mf.append((0, 8 * p - t))
        for k, (tile, s) in enumerate(mf):
            d = ACCS[p & 1][tile]
            cs = "0" if t == 0 else vr(d, 16)
            a(f"v_mfma_f32_32x32x16_bf16 {vr(d,16)}, {vr(FU+4*(s+3))}, {vr(HR+4*slot)}, {cs}")
            if k == 0 and idx + PRE < len(steps):
                for s2 in need(idx + PRE):
                    issue_fu(s2)
                issue_h(idx + PRE)
            if pending and t >= 2:
                for _ in range(3):
                    if pending:
                        a(pending.pop(0))
    assert not pending
    for op in epilogue_ops(3):
        a(op)


def gen_k3():
    a = Asm()
    a.label("K3_code_begin")
    a("s_cmp_ge_u32 s2, 256")
    a("s_cbranch_scc1 K3_end")
    a("s_load_dwordx8 s[84:91], s[0:1], 32")
    a("s_load_dwordx8 s[92:99], s[0:1], 64")
    a("s_load_dwordx8 s[76:83], s[0:1], 0")
    a("v_lshrrev_b32 v1, 6, v0")
    a("v_and_b32 v2, 63, v0")
    a("s_and_b32 s10, s2, 7")
    a("v_readfirstlane_b32 s3, v1")
    a("s_lshr_b32 s11, s2, 3")
    a("s_and_b32 s12, s10, 1")
    a("s_lshl_b32 s12, s12, 3")
    a("s_and_b32 s13, s11, 7")
    a("s_add_u32 s12, s12, s13")
    a("s_lshr_b32 s13, s10, 1")
    a("s_lshl_b32 s13, s13, 2")
    a("s_lshr_b32 s14, s11, 3")
    a("s_add_u32 s13, s13, s14")
    a("s_mov_b32 s75, 0")
    a("s_and_b32 s4, s3, 3")
    a("s_and_b32 s36, s3, 1")
    a("s_bfe_u32 s37, s3, 0x10001")
    a("s_lshl_b32 s5, s13, 1")
    a("s_add_u32 s5, s5, s37")
    a(f"s_xor_b32 s15, s5, {2 if QX else 0}")
    a("s_lshl_b32 s6, s10, 7")
    a("s_lshl_b32 s7, s11, 2")
    a("s_add_u32 s6, s6, s7")
    a("s_add_u32 s6, s6, s4")
    a(f"s_mul_i32 s7, s4, {CV_REG}")
    a("v_lshlrev_b32 v3, 4, v2")
    a("v_lshrrev_b32 v14, 4, v2")
    a("v_and_b32 v15, 15, v2")
    a("s_waitcnt lgkmcnt(0)")
    stamp(a, 0)
    spf = []
    a("s_cmp_ge_u32 s3, 4")
    a("s_cbranch_scc1 K3_L")

    if L2PF:
        srd(a, 40, P_X, 4 * MB)
        srd(a, 48, P_W, 6 * MB)
        a("v_lshrrev_b32 v192, 3, v2")
        a("v_lshlrev_b32 v192, 11, v192")
        a("v_and_b32 v16, 7, v2")
        a("v_lshl_add_u32 v192, v16, 7, v192")
        a("s_and_b32 s44, s10, 1")
        a("s_lshl_b32 s44, s44, 21")
        a("s_lshl_b32 s45, s11, 16")
        a("s_add_u32 s44, s44, s45")
        a("s_lshl_b32 s45, s3, 14")
        a("s_add_u32 s44, s44, s45")
        a(f"buffer_load_dword v195, v192, s[40:43], s44 offen{NTT}")
        a("v_lshrrev_b32 v193, 2, v2")
        a("v_mul_u32_u24 v193, 6144, v193")
        a("v_and_b32 v16, 3, v2")
        a("v_lshl_add_u32 v193, v16, 7, v193")
        a("s_mul_i32 s45, s11, 98304")
        a("s_lshl_b32 s46, s3, 11")
        a("s_add_u32 s45, s45, s46")
        a("s_lshr_b32 s46, s10, 1")
        a("s_lshl_b32 s46, s46, 9")
        a("s_add_u32 s45, s45, s46")
        a("s_cmp_eq_u32 s3, 3")
        a(f"s_cselect_b32 s45, {16*MB}, s45")
        a(f"buffer_load_dword v195, v193, s[48:51], s45 offen{NTT}")
        a("s_add_u32 s44, s44, 1024")
        a(f"s_add_u32 s45, s45, {512*6144}")
    else:
        a("s_cmp_lg_u32 s3, 0")
        a("s_cbranch_scc1 K3_pfw")
        srd(a, 40, P_X, 4 * MB)
        a("v_lshrrev_b32 v192, 3, v2")
        a("v_lshlrev_b32 v192, 11, v192")
        a("v_and_b32 v16, 7, v2")
        a("v_lshl_add_u32 v192, v16, 7, v192")
        a("s_lshl_b32 s45, s2, 14")
        a("s_add_u32 s44, s45, 1024")
        a("s_branch K3_pfd")
        a.label("K3_pfw")
        srd(a, 40, P_W, 6 * MB)
        a("v_lshlrev_b32 v192, 7, v2")
        a("s_mul_i32 s45, s2, 12288")
        a("s_sub_u32 s44, s3, 1")
        a("s_lshl_b32 s44, s44, 12")
        a("s_add_u32 s45, s45, s44")
        a(f"s_add_u32 s44, s45, {3*MB}")
        a("s_cmp_eq_u32 s3, 3")
        a(f"s_cselect_b32 s45, {8*MB}, s45")
        a(f"s_cselect_b32 s44, {8*MB}, s44")
        a.label("K3_pfd")
        if "1" in XP:
            a(f"s_mov_b32 s45, {16*MB}")
            a(f"s_mov_b32 s44, {16*MB}")
        a(f"buffer_load_dword v195, v192, s[40:43], s45 offen{NTT}")
    srd(a, 56, P_DBG, 256)
    srd_off(a, 60, P_WS, WS_FLAG, 4096)
    a("s_memrealtime s[16:17]")
    a("v_mov_b32 v199, 0")
    a("s_waitcnt lgkmcnt(0)")
    a("s_or_b32 s16, s16, 1")
    a("v_mov_b32 v198, s16")
    a("s_cmp_lg_u32 s3, 3")
    a("s_cbranch_scc1 K3_noseed")
    a("s_cmp_lg_u32 s11, 0")
    a("s_cbranch_scc1 K3_noseed")
    a("v_mov_b32 v196, s16")
    a("v_mov_b32 v197, 0")
    a("s_mov_b64 exec, 1")
    a("buffer_atomic_cmpswap v[196:197], v199, s[56:59], 0 offen sc1")
    a("s_mov_b64 exec, -1")
    a.label("K3_noseed")
    if CODEPF:
        a("s_cmp_lg_u32 s3, 3")
        a("s_cbranch_scc1 K3_nocpf")
        a(f"s_cmp_ge_u32 s11, {CODEPF}")
        a("s_cbranch_scc1 K3_nocpf")
        a("s_getpc_b64 s[16:17]")
        a.label("K3_pc")
        a("s_sub_u32 s16, s16, K3_pc-K3_code_begin")
        a("s_subb_u32 s17, s17, 0")
        a("s_mov_b32 s18, K3_code_end-K3_code_begin")
        a("s_mov_b32 s19, 0x20000")
        a("v_lshlrev_b32 v16, 7, v2")
        for i in range(6):
            a(f"s_mov_b32 s20, {8192*i}")
            a("buffer_load_dword v195, v16, s[16:19], s20 offen")
        a.label("K3_nocpf")
    if TLBW:
        a("s_cmp_lg_u32 s3, 3")
        a("s_cbranch_scc1 K3_notlb")
        a(f"s_cmp_ge_u32 s11, {TLBW}")
        a("s_cbranch_scc1 K3_notlb")
        a("v_lshlrev_b32 v16, 16, v2")
        for p, nb, offs in ((P_K, 4, (0,)), (P_V, 4, (0,)), (P_H, 4, (0,)), (P_Q, 4, (0,)), (P_WO, 2, (0,)), (P_OUT, 8, (0, 4)), (P_WS, 20, (0, 8, 12, 16))):
            srd(a, 16, p, nb * MB)
            for o in offs:
                a(f"s_mov_b32 s20, {o*MB}")
                a("buffer_load_dword v195, v16, s[16:19], s20 offen nt")
        a.label("K3_notlb")
    a("s_lshl_b32 s46, s11, 7")
    a("s_lshl_b32 s47, s10, 2")
    a("s_add_u32 s47, s47, s46")
    if PREC:
        pre_compute = prepass(a, 3, P_K, P_V, P_SHK, " sc1", P_WS, NTO)
    if not L2PF:
        a("s_cmp_ge_u32 s3, 2")
        a(f"s_cselect_b32 s48, s{P_V}, s{P_K}")
        a(f"s_cselect_b32 s49, s{P_V+1}, s{P_K+1}")
        a(f"s_mov_b32 s50, {4*MB}")
        a("s_mov_b32 s51, 0x20000")
        a("v_lshrrev_b32 v193, 2, v2")
        a("v_lshlrev_b32 v193, 11, v193")
        a("v_and_b32 v16, 3, v2")
        a("v_lshl_add_u32 v193, v16, 7, v193")
        a("s_lshr_b32 s45, s2, 2")
        a("s_lshl_b32 s45, s45, 16")
        a("s_lshl_b32 s46, s36, 15")
        a("s_add_u32 s45, s45, s46")
        a("s_and_b32 s46, s2, 3")
        a("s_lshl_b32 s46, s46, 9")
        a("s_add_u32 s45, s45, s46")
        if "2" in XP:
            a(f"s_mov_b32 s45, {16*MB}")
    a("v_mov_b32 v200, v15")
    for part in range(4):
        if part < 3:
            a(f"s_cmp_lg_u32 s3, {part}")
            a(f"s_cbranch_scc1 K3_e3_{part+1}")
        k2_prefetch_setup(a, part, 194, 64, 68, P_H, P_Q, P_WO)
        if part < 3:
            a("s_branch K3_e3_done")
            a.label(f"K3_e3_{part+1}")
    a.label("K3_e3_done")
    a("v_mov_b32 v15, v200")
    a(f"s_and_b32 s55, s11, {NDUTY-1}")
    a(f"s_add_u32 s55, s55, {DUTY0}")
    a(f"s_and_b32 s52, s11, {E2_N-1}")
    a(f"s_add_u32 s52, s52, {E2_0}")
    a("s_sub_u32 s52, s52, s55")
    a("s_sub_u32 s52, s52, 1")
    a("s_mov_b32 s54, 0")
    a("s_lshr_b32 s70, s11, 2")
    a(f"s_and_b32 s70, s70, {E3_N-1}")
    a(f"s_add_u32 s70, s70, {E3_0 if '3' not in XP else 1000}")
    if E3W:
        a("s_cmp_lt_u32 s3, 2")
        a("s_cselect_b32 s70, 1000, s70")
    a("s_cmp_eq_u32 s3, 3")
    a(f"s_cselect_b32 s71, {F1N-NLEAD}, 1000")
    a("s_mov_b32 s53, 0")
    if PREC:
        pre_compute()
    if FILLC:
        srd_off(a, 16, P_WS, WS_OF, 4 * MB)
        srd_off(a, 20, P_WS, WS_KVP, 2 * MB)
        srd_off(a, 24, P_WS, WS_ZP, 64 * 1024)
        a("s_lshl_b32 s28, s12, 3")
        a("s_lshl_b32 s29, s4, 1")
        a("s_add_u32 s28, s28, s29")
        a("s_lshl_b32 s28, s28, 15")
        a("s_lshr_b32 s29, s15, 1")
        a("s_lshl_b32 s29, s29, 11")
        a("s_add_u32 s28, s28, s29")
        a("s_add_u32 s29, s28, 32768")
        a("s_lshl_b32 s30, s5, 4")
        a("s_add_u32 s30, s30, s12")
        a("s_lshl_b32 s31, s30, 7")
        a("s_lshl_b32 s30, s30, 12")
        a("s_lshl_b32 s32, s36, 10")
        a("s_add_u32 s30, s30, s32")
        for i in range(4):
            a(f"v_mov_b32 v{20+i}, 0")
        a("v_and_b32 v18, 7, v2")
        a("v_lshlrev_b32 v18, 4, v18")
        a("buffer_store_dwordx4 v[20:23], v3, s[16:19], s28 offen sc1")
        a("buffer_store_dwordx4 v[20:23], v3, s[16:19], s28 offen offset:1024 sc1")
        a("buffer_store_dwordx4 v[20:23], v3, s[16:19], s29 offen sc1")
        a("buffer_store_dwordx4 v[20:23], v3, s[16:19], s29 offen offset:1024 sc1")
        a("buffer_store_dwordx4 v[20:23], v3, s[20:23], s30 offen sc1")
        a("buffer_store_dwordx4 v[20:23], v18, s[24:27], s31 offen sc1")
    a("s_lshl_b32 s38, s36, 6")
    a("v_add_u32 v16, s38, v15")
    a("v_lshrrev_b32 v17, 1, v15")
    a("v_lshlrev_b32 v16, 7, v16")
    a("v_xor_b32 v17, v14, v17")
    a("v_lshl_add_u32 v4, v17, 4, v16")
    a("v_xor_b32 v5, 64, v4")
    a(f"v_add_u32 v6, {2*STAGE}, v4")
    a(f"v_add_u32 v7, {2*STAGE}, v5")
    a("v_bfe_u32 v17, v2, 2, 2")
    a("v_and_b32 v18, 3, v2")
    a("v_lshlrev_b32 v17, 6, v17")
    a("v_lshl_add_u32 v17, v18, 3, v17")
    a("v_and_b32 v18, 1, v14")
    a("v_lshl_add_u32 v17, v18, 10, v17")
    a("v_lshl_add_u32 v17, v18, 5, v17")
    a("v_lshrrev_b32 v18, 1, v14")
    a("v_mul_u32_u24 v18, 6144, v18")
    a("v_add_u32 v17, v17, v18")
    a("s_lshl_b32 s38, s37, 8")
    a("s_add_u32 s38, s38, 16384")
    a("v_add_u32 v8, s38, v17")
    a("v_xor_b32 v9, 32, v8")
    a(f"v_add_u32 v10, {2*STAGE}, v8")
    a(f"v_add_u32 v11, {2*STAGE}, v9")
    SB = [16, 56]

    def accr(kind, mt, dt):
        return 96 + 32 * kind + (mt * 2 + dt) * 4

    for i in range(96, 192):
        a(f"v_mov_b32 v{i}, 0")
    for op in spf[:SPF_C]:
        a(op)
    a("s_waitcnt lgkmcnt(0)")
    srd_off(a, 28, P_WS, WS_KVP, 2 * MB)
    srd_off(a, 32, P_WS, WS_ZP, 64 * 1024)
    lg = Cnt(a, "lgkmcnt", 15)

    def reads(slot, t, st):
        sb = (slot & 1) * STAGE
        va = 4 + t + (2 if slot >= 2 else 0)
        vb = 10 if slot >= 2 else 8
        R = SB[st]

        def A(mt):
            return [(("A", mt, st), f"ds_read_b128 {vr(R+4*mt)}, v{va} offset:{sb + 2048*mt}")]

        def B(cb):
            seg, nh = cb // 2, cb % 2
            return [(("B", cb, st), f"ds_read_b64_tr_b16 {vr(R+16+4*cb+2*h,2)}, v{vb+nh} offset:{sb + t*12288 + seg*2048 + 512*h}") for h in range(2)]
        return A(0) + B(0) + A(1) + A(2) + A(3) + B(1) + B(2) + B(3) + B(4) + B(5)

    def group(st, nxt):
        R = SB[st]
        nxt = list(nxt)
        for cb in range(6):
            kind, dt = cb // 2, cb % 2
            for mt in range(4):
                lg.wait_for([("A", mt, st), ("B", cb, st)])
                fa, fb = R + 4 * mt, R + 16 + 4 * cb
                if kind == 0:
                    mfma16(a, accr(0, mt, dt), fb, fa)
                else:
                    mfma16(a, accr(kind, mt, dt), fa, fb)
                if nxt:
                    tag, txt = nxt.pop(0)
                    a(txt)
                    lg.issue(tag)

    a("s_barrier")
    stamp(a, 1)
    cstamp(a, 10)
    for tag, txt in reads(0, 0, 0):
        a(txt)
        lg.issue(tag)
    lg.drain()
    a("s_mov_b32 s39, 4")
    a.label("K3_loop")
    for slot in range(4):
        group(0, reads(slot, 1, 1))
        lg.drain()
        a("s_barrier")
        a("s_sub_u32 s55, s55, 1")
        a(f"s_cbranch_scc1 K3_event{slot}")
        a.label(f"K3_noev{slot}")
        a("s_sub_u32 s70, s70, 1")
        a(f"s_cbranch_scc1 K3_evB{slot}")
        a.label(f"K3_noevB{slot}")
        a("s_sub_u32 s71, s71, 1")
        a(f"s_cbranch_scc1 K3_evC{slot}")
        a.label(f"K3_noevC{slot}")
        group(1, reads((slot + 1) % 4, 0, 0))
        if slot == 3:
            a("s_sub_u32 s39, s39, 1")
            a("s_cmp_lg_u32 s39, 0")
            lg.drain()
    a("s_cbranch_scc1 K3_loop")
    stamp(a, 2)
    cstamp(a, 11)

    a(f"s_mov_b32 s44, {LOG2E}")
    a(f"s_mov_b32 s45, {LOG2E}")
    a(f"s_mov_b32 s46, {EPS}")
    a(f"s_mov_b32 s47, {EPS}")
    a(f"v_mov_b32 v10, {SYNC}")
    a("v_mov_b32 v11, 1")
    for et in range(2):
        for m in range(2):
            d = 16 + 4 * (2 * et + m)
            for hh in range(2):
                s = accr(2, 2 * m + hh, et)
                a(f"v_cvt_pk_bf16_f32 v{d+2*hh}, v{s}, v{s+1}")
                a(f"v_cvt_pk_bf16_f32 v{d+2*hh+1}, v{s+2}, v{s+3}")
    for i in range(4):
        a(f"v_mov_b32 v{48+i}, 0x3f803f80")
    KV, ZZ, T = 160, 176, 52
    for m in range(2):
        for dt in range(2):
            for hh in range(2):
                s = accr(1, 2 * m + hh, dt)
                a(f"v_cvt_pk_bf16_f32 v{T+2*hh}, v{s}, v{s+1}")
                a(f"v_cvt_pk_bf16_f32 v{T+2*hh+1}, v{s+2}, v{s+3}")
            unpack4(a, T, T)
            kf = 32 + 4 * (2 * dt + m)
            phi8(a, T, kf, 44, 46)
            for et in range(2):
                mfma16(a, KV + 4 * (2 * et + dt), kf, 16 + 4 * (2 * et + m), "0" if m == 0 else None)
            mfma16(a, ZZ + 4 * dt, kf, 48, "0" if m == 0 else None)
    a("s_lshl_b32 s43, s37, 12")
    a(f"s_add_u32 s43, s43, {XCH}")
    a("v_add_u32 v4, s43, v3")
    a("s_lshl_b32 s43, s37, 7")
    a(f"s_add_u32 s43, s43, {XCZ}")
    a("v_lshlrev_b32 v5, 5, v14")
    a("v_add_u32 v5, s43, v5")
    a("s_lshl_b32 s43, s37, 2")
    a("v_add_u32 v6, s43, v10")
    a("s_cmp_eq_u32 s36, 0")
    a("s_cbranch_scc1 K3_wr0")
    for qd in range(4):
        a(f"ds_write_b128 v4, {vr(KV+4*qd)} offset:{1024*qd}")
    for dt in range(2):
        a(f"ds_write_b128 v5, {vr(ZZ+4*dt)} offset:{16*dt}")
    a("s_waitcnt lgkmcnt(0)")
    lds_signal(a, 6, S_X, 11)
    a("s_branch K3_q")
    a.label("K3_wr0")
    a("s_lshl_b32 s48, s5, 4")
    a("s_add_u32 s48, s48, s12")
    a("s_lshl_b32 s49, s48, 12")
    a("s_lshl_b32 s50, s48, 7")
    a("v_lshlrev_b32 v7, 4, v14")
    lds_wait(a, "K3_wx", 6, S_X, 1, 8, 42)
    for qd in range(4):
        a(f"ds_read_b128 {vr(16+4*qd)}, v4 offset:{1024*qd}")
    for dt in range(2):
        a(f"ds_read_b128 {vr(32+4*dt)}, v5 offset:{16*dt}")
    for qd in range(6):
        a(f"s_waitcnt lgkmcnt({5-qd})")
        a(f"v_pk_add_f32 {vr(KV+4*qd,2)}, {vr(KV+4*qd,2)}, {vr(16+4*qd,2)}")
        a(f"v_pk_add_f32 {vr(KV+4*qd+2,2)}, {vr(KV+4*qd+2,2)}, {vr(16+4*qd+2,2)}")
        if BP and qd < 4:
            d = 40 + 2 * qd
            a(f"v_cvt_pk_bf16_f32 v{d}, v{KV+4*qd}, v{KV+4*qd+1}")
            a(f"v_cvt_pk_bf16_f32 v{d+1}, v{KV+4*qd+2}, v{KV+4*qd+3}")
            a(f"v_or_b32 v{d}, 1, v{d}")
            a(f"v_or_b32 v{d+1}, 1, v{d+1}")
            if qd & 1:
                a(f"buffer_store_dwordx4 {vr(d-2)}, v3, s[28:31], s49 offen offset:{1024*(qd//2)} sc1")
            continue
        for i in range(4):
            a(f"v_or_b32 v{KV+4*qd+i}, 1, v{KV+4*qd+i}")
        if qd < 4:
            a(f"buffer_store_dwordx4 {vr(KV+4*qd)}, v3, s[28:31], s49 offen offset:{1024*qd} sc1")
    a("s_mov_b32 exec_lo, 0x00010001")
    a("s_mov_b32 exec_hi, 0x00010001")
    for dt in range(2):
        a(f"buffer_store_dwordx4 {vr(ZZ+4*dt)}, v7, s[32:35], s50 offen offset:{64*dt} sc1")
    a("s_mov_b64 exec, -1")
    lds_signal(a, 10, S_KVS, 11)
    a.label("K3_q")
    stamp(a, 3)
    a("s_lshl_b32 s43, s3, 12")
    a(f"s_add_u32 s43, s43, {PQ_BASE}")
    a("v_add_u32 v4, s43, v3")
    for mt in range(4):
        d = 80 + 4 * mt
        for dt in range(2):
            sr = accr(0, mt, dt)
            a(f"v_cvt_pk_bf16_f32 v{T+2*dt}, v{sr}, v{sr+1}")
            a(f"v_cvt_pk_bf16_f32 v{T+2*dt+1}, v{sr+2}, v{sr+3}")
        unpack4(a, T, T)
        phi8(a, T, d, 44, 46)
        a(f"ds_write_b128 v4, {vr(d)} offset:{1024*mt}")
    a("s_lshl_b32 s43, s3, 2")
    a("v_add_u32 v9, s43, v10")
    if CV32:
        a("v_and_b32 v6, 3, v2")
        a("v_bfe_u32 v7, v2, 2, 2")
        a("v_bfe_u32 v4, v2, 4, 1")
        a("v_lshrrev_b32 v5, 5, v2")
        a("v_lshlrev_b32 v12, 5, v4")
        a("v_lshl_add_u32 v12, v6, 3, v12")
        a("v_lshl_add_u32 v12, v5, 6, v12")
        a("v_lshlrev_b32 v7, 3, v7")
        a("v_sub_u32 v12, v12, v7")
        a("s_add_u32 s43, s7, 32")
        a("v_add_u32 v12, s43, v12")
        a("v_lshlrev_b32 v13, 8, v4")
        a("v_lshl_add_u32 v13, v6, 6, v13")
        a("v_add_u32 v13, v13, v7")
        a("v_lshlrev_b32 v5, 6, v5")
        a("v_sub_u32 v13, v13, v5")
        a(f"s_add_u32 s43, s7, {CV_UB-384}")
        a("v_add_u32 v13, s43, v13")
    else:
        a("v_and_b32 v6, 3, v2")
        a("v_bfe_u32 v7, v2, 2, 2")
        a("v_add_u32 v12, v6, v7")
        a("v_lshlrev_b32 v12, 3, v12")
        a("v_lshl_add_u32 v12, v14, 6, v12")
        a(f"s_add_u32 s43, s7, {CV_HB-24}")
        a("v_add_u32 v12, s43, v12")
        a("v_lshlrev_b32 v13, 5, v6")
        a("v_lshlrev_b32 v7, 3, v7")
        a("v_sub_u32 v13, v13, v7")
        a("v_lshlrev_b32 v7, 6, v14")
        a("v_sub_u32 v13, v13, v7")
        a(f"s_add_u32 s43, s7, {CV_UB+24-32}")
        a("v_add_u32 v13, s43, v13")
    a(f"s_add_u32 s43, s7, {CV_UB}")
    a("v_add_u32 v8, s43, v3")
    a("s_waitcnt lgkmcnt(0)")
    lds_signal(a, 9, S_PQ, 11)
    stamp(a, 4)
    lds_wait(a, "K3_whu", 9, S_HU, 1, 16, 42)
    stamp(a, 5)

    HH, FU = 32, 96
    ACC = [16, 20, 24, 28]
    T2, T1, YV, PK = [224, 225], [226, 227], [228, 229], [232, 236, 240, 244]
    lg.q = []

    def fu_reads(s):
        for hf in range(2):
            a(f"ds_read_b64_tr_b16 {vr(FU+4*s+2*hf,2)}, v13 offset:{128*s + 32*(1-hf)}")
            lg.issue(("fu", s))

    def h_reads(t):
        for hf in range(2):
            a(f"ds_read_b64_tr_b16 {vr(HH+4*t+2*hf,2)}, v12 offset:{256*t + 32*hf}")
            lg.issue(("h", t))

    def epi(Q):
        ops = []
        R0 = ACC[Q % 4]
        R1, R2, R3 = R0 + 1, R0 + 2, R0 + 3
        cur, prv = Q & 1, (Q & 1) ^ 1
        if Q == 0:
            ops.append(f"v_add_f32_dpp v{T2[cur]}, v{R3}, v{R2} wave_shr:1 {DPP} bound_ctrl:0")
            ops.append(f"v_add_f32_dpp v{T1[cur]}, v{T2[cur]}, v{R1} wave_shr:1 {DPP} bound_ctrl:0")
            ops.append(f"v_add_f32_dpp v{YV[cur]}, v{T1[cur]}, v{R0} wave_shr:1 {DPP} bound_ctrl:0")
        else:
            r3p = ACC[(Q - 1) % 4] + 3
            ops.append(f"v_add_f32_dpp v{T2[cur]}, v{r3p}, v{R2} wave_ror:1 {DPP}")
            ops.append(f"v_add_f32_dpp v{T1[cur]}, v{T2[prv]}, v{R1} wave_ror:1 {DPP}")
            ops.append(f"v_add_f32_dpp v{YV[cur]}, v{T1[prv]}, v{R0} wave_ror:1 {DPP}")
            ops.append(f"v_add_f32_dpp v{T2[cur]}, v{R3}, v{R2} wave_shr:1 {DPP}")
            ops.append(f"v_add_f32_dpp v{T1[cur]}, v{T2[cur]}, v{R1} wave_shr:1 {DPP}")
            ops.append(f"v_add_f32_dpp v{YV[cur]}, v{T1[cur]}, v{R0} wave_shr:1 {DPP}")
        if Q & 1:
            p = PK[Q // 8] + (Q % 8) // 2
            ops.append(f"v_cvt_pk_bf16_f32 v{p}, v{YV[0]}, v{YV[1]}")
            ops.append(f"v_or_b32 v{p}, 1, v{p}")
        return ops

    if CV32:
        conv32(a, lg, PK)
    else:
        PRE = 3
        for c in range(PRE):
            fu_reads(c)
            if c % 2 == 0:
                h_reads(c // 2)
        pending = []
        for c in range(32):
            nst = c // 2 + 1
            for t in range(nst):
                s = c - 2 * t
                lg.wait_for([("fu", s), ("h", t)])
                mfma16(a, ACC[c % 4], FU + 4 * s, HH + 4 * t, "0" if t == 0 else None)
                if t == 0 and c + PRE < 32:
                    fu_reads(c + PRE)
                    if (c + PRE) % 2 == 0:
                        h_reads((c + PRE) // 2)
                if t == 0 and c >= 2:
                    assert not pending
                    pending = epi(c - 2)
                k = max(1, -(-len(pending) // (nst - t))) if pending else 0
                for _ in range(k):
                    a(pending.pop(0))
        for Q in (30, 31):
            for op in epi(Q):
                a(op)
    srd_off(a, 28, P_WS, WS_UT, 4 * MB)
    a("s_lshl_b32 s40, s6, 12")
    for g in range(4):
        a(f"buffer_store_dwordx4 {vr(PK[g])}, v3, s[28:31], s40 offen offset:{1024*g} sc1")
    a("s_and_b32 s40, s10, 3")
    a("s_lshl_b32 s40, s40, 2")
    a("s_and_b32 s41, s11, 3")
    a("s_add_u32 s40, s40, s41")
    a("s_lshl_b32 s41, s40, 3")
    a("s_lshl_b32 s42, s3, 1")
    a("s_add_u32 s41, s41, s42")
    a("s_lshl_b32 s48, s41, 15")
    a("s_mov_b32 s47, s48")
    a("v_lshrrev_b32 v5, 5, v2")
    a("v_and_b32 v6, 1, v14")
    a("v_lshlrev_b32 v12, 15, v6")
    a("v_lshl_add_u32 v12, v5, 8, v12")
    a("v_lshl_add_u32 v12, v15, 4, v12")
    srd_off(a, 28, P_WS, WS_OF, 4 * MB)
    srd(a, 32, P_OUT, 8 * MB)
    a("s_waitcnt lgkmcnt(0)")
    lds_signal(a, 9, S_CD, 11)
    stamp(a, 6)
    if CPOST:
        a("s_lshl_b32 s16, s10, 1")
        a("s_lshr_b32 s17, s11, 4")
        a("s_add_u32 s16, s16, s17")
        a("s_and_b32 s17, s11, 15")
        a("s_lshl_b32 s17, s17, 2")
        a("s_add_u32 s17, s17, s4")
        a("s_lshr_b32 s18, s17, 4")
        a("s_and_b32 s17, s17, 15")
        a("s_lshl_b32 s19, s18, 9")
        a("s_lshl_b32 s64, s17, 2")
        a("s_add_u32 s19, s19, s64")
        a("s_lshl_b32 s64, s19, 11")
        a("s_lshl_b32 s65, s16, 7")
        a("s_add_u32 s64, s64, s65")
        a("s_lshl_b32 s72, s19, 12")
        a("s_add_u32 s72, s72, s65")
        a("s_lshl_b32 s73, s16, 18")
        a("s_lshl_b32 s65, s18, 10")
        a("s_add_u32 s73, s73, s65")
        a("s_lshl_b32 s65, s17, 6")
        a("s_add_u32 s73, s73, s65")
        a("s_add_u32 s65, s73, 4096")
        a("s_add_u32 s66, s73, 8192")
        a("s_add_u32 s67, s73, 12288")
        a("v_lshlrev_b32 v224, 12, v14")
        a("v_lshl_add_u32 v224, v15, 3, v224")
        a("v_lshlrev_b32 v225, 14, v15")
        a("v_lshl_add_u32 v225, v14, 4, v225")
        a("v_lshlrev_b32 v4, 11, v14")
        a("v_lshl_add_u32 v4, v15, 3, v4")
        srd(a, 16, P_Q, 4 * MB)
        srd_off(a, 20, P_WS, WS_UT, 4 * MB)
        for jj in range(8):
            a(f"buffer_load_dwordx2 {vr(208+2*jj,2)}, v4, s[16:19], s64 offen")
            a(f"s_add_u32 s64, s64, {64*2048}")
        a("s_waitcnt vmcnt(0)")
        a(f"s_mov_b32 s43, {RETRY_MAX}")
        a.label("K3_cp")
        for ci, sr in enumerate((73, 65, 66, 67)):
            a(f"buffer_load_dwordx4 {vr(16+4*ci)}, v225, s[20:23], s{sr} offen sc1")
        a(f"ds_read_b32 v49, v10 offset:{S_WOM}")
        a("s_waitcnt vmcnt(0) lgkmcnt(0)")
        and_reduce(a, 48, range(16, 32))
        a("v_readfirstlane_b32 s42, v49")
        a("v_cmp_eq_u32 vcc, 0, v48")
        a("s_cmp_eq_u64 vcc, 0")
        a("s_cbranch_scc1 K3_cp_ok")
        a("s_cmp_ge_u32 s42, 4")
        a("s_cbranch_scc1 K3_cp_skip")
        a("s_sub_u32 s43, s43, 1")
        a("s_cbranch_scc1 K3_cp_skip")
        a("s_sleep 6")
        a("s_branch K3_cp")
        a.label("K3_cp_ok")
        lds_signal(a, 9, S_PD, 11)
        post_compute(a, 208, True)
        a.label("K3_cp_skip")
    lds_wait(a, "K3_wwo", 10, S_WOM, 4, 80, 42)
    if CPOST:
        lds_signal(a, 9, S_G2, 11)
    stamp(a, 7)
    cstamp(a, 12)
    vm = Cnt(a, "vmcnt", 63)
    AR = 96
    D = ADEPTH
    if "a" in XP:
        srd(a, 28, P_X, 4 * MB)
        a("s_lshl_b32 s48, s12, 18")
        a("s_lshl_b32 s47, s3, 16")
        a("s_add_u32 s48, s48, s47")

    def aload(h):
        for f in range(2):
            r = AR + 8 * (h % D) + 4 * f
            a(f"buffer_load_dwordx4 {vr(r)}, v12, s[28:31], s48 offen offset:{1024*(h%4)+512*f}{ASC}")
            vm.issue(("A", h))
        if h % 4 == 3:
            a("s_add_u32 s48, s48, 4096")

    if G2PRIO:
        a(f"s_setprio {G2PRIO}")
    for h in range(AINIT):
        aload(h)
    anext = [AINIT]
    a("v_bfe_u32 v4, v2, 2, 2")
    a("v_and_b32 v7, 3, v2")
    a("v_lshlrev_b32 v4, 6, v4")
    a("v_lshl_add_u32 v4, v7, 3, v4")
    a("v_lshl_add_u32 v4, v5, 9, v4")
    a("v_xor_b32 v7, v6, v5")
    a("v_lshl_add_u32 v13, v7, 5, v4")
    a(f"v_add_u32 v4, {WO_BASE}, v13")
    a(f"v_add_u32 v8, {WO_BASE + 65536}, v13")

    def check_ops(g):
        r = AR + 8 * ((4 * g) % D)
        ops = [f"v_bitop3_b32 v81, v{r}, v{r+1}, v{r+2} bitop3:0x80"]
        for i in range(3, 31, 2):
            ops.append(f"v_bitop3_b32 v81, v81, v{r+i}, v{r+i+1} bitop3:0x80")
        ops.append(f"v_bitop3_b32 v81, v81, v{r+31}, 1 bitop3:0x80")
        return ops

    def check_branch(g):
        if "a" in XP:
            a.label(f"K3_retry{g}_ret")
            return
        a("v_cmp_eq_u32 vcc, 0, v81")
        a("s_cmp_lg_u64 vcc, 0")
        a(f"s_cbranch_scc1 K3_retry{g}")
        a.label(f"K3_retry{g}_ret")

    def retry_block(g):
        a.label(f"K3_retry{g}")
        a(f"s_mov_b32 s46, {RETRY_MAX}")
        a(f"s_add_u32 s44, s47, {4096*g}")
        a.label(f"K3_retry{g}_l")
        a("s_add_u32 s75, s75, 1")
        a("s_sleep 4")
        for hh in range(4):
            for f in range(2):
                r = AR + 8 * ((4 * g + hh) % D) + 4 * f
                a(f"buffer_load_dwordx4 {vr(r)}, v12, s[28:31], s44 offen offset:{1024*hh+512*f} sc1")
        a("s_waitcnt vmcnt(0)")
        for op in check_ops(g):
            a(op)
        a("v_cmp_eq_u32 vcc, 0, v81")
        a("s_sub_u32 s46, s46, 1")
        a(f"s_cbranch_scc1 K3_retry{g}_ret")
        a("s_cmp_lg_u64 vcc, 0")
        a(f"s_cbranch_scc1 K3_retry{g}_l")
        a(f"s_branch K3_retry{g}_ret")

    lg.q = []
    BS = [48, 64]

    def breads(h):
        out = []
        st = h & 1
        if h < 16:
            vb, off = 4, h * 4096
        elif h < 28:
            vb, off = 8, (h - 16) * 4096
        else:
            vb, off = 13, (h - 28) * CV_REG
        for f in range(2):
            for nb in range(2):
                for hf in range(2):
                    out.append(((h, f, nb), f"ds_read_b64_tr_b16 {vr(BS[st]+8*f+4*nb+2*hf,2)}, v{vb} offset:{off + f*1024 + hf*2048 + nb*256}"))
        return out

    for tag, txt in breads(0):
        a(txt); lg.issue(tag)
    vm.wait_for([("A", 3)])
    for op in check_ops(0):
        a(op)
    check_branch(0)
    chk = []
    for h in range(32):
        nxt = []
        if h == GS and not CPOST:
            lds_signal(a, 9, S_G2, 11)
            lg.issue("sig")
        if h + 1 < 32:
            if h + 1 == 28:
                lg.drain()
                lds_wait(a, "K3_wwt", 10, S_WOT, 4, 80, 42)
            nxt = breads(h + 1)
        if h % 4 == 2 and h + 2 < 32:
            vm.wait_for([("A", h + 5)])
            chk = check_ops(h // 4 + 1) if "k" not in XP else []
        for f in range(2):
            for nb in range(2):
                lg.wait_for([(h, f, nb)])
                d = 16 + 16 * nb
                cs = "0" if (h == 0 and f == 0) else vr(d, 16)
                a(f"v_mfma_f32_32x32x16_bf16 {vr(d,16)}, {vr(BS[h&1]+8*f+4*nb)}, {vr(AR+8*(h%D)+4*f)}, {cs}")
                for _ in range(2):
                    if nxt:
                        tag, txt = nxt.pop(0)
                        a(txt); lg.issue(tag)
                    if chk:
                        a(chk.pop(0))
        if h % 4 == 3 and h + 1 < 32:
            assert not chk
            check_branch(h // 4 + 1)
        for _ in range(2):
            if anext[0] < 32 and anext[0] <= h + D and "n" not in XP:
                aload(anext[0]); anext[0] += 1
    stamp(a, 8)
    cstamp(a, 13)
    a("v_and_b32 v4, 31, v2")
    a("v_lshlrev_b32 v4, 12, v4")
    a("v_lshl_add_u32 v4, v5, 4, v4")
    a("s_lshr_b32 s36, s10, 2")
    a("s_lshl_b32 s36, s36, 3")
    a("s_lshr_b32 s37, s11, 2")
    a("s_add_u32 s36, s36, s37")
    a("s_lshl_b32 s38, s41, 16")
    a("s_lshl_b32 s39, s36, 7")
    a("s_add_u32 s38, s38, s39")
    a("s_add_u32 s38, s38, 2048")
    for nb in range(2):
        for kp in range(2):
            P = 80 + 8 * nb + 4 * kp
            t0 = 16 + 16 * nb + 8 * kp
            for i in range(4):
                a(f"v_cvt_pk_bf16_f32 v{P+i}, v{t0+2*i}, v{t0+2*i+1}")
            a(f"v_permlane32_swap_b32 v{P}, v{P+2}")
            a(f"v_permlane32_swap_b32 v{P+1}, v{P+3}")
            a(f"buffer_store_dwordx4 {vr(P)}, v4, s[32:35], s38 offen offset:{64*nb+32*kp}{NTS}")
    stamp_flush(a, 9)
    a("s_endpgm")
    for g in range(8):
        retry_block(g)
    for slot in range(4):
        a.label(f"K3_event{slot}")
        a("s_add_u32 s54, s54, 1")
        a("s_cmp_lg_u32 s54, 1")
        a(f"s_cbranch_scc1 K3_ev2_{slot}")
        a(f"buffer_load_dword v195, v192, s[40:43], s44 offen{NTT}")
        if L2PF:
            a(f"buffer_load_dword v195, v193, s[48:51], s45 offen{NTT}")
            a("s_mov_b32 s55, 1000")
        else:
            a("s_mov_b32 s55, s52")
        a(f"s_branch K3_noev{slot}")
        a.label(f"K3_ev2_{slot}")
        if PREC or FILLC:
            a("s_waitcnt vmcnt(0)")
        a(f"buffer_load_dword v195, v193, s[48:51], s45 offen{NTT}")
        a("s_mov_b32 s55, 1000")
        a(f"s_branch K3_noev{slot}")
        a.label(f"K3_evB{slot}")
        a(f"buffer_load_dword v195, v194, s[64:67], s68 offen{NTT}")
        a(f"buffer_load_dword v195, v194, s[64:67], s69 offen{NTT}")
        a(f"s_branch K3_noevB{slot}")
        a.label(f"K3_evC{slot}")
        a("s_add_u32 s53, s53, 1")
        a("s_cmp_lg_u32 s53, 1")
        a(f"s_cbranch_scc1 K3_ev4_{slot}")
        a("buffer_load_dword v196, v199, s[56:59], 0 offen sc1")
        a(f"s_mov_b32 s71, {NLEAD-1}")
        a(f"s_branch K3_noevC{slot}")
        a.label(f"K3_ev4_{slot}")
        a("s_cmp_lg_u32 s53, 2")
        a(f"s_cbranch_scc1 K3_ev6_{slot}")
        a("s_waitcnt vmcnt(0)")
        a("v_readfirstlane_b32 s46, v196")
        a("s_mov_b64 exec, 1")
        a("s_cmp_lg_u32 s46, 0")
        a(f"s_cbranch_scc1 K3_ev5_{slot}")
        a("v_mov_b32 v196, v198")
        a("v_mov_b32 v197, 0")
        a("buffer_atomic_cmpswap v[196:197], v199, s[56:59], 0 offen sc0 sc1")
        a("s_waitcnt vmcnt(0)")
        a("v_cmp_eq_u32 vcc, 0, v196")
        a("v_cndmask_b32 v196, v196, v198, vcc")
        a.label(f"K3_ev5_{slot}")
        a("buffer_store_dword v196, v199, s[60:63], s47 offen sc1")
        a("s_mov_b64 exec, -1")
        a(f"s_mov_b32 s71, {FLAGN-F1N-1 if not POSTPRE else 1000}")
        a(f"s_branch K3_noevC{slot}")
        a.label(f"K3_ev6_{slot}")
        a("s_mov_b64 exec, 1")
        a("buffer_store_dword v196, v199, s[60:63], s47 offen offset:32 sc1")
        a("s_mov_b64 exec, -1")
        a("s_mov_b32 s71, 1000")
        a(f"s_branch K3_noevC{slot}")

    a.label("K3_L")
    a("v_lshrrev_b32 v4, 3, v2")
    a("v_and_b32 v5, 7, v2")
    for jl in range(4):
        a(f"v_add_u32 v6, {4*(jl&1)}, v14")
        a("v_xor_b32 v6, v6, v5")
        a("v_lshlrev_b32 v6, 4, v6")
        a("v_lshl_add_u32 v6, v4, 11, v6")
        a(f"v_add_u32 v{240+jl}, {jl*(16384-1024)}, v6")
    a("v_lshrrev_b32 v6, 5, v2")
    a("v_bfe_u32 v7, v2, 2, 2")
    a("v_lshl_add_u32 v6, v6, 2, v7")
    a("v_mul_u32_u24 v6, 6144, v6")
    a("v_bfe_u32 v7, v2, 4, 1")
    a("v_lshl_add_u32 v6, v7, 6, v6")
    a("v_and_b32 v7, 3, v2")
    a("v_lshl_add_u32 v6, v7, 4, v6")
    a("v_xor_b32 v7, 32, v6")
    a("s_and_b32 s40, s13, 1")
    a("s_lshl_b32 s40, s40, 7")
    a(f"s_xor_b32 s41, s40, {128 if QX else 0}")
    binst = []
    for seg in range(3):
        for gg in range(2):
            ldsoff = seg * 2048 + gg * 1024
            m0sel, ioff = ldsoff // 4096, ldsoff % 4096
            reg = 244 + seg * 2 + gg
            a(f"v_add_u32 v{reg}, {8*gg*6144 + seg*2048 - ioff}, v{6+gg}")
            a(f"v_add_u32 v{reg}, s{41 if seg == 0 else 40}, v{reg}")
            binst.append((reg, m0sel, ioff))
    a("s_lshl_b32 s38, s12, 7")
    a("s_lshl_b32 s40, s4, 5")
    a("s_add_u32 s38, s38, s40")
    a("s_lshl_b32 s38, s38, 11")
    a("s_mul_i32 s39, s4, 98304")
    a("s_lshr_b32 s40, s13, 1")
    a("s_lshl_b32 s40, s40, 8")
    a("s_add_u32 s39, s39, s40")
    a("s_lshl_b32 s41, s4, 12")
    a("s_mul_i32 s42, s4, 6144")
    a("s_add_u32 s42, s42, 16384")
    srd(a, 16, P_X, 4 * MB)
    srd(a, 20, P_W, 6 * MB)
    vm = Cnt(a, "vmcnt", 63)

    def issue(kt):
        sb = (kt % NS) * STAGE
        a(f"s_add_u32 m0, s41, {sb}")
        for jl in range(4):
            a(f"buffer_load_dwordx4 v{240+jl}, s[16:19], s38 offen offset:{jl*1024}{NTG} lds")
            vm.issue(("st", kt))
        cur = -1
        for reg, m0sel, ioff in binst:
            if m0sel != cur:
                a(f"s_add_u32 m0, s42, {sb + 4096*m0sel}")
                cur = m0sel
            a(f"buffer_load_dwordx4 v{reg}, s[20:23], s39 offen offset:{ioff}{NTG} lds")
            vm.issue(("st", kt))
        a("s_add_u32 s38, s38, 128")
        a(f"s_add_u32 s39, s39, {64*6144}")

    for kt in range(NS - 1):
        issue(kt)
    srd(a, 24, P_K, 4 * MB)
    srd(a, 28, P_V, 4 * MB)
    srd(a, 32, P_SHK, 8192)
    srd_off(a, 44, P_WS, WS_UT, 4 * MB)
    srd_off(a, 48, P_WS, WS_OF, 4 * MB)
    srd_off(a, 52, P_WS, WS_KVP, 2 * MB)
    srd_off(a, 56, P_WS, WS_ZP, 64 * 1024)
    a("s_lshl_b32 s60, s2, 2")
    a("s_add_u32 s60, s60, s4")
    a("s_and_b32 s61, s60, 15")
    a("s_lshr_b32 s60, s60, 4")
    a("s_lshl_b32 s62, s60, 16")
    a("s_lshl_b32 s63, s61, 7")
    a("s_add_u32 s62, s62, s63")
    a("v_lshlrev_b32 v21, 14, v14")
    a("v_lshl_add_u32 v21, v15, 3, v21")
    a("v_add_u32 v21, s62, v21")
    a("s_lshl_b32 s63, s61, 9")
    a("v_lshlrev_b32 v22, 5, v15")
    a("s_lshl_b32 s62, s61, 18")
    a("s_lshl_b32 s64, s60, 6")
    a("s_add_u32 s62, s62, s64")
    a("v_lshlrev_b32 v19, 14, v15")
    a("v_lshl_add_u32 v19, v14, 4, v19")
    a("s_lshl_b32 s64, s12, 3")
    a("s_lshl_b32 s65, s4, 1")
    a("s_add_u32 s64, s64, s65")
    a("s_lshl_b32 s64, s64, 15")
    a("s_lshr_b32 s65, s15, 1")
    a("s_lshl_b32 s65, s65, 11")
    a("s_add_u32 s64, s64, s65")
    a("s_add_u32 s65, s64, 32768")
    a("s_lshl_b32 s66, s5, 4")
    a("s_add_u32 s66, s66, s12")
    a("s_lshl_b32 s67, s66, 7")
    a("s_lshl_b32 s66, s66, 12")
    a(f"s_lshl_b32 s68, s36, {10 if BP else 11}")
    a("s_add_u32 s66, s66, s68")
    for i in range(4):
        a(f"v_mov_b32 v{160+i}, 0")
    a("v_and_b32 v18, 7, v2")
    a("v_lshlrev_b32 v18, 4, v18")
    fills = [
        f"buffer_store_dwordx4 v[160:163], v3, s[48:51], s64 offen sc1{NTF}",
        f"buffer_store_dwordx4 v[160:163], v3, s[48:51], s64 offen offset:1024 sc1{NTF}",
        f"buffer_store_dwordx4 v[160:163], v3, s[48:51], s65 offen sc1{NTF}",
        f"buffer_store_dwordx4 v[160:163], v3, s[48:51], s65 offen offset:1024 sc1{NTF}",
        f"buffer_store_dwordx4 v[160:163], v3, s[52:55], s66 offen sc1{NTF}",
        f"buffer_store_dwordx4 v[160:163], v3, s[52:55], s66 offen offset:1024 sc1{NTF}",
        f"buffer_store_dwordx4 v[160:163], v18, s[56:59], s67 offen sc1{NTF}",
    ]
    if BP:
        del fills[5]
    W, KF, VF, KS = 72, 88, 110, 126
    loads = []
    for i in range(2):
        loads.append([f"buffer_load_dwordx4 {vr(24+4*i)}, v22, s[32:35], s63 offen offset:{16*i}"])
    for i in range(11):
        loads.append([f"v_add_u32 v23, {((i-3)*2048) & 0xffffffff}, v21", f"buffer_load_dwordx2 {vr(32+2*i,2)}, v23, s[24:27], 0 offen{NTO}"])
    for i in range(8):
        loads.append([f"v_add_u32 v23, {i*2048}, v21", f"buffer_load_dwordx2 {vr(54+2*i,2)}, v23, s[28:31], 0 offen{NTO}"])
    comp = []
    for ci in range(4):
        comp += [f"v_lshlrev_b32 v{W+ci}, 16, v{24+2*ci}", f"v_and_b32 v{W+4+ci}, 0xffff0000, v{24+2*ci}",
                 f"v_lshlrev_b32 v{W+8+ci}, 16, v{25+2*ci}", f"v_and_b32 v{W+12+ci}, 0xffff0000, v{25+2*ci}"]
    for cp in range(2):
        for i in range(11):
            comp += [f"v_lshlrev_b32 v{KF+2*i}, 16, v{32+2*i+cp}", f"v_and_b32 v{KF+2*i+1}, 0xffff0000, v{32+2*i+cp}"]
        for i in range(8):
            comp += [f"v_lshlrev_b32 v{VF+2*i}, 16, v{54+2*i+cp}", f"v_and_b32 v{VF+2*i+1}, 0xffff0000, v{54+2*i+cp}"]
        for i in range(16):
            comp.append(f"v_mul_f32 v{KS+i}, v{KF+i}, v{W+12+2*cp+(i&1)}")
        for j in (2, 1, 0):
            for i in range(16):
                comp.append(f"v_fmac_f32 v{KS+i}, v{KF+2*(3-j)+i}, v{W+4*j+2*cp+(i&1)}")
        for i in range(16):
            comp.append(f"v_mul_f32 v{KS+i}, v{KS+i}, v{VF+i}")
        O = 144 + 8 * cp
        for e in range(2):
            for i in range(4):
                comp.append(f"v_cvt_pk_bf16_f32 v{O+4*e+i}, v{KS+4*i+e}, v{KS+4*i+2+e}")
        for i in range(8):
            comp.append(f"v_and_b32 v{O+i}, -2, v{O+i}")
        for e in range(2):
            comp.append(("st", f"buffer_store_dwordx4 {vr(O+4*e)}, v19, s[44:47], s62 offen sc1"))
            comp.append("s_add_u32 s62, s62, 4096")
    PCE = env("PCE", FLAGN - 3)
    PCS = PL0 + env("PGAP", 2)
    NPC = PCE - PCS
    per = -(-len(comp) // NPC)
    a("v_lshrrev_b32 v6, 5, v2")
    a("v_bfe_u32 v7, v2, 2, 2")
    a("v_lshl_add_u32 v7, v6, 2, v7")
    a("v_lshlrev_b32 v7, 11, v7")
    a("v_bfe_u32 v8, v2, 4, 1")
    a("v_lshl_add_u32 v7, v8, 6, v7")
    a("v_and_b32 v8, 3, v2")
    a("v_lshlrev_b32 v6, 1, v6")
    a("v_xor_b32 v8, v8, v6")
    a("v_lshl_add_u32 v7, v8, 4, v7")
    for i in range(4):
        a(f"v_add_u32 v{232+i}, {i*(16384-1024)}, v7")
    a("s_lshl_b32 s69, s4, 16")
    a("s_lshr_b32 s70, s10, 2")
    a("s_lshl_b32 s70, s70, 3")
    a("s_lshr_b32 s71, s11, 2")
    a("s_add_u32 s70, s70, s71")
    a("s_lshl_b32 s70, s70, 7")
    a("s_add_u32 s69, s69, s70")
    a("s_lshl_b32 s70, s4, 12")
    a(f"s_add_u32 s70, s70, {WO_BASE}")
    a("s_lshl_b32 s71, s6, 12")
    a(f"v_mov_b32 v10, {SYNC}")
    a("v_mov_b32 v11, 1")
    a("s_lshl_b32 s43, s4, 2")
    a("v_add_u32 v9, s43, v10")

    def wo_issue(k):
        if k < 7:
            a(f"s_add_u32 m0, s70, {k*16384}")
        else:
            a("s_mov_b32 m0, s7")
        for i in range(4):
            a(f"buffer_load_dwordx4 v{232+i}, s[20:23], s69 offen offset:{i*1024}{NTG} lds")
            vm.issue("wo")
        a(f"s_add_u32 s69, s69, {128*2048}")

    def post_setup():
        a("s_lshl_b32 s16, s10, 1")
        a("s_lshr_b32 s17, s11, 4")
        a("s_add_u32 s16, s16, s17")
        a("s_and_b32 s17, s11, 15")
        a("s_lshl_b32 s17, s17, 2")
        a("s_add_u32 s17, s17, s4")
        a("s_lshr_b32 s18, s17, 4")
        a("s_and_b32 s17, s17, 15")
        a("s_lshl_b32 s19, s18, 9")
        a("s_lshl_b32 s64, s17, 2")
        a("s_add_u32 s19, s19, s64")
        a("s_lshl_b32 s64, s19, 11")
        a("s_lshl_b32 s65, s16, 7")
        a("s_add_u32 s64, s64, s65")
        a("s_lshl_b32 s72, s19, 12")
        a("s_add_u32 s72, s72, s65")
        a("s_lshl_b32 s73, s16, 18")
        a("s_lshl_b32 s65, s18, 10")
        a("s_add_u32 s73, s73, s65")
        a("s_lshl_b32 s65, s17, 6")
        a("s_add_u32 s73, s73, s65")
        a("s_add_u32 s65, s73, 4096")
        a("s_add_u32 s66, s73, 8192")
        a("s_add_u32 s67, s73, 12288")
        a("v_lshlrev_b32 v224, 12, v14")
        a("v_lshl_add_u32 v224, v15, 3, v224")
        a("v_lshlrev_b32 v225, 14, v15")
        a("v_lshl_add_u32 v225, v14, 4, v225")

    def q_loads():
        srd(a, 16, P_Q, 4 * MB)
        a("v_lshlrev_b32 v4, 11, v14")
        a("v_lshl_add_u32 v4, v15, 3, v4")
        for jj in range(8):
            a(f"buffer_load_dwordx2 {vr(QR+2*jj,2)}, v4, s[16:19], s64 offen{NTO}")
            vm.issue("q")
            a(f"s_add_u32 s64, s64, {64*2048}")

    QR = 208

    def h_issue():
        a(f"s_add_u32 m0, s7, {CV_HB}")
        for c in range(4):
            a(f"buffer_load_dwordx4 v3, s[16:19], s71 offen offset:{1024*c}{NTO} lds")
            vm.issue("h")
        a("s_lshl_b32 s43, s6, 1")
        a("v_mov_b32 v4, 0")
        a("buffer_load_ushort v164, v4, s[20:23], s43 offen")
        vm.issue("h")
        srd(a, 20, P_WO, 2 * MB)

    for kt in range(16):
        tags = [("st", kt)]
        if kt == F1N + 1:
            tags += ["fill"]
        if kt == FLAGN + 1:
            tags += ["ust"]
        vm.wait_for(tags)
        if kt == 14:
            a("s_waitcnt lgkmcnt(0)")
        a("s_barrier")
        if kt in (2, 5, 8, 11, 14):
            stamp(a, 10 + (2, 5, 8, 11, 14).index(kt))
        if kt + NS - 1 < 16:
            issue(kt + NS - 1)
        for op in spf[SPF_C + kt * SPF_L: SPF_C + (kt + 1) * SPF_L]:
            a(op)
        if 0 <= kt < len(fills) and "f" not in XP and not FILLC:
            a(fills[kt]); vm.issue("fill")
        if POSTPRE and kt in (14, 15):
            for grp in (loads[:13] if kt == 14 else loads[13:]):
                for op in grp:
                    a(op)
                vm.issue("pre")
        if kt in (PL0, PL0 + 1) and "l" not in XP and not POSTPRE and not PREC:
            part = loads[:11] if kt == PL0 else loads[11:]
            for grp in part:
                for op in grp:
                    a(op)
                vm.issue("pre")
        if kt == 13:
            post_setup()
            srd(a, 16, P_H, 4 * MB)
            srd(a, 20, P_D, 2048)
            a("v_mov_b32 v4, 0")
            a("v_lshlrev_b32 v5, 2, v2")
            a(f"v_add_u32 v6, {SYNC}, v5")
            a("ds_write_b32 v6, v4")
            a("v_add_u32 v6, s7, v5")
            a(f"ds_write_b32 v6, v4 offset:{CV_UB-256}")
            if CV32:
                a(f"ds_write_b32 v6, v4 offset:{CV_UB-512}")
            a(f"v_and_b32 v6, {15 if CV32 else 7}, v2")
            a("v_lshlrev_b32 v6, 2, v6")
            a("v_add_u32 v6, s7, v6")
            a("ds_write_b32 v6, v4")
            h_issue()
            if QEARLY:
                q_loads()
        if PCS <= kt < PCE and not POSTPRE and not PREC:
            if kt == PCS:
                vm.wait_for(["pre"])
            for op in comp[:per]:
                if "c" in XP and not isinstance(op, tuple):
                    continue
                if isinstance(op, tuple):
                    if "u" in XP:
                        continue
                    a(op[1]); vm.issue("ust")
                else:
                    a(op)
            comp = comp[per:]
        if kt == 14 and EARLYWO >= 2:
            wo_issue(0); wo_issue(1)
        if kt == 15 and EARLYWO >= 4:
            wo_issue(2); wo_issue(3)
    assert POSTPRE or PREC or not comp
    a("s_barrier")
    stamp(a, 1)
    if POSTPRE:
        vm.wait_for(["pre"])
        for ci in range(4):
            a(f"v_lshlrev_b32 v{W+ci}, 16, v{24+2*ci}")
            a(f"v_and_b32 v{W+4+ci}, 0xffff0000, v{24+2*ci}")
            a(f"v_lshlrev_b32 v{W+8+ci}, 16, v{25+2*ci}")
            a(f"v_and_b32 v{W+12+ci}, 0xffff0000, v{25+2*ci}")
        for cp in range(2):
            for i in range(11):
                a(f"v_lshlrev_b32 v{KF+2*i}, 16, v{32+2*i+cp}")
                a(f"v_and_b32 v{KF+2*i+1}, 0xffff0000, v{32+2*i+cp}")
            for i in range(8):
                a(f"v_lshlrev_b32 v{VF+2*i}, 16, v{54+2*i+cp}")
                a(f"v_and_b32 v{VF+2*i+1}, 0xffff0000, v{54+2*i+cp}")
            for i in range(8):
                a(f"v_pk_mul_f32 {vr(KS+2*i,2)}, {vr(KF+2*i,2)}, {vr(W+12+2*cp,2)}")
            for j in (2, 1, 0):
                for i in range(8):
                    a(f"v_pk_fma_f32 {vr(KS+2*i,2)}, {vr(KF+2*(i+3-j),2)}, {vr(W+4*j+2*cp,2)}, {vr(KS+2*i,2)}")
            for i in range(8):
                a(f"v_pk_mul_f32 {vr(KS+2*i,2)}, {vr(KS+2*i,2)}, {vr(VF+2*i,2)}")
            O = 144 + 8 * cp
            for e in range(2):
                for i in range(4):
                    a(f"v_cvt_pk_bf16_f32 v{O+4*e+i}, v{KS+4*i+e}, v{KS+4*i+2+e}")
            for i in range(8):
                a(f"v_and_b32 v{O+i}, -2, v{O+i}")
            for e in range(2):
                a(f"buffer_store_dwordx4 {vr(O+4*e)}, v19, s[44:47], s62 offen sc1")
                a("s_add_u32 s62, s62, 4096")
    srd(a, 24, P_DBG, 256)
    srd(a, 32, P_OUT, 8 * MB)
    a("s_mov_b32 s40, 0")
    a("s_mov_b32 s42, 0")
    a("v_lshrrev_b32 v5, 1, v2")
    a("v_lshlrev_b32 v5, 7, v5")
    a("v_and_b32 v4, 1, v2")
    a("v_lshl_add_u32 v5, v4, 4, v5")
    a("v_mov_b32 v4, 0")
    a("buffer_load_dword v226, v4, s[24:27], 0 offen sc1")
    srd_off(a, 24, P_WS, WS_FLAG, 4096)
    a("v_lshlrev_b32 v6, 7, v15")
    a("v_lshl_add_u32 v6, v14, 4, v6")
    a("s_lshl_b32 s60, s15, 11")
    a("s_lshl_b32 s61, s15, 16")
    a(f"s_lshl_b32 s62, s36, {10 if BP else 11}")
    a("s_add_u32 s61, s61, s62")

    def flagcmp(r):
        for i in range(4):
            a(f"v_xor_b32 v{r+i}, v{r+i}, v226")
        a(f"v_or3_b32 v{r}, v{r}, v{r+1}, v{r+2}")
        a(f"v_or_b32 v{r}, v{r}, v{r+3}")
        a(f"v_cmp_ne_u32 vcc, 0, v{r}")

    def u_block(ret):
        a(f"s_add_u32 m0, s7, {CV_UB}")
        for c in range(4):
            a(f"buffer_load_dwordx4 v3, s[44:47], s71 offen offset:{1024*c} sc1 lds")
        a("s_mov_b32 s42, 1")
        a("s_waitcnt vmcnt(0) lgkmcnt(0)")
        lds_signal(a, 9, S_HU, 11)
        stamp(a, 3)
    a(f"s_mov_b32 s43, {RETRY_MAX}")
    a.label("K3_fp")
    a(f"buffer_load_dwordx4 {vr(24)}, v5, s[24:27], 0 offen sc1")
    a(f"buffer_load_dwordx4 {vr(28)}, v5, s[24:27], 0 offen offset:32 sc1")
    a("s_waitcnt vmcnt(0)")
    vm.q = []
    flagcmp(24)
    a("s_sub_u32 s43, s43, 1")
    a("s_cbranch_scc1 K3_fp_ok")
    a("s_cmp_eq_u64 vcc, 0")
    a("s_cbranch_scc1 K3_fp_ok")
    a("s_add_u32 s75, s75, 1")
    a("s_sleep 8")
    a("s_branch K3_fp")
    a.label("K3_fp_ok")
    if POSTPRE:
        a("s_mov_b64 exec, 1")
        a(f"ds_add_rtn_u32 v7, v10, v11 offset:{S_GO}")
        a("s_waitcnt lgkmcnt(0)")
        a("v_readfirstlane_b32 s43, v7")
        a("s_lshl_b32 s62, s11, 7")
        a("s_lshl_b32 s63, s10, 2")
        a("s_add_u32 s62, s62, s63")
        a("s_cmp_lg_u32 s43, 3")
        a("s_cbranch_scc1 K3_nof2")
        a("buffer_store_dword v226, v4, s[24:27], s62 offen offset:32 sc1")
        a.label("K3_nof2")
        a("s_mov_b64 exec, -1")
    stamp(a, 2)
    a("v_mov_b32 v4, s7")
    a(f"ds_read_u16 v7, v4 offset:{CV_HB}")
    a("v_lshlrev_b32 v164, 16, v164")
    a("s_waitcnt lgkmcnt(0)")
    a("v_lshlrev_b32 v7, 16, v7")
    a("v_add_f32 v7, v7, v164")
    a("v_cvt_pk_bf16_f32 v7, v7, v7")
    a(f"ds_write_b16 v4, v7 offset:{CV_HB}")
    flagcmp(28)
    a("s_cmp_lg_u64 vcc, 0")
    a("s_cbranch_scc1 K3_nou0")
    u_block(0)
    a.label("K3_nou0")
    if WAITKV:
        lds_wait(a, "K3_wkvs", 10, S_KVS, 2, 16, 62, sleep=1)
    PQR = 192

    def bulkA():
        for k in range(EARLYWO, 6):
            wo_issue(k)
        a("v_and_b32 v7, 31, v2")
        a("v_lshlrev_b32 v7, 11, v7")
        a(f"s_add_u32 s62, s69, {128*2048}")
        a("buffer_load_dword v165, v7, s[20:23], s62 offen")
        if CPOST:
            srd(a, 16, P_Q, 4 * MB)
            a("v_bfe_u32 v7, v2, 2, 3")
            a("v_lshlrev_b32 v7, 17, v7")
            a("v_and_b32 v8, 3, v2")
            a("v_lshl_add_u32 v7, v8, 11, v7")
            a("buffer_load_dword v165, v7, s[16:19], s64 offen")

    def pq_pick():
        a("s_lshl_b32 s43, s4, 12")
        a(f"s_add_u32 s43, s43, {PQ_BASE}")
        a("v_add_u32 v8, s43, v3")
        lds_wait(a, "K3_wpq", 9, S_PQ, 1, 16, 62, sleep=1)
        for mt in range(4):
            a(f"ds_read_b128 {vr(PQR+4*mt)}, v8 offset:{1024*mt}")
        a("s_waitcnt lgkmcnt(0)")

    if not ZFIRST:
        bulkA()
        pq_pick()
    if PG:
        vm.q = []
        a("s_setprio 2")
        a("s_mov_b32 s62, s61")
        for p in range(16):
            for dt in range(2):
                a(f"buffer_load_dwordx4 {vr(64+8*p+4*dt)}, v3, s[52:55], s62 offen offset:{1024*dt}{GSC}")
                vm.issue(("kv", p))
            a("s_add_u32 s62, s62, 4096")
    if not ZFIRST:
        wo_issue(6)
    if PG:
        if not QEARLY and not CPOST:
            q_loads()
        for i in range(8):
            a(f"v_mov_b32 v{56+i}, 0")
        a("s_mov_b32 s63, 0")
        for p in range(16):
            vm.wait_for([("kv", p)])
            r = 64 + 8 * p
            and_reduce(a, 16, range(r, r + 8))
            a("v_cmp_eq_u32 vcc, 0, v16")
            a(f"s_bitset1_b32 s63, {p}")
            a("s_cmp_lg_u64 vcc, 0")
            a(f"s_cbranch_scc1 K3_pg{p}")
            a(f"s_bitset0_b32 s63, {p}")
            for i in range(8):
                a(f"v_add_f32 v{56+i}, v{56+i}, v{r+i}")
            a.label(f"K3_pg{p}")
    a(f"s_mov_b32 s43, {RETRY_MAX}")
    a.label("K3_zp")
    for dt in range(2):
        a(f"buffer_load_dwordx4 {vr(32+4*dt)}, v6, s[56:59], s60 offen offset:{64*dt} sc1")
    a("s_cmp_lg_u32 s42, 0")
    a("s_cbranch_scc1 K3_zp_nf")
    a(f"buffer_load_dwordx4 {vr(28)}, v5, s[24:27], 0 offen offset:32 sc1")
    a("s_waitcnt vmcnt(0)")
    flagcmp(28)
    a("s_cmp_lg_u64 vcc, 0")
    a("s_cbranch_scc1 K3_zp_nf")
    u_block(1)
    a.label("K3_zp_nf")
    a(f"ds_read_b32 v17, v9 offset:{S_CD}")
    a("s_waitcnt vmcnt(0) lgkmcnt(0)")
    vm.q = []
    and_reduce(a, 16, range(32, 40))
    a("v_readfirstlane_b32 s41, v17")
    a("v_cmp_eq_u32 vcc, 0, v16")
    a("s_sub_u32 s43, s43, 1")
    a("s_cbranch_scc1 K3_zp_ok")
    a("s_cmp_eq_u64 vcc, 0")
    a("s_cbranch_scc1 K3_zp_ok")
    a("s_cmp_lg_u32 s40, 0")
    a("s_cbranch_scc1 K3_zp_s2")
    if QEARLY:
        a("s_cmp_lg_u32 s41, 0")
        a("s_cbranch_scc1 K3_post")
    a.label("K3_zp_s2")
    a(f"s_sleep {ZSLEEP}")
    a("s_branch K3_zp")
    a.label("K3_zp_ok")
    if PG:
        stamp(a, 4)
        a(f"s_mov_b32 s43, {RETRY_MAX}")
        a.label("K3_ml")
        a("s_cmp_eq_u32 s63, 0")
        a("s_cbranch_scc1 K3_ml_done")
        a("s_ff1_i32_b32 s41, s63")
        a("s_lshl_b32 s62, s41, 12")
        a("s_add_u32 s62, s62, s61")
        for dt in range(2):
            a(f"buffer_load_dwordx4 {vr(64+4*dt)}, v3, s[52:55], s62 offen offset:{1024*dt} sc1")
        a("s_add_u32 s75, s75, 1")
        a("s_waitcnt vmcnt(0)")
        and_reduce(a, 16, range(64, 72))
        a("v_cmp_eq_u32 vcc, 0, v16")
        a("s_sub_u32 s43, s43, 1")
        a("s_cbranch_scc1 K3_ml_done")
        a("s_cmp_lg_u64 vcc, 0")
        a("s_cbranch_scc1 K3_ml")
        a("s_bitset0_b32 s63, s41")
        for i in range(8):
            a(f"v_add_f32 v{56+i}, v{56+i}, v{64+i}")
        a("s_branch K3_ml")
        a.label("K3_ml_done")
        for i in range(8):
            a(f"v_add_f32_dpp v{40+i}, v{32+i}, v{32+i} row_ror:8 {DPP}")
        for sh in (4, 2, 1):
            for i in range(8):
                a(f"v_add_f32_dpp v{40+i}, v{40+i}, v{40+i} row_ror:{sh} {DPP}")
        for i in range(4):
            a(f"v_cvt_pk_bf16_f32 v{48+i}, v{40+2*i}, v{41+2*i}")
        for i in range(8):
            a(f"v_mov_b32 v{64+i}, v{56+i}")
    else:
        stamp(a, 4)
        a("s_setprio 2")
        a(f"s_mov_b32 s43, {RETRY_MAX}")
        def gloads(fl, track):
            a("s_mov_b32 s62, s61")
            for p in range(16):
                for dt in range(1 if BP else 2):
                    r = 96 + 4 * p if BP else 64 + 8 * p + 4 * dt
                    a(f"buffer_load_dwordx4 {vr(r)}, v3, s[52:55], s62 offen offset:{1024*dt}{fl}")
                    if track:
                        vm.issue(("kv", p))
                a("s_add_u32 s62, s62, 4096")
        gloads(GSC, True)
        if ZFIRST:
            bulkA()
            vm.issue("t")
        if not QEARLY and not CPOST:
            q_loads()
        a.label("K3_gl")
        for i in range(8):
            a(f"v_add_f32_dpp v{40+i}, v{32+i}, v{32+i} row_ror:8 {DPP}")
        for sh in (4, 2, 1):
            for i in range(8):
                a(f"v_add_f32_dpp v{40+i}, v{40+i}, v{40+i} row_ror:{sh} {DPP}")
        for i in range(4):
            a(f"v_cvt_pk_bf16_f32 v{48+i}, v{40+2*i}, v{41+2*i}")
        a("v_mov_b32 v16, 1")
        for p in range(16):
            vm.wait_for([("kv", p)])
            if BP:
                r = 96 + 4 * p
                for i in range(0, 4, 2):
                    a(f"v_bitop3_b32 v16, v16, v{r+i}, v{r+i+1} bitop3:0x80")
                t = 64 if p == 0 else 72
                for i in range(4):
                    a(f"v_lshlrev_b32 v{t+2*i}, 16, v{r+i}")
                    a(f"v_and_b32 v{t+2*i+1}, 0xffff0000, v{r+i}")
                if p >= 1:
                    for i in range(8):
                        a(f"v_add_f32 v{64+i}, v{64+i}, v{72+i}")
            else:
                r = 64 + 8 * p
                for i in range(0, 8, 2):
                    a(f"v_bitop3_b32 v16, v16, v{r+i}, v{r+i+1} bitop3:0x80")
                if p >= 1:
                    for i in range(8):
                        a(f"v_add_f32 v{64+i}, v{64+i}, v{r+i}")
        a("v_cmp_eq_u32 vcc, 0, v16")
        a("s_sub_u32 s43, s43, 1")
        a("s_cbranch_scc1 K3_gl_ok")
        a("s_cmp_eq_u64 vcc, 0")
        a("s_cbranch_scc1 K3_gl_ok")
        a("s_add_u32 s75, s75, 1")
        a("s_sleep 4")
        gloads(" sc1", False)
        a("s_waitcnt vmcnt(0)")
        a("s_branch K3_gl")
    a.label("K3_gl_ok")
    for i in range(4):
        a(f"v_cvt_pk_bf16_f32 v{40+i}, v{64+2*i}, v{65+2*i}")
    a("s_lshl_b32 s43, s4, 10")
    a(f"s_add_u32 s43, s43, {KVT}")
    a("v_add_u32 v5, s43, v3")
    a(f"ds_write_b128 v5, {vr(40)}")
    a("s_lshl_b32 s43, s37, 2")
    a("v_add_u32 v7, s43, v10")
    a("s_lshl_b32 s43, s37, 11")
    a(f"s_add_u32 s43, s43, {KVT}")
    a("v_add_u32 v5, s43, v3")
    a("s_waitcnt lgkmcnt(0)")
    lds_signal(a, 7, S_KVT, 11)
    if ZFIRST:
        pq_pick()
        wo_issue(6)
    lds_wait(a, "K3_wkt", 7, S_KVT, 2, 52, 60)
    a(f"ds_read_b128 {vr(40)}, v5")
    a(f"ds_read_b128 {vr(44)}, v5 offset:1024")
    a("s_waitcnt lgkmcnt(0)")
    stamp(a, 5)
    for mt in range(4):
        b = 64 + 12 * mt
        mfma16(a, b + 8, 48, PQR + 4 * mt, "0")
        mfma16(a, b, 40, PQR + 4 * mt, "0")
        mfma16(a, b + 4, 44, PQR + 4 * mt, "0")
    a("s_lshl_b32 s60, s12, 3")
    a("s_lshl_b32 s61, s36, 2")
    a("s_add_u32 s60, s60, s61")
    a("s_lshl_b32 s60, s60, 5")
    a("s_add_u32 s60, s60, s15")
    a("s_lshl_b32 s60, s60, 10")
    a(f"s_mov_b32 s61, {EPS}")
    for mt in range(4):
        a(f"v_add_f32 v{112+mt}, s61, v{64+12*mt+8}")
        a(f"v_rcp_f32 v{112+mt}, v{112+mt}")
    for mt in range(4):
        b = 64 + 12 * mt
        for i in range(8):
            a(f"v_mul_f32 v{b+i}, v{b+i}, v{112+mt}")
        for i in range(4):
            a(f"v_cvt_pk_bf16_f32 v{120+4*mt+i}, v{b+2*i}, v{b+2*i+1}")
        for i in range(4):
            a(f"v_or_b32 v{120+4*mt+i}, 1, v{120+4*mt+i}")
        a(f"buffer_store_dwordx4 {vr(120+4*mt)}, v3, s[48:51], s60 offen sc1")
        a("s_add_u32 s60, s60, 32768")
    a("s_setprio 0")
    stamp(a, 6)
    a(f"s_mov_b32 s43, {RETRY_MAX}")
    a("v_lshrrev_b32 v5, 1, v2")
    a("v_lshlrev_b32 v5, 7, v5")
    a("v_and_b32 v4, 1, v2")
    a("v_lshl_add_u32 v5, v4, 4, v5")
    a.label("K3_ul")
    a("s_cmp_lg_u32 s42, 0")
    a("s_cbranch_scc1 K3_ul_done")
    a(f"buffer_load_dwordx4 {vr(28)}, v5, s[24:27], 0 offen offset:32 sc1")
    a("s_waitcnt vmcnt(0)")
    flagcmp(28)
    a("s_sub_u32 s43, s43, 1")
    a("s_cbranch_scc1 K3_ul_go")
    a("s_cmp_eq_u64 vcc, 0")
    a("s_cbranch_scc1 K3_ul_go")
    a("s_sleep 4")
    a("s_branch K3_ul")
    a.label("K3_ul_go")
    u_block(2)
    a.label("K3_ul_done")
    a("s_and_b32 s60, s10, 3")
    a("s_lshl_b32 s60, s60, 2")
    a("s_and_b32 s61, s11, 3")
    a("s_add_u32 s60, s60, s61")
    a("s_lshl_b32 s60, s60, 18")
    a("s_lshr_b32 s61, s11, 2")
    a("s_lshl_b32 s61, s61, 2")
    a("s_add_u32 s61, s61, s4")
    a("s_lshl_b32 s61, s61, 13")
    a("s_add_u32 s63, s60, s61")
    a("v_lshlrev_b32 v8, 7, v2")
    a("s_waitcnt vmcnt(0)")
    a("buffer_load_dword v60, v8, s[48:51], s63 offen")
    a(f"s_waitcnt vmcnt({0 if TWAIT else 1})")
    lds_signal(a, 10, S_WOM, 11)
    lds_wait(a, "K3_wcd", 9, S_CD, 1, 16, 60, sleep=1)
    wo_issue(7)
    a("s_waitcnt vmcnt(0)")
    lds_signal(a, 10, S_WOT, 11)
    vm.q = []
    stamp(a, 7)
    a("s_cmp_eq_u32 s40, 1")
    a("s_cbranch_scc1 K3_fin")
    if CPOST:
        lds_wait(a, "K3_wg2", 9, S_G2, 1, 16, 60, sleep=2)
        a(f"ds_read_b32 v16, v9 offset:{S_PD}")
        a("s_waitcnt lgkmcnt(0)")
        a("v_readfirstlane_b32 s60, v16")
        a("s_cmp_lg_u32 s60, 0")
        a("s_cbranch_scc1 K3_fin")
        q_loads()
    if GS >= 0 and not CPOST:
        lds_wait(a, "K3_wg2", 9, S_G2, 1, 16, 60, sleep=2)
    a("s_mov_b32 s40, 2")
    if PDELAY:
        a(f"s_sleep {PDELAY}")
    a(f"s_mov_b32 s43, {RETRY_MAX}")
    a.label("K3_post")
    for ci, sr in enumerate((73, 65, 66, 67)):
        a(f"buffer_load_dwordx4 {vr(16+4*ci)}, v225, s[44:47], s{sr} offen sc1")
    a("s_waitcnt vmcnt(0)")
    and_reduce(a, 48, range(16, 32))
    a("v_cmp_eq_u32 vcc, 0, v48")
    a("s_cmp_eq_u64 vcc, 0")
    a("s_cbranch_scc1 K3_yok")
    a("s_add_u32 s75, s75, 1")
    a("s_cmp_eq_u32 s40, 0")
    a("s_cbranch_scc1 K3_zp_s2")
    if PREPOST:
        a("s_cmp_eq_u32 s40, 3")
        a("s_cbranch_scc1 K3_pw")
    a("s_sub_u32 s43, s43, 1")
    a("s_cbranch_scc1 K3_yok")
    a("s_sleep 8")
    a("s_branch K3_post")
    a.label("K3_yok")
    stamp(a, 8)
    post_compute(a, QR, False)
    a("s_mov_b32 s41, s40")
    a("s_mov_b32 s40, 1")
    a("s_cmp_eq_u32 s41, 0")
    a("s_cbranch_scc1 K3_zp")
    if PREPOST:
        a("s_cmp_eq_u32 s41, 3")
        a("s_cbranch_scc1 K3_pw")
    a.label("K3_fin")
    stamp_flush(a, 9)
    a.label("K3_end")
    a("s_endpgm")
    a.label("K3_code_end")
    return a.finalize(), 252
```

```python
import os
from asmlib import *
from common import prepass, k2_prefetch_setup, MB, vr, mfma16, phi8, unpack4, env, LOG2E, EPS, WS_KVP, WS_ZP, WS_FLAG, WS_UT, WS_DBG, STAMP

WS_OF = 0
NS = 4
STAGE = 40960
K3_LDS = NS * STAGE
CV32 = env("CV32", 0)
CV_REG = 8960 if CV32 else 8704
CV_HB = 64 if CV32 else 32
CV_UB = 4672 if CV32 else 4384
KVT = 4 * CV_REG
SYNC = KVT + 4096
WO_BASE = 40960
PQ_BASE = WO_BASE + 24 * 4096
XCH = WO_BASE + 28 * 4096
XCZ = SYNC + 256
S_KVS = 84
S_PD = 96
S_G2 = 112
S_X, S_HU, S_PQ, S_KVT, S_WOM, S_WOT, S_CD, S_GO, S_NONCE, S_WO2 = 0, 8, 24, 40, 48, 52, 56, 72, 76, 80
SPIN_MAX = 1 << 17
RETRY_MAX = 4000
DPP = "row_mask:0xf bank_mask:0xf"
DUTY0 = env("DUTY0", 0)
NDUTY = env("NDUTY", 4)
E2_0 = env("E2_0", 4)
E2_N = env("E2_N", 4)
E3_0 = env("E3_0", 8)
E3_N = env("E3_N", 4)
F1N = env("F1N", 11)
NLEAD = env("NLEAD", 4)
FLAGN = env("FLAGN", 12)
AINIT = env("AINIT", 12)
PDELAY = env("PDELAY", 0)
G2PRIO = env("G2PRIO", 1)
CPOST = env("CPOST", 0)
PG = env("PG", 0)
BP = env("BP", 1)
TWAIT = env("TWAIT", 1)
ZFIRST = env("ZFIRST", 0)
GS = env("GS", 16)
FILLC = env("FILLC", 0)
PRO = env("PRO", 3)
OS1 = env("OS1", "")
OS2 = env("OS2", "")
NPL = env("NPL", 2)
FL0 = env("FL0", 0)
PL0 = env("PL0", 4)
SPF_C = env("SPF_C", 0)
SPF_L = env("SPF_L", 0)
ADEPTH = env("ADEPTH", 16)
YDELAY = env("YDELAY", 8)
ZSLEEP = env("ZSLEEP", 10)
ATOUCH = env("ATOUCH", 1)
XP = env("XP", "23")
LATE = env("LATE", 1)
PREPOST = env("PREPOST", 0)
EARLYWO = env("EARLYWO", 4)
WAITKV = env("WAITKV", 1)
GSC = env("GSC", "")
QX = env("QX", 1)
PREC = env("PREC", 0)
L2PF = env("L2PF", 0)
TLBW = env("TLBW", 0)
CODEPF = env("CODEPF", 0)
DBGOUT = env("DBGOUT", 0)
NTF = " nt" if env("NTF", 0) else ""
NTG = " nt" if env("NTG", 0) else ""
NTO = " nt" if env("NTO", 1) else ""
NTT = " nt" if env("NTT", 0) else ""
NTS = " nt" if env("NTS", 0) else ""
E3W = env("E3W", 1)
QEARLY = env("QEARLY", 0)
POSTPRE = env("POSTPRE", 0)
ASC = env("ASC", "")
P_Q, P_K, P_V, P_SHK, P_H, P_D, P_X, P_W, P_WO, P_OUT, P_DBG, P_WS = [76 + 2 * i for i in range(12)]
SV = 231


def stamp(a, i):
    if STAMP:
        a("s_memrealtime s[100:101]")
        a("s_waitcnt lgkmcnt(0)")
        a(f"v_writelane_b32 v{SV}, s100, {i}")


def cstamp(a, i):
    if STAMP:
        a("s_memtime s[100:101]")
        a("s_waitcnt lgkmcnt(0)")
        a(f"v_writelane_b32 v{SV}, s100, {i}")


def stamp_flush(a, n):
    if not STAMP:
        return
    a("s_mov_b64 exec, -1")
    a("s_waitcnt vmcnt(0)")
    stamp(a, n)
    a(f"v_writelane_b32 v{SV}, s75, 15")
    if DBGOUT:
        lab = "K3_dbg%d" % len(a.ins)
        a(f"s_cmp_lg_u32 s2, {DBGOUT-1}")
        a(f"s_cbranch_scc1 {lab}")
        a("s_cmp_lg_u32 s4, 0")
        a(f"s_cbranch_scc1 {lab}")
        srd(a, 16, P_DBG, 256)
        a(f"v_readlane_b32 s20, v{SV}, 0")
        a("s_lshr_b32 s21, s3, 1")
        a("v_lshlrev_b32 v0, 2, v2")
        a(f"v_subrev_u32 v1, s20, v{SV}")
        a("s_mov_b64 exec, 0x3fe")
        a("buffer_store_short v1, v0, s[16:19], s21 offen")
        a("s_mov_b64 exec, -1")
        a.label(lab)
    srd_off(a, 16, P_WS, WS_DBG, 4 * MB)
    a("s_add_u32 s20, s2, 512")
    a("s_lshl_b32 s20, s20, 4")
    a("s_add_u32 s20, s20, s3")
    a("s_lshl_b32 s20, s20, 6")
    a("v_lshlrev_b32 v0, 2, v2")
    a("s_mov_b64 exec, 0xffff")
    a(f"buffer_store_dword v{SV}, v0, s[16:19], s20 offen")


def lds_wait(a, name, vaddr, off, val, vtmp, stmp, sleep=0):
    a(f"s_mov_b32 s{stmp+1}, {SPIN_MAX}")
    a.label(name)
    if sleep:
        a(f"s_sleep {sleep}")
    a(f"ds_read_b32 v{vtmp}, v{vaddr} offset:{off}")
    a("s_waitcnt lgkmcnt(0)")
    a(f"v_readfirstlane_b32 s{stmp}, v{vtmp}")
    a(f"s_sub_u32 s{stmp+1}, s{stmp+1}, 1")
    a(f"s_cbranch_scc1 {name}_ok")
    a(f"s_cmp_lt_u32 s{stmp}, {val}")
    a(f"s_cbranch_scc1 {name}")
    a.label(name + "_ok")


def lds_signal(a, vaddr, off, vone):
    a("s_mov_b64 exec, 1")
    a(f"ds_add_u32 v{vaddr}, v{vone} offset:{off}")
    a("s_mov_b64 exec, -1")


def and_reduce(a, dst, regs):
    regs = list(regs)
    a(f"v_bitop3_b32 v{dst}, v{regs[0]}, v{regs[1]}, 1 bitop3:0x80")
    i = 2
    while i + 1 < len(regs):
        a(f"v_bitop3_b32 v{dst}, v{dst}, v{regs[i]}, v{regs[i+1]} bitop3:0x80")
        i += 2
    if i < len(regs):
        a(f"v_and_b32 v{dst}, v{dst}, v{regs[i]}")


def post_compute(a, QR, pk):
    for jj in range(8):
        T = 48 + 8 * (jj & 1)
        for ci in range(4):
            if jj & 1:
                a(f"v_and_b32 v{T+ci}, 0xffff0000, v{16+4*ci+jj//2}")
            else:
                a(f"v_lshlrev_b32 v{T+ci}, 16, v{16+4*ci+jj//2}")
        for cp in range(2):
            a(f"v_lshlrev_b32 v{T+4+2*cp}, 16, v{QR+2*jj+cp}")
            a(f"v_and_b32 v{T+5+2*cp}, 0xffff0000, v{QR+2*jj+cp}")
        if pk:
            for cp in range(2):
                a(f"v_pk_mul_f32 {vr(T+2*cp,2)}, {vr(T+2*cp,2)}, {vr(T+4+2*cp,2)}")
        else:
            for ci in range(4):
                a(f"v_mul_f32 v{T+ci}, v{T+ci}, v{T+4+ci}")
        O = 64 + 2 * jj
        for cp in range(2):
            a(f"v_cvt_pk_bf16_f32 v{O+cp}, v{T+2*cp}, v{T+2*cp+1}")
        a(f"buffer_store_dwordx2 {vr(O,2)}, v224, s[32:35], s72 offen{NTS}{OS1}")
        a(f"s_add_u32 s72, s72, {64*4096}")


def conv32(a, lg, PK):
    FU, HR, NH = 96, 16, 4
    ACCS = [[32, 48], [64, 80]]
    T2, T1, YV, R3PREV = [224, 225], [226, 227], [228, 229], 230

    def epilogue_ops(p):
        ops = []
        for ql in range(8):
            Q = 8 * p + ql
            acc = ACCS[p & 1][ql // 4] + 4 * (ql % 4)
            R0, R1, R2, R3 = acc, acc + 1, acc + 2, acc + 3
            cur, prv = Q & 1, (Q & 1) ^ 1
            r3p = R3PREV if ql == 0 else ACCS[p & 1][(ql - 1) // 4] + 4 * ((ql - 1) % 4) + 3
            if Q == 0:
                ops.append(f"v_add_f32_dpp v{T2[cur]}, v{R3}, v{R2} wave_shr:1 {DPP} bound_ctrl:0")
                ops.append(f"v_add_f32_dpp v{T1[cur]}, v{T2[cur]}, v{R1} wave_shr:1 {DPP} bound_ctrl:0")
                ops.append(f"v_add_f32_dpp v{YV[cur]}, v{T1[cur]}, v{R0} wave_shr:1 {DPP} bound_ctrl:0")
            else:
                ops.append(f"v_add_f32_dpp v{T2[cur]}, v{r3p}, v{R2} wave_ror:1 {DPP}")
                ops.append(f"v_add_f32_dpp v{T1[cur]}, v{T2[prv]}, v{R1} wave_ror:1 {DPP}")
                ops.append(f"v_add_f32_dpp v{YV[cur]}, v{T1[prv]}, v{R0} wave_ror:1 {DPP}")
                ops.append(f"v_add_f32_dpp v{T2[cur]}, v{R3}, v{R2} wave_shr:1 {DPP}")
                ops.append(f"v_add_f32_dpp v{T1[cur]}, v{T2[cur]}, v{R1} wave_shr:1 {DPP}")
                ops.append(f"v_add_f32_dpp v{YV[cur]}, v{T1[cur]}, v{R0} wave_shr:1 {DPP}")
            if ql & 1:
                d = PK[p] + ql // 2
                ops.append(f"v_cvt_pk_bf16_f32 v{d}, v{YV[0]}, v{YV[1]}")
                ops.append(f"v_or_b32 v{d}, 1, v{d}")
            if ql == 7:
                ops.append(f"v_mov_b32 v{R3PREV}, v{R3}")
        return ops

    steps = [(p, t) for p in range(4) for t in range(8 * p + 8)]
    issued = set()
    hslot = {}

    def issue_h(idx):
        p, t = steps[idx]
        slot = idx % NH
        hslot[idx] = slot
        for h in range(2):
            a(f"ds_read_b64_tr_b16 {vr(HR+4*slot+2*h,2)}, v12 offset:{128*t+32*(1-h)}")
            lg.issue(("h", slot))

    def issue_fu(s):
        if s in issued:
            return
        issued.add(s)
        for h in range(2):
            a(f"ds_read_b64_tr_b16 {vr(FU+4*(s+3)+2*h,2)}, v13 offset:{128*(s+3)+32*h}")
            lg.issue(("fu", s))

    def need(idx):
        p, t = steps[idx]
        r = [8 * p + 4 - t]
        if t <= 8 * p + 3:
            r.append(8 * p - t)
        return r

    PRE = 3
    for idx in range(PRE):
        for s in need(idx):
            issue_fu(s)
        issue_h(idx)
    pending = []
    for idx, (p, t) in enumerate(steps):
        if t == 0 and p > 0:
            assert not pending
            pending = epilogue_ops(p - 1)
        slot = hslot[idx]
        lg.wait_for([("h", slot)] + [("fu", s) for s in need(idx)])
        mf = [(1, 8 * p + 4 - t)]
        if t <= 8 * p + 3:
            mf.append((0, 8 * p - t))
        for k, (tile, s) in enumerate(mf):
            d = ACCS[p & 1][tile]
            cs = "0" if t == 0 else vr(d, 16)
            a(f"v_mfma_f32_32x32x16_bf16 {vr(d,16)}, {vr(FU+4*(s+3))}, {vr(HR+4*slot)}, {cs}")
            if k == 0 and idx + PRE < len(steps):
                for s2 in need(idx + PRE):
                    issue_fu(s2)
                issue_h(idx + PRE)
            if pending and t >= 2:
                for _ in range(3):
                    if pending:
                        a(pending.pop(0))
    assert not pending
    for op in epilogue_ops(3):
        a(op)


def gen_k3():
    a = Asm()
    a.label("K3_code_begin")
    a("s_cmp_ge_u32 s2, 256")
    a("s_cbranch_scc1 K3_end")
    a("s_load_dwordx8 s[84:91], s[0:1], 32")
    a("s_load_dwordx8 s[92:99], s[0:1], 64")
    a("s_load_dwordx8 s[76:83], s[0:1], 0")
    a("v_lshrrev_b32 v1, 6, v0")
    a("v_and_b32 v2, 63, v0")
    a("s_and_b32 s10, s2, 7")
    a("v_readfirstlane_b32 s3, v1")
    a("s_lshr_b32 s11, s2, 3")
    a("s_and_b32 s12, s10, 1")
    a("s_lshl_b32 s12, s12, 3")
    a("s_and_b32 s13, s11, 7")
    a("s_add_u32 s12, s12, s13")
    a("s_lshr_b32 s13, s10, 1")
    a("s_lshl_b32 s13, s13, 2")
    a("s_lshr_b32 s14, s11, 3")
    a("s_add_u32 s13, s13, s14")
    a("s_mov_b32 s75, 0")
    a("s_and_b32 s4, s3, 3")
    a("s_and_b32 s36, s3, 1")
    a("s_bfe_u32 s37, s3, 0x10001")
    a("s_lshl_b32 s5, s13, 1")
    a("s_add_u32 s5, s5, s37")
    a(f"s_xor_b32 s15, s5, {2 if QX else 0}")
    a("s_lshl_b32 s6, s10, 7")
    a("s_lshl_b32 s7, s11, 2")
    a("s_add_u32 s6, s6, s7")
    a("s_add_u32 s6, s6, s4")
    a(f"s_mul_i32 s7, s4, {CV_REG}")
    a("v_lshlrev_b32 v3, 4, v2")
    a("v_lshrrev_b32 v14, 4, v2")
    a("v_and_b32 v15, 15, v2")
    a("s_waitcnt lgkmcnt(0)")
    stamp(a, 0)
    spf = []
    a("s_cmp_ge_u32 s3, 4")
    a("s_cbranch_scc1 K3_L")

    if L2PF:
        srd(a, 40, P_X, 4 * MB)
        srd(a, 48, P_W, 6 * MB)
        a("v_lshrrev_b32 v192, 3, v2")
        a("v_lshlrev_b32 v192, 11, v192")
        a("v_and_b32 v16, 7, v2")
        a("v_lshl_add_u32 v192, v16, 7, v192")
        a("s_and_b32 s44, s10, 1")
        a("s_lshl_b32 s44, s44, 21")
        a("s_lshl_b32 s45, s11, 16")
        a("s_add_u32 s44, s44, s45")
        a("s_lshl_b32 s45, s3, 14")
        a("s_add_u32 s44, s44, s45")
        a(f"buffer_load_dword v195, v192, s[40:43], s44 offen{NTT}")
        a("v_lshrrev_b32 v193, 2, v2")
        a("v_mul_u32_u24 v193, 6144, v193")
        a("v_and_b32 v16, 3, v2")
        a("v_lshl_add_u32 v193, v16, 7, v193")
        a("s_mul_i32 s45, s11, 98304")
        a("s_lshl_b32 s46, s3, 11")
        a("s_add_u32 s45, s45, s46")
        a("s_lshr_b32 s46, s10, 1")
        a("s_lshl_b32 s46, s46, 9")
        a("s_add_u32 s45, s45, s46")
        a("s_cmp_eq_u32 s3, 3")
        a(f"s_cselect_b32 s45, {16*MB}, s45")
        a(f"buffer_load_dword v195, v193, s[48:51], s45 offen{NTT}")
        a("s_add_u32 s44, s44, 1024")
        a(f"s_add_u32 s45, s45, {512*6144}")
    else:
        a("s_cmp_lg_u32 s3, 0")
        a("s_cbranch_scc1 K3_pfw")
        srd(a, 40, P_X, 4 * MB)
        a("v_lshrrev_b32 v192, 3, v2")
        a("v_lshlrev_b32 v192, 11, v192")
        a("v_and_b32 v16, 7, v2")
        a("v_lshl_add_u32 v192, v16, 7, v192")
        a("s_lshl_b32 s45, s2, 14")
        a("s_add_u32 s44, s45, 1024")
        a("s_branch K3_pfd")
        a.label("K3_pfw")
        srd(a, 40, P_W, 6 * MB)
        a("v_lshlrev_b32 v192, 7, v2")
        a("s_mul_i32 s45, s2, 12288")
        a("s_sub_u32 s44, s3, 1")
        a("s_lshl_b32 s44, s44, 12")
        a("s_add_u32 s45, s45, s44")
        a(f"s_add_u32 s44, s45, {3*MB}")
        a("s_cmp_eq_u32 s3, 3")
        a(f"s_cselect_b32 s45, {8*MB}, s45")
        a(f"s_cselect_b32 s44, {8*MB}, s44")
        a.label("K3_pfd")
        if "1" in XP:
            a(f"s_mov_b32 s45, {16*MB}")
            a(f"s_mov_b32 s44, {16*MB}")
        a(f"buffer_load_dword v195, v192, s[40:43], s45 offen{NTT}")
    srd(a, 56, P_DBG, 256)
    srd_off(a, 60, P_WS, WS_FLAG, 4096)
    a("s_memrealtime s[16:17]")
    a("v_mov_b32 v199, 0")
    a("s_waitcnt lgkmcnt(0)")
    a("s_or_b32 s16, s16, 1")
    a("v_mov_b32 v198, s16")
    a("s_cmp_lg_u32 s3, 3")
    a("s_cbranch_scc1 K3_noseed")
    a("s_cmp_lg_u32 s11, 0")
    a("s_cbranch_scc1 K3_noseed")
    a("v_mov_b32 v196, s16")
    a("v_mov_b32 v197, 0")
    a("s_mov_b64 exec, 1")
    a("buffer_atomic_cmpswap v[196:197], v199, s[56:59], 0 offen sc1")
    a("s_mov_b64 exec, -1")
    a.label("K3_noseed")
    if CODEPF:
        a("s_cmp_lg_u32 s3, 3")
        a("s_cbranch_scc1 K3_nocpf")
        a(f"s_cmp_ge_u32 s11, {CODEPF}")
        a("s_cbranch_scc1 K3_nocpf")
        a("s_getpc_b64 s[16:17]")
        a.label("K3_pc")
        a("s_sub_u32 s16, s16, K3_pc-K3_code_begin")
        a("s_subb_u32 s17, s17, 0")
        a("s_mov_b32 s18, K3_code_end-K3_code_begin")
        a("s_mov_b32 s19, 0x20000")
        a("v_lshlrev_b32 v16, 7, v2")
        for i in range(6):
            a(f"s_mov_b32 s20, {8192*i}")
            a("buffer_load_dword v195, v16, s[16:19], s20 offen")
        a.label("K3_nocpf")
    if TLBW:
        a("s_cmp_lg_u32 s3, 3")
        a("s_cbranch_scc1 K3_notlb")
        a(f"s_cmp_ge_u32 s11, {TLBW}")
        a("s_cbranch_scc1 K3_notlb")
        a("v_lshlrev_b32 v16, 16, v2")
        for p, nb, offs in ((P_K, 4, (0,)), (P_V, 4, (0,)), (P_H, 4, (0,)), (P_Q, 4, (0,)), (P_WO, 2, (0,)), (P_OUT, 8, (0, 4)), (P_WS, 20, (0, 8, 12, 16))):
            srd(a, 16, p, nb * MB)
            for o in offs:
                a(f"s_mov_b32 s20, {o*MB}")
                a("buffer_load_dword v195, v16, s[16:19], s20 offen nt")
        a.label("K3_notlb")
    a("s_lshl_b32 s46, s11, 7")
    a("s_lshl_b32 s47, s10, 2")
    a("s_add_u32 s47, s47, s46")
    if PREC:
        pre_compute = prepass(a, 3, P_K, P_V, P_SHK, " sc1", P_WS, NTO)
    if not L2PF:
        a("s_cmp_ge_u32 s3, 2")
        a(f"s_cselect_b32 s48, s{P_V}, s{P_K}")
        a(f"s_cselect_b32 s49, s{P_V+1}, s{P_K+1}")
        a(f"s_mov_b32 s50, {4*MB}")
        a("s_mov_b32 s51, 0x20000")
        a("v_lshrrev_b32 v193, 2, v2")
        a("v_lshlrev_b32 v193, 11, v193")
        a("v_and_b32 v16, 3, v2")
        a("v_lshl_add_u32 v193, v16, 7, v193")
        a("s_lshr_b32 s45, s2, 2")
        a("s_lshl_b32 s45, s45, 16")
        a("s_lshl_b32 s46, s36, 15")
        a("s_add_u32 s45, s45, s46")
        a("s_and_b32 s46, s2, 3")
        a("s_lshl_b32 s46, s46, 9")
        a("s_add_u32 s45, s45, s46")
        if "2" in XP:
            a(f"s_mov_b32 s45, {16*MB}")
    a("v_mov_b32 v200, v15")
    for part in range(4):
        if part < 3:
            a(f"s_cmp_lg_u32 s3, {part}")
            a(f"s_cbranch_scc1 K3_e3_{part+1}")
        k2_prefetch_setup(a, part, 194, 64, 68, P_H, P_Q, P_WO)
        if part < 3:
            a("s_branch K3_e3_done")
            a.label(f"K3_e3_{part+1}")
    a.label("K3_e3_done")
    a("v_mov_b32 v15, v200")
    a(f"s_and_b32 s55, s11, {NDUTY-1}")
    a(f"s_add_u32 s55, s55, {DUTY0}")
    a(f"s_and_b32 s52, s11, {E2_N-1}")
    a(f"s_add_u32 s52, s52, {E2_0}")
    a("s_sub_u32 s52, s52, s55")
    a("s_sub_u32 s52, s52, 1")
    a("s_mov_b32 s54, 0")
    a("s_lshr_b32 s70, s11, 2")
    a(f"s_and_b32 s70, s70, {E3_N-1}")
    a(f"s_add_u32 s70, s70, {E3_0 if '3' not in XP else 1000}")
    if E3W:
        a("s_cmp_lt_u32 s3, 2")
        a("s_cselect_b32 s70, 1000, s70")
    a("s_cmp_eq_u32 s3, 3")
    a(f"s_cselect_b32 s71, {F1N-NLEAD}, 1000")
    a("s_mov_b32 s53, 0")
    if PREC:
        pre_compute()
    if FILLC:
        srd_off(a, 16, P_WS, WS_OF, 4 * MB)
        srd_off(a, 20, P_WS, WS_KVP, 2 * MB)
        srd_off(a, 24, P_WS, WS_ZP, 64 * 1024)
        a("s_lshl_b32 s28, s12, 3")
        a("s_lshl_b32 s29, s4, 1")
        a("s_add_u32 s28, s28, s29")
        a("s_lshl_b32 s28, s28, 15")
        a("s_lshr_b32 s29, s15, 1")
        a("s_lshl_b32 s29, s29, 11")
        a("s_add_u32 s28, s28, s29")
        a("s_add_u32 s29, s28, 32768")
        a("s_lshl_b32 s30, s5, 4")
        a("s_add_u32 s30, s30, s12")
        a("s_lshl_b32 s31, s30, 7")
        a("s_lshl_b32 s30, s30, 12")
        a("s_lshl_b32 s32, s36, 10")
        a("s_add_u32 s30, s30, s32")
        for i in range(4):
            a(f"v_mov_b32 v{20+i}, 0")
        a("v_and_b32 v18, 7, v2")
        a("v_lshlrev_b32 v18, 4, v18")
        a("buffer_store_dwordx4 v[20:23], v3, s[16:19], s28 offen sc1")
        a("buffer_store_dwordx4 v[20:23], v3, s[16:19], s28 offen offset:1024 sc1")
        a("buffer_store_dwordx4 v[20:23], v3, s[16:19], s29 offen sc1")
        a("buffer_store_dwordx4 v[20:23], v3, s[16:19], s29 offen offset:1024 sc1")
        a("buffer_store_dwordx4 v[20:23], v3, s[20:23], s30 offen sc1")
        a("buffer_store_dwordx4 v[20:23], v18, s[24:27], s31 offen sc1")
    a("s_lshl_b32 s38, s36, 6")
    a("v_add_u32 v16, s38, v15")
    a("v_lshrrev_b32 v17, 1, v15")
    a("v_lshlrev_b32 v16, 7, v16")
    a("v_xor_b32 v17, v14, v17")
    a("v_lshl_add_u32 v4, v17, 4, v16")
    a("v_xor_b32 v5, 64, v4")
    a(f"v_add_u32 v6, {2*STAGE}, v4")
    a(f"v_add_u32 v7, {2*STAGE}, v5")
    a("v_bfe_u32 v17, v2, 2, 2")
    a("v_and_b32 v18, 3, v2")
    a("v_lshlrev_b32 v17, 6, v17")
    a("v_lshl_add_u32 v17, v18, 3, v17")
    a("v_and_b32 v18, 1, v14")
    a("v_lshl_add_u32 v17, v18, 10, v17")
    a("v_lshl_add_u32 v17, v18, 5, v17")
    a("v_lshrrev_b32 v18, 1, v14")
    a("v_mul_u32_u24 v18, 6144, v18")
    a("v_add_u32 v17, v17, v18")
    a("s_lshl_b32 s38, s37, 8")
    a("s_add_u32 s38, s38, 16384")
    a("v_add_u32 v8, s38, v17")
    a("v_xor_b32 v9, 32, v8")
    a(f"v_add_u32 v10, {2*STAGE}, v8")
    a(f"v_add_u32 v11, {2*STAGE}, v9")
    SB = [16, 56]

    def accr(kind, mt, dt):
        return 96 + 32 * kind + (mt * 2 + dt) * 4

    for i in range(96, 192):
        a(f"v_mov_b32 v{i}, 0")
    for op in spf[:SPF_C]:
        a(op)
    a("s_waitcnt lgkmcnt(0)")
    srd_off(a, 28, P_WS, WS_KVP, 2 * MB)
    srd_off(a, 32, P_WS, WS_ZP, 64 * 1024)
    lg = Cnt(a, "lgkmcnt", 15)

    def reads(slot, t, st):
        sb = (slot & 1) * STAGE
        va = 4 + t + (2 if slot >= 2 else 0)
        vb = 10 if slot >= 2 else 8
        R = SB[st]

        def A(mt):
            return [(("A", mt, st), f"ds_read_b128 {vr(R+4*mt)}, v{va} offset:{sb + 2048*mt}")]

        def B(cb):
            seg, nh = cb // 2, cb % 2
            return [(("B", cb, st), f"ds_read_b64_tr_b16 {vr(R+16+4*cb+2*h,2)}, v{vb+nh} offset:{sb + t*12288 + seg*2048 + 512*h}") for h in range(2)]
        return A(0) + B(0) + A(1) + A(2) + A(3) + B(1) + B(2) + B(3) + B(4) + B(5)

    def group(st, nxt):
        R = SB[st]
        nxt = list(nxt)
        for cb in range(6):
            kind, dt = cb // 2, cb % 2
            for mt in range(4):
                lg.wait_for([("A", mt, st), ("B", cb, st)])
                fa, fb = R + 4 * mt, R + 16 + 4 * cb
                if kind == 0:
                    mfma16(a, accr(0, mt, dt), fb, fa)
                else:
                    mfma16(a, accr(kind, mt, dt), fa, fb)
                if nxt:
                    tag, txt = nxt.pop(0)
                    a(txt)
                    lg.issue(tag)

    a("s_barrier")
    stamp(a, 1)
    cstamp(a, 10)
    for tag, txt in reads(0, 0, 0):
        a(txt)
        lg.issue(tag)
    lg.drain()
    a("s_mov_b32 s39, 4")
    a.label("K3_loop")
    for slot in range(4):
        group(0, reads(slot, 1, 1))
        lg.drain()
        a("s_barrier")
        a("s_sub_u32 s55, s55, 1")
        a(f"s_cbranch_scc1 K3_event{slot}")
        a.label(f"K3_noev{slot}")
        a("s_sub_u32 s70, s70, 1")
        a(f"s_cbranch_scc1 K3_evB{slot}")
        a.label(f"K3_noevB{slot}")
        a("s_sub_u32 s71, s71, 1")
        a(f"s_cbranch_scc1 K3_evC{slot}")
        a.label(f"K3_noevC{slot}")
        group(1, reads((slot + 1) % 4, 0, 0))
        if slot == 3:
            a("s_sub_u32 s39, s39, 1")
            a("s_cmp_lg_u32 s39, 0")
            lg.drain()
    a("s_cbranch_scc1 K3_loop")
    stamp(a, 2)
    cstamp(a, 11)

    a(f"s_mov_b32 s44, {LOG2E}")
    a(f"s_mov_b32 s45, {LOG2E}")
    a(f"s_mov_b32 s46, {EPS}")
    a(f"s_mov_b32 s47, {EPS}")
    a(f"v_mov_b32 v10, {SYNC}")
    a("v_mov_b32 v11, 1")
    for et in range(2):
        for m in range(2):
            d = 16 + 4 * (2 * et + m)
            for hh in range(2):
                s = accr(2, 2 * m + hh, et)
                a(f"v_cvt_pk_bf16_f32 v{d+2*hh}, v{s}, v{s+1}")
                a(f"v_cvt_pk_bf16_f32 v{d+2*hh+1}, v{s+2}, v{s+3}")
    for i in range(4):
        a(f"v_mov_b32 v{48+i}, 0x3f803f80")
    KV, ZZ, T = 160, 176, 52
    for m in range(2):
        for dt in range(2):
            for hh in range(2):
                s = accr(1, 2 * m + hh, dt)
                a(f"v_cvt_pk_bf16_f32 v{T+2*hh}, v{s}, v{s+1}")
                a(f"v_cvt_pk_bf16_f32 v{T+2*hh+1}, v{s+2}, v{s+3}")
            unpack4(a, T, T)
            kf = 32 + 4 * (2 * dt + m)
            phi8(a, T, kf, 44, 46)
            for et in range(2):
                mfma16(a, KV + 4 * (2 * et + dt), kf, 16 + 4 * (2 * et + m), "0" if m == 0 else None)
            mfma16(a, ZZ + 4 * dt, kf, 48, "0" if m == 0 else None)
    a("s_lshl_b32 s43, s37, 12")
    a(f"s_add_u32 s43, s43, {XCH}")
    a("v_add_u32 v4, s43, v3")
    a("s_lshl_b32 s43, s37, 7")
    a(f"s_add_u32 s43, s43, {XCZ}")
    a("v_lshlrev_b32 v5, 5, v14")
    a("v_add_u32 v5, s43, v5")
    a("s_lshl_b32 s43, s37, 2")
    a("v_add_u32 v6, s43, v10")
    a("s_cmp_eq_u32 s36, 0")
    a("s_cbranch_scc1 K3_wr0")
    for qd in range(4):
        a(f"ds_write_b128 v4, {vr(KV+4*qd)} offset:{1024*qd}")
    for dt in range(2):
        a(f"ds_write_b128 v5, {vr(ZZ+4*dt)} offset:{16*dt}")
    a("s_waitcnt lgkmcnt(0)")
    lds_signal(a, 6, S_X, 11)
    a("s_branch K3_q")
    a.label("K3_wr0")
    a("s_lshl_b32 s48, s5, 4")
    a("s_add_u32 s48, s48, s12")
    a("s_lshl_b32 s49, s48, 12")
    a("s_lshl_b32 s50, s48, 7")
    a("v_lshlrev_b32 v7, 4, v14")
    lds_wait(a, "K3_wx", 6, S_X, 1, 8, 42)
    for qd in range(4):
        a(f"ds_read_b128 {vr(16+4*qd)}, v4 offset:{1024*qd}")
    for dt in range(2):
        a(f"ds_read_b128 {vr(32+4*dt)}, v5 offset:{16*dt}")
    for qd in range(6):
        a(f"s_waitcnt lgkmcnt({5-qd})")
        a(f"v_pk_add_f32 {vr(KV+4*qd,2)}, {vr(KV+4*qd,2)}, {vr(16+4*qd,2)}")
        a(f"v_pk_add_f32 {vr(KV+4*qd+2,2)}, {vr(KV+4*qd+2,2)}, {vr(16+4*qd+2,2)}")
        if BP and qd < 4:
            d = 40 + 2 * qd
            a(f"v_cvt_pk_bf16_f32 v{d}, v{KV+4*qd}, v{KV+4*qd+1}")
            a(f"v_cvt_pk_bf16_f32 v{d+1}, v{KV+4*qd+2}, v{KV+4*qd+3}")
            a(f"v_or_b32 v{d}, 1, v{d}")
            a(f"v_or_b32 v{d+1}, 1, v{d+1}")
            if qd & 1:
                a(f"buffer_store_dwordx4 {vr(d-2)}, v3, s[28:31], s49 offen offset:{1024*(qd//2)} sc1")
            continue
        for i in range(4):
            a(f"v_or_b32 v{KV+4*qd+i}, 1, v{KV+4*qd+i}")
        if qd < 4:
            a(f"buffer_store_dwordx4 {vr(KV+4*qd)}, v3, s[28:31], s49 offen offset:{1024*qd} sc1")
    a("s_mov_b32 exec_lo, 0x00010001")
    a("s_mov_b32 exec_hi, 0x00010001")
    for dt in range(2):
        a(f"buffer_store_dwordx4 {vr(ZZ+4*dt)}, v7, s[32:35], s50 offen offset:{64*dt} sc1")
    a("s_mov_b64 exec, -1")
    lds_signal(a, 10, S_KVS, 11)
    a.label("K3_q")
    stamp(a, 3)
    a("s_lshl_b32 s43, s3, 12")
    a(f"s_add_u32 s43, s43, {PQ_BASE}")
    a("v_add_u32 v4, s43, v3")
    for mt in range(4):
        d = 80 + 4 * mt
        for dt in range(2):
            sr = accr(0, mt, dt)
            a(f"v_cvt_pk_bf16_f32 v{T+2*dt}, v{sr}, v{sr+1}")
            a(f"v_cvt_pk_bf16_f32 v{T+2*dt+1}, v{sr+2}, v{sr+3}")
        unpack4(a, T, T)
        phi8(a, T, d, 44, 46)
        a(f"ds_write_b128 v4, {vr(d)} offset:{1024*mt}")
    a("s_lshl_b32 s43, s3, 2")
    a("v_add_u32 v9, s43, v10")
    if CV32:
        a("v_and_b32 v6, 3, v2")
        a("v_bfe_u32 v7, v2, 2, 2")
        a("v_bfe_u32 v4, v2, 4, 1")
        a("v_lshrrev_b32 v5, 5, v2")
        a("v_lshlrev_b32 v12, 5, v4")
        a("v_lshl_add_u32 v12, v6, 3, v12")
        a("v_lshl_add_u32 v12, v5, 6, v12")
        a("v_lshlrev_b32 v7, 3, v7")
        a("v_sub_u32 v12, v12, v7")
        a("s_add_u32 s43, s7, 32")
        a("v_add_u32 v12, s43, v12")
        a("v_lshlrev_b32 v13, 8, v4")
        a("v_lshl_add_u32 v13, v6, 6, v13")
        a("v_add_u32 v13, v13, v7")
        a("v_lshlrev_b32 v5, 6, v5")
        a("v_sub_u32 v13, v13, v5")
        a(f"s_add_u32 s43, s7, {CV_UB-384}")
        a("v_add_u32 v13, s43, v13")
    else:
        a("v_and_b32 v6, 3, v2")
        a("v_bfe_u32 v7, v2, 2, 2")
        a("v_add_u32 v12, v6, v7")
        a("v_lshlrev_b32 v12, 3, v12")
        a("v_lshl_add_u32 v12, v14, 6, v12")
        a(f"s_add_u32 s43, s7, {CV_HB-24}")
        a("v_add_u32 v12, s43, v12")
        a("v_lshlrev_b32 v13, 5, v6")
        a("v_lshlrev_b32 v7, 3, v7")
        a("v_sub_u32 v13, v13, v7")
        a("v_lshlrev_b32 v7, 6, v14")
        a("v_sub_u32 v13, v13, v7")
        a(f"s_add_u32 s43, s7, {CV_UB+24-32}")
        a("v_add_u32 v13, s43, v13")
    a(f"s_add_u32 s43, s7, {CV_UB}")
    a("v_add_u32 v8, s43, v3")
    a("s_waitcnt lgkmcnt(0)")
    lds_signal(a, 9, S_PQ, 11)
    stamp(a, 4)
    lds_wait(a, "K3_whu", 9, S_HU, 1, 16, 42)
    stamp(a, 5)

    HH, FU = 32, 96
    ACC = [16, 20, 24, 28]
    T2, T1, YV, PK = [224, 225], [226, 227], [228, 229], [232, 236, 240, 244]
    lg.q = []

    def fu_reads(s):
        for hf in range(2):
            a(f"ds_read_b64_tr_b16 {vr(FU+4*s+2*hf,2)}, v13 offset:{128*s + 32*(1-hf)}")
            lg.issue(("fu", s))

    def h_reads(t):
        for hf in range(2):
            a(f"ds_read_b64_tr_b16 {vr(HH+4*t+2*hf,2)}, v12 offset:{256*t + 32*hf}")
            lg.issue(("h", t))

    def epi(Q):
        ops = []
        R0 = ACC[Q % 4]
        R1, R2, R3 = R0 + 1, R0 + 2, R0 + 3
        cur, prv = Q & 1, (Q & 1) ^ 1
        if Q == 0:
            ops.append(f"v_add_f32_dpp v{T2[cur]}, v{R3}, v{R2} wave_shr:1 {DPP} bound_ctrl:0")
            ops.append(f"v_add_f32_dpp v{T1[cur]}, v{T2[cur]}, v{R1} wave_shr:1 {DPP} bound_ctrl:0")
            ops.append(f"v_add_f32_dpp v{YV[cur]}, v{T1[cur]}, v{R0} wave_shr:1 {DPP} bound_ctrl:0")
        else:
            r3p = ACC[(Q - 1) % 4] + 3
            ops.append(f"v_add_f32_dpp v{T2[cur]}, v{r3p}, v{R2} wave_ror:1 {DPP}")
            ops.append(f"v_add_f32_dpp v{T1[cur]}, v{T2[prv]}, v{R1} wave_ror:1 {DPP}")
            ops.append(f"v_add_f32_dpp v{YV[cur]}, v{T1[prv]}, v{R0} wave_ror:1 {DPP}")
            ops.append(f"v_add_f32_dpp v{T2[cur]}, v{R3}, v{R2} wave_shr:1 {DPP}")
            ops.append(f"v_add_f32_dpp v{T1[cur]}, v{T2[cur]}, v{R1} wave_shr:1 {DPP}")
            ops.append(f"v_add_f32_dpp v{YV[cur]}, v{T1[cur]}, v{R0} wave_shr:1 {DPP}")
        if Q & 1:
            p = PK[Q // 8] + (Q % 8) // 2
            ops.append(f"v_cvt_pk_bf16_f32 v{p}, v{YV[0]}, v{YV[1]}")
            ops.append(f"v_or_b32 v{p}, 1, v{p}")
        return ops

    if CV32:
        conv32(a, lg, PK)
    else:
        PRE = 3
        for c in range(PRE):
            fu_reads(c)
            if c % 2 == 0:
                h_reads(c // 2)
        pending = []
        for c in range(32):
            nst = c // 2 + 1
            for t in range(nst):
                s = c - 2 * t
                lg.wait_for([("fu", s), ("h", t)])
                mfma16(a, ACC[c % 4], FU + 4 * s, HH + 4 * t, "0" if t == 0 else None)
                if t == 0 and c + PRE < 32:
                    fu_reads(c + PRE)
                    if (c + PRE) % 2 == 0:
                        h_reads((c + PRE) // 2)
                if t == 0 and c >= 2:
                    assert not pending
                    pending = epi(c - 2)
                k = max(1, -(-len(pending) // (nst - t))) if pending else 0
                for _ in range(k):
                    a(pending.pop(0))
        for Q in (30, 31):
            for op in epi(Q):
                a(op)
    srd_off(a, 28, P_WS, WS_UT, 4 * MB)
    a("s_lshl_b32 s40, s6, 12")
    for g in range(4):
        a(f"buffer_store_dwordx4 {vr(PK[g])}, v3, s[28:31], s40 offen offset:{1024*g} sc1")
    a("s_and_b32 s40, s10, 3")
    a("s_lshl_b32 s40, s40, 2")
    a("s_and_b32 s41, s11, 3")
    a("s_add_u32 s40, s40, s41")
    a("s_lshl_b32 s41, s40, 3")
    a("s_lshl_b32 s42, s3, 1")
    a("s_add_u32 s41, s41, s42")
    a("s_lshl_b32 s48, s41, 15")
    a("s_mov_b32 s47, s48")
    a("v_lshrrev_b32 v5, 5, v2")
    a("v_and_b32 v6, 1, v14")
    a("v_lshlrev_b32 v12, 15, v6")
    a("v_lshl_add_u32 v12, v5, 8, v12")
    a("v_lshl_add_u32 v12, v15, 4, v12")
    srd_off(a, 28, P_WS, WS_OF, 4 * MB)
    srd(a, 32, P_OUT, 8 * MB)
    a("s_waitcnt lgkmcnt(0)")
    lds_signal(a, 9, S_CD, 11)
    stamp(a, 6)
    if CPOST:
        a("s_lshl_b32 s16, s10, 1")
        a("s_lshr_b32 s17, s11, 4")
        a("s_add_u32 s16, s16, s17")
        a("s_and_b32 s17, s11, 15")
        a("s_lshl_b32 s17, s17, 2")
        a("s_add_u32 s17, s17, s4")
        a("s_lshr_b32 s18, s17, 4")
        a("s_and_b32 s17, s17, 15")
        a("s_lshl_b32 s19, s18, 9")
        a("s_lshl_b32 s64, s17, 2")
        a("s_add_u32 s19, s19, s64")
        a("s_lshl_b32 s64, s19, 11")
        a("s_lshl_b32 s65, s16, 7")
        a("s_add_u32 s64, s64, s65")
        a("s_lshl_b32 s72, s19, 12")
        a("s_add_u32 s72, s72, s65")
        a("s_lshl_b32 s73, s16, 18")
        a("s_lshl_b32 s65, s18, 10")
        a("s_add_u32 s73, s73, s65")
        a("s_lshl_b32 s65, s17, 6")
        a("s_add_u32 s73, s73, s65")
        a("s_add_u32 s65, s73, 4096")
        a("s_add_u32 s66, s73, 8192")
        a("s_add_u32 s67, s73, 12288")
        a("v_lshlrev_b32 v224, 12, v14")
        a("v_lshl_add_u32 v224, v15, 3, v224")
        a("v_lshlrev_b32 v225, 14, v15")
        a("v_lshl_add_u32 v225, v14, 4, v225")
        a("v_lshlrev_b32 v4, 11, v14")
        a("v_lshl_add_u32 v4, v15, 3, v4")
        srd(a, 16, P_Q, 4 * MB)
        srd_off(a, 20, P_WS, WS_UT, 4 * MB)
        for jj in range(8):
            a(f"buffer_load_dwordx2 {vr(208+2*jj,2)}, v4, s[16:19], s64 offen")
            a(f"s_add_u32 s64, s64, {64*2048}")
        a("s_waitcnt vmcnt(0)")
        a(f"s_mov_b32 s43, {RETRY_MAX}")
        a.label("K3_cp")
        for ci, sr in enumerate((73, 65, 66, 67)):
            a(f"buffer_load_dwordx4 {vr(16+4*ci)}, v225, s[20:23], s{sr} offen sc1")
        a(f"ds_read_b32 v49, v10 offset:{S_WOM}")
        a("s_waitcnt vmcnt(0) lgkmcnt(0)")
        and_reduce(a, 48, range(16, 32))
        a("v_readfirstlane_b32 s42, v49")
        a("v_cmp_eq_u32 vcc, 0, v48")
        a("s_cmp_eq_u64 vcc, 0")
        a("s_cbranch_scc1 K3_cp_ok")
        a("s_cmp_ge_u32 s42, 4")
        a("s_cbranch_scc1 K3_cp_skip")
        a("s_sub_u32 s43, s43, 1")
        a("s_cbranch_scc1 K3_cp_skip")
        a("s_sleep 6")
        a("s_branch K3_cp")
        a.label("K3_cp_ok")
        lds_signal(a, 9, S_PD, 11)
        post_compute(a, 208, True)
        a.label("K3_cp_skip")
    lds_wait(a, "K3_wwo", 10, S_WOM, 4, 80, 42)
    if CPOST:
        lds_signal(a, 9, S_G2, 11)
    stamp(a, 7)
    cstamp(a, 12)
    vm = Cnt(a, "vmcnt", 63)
    AR = 96
    D = ADEPTH
    if "a" in XP:
        srd(a, 28, P_X, 4 * MB)
        a("s_lshl_b32 s48, s12, 18")
        a("s_lshl_b32 s47, s3, 16")
        a("s_add_u32 s48, s48, s47")

    def aload(h):
        for f in range(2):
            r = AR + 8 * (h % D) + 4 * f
            a(f"buffer_load_dwordx4 {vr(r)}, v12, s[28:31], s48 offen offset:{1024*(h%4)+512*f}{ASC}")
            vm.issue(("A", h))
        if h % 4 == 3:
            a("s_add_u32 s48, s48, 4096")

    if G2PRIO:
        a(f"s_setprio {G2PRIO}")
    for h in range(AINIT):
        aload(h)
    anext = [AINIT]
    a("v_bfe_u32 v4, v2, 2, 2")
    a("v_and_b32 v7, 3, v2")
    a("v_lshlrev_b32 v4, 6, v4")
    a("v_lshl_add_u32 v4, v7, 3, v4")
    a("v_lshl_add_u32 v4, v5, 9, v4")
    a("v_xor_b32 v7, v6, v5")
    a("v_lshl_add_u32 v13, v7, 5, v4")
    a(f"v_add_u32 v4, {WO_BASE}, v13")
    a(f"v_add_u32 v8, {WO_BASE + 65536}, v13")

    def check_ops(g):
        r = AR + 8 * ((4 * g) % D)
        ops = [f"v_bitop3_b32 v81, v{r}, v{r+1}, v{r+2} bitop3:0x80"]
        for i in range(3, 31, 2):
            ops.append(f"v_bitop3_b32 v81, v81, v{r+i}, v{r+i+1} bitop3:0x80")
        ops.append(f"v_bitop3_b32 v81, v81, v{r+31}, 1 bitop3:0x80")
        return ops

    def check_branch(g):
        if "a" in XP:
            a.label(f"K3_retry{g}_ret")
            return
        a("v_cmp_eq_u32 vcc, 0, v81")
        a("s_cmp_lg_u64 vcc, 0")
        a(f"s_cbranch_scc1 K3_retry{g}")
        a.label(f"K3_retry{g}_ret")

    def retry_block(g):
        a.label(f"K3_retry{g}")
        a(f"s_mov_b32 s46, {RETRY_MAX}")
        a(f"s_add_u32 s44, s47, {4096*g}")
        a.label(f"K3_retry{g}_l")
        a("s_add_u32 s75, s75, 1")
        a("s_sleep 4")
        for hh in range(4):
            for f in range(2):
                r = AR + 8 * ((4 * g + hh) % D) + 4 * f
                a(f"buffer_load_dwordx4 {vr(r)}, v12, s[28:31], s44 offen offset:{1024*hh+512*f} sc1")
        a("s_waitcnt vmcnt(0)")
        for op in check_ops(g):
            a(op)
        a("v_cmp_eq_u32 vcc, 0, v81")
        a("s_sub_u32 s46, s46, 1")
        a(f"s_cbranch_scc1 K3_retry{g}_ret")
        a("s_cmp_lg_u64 vcc, 0")
        a(f"s_cbranch_scc1 K3_retry{g}_l")
        a(f"s_branch K3_retry{g}_ret")

    lg.q = []
    BS = [48, 64]

    def breads(h):
        out = []
        st = h & 1
        if h < 16:
            vb, off = 4, h * 4096
        elif h < 28:
            vb, off = 8, (h - 16) * 4096
        else:
            vb, off = 13, (h - 28) * CV_REG
        for f in range(2):
            for nb in range(2):
                for hf in range(2):
                    out.append(((h, f, nb), f"ds_read_b64_tr_b16 {vr(BS[st]+8*f+4*nb+2*hf,2)}, v{vb} offset:{off + f*1024 + hf*2048 + nb*256}"))
        return out

    for tag, txt in breads(0):
        a(txt); lg.issue(tag)
    vm.wait_for([("A", 3)])
    for op in check_ops(0):
        a(op)
    check_branch(0)
    chk = []
    for h in range(32):
        nxt = []
        if h == GS and not CPOST:
            lds_signal(a, 9, S_G2, 11)
            lg.issue("sig")
        if h + 1 < 32:
            if h + 1 == 28:
                lg.drain()
                lds_wait(a, "K3_wwt", 10, S_WOT, 4, 80, 42)
            nxt = breads(h + 1)
        if h % 4 == 2 and h + 2 < 32:
            vm.wait_for([("A", h + 5)])
            chk = check_ops(h // 4 + 1) if "k" not in XP else []
        for f in range(2):
            for nb in range(2):
                lg.wait_for([(h, f, nb)])
                d = 16 + 16 * nb
                cs = "0" if (h == 0 and f == 0) else vr(d, 16)
                a(f"v_mfma_f32_32x32x16_bf16 {vr(d,16)}, {vr(BS[h&1]+8*f+4*nb)}, {vr(AR+8*(h%D)+4*f)}, {cs}")
                for _ in range(2):
                    if nxt:
                        tag, txt = nxt.pop(0)
                        a(txt); lg.issue(tag)
                    if chk:
                        a(chk.pop(0))
        if h % 4 == 3 and h + 1 < 32:
            assert not chk
            check_branch(h // 4 + 1)
        for _ in range(2):
            if anext[0] < 32 and anext[0] <= h + D and "n" not in XP:
                aload(anext[0]); anext[0] += 1
    stamp(a, 8)
    cstamp(a, 13)
    a("v_and_b32 v4, 31, v2")
    a("v_lshlrev_b32 v4, 12, v4")
    a("v_lshl_add_u32 v4, v5, 4, v4")
    a("s_lshr_b32 s36, s10, 2")
    a("s_lshl_b32 s36, s36, 3")
    a("s_lshr_b32 s37, s11, 2")
    a("s_add_u32 s36, s36, s37")
    a("s_lshl_b32 s38, s41, 16")
    a("s_lshl_b32 s39, s36, 7")
    a("s_add_u32 s38, s38, s39")
    a("s_add_u32 s38, s38, 2048")
    for nb in range(2):
        for kp in range(2):
            P = 80 + 8 * nb + 4 * kp
            t0 = 16 + 16 * nb + 8 * kp
            for i in range(4):
                a(f"v_cvt_pk_bf16_f32 v{P+i}, v{t0+2*i}, v{t0+2*i+1}")
            a(f"v_permlane32_swap_b32 v{P}, v{P+2}")
            a(f"v_permlane32_swap_b32 v{P+1}, v{P+3}")
            a(f"buffer_store_dwordx4 {vr(P)}, v4, s[32:35], s38 offen offset:{64*nb+32*kp}{NTS}{OS2}")
    stamp_flush(a, 9)
    a("s_endpgm")
    for g in range(8):
        retry_block(g)
    for slot in range(4):
        a.label(f"K3_event{slot}")
        a("s_add_u32 s54, s54, 1")
        a("s_cmp_lg_u32 s54, 1")
        a(f"s_cbranch_scc1 K3_ev2_{slot}")
        a(f"buffer_load_dword v195, v192, s[40:43], s44 offen{NTT}")
        if L2PF:
            a(f"buffer_load_dword v195, v193, s[48:51], s45 offen{NTT}")
            a("s_mov_b32 s55, 1000")
        else:
            a("s_mov_b32 s55, s52")
        a(f"s_branch K3_noev{slot}")
        a.label(f"K3_ev2_{slot}")
        if PREC or FILLC:
            a("s_waitcnt vmcnt(0)")
        a(f"buffer_load_dword v195, v193, s[48:51], s45 offen{NTT}")
        a("s_mov_b32 s55, 1000")
        a(f"s_branch K3_noev{slot}")
        a.label(f"K3_evB{slot}")
        a(f"buffer_load_dword v195, v194, s[64:67], s68 offen{NTT}")
        a(f"buffer_load_dword v195, v194, s[64:67], s69 offen{NTT}")
        a(f"s_branch K3_noevB{slot}")
        a.label(f"K3_evC{slot}")
        a("s_add_u32 s53, s53, 1")
        a("s_cmp_lg_u32 s53, 1")
        a(f"s_cbranch_scc1 K3_ev4_{slot}")
        a("buffer_load_dword v196, v199, s[56:59], 0 offen sc1")
        a(f"s_mov_b32 s71, {NLEAD-1}")
        a(f"s_branch K3_noevC{slot}")
        a.label(f"K3_ev4_{slot}")
        a("s_cmp_lg_u32 s53, 2")
        a(f"s_cbranch_scc1 K3_ev6_{slot}")
        a("s_waitcnt vmcnt(0)")
        a("v_readfirstlane_b32 s46, v196")
        a("s_mov_b64 exec, 1")
        a("s_cmp_lg_u32 s46, 0")
        a(f"s_cbranch_scc1 K3_ev5_{slot}")
        a("v_mov_b32 v196, v198")
        a("v_mov_b32 v197, 0")
        a("buffer_atomic_cmpswap v[196:197], v199, s[56:59], 0 offen sc0 sc1")
        a("s_waitcnt vmcnt(0)")
        a("v_cmp_eq_u32 vcc, 0, v196")
        a("v_cndmask_b32 v196, v196, v198, vcc")
        a.label(f"K3_ev5_{slot}")
        a("buffer_store_dword v196, v199, s[60:63], s47 offen sc1")
        a("s_mov_b64 exec, -1")
        a(f"s_mov_b32 s71, {FLAGN-F1N-1 if not POSTPRE else 1000}")
        a(f"s_branch K3_noevC{slot}")
        a.label(f"K3_ev6_{slot}")
        a("s_mov_b64 exec, 1")
        a("buffer_store_dword v196, v199, s[60:63], s47 offen offset:32 sc1")
        a("s_mov_b64 exec, -1")
        a("s_mov_b32 s71, 1000")
        a(f"s_branch K3_noevC{slot}")

    a.label("K3_L")
    a("v_lshrrev_b32 v4, 3, v2")
    a("v_and_b32 v5, 7, v2")
    for jl in range(4):
        a(f"v_add_u32 v6, {4*(jl&1)}, v14")
        a("v_xor_b32 v6, v6, v5")
        a("v_lshlrev_b32 v6, 4, v6")
        a("v_lshl_add_u32 v6, v4, 11, v6")
        a(f"v_add_u32 v{240+jl}, {jl*(16384-1024)}, v6")
    a("v_lshrrev_b32 v6, 5, v2")
    a("v_bfe_u32 v7, v2, 2, 2")
    a("v_lshl_add_u32 v6, v6, 2, v7")
    a("v_mul_u32_u24 v6, 6144, v6")
    a("v_bfe_u32 v7, v2, 4, 1")
    a("v_lshl_add_u32 v6, v7, 6, v6")
    a("v_and_b32 v7, 3, v2")
    a("v_lshl_add_u32 v6, v7, 4, v6")
    a("v_xor_b32 v7, 32, v6")
    a("s_and_b32 s40, s13, 1")
    a("s_lshl_b32 s40, s40, 7")
    a(f"s_xor_b32 s41, s40, {128 if QX else 0}")
    binst = []
    for seg in range(3):
        for gg in range(2):
            ldsoff = seg * 2048 + gg * 1024
            m0sel, ioff = ldsoff // 4096, ldsoff % 4096
            reg = 244 + seg * 2 + gg
            a(f"v_add_u32 v{reg}, {8*gg*6144 + seg*2048 - ioff}, v{6+gg}")
            a(f"v_add_u32 v{reg}, s{41 if seg == 0 else 40}, v{reg}")
            binst.append((reg, m0sel, ioff))
    a("s_lshl_b32 s38, s12, 7")
    a("s_lshl_b32 s40, s4, 5")
    a("s_add_u32 s38, s38, s40")
    a("s_lshl_b32 s38, s38, 11")
    a("s_mul_i32 s39, s4, 98304")
    a("s_lshr_b32 s40, s13, 1")
    a("s_lshl_b32 s40, s40, 8")
    a("s_add_u32 s39, s39, s40")
    a("s_lshl_b32 s41, s4, 12")
    a("s_mul_i32 s42, s4, 6144")
    a("s_add_u32 s42, s42, 16384")
    srd(a, 16, P_X, 4 * MB)
    srd(a, 20, P_W, 6 * MB)
    vm = Cnt(a, "vmcnt", 63)

    def issue(kt):
        sb = (kt % NS) * STAGE
        a(f"s_add_u32 m0, s41, {sb}")
        for jl in range(4):
            a(f"buffer_load_dwordx4 v{240+jl}, s[16:19], s38 offen offset:{jl*1024}{NTG} lds")
            vm.issue(("st", kt))
        cur = -1
        for reg, m0sel, ioff in binst:
            if m0sel != cur:
                a(f"s_add_u32 m0, s42, {sb + 4096*m0sel}")
                cur = m0sel
            a(f"buffer_load_dwordx4 v{reg}, s[20:23], s39 offen offset:{ioff}{NTG} lds")
            vm.issue(("st", kt))
        a("s_add_u32 s38, s38, 128")
        a(f"s_add_u32 s39, s39, {64*6144}")

    for kt in range(PRO):
        issue(kt)
    srd(a, 24, P_K, 4 * MB)
    srd(a, 28, P_V, 4 * MB)
    srd(a, 32, P_SHK, 8192)
    srd_off(a, 44, P_WS, WS_UT, 4 * MB)
    srd_off(a, 48, P_WS, WS_OF, 4 * MB)
    srd_off(a, 52, P_WS, WS_KVP, 2 * MB)
    srd_off(a, 56, P_WS, WS_ZP, 64 * 1024)
    a("s_lshl_b32 s60, s2, 2")
    a("s_add_u32 s60, s60, s4")
    a("s_and_b32 s61, s60, 15")
    a("s_lshr_b32 s60, s60, 4")
    a("s_lshl_b32 s62, s60, 16")
    a("s_lshl_b32 s63, s61, 7")
    a("s_add_u32 s62, s62, s63")
    a("v_lshlrev_b32 v21, 14, v14")
    a("v_lshl_add_u32 v21, v15, 3, v21")
    a("v_add_u32 v21, s62, v21")
    a("s_lshl_b32 s63, s61, 9")
    a("v_lshlrev_b32 v22, 5, v15")
    a("s_lshl_b32 s62, s61, 18")
    a("s_lshl_b32 s64, s60, 6")
    a("s_add_u32 s62, s62, s64")
    a("v_lshlrev_b32 v19, 14, v15")
    a("v_lshl_add_u32 v19, v14, 4, v19")
    a("s_lshl_b32 s64, s12, 3")
    a("s_lshl_b32 s65, s4, 1")
    a("s_add_u32 s64, s64, s65")
    a("s_lshl_b32 s64, s64, 15")
    a("s_lshr_b32 s65, s15, 1")
    a("s_lshl_b32 s65, s65, 11")
    a("s_add_u32 s64, s64, s65")
    a("s_add_u32 s65, s64, 32768")
    a("s_lshl_b32 s66, s5, 4")
    a("s_add_u32 s66, s66, s12")
    a("s_lshl_b32 s67, s66, 7")
    a("s_lshl_b32 s66, s66, 12")
    a(f"s_lshl_b32 s68, s36, {10 if BP else 11}")
    a("s_add_u32 s66, s66, s68")
    for i in range(4):
        a(f"v_mov_b32 v{160+i}, 0")
    a("v_and_b32 v18, 7, v2")
    a("v_lshlrev_b32 v18, 4, v18")
    fills = [
        f"buffer_store_dwordx4 v[160:163], v3, s[48:51], s64 offen sc1{NTF}",
        f"buffer_store_dwordx4 v[160:163], v3, s[48:51], s64 offen offset:1024 sc1{NTF}",
        f"buffer_store_dwordx4 v[160:163], v3, s[48:51], s65 offen sc1{NTF}",
        f"buffer_store_dwordx4 v[160:163], v3, s[48:51], s65 offen offset:1024 sc1{NTF}",
        f"buffer_store_dwordx4 v[160:163], v3, s[52:55], s66 offen sc1{NTF}",
        f"buffer_store_dwordx4 v[160:163], v3, s[52:55], s66 offen offset:1024 sc1{NTF}",
        f"buffer_store_dwordx4 v[160:163], v18, s[56:59], s67 offen sc1{NTF}",
    ]
    if BP:
        del fills[5]
    W, KF, VF, KS = 72, 88, 110, 126
    loads = []
    for i in range(2):
        loads.append([f"buffer_load_dwordx4 {vr(24+4*i)}, v22, s[32:35], s63 offen offset:{16*i}"])
    for i in range(11):
        loads.append([f"v_add_u32 v23, {((i-3)*2048) & 0xffffffff}, v21", f"buffer_load_dwordx2 {vr(32+2*i,2)}, v23, s[24:27], 0 offen{NTO}"])
    for i in range(8):
        loads.append([f"v_add_u32 v23, {i*2048}, v21", f"buffer_load_dwordx2 {vr(54+2*i,2)}, v23, s[28:31], 0 offen{NTO}"])
    comp = []
    for ci in range(4):
        comp += [f"v_lshlrev_b32 v{W+ci}, 16, v{24+2*ci}", f"v_and_b32 v{W+4+ci}, 0xffff0000, v{24+2*ci}",
                 f"v_lshlrev_b32 v{W+8+ci}, 16, v{25+2*ci}", f"v_and_b32 v{W+12+ci}, 0xffff0000, v{25+2*ci}"]
    for cp in range(2):
        for i in range(11):
            comp += [f"v_lshlrev_b32 v{KF+2*i}, 16, v{32+2*i+cp}", f"v_and_b32 v{KF+2*i+1}, 0xffff0000, v{32+2*i+cp}"]
        for i in range(8):
            comp += [f"v_lshlrev_b32 v{VF+2*i}, 16, v{54+2*i+cp}", f"v_and_b32 v{VF+2*i+1}, 0xffff0000, v{54+2*i+cp}"]
        for i in range(16):
            comp.append(f"v_mul_f32 v{KS+i}, v{KF+i}, v{W+12+2*cp+(i&1)}")
        for j in (2, 1, 0):
            for i in range(16):
                comp.append(f"v_fmac_f32 v{KS+i}, v{KF+2*(3-j)+i}, v{W+4*j+2*cp+(i&1)}")
        for i in range(16):
            comp.append(f"v_mul_f32 v{KS+i}, v{KS+i}, v{VF+i}")
        O = 144 + 8 * cp
        for e in range(2):
            for i in range(4):
                comp.append(f"v_cvt_pk_bf16_f32 v{O+4*e+i}, v{KS+4*i+e}, v{KS+4*i+2+e}")
        for i in range(8):
            comp.append(f"v_and_b32 v{O+i}, -2, v{O+i}")
        for e in range(2):
            comp.append(("st", f"buffer_store_dwordx4 {vr(O+4*e)}, v19, s[44:47], s62 offen sc1"))
            comp.append("s_add_u32 s62, s62, 4096")
    PCE = env("PCE", FLAGN - 3)
    PCS = PL0 + NPL + env("PGAP", 0)
    NPC = PCE - PCS
    per = -(-len(comp) // NPC)
    a("v_lshrrev_b32 v6, 5, v2")
    a("v_bfe_u32 v7, v2, 2, 2")
    a("v_lshl_add_u32 v7, v6, 2, v7")
    a("v_lshlrev_b32 v7, 11, v7")
    a("v_bfe_u32 v8, v2, 4, 1")
    a("v_lshl_add_u32 v7, v8, 6, v7")
    a("v_and_b32 v8, 3, v2")
    a("v_lshlrev_b32 v6, 1, v6")
    a("v_xor_b32 v8, v8, v6")
    a("v_lshl_add_u32 v7, v8, 4, v7")
    for i in range(4):
        a(f"v_add_u32 v{232+i}, {i*(16384-1024)}, v7")
    a("s_lshl_b32 s69, s4, 16")
    a("s_lshr_b32 s70, s10, 2")
    a("s_lshl_b32 s70, s70, 3")
    a("s_lshr_b32 s71, s11, 2")
    a("s_add_u32 s70, s70, s71")
    a("s_lshl_b32 s70, s70, 7")
    a("s_add_u32 s69, s69, s70")
    a("s_lshl_b32 s70, s4, 12")
    a(f"s_add_u32 s70, s70, {WO_BASE}")
    a("s_lshl_b32 s71, s6, 12")
    a(f"v_mov_b32 v10, {SYNC}")
    a("v_mov_b32 v11, 1")
    a("s_lshl_b32 s43, s4, 2")
    a("v_add_u32 v9, s43, v10")

    def wo_issue(k):
        if k < 7:
            a(f"s_add_u32 m0, s70, {k*16384}")
        else:
            a("s_mov_b32 m0, s7")
        for i in range(4):
            a(f"buffer_load_dwordx4 v{232+i}, s[20:23], s69 offen offset:{i*1024}{NTG} lds")
            vm.issue("wo")
        a(f"s_add_u32 s69, s69, {128*2048}")

    def post_setup():
        a("s_lshl_b32 s16, s10, 1")
        a("s_lshr_b32 s17, s11, 4")
        a("s_add_u32 s16, s16, s17")
        a("s_and_b32 s17, s11, 15")
        a("s_lshl_b32 s17, s17, 2")
        a("s_add_u32 s17, s17, s4")
        a("s_lshr_b32 s18, s17, 4")
        a("s_and_b32 s17, s17, 15")
        a("s_lshl_b32 s19, s18, 9")
        a("s_lshl_b32 s64, s17, 2")
        a("s_add_u32 s19, s19, s64")
        a("s_lshl_b32 s64, s19, 11")
        a("s_lshl_b32 s65, s16, 7")
        a("s_add_u32 s64, s64, s65")
        a("s_lshl_b32 s72, s19, 12")
        a("s_add_u32 s72, s72, s65")
        a("s_lshl_b32 s73, s16, 18")
        a("s_lshl_b32 s65, s18, 10")
        a("s_add_u32 s73, s73, s65")
        a("s_lshl_b32 s65, s17, 6")
        a("s_add_u32 s73, s73, s65")
        a("s_add_u32 s65, s73, 4096")
        a("s_add_u32 s66, s73, 8192")
        a("s_add_u32 s67, s73, 12288")
        a("v_lshlrev_b32 v224, 12, v14")
        a("v_lshl_add_u32 v224, v15, 3, v224")
        a("v_lshlrev_b32 v225, 14, v15")
        a("v_lshl_add_u32 v225, v14, 4, v225")

    def q_loads():
        srd(a, 16, P_Q, 4 * MB)
        a("v_lshlrev_b32 v4, 11, v14")
        a("v_lshl_add_u32 v4, v15, 3, v4")
        for jj in range(8):
            a(f"buffer_load_dwordx2 {vr(QR+2*jj,2)}, v4, s[16:19], s64 offen{NTO}")
            vm.issue("q")
            a(f"s_add_u32 s64, s64, {64*2048}")

    QR = 208

    def h_issue():
        a(f"s_add_u32 m0, s7, {CV_HB}")
        for c in range(4):
            a(f"buffer_load_dwordx4 v3, s[16:19], s71 offen offset:{1024*c}{NTO} lds")
            vm.issue("h")
        a("s_lshl_b32 s43, s6, 1")
        a("v_mov_b32 v4, 0")
        a("buffer_load_ushort v164, v4, s[20:23], s43 offen")
        vm.issue("h")
        srd(a, 20, P_WO, 2 * MB)

    for kt in range(16):
        tags = [("st", kt)]
        if kt == F1N + 1:
            tags += ["fill"]
        if kt == FLAGN + 1:
            tags += ["ust"]
        vm.wait_for(tags)
        if kt == 14:
            a("s_waitcnt lgkmcnt(0)")
        a("s_barrier")
        if kt in (2, 5, 8, 11, 14):
            stamp(a, 10 + (2, 5, 8, 11, 14).index(kt))
        if kt == 0:
            for k2 in range(PRO, NS - 1):
                issue(k2)
        if kt + NS - 1 < 16:
            issue(kt + NS - 1)
        for op in spf[SPF_C + kt * SPF_L: SPF_C + (kt + 1) * SPF_L]:
            a(op)
        if FL0 <= kt < FL0 + len(fills) and "f" not in XP and not FILLC:
            a(fills[kt - FL0]); vm.issue("fill")
        if POSTPRE and kt in (14, 15):
            for grp in (loads[:13] if kt == 14 else loads[13:]):
                for op in grp:
                    a(op)
                vm.issue("pre")
        if PL0 <= kt < PL0 + NPL and "l" not in XP and not POSTPRE and not PREC:
            q = -(-len(loads) // NPL)
            for grp in loads[(kt - PL0) * q: (kt - PL0 + 1) * q]:
                for op in grp:
                    a(op)
                vm.issue("pre")
        if kt == 13:
            post_setup()
            srd(a, 16, P_H, 4 * MB)
            srd(a, 20, P_D, 2048)
            a("v_mov_b32 v4, 0")
            a("v_lshlrev_b32 v5, 2, v2")
            a(f"v_add_u32 v6, {SYNC}, v5")
            a("ds_write_b32 v6, v4")
            a("v_add_u32 v6, s7, v5")
            a(f"ds_write_b32 v6, v4 offset:{CV_UB-256}")
            if CV32:
                a(f"ds_write_b32 v6, v4 offset:{CV_UB-512}")
            a(f"v_and_b32 v6, {15 if CV32 else 7}, v2")
            a("v_lshlrev_b32 v6, 2, v6")
            a("v_add_u32 v6, s7, v6")
            a("ds_write_b32 v6, v4")
            h_issue()
            if QEARLY:
                q_loads()
        if PCS <= kt < PCE and not POSTPRE and not PREC:
            if kt == PCS:
                vm.wait_for(["pre"])
            for op in comp[:per]:
                if "c" in XP and not isinstance(op, tuple):
                    continue
                if isinstance(op, tuple):
                    if "u" in XP:
                        continue
                    a(op[1]); vm.issue("ust")
                else:
                    a(op)
            comp = comp[per:]
        if kt == 14 and EARLYWO >= 2:
            wo_issue(0); wo_issue(1)
        if kt == 15 and EARLYWO >= 4:
            wo_issue(2); wo_issue(3)
    assert POSTPRE or PREC or not comp
    a("s_barrier")
    stamp(a, 1)
    if POSTPRE:
        vm.wait_for(["pre"])
        for ci in range(4):
            a(f"v_lshlrev_b32 v{W+ci}, 16, v{24+2*ci}")
            a(f"v_and_b32 v{W+4+ci}, 0xffff0000, v{24+2*ci}")
            a(f"v_lshlrev_b32 v{W+8+ci}, 16, v{25+2*ci}")
            a(f"v_and_b32 v{W+12+ci}, 0xffff0000, v{25+2*ci}")
        for cp in range(2):
            for i in range(11):
                a(f"v_lshlrev_b32 v{KF+2*i}, 16, v{32+2*i+cp}")
                a(f"v_and_b32 v{KF+2*i+1}, 0xffff0000, v{32+2*i+cp}")
            for i in range(8):
                a(f"v_lshlrev_b32 v{VF+2*i}, 16, v{54+2*i+cp}")
                a(f"v_and_b32 v{VF+2*i+1}, 0xffff0000, v{54+2*i+cp}")
            for i in range(8):
                a(f"v_pk_mul_f32 {vr(KS+2*i,2)}, {vr(KF+2*i,2)}, {vr(W+12+2*cp,2)}")
            for j in (2, 1, 0):
                for i in range(8):
                    a(f"v_pk_fma_f32 {vr(KS+2*i,2)}, {vr(KF+2*(i+3-j),2)}, {vr(W+4*j+2*cp,2)}, {vr(KS+2*i,2)}")
            for i in range(8):
                a(f"v_pk_mul_f32 {vr(KS+2*i,2)}, {vr(KS+2*i,2)}, {vr(VF+2*i,2)}")
            O = 144 + 8 * cp
            for e in range(2):
                for i in range(4):
                    a(f"v_cvt_pk_bf16_f32 v{O+4*e+i}, v{KS+4*i+e}, v{KS+4*i+2+e}")
            for i in range(8):
                a(f"v_and_b32 v{O+i}, -2, v{O+i}")
            for e in range(2):
                a(f"buffer_store_dwordx4 {vr(O+4*e)}, v19, s[44:47], s62 offen sc1")
                a("s_add_u32 s62, s62, 4096")
    srd(a, 24, P_DBG, 256)
    srd(a, 32, P_OUT, 8 * MB)
    a("s_mov_b32 s40, 0")
    a("s_mov_b32 s42, 0")
    a("v_lshrrev_b32 v5, 1, v2")
    a("v_lshlrev_b32 v5, 7, v5")
    a("v_and_b32 v4, 1, v2")
    a("v_lshl_add_u32 v5, v4, 4, v5")
    a("v_mov_b32 v4, 0")
    a("buffer_load_dword v226, v4, s[24:27], 0 offen sc1")
    srd_off(a, 24, P_WS, WS_FLAG, 4096)
    a("v_lshlrev_b32 v6, 7, v15")
    a("v_lshl_add_u32 v6, v14, 4, v6")
    a("s_lshl_b32 s60, s15, 11")
    a("s_lshl_b32 s61, s15, 16")
    a(f"s_lshl_b32 s62, s36, {10 if BP else 11}")
    a("s_add_u32 s61, s61, s62")

    def flagcmp(r):
        for i in range(4):
            a(f"v_xor_b32 v{r+i}, v{r+i}, v226")
        a(f"v_or3_b32 v{r}, v{r}, v{r+1}, v{r+2}")
        a(f"v_or_b32 v{r}, v{r}, v{r+3}")
        a(f"v_cmp_ne_u32 vcc, 0, v{r}")

    def u_block(ret):
        a(f"s_add_u32 m0, s7, {CV_UB}")
        for c in range(4):
            a(f"buffer_load_dwordx4 v3, s[44:47], s71 offen offset:{1024*c} sc1 lds")
        a("s_mov_b32 s42, 1")
        a("s_waitcnt vmcnt(0) lgkmcnt(0)")
        lds_signal(a, 9, S_HU, 11)
        stamp(a, 3)
    a(f"s_mov_b32 s43, {RETRY_MAX}")
    a.label("K3_fp")
    a(f"buffer_load_dwordx4 {vr(24)}, v5, s[24:27], 0 offen sc1")
    a(f"buffer_load_dwordx4 {vr(28)}, v5, s[24:27], 0 offen offset:32 sc1")
    a("s_waitcnt vmcnt(0)")
    vm.q = []
    flagcmp(24)
    a("s_sub_u32 s43, s43, 1")
    a("s_cbranch_scc1 K3_fp_ok")
    a("s_cmp_eq_u64 vcc, 0")
    a("s_cbranch_scc1 K3_fp_ok")
    a("s_add_u32 s75, s75, 1")
    a("s_sleep 8")
    a("s_branch K3_fp")
    a.label("K3_fp_ok")
    if POSTPRE:
        a("s_mov_b64 exec, 1")
        a(f"ds_add_rtn_u32 v7, v10, v11 offset:{S_GO}")
        a("s_waitcnt lgkmcnt(0)")
        a("v_readfirstlane_b32 s43, v7")
        a("s_lshl_b32 s62, s11, 7")
        a("s_lshl_b32 s63, s10, 2")
        a("s_add_u32 s62, s62, s63")
        a("s_cmp_lg_u32 s43, 3")
        a("s_cbranch_scc1 K3_nof2")
        a("buffer_store_dword v226, v4, s[24:27], s62 offen offset:32 sc1")
        a.label("K3_nof2")
        a("s_mov_b64 exec, -1")
    stamp(a, 2)
    a("v_mov_b32 v4, s7")
    a(f"ds_read_u16 v7, v4 offset:{CV_HB}")
    a("v_lshlrev_b32 v164, 16, v164")
    a("s_waitcnt lgkmcnt(0)")
    a("v_lshlrev_b32 v7, 16, v7")
    a("v_add_f32 v7, v7, v164")
    a("v_cvt_pk_bf16_f32 v7, v7, v7")
    a(f"ds_write_b16 v4, v7 offset:{CV_HB}")
    flagcmp(28)
    a("s_cmp_lg_u64 vcc, 0")
    a("s_cbranch_scc1 K3_nou0")
    u_block(0)
    a.label("K3_nou0")
    if WAITKV:
        lds_wait(a, "K3_wkvs", 10, S_KVS, 2, 16, 62, sleep=1)
    PQR = 192

    def bulkA():
        for k in range(EARLYWO, 6):
            wo_issue(k)
        a("v_and_b32 v7, 31, v2")
        a("v_lshlrev_b32 v7, 11, v7")
        a(f"s_add_u32 s62, s69, {128*2048}")
        a("buffer_load_dword v165, v7, s[20:23], s62 offen")
        if CPOST:
            srd(a, 16, P_Q, 4 * MB)
            a("v_bfe_u32 v7, v2, 2, 3")
            a("v_lshlrev_b32 v7, 17, v7")
            a("v_and_b32 v8, 3, v2")
            a("v_lshl_add_u32 v7, v8, 11, v7")
            a("buffer_load_dword v165, v7, s[16:19], s64 offen")

    def pq_pick():
        a("s_lshl_b32 s43, s4, 12")
        a(f"s_add_u32 s43, s43, {PQ_BASE}")
        a("v_add_u32 v8, s43, v3")
        lds_wait(a, "K3_wpq", 9, S_PQ, 1, 16, 62, sleep=1)
        for mt in range(4):
            a(f"ds_read_b128 {vr(PQR+4*mt)}, v8 offset:{1024*mt}")
        a("s_waitcnt lgkmcnt(0)")

    if not ZFIRST:
        bulkA()
        pq_pick()
    if PG:
        vm.q = []
        a("s_setprio 2")
        a("s_mov_b32 s62, s61")
        for p in range(16):
            for dt in range(2):
                a(f"buffer_load_dwordx4 {vr(64+8*p+4*dt)}, v3, s[52:55], s62 offen offset:{1024*dt}{GSC}")
                vm.issue(("kv", p))
            a("s_add_u32 s62, s62, 4096")
    if not ZFIRST:
        wo_issue(6)
    if PG:
        if not QEARLY and not CPOST:
            q_loads()
        for i in range(8):
            a(f"v_mov_b32 v{56+i}, 0")
        a("s_mov_b32 s63, 0")
        for p in range(16):
            vm.wait_for([("kv", p)])
            r = 64 + 8 * p
            and_reduce(a, 16, range(r, r + 8))
            a("v_cmp_eq_u32 vcc, 0, v16")
            a(f"s_bitset1_b32 s63, {p}")
            a("s_cmp_lg_u64 vcc, 0")
            a(f"s_cbranch_scc1 K3_pg{p}")
            a(f"s_bitset0_b32 s63, {p}")
            for i in range(8):
                a(f"v_add_f32 v{56+i}, v{56+i}, v{r+i}")
            a.label(f"K3_pg{p}")
    a(f"s_mov_b32 s43, {RETRY_MAX}")
    a.label("K3_zp")
    for dt in range(2):
        a(f"buffer_load_dwordx4 {vr(32+4*dt)}, v6, s[56:59], s60 offen offset:{64*dt} sc1")
    a("s_cmp_lg_u32 s42, 0")
    a("s_cbranch_scc1 K3_zp_nf")
    a(f"buffer_load_dwordx4 {vr(28)}, v5, s[24:27], 0 offen offset:32 sc1")
    a("s_waitcnt vmcnt(0)")
    flagcmp(28)
    a("s_cmp_lg_u64 vcc, 0")
    a("s_cbranch_scc1 K3_zp_nf")
    u_block(1)
    a.label("K3_zp_nf")
    a(f"ds_read_b32 v17, v9 offset:{S_CD}")
    a("s_waitcnt vmcnt(0) lgkmcnt(0)")
    vm.q = []
    and_reduce(a, 16, range(32, 40))
    a("v_readfirstlane_b32 s41, v17")
    a("v_cmp_eq_u32 vcc, 0, v16")
    a("s_sub_u32 s43, s43, 1")
    a("s_cbranch_scc1 K3_zp_ok")
    a("s_cmp_eq_u64 vcc, 0")
    a("s_cbranch_scc1 K3_zp_ok")
    a("s_cmp_lg_u32 s40, 0")
    a("s_cbranch_scc1 K3_zp_s2")
    if QEARLY:
        a("s_cmp_lg_u32 s41, 0")
        a("s_cbranch_scc1 K3_post")
    a.label("K3_zp_s2")
    a(f"s_sleep {ZSLEEP}")
    a("s_branch K3_zp")
    a.label("K3_zp_ok")
    if PG:
        stamp(a, 4)
        a(f"s_mov_b32 s43, {RETRY_MAX}")
        a.label("K3_ml")
        a("s_cmp_eq_u32 s63, 0")
        a("s_cbranch_scc1 K3_ml_done")
        a("s_ff1_i32_b32 s41, s63")
        a("s_lshl_b32 s62, s41, 12")
        a("s_add_u32 s62, s62, s61")
        for dt in range(2):
            a(f"buffer_load_dwordx4 {vr(64+4*dt)}, v3, s[52:55], s62 offen offset:{1024*dt} sc1")
        a("s_add_u32 s75, s75, 1")
        a("s_waitcnt vmcnt(0)")
        and_reduce(a, 16, range(64, 72))
        a("v_cmp_eq_u32 vcc, 0, v16")
        a("s_sub_u32 s43, s43, 1")
        a("s_cbranch_scc1 K3_ml_done")
        a("s_cmp_lg_u64 vcc, 0")
        a("s_cbranch_scc1 K3_ml")
        a("s_bitset0_b32 s63, s41")
        for i in range(8):
            a(f"v_add_f32 v{56+i}, v{56+i}, v{64+i}")
        a("s_branch K3_ml")
        a.label("K3_ml_done")
        for i in range(8):
            a(f"v_add_f32_dpp v{40+i}, v{32+i}, v{32+i} row_ror:8 {DPP}")
        for sh in (4, 2, 1):
            for i in range(8):
                a(f"v_add_f32_dpp v{40+i}, v{40+i}, v{40+i} row_ror:{sh} {DPP}")
        for i in range(4):
            a(f"v_cvt_pk_bf16_f32 v{48+i}, v{40+2*i}, v{41+2*i}")
        for i in range(8):
            a(f"v_mov_b32 v{64+i}, v{56+i}")
    else:
        stamp(a, 4)
        a("s_setprio 2")
        a(f"s_mov_b32 s43, {RETRY_MAX}")
        def gloads(fl, track):
            a("s_mov_b32 s62, s61")
            for p in range(16):
                for dt in range(1 if BP else 2):
                    r = 96 + 4 * p if BP else 64 + 8 * p + 4 * dt
                    a(f"buffer_load_dwordx4 {vr(r)}, v3, s[52:55], s62 offen offset:{1024*dt}{fl}")
                    if track:
                        vm.issue(("kv", p))
                a("s_add_u32 s62, s62, 4096")
        gloads(GSC, True)
        if ZFIRST:
            bulkA()
            vm.issue("t")
        if not QEARLY and not CPOST:
            q_loads()
        a.label("K3_gl")
        for i in range(8):
            a(f"v_add_f32_dpp v{40+i}, v{32+i}, v{32+i} row_ror:8 {DPP}")
        for sh in (4, 2, 1):
            for i in range(8):
                a(f"v_add_f32_dpp v{40+i}, v{40+i}, v{40+i} row_ror:{sh} {DPP}")
        for i in range(4):
            a(f"v_cvt_pk_bf16_f32 v{48+i}, v{40+2*i}, v{41+2*i}")
        a("v_mov_b32 v16, 1")
        for p in range(16):
            vm.wait_for([("kv", p)])
            if BP:
                r = 96 + 4 * p
                for i in range(0, 4, 2):
                    a(f"v_bitop3_b32 v16, v16, v{r+i}, v{r+i+1} bitop3:0x80")
                t = 64 if p == 0 else 72
                for i in range(4):
                    a(f"v_lshlrev_b32 v{t+2*i}, 16, v{r+i}")
                    a(f"v_and_b32 v{t+2*i+1}, 0xffff0000, v{r+i}")
                if p >= 1:
                    for i in range(8):
                        a(f"v_add_f32 v{64+i}, v{64+i}, v{72+i}")
            else:
                r = 64 + 8 * p
                for i in range(0, 8, 2):
                    a(f"v_bitop3_b32 v16, v16, v{r+i}, v{r+i+1} bitop3:0x80")
                if p >= 1:
                    for i in range(8):
                        a(f"v_add_f32 v{64+i}, v{64+i}, v{r+i}")
        a("v_cmp_eq_u32 vcc, 0, v16")
        a("s_sub_u32 s43, s43, 1")
        a("s_cbranch_scc1 K3_gl_ok")
        a("s_cmp_eq_u64 vcc, 0")
        a("s_cbranch_scc1 K3_gl_ok")
        a("s_add_u32 s75, s75, 1")
        a("s_sleep 4")
        gloads(" sc1", False)
        a("s_waitcnt vmcnt(0)")
        a("s_branch K3_gl")
    a.label("K3_gl_ok")
    for i in range(4):
        a(f"v_cvt_pk_bf16_f32 v{40+i}, v{64+2*i}, v{65+2*i}")
    a("s_lshl_b32 s43, s4, 10")
    a(f"s_add_u32 s43, s43, {KVT}")
    a("v_add_u32 v5, s43, v3")
    a(f"ds_write_b128 v5, {vr(40)}")
    a("s_lshl_b32 s43, s37, 2")
    a("v_add_u32 v7, s43, v10")
    a("s_lshl_b32 s43, s37, 11")
    a(f"s_add_u32 s43, s43, {KVT}")
    a("v_add_u32 v5, s43, v3")
    a("s_waitcnt lgkmcnt(0)")
    lds_signal(a, 7, S_KVT, 11)
    if ZFIRST:
        pq_pick()
        wo_issue(6)
    lds_wait(a, "K3_wkt", 7, S_KVT, 2, 52, 60)
    a(f"ds_read_b128 {vr(40)}, v5")
    a(f"ds_read_b128 {vr(44)}, v5 offset:1024")
    a("s_waitcnt lgkmcnt(0)")
    stamp(a, 5)
    for mt in range(4):
        b = 64 + 12 * mt
        mfma16(a, b + 8, 48, PQR + 4 * mt, "0")
        mfma16(a, b, 40, PQR + 4 * mt, "0")
        mfma16(a, b + 4, 44, PQR + 4 * mt, "0")
    a("s_lshl_b32 s60, s12, 3")
    a("s_lshl_b32 s61, s36, 2")
    a("s_add_u32 s60, s60, s61")
    a("s_lshl_b32 s60, s60, 5")
    a("s_add_u32 s60, s60, s15")
    a("s_lshl_b32 s60, s60, 10")
    a(f"s_mov_b32 s61, {EPS}")
    for mt in range(4):
        a(f"v_add_f32 v{112+mt}, s61, v{64+12*mt+8}")
        a(f"v_rcp_f32 v{112+mt}, v{112+mt}")
    for mt in range(4):
        b = 64 + 12 * mt
        for i in range(8):
            a(f"v_mul_f32 v{b+i}, v{b+i}, v{112+mt}")
        for i in range(4):
            a(f"v_cvt_pk_bf16_f32 v{120+4*mt+i}, v{b+2*i}, v{b+2*i+1}")
        for i in range(4):
            a(f"v_or_b32 v{120+4*mt+i}, 1, v{120+4*mt+i}")
        a(f"buffer_store_dwordx4 {vr(120+4*mt)}, v3, s[48:51], s60 offen sc1")
        a("s_add_u32 s60, s60, 32768")
    a("s_setprio 0")
    stamp(a, 6)
    a(f"s_mov_b32 s43, {RETRY_MAX}")
    a("v_lshrrev_b32 v5, 1, v2")
    a("v_lshlrev_b32 v5, 7, v5")
    a("v_and_b32 v4, 1, v2")
    a("v_lshl_add_u32 v5, v4, 4, v5")
    a.label("K3_ul")
    a("s_cmp_lg_u32 s42, 0")
    a("s_cbranch_scc1 K3_ul_done")
    a(f"buffer_load_dwordx4 {vr(28)}, v5, s[24:27], 0 offen offset:32 sc1")
    a("s_waitcnt vmcnt(0)")
    flagcmp(28)
    a("s_sub_u32 s43, s43, 1")
    a("s_cbranch_scc1 K3_ul_go")
    a("s_cmp_eq_u64 vcc, 0")
    a("s_cbranch_scc1 K3_ul_go")
    a("s_sleep 4")
    a("s_branch K3_ul")
    a.label("K3_ul_go")
    u_block(2)
    a.label("K3_ul_done")
    a("s_and_b32 s60, s10, 3")
    a("s_lshl_b32 s60, s60, 2")
    a("s_and_b32 s61, s11, 3")
    a("s_add_u32 s60, s60, s61")
    a("s_lshl_b32 s60, s60, 18")
    a("s_lshr_b32 s61, s11, 2")
    a("s_lshl_b32 s61, s61, 2")
    a("s_add_u32 s61, s61, s4")
    a("s_lshl_b32 s61, s61, 13")
    a("s_add_u32 s63, s60, s61")
    a("v_lshlrev_b32 v8, 7, v2")
    a("s_waitcnt vmcnt(0)")
    a("buffer_load_dword v60, v8, s[48:51], s63 offen")
    a(f"s_waitcnt vmcnt({0 if TWAIT else 1})")
    lds_signal(a, 10, S_WOM, 11)
    lds_wait(a, "K3_wcd", 9, S_CD, 1, 16, 60, sleep=1)
    wo_issue(7)
    a("s_waitcnt vmcnt(0)")
    lds_signal(a, 10, S_WOT, 11)
    vm.q = []
    stamp(a, 7)
    a("s_cmp_eq_u32 s40, 1")
    a("s_cbranch_scc1 K3_fin")
    if CPOST:
        lds_wait(a, "K3_wg2", 9, S_G2, 1, 16, 60, sleep=2)
        a(f"ds_read_b32 v16, v9 offset:{S_PD}")
        a("s_waitcnt lgkmcnt(0)")
        a("v_readfirstlane_b32 s60, v16")
        a("s_cmp_lg_u32 s60, 0")
        a("s_cbranch_scc1 K3_fin")
        q_loads()
    if GS >= 0 and not CPOST:
        lds_wait(a, "K3_wg2", 9, S_G2, 1, 16, 60, sleep=2)
    a("s_mov_b32 s40, 2")
    if PDELAY:
        a(f"s_sleep {PDELAY}")
    a(f"s_mov_b32 s43, {RETRY_MAX}")
    a.label("K3_post")
    for ci, sr in enumerate((73, 65, 66, 67)):
        a(f"buffer_load_dwordx4 {vr(16+4*ci)}, v225, s[44:47], s{sr} offen sc1")
    a("s_waitcnt vmcnt(0)")
    and_reduce(a, 48, range(16, 32))
    a("v_cmp_eq_u32 vcc, 0, v48")
    a("s_cmp_eq_u64 vcc, 0")
    a("s_cbranch_scc1 K3_yok")
    a("s_add_u32 s75, s75, 1")
    a("s_cmp_eq_u32 s40, 0")
    a("s_cbranch_scc1 K3_zp_s2")
    if PREPOST:
        a("s_cmp_eq_u32 s40, 3")
        a("s_cbranch_scc1 K3_pw")
    a("s_sub_u32 s43, s43, 1")
    a("s_cbranch_scc1 K3_yok")
    a("s_sleep 8")
    a("s_branch K3_post")
    a.label("K3_yok")
    stamp(a, 8)
    post_compute(a, QR, False)
    a("s_mov_b32 s41, s40")
    a("s_mov_b32 s40, 1")
    a("s_cmp_eq_u32 s41, 0")
    a("s_cbranch_scc1 K3_zp")
    if PREPOST:
        a("s_cmp_eq_u32 s41, 3")
        a("s_cbranch_scc1 K3_pw")
    a.label("K3_fin")
    stamp_flush(a, 9)
    a.label("K3_end")
    a("s_endpgm")
    a.label("K3_code_end")
    return a.finalize(), 252
```

```python
import os
from asmlib import *
from common import prepass, k2_prefetch_setup, MB, vr, mfma16, phi8, unpack4, env, LOG2E, EPS, WS_KVP, WS_ZP, WS_FLAG, WS_UT, WS_DBG, STAMP

WS_OF = 0
NS = 4
STAGE = 40960
K3_LDS = NS * STAGE
CV32 = env("CV32", 0)
CV_REG = 8960 if CV32 else 8704
CV_HB = 64 if CV32 else 32
CV_UB = 4672 if CV32 else 4384
KVT = 4 * CV_REG
SYNC = KVT + 4096
WO_BASE = 40960
PQ_BASE = WO_BASE + 24 * 4096
XCH = WO_BASE + 28 * 4096
XCZ = SYNC + 256
S_KVS = 84
S_PD = 96
S_G2 = 112
S_X, S_HU, S_PQ, S_KVT, S_WOM, S_WOT, S_CD, S_GO, S_NONCE, S_WO2 = 0, 8, 24, 40, 48, 52, 56, 72, 76, 80
SPIN_MAX = 1 << 17
RETRY_MAX = 4000
DPP = "row_mask:0xf bank_mask:0xf"
DUTY0 = env("DUTY0", 0)
NDUTY = env("NDUTY", 4)
E2_0 = env("E2_0", 4)
E2_N = env("E2_N", 4)
E3_0 = env("E3_0", 8)
E3_N = env("E3_N", 4)
F1N = env("F1N", 11)
NLEAD = env("NLEAD", 4)
FLAGN = env("FLAGN", 12)
AINIT = env("AINIT", 12)
PDELAY = env("PDELAY", 0)
G2PRIO = env("G2PRIO", 1)
CPOST = env("CPOST", 0)
PG = env("PG", 0)
BP = env("BP", 1)
TWAIT = env("TWAIT", 1)
ZFIRST = env("ZFIRST", 0)
GS = env("GS", 16)
FILLC = env("FILLC", 0)
PRO = env("PRO", 3)
TRO = env("TRO", 1)
OS1 = env("OS1", " sc1")
OS2 = env("OS2", " sc1")
NPL = env("NPL", 2)
FL0 = env("FL0", 0)
PL0 = env("PL0", 4)
SPF_C = env("SPF_C", 0)
SPF_L = env("SPF_L", 0)
ADEPTH = env("ADEPTH", 16)
YDELAY = env("YDELAY", 8)
ZSLEEP = env("ZSLEEP", 10)
ATOUCH = env("ATOUCH", 1)
XP = env("XP", "23")
LATE = env("LATE", 1)
PREPOST = env("PREPOST", 0)
EARLYWO = env("EARLYWO", 4)
WAITKV = env("WAITKV", 1)
GSC = env("GSC", "")
QX = env("QX", 1)
PREC = env("PREC", 0)
L2PF = env("L2PF", 0)
TLBW = env("TLBW", 0)
CODEPF = env("CODEPF", 0)
DBGOUT = env("DBGOUT", 0)
NTF = " nt" if env("NTF", 0) else ""
NTG = " nt" if env("NTG", 0) else ""
NTO = " nt" if env("NTO", 1) else ""
NTT = " nt" if env("NTT", 0) else ""
NTS = " nt" if env("NTS", 0) else ""
E3W = env("E3W", 1)
QEARLY = env("QEARLY", 0)
POSTPRE = env("POSTPRE", 0)
ASC = env("ASC", "")
P_Q, P_K, P_V, P_SHK, P_H, P_D, P_X, P_W, P_WO, P_OUT, P_DBG, P_WS = [76 + 2 * i for i in range(12)]
SV = 231


def stamp(a, i):
    if STAMP:
        a("s_memrealtime s[100:101]")
        a("s_waitcnt lgkmcnt(0)")
        a(f"v_writelane_b32 v{SV}, s100, {i}")


def cstamp(a, i):
    if STAMP:
        a("s_memtime s[100:101]")
        a("s_waitcnt lgkmcnt(0)")
        a(f"v_writelane_b32 v{SV}, s100, {i}")


def stamp_flush(a, n):
    if not STAMP:
        return
    a("s_mov_b64 exec, -1")
    a("s_waitcnt vmcnt(0)")
    stamp(a, n)
    a(f"v_writelane_b32 v{SV}, s75, 15")
    if DBGOUT:
        lab = "K3_dbg%d" % len(a.ins)
        a(f"s_cmp_lg_u32 s2, {DBGOUT-1}")
        a(f"s_cbranch_scc1 {lab}")
        a("s_cmp_lg_u32 s4, 0")
        a(f"s_cbranch_scc1 {lab}")
        srd(a, 16, P_DBG, 256)
        a(f"v_readlane_b32 s20, v{SV}, 0")
        a("s_lshr_b32 s21, s3, 1")
        a("v_lshlrev_b32 v0, 2, v2")
        a(f"v_subrev_u32 v1, s20, v{SV}")
        a("s_mov_b64 exec, 0x3fe")
        a("buffer_store_short v1, v0, s[16:19], s21 offen")
        a("s_mov_b64 exec, -1")
        a.label(lab)
    srd_off(a, 16, P_WS, WS_DBG, 4 * MB)
    a("s_add_u32 s20, s2, 512")
    a("s_lshl_b32 s20, s20, 4")
    a("s_add_u32 s20, s20, s3")
    a("s_lshl_b32 s20, s20, 6")
    a("v_lshlrev_b32 v0, 2, v2")
    a("s_mov_b64 exec, 0xffff")
    a(f"buffer_store_dword v{SV}, v0, s[16:19], s20 offen")


def lds_wait(a, name, vaddr, off, val, vtmp, stmp, sleep=0):
    a(f"s_mov_b32 s{stmp+1}, {SPIN_MAX}")
    a.label(name)
    if sleep:
        a(f"s_sleep {sleep}")
    a(f"ds_read_b32 v{vtmp}, v{vaddr} offset:{off}")
    a("s_waitcnt lgkmcnt(0)")
    a(f"v_readfirstlane_b32 s{stmp}, v{vtmp}")
    a(f"s_sub_u32 s{stmp+1}, s{stmp+1}, 1")
    a(f"s_cbranch_scc1 {name}_ok")
    a(f"s_cmp_lt_u32 s{stmp}, {val}")
    a(f"s_cbranch_scc1 {name}")
    a.label(name + "_ok")


def lds_signal(a, vaddr, off, vone):
    a("s_mov_b64 exec, 1")
    a(f"ds_add_u32 v{vaddr}, v{vone} offset:{off}")
    a("s_mov_b64 exec, -1")


def and_reduce(a, dst, regs):
    regs = list(regs)
    a(f"v_bitop3_b32 v{dst}, v{regs[0]}, v{regs[1]}, 1 bitop3:0x80")
    i = 2
    while i + 1 < len(regs):
        a(f"v_bitop3_b32 v{dst}, v{dst}, v{regs[i]}, v{regs[i+1]} bitop3:0x80")
        i += 2
    if i < len(regs):
        a(f"v_and_b32 v{dst}, v{dst}, v{regs[i]}")


def post_compute(a, QR, pk):
    for jj in range(8):
        T = 48 + 8 * (jj & 1)
        for ci in range(4):
            if jj & 1:
                a(f"v_and_b32 v{T+ci}, 0xffff0000, v{16+4*ci+jj//2}")
            else:
                a(f"v_lshlrev_b32 v{T+ci}, 16, v{16+4*ci+jj//2}")
        for cp in range(2):
            a(f"v_lshlrev_b32 v{T+4+2*cp}, 16, v{QR+2*jj+cp}")
            a(f"v_and_b32 v{T+5+2*cp}, 0xffff0000, v{QR+2*jj+cp}")
        if pk:
            for cp in range(2):
                a(f"v_pk_mul_f32 {vr(T+2*cp,2)}, {vr(T+2*cp,2)}, {vr(T+4+2*cp,2)}")
        else:
            for ci in range(4):
                a(f"v_mul_f32 v{T+ci}, v{T+ci}, v{T+4+ci}")
        O = 64 + 2 * jj
        for cp in range(2):
            a(f"v_cvt_pk_bf16_f32 v{O+cp}, v{T+2*cp}, v{T+2*cp+1}")
        a(f"buffer_store_dwordx2 {vr(O,2)}, v224, s[32:35], s72 offen{NTS}{OS1}")
        a(f"s_add_u32 s72, s72, {64*4096}")


def conv32(a, lg, PK):
    FU, HR, NH = 96, 16, 4
    ACCS = [[32, 48], [64, 80]]
    T2, T1, YV, R3PREV = [224, 225], [226, 227], [228, 229], 230

    def epilogue_ops(p):
        ops = []
        for ql in range(8):
            Q = 8 * p + ql
            acc = ACCS[p & 1][ql // 4] + 4 * (ql % 4)
            R0, R1, R2, R3 = acc, acc + 1, acc + 2, acc + 3
            cur, prv = Q & 1, (Q & 1) ^ 1
            r3p = R3PREV if ql == 0 else ACCS[p & 1][(ql - 1) // 4] + 4 * ((ql - 1) % 4) + 3
            if Q == 0:
                ops.append(f"v_add_f32_dpp v{T2[cur]}, v{R3}, v{R2} wave_shr:1 {DPP} bound_ctrl:0")
                ops.append(f"v_add_f32_dpp v{T1[cur]}, v{T2[cur]}, v{R1} wave_shr:1 {DPP} bound_ctrl:0")
                ops.append(f"v_add_f32_dpp v{YV[cur]}, v{T1[cur]}, v{R0} wave_shr:1 {DPP} bound_ctrl:0")
            else:
                ops.append(f"v_add_f32_dpp v{T2[cur]}, v{r3p}, v{R2} wave_ror:1 {DPP}")
                ops.append(f"v_add_f32_dpp v{T1[cur]}, v{T2[prv]}, v{R1} wave_ror:1 {DPP}")
                ops.append(f"v_add_f32_dpp v{YV[cur]}, v{T1[prv]}, v{R0} wave_ror:1 {DPP}")
                ops.append(f"v_add_f32_dpp v{T2[cur]}, v{R3}, v{R2} wave_shr:1 {DPP}")
                ops.append(f"v_add_f32_dpp v{T1[cur]}, v{T2[cur]}, v{R1} wave_shr:1 {DPP}")
                ops.append(f"v_add_f32_dpp v{YV[cur]}, v{T1[cur]}, v{R0} wave_shr:1 {DPP}")
            if ql & 1:
                d = PK[p] + ql // 2
                ops.append(f"v_cvt_pk_bf16_f32 v{d}, v{YV[0]}, v{YV[1]}")
                ops.append(f"v_or_b32 v{d}, 1, v{d}")
            if ql == 7:
                ops.append(f"v_mov_b32 v{R3PREV}, v{R3}")
        return ops

    steps = [(p, t) for p in range(4) for t in range(8 * p + 8)]
    issued = set()
    hslot = {}

    def issue_h(idx):
        p, t = steps[idx]
        slot = idx % NH
        hslot[idx] = slot
        for h in range(2):
            a(f"ds_read_b64_tr_b16 {vr(HR+4*slot+2*h,2)}, v12 offset:{128*t+32*(1-h)}")
            lg.issue(("h", slot))

    def issue_fu(s):
        if s in issued:
            return
        issued.add(s)
        for h in range(2):
            a(f"ds_read_b64_tr_b16 {vr(FU+4*(s+3)+2*h,2)}, v13 offset:{128*(s+3)+32*h}")
            lg.issue(("fu", s))

    def need(idx):
        p, t = steps[idx]
        r = [8 * p + 4 - t]
        if t <= 8 * p + 3:
            r.append(8 * p - t)
        return r

    PRE = 3
    for idx in range(PRE):
        for s in need(idx):
            issue_fu(s)
        issue_h(idx)
    pending = []
    for idx, (p, t) in enumerate(steps):
        if t == 0 and p > 0:
            assert not pending
            pending = epilogue_ops(p - 1)
        slot = hslot[idx]
        lg.wait_for([("h", slot)] + [("fu", s) for s in need(idx)])
        mf = [(1, 8 * p + 4 - t)]
        if t <= 8 * p + 3:
            mf.append((0, 8 * p - t))
        for k, (tile, s) in enumerate(mf):
            d = ACCS[p & 1][tile]
            cs = "0" if t == 0 else vr(d, 16)
            a(f"v_mfma_f32_32x32x16_bf16 {vr(d,16)}, {vr(FU+4*(s+3))}, {vr(HR+4*slot)}, {cs}")
            if k == 0 and idx + PRE < len(steps):
                for s2 in need(idx + PRE):
                    issue_fu(s2)
                issue_h(idx + PRE)
            if pending and t >= 2:
                for _ in range(3):
                    if pending:
                        a(pending.pop(0))
    assert not pending
    for op in epilogue_ops(3):
        a(op)


def gen_k3():
    a = Asm()
    a.label("K3_code_begin")
    a("s_cmp_ge_u32 s2, 256")
    a("s_cbranch_scc1 K3_end")
    a("s_load_dwordx8 s[84:91], s[0:1], 32")
    a("s_load_dwordx8 s[92:99], s[0:1], 64")
    a("s_load_dwordx8 s[76:83], s[0:1], 0")
    a("v_lshrrev_b32 v1, 6, v0")
    a("v_and_b32 v2, 63, v0")
    a("s_and_b32 s10, s2, 7")
    a("v_readfirstlane_b32 s3, v1")
    a("s_lshr_b32 s11, s2, 3")
    a("s_and_b32 s12, s10, 1")
    a("s_lshl_b32 s12, s12, 3")
    a("s_and_b32 s13, s11, 7")
    a("s_add_u32 s12, s12, s13")
    a("s_lshr_b32 s13, s10, 1")
    a("s_lshl_b32 s13, s13, 2")
    a("s_lshr_b32 s14, s11, 3")
    a("s_add_u32 s13, s13, s14")
    a("s_mov_b32 s75, 0")
    a("s_and_b32 s4, s3, 3")
    a("s_and_b32 s36, s3, 1")
    a("s_bfe_u32 s37, s3, 0x10001")
    a("s_lshl_b32 s5, s13, 1")
    a("s_add_u32 s5, s5, s37")
    a(f"s_xor_b32 s15, s5, {2 if QX else 0}")
    a("s_lshl_b32 s6, s10, 7")
    a("s_lshl_b32 s7, s11, 2")
    a("s_add_u32 s6, s6, s7")
    a("s_add_u32 s6, s6, s4")
    a(f"s_mul_i32 s7, s4, {CV_REG}")
    a("v_lshlrev_b32 v3, 4, v2")
    a("v_lshrrev_b32 v14, 4, v2")
    a("v_and_b32 v15, 15, v2")
    a("s_waitcnt lgkmcnt(0)")
    stamp(a, 0)
    spf = []
    a("s_cmp_ge_u32 s3, 4")
    a("s_cbranch_scc1 K3_L")

    if L2PF:
        srd(a, 40, P_X, 4 * MB)
        srd(a, 48, P_W, 6 * MB)
        a("v_lshrrev_b32 v192, 3, v2")
        a("v_lshlrev_b32 v192, 11, v192")
        a("v_and_b32 v16, 7, v2")
        a("v_lshl_add_u32 v192, v16, 7, v192")
        a("s_and_b32 s44, s10, 1")
        a("s_lshl_b32 s44, s44, 21")
        a("s_lshl_b32 s45, s11, 16")
        a("s_add_u32 s44, s44, s45")
        a("s_lshl_b32 s45, s3, 14")
        a("s_add_u32 s44, s44, s45")
        a(f"buffer_load_dword v195, v192, s[40:43], s44 offen{NTT}")
        a("v_lshrrev_b32 v193, 2, v2")
        a("v_mul_u32_u24 v193, 6144, v193")
        a("v_and_b32 v16, 3, v2")
        a("v_lshl_add_u32 v193, v16, 7, v193")
        a("s_mul_i32 s45, s11, 98304")
        a("s_lshl_b32 s46, s3, 11")
        a("s_add_u32 s45, s45, s46")
        a("s_lshr_b32 s46, s10, 1")
        a("s_lshl_b32 s46, s46, 9")
        a("s_add_u32 s45, s45, s46")
        a("s_cmp_eq_u32 s3, 3")
        a(f"s_cselect_b32 s45, {16*MB}, s45")
        a(f"buffer_load_dword v195, v193, s[48:51], s45 offen{NTT}")
        a("s_add_u32 s44, s44, 1024")
        a(f"s_add_u32 s45, s45, {512*6144}")
    else:
        a("s_cmp_lg_u32 s3, 0")
        a("s_cbranch_scc1 K3_pfw")
        srd(a, 40, P_X, 4 * MB)
        a("v_lshrrev_b32 v192, 3, v2")
        a("v_lshlrev_b32 v192, 11, v192")
        a("v_and_b32 v16, 7, v2")
        a("v_lshl_add_u32 v192, v16, 7, v192")
        a("s_lshl_b32 s45, s2, 14")
        a("s_add_u32 s44, s45, 1024")
        a("s_branch K3_pfd")
        a.label("K3_pfw")
        srd(a, 40, P_W, 6 * MB)
        a("v_lshlrev_b32 v192, 7, v2")
        a("s_mul_i32 s45, s2, 12288")
        a("s_sub_u32 s44, s3, 1")
        a("s_lshl_b32 s44, s44, 12")
        a("s_add_u32 s45, s45, s44")
        a(f"s_add_u32 s44, s45, {3*MB}")
        a("s_cmp_eq_u32 s3, 3")
        a(f"s_cselect_b32 s45, {8*MB}, s45")
        a(f"s_cselect_b32 s44, {8*MB}, s44")
        a.label("K3_pfd")
        if "1" in XP:
            a(f"s_mov_b32 s45, {16*MB}")
            a(f"s_mov_b32 s44, {16*MB}")
        a(f"buffer_load_dword v195, v192, s[40:43], s45 offen{NTT}")
    srd(a, 56, P_DBG, 256)
    srd_off(a, 60, P_WS, WS_FLAG, 4096)
    a("s_memrealtime s[16:17]")
    a("v_mov_b32 v199, 0")
    a("s_waitcnt lgkmcnt(0)")
    a("s_or_b32 s16, s16, 1")
    a("v_mov_b32 v198, s16")
    a("s_cmp_lg_u32 s3, 3")
    a("s_cbranch_scc1 K3_noseed")
    a("s_cmp_lg_u32 s11, 0")
    a("s_cbranch_scc1 K3_noseed")
    a("v_mov_b32 v196, s16")
    a("v_mov_b32 v197, 0")
    a("s_mov_b64 exec, 1")
    a("buffer_atomic_cmpswap v[196:197], v199, s[56:59], 0 offen sc1")
    a("s_mov_b64 exec, -1")
    a.label("K3_noseed")
    if CODEPF:
        a("s_cmp_lg_u32 s3, 3")
        a("s_cbranch_scc1 K3_nocpf")
        a(f"s_cmp_ge_u32 s11, {CODEPF}")
        a("s_cbranch_scc1 K3_nocpf")
        a("s_getpc_b64 s[16:17]")
        a.label("K3_pc")
        a("s_sub_u32 s16, s16, K3_pc-K3_code_begin")
        a("s_subb_u32 s17, s17, 0")
        a("s_mov_b32 s18, K3_code_end-K3_code_begin")
        a("s_mov_b32 s19, 0x20000")
        a("v_lshlrev_b32 v16, 7, v2")
        for i in range(6):
            a(f"s_mov_b32 s20, {8192*i}")
            a("buffer_load_dword v195, v16, s[16:19], s20 offen")
        a.label("K3_nocpf")
    if TLBW:
        a("s_cmp_lg_u32 s3, 3")
        a("s_cbranch_scc1 K3_notlb")
        a(f"s_cmp_ge_u32 s11, {TLBW}")
        a("s_cbranch_scc1 K3_notlb")
        a("v_lshlrev_b32 v16, 16, v2")
        for p, nb, offs in ((P_K, 4, (0,)), (P_V, 4, (0,)), (P_H, 4, (0,)), (P_Q, 4, (0,)), (P_WO, 2, (0,)), (P_OUT, 8, (0, 4)), (P_WS, 20, (0, 8, 12, 16))):
            srd(a, 16, p, nb * MB)
            for o in offs:
                a(f"s_mov_b32 s20, {o*MB}")
                a("buffer_load_dword v195, v16, s[16:19], s20 offen nt")
        a.label("K3_notlb")
    a("s_lshl_b32 s46, s11, 7")
    a("s_lshl_b32 s47, s10, 2")
    a("s_add_u32 s47, s47, s46")
    if PREC:
        pre_compute = prepass(a, 3, P_K, P_V, P_SHK, " sc1", P_WS, NTO)
    if not L2PF:
        a("s_cmp_ge_u32 s3, 2")
        a(f"s_cselect_b32 s48, s{P_V}, s{P_K}")
        a(f"s_cselect_b32 s49, s{P_V+1}, s{P_K+1}")
        a(f"s_mov_b32 s50, {4*MB}")
        a("s_mov_b32 s51, 0x20000")
        a("v_lshrrev_b32 v193, 2, v2")
        a("v_lshlrev_b32 v193, 11, v193")
        a("v_and_b32 v16, 3, v2")
        a("v_lshl_add_u32 v193, v16, 7, v193")
        a("s_lshr_b32 s45, s2, 2")
        a("s_lshl_b32 s45, s45, 16")
        a("s_lshl_b32 s46, s36, 15")
        a("s_add_u32 s45, s45, s46")
        a("s_and_b32 s46, s2, 3")
        a("s_lshl_b32 s46, s46, 9")
        a("s_add_u32 s45, s45, s46")
        if "2" in XP:
            a(f"s_mov_b32 s45, {16*MB}")
    a("v_mov_b32 v200, v15")
    for part in range(4):
        if part < 3:
            a(f"s_cmp_lg_u32 s3, {part}")
            a(f"s_cbranch_scc1 K3_e3_{part+1}")
        k2_prefetch_setup(a, part, 194, 64, 68, P_H, P_Q, P_WO)
        if part < 3:
            a("s_branch K3_e3_done")
            a.label(f"K3_e3_{part+1}")
    a.label("K3_e3_done")
    a("v_mov_b32 v15, v200")
    a(f"s_and_b32 s55, s11, {NDUTY-1}")
    a(f"s_add_u32 s55, s55, {DUTY0}")
    a(f"s_and_b32 s52, s11, {E2_N-1}")
    a(f"s_add_u32 s52, s52, {E2_0}")
    a("s_sub_u32 s52, s52, s55")
    a("s_sub_u32 s52, s52, 1")
    a("s_mov_b32 s54, 0")
    a("s_lshr_b32 s70, s11, 2")
    a(f"s_and_b32 s70, s70, {E3_N-1}")
    a(f"s_add_u32 s70, s70, {E3_0 if '3' not in XP else 1000}")
    if E3W:
        a("s_cmp_lt_u32 s3, 2")
        a("s_cselect_b32 s70, 1000, s70")
    a("s_cmp_eq_u32 s3, 3")
    a(f"s_cselect_b32 s71, {F1N-NLEAD}, 1000")
    a("s_mov_b32 s53, 0")
    if PREC:
        pre_compute()
    if FILLC:
        srd_off(a, 16, P_WS, WS_OF, 4 * MB)
        srd_off(a, 20, P_WS, WS_KVP, 2 * MB)
        srd_off(a, 24, P_WS, WS_ZP, 64 * 1024)
        a("s_lshl_b32 s28, s12, 3")
        a("s_lshl_b32 s29, s4, 1")
        a("s_add_u32 s28, s28, s29")
        a("s_lshl_b32 s28, s28, 15")
        a("s_lshr_b32 s29, s15, 1")
        a("s_lshl_b32 s29, s29, 11")
        a("s_add_u32 s28, s28, s29")
        a("s_add_u32 s29, s28, 32768")
        a("s_lshl_b32 s30, s5, 4")
        a("s_add_u32 s30, s30, s12")
        a("s_lshl_b32 s31, s30, 7")
        a("s_lshl_b32 s30, s30, 12")
        a("s_lshl_b32 s32, s36, 10")
        a("s_add_u32 s30, s30, s32")
        for i in range(4):
            a(f"v_mov_b32 v{20+i}, 0")
        a("v_and_b32 v18, 7, v2")
        a("v_lshlrev_b32 v18, 4, v18")
        a("buffer_store_dwordx4 v[20:23], v3, s[16:19], s28 offen sc1")
        a("buffer_store_dwordx4 v[20:23], v3, s[16:19], s28 offen offset:1024 sc1")
        a("buffer_store_dwordx4 v[20:23], v3, s[16:19], s29 offen sc1")
        a("buffer_store_dwordx4 v[20:23], v3, s[16:19], s29 offen offset:1024 sc1")
        a("buffer_store_dwordx4 v[20:23], v3, s[20:23], s30 offen sc1")
        a("buffer_store_dwordx4 v[20:23], v18, s[24:27], s31 offen sc1")
    a("s_lshl_b32 s38, s36, 6")
    a("v_add_u32 v16, s38, v15")
    a("v_lshrrev_b32 v17, 1, v15")
    a("v_lshlrev_b32 v16, 7, v16")
    a("v_xor_b32 v17, v14, v17")
    a("v_lshl_add_u32 v4, v17, 4, v16")
    a("v_xor_b32 v5, 64, v4")
    a(f"v_add_u32 v6, {2*STAGE}, v4")
    a(f"v_add_u32 v7, {2*STAGE}, v5")
    a("v_bfe_u32 v17, v2, 2, 2")
    a("v_and_b32 v18, 3, v2")
    a("v_lshlrev_b32 v17, 6, v17")
    a("v_lshl_add_u32 v17, v18, 3, v17")
    a("v_and_b32 v18, 1, v14")
    a("v_lshl_add_u32 v17, v18, 10, v17")
    a("v_lshl_add_u32 v17, v18, 5, v17")
    a("v_lshrrev_b32 v18, 1, v14")
    a("v_mul_u32_u24 v18, 6144, v18")
    a("v_add_u32 v17, v17, v18")
    a("s_lshl_b32 s38, s37, 8")
    a("s_add_u32 s38, s38, 16384")
    a("v_add_u32 v8, s38, v17")
    a("v_xor_b32 v9, 32, v8")
    a(f"v_add_u32 v10, {2*STAGE}, v8")
    a(f"v_add_u32 v11, {2*STAGE}, v9")
    SB = [16, 56]

    def accr(kind, mt, dt):
        return 96 + 32 * kind + (mt * 2 + dt) * 4

    for i in range(96, 192):
        a(f"v_mov_b32 v{i}, 0")
    for op in spf[:SPF_C]:
        a(op)
    a("s_waitcnt lgkmcnt(0)")
    srd_off(a, 28, P_WS, WS_KVP, 2 * MB)
    srd_off(a, 32, P_WS, WS_ZP, 64 * 1024)
    lg = Cnt(a, "lgkmcnt", 15)

    def reads(slot, t, st):
        sb = (slot & 1) * STAGE
        va = 4 + t + (2 if slot >= 2 else 0)
        vb = 10 if slot >= 2 else 8
        R = SB[st]

        def A(mt):
            return [(("A", mt, st), f"ds_read_b128 {vr(R+4*mt)}, v{va} offset:{sb + 2048*mt}")]

        def B(cb):
            seg, nh = cb // 2, cb % 2
            return [(("B", cb, st), f"ds_read_b64_tr_b16 {vr(R+16+4*cb+2*h,2)}, v{vb+nh} offset:{sb + t*12288 + seg*2048 + 512*h}") for h in range(2)]
        return A(0) + B(0) + A(1) + A(2) + A(3) + B(1) + B(2) + B(3) + B(4) + B(5)

    def group(st, nxt):
        R = SB[st]
        nxt = list(nxt)
        for cb in range(6):
            kind, dt = cb // 2, cb % 2
            for mt in range(4):
                lg.wait_for([("A", mt, st), ("B", cb, st)])
                fa, fb = R + 4 * mt, R + 16 + 4 * cb
                if kind == 0:
                    mfma16(a, accr(0, mt, dt), fb, fa)
                else:
                    mfma16(a, accr(kind, mt, dt), fa, fb)
                if nxt:
                    tag, txt = nxt.pop(0)
                    a(txt)
                    lg.issue(tag)

    a("s_barrier")
    stamp(a, 1)
    cstamp(a, 10)
    for tag, txt in reads(0, 0, 0):
        a(txt)
        lg.issue(tag)
    lg.drain()
    a("s_mov_b32 s39, 4")
    a.label("K3_loop")
    for slot in range(4):
        group(0, reads(slot, 1, 1))
        lg.drain()
        a("s_barrier")
        a("s_sub_u32 s55, s55, 1")
        a(f"s_cbranch_scc1 K3_event{slot}")
        a.label(f"K3_noev{slot}")
        a("s_sub_u32 s70, s70, 1")
        a(f"s_cbranch_scc1 K3_evB{slot}")
        a.label(f"K3_noevB{slot}")
        a("s_sub_u32 s71, s71, 1")
        a(f"s_cbranch_scc1 K3_evC{slot}")
        a.label(f"K3_noevC{slot}")
        group(1, reads((slot + 1) % 4, 0, 0))
        if slot == 3:
            a("s_sub_u32 s39, s39, 1")
            a("s_cmp_lg_u32 s39, 0")
            lg.drain()
    a("s_cbranch_scc1 K3_loop")
    stamp(a, 2)
    cstamp(a, 11)

    a(f"s_mov_b32 s44, {LOG2E}")
    a(f"s_mov_b32 s45, {LOG2E}")
    a(f"s_mov_b32 s46, {EPS}")
    a(f"s_mov_b32 s47, {EPS}")
    a(f"v_mov_b32 v10, {SYNC}")
    a("v_mov_b32 v11, 1")
    for et in range(2):
        for m in range(2):
            d = 16 + 4 * (2 * et + m)
            for hh in range(2):
                s = accr(2, 2 * m + hh, et)
                a(f"v_cvt_pk_bf16_f32 v{d+2*hh}, v{s}, v{s+1}")
                a(f"v_cvt_pk_bf16_f32 v{d+2*hh+1}, v{s+2}, v{s+3}")
    for i in range(4):
        a(f"v_mov_b32 v{48+i}, 0x3f803f80")
    KV, ZZ, T = 160, 176, 52
    for m in range(2):
        for dt in range(2):
            for hh in range(2):
                s = accr(1, 2 * m + hh, dt)
                a(f"v_cvt_pk_bf16_f32 v{T+2*hh}, v{s}, v{s+1}")
                a(f"v_cvt_pk_bf16_f32 v{T+2*hh+1}, v{s+2}, v{s+3}")
            unpack4(a, T, T)
            kf = 32 + 4 * (2 * dt + m)
            phi8(a, T, kf, 44, 46)
            for et in range(2):
                mfma16(a, KV + 4 * (2 * et + dt), kf, 16 + 4 * (2 * et + m), "0" if m == 0 else None)
            mfma16(a, ZZ + 4 * dt, kf, 48, "0" if m == 0 else None)
    a("s_lshl_b32 s43, s37, 12")
    a(f"s_add_u32 s43, s43, {XCH}")
    a("v_add_u32 v4, s43, v3")
    a("s_lshl_b32 s43, s37, 7")
    a(f"s_add_u32 s43, s43, {XCZ}")
    a("v_lshlrev_b32 v5, 5, v14")
    a("v_add_u32 v5, s43, v5")
    a("s_lshl_b32 s43, s37, 2")
    a("v_add_u32 v6, s43, v10")
    a("s_cmp_eq_u32 s36, 0")
    a("s_cbranch_scc1 K3_wr0")
    for qd in range(4):
        a(f"ds_write_b128 v4, {vr(KV+4*qd)} offset:{1024*qd}")
    for dt in range(2):
        a(f"ds_write_b128 v5, {vr(ZZ+4*dt)} offset:{16*dt}")
    a("s_waitcnt lgkmcnt(0)")
    lds_signal(a, 6, S_X, 11)
    a("s_branch K3_q")
    a.label("K3_wr0")
    a("s_lshl_b32 s48, s5, 4")
    a("s_add_u32 s48, s48, s12")
    a("s_lshl_b32 s49, s48, 12")
    a("s_lshl_b32 s50, s48, 7")
    a("v_lshlrev_b32 v7, 4, v14")
    lds_wait(a, "K3_wx", 6, S_X, 1, 8, 42)
    for qd in range(4):
        a(f"ds_read_b128 {vr(16+4*qd)}, v4 offset:{1024*qd}")
    for dt in range(2):
        a(f"ds_read_b128 {vr(32+4*dt)}, v5 offset:{16*dt}")
    for qd in range(6):
        a(f"s_waitcnt lgkmcnt({5-qd})")
        a(f"v_pk_add_f32 {vr(KV+4*qd,2)}, {vr(KV+4*qd,2)}, {vr(16+4*qd,2)}")
        a(f"v_pk_add_f32 {vr(KV+4*qd+2,2)}, {vr(KV+4*qd+2,2)}, {vr(16+4*qd+2,2)}")
        if BP and qd < 4:
            d = 40 + 2 * qd
            a(f"v_cvt_pk_bf16_f32 v{d}, v{KV+4*qd}, v{KV+4*qd+1}")
            a(f"v_cvt_pk_bf16_f32 v{d+1}, v{KV+4*qd+2}, v{KV+4*qd+3}")
            a(f"v_or_b32 v{d}, 1, v{d}")
            a(f"v_or_b32 v{d+1}, 1, v{d+1}")
            if qd & 1:
                a(f"buffer_store_dwordx4 {vr(d-2)}, v3, s[28:31], s49 offen offset:{1024*(qd//2)} sc1")
            continue
        for i in range(4):
            a(f"v_or_b32 v{KV+4*qd+i}, 1, v{KV+4*qd+i}")
        if qd < 4:
            a(f"buffer_store_dwordx4 {vr(KV+4*qd)}, v3, s[28:31], s49 offen offset:{1024*qd} sc1")
    a("s_mov_b32 exec_lo, 0x00010001")
    a("s_mov_b32 exec_hi, 0x00010001")
    for dt in range(2):
        a(f"buffer_store_dwordx4 {vr(ZZ+4*dt)}, v7, s[32:35], s50 offen offset:{64*dt} sc1")
    a("s_mov_b64 exec, -1")
    lds_signal(a, 10, S_KVS, 11)
    a.label("K3_q")
    stamp(a, 3)
    a("s_lshl_b32 s43, s3, 12")
    a(f"s_add_u32 s43, s43, {PQ_BASE}")
    a("v_add_u32 v4, s43, v3")
    for mt in range(4):
        d = 80 + 4 * mt
        for dt in range(2):
            sr = accr(0, mt, dt)
            a(f"v_cvt_pk_bf16_f32 v{T+2*dt}, v{sr}, v{sr+1}")
            a(f"v_cvt_pk_bf16_f32 v{T+2*dt+1}, v{sr+2}, v{sr+3}")
        unpack4(a, T, T)
        phi8(a, T, d, 44, 46)
        a(f"ds_write_b128 v4, {vr(d)} offset:{1024*mt}")
    a("s_lshl_b32 s43, s3, 2")
    a("v_add_u32 v9, s43, v10")
    if CV32:
        a("v_and_b32 v6, 3, v2")
        a("v_bfe_u32 v7, v2, 2, 2")
        a("v_bfe_u32 v4, v2, 4, 1")
        a("v_lshrrev_b32 v5, 5, v2")
        a("v_lshlrev_b32 v12, 5, v4")
        a("v_lshl_add_u32 v12, v6, 3, v12")
        a("v_lshl_add_u32 v12, v5, 6, v12")
        a("v_lshlrev_b32 v7, 3, v7")
        a("v_sub_u32 v12, v12, v7")
        a("s_add_u32 s43, s7, 32")
        a("v_add_u32 v12, s43, v12")
        a("v_lshlrev_b32 v13, 8, v4")
        a("v_lshl_add_u32 v13, v6, 6, v13")
        a("v_add_u32 v13, v13, v7")
        a("v_lshlrev_b32 v5, 6, v5")
        a("v_sub_u32 v13, v13, v5")
        a(f"s_add_u32 s43, s7, {CV_UB-384}")
        a("v_add_u32 v13, s43, v13")
    else:
        a("v_and_b32 v6, 3, v2")
        a("v_bfe_u32 v7, v2, 2, 2")
        a("v_add_u32 v12, v6, v7")
        a("v_lshlrev_b32 v12, 3, v12")
        a("v_lshl_add_u32 v12, v14, 6, v12")
        a(f"s_add_u32 s43, s7, {CV_HB-24}")
        a("v_add_u32 v12, s43, v12")
        a("v_lshlrev_b32 v13, 5, v6")
        a("v_lshlrev_b32 v7, 3, v7")
        a("v_sub_u32 v13, v13, v7")
        a("v_lshlrev_b32 v7, 6, v14")
        a("v_sub_u32 v13, v13, v7")
        a(f"s_add_u32 s43, s7, {CV_UB+24-32}")
        a("v_add_u32 v13, s43, v13")
    a(f"s_add_u32 s43, s7, {CV_UB}")
    a("v_add_u32 v8, s43, v3")
    a("s_waitcnt lgkmcnt(0)")
    lds_signal(a, 9, S_PQ, 11)
    stamp(a, 4)
    lds_wait(a, "K3_whu", 9, S_HU, 1, 16, 42)
    stamp(a, 5)

    HH, FU = 32, 96
    ACC = [16, 20, 24, 28]
    T2, T1, YV, PK = [224, 225], [226, 227], [228, 229], [232, 236, 240, 244]
    lg.q = []

    def fu_reads(s):
        for hf in range(2):
            a(f"ds_read_b64_tr_b16 {vr(FU+4*s+2*hf,2)}, v13 offset:{128*s + 32*(1-hf)}")
            lg.issue(("fu", s))

    def h_reads(t):
        for hf in range(2):
            a(f"ds_read_b64_tr_b16 {vr(HH+4*t+2*hf,2)}, v12 offset:{256*t + 32*hf}")
            lg.issue(("h", t))

    def epi(Q):
        ops = []
        R0 = ACC[Q % 4]
        R1, R2, R3 = R0 + 1, R0 + 2, R0 + 3
        cur, prv = Q & 1, (Q & 1) ^ 1
        if Q == 0:
            ops.append(f"v_add_f32_dpp v{T2[cur]}, v{R3}, v{R2} wave_shr:1 {DPP} bound_ctrl:0")
            ops.append(f"v_add_f32_dpp v{T1[cur]}, v{T2[cur]}, v{R1} wave_shr:1 {DPP} bound_ctrl:0")
            ops.append(f"v_add_f32_dpp v{YV[cur]}, v{T1[cur]}, v{R0} wave_shr:1 {DPP} bound_ctrl:0")
        else:
            r3p = ACC[(Q - 1) % 4] + 3
            ops.append(f"v_add_f32_dpp v{T2[cur]}, v{r3p}, v{R2} wave_ror:1 {DPP}")
            ops.append(f"v_add_f32_dpp v{T1[cur]}, v{T2[prv]}, v{R1} wave_ror:1 {DPP}")
            ops.append(f"v_add_f32_dpp v{YV[cur]}, v{T1[prv]}, v{R0} wave_ror:1 {DPP}")
            ops.append(f"v_add_f32_dpp v{T2[cur]}, v{R3}, v{R2} wave_shr:1 {DPP}")
            ops.append(f"v_add_f32_dpp v{T1[cur]}, v{T2[cur]}, v{R1} wave_shr:1 {DPP}")
            ops.append(f"v_add_f32_dpp v{YV[cur]}, v{T1[cur]}, v{R0} wave_shr:1 {DPP}")
        if Q & 1:
            p = PK[Q // 8] + (Q % 8) // 2
            ops.append(f"v_cvt_pk_bf16_f32 v{p}, v{YV[0]}, v{YV[1]}")
            ops.append(f"v_or_b32 v{p}, 1, v{p}")
        return ops

    if CV32:
        conv32(a, lg, PK)
    else:
        PRE = 3
        for c in range(PRE):
            fu_reads(c)
            if c % 2 == 0:
                h_reads(c // 2)
        pending = []
        for c in range(32):
            nst = c // 2 + 1
            for t in range(nst):
                s = c - 2 * t
                lg.wait_for([("fu", s), ("h", t)])
                mfma16(a, ACC[c % 4], FU + 4 * s, HH + 4 * t, "0" if t == 0 else None)
                if t == 0 and c + PRE < 32:
                    fu_reads(c + PRE)
                    if (c + PRE) % 2 == 0:
                        h_reads((c + PRE) // 2)
                if t == 0 and c >= 2:
                    assert not pending
                    pending = epi(c - 2)
                k = max(1, -(-len(pending) // (nst - t))) if pending else 0
                for _ in range(k):
                    a(pending.pop(0))
        for Q in (30, 31):
            for op in epi(Q):
                a(op)
    srd_off(a, 28, P_WS, WS_UT, 4 * MB)
    a("s_lshl_b32 s40, s6, 12")
    for g in range(4):
        a(f"buffer_store_dwordx4 {vr(PK[g])}, v3, s[28:31], s40 offen offset:{1024*g} sc1")
    a("s_and_b32 s40, s10, 3")
    a("s_lshl_b32 s40, s40, 2")
    a("s_and_b32 s41, s11, 3")
    a("s_add_u32 s40, s40, s41")
    a("s_lshl_b32 s41, s40, 3")
    a("s_lshl_b32 s42, s3, 1")
    a("s_add_u32 s41, s41, s42")
    a("s_lshl_b32 s48, s41, 15")
    a("s_mov_b32 s47, s48")
    a("v_lshrrev_b32 v5, 5, v2")
    a("v_and_b32 v6, 1, v14")
    a("v_lshlrev_b32 v12, 15, v6")
    a("v_lshl_add_u32 v12, v5, 8, v12")
    a("v_lshl_add_u32 v12, v15, 4, v12")
    srd_off(a, 28, P_WS, WS_OF, 4 * MB)
    srd(a, 32, P_OUT, 8 * MB)
    a("s_waitcnt lgkmcnt(0)")
    lds_signal(a, 9, S_CD, 11)
    stamp(a, 6)
    if CPOST:
        a("s_lshl_b32 s16, s10, 1")
        a("s_lshr_b32 s17, s11, 4")
        a("s_add_u32 s16, s16, s17")
        a("s_and_b32 s17, s11, 15")
        a("s_lshl_b32 s17, s17, 2")
        a("s_add_u32 s17, s17, s4")
        a("s_lshr_b32 s18, s17, 4")
        a("s_and_b32 s17, s17, 15")
        a("s_lshl_b32 s19, s18, 9")
        a("s_lshl_b32 s64, s17, 2")
        a("s_add_u32 s19, s19, s64")
        a("s_lshl_b32 s64, s19, 11")
        a("s_lshl_b32 s65, s16, 7")
        a("s_add_u32 s64, s64, s65")
        a("s_lshl_b32 s72, s19, 12")
        a("s_add_u32 s72, s72, s65")
        a("s_lshl_b32 s73, s16, 18")
        a("s_lshl_b32 s65, s18, 10")
        a("s_add_u32 s73, s73, s65")
        a("s_lshl_b32 s65, s17, 6")
        a("s_add_u32 s73, s73, s65")
        a("s_add_u32 s65, s73, 4096")
        a("s_add_u32 s66, s73, 8192")
        a("s_add_u32 s67, s73, 12288")
        a("v_lshlrev_b32 v224, 12, v14")
        a("v_lshl_add_u32 v224, v15, 3, v224")
        a("v_lshlrev_b32 v225, 14, v15")
        a("v_lshl_add_u32 v225, v14, 4, v225")
        a("v_lshlrev_b32 v4, 11, v14")
        a("v_lshl_add_u32 v4, v15, 3, v4")
        srd(a, 16, P_Q, 4 * MB)
        srd_off(a, 20, P_WS, WS_UT, 4 * MB)
        for jj in range(8):
            a(f"buffer_load_dwordx2 {vr(208+2*jj,2)}, v4, s[16:19], s64 offen")
            a(f"s_add_u32 s64, s64, {64*2048}")
        a("s_waitcnt vmcnt(0)")
        a(f"s_mov_b32 s43, {RETRY_MAX}")
        a.label("K3_cp")
        for ci, sr in enumerate((73, 65, 66, 67)):
            a(f"buffer_load_dwordx4 {vr(16+4*ci)}, v225, s[20:23], s{sr} offen sc1")
        a(f"ds_read_b32 v49, v10 offset:{S_WOM}")
        a("s_waitcnt vmcnt(0) lgkmcnt(0)")
        and_reduce(a, 48, range(16, 32))
        a("v_readfirstlane_b32 s42, v49")
        a("v_cmp_eq_u32 vcc, 0, v48")
        a("s_cmp_eq_u64 vcc, 0")
        a("s_cbranch_scc1 K3_cp_ok")
        a("s_cmp_ge_u32 s42, 4")
        a("s_cbranch_scc1 K3_cp_skip")
        a("s_sub_u32 s43, s43, 1")
        a("s_cbranch_scc1 K3_cp_skip")
        a("s_sleep 6")
        a("s_branch K3_cp")
        a.label("K3_cp_ok")
        lds_signal(a, 9, S_PD, 11)
        post_compute(a, 208, True)
        a.label("K3_cp_skip")
    lds_wait(a, "K3_wwo", 10, S_WOM, 4, 80, 42)
    if CPOST:
        lds_signal(a, 9, S_G2, 11)
    stamp(a, 7)
    cstamp(a, 12)
    vm = Cnt(a, "vmcnt", 63)
    AR = 96
    D = ADEPTH
    if "a" in XP:
        srd(a, 28, P_X, 4 * MB)
        a("s_lshl_b32 s48, s12, 18")
        a("s_lshl_b32 s47, s3, 16")
        a("s_add_u32 s48, s48, s47")

    def aload(h):
        for f in range(2):
            r = AR + 8 * (h % D) + 4 * f
            a(f"buffer_load_dwordx4 {vr(r)}, v12, s[28:31], s48 offen offset:{1024*(h%4)+512*f}{ASC}")
            vm.issue(("A", h))
        if h % 4 == 3:
            a("s_add_u32 s48, s48, 4096")

    if G2PRIO:
        a(f"s_setprio {G2PRIO}")
    for h in range(AINIT):
        aload(h)
    anext = [AINIT]
    a("v_bfe_u32 v4, v2, 2, 2")
    a("v_and_b32 v7, 3, v2")
    a("v_lshlrev_b32 v4, 6, v4")
    a("v_lshl_add_u32 v4, v7, 3, v4")
    a("v_lshl_add_u32 v4, v5, 9, v4")
    a("v_xor_b32 v7, v6, v5")
    a("v_lshl_add_u32 v13, v7, 5, v4")
    a(f"v_add_u32 v4, {WO_BASE}, v13")
    a(f"v_add_u32 v8, {WO_BASE + 65536}, v13")

    def check_ops(g):
        r = AR + 8 * ((4 * g) % D)
        ops = [f"v_bitop3_b32 v81, v{r}, v{r+1}, v{r+2} bitop3:0x80"]
        for i in range(3, 31, 2):
            ops.append(f"v_bitop3_b32 v81, v81, v{r+i}, v{r+i+1} bitop3:0x80")
        ops.append(f"v_bitop3_b32 v81, v81, v{r+31}, 1 bitop3:0x80")
        return ops

    def check_branch(g):
        if "a" in XP:
            a.label(f"K3_retry{g}_ret")
            return
        a("v_cmp_eq_u32 vcc, 0, v81")
        a("s_cmp_lg_u64 vcc, 0")
        a(f"s_cbranch_scc1 K3_retry{g}")
        a.label(f"K3_retry{g}_ret")

    def retry_block(g):
        a.label(f"K3_retry{g}")
        a(f"s_mov_b32 s46, {RETRY_MAX}")
        a(f"s_add_u32 s44, s47, {4096*g}")
        a.label(f"K3_retry{g}_l")
        a("s_add_u32 s75, s75, 1")
        a("s_sleep 4")
        for hh in range(4):
            for f in range(2):
                r = AR + 8 * ((4 * g + hh) % D) + 4 * f
                a(f"buffer_load_dwordx4 {vr(r)}, v12, s[28:31], s44 offen offset:{1024*hh+512*f} sc1")
        a("s_waitcnt vmcnt(0)")
        for op in check_ops(g):
            a(op)
        a("v_cmp_eq_u32 vcc, 0, v81")
        a("s_sub_u32 s46, s46, 1")
        a(f"s_cbranch_scc1 K3_retry{g}_ret")
        a("s_cmp_lg_u64 vcc, 0")
        a(f"s_cbranch_scc1 K3_retry{g}_l")
        a(f"s_branch K3_retry{g}_ret")

    lg.q = []
    BS = [48, 64]

    def breads(h):
        out = []
        st = h & 1
        if h < 16:
            vb, off = 4, h * 4096
        elif h < 28:
            vb, off = 8, (h - 16) * 4096
        else:
            vb, off = 13, (h - 28) * CV_REG
        for f in range(2):
            for nb in range(2):
                for hf in range(2):
                    out.append(((h, f, nb), f"ds_read_b64_tr_b16 {vr(BS[st]+8*f+4*nb+2*hf,2)}, v{vb} offset:{off + f*1024 + hf*2048 + nb*256}"))
        return out

    for tag, txt in breads(0):
        a(txt); lg.issue(tag)
    vm.wait_for([("A", 3)])
    for op in check_ops(0):
        a(op)
    check_branch(0)
    chk = []
    for h in range(32):
        nxt = []
        if h == GS and not CPOST:
            lds_signal(a, 9, S_G2, 11)
            lg.issue("sig")
        if h + 1 < 32:
            if h + 1 == 28:
                lg.drain()
                lds_wait(a, "K3_wwt", 10, S_WOT, 4, 80, 42)
            nxt = breads(h + 1)
        if h % 4 == 2 and h + 2 < 32:
            vm.wait_for([("A", h + 5)])
            chk = check_ops(h // 4 + 1) if "k" not in XP else []
        for f in range(2):
            for nb in range(2):
                lg.wait_for([(h, f, nb)])
                d = 16 + 16 * nb
                cs = "0" if (h == 0 and f == 0) else vr(d, 16)
                a(f"v_mfma_f32_32x32x16_bf16 {vr(d,16)}, {vr(BS[h&1]+8*f+4*nb)}, {vr(AR+8*(h%D)+4*f)}, {cs}")
                for _ in range(2):
                    if nxt:
                        tag, txt = nxt.pop(0)
                        a(txt); lg.issue(tag)
                    if chk:
                        a(chk.pop(0))
        if h % 4 == 3 and h + 1 < 32:
            assert not chk
            check_branch(h // 4 + 1)
        for _ in range(2):
            if anext[0] < 32 and anext[0] <= h + D and "n" not in XP:
                aload(anext[0]); anext[0] += 1
    stamp(a, 8)
    cstamp(a, 13)
    a("v_and_b32 v4, 31, v2")
    a("v_lshlrev_b32 v4, 12, v4")
    a("v_lshl_add_u32 v4, v5, 4, v4")
    a("s_lshr_b32 s36, s10, 2")
    a("s_lshl_b32 s36, s36, 3")
    a("s_lshr_b32 s37, s11, 2")
    a("s_add_u32 s36, s36, s37")
    a("s_lshl_b32 s38, s41, 16")
    a("s_lshl_b32 s39, s36, 7")
    a("s_add_u32 s38, s38, s39")
    a("s_add_u32 s38, s38, 2048")
    if TRO:
        a("v_and_b32 v6, 31, v2")
        a("v_and_b32 v7, 7, v2")
        a("v_xor_b32 v7, v7, v5")
        a("v_lshlrev_b32 v6, 7, v6")
        a(f"s_add_u32 s39, s7, {CV_UB}")
        a("v_add_u32 v6, s39, v6")
        a("v_lshrrev_b32 v8, 3, v2")
        a("v_and_b32 v13, 7, v2")
        a("v_xor_b32 v96, v13, v8")
        a("v_lshlrev_b32 v96, 4, v96")
        a("v_lshl_add_u32 v96, v8, 7, v96")
        a("v_add_u32 v96, s39, v96")
        a("v_lshlrev_b32 v4, 12, v8")
        a("v_lshl_add_u32 v4, v13, 4, v4")
    for nb in range(2):
        for kp in range(2):
            P = 80 + 8 * nb + 4 * kp
            t0 = 16 + 16 * nb + 8 * kp
            for i in range(4):
                a(f"v_cvt_pk_bf16_f32 v{P+i}, v{t0+2*i}, v{t0+2*i+1}")
            a(f"v_permlane32_swap_b32 v{P}, v{P+2}")
            a(f"v_permlane32_swap_b32 v{P+1}, v{P+3}")
            if TRO:
                a(f"v_xor_b32 v97, {4*nb+2*kp}, v7")
                a("v_lshl_add_u32 v97, v97, 4, v6")
                a(f"ds_write_b128 v97, {vr(P)}")
            else:
                a(f"buffer_store_dwordx4 {vr(P)}, v4, s[32:35], s38 offen offset:{64*nb+32*kp}{NTS}{OS2}")
    if TRO:
        for i in range(4):
            a(f"ds_read_b128 {vr(100+4*i)}, v96 offset:{1024*i}")
        for i in range(4):
            a(f"s_waitcnt lgkmcnt({3-i})")
            a(f"buffer_store_dwordx4 {vr(100+4*i)}, v4, s[32:35], s38 offen{NTS}{OS2}")
            a("s_add_u32 s38, s38, 32768")
    stamp_flush(a, 9)
    a("s_endpgm")
    for g in range(8):
        retry_block(g)
    for slot in range(4):
        a.label(f"K3_event{slot}")
        a("s_add_u32 s54, s54, 1")
        a("s_cmp_lg_u32 s54, 1")
        a(f"s_cbranch_scc1 K3_ev2_{slot}")
        a(f"buffer_load_dword v195, v192, s[40:43], s44 offen{NTT}")
        if L2PF:
            a(f"buffer_load_dword v195, v193, s[48:51], s45 offen{NTT}")
            a("s_mov_b32 s55, 1000")
        else:
            a("s_mov_b32 s55, s52")
        a(f"s_branch K3_noev{slot}")
        a.label(f"K3_ev2_{slot}")
        if PREC or FILLC:
            a("s_waitcnt vmcnt(0)")
        a(f"buffer_load_dword v195, v193, s[48:51], s45 offen{NTT}")
        a("s_mov_b32 s55, 1000")
        a(f"s_branch K3_noev{slot}")
        a.label(f"K3_evB{slot}")
        a(f"buffer_load_dword v195, v194, s[64:67], s68 offen{NTT}")
        a(f"buffer_load_dword v195, v194, s[64:67], s69 offen{NTT}")
        a(f"s_branch K3_noevB{slot}")
        a.label(f"K3_evC{slot}")
        a("s_add_u32 s53, s53, 1")
        a("s_cmp_lg_u32 s53, 1")
        a(f"s_cbranch_scc1 K3_ev4_{slot}")
        a("buffer_load_dword v196, v199, s[56:59], 0 offen sc1")
        a(f"s_mov_b32 s71, {NLEAD-1}")
        a(f"s_branch K3_noevC{slot}")
        a.label(f"K3_ev4_{slot}")
        a("s_cmp_lg_u32 s53, 2")
        a(f"s_cbranch_scc1 K3_ev6_{slot}")
        a("s_waitcnt vmcnt(0)")
        a("v_readfirstlane_b32 s46, v196")
        a("s_mov_b64 exec, 1")
        a("s_cmp_lg_u32 s46, 0")
        a(f"s_cbranch_scc1 K3_ev5_{slot}")
        a("v_mov_b32 v196, v198")
        a("v_mov_b32 v197, 0")
        a("buffer_atomic_cmpswap v[196:197], v199, s[56:59], 0 offen sc0 sc1")
        a("s_waitcnt vmcnt(0)")
        a("v_cmp_eq_u32 vcc, 0, v196")
        a("v_cndmask_b32 v196, v196, v198, vcc")
        a.label(f"K3_ev5_{slot}")
        a("buffer_store_dword v196, v199, s[60:63], s47 offen sc1")
        a("s_mov_b64 exec, -1")
        a(f"s_mov_b32 s71, {FLAGN-F1N-1 if not POSTPRE else 1000}")
        a(f"s_branch K3_noevC{slot}")
        a.label(f"K3_ev6_{slot}")
        a("s_mov_b64 exec, 1")
        a("buffer_store_dword v196, v199, s[60:63], s47 offen offset:32 sc1")
        a("s_mov_b64 exec, -1")
        a("s_mov_b32 s71, 1000")
        a(f"s_branch K3_noevC{slot}")

    a.label("K3_L")
    a("v_lshrrev_b32 v4, 3, v2")
    a("v_and_b32 v5, 7, v2")
    for jl in range(4):
        a(f"v_add_u32 v6, {4*(jl&1)}, v14")
        a("v_xor_b32 v6, v6, v5")
        a("v_lshlrev_b32 v6, 4, v6")
        a("v_lshl_add_u32 v6, v4, 11, v6")
        a(f"v_add_u32 v{240+jl}, {jl*(16384-1024)}, v6")
    a("v_lshrrev_b32 v6, 5, v2")
    a("v_bfe_u32 v7, v2, 2, 2")
    a("v_lshl_add_u32 v6, v6, 2, v7")
    a("v_mul_u32_u24 v6, 6144, v6")
    a("v_bfe_u32 v7, v2, 4, 1")
    a("v_lshl_add_u32 v6, v7, 6, v6")
    a("v_and_b32 v7, 3, v2")
    a("v_lshl_add_u32 v6, v7, 4, v6")
    a("v_xor_b32 v7, 32, v6")
    a("s_and_b32 s40, s13, 1")
    a("s_lshl_b32 s40, s40, 7")
    a(f"s_xor_b32 s41, s40, {128 if QX else 0}")
    binst = []
    for seg in range(3):
        for gg in range(2):
            ldsoff = seg * 2048 + gg * 1024
            m0sel, ioff = ldsoff // 4096, ldsoff % 4096
            reg = 244 + seg * 2 + gg
            a(f"v_add_u32 v{reg}, {8*gg*6144 + seg*2048 - ioff}, v{6+gg}")
            a(f"v_add_u32 v{reg}, s{41 if seg == 0 else 40}, v{reg}")
            binst.append((reg, m0sel, ioff))
    a("s_lshl_b32 s38, s12, 7")
    a("s_lshl_b32 s40, s4, 5")
    a("s_add_u32 s38, s38, s40")
    a("s_lshl_b32 s38, s38, 11")
    a("s_mul_i32 s39, s4, 98304")
    a("s_lshr_b32 s40, s13, 1")
    a("s_lshl_b32 s40, s40, 8")
    a("s_add_u32 s39, s39, s40")
    a("s_lshl_b32 s41, s4, 12")
    a("s_mul_i32 s42, s4, 6144")
    a("s_add_u32 s42, s42, 16384")
    srd(a, 16, P_X, 4 * MB)
    srd(a, 20, P_W, 6 * MB)
    vm = Cnt(a, "vmcnt", 63)

    def issue(kt):
        sb = (kt % NS) * STAGE
        a(f"s_add_u32 m0, s41, {sb}")
        for jl in range(4):
            a(f"buffer_load_dwordx4 v{240+jl}, s[16:19], s38 offen offset:{jl*1024}{NTG} lds")
            vm.issue(("st", kt))
        cur = -1
        for reg, m0sel, ioff in binst:
            if m0sel != cur:
                a(f"s_add_u32 m0, s42, {sb + 4096*m0sel}")
                cur = m0sel
            a(f"buffer_load_dwordx4 v{reg}, s[20:23], s39 offen offset:{ioff}{NTG} lds")
            vm.issue(("st", kt))
        a("s_add_u32 s38, s38, 128")
        a(f"s_add_u32 s39, s39, {64*6144}")

    for kt in range(PRO):
        issue(kt)
    srd(a, 24, P_K, 4 * MB)
    srd(a, 28, P_V, 4 * MB)
    srd(a, 32, P_SHK, 8192)
    srd_off(a, 44, P_WS, WS_UT, 4 * MB)
    srd_off(a, 48, P_WS, WS_OF, 4 * MB)
    srd_off(a, 52, P_WS, WS_KVP, 2 * MB)
    srd_off(a, 56, P_WS, WS_ZP, 64 * 1024)
    a("s_lshl_b32 s60, s2, 2")
    a("s_add_u32 s60, s60, s4")
    a("s_and_b32 s61, s60, 15")
    a("s_lshr_b32 s60, s60, 4")
    a("s_lshl_b32 s62, s60, 16")
    a("s_lshl_b32 s63, s61, 7")
    a("s_add_u32 s62, s62, s63")
    a("v_lshlrev_b32 v21, 14, v14")
    a("v_lshl_add_u32 v21, v15, 3, v21")
    a("v_add_u32 v21, s62, v21")
    a("s_lshl_b32 s63, s61, 9")
    a("v_lshlrev_b32 v22, 5, v15")
    a("s_lshl_b32 s62, s61, 18")
    a("s_lshl_b32 s64, s60, 6")
    a("s_add_u32 s62, s62, s64")
    a("v_lshlrev_b32 v19, 14, v15")
    a("v_lshl_add_u32 v19, v14, 4, v19")
    a("s_lshl_b32 s64, s12, 3")
    a("s_lshl_b32 s65, s4, 1")
    a("s_add_u32 s64, s64, s65")
    a("s_lshl_b32 s64, s64, 15")
    a("s_lshr_b32 s65, s15, 1")
    a("s_lshl_b32 s65, s65, 11")
    a("s_add_u32 s64, s64, s65")
    a("s_add_u32 s65, s64, 32768")
    a("s_lshl_b32 s66, s5, 4")
    a("s_add_u32 s66, s66, s12")
    a("s_lshl_b32 s67, s66, 7")
    a("s_lshl_b32 s66, s66, 12")
    a(f"s_lshl_b32 s68, s36, {10 if BP else 11}")
    a("s_add_u32 s66, s66, s68")
    for i in range(4):
        a(f"v_mov_b32 v{160+i}, 0")
    a("v_and_b32 v18, 7, v2")
    a("v_lshlrev_b32 v18, 4, v18")
    fills = [
        f"buffer_store_dwordx4 v[160:163], v3, s[48:51], s64 offen sc1{NTF}",
        f"buffer_store_dwordx4 v[160:163], v3, s[48:51], s64 offen offset:1024 sc1{NTF}",
        f"buffer_store_dwordx4 v[160:163], v3, s[48:51], s65 offen sc1{NTF}",
        f"buffer_store_dwordx4 v[160:163], v3, s[48:51], s65 offen offset:1024 sc1{NTF}",
        f"buffer_store_dwordx4 v[160:163], v3, s[52:55], s66 offen sc1{NTF}",
        f"buffer_store_dwordx4 v[160:163], v3, s[52:55], s66 offen offset:1024 sc1{NTF}",
        f"buffer_store_dwordx4 v[160:163], v18, s[56:59], s67 offen sc1{NTF}",
    ]
    if BP:
        del fills[5]
    W, KF, VF, KS = 72, 88, 110, 126
    loads = []
    for i in range(2):
        loads.append([f"buffer_load_dwordx4 {vr(24+4*i)}, v22, s[32:35], s63 offen offset:{16*i}"])
    for i in range(11):
        loads.append([f"v_add_u32 v23, {((i-3)*2048) & 0xffffffff}, v21", f"buffer_load_dwordx2 {vr(32+2*i,2)}, v23, s[24:27], 0 offen{NTO}"])
    for i in range(8):
        loads.append([f"v_add_u32 v23, {i*2048}, v21", f"buffer_load_dwordx2 {vr(54+2*i,2)}, v23, s[28:31], 0 offen{NTO}"])
    comp = []
    for ci in range(4):
        comp += [f"v_lshlrev_b32 v{W+ci}, 16, v{24+2*ci}", f"v_and_b32 v{W+4+ci}, 0xffff0000, v{24+2*ci}",
                 f"v_lshlrev_b32 v{W+8+ci}, 16, v{25+2*ci}", f"v_and_b32 v{W+12+ci}, 0xffff0000, v{25+2*ci}"]
    for cp in range(2):
        for i in range(11):
            comp += [f"v_lshlrev_b32 v{KF+2*i}, 16, v{32+2*i+cp}", f"v_and_b32 v{KF+2*i+1}, 0xffff0000, v{32+2*i+cp}"]
        for i in range(8):
            comp += [f"v_lshlrev_b32 v{VF+2*i}, 16, v{54+2*i+cp}", f"v_and_b32 v{VF+2*i+1}, 0xffff0000, v{54+2*i+cp}"]
        for i in range(16):
            comp.append(f"v_mul_f32 v{KS+i}, v{KF+i}, v{W+12+2*cp+(i&1)}")
        for j in (2, 1, 0):
            for i in range(16):
                comp.append(f"v_fmac_f32 v{KS+i}, v{KF+2*(3-j)+i}, v{W+4*j+2*cp+(i&1)}")
        for i in range(16):
            comp.append(f"v_mul_f32 v{KS+i}, v{KS+i}, v{VF+i}")
        O = 144 + 8 * cp
        for e in range(2):
            for i in range(4):
                comp.append(f"v_cvt_pk_bf16_f32 v{O+4*e+i}, v{KS+4*i+e}, v{KS+4*i+2+e}")
        for i in range(8):
            comp.append(f"v_and_b32 v{O+i}, -2, v{O+i}")
        for e in range(2):
            comp.append(("st", f"buffer_store_dwordx4 {vr(O+4*e)}, v19, s[44:47], s62 offen sc1"))
            comp.append("s_add_u32 s62, s62, 4096")
    PCE = env("PCE", FLAGN - 3)
    PCS = PL0 + NPL + env("PGAP", 0)
    NPC = PCE - PCS
    per = -(-len(comp) // NPC)
    a("v_lshrrev_b32 v6, 5, v2")
    a("v_bfe_u32 v7, v2, 2, 2")
    a("v_lshl_add_u32 v7, v6, 2, v7")
    a("v_lshlrev_b32 v7, 11, v7")
    a("v_bfe_u32 v8, v2, 4, 1")
    a("v_lshl_add_u32 v7, v8, 6, v7")
    a("v_and_b32 v8, 3, v2")
    a("v_lshlrev_b32 v6, 1, v6")
    a("v_xor_b32 v8, v8, v6")
    a("v_lshl_add_u32 v7, v8, 4, v7")
    for i in range(4):
        a(f"v_add_u32 v{232+i}, {i*(16384-1024)}, v7")
    a("s_lshl_b32 s69, s4, 16")
    a("s_lshr_b32 s70, s10, 2")
    a("s_lshl_b32 s70, s70, 3")
    a("s_lshr_b32 s71, s11, 2")
    a("s_add_u32 s70, s70, s71")
    a("s_lshl_b32 s70, s70, 7")
    a("s_add_u32 s69, s69, s70")
    a("s_lshl_b32 s70, s4, 12")
    a(f"s_add_u32 s70, s70, {WO_BASE}")
    a("s_lshl_b32 s71, s6, 12")
    a(f"v_mov_b32 v10, {SYNC}")
    a("v_mov_b32 v11, 1")
    a("s_lshl_b32 s43, s4, 2")
    a("v_add_u32 v9, s43, v10")

    def wo_issue(k):
        if k < 7:
            a(f"s_add_u32 m0, s70, {k*16384}")
        else:
            a("s_mov_b32 m0, s7")
        for i in range(4):
            a(f"buffer_load_dwordx4 v{232+i}, s[20:23], s69 offen offset:{i*1024}{NTG} lds")
            vm.issue("wo")
        a(f"s_add_u32 s69, s69, {128*2048}")

    def post_setup():
        a("s_lshl_b32 s16, s10, 1")
        a("s_lshr_b32 s17, s11, 4")
        a("s_add_u32 s16, s16, s17")
        a("s_and_b32 s17, s11, 15")
        a("s_lshl_b32 s17, s17, 2")
        a("s_add_u32 s17, s17, s4")
        a("s_lshr_b32 s18, s17, 4")
        a("s_and_b32 s17, s17, 15")
        a("s_lshl_b32 s19, s18, 9")
        a("s_lshl_b32 s64, s17, 2")
        a("s_add_u32 s19, s19, s64")
        a("s_lshl_b32 s64, s19, 11")
        a("s_lshl_b32 s65, s16, 7")
        a("s_add_u32 s64, s64, s65")
        a("s_lshl_b32 s72, s19, 12")
        a("s_add_u32 s72, s72, s65")
        a("s_lshl_b32 s73, s16, 18")
        a("s_lshl_b32 s65, s18, 10")
        a("s_add_u32 s73, s73, s65")
        a("s_lshl_b32 s65, s17, 6")
        a("s_add_u32 s73, s73, s65")
        a("s_add_u32 s65, s73, 4096")
        a("s_add_u32 s66, s73, 8192")
        a("s_add_u32 s67, s73, 12288")
        a("v_lshlrev_b32 v224, 12, v14")
        a("v_lshl_add_u32 v224, v15, 3, v224")
        a("v_lshlrev_b32 v225, 14, v15")
        a("v_lshl_add_u32 v225, v14, 4, v225")

    def q_loads():
        srd(a, 16, P_Q, 4 * MB)
        a("v_lshlrev_b32 v4, 11, v14")
        a("v_lshl_add_u32 v4, v15, 3, v4")
        for jj in range(8):
            a(f"buffer_load_dwordx2 {vr(QR+2*jj,2)}, v4, s[16:19], s64 offen{NTO}")
            vm.issue("q")
            a(f"s_add_u32 s64, s64, {64*2048}")

    QR = 208

    def h_issue():
        a(f"s_add_u32 m0, s7, {CV_HB}")
        for c in range(4):
            a(f"buffer_load_dwordx4 v3, s[16:19], s71 offen offset:{1024*c}{NTO} lds")
            vm.issue("h")
        a("s_lshl_b32 s43, s6, 1")
        a("v_mov_b32 v4, 0")
        a("buffer_load_ushort v164, v4, s[20:23], s43 offen")
        vm.issue("h")
        srd(a, 20, P_WO, 2 * MB)

    for kt in range(16):
        tags = [("st", kt)]
        if kt == F1N + 1:
            tags += ["fill"]
        if kt == FLAGN + 1:
            tags += ["ust"]
        vm.wait_for(tags)
        if kt == 14:
            a("s_waitcnt lgkmcnt(0)")
        a("s_barrier")
        if kt in (2, 5, 8, 11, 14):
            stamp(a, 10 + (2, 5, 8, 11, 14).index(kt))
        if kt == 0:
            for k2 in range(PRO, NS - 1):
                issue(k2)
        if kt + NS - 1 < 16:
            issue(kt + NS - 1)
        for op in spf[SPF_C + kt * SPF_L: SPF_C + (kt + 1) * SPF_L]:
            a(op)
        if FL0 <= kt < FL0 + len(fills) and "f" not in XP and not FILLC:
            a(fills[kt - FL0]); vm.issue("fill")
        if POSTPRE and kt in (14, 15):
            for grp in (loads[:13] if kt == 14 else loads[13:]):
                for op in grp:
                    a(op)
                vm.issue("pre")
        if PL0 <= kt < PL0 + NPL and "l" not in XP and not POSTPRE and not PREC:
            q = -(-len(loads) // NPL)
            for grp in loads[(kt - PL0) * q: (kt - PL0 + 1) * q]:
                for op in grp:
                    a(op)
                vm.issue("pre")
        if kt == 13:
            post_setup()
            srd(a, 16, P_H, 4 * MB)
            srd(a, 20, P_D, 2048)
            a("v_mov_b32 v4, 0")
            a("v_lshlrev_b32 v5, 2, v2")
            a(f"v_add_u32 v6, {SYNC}, v5")
            a("ds_write_b32 v6, v4")
            a("v_add_u32 v6, s7, v5")
            a(f"ds_write_b32 v6, v4 offset:{CV_UB-256}")
            if CV32:
                a(f"ds_write_b32 v6, v4 offset:{CV_UB-512}")
            a(f"v_and_b32 v6, {15 if CV32 else 7}, v2")
            a("v_lshlrev_b32 v6, 2, v6")
            a("v_add_u32 v6, s7, v6")
            a("ds_write_b32 v6, v4")
            h_issue()
            if QEARLY:
                q_loads()
        if PCS <= kt < PCE and not POSTPRE and not PREC:
            if kt == PCS:
                vm.wait_for(["pre"])
            for op in comp[:per]:
                if "c" in XP and not isinstance(op, tuple):
                    continue
                if isinstance(op, tuple):
                    if "u" in XP:
                        continue
                    a(op[1]); vm.issue("ust")
                else:
                    a(op)
            comp = comp[per:]
        if kt == 14 and EARLYWO >= 2:
            wo_issue(0); wo_issue(1)
        if kt == 15 and EARLYWO >= 4:
            wo_issue(2); wo_issue(3)
    assert POSTPRE or PREC or not comp
    a("s_barrier")
    stamp(a, 1)
    if POSTPRE:
        vm.wait_for(["pre"])
        for ci in range(4):
            a(f"v_lshlrev_b32 v{W+ci}, 16, v{24+2*ci}")
            a(f"v_and_b32 v{W+4+ci}, 0xffff0000, v{24+2*ci}")
            a(f"v_lshlrev_b32 v{W+8+ci}, 16, v{25+2*ci}")
            a(f"v_and_b32 v{W+12+ci}, 0xffff0000, v{25+2*ci}")
        for cp in range(2):
            for i in range(11):
                a(f"v_lshlrev_b32 v{KF+2*i}, 16, v{32+2*i+cp}")
                a(f"v_and_b32 v{KF+2*i+1}, 0xffff0000, v{32+2*i+cp}")
            for i in range(8):
                a(f"v_lshlrev_b32 v{VF+2*i}, 16, v{54+2*i+cp}")
                a(f"v_and_b32 v{VF+2*i+1}, 0xffff0000, v{54+2*i+cp}")
            for i in range(8):
                a(f"v_pk_mul_f32 {vr(KS+2*i,2)}, {vr(KF+2*i,2)}, {vr(W+12+2*cp,2)}")
            for j in (2, 1, 0):
                for i in range(8):
                    a(f"v_pk_fma_f32 {vr(KS+2*i,2)}, {vr(KF+2*(i+3-j),2)}, {vr(W+4*j+2*cp,2)}, {vr(KS+2*i,2)}")
            for i in range(8):
                a(f"v_pk_mul_f32 {vr(KS+2*i,2)}, {vr(KS+2*i,2)}, {vr(VF+2*i,2)}")
            O = 144 + 8 * cp
            for e in range(2):
                for i in range(4):
                    a(f"v_cvt_pk_bf16_f32 v{O+4*e+i}, v{KS+4*i+e}, v{KS+4*i+2+e}")
            for i in range(8):
                a(f"v_and_b32 v{O+i}, -2, v{O+i}")
            for e in range(2):
                a(f"buffer_store_dwordx4 {vr(O+4*e)}, v19, s[44:47], s62 offen sc1")
                a("s_add_u32 s62, s62, 4096")
    srd(a, 24, P_DBG, 256)
    srd(a, 32, P_OUT, 8 * MB)
    a("s_mov_b32 s40, 0")
    a("s_mov_b32 s42, 0")
    a("v_lshrrev_b32 v5, 1, v2")
    a("v_lshlrev_b32 v5, 7, v5")
    a("v_and_b32 v4, 1, v2")
    a("v_lshl_add_u32 v5, v4, 4, v5")
    a("v_mov_b32 v4, 0")
    a("buffer_load_dword v226, v4, s[24:27], 0 offen sc1")
    srd_off(a, 24, P_WS, WS_FLAG, 4096)
    a("v_lshlrev_b32 v6, 7, v15")
    a("v_lshl_add_u32 v6, v14, 4, v6")
    a("s_lshl_b32 s60, s15, 11")
    a("s_lshl_b32 s61, s15, 16")
    a(f"s_lshl_b32 s62, s36, {10 if BP else 11}")
    a("s_add_u32 s61, s61, s62")

    def flagcmp(r):
        for i in range(4):
            a(f"v_xor_b32 v{r+i}, v{r+i}, v226")
        a(f"v_or3_b32 v{r}, v{r}, v{r+1}, v{r+2}")
        a(f"v_or_b32 v{r}, v{r}, v{r+3}")
        a(f"v_cmp_ne_u32 vcc, 0, v{r}")

    def u_block(ret):
        a(f"s_add_u32 m0, s7, {CV_UB}")
        for c in range(4):
            a(f"buffer_load_dwordx4 v3, s[44:47], s71 offen offset:{1024*c} sc1 lds")
        a("s_mov_b32 s42, 1")
        a("s_waitcnt vmcnt(0) lgkmcnt(0)")
        lds_signal(a, 9, S_HU, 11)
        stamp(a, 3)
    a(f"s_mov_b32 s43, {RETRY_MAX}")
    a.label("K3_fp")
    a(f"buffer_load_dwordx4 {vr(24)}, v5, s[24:27], 0 offen sc1")
    a(f"buffer_load_dwordx4 {vr(28)}, v5, s[24:27], 0 offen offset:32 sc1")
    a("s_waitcnt vmcnt(0)")
    vm.q = []
    flagcmp(24)
    a("s_sub_u32 s43, s43, 1")
    a("s_cbranch_scc1 K3_fp_ok")
    a("s_cmp_eq_u64 vcc, 0")
    a("s_cbranch_scc1 K3_fp_ok")
    a("s_add_u32 s75, s75, 1")
    a("s_sleep 8")
    a("s_branch K3_fp")
    a.label("K3_fp_ok")
    if POSTPRE:
        a("s_mov_b64 exec, 1")
        a(f"ds_add_rtn_u32 v7, v10, v11 offset:{S_GO}")
        a("s_waitcnt lgkmcnt(0)")
        a("v_readfirstlane_b32 s43, v7")
        a("s_lshl_b32 s62, s11, 7")
        a("s_lshl_b32 s63, s10, 2")
        a("s_add_u32 s62, s62, s63")
        a("s_cmp_lg_u32 s43, 3")
        a("s_cbranch_scc1 K3_nof2")
        a("buffer_store_dword v226, v4, s[24:27], s62 offen offset:32 sc1")
        a.label("K3_nof2")
        a("s_mov_b64 exec, -1")
    stamp(a, 2)
    a("v_mov_b32 v4, s7")
    a(f"ds_read_u16 v7, v4 offset:{CV_HB}")
    a("v_lshlrev_b32 v164, 16, v164")
    a("s_waitcnt lgkmcnt(0)")
    a("v_lshlrev_b32 v7, 16, v7")
    a("v_add_f32 v7, v7, v164")
    a("v_cvt_pk_bf16_f32 v7, v7, v7")
    a(f"ds_write_b16 v4, v7 offset:{CV_HB}")
    flagcmp(28)
    a("s_cmp_lg_u64 vcc, 0")
    a("s_cbranch_scc1 K3_nou0")
    u_block(0)
    a.label("K3_nou0")
    if WAITKV:
        lds_wait(a, "K3_wkvs", 10, S_KVS, 2, 16, 62, sleep=1)
    PQR = 192

    def bulkA():
        for k in range(EARLYWO, 6):
            wo_issue(k)
        a("v_and_b32 v7, 31, v2")
        a("v_lshlrev_b32 v7, 11, v7")
        a(f"s_add_u32 s62, s69, {128*2048}")
        a("buffer_load_dword v165, v7, s[20:23], s62 offen")
        if CPOST:
            srd(a, 16, P_Q, 4 * MB)
            a("v_bfe_u32 v7, v2, 2, 3")
            a("v_lshlrev_b32 v7, 17, v7")
            a("v_and_b32 v8, 3, v2")
            a("v_lshl_add_u32 v7, v8, 11, v7")
            a("buffer_load_dword v165, v7, s[16:19], s64 offen")

    def pq_pick():
        a("s_lshl_b32 s43, s4, 12")
        a(f"s_add_u32 s43, s43, {PQ_BASE}")
        a("v_add_u32 v8, s43, v3")
        lds_wait(a, "K3_wpq", 9, S_PQ, 1, 16, 62, sleep=1)
        for mt in range(4):
            a(f"ds_read_b128 {vr(PQR+4*mt)}, v8 offset:{1024*mt}")
        a("s_waitcnt lgkmcnt(0)")

    if not ZFIRST:
        bulkA()
        pq_pick()
    if PG:
        vm.q = []
        a("s_setprio 2")
        a("s_mov_b32 s62, s61")
        for p in range(16):
            for dt in range(2):
                a(f"buffer_load_dwordx4 {vr(64+8*p+4*dt)}, v3, s[52:55], s62 offen offset:{1024*dt}{GSC}")
                vm.issue(("kv", p))
            a("s_add_u32 s62, s62, 4096")
    if not ZFIRST:
        wo_issue(6)
    if PG:
        if not QEARLY and not CPOST:
            q_loads()
        for i in range(8):
            a(f"v_mov_b32 v{56+i}, 0")
        a("s_mov_b32 s63, 0")
        for p in range(16):
            vm.wait_for([("kv", p)])
            r = 64 + 8 * p
            and_reduce(a, 16, range(r, r + 8))
            a("v_cmp_eq_u32 vcc, 0, v16")
            a(f"s_bitset1_b32 s63, {p}")
            a("s_cmp_lg_u64 vcc, 0")
            a(f"s_cbranch_scc1 K3_pg{p}")
            a(f"s_bitset0_b32 s63, {p}")
            for i in range(8):
                a(f"v_add_f32 v{56+i}, v{56+i}, v{r+i}")
            a.label(f"K3_pg{p}")
    a(f"s_mov_b32 s43, {RETRY_MAX}")
    a.label("K3_zp")
    for dt in range(2):
        a(f"buffer_load_dwordx4 {vr(32+4*dt)}, v6, s[56:59], s60 offen offset:{64*dt} sc1")
    a("s_cmp_lg_u32 s42, 0")
    a("s_cbranch_scc1 K3_zp_nf")
    a(f"buffer_load_dwordx4 {vr(28)}, v5, s[24:27], 0 offen offset:32 sc1")
    a("s_waitcnt vmcnt(0)")
    flagcmp(28)
    a("s_cmp_lg_u64 vcc, 0")
    a("s_cbranch_scc1 K3_zp_nf")
    u_block(1)
    a.label("K3_zp_nf")
    a(f"ds_read_b32 v17, v9 offset:{S_CD}")
    a("s_waitcnt vmcnt(0) lgkmcnt(0)")
    vm.q = []
    and_reduce(a, 16, range(32, 40))
    a("v_readfirstlane_b32 s41, v17")
    a("v_cmp_eq_u32 vcc, 0, v16")
    a("s_sub_u32 s43, s43, 1")
    a("s_cbranch_scc1 K3_zp_ok")
    a("s_cmp_eq_u64 vcc, 0")
    a("s_cbranch_scc1 K3_zp_ok")
    a("s_cmp_lg_u32 s40, 0")
    a("s_cbranch_scc1 K3_zp_s2")
    if QEARLY:
        a("s_cmp_lg_u32 s41, 0")
        a("s_cbranch_scc1 K3_post")
    a.label("K3_zp_s2")
    a(f"s_sleep {ZSLEEP}")
    a("s_branch K3_zp")
    a.label("K3_zp_ok")
    if PG:
        stamp(a, 4)
        a(f"s_mov_b32 s43, {RETRY_MAX}")
        a.label("K3_ml")
        a("s_cmp_eq_u32 s63, 0")
        a("s_cbranch_scc1 K3_ml_done")
        a("s_ff1_i32_b32 s41, s63")
        a("s_lshl_b32 s62, s41, 12")
        a("s_add_u32 s62, s62, s61")
        for dt in range(2):
            a(f"buffer_load_dwordx4 {vr(64+4*dt)}, v3, s[52:55], s62 offen offset:{1024*dt} sc1")
        a("s_add_u32 s75, s75, 1")
        a("s_waitcnt vmcnt(0)")
        and_reduce(a, 16, range(64, 72))
        a("v_cmp_eq_u32 vcc, 0, v16")
        a("s_sub_u32 s43, s43, 1")
        a("s_cbranch_scc1 K3_ml_done")
        a("s_cmp_lg_u64 vcc, 0")
        a("s_cbranch_scc1 K3_ml")
        a("s_bitset0_b32 s63, s41")
        for i in range(8):
            a(f"v_add_f32 v{56+i}, v{56+i}, v{64+i}")
        a("s_branch K3_ml")
        a.label("K3_ml_done")
        for i in range(8):
            a(f"v_add_f32_dpp v{40+i}, v{32+i}, v{32+i} row_ror:8 {DPP}")
        for sh in (4, 2, 1):
            for i in range(8):
                a(f"v_add_f32_dpp v{40+i}, v{40+i}, v{40+i} row_ror:{sh} {DPP}")
        for i in range(4):
            a(f"v_cvt_pk_bf16_f32 v{48+i}, v{40+2*i}, v{41+2*i}")
        for i in range(8):
            a(f"v_mov_b32 v{64+i}, v{56+i}")
    else:
        stamp(a, 4)
        a("s_setprio 2")
        a(f"s_mov_b32 s43, {RETRY_MAX}")
        def gloads(fl, track):
            a("s_mov_b32 s62, s61")
            for p in range(16):
                for dt in range(1 if BP else 2):
                    r = 96 + 4 * p if BP else 64 + 8 * p + 4 * dt
                    a(f"buffer_load_dwordx4 {vr(r)}, v3, s[52:55], s62 offen offset:{1024*dt}{fl}")
                    if track:
                        vm.issue(("kv", p))
                a("s_add_u32 s62, s62, 4096")
        gloads(GSC, True)
        if ZFIRST:
            bulkA()
            vm.issue("t")
        if not QEARLY and not CPOST:
            q_loads()
        a.label("K3_gl")
        for i in range(8):
            a(f"v_add_f32_dpp v{40+i}, v{32+i}, v{32+i} row_ror:8 {DPP}")
        for sh in (4, 2, 1):
            for i in range(8):
                a(f"v_add_f32_dpp v{40+i}, v{40+i}, v{40+i} row_ror:{sh} {DPP}")
        for i in range(4):
            a(f"v_cvt_pk_bf16_f32 v{48+i}, v{40+2*i}, v{41+2*i}")
        a("v_mov_b32 v16, 1")
        for p in range(16):
            vm.wait_for([("kv", p)])
            if BP:
                r = 96 + 4 * p
                for i in range(0, 4, 2):
                    a(f"v_bitop3_b32 v16, v16, v{r+i}, v{r+i+1} bitop3:0x80")
                t = 64 if p == 0 else 72
                for i in range(4):
                    a(f"v_lshlrev_b32 v{t+2*i}, 16, v{r+i}")
                    a(f"v_and_b32 v{t+2*i+1}, 0xffff0000, v{r+i}")
                if p >= 1:
                    for i in range(8):
                        a(f"v_add_f32 v{64+i}, v{64+i}, v{72+i}")
            else:
                r = 64 + 8 * p
                for i in range(0, 8, 2):
                    a(f"v_bitop3_b32 v16, v16, v{r+i}, v{r+i+1} bitop3:0x80")
                if p >= 1:
                    for i in range(8):
                        a(f"v_add_f32 v{64+i}, v{64+i}, v{r+i}")
        a("v_cmp_eq_u32 vcc, 0, v16")
        a("s_sub_u32 s43, s43, 1")
        a("s_cbranch_scc1 K3_gl_ok")
        a("s_cmp_eq_u64 vcc, 0")
        a("s_cbranch_scc1 K3_gl_ok")
        a("s_add_u32 s75, s75, 1")
        a("s_sleep 4")
        gloads(" sc1", False)
        a("s_waitcnt vmcnt(0)")
        a("s_branch K3_gl")
    a.label("K3_gl_ok")
    for i in range(4):
        a(f"v_cvt_pk_bf16_f32 v{40+i}, v{64+2*i}, v{65+2*i}")
    a("s_lshl_b32 s43, s4, 10")
    a(f"s_add_u32 s43, s43, {KVT}")
    a("v_add_u32 v5, s43, v3")
    a(f"ds_write_b128 v5, {vr(40)}")
    a("s_lshl_b32 s43, s37, 2")
    a("v_add_u32 v7, s43, v10")
    a("s_lshl_b32 s43, s37, 11")
    a(f"s_add_u32 s43, s43, {KVT}")
    a("v_add_u32 v5, s43, v3")
    a("s_waitcnt lgkmcnt(0)")
    lds_signal(a, 7, S_KVT, 11)
    if ZFIRST:
        pq_pick()
        wo_issue(6)
    lds_wait(a, "K3_wkt", 7, S_KVT, 2, 52, 60)
    a(f"ds_read_b128 {vr(40)}, v5")
    a(f"ds_read_b128 {vr(44)}, v5 offset:1024")
    a("s_waitcnt lgkmcnt(0)")
    stamp(a, 5)
    for mt in range(4):
        b = 64 + 12 * mt
        mfma16(a, b + 8, 48, PQR + 4 * mt, "0")
        mfma16(a, b, 40, PQR + 4 * mt, "0")
        mfma16(a, b + 4, 44, PQR + 4 * mt, "0")
    a("s_lshl_b32 s60, s12, 3")
    a("s_lshl_b32 s61, s36, 2")
    a("s_add_u32 s60, s60, s61")
    a("s_lshl_b32 s60, s60, 5")
    a("s_add_u32 s60, s60, s15")
    a("s_lshl_b32 s60, s60, 10")
    a(f"s_mov_b32 s61, {EPS}")
    for mt in range(4):
        a(f"v_add_f32 v{112+mt}, s61, v{64+12*mt+8}")
        a(f"v_rcp_f32 v{112+mt}, v{112+mt}")
    for mt in range(4):
        b = 64 + 12 * mt
        for i in range(8):
            a(f"v_mul_f32 v{b+i}, v{b+i}, v{112+mt}")
        for i in range(4):
            a(f"v_cvt_pk_bf16_f32 v{120+4*mt+i}, v{b+2*i}, v{b+2*i+1}")
        for i in range(4):
            a(f"v_or_b32 v{120+4*mt+i}, 1, v{120+4*mt+i}")
        a(f"buffer_store_dwordx4 {vr(120+4*mt)}, v3, s[48:51], s60 offen sc1")
        a("s_add_u32 s60, s60, 32768")
    a("s_setprio 0")
    stamp(a, 6)
    a(f"s_mov_b32 s43, {RETRY_MAX}")
    a("v_lshrrev_b32 v5, 1, v2")
    a("v_lshlrev_b32 v5, 7, v5")
    a("v_and_b32 v4, 1, v2")
    a("v_lshl_add_u32 v5, v4, 4, v5")
    a.label("K3_ul")
    a("s_cmp_lg_u32 s42, 0")
    a("s_cbranch_scc1 K3_ul_done")
    a(f"buffer_load_dwordx4 {vr(28)}, v5, s[24:27], 0 offen offset:32 sc1")
    a("s_waitcnt vmcnt(0)")
    flagcmp(28)
    a("s_sub_u32 s43, s43, 1")
    a("s_cbranch_scc1 K3_ul_go")
    a("s_cmp_eq_u64 vcc, 0")
    a("s_cbranch_scc1 K3_ul_go")
    a("s_sleep 4")
    a("s_branch K3_ul")
    a.label("K3_ul_go")
    u_block(2)
    a.label("K3_ul_done")
    a("s_and_b32 s60, s10, 3")
    a("s_lshl_b32 s60, s60, 2")
    a("s_and_b32 s61, s11, 3")
    a("s_add_u32 s60, s60, s61")
    a("s_lshl_b32 s60, s60, 18")
    a("s_lshr_b32 s61, s11, 2")
    a("s_lshl_b32 s61, s61, 2")
    a("s_add_u32 s61, s61, s4")
    a("s_lshl_b32 s61, s61, 13")
    a("s_add_u32 s63, s60, s61")
    a("v_lshlrev_b32 v8, 7, v2")
    a("s_waitcnt vmcnt(0)")
    a("buffer_load_dword v60, v8, s[48:51], s63 offen")
    a(f"s_waitcnt vmcnt({0 if TWAIT else 1})")
    lds_signal(a, 10, S_WOM, 11)
    lds_wait(a, "K3_wcd", 9, S_CD, 1, 16, 60, sleep=1)
    wo_issue(7)
    a("s_waitcnt vmcnt(0)")
    lds_signal(a, 10, S_WOT, 11)
    vm.q = []
    stamp(a, 7)
    a("s_cmp_eq_u32 s40, 1")
    a("s_cbranch_scc1 K3_fin")
    if CPOST:
        lds_wait(a, "K3_wg2", 9, S_G2, 1, 16, 60, sleep=2)
        a(f"ds_read_b32 v16, v9 offset:{S_PD}")
        a("s_waitcnt lgkmcnt(0)")
        a("v_readfirstlane_b32 s60, v16")
        a("s_cmp_lg_u32 s60, 0")
        a("s_cbranch_scc1 K3_fin")
        q_loads()
    if GS >= 0 and not CPOST:
        lds_wait(a, "K3_wg2", 9, S_G2, 1, 16, 60, sleep=2)
    a("s_mov_b32 s40, 2")
    if PDELAY:
        a(f"s_sleep {PDELAY}")
    a(f"s_mov_b32 s43, {RETRY_MAX}")
    a.label("K3_post")
    for ci, sr in enumerate((73, 65, 66, 67)):
        a(f"buffer_load_dwordx4 {vr(16+4*ci)}, v225, s[44:47], s{sr} offen sc1")
    a("s_waitcnt vmcnt(0)")
    and_reduce(a, 48, range(16, 32))
    a("v_cmp_eq_u32 vcc, 0, v48")
    a("s_cmp_eq_u64 vcc, 0")
    a("s_cbranch_scc1 K3_yok")
    a("s_add_u32 s75, s75, 1")
    a("s_cmp_eq_u32 s40, 0")
    a("s_cbranch_scc1 K3_zp_s2")
    if PREPOST:
        a("s_cmp_eq_u32 s40, 3")
        a("s_cbranch_scc1 K3_pw")
    a("s_sub_u32 s43, s43, 1")
    a("s_cbranch_scc1 K3_yok")
    a("s_sleep 8")
    a("s_branch K3_post")
    a.label("K3_yok")
    stamp(a, 8)
    post_compute(a, QR, False)
    a("s_mov_b32 s41, s40")
    a("s_mov_b32 s40, 1")
    a("s_cmp_eq_u32 s41, 0")
    a("s_cbranch_scc1 K3_zp")
    if PREPOST:
        a("s_cmp_eq_u32 s41, 3")
        a("s_cbranch_scc1 K3_pw")
    a.label("K3_fin")
    stamp_flush(a, 9)
    a.label("K3_end")
    a("s_endpgm")
    a.label("K3_code_end")
    return a.finalize(), 252
```

```python
import os
from asmlib import *
from common import prepass, k2_prefetch_setup, MB, vr, mfma16, phi8, unpack4, env, LOG2E, EPS, WS_KVP, WS_ZP, WS_FLAG, WS_UT, WS_DBG, STAMP

WS_OF = 0
NS = 4
STAGE = 40960
K3_LDS = NS * STAGE
CV32 = env("CV32", 0)
CV_REG = 8960 if CV32 else 8704
CV_HB = 64 if CV32 else 32
CV_UB = 4672 if CV32 else 4384
KVT = 4 * CV_REG
SYNC = KVT + 4096
WO_BASE = 40960
PQ_BASE = WO_BASE + 24 * 4096
XCH = WO_BASE + 28 * 4096
XCZ = SYNC + 256
S_KVS = 84
S_PD = 96
S_G2 = 112
S_X, S_HU, S_PQ, S_KVT, S_WOM, S_WOT, S_CD, S_GO, S_NONCE, S_WO2 = 0, 8, 24, 40, 48, 52, 56, 72, 76, 80
SPIN_MAX = 1 << 17
RETRY_MAX = 4000
DPP = "row_mask:0xf bank_mask:0xf"
DUTY0 = env("DUTY0", 0)
NDUTY = env("NDUTY", 4)
E2_0 = env("E2_0", 4)
E2_N = env("E2_N", 4)
E3_0 = env("E3_0", 8)
E3_N = env("E3_N", 4)
F1N = env("F1N", 11)
NLEAD = env("NLEAD", 4)
FLAGN = env("FLAGN", 12)
AINIT = env("AINIT", 12)
PDELAY = env("PDELAY", 0)
G2PRIO = env("G2PRIO", 1)
CPOST = env("CPOST", 0)
PG = env("PG", 0)
BP = env("BP", 1)
TWAIT = env("TWAIT", 1)
ZFIRST = env("ZFIRST", 0)
GS = env("GS", 16)
FILLC = env("FILLC", 0)
PRO = env("PRO", 3)
TRO = env("TRO", 1)
EARLYB = env("EARLYB", 1)
UTF = env("UTF", 0)
NTK = " nt" if env("NTK", 1) else ""
OS1 = env("OS1", " sc1")
OS2 = env("OS2", " sc1")
NPL = env("NPL", 2)
FL0 = env("FL0", 0)
PL0 = env("PL0", 4)
SPF_C = env("SPF_C", 0)
SPF_L = env("SPF_L", 0)
ADEPTH = env("ADEPTH", 16)
YDELAY = env("YDELAY", 8)
ZSLEEP = env("ZSLEEP", 10)
ATOUCH = env("ATOUCH", 1)
XP = env("XP", "23")
LATE = env("LATE", 1)
PREPOST = env("PREPOST", 0)
EARLYWO = env("EARLYWO", 4)
WAITKV = env("WAITKV", 1)
GSC = env("GSC", "")
QX = env("QX", 1)
PREC = env("PREC", 0)
L2PF = env("L2PF", 0)
TLBW = env("TLBW", 0)
CODEPF = env("CODEPF", 0)
DBGOUT = env("DBGOUT", 0)
NTF = " nt" if env("NTF", 0) else ""
NTG = " nt" if env("NTG", 0) else ""
NTO = " nt" if env("NTO", 1) else ""
NTT = " nt" if env("NTT", 0) else ""
NTS = " nt" if env("NTS", 0) else ""
E3W = env("E3W", 1)
QEARLY = env("QEARLY", 0)
POSTPRE = env("POSTPRE", 0)
ASC = env("ASC", "")
P_Q, P_K, P_V, P_SHK, P_H, P_D, P_X, P_W, P_WO, P_OUT, P_DBG, P_WS = [76 + 2 * i for i in range(12)]
SV = 231


def stamp(a, i):
    if STAMP:
        a("s_memrealtime s[100:101]")
        a("s_waitcnt lgkmcnt(0)")
        a(f"v_writelane_b32 v{SV}, s100, {i}")


def cstamp(a, i):
    if STAMP:
        a("s_memtime s[100:101]")
        a("s_waitcnt lgkmcnt(0)")
        a(f"v_writelane_b32 v{SV}, s100, {i}")


def stamp_flush(a, n):
    if not STAMP:
        return
    a("s_mov_b64 exec, -1")
    a("s_waitcnt vmcnt(0)")
    stamp(a, n)
    a(f"v_writelane_b32 v{SV}, s75, 15")
    if DBGOUT:
        lab = "K3_dbg%d" % len(a.ins)
        a(f"s_cmp_lg_u32 s2, {DBGOUT-1}")
        a(f"s_cbranch_scc1 {lab}")
        a("s_cmp_lg_u32 s4, 0")
        a(f"s_cbranch_scc1 {lab}")
        srd(a, 16, P_DBG, 256)
        a(f"v_readlane_b32 s20, v{SV}, 0")
        a("s_lshr_b32 s21, s3, 1")
        a("v_lshlrev_b32 v0, 2, v2")
        a(f"v_subrev_u32 v1, s20, v{SV}")
        a("s_mov_b64 exec, 0x3fe")
        a("buffer_store_short v1, v0, s[16:19], s21 offen")
        a("s_mov_b64 exec, -1")
        a.label(lab)
    srd_off(a, 16, P_WS, WS_DBG, 4 * MB)
    a("s_add_u32 s20, s2, 512")
    a("s_lshl_b32 s20, s20, 4")
    a("s_add_u32 s20, s20, s3")
    a("s_lshl_b32 s20, s20, 6")
    a("v_lshlrev_b32 v0, 2, v2")
    a("s_mov_b64 exec, 0xffff")
    a(f"buffer_store_dword v{SV}, v0, s[16:19], s20 offen")


def lds_wait(a, name, vaddr, off, val, vtmp, stmp, sleep=0):
    a(f"s_mov_b32 s{stmp+1}, {SPIN_MAX}")
    a.label(name)
    if sleep:
        a(f"s_sleep {sleep}")
    a(f"ds_read_b32 v{vtmp}, v{vaddr} offset:{off}")
    a("s_waitcnt lgkmcnt(0)")
    a(f"v_readfirstlane_b32 s{stmp}, v{vtmp}")
    a(f"s_sub_u32 s{stmp+1}, s{stmp+1}, 1")
    a(f"s_cbranch_scc1 {name}_ok")
    a(f"s_cmp_lt_u32 s{stmp}, {val}")
    a(f"s_cbranch_scc1 {name}")
    a.label(name + "_ok")


def lds_signal(a, vaddr, off, vone):
    a("s_mov_b64 exec, 1")
    a(f"ds_add_u32 v{vaddr}, v{vone} offset:{off}")
    a("s_mov_b64 exec, -1")


def and_reduce(a, dst, regs):
    regs = list(regs)
    a(f"v_bitop3_b32 v{dst}, v{regs[0]}, v{regs[1]}, 1 bitop3:0x80")
    i = 2
    while i + 1 < len(regs):
        a(f"v_bitop3_b32 v{dst}, v{dst}, v{regs[i]}, v{regs[i+1]} bitop3:0x80")
        i += 2
    if i < len(regs):
        a(f"v_and_b32 v{dst}, v{dst}, v{regs[i]}")


def post_compute(a, QR, pk):
    for jj in range(8):
        T = 48 + 8 * (jj & 1)
        for ci in range(4):
            if jj & 1:
                a(f"v_and_b32 v{T+ci}, 0xffff0000, v{16+4*ci+jj//2}")
            else:
                a(f"v_lshlrev_b32 v{T+ci}, 16, v{16+4*ci+jj//2}")
        for cp in range(2):
            a(f"v_lshlrev_b32 v{T+4+2*cp}, 16, v{QR+2*jj+cp}")
            a(f"v_and_b32 v{T+5+2*cp}, 0xffff0000, v{QR+2*jj+cp}")
        if pk:
            for cp in range(2):
                a(f"v_pk_mul_f32 {vr(T+2*cp,2)}, {vr(T+2*cp,2)}, {vr(T+4+2*cp,2)}")
        else:
            for ci in range(4):
                a(f"v_mul_f32 v{T+ci}, v{T+ci}, v{T+4+ci}")
        O = 64 + 2 * jj
        for cp in range(2):
            a(f"v_cvt_pk_bf16_f32 v{O+cp}, v{T+2*cp}, v{T+2*cp+1}")
        a(f"buffer_store_dwordx2 {vr(O,2)}, v224, s[32:35], s72 offen{NTS}{OS1}")
        a(f"s_add_u32 s72, s72, {64*4096}")


def conv32(a, lg, PK):
    FU, HR, NH = 96, 16, 4
    ACCS = [[32, 48], [64, 80]]
    T2, T1, YV, R3PREV = [224, 225], [226, 227], [228, 229], 230

    def epilogue_ops(p):
        ops = []
        for ql in range(8):
            Q = 8 * p + ql
            acc = ACCS[p & 1][ql // 4] + 4 * (ql % 4)
            R0, R1, R2, R3 = acc, acc + 1, acc + 2, acc + 3
            cur, prv = Q & 1, (Q & 1) ^ 1
            r3p = R3PREV if ql == 0 else ACCS[p & 1][(ql - 1) // 4] + 4 * ((ql - 1) % 4) + 3
            if Q == 0:
                ops.append(f"v_add_f32_dpp v{T2[cur]}, v{R3}, v{R2} wave_shr:1 {DPP} bound_ctrl:0")
                ops.append(f"v_add_f32_dpp v{T1[cur]}, v{T2[cur]}, v{R1} wave_shr:1 {DPP} bound_ctrl:0")
                ops.append(f"v_add_f32_dpp v{YV[cur]}, v{T1[cur]}, v{R0} wave_shr:1 {DPP} bound_ctrl:0")
            else:
                ops.append(f"v_add_f32_dpp v{T2[cur]}, v{r3p}, v{R2} wave_ror:1 {DPP}")
                ops.append(f"v_add_f32_dpp v{T1[cur]}, v{T2[prv]}, v{R1} wave_ror:1 {DPP}")
                ops.append(f"v_add_f32_dpp v{YV[cur]}, v{T1[prv]}, v{R0} wave_ror:1 {DPP}")
                ops.append(f"v_add_f32_dpp v{T2[cur]}, v{R3}, v{R2} wave_shr:1 {DPP}")
                ops.append(f"v_add_f32_dpp v{T1[cur]}, v{T2[cur]}, v{R1} wave_shr:1 {DPP}")
                ops.append(f"v_add_f32_dpp v{YV[cur]}, v{T1[cur]}, v{R0} wave_shr:1 {DPP}")
            if ql & 1:
                d = PK[p] + ql // 2
                ops.append(f"v_cvt_pk_bf16_f32 v{d}, v{YV[0]}, v{YV[1]}")
                ops.append(f"v_or_b32 v{d}, 1, v{d}")
            if ql == 7:
                ops.append(f"v_mov_b32 v{R3PREV}, v{R3}")
        return ops

    steps = [(p, t) for p in range(4) for t in range(8 * p + 8)]
    issued = set()
    hslot = {}

    def issue_h(idx):
        p, t = steps[idx]
        slot = idx % NH
        hslot[idx] = slot
        for h in range(2):
            a(f"ds_read_b64_tr_b16 {vr(HR+4*slot+2*h,2)}, v12 offset:{128*t+32*(1-h)}")
            lg.issue(("h", slot))

    def issue_fu(s):
        if s in issued:
            return
        issued.add(s)
        for h in range(2):
            a(f"ds_read_b64_tr_b16 {vr(FU+4*(s+3)+2*h,2)}, v13 offset:{128*(s+3)+32*h}")
            lg.issue(("fu", s))

    def need(idx):
        p, t = steps[idx]
        r = [8 * p + 4 - t]
        if t <= 8 * p + 3:
            r.append(8 * p - t)
        return r

    PRE = 3
    for idx in range(PRE):
        for s in need(idx):
            issue_fu(s)
        issue_h(idx)
    pending = []
    for idx, (p, t) in enumerate(steps):
        if t == 0 and p > 0:
            assert not pending
            pending = epilogue_ops(p - 1)
        slot = hslot[idx]
        lg.wait_for([("h", slot)] + [("fu", s) for s in need(idx)])
        mf = [(1, 8 * p + 4 - t)]
        if t <= 8 * p + 3:
            mf.append((0, 8 * p - t))
        for k, (tile, s) in enumerate(mf):
            d = ACCS[p & 1][tile]
            cs = "0" if t == 0 else vr(d, 16)
            a(f"v_mfma_f32_32x32x16_bf16 {vr(d,16)}, {vr(FU+4*(s+3))}, {vr(HR+4*slot)}, {cs}")
            if k == 0 and idx + PRE < len(steps):
                for s2 in need(idx + PRE):
                    issue_fu(s2)
                issue_h(idx + PRE)
            if pending and t >= 2:
                for _ in range(3):
                    if pending:
                        a(pending.pop(0))
    assert not pending
    for op in epilogue_ops(3):
        a(op)


def gen_k3():
    a = Asm()
    a.label("K3_code_begin")
    a("s_cmp_ge_u32 s2, 256")
    a("s_cbranch_scc1 K3_end")
    a("s_load_dwordx8 s[84:91], s[0:1], 32")
    a("s_load_dwordx8 s[92:99], s[0:1], 64")
    a("s_load_dwordx8 s[76:83], s[0:1], 0")
    a("v_lshrrev_b32 v1, 6, v0")
    a("v_and_b32 v2, 63, v0")
    a("s_and_b32 s10, s2, 7")
    a("v_readfirstlane_b32 s3, v1")
    a("s_lshr_b32 s11, s2, 3")
    a("s_and_b32 s12, s10, 1")
    a("s_lshl_b32 s12, s12, 3")
    a("s_and_b32 s13, s11, 7")
    a("s_add_u32 s12, s12, s13")
    a("s_lshr_b32 s13, s10, 1")
    a("s_lshl_b32 s13, s13, 2")
    a("s_lshr_b32 s14, s11, 3")
    a("s_add_u32 s13, s13, s14")
    a("s_mov_b32 s75, 0")
    a("s_and_b32 s4, s3, 3")
    a("s_and_b32 s36, s3, 1")
    a("s_bfe_u32 s37, s3, 0x10001")
    a("s_lshl_b32 s5, s13, 1")
    a("s_add_u32 s5, s5, s37")
    a(f"s_xor_b32 s15, s5, {2 if QX else 0}")
    a("s_lshl_b32 s6, s10, 7")
    a("s_lshl_b32 s7, s11, 2")
    a("s_add_u32 s6, s6, s7")
    a("s_add_u32 s6, s6, s4")
    a(f"s_mul_i32 s7, s4, {CV_REG}")
    a("v_lshlrev_b32 v3, 4, v2")
    a("v_lshrrev_b32 v14, 4, v2")
    a("v_and_b32 v15, 15, v2")
    spf = []
    if not EARLYB:
        a("s_waitcnt lgkmcnt(0)")
        stamp(a, 0)
    a("s_cmp_ge_u32 s3, 4")
    a("s_cbranch_scc1 K3_L")
    if EARLYB:
        a("s_waitcnt lgkmcnt(0)")
        stamp(a, 0)

    if L2PF:
        srd(a, 40, P_X, 4 * MB)
        srd(a, 48, P_W, 6 * MB)
        a("v_lshrrev_b32 v192, 3, v2")
        a("v_lshlrev_b32 v192, 11, v192")
        a("v_and_b32 v16, 7, v2")
        a("v_lshl_add_u32 v192, v16, 7, v192")
        a("s_and_b32 s44, s10, 1")
        a("s_lshl_b32 s44, s44, 21")
        a("s_lshl_b32 s45, s11, 16")
        a("s_add_u32 s44, s44, s45")
        a("s_lshl_b32 s45, s3, 14")
        a("s_add_u32 s44, s44, s45")
        a(f"buffer_load_dword v195, v192, s[40:43], s44 offen{NTT}")
        a("v_lshrrev_b32 v193, 2, v2")
        a("v_mul_u32_u24 v193, 6144, v193")
        a("v_and_b32 v16, 3, v2")
        a("v_lshl_add_u32 v193, v16, 7, v193")
        a("s_mul_i32 s45, s11, 98304")
        a("s_lshl_b32 s46, s3, 11")
        a("s_add_u32 s45, s45, s46")
        a("s_lshr_b32 s46, s10, 1")
        a("s_lshl_b32 s46, s46, 9")
        a("s_add_u32 s45, s45, s46")
        a("s_cmp_eq_u32 s3, 3")
        a(f"s_cselect_b32 s45, {16*MB}, s45")
        a(f"buffer_load_dword v195, v193, s[48:51], s45 offen{NTT}")
        a("s_add_u32 s44, s44, 1024")
        a(f"s_add_u32 s45, s45, {512*6144}")
    else:
        a("s_cmp_lg_u32 s3, 0")
        a("s_cbranch_scc1 K3_pfw")
        srd(a, 40, P_X, 4 * MB)
        a("v_lshrrev_b32 v192, 3, v2")
        a("v_lshlrev_b32 v192, 11, v192")
        a("v_and_b32 v16, 7, v2")
        a("v_lshl_add_u32 v192, v16, 7, v192")
        a("s_lshl_b32 s45, s2, 14")
        a("s_add_u32 s44, s45, 1024")
        a("s_branch K3_pfd")
        a.label("K3_pfw")
        srd(a, 40, P_W, 6 * MB)
        a("v_lshlrev_b32 v192, 7, v2")
        a("s_mul_i32 s45, s2, 12288")
        a("s_sub_u32 s44, s3, 1")
        a("s_lshl_b32 s44, s44, 12")
        a("s_add_u32 s45, s45, s44")
        a(f"s_add_u32 s44, s45, {3*MB}")
        a("s_cmp_eq_u32 s3, 3")
        a(f"s_cselect_b32 s45, {8*MB}, s45")
        a(f"s_cselect_b32 s44, {8*MB}, s44")
        a.label("K3_pfd")
        if "1" in XP:
            a(f"s_mov_b32 s45, {16*MB}")
            a(f"s_mov_b32 s44, {16*MB}")
        a(f"buffer_load_dword v195, v192, s[40:43], s45 offen{NTT}")
    srd(a, 56, P_DBG, 256)
    srd_off(a, 60, P_WS, WS_FLAG, 4096)
    a("s_memrealtime s[16:17]")
    a("v_mov_b32 v199, 0")
    a("s_waitcnt lgkmcnt(0)")
    a("s_or_b32 s16, s16, 1")
    a("v_mov_b32 v198, s16")
    a("s_cmp_lg_u32 s3, 3")
    a("s_cbranch_scc1 K3_noseed")
    a("s_cmp_lg_u32 s11, 0")
    a("s_cbranch_scc1 K3_noseed")
    a("v_mov_b32 v196, s16")
    a("v_mov_b32 v197, 0")
    a("s_mov_b64 exec, 1")
    a("buffer_atomic_cmpswap v[196:197], v199, s[56:59], 0 offen sc1")
    a("s_mov_b64 exec, -1")
    a.label("K3_noseed")
    if CODEPF:
        a("s_cmp_lg_u32 s3, 3")
        a("s_cbranch_scc1 K3_nocpf")
        a(f"s_cmp_ge_u32 s11, {CODEPF}")
        a("s_cbranch_scc1 K3_nocpf")
        a("s_getpc_b64 s[16:17]")
        a.label("K3_pc")
        a("s_sub_u32 s16, s16, K3_pc-K3_code_begin")
        a("s_subb_u32 s17, s17, 0")
        a("s_mov_b32 s18, K3_code_end-K3_code_begin")
        a("s_mov_b32 s19, 0x20000")
        a("v_lshlrev_b32 v16, 7, v2")
        for i in range(6):
            a(f"s_mov_b32 s20, {8192*i}")
            a("buffer_load_dword v195, v16, s[16:19], s20 offen")
        a.label("K3_nocpf")
    if TLBW:
        a("s_cmp_lg_u32 s3, 3")
        a("s_cbranch_scc1 K3_notlb")
        a(f"s_cmp_ge_u32 s11, {TLBW}")
        a("s_cbranch_scc1 K3_notlb")
        a("v_lshlrev_b32 v16, 16, v2")
        for p, nb, offs in ((P_K, 4, (0,)), (P_V, 4, (0,)), (P_H, 4, (0,)), (P_Q, 4, (0,)), (P_WO, 2, (0,)), (P_OUT, 8, (0, 4)), (P_WS, 20, (0, 8, 12, 16))):
            srd(a, 16, p, nb * MB)
            for o in offs:
                a(f"s_mov_b32 s20, {o*MB}")
                a("buffer_load_dword v195, v16, s[16:19], s20 offen nt")
        a.label("K3_notlb")
    a("s_lshl_b32 s46, s11, 7")
    a("s_lshl_b32 s47, s10, 2")
    a("s_add_u32 s47, s47, s46")
    if PREC:
        pre_compute = prepass(a, 3, P_K, P_V, P_SHK, " sc1", P_WS, NTO)
    if not L2PF:
        a("s_cmp_ge_u32 s3, 2")
        a(f"s_cselect_b32 s48, s{P_V}, s{P_K}")
        a(f"s_cselect_b32 s49, s{P_V+1}, s{P_K+1}")
        a(f"s_mov_b32 s50, {4*MB}")
        a("s_mov_b32 s51, 0x20000")
        a("v_lshrrev_b32 v193, 2, v2")
        a("v_lshlrev_b32 v193, 11, v193")
        a("v_and_b32 v16, 3, v2")
        a("v_lshl_add_u32 v193, v16, 7, v193")
        a("s_lshr_b32 s45, s2, 2")
        a("s_lshl_b32 s45, s45, 16")
        a("s_lshl_b32 s46, s36, 15")
        a("s_add_u32 s45, s45, s46")
        a("s_and_b32 s46, s2, 3")
        a("s_lshl_b32 s46, s46, 9")
        a("s_add_u32 s45, s45, s46")
        if "2" in XP:
            a(f"s_mov_b32 s45, {16*MB}")
    a("v_mov_b32 v200, v15")
    for part in range(4):
        if part < 3:
            a(f"s_cmp_lg_u32 s3, {part}")
            a(f"s_cbranch_scc1 K3_e3_{part+1}")
        k2_prefetch_setup(a, part, 194, 64, 68, P_H, P_Q, P_WO)
        if part < 3:
            a("s_branch K3_e3_done")
            a.label(f"K3_e3_{part+1}")
    a.label("K3_e3_done")
    a("v_mov_b32 v15, v200")
    a(f"s_and_b32 s55, s11, {NDUTY-1}")
    a(f"s_add_u32 s55, s55, {DUTY0}")
    a(f"s_and_b32 s52, s11, {E2_N-1}")
    a(f"s_add_u32 s52, s52, {E2_0}")
    a("s_sub_u32 s52, s52, s55")
    a("s_sub_u32 s52, s52, 1")
    a("s_mov_b32 s54, 0")
    a("s_lshr_b32 s70, s11, 2")
    a(f"s_and_b32 s70, s70, {E3_N-1}")
    a(f"s_add_u32 s70, s70, {E3_0 if '3' not in XP else 1000}")
    if E3W:
        a("s_cmp_lt_u32 s3, 2")
        a("s_cselect_b32 s70, 1000, s70")
    a("s_cmp_eq_u32 s3, 3")
    a(f"s_cselect_b32 s71, {F1N-NLEAD}, 1000")
    a("s_mov_b32 s53, 0")
    if PREC:
        pre_compute()
    if FILLC:
        srd_off(a, 16, P_WS, WS_OF, 4 * MB)
        srd_off(a, 20, P_WS, WS_KVP, 2 * MB)
        srd_off(a, 24, P_WS, WS_ZP, 64 * 1024)
        a("s_lshl_b32 s28, s12, 3")
        a("s_lshl_b32 s29, s4, 1")
        a("s_add_u32 s28, s28, s29")
        a("s_lshl_b32 s28, s28, 15")
        a("s_lshr_b32 s29, s15, 1")
        a("s_lshl_b32 s29, s29, 11")
        a("s_add_u32 s28, s28, s29")
        a("s_add_u32 s29, s28, 32768")
        a("s_lshl_b32 s30, s5, 4")
        a("s_add_u32 s30, s30, s12")
        a("s_lshl_b32 s31, s30, 7")
        a("s_lshl_b32 s30, s30, 12")
        a("s_lshl_b32 s32, s36, 10")
        a("s_add_u32 s30, s30, s32")
        for i in range(4):
            a(f"v_mov_b32 v{20+i}, 0")
        a("v_and_b32 v18, 7, v2")
        a("v_lshlrev_b32 v18, 4, v18")
        a("buffer_store_dwordx4 v[20:23], v3, s[16:19], s28 offen sc1")
        a("buffer_store_dwordx4 v[20:23], v3, s[16:19], s28 offen offset:1024 sc1")
        a("buffer_store_dwordx4 v[20:23], v3, s[16:19], s29 offen sc1")
        a("buffer_store_dwordx4 v[20:23], v3, s[16:19], s29 offen offset:1024 sc1")
        a("buffer_store_dwordx4 v[20:23], v3, s[20:23], s30 offen sc1")
        a("buffer_store_dwordx4 v[20:23], v18, s[24:27], s31 offen sc1")
    a("s_lshl_b32 s38, s36, 6")
    a("v_add_u32 v16, s38, v15")
    a("v_lshrrev_b32 v17, 1, v15")
    a("v_lshlrev_b32 v16, 7, v16")
    a("v_xor_b32 v17, v14, v17")
    a("v_lshl_add_u32 v4, v17, 4, v16")
    a("v_xor_b32 v5, 64, v4")
    a(f"v_add_u32 v6, {2*STAGE}, v4")
    a(f"v_add_u32 v7, {2*STAGE}, v5")
    a("v_bfe_u32 v17, v2, 2, 2")
    a("v_and_b32 v18, 3, v2")
    a("v_lshlrev_b32 v17, 6, v17")
    a("v_lshl_add_u32 v17, v18, 3, v17")
    a("v_and_b32 v18, 1, v14")
    a("v_lshl_add_u32 v17, v18, 10, v17")
    a("v_lshl_add_u32 v17, v18, 5, v17")
    a("v_lshrrev_b32 v18, 1, v14")
    a("v_mul_u32_u24 v18, 6144, v18")
    a("v_add_u32 v17, v17, v18")
    a("s_lshl_b32 s38, s37, 8")
    a("s_add_u32 s38, s38, 16384")
    a("v_add_u32 v8, s38, v17")
    a("v_xor_b32 v9, 32, v8")
    a(f"v_add_u32 v10, {2*STAGE}, v8")
    a(f"v_add_u32 v11, {2*STAGE}, v9")
    SB = [16, 56]

    def accr(kind, mt, dt):
        return 96 + 32 * kind + (mt * 2 + dt) * 4

    for i in range(96, 192):
        a(f"v_mov_b32 v{i}, 0")
    for op in spf[:SPF_C]:
        a(op)
    a("s_waitcnt lgkmcnt(0)")
    srd_off(a, 28, P_WS, WS_KVP, 2 * MB)
    srd_off(a, 32, P_WS, WS_ZP, 64 * 1024)
    lg = Cnt(a, "lgkmcnt", 15)

    def reads(slot, t, st):
        sb = (slot & 1) * STAGE
        va = 4 + t + (2 if slot >= 2 else 0)
        vb = 10 if slot >= 2 else 8
        R = SB[st]

        def A(mt):
            return [(("A", mt, st), f"ds_read_b128 {vr(R+4*mt)}, v{va} offset:{sb + 2048*mt}")]

        def B(cb):
            seg, nh = cb // 2, cb % 2
            return [(("B", cb, st), f"ds_read_b64_tr_b16 {vr(R+16+4*cb+2*h,2)}, v{vb+nh} offset:{sb + t*12288 + seg*2048 + 512*h}") for h in range(2)]
        return A(0) + B(0) + A(1) + A(2) + A(3) + B(1) + B(2) + B(3) + B(4) + B(5)

    def group(st, nxt):
        R = SB[st]
        nxt = list(nxt)
        for cb in range(6):
            kind, dt = cb // 2, cb % 2
            for mt in range(4):
                lg.wait_for([("A", mt, st), ("B", cb, st)])
                fa, fb = R + 4 * mt, R + 16 + 4 * cb
                if kind == 0:
                    mfma16(a, accr(0, mt, dt), fb, fa)
                else:
                    mfma16(a, accr(kind, mt, dt), fa, fb)
                if nxt:
                    tag, txt = nxt.pop(0)
                    a(txt)
                    lg.issue(tag)

    a("s_barrier")
    stamp(a, 1)
    cstamp(a, 10)
    for tag, txt in reads(0, 0, 0):
        a(txt)
        lg.issue(tag)
    lg.drain()
    a("s_mov_b32 s39, 4")
    a.label("K3_loop")
    for slot in range(4):
        group(0, reads(slot, 1, 1))
        lg.drain()
        a("s_barrier")
        a("s_sub_u32 s55, s55, 1")
        a(f"s_cbranch_scc1 K3_event{slot}")
        a.label(f"K3_noev{slot}")
        a("s_sub_u32 s70, s70, 1")
        a(f"s_cbranch_scc1 K3_evB{slot}")
        a.label(f"K3_noevB{slot}")
        a("s_sub_u32 s71, s71, 1")
        a(f"s_cbranch_scc1 K3_evC{slot}")
        a.label(f"K3_noevC{slot}")
        group(1, reads((slot + 1) % 4, 0, 0))
        if slot == 3:
            a("s_sub_u32 s39, s39, 1")
            a("s_cmp_lg_u32 s39, 0")
            lg.drain()
    a("s_cbranch_scc1 K3_loop")
    stamp(a, 2)
    cstamp(a, 11)

    a(f"s_mov_b32 s44, {LOG2E}")
    a(f"s_mov_b32 s45, {LOG2E}")
    a(f"s_mov_b32 s46, {EPS}")
    a(f"s_mov_b32 s47, {EPS}")
    a(f"v_mov_b32 v10, {SYNC}")
    a("v_mov_b32 v11, 1")
    for et in range(2):
        for m in range(2):
            d = 16 + 4 * (2 * et + m)
            for hh in range(2):
                s = accr(2, 2 * m + hh, et)
                a(f"v_cvt_pk_bf16_f32 v{d+2*hh}, v{s}, v{s+1}")
                a(f"v_cvt_pk_bf16_f32 v{d+2*hh+1}, v{s+2}, v{s+3}")
    for i in range(4):
        a(f"v_mov_b32 v{48+i}, 0x3f803f80")
    KV, ZZ, T = 160, 176, 52
    for m in range(2):
        for dt in range(2):
            for hh in range(2):
                s = accr(1, 2 * m + hh, dt)
                a(f"v_cvt_pk_bf16_f32 v{T+2*hh}, v{s}, v{s+1}")
                a(f"v_cvt_pk_bf16_f32 v{T+2*hh+1}, v{s+2}, v{s+3}")
            unpack4(a, T, T)
            kf = 32 + 4 * (2 * dt + m)
            phi8(a, T, kf, 44, 46)
            for et in range(2):
                mfma16(a, KV + 4 * (2 * et + dt), kf, 16 + 4 * (2 * et + m), "0" if m == 0 else None)
            mfma16(a, ZZ + 4 * dt, kf, 48, "0" if m == 0 else None)
    a("s_lshl_b32 s43, s37, 12")
    a(f"s_add_u32 s43, s43, {XCH}")
    a("v_add_u32 v4, s43, v3")
    a("s_lshl_b32 s43, s37, 7")
    a(f"s_add_u32 s43, s43, {XCZ}")
    a("v_lshlrev_b32 v5, 5, v14")
    a("v_add_u32 v5, s43, v5")
    a("s_lshl_b32 s43, s37, 2")
    a("v_add_u32 v6, s43, v10")
    a("s_cmp_eq_u32 s36, 0")
    a("s_cbranch_scc1 K3_wr0")
    for qd in range(4):
        a(f"ds_write_b128 v4, {vr(KV+4*qd)} offset:{1024*qd}")
    for dt in range(2):
        a(f"ds_write_b128 v5, {vr(ZZ+4*dt)} offset:{16*dt}")
    a("s_waitcnt lgkmcnt(0)")
    lds_signal(a, 6, S_X, 11)
    a("s_branch K3_q")
    a.label("K3_wr0")
    a("s_lshl_b32 s48, s5, 4")
    a("s_add_u32 s48, s48, s12")
    a("s_lshl_b32 s49, s48, 12")
    a("s_lshl_b32 s50, s48, 7")
    a("v_lshlrev_b32 v7, 4, v14")
    lds_wait(a, "K3_wx", 6, S_X, 1, 8, 42)
    for qd in range(4):
        a(f"ds_read_b128 {vr(16+4*qd)}, v4 offset:{1024*qd}")
    for dt in range(2):
        a(f"ds_read_b128 {vr(32+4*dt)}, v5 offset:{16*dt}")
    for qd in range(6):
        a(f"s_waitcnt lgkmcnt({5-qd})")
        a(f"v_pk_add_f32 {vr(KV+4*qd,2)}, {vr(KV+4*qd,2)}, {vr(16+4*qd,2)}")
        a(f"v_pk_add_f32 {vr(KV+4*qd+2,2)}, {vr(KV+4*qd+2,2)}, {vr(16+4*qd+2,2)}")
        if BP and qd < 4:
            d = 40 + 2 * qd
            a(f"v_cvt_pk_bf16_f32 v{d}, v{KV+4*qd}, v{KV+4*qd+1}")
            a(f"v_cvt_pk_bf16_f32 v{d+1}, v{KV+4*qd+2}, v{KV+4*qd+3}")
            a(f"v_or_b32 v{d}, 1, v{d}")
            a(f"v_or_b32 v{d+1}, 1, v{d+1}")
            if qd & 1:
                a(f"buffer_store_dwordx4 {vr(d-2)}, v3, s[28:31], s49 offen offset:{1024*(qd//2)} sc1")
            continue
        for i in range(4):
            a(f"v_or_b32 v{KV+4*qd+i}, 1, v{KV+4*qd+i}")
        if qd < 4:
            a(f"buffer_store_dwordx4 {vr(KV+4*qd)}, v3, s[28:31], s49 offen offset:{1024*qd} sc1")
    a("s_mov_b32 exec_lo, 0x00010001")
    a("s_mov_b32 exec_hi, 0x00010001")
    for dt in range(2):
        a(f"buffer_store_dwordx4 {vr(ZZ+4*dt)}, v7, s[32:35], s50 offen offset:{64*dt} sc1")
    a("s_mov_b64 exec, -1")
    lds_signal(a, 10, S_KVS, 11)
    a.label("K3_q")
    stamp(a, 3)
    a("s_lshl_b32 s43, s3, 12")
    a(f"s_add_u32 s43, s43, {PQ_BASE}")
    a("v_add_u32 v4, s43, v3")
    for mt in range(4):
        d = 80 + 4 * mt
        for dt in range(2):
            sr = accr(0, mt, dt)
            a(f"v_cvt_pk_bf16_f32 v{T+2*dt}, v{sr}, v{sr+1}")
            a(f"v_cvt_pk_bf16_f32 v{T+2*dt+1}, v{sr+2}, v{sr+3}")
        unpack4(a, T, T)
        phi8(a, T, d, 44, 46)
        a(f"ds_write_b128 v4, {vr(d)} offset:{1024*mt}")
    a("s_lshl_b32 s43, s3, 2")
    a("v_add_u32 v9, s43, v10")
    if CV32:
        a("v_and_b32 v6, 3, v2")
        a("v_bfe_u32 v7, v2, 2, 2")
        a("v_bfe_u32 v4, v2, 4, 1")
        a("v_lshrrev_b32 v5, 5, v2")
        a("v_lshlrev_b32 v12, 5, v4")
        a("v_lshl_add_u32 v12, v6, 3, v12")
        a("v_lshl_add_u32 v12, v5, 6, v12")
        a("v_lshlrev_b32 v7, 3, v7")
        a("v_sub_u32 v12, v12, v7")
        a("s_add_u32 s43, s7, 32")
        a("v_add_u32 v12, s43, v12")
        a("v_lshlrev_b32 v13, 8, v4")
        a("v_lshl_add_u32 v13, v6, 6, v13")
        a("v_add_u32 v13, v13, v7")
        a("v_lshlrev_b32 v5, 6, v5")
        a("v_sub_u32 v13, v13, v5")
        a(f"s_add_u32 s43, s7, {CV_UB-384}")
        a("v_add_u32 v13, s43, v13")
    else:
        a("v_and_b32 v6, 3, v2")
        a("v_bfe_u32 v7, v2, 2, 2")
        a("v_add_u32 v12, v6, v7")
        a("v_lshlrev_b32 v12, 3, v12")
        a("v_lshl_add_u32 v12, v14, 6, v12")
        a(f"s_add_u32 s43, s7, {CV_HB-24}")
        a("v_add_u32 v12, s43, v12")
        a("v_lshlrev_b32 v13, 5, v6")
        a("v_lshlrev_b32 v7, 3, v7")
        a("v_sub_u32 v13, v13, v7")
        a("v_lshlrev_b32 v7, 6, v14")
        a("v_sub_u32 v13, v13, v7")
        a(f"s_add_u32 s43, s7, {CV_UB+24-32}")
        a("v_add_u32 v13, s43, v13")
    a(f"s_add_u32 s43, s7, {CV_UB}")
    a("v_add_u32 v8, s43, v3")
    a("s_waitcnt lgkmcnt(0)")
    lds_signal(a, 9, S_PQ, 11)
    stamp(a, 4)
    lds_wait(a, "K3_whu", 9, S_HU, 1, 16, 42)
    stamp(a, 5)

    HH, FU = 32, 96
    ACC = [16, 20, 24, 28]
    T2, T1, YV, PK = [224, 225], [226, 227], [228, 229], [232, 236, 240, 244]
    lg.q = []

    def fu_reads(s):
        for hf in range(2):
            a(f"ds_read_b64_tr_b16 {vr(FU+4*s+2*hf,2)}, v13 offset:{128*s + 32*(1-hf)}")
            lg.issue(("fu", s))

    def h_reads(t):
        for hf in range(2):
            a(f"ds_read_b64_tr_b16 {vr(HH+4*t+2*hf,2)}, v12 offset:{256*t + 32*hf}")
            lg.issue(("h", t))

    def epi(Q):
        ops = []
        R0 = ACC[Q % 4]
        R1, R2, R3 = R0 + 1, R0 + 2, R0 + 3
        cur, prv = Q & 1, (Q & 1) ^ 1
        if Q == 0:
            ops.append(f"v_add_f32_dpp v{T2[cur]}, v{R3}, v{R2} wave_shr:1 {DPP} bound_ctrl:0")
            ops.append(f"v_add_f32_dpp v{T1[cur]}, v{T2[cur]}, v{R1} wave_shr:1 {DPP} bound_ctrl:0")
            ops.append(f"v_add_f32_dpp v{YV[cur]}, v{T1[cur]}, v{R0} wave_shr:1 {DPP} bound_ctrl:0")
        else:
            r3p = ACC[(Q - 1) % 4] + 3
            ops.append(f"v_add_f32_dpp v{T2[cur]}, v{r3p}, v{R2} wave_ror:1 {DPP}")
            ops.append(f"v_add_f32_dpp v{T1[cur]}, v{T2[prv]}, v{R1} wave_ror:1 {DPP}")
            ops.append(f"v_add_f32_dpp v{YV[cur]}, v{T1[prv]}, v{R0} wave_ror:1 {DPP}")
            ops.append(f"v_add_f32_dpp v{T2[cur]}, v{R3}, v{R2} wave_shr:1 {DPP}")
            ops.append(f"v_add_f32_dpp v{T1[cur]}, v{T2[cur]}, v{R1} wave_shr:1 {DPP}")
            ops.append(f"v_add_f32_dpp v{YV[cur]}, v{T1[cur]}, v{R0} wave_shr:1 {DPP}")
        if Q & 1:
            p = PK[Q // 8] + (Q % 8) // 2
            ops.append(f"v_cvt_pk_bf16_f32 v{p}, v{YV[0]}, v{YV[1]}")
            ops.append(f"v_or_b32 v{p}, 1, v{p}")
        return ops

    if CV32:
        conv32(a, lg, PK)
    else:
        PRE = 3
        for c in range(PRE):
            fu_reads(c)
            if c % 2 == 0:
                h_reads(c // 2)
        pending = []
        for c in range(32):
            nst = c // 2 + 1
            for t in range(nst):
                s = c - 2 * t
                lg.wait_for([("fu", s), ("h", t)])
                mfma16(a, ACC[c % 4], FU + 4 * s, HH + 4 * t, "0" if t == 0 else None)
                if t == 0 and c + PRE < 32:
                    fu_reads(c + PRE)
                    if (c + PRE) % 2 == 0:
                        h_reads((c + PRE) // 2)
                if t == 0 and c >= 2:
                    assert not pending
                    pending = epi(c - 2)
                k = max(1, -(-len(pending) // (nst - t))) if pending else 0
                for _ in range(k):
                    a(pending.pop(0))
        for Q in (30, 31):
            for op in epi(Q):
                a(op)
    srd_off(a, 28, P_WS, WS_UT, 4 * MB)
    a("s_lshl_b32 s40, s6, 12")
    for g in range(4):
        a(f"buffer_store_dwordx4 {vr(PK[g])}, v3, s[28:31], s40 offen offset:{1024*g} sc1")
    a("s_and_b32 s40, s10, 3")
    a("s_lshl_b32 s40, s40, 2")
    a("s_and_b32 s41, s11, 3")
    a("s_add_u32 s40, s40, s41")
    a("s_lshl_b32 s41, s40, 3")
    a("s_lshl_b32 s42, s3, 1")
    a("s_add_u32 s41, s41, s42")
    a("s_lshl_b32 s48, s41, 15")
    a("s_mov_b32 s47, s48")
    a("v_lshrrev_b32 v5, 5, v2")
    a("v_and_b32 v6, 1, v14")
    a("v_lshlrev_b32 v12, 15, v6")
    a("v_lshl_add_u32 v12, v5, 8, v12")
    a("v_lshl_add_u32 v12, v15, 4, v12")
    srd_off(a, 28, P_WS, WS_OF, 4 * MB)
    srd(a, 32, P_OUT, 8 * MB)
    a("s_waitcnt lgkmcnt(0)")
    lds_signal(a, 9, S_CD, 11)
    stamp(a, 6)
    if CPOST:
        a("s_lshl_b32 s16, s10, 1")
        a("s_lshr_b32 s17, s11, 4")
        a("s_add_u32 s16, s16, s17")
        a("s_and_b32 s17, s11, 15")
        a("s_lshl_b32 s17, s17, 2")
        a("s_add_u32 s17, s17, s4")
        a("s_lshr_b32 s18, s17, 4")
        a("s_and_b32 s17, s17, 15")
        a("s_lshl_b32 s19, s18, 9")
        a("s_lshl_b32 s64, s17, 2")
        a("s_add_u32 s19, s19, s64")
        a("s_lshl_b32 s64, s19, 11")
        a("s_lshl_b32 s65, s16, 7")
        a("s_add_u32 s64, s64, s65")
        a("s_lshl_b32 s72, s19, 12")
        a("s_add_u32 s72, s72, s65")
        a("s_lshl_b32 s73, s16, 18")
        a("s_lshl_b32 s65, s18, 10")
        a("s_add_u32 s73, s73, s65")
        a("s_lshl_b32 s65, s17, 6")
        a("s_add_u32 s73, s73, s65")
        a("s_add_u32 s65, s73, 4096")
        a("s_add_u32 s66, s73, 8192")
        a("s_add_u32 s67, s73, 12288")
        a("v_lshlrev_b32 v224, 12, v14")
        a("v_lshl_add_u32 v224, v15, 3, v224")
        a("v_lshlrev_b32 v225, 14, v15")
        a("v_lshl_add_u32 v225, v14, 4, v225")
        a("v_lshlrev_b32 v4, 11, v14")
        a("v_lshl_add_u32 v4, v15, 3, v4")
        srd(a, 16, P_Q, 4 * MB)
        srd_off(a, 20, P_WS, WS_UT, 4 * MB)
        for jj in range(8):
            a(f"buffer_load_dwordx2 {vr(208+2*jj,2)}, v4, s[16:19], s64 offen")
            a(f"s_add_u32 s64, s64, {64*2048}")
        a("s_waitcnt vmcnt(0)")
        a(f"s_mov_b32 s43, {RETRY_MAX}")
        a.label("K3_cp")
        for ci, sr in enumerate((73, 65, 66, 67)):
            a(f"buffer_load_dwordx4 {vr(16+4*ci)}, v225, s[20:23], s{sr} offen sc1")
        a(f"ds_read_b32 v49, v10 offset:{S_WOM}")
        a("s_waitcnt vmcnt(0) lgkmcnt(0)")
        and_reduce(a, 48, range(16, 32))
        a("v_readfirstlane_b32 s42, v49")
        a("v_cmp_eq_u32 vcc, 0, v48")
        a("s_cmp_eq_u64 vcc, 0")
        a("s_cbranch_scc1 K3_cp_ok")
        a("s_cmp_ge_u32 s42, 4")
        a("s_cbranch_scc1 K3_cp_skip")
        a("s_sub_u32 s43, s43, 1")
        a("s_cbranch_scc1 K3_cp_skip")
        a("s_sleep 6")
        a("s_branch K3_cp")
        a.label("K3_cp_ok")
        lds_signal(a, 9, S_PD, 11)
        post_compute(a, 208, True)
        a.label("K3_cp_skip")
    lds_wait(a, "K3_wwo", 10, S_WOM, 4, 80, 42)
    if CPOST:
        lds_signal(a, 9, S_G2, 11)
    stamp(a, 7)
    cstamp(a, 12)
    vm = Cnt(a, "vmcnt", 63)
    AR = 96
    D = ADEPTH
    if "a" in XP:
        srd(a, 28, P_X, 4 * MB)
        a("s_lshl_b32 s48, s12, 18")
        a("s_lshl_b32 s47, s3, 16")
        a("s_add_u32 s48, s48, s47")

    def aload(h):
        for f in range(2):
            r = AR + 8 * (h % D) + 4 * f
            a(f"buffer_load_dwordx4 {vr(r)}, v12, s[28:31], s48 offen offset:{1024*(h%4)+512*f}{ASC}")
            vm.issue(("A", h))
        if h % 4 == 3:
            a("s_add_u32 s48, s48, 4096")

    if G2PRIO:
        a(f"s_setprio {G2PRIO}")
    for h in range(AINIT):
        aload(h)
    anext = [AINIT]
    a("v_bfe_u32 v4, v2, 2, 2")
    a("v_and_b32 v7, 3, v2")
    a("v_lshlrev_b32 v4, 6, v4")
    a("v_lshl_add_u32 v4, v7, 3, v4")
    a("v_lshl_add_u32 v4, v5, 9, v4")
    a("v_xor_b32 v7, v6, v5")
    a("v_lshl_add_u32 v13, v7, 5, v4")
    a(f"v_add_u32 v4, {WO_BASE}, v13")
    a(f"v_add_u32 v8, {WO_BASE + 65536}, v13")

    def check_ops(g):
        r = AR + 8 * ((4 * g) % D)
        ops = [f"v_bitop3_b32 v81, v{r}, v{r+1}, v{r+2} bitop3:0x80"]
        for i in range(3, 31, 2):
            ops.append(f"v_bitop3_b32 v81, v81, v{r+i}, v{r+i+1} bitop3:0x80")
        ops.append(f"v_bitop3_b32 v81, v81, v{r+31}, 1 bitop3:0x80")
        return ops

    def check_branch(g):
        if "a" in XP:
            a.label(f"K3_retry{g}_ret")
            return
        a("v_cmp_eq_u32 vcc, 0, v81")
        a("s_cmp_lg_u64 vcc, 0")
        a(f"s_cbranch_scc1 K3_retry{g}")
        a.label(f"K3_retry{g}_ret")

    def retry_block(g):
        a.label(f"K3_retry{g}")
        a(f"s_mov_b32 s46, {RETRY_MAX}")
        a(f"s_add_u32 s44, s47, {4096*g}")
        a.label(f"K3_retry{g}_l")
        a("s_add_u32 s75, s75, 1")
        a("s_sleep 4")
        for hh in range(4):
            for f in range(2):
                r = AR + 8 * ((4 * g + hh) % D) + 4 * f
                a(f"buffer_load_dwordx4 {vr(r)}, v12, s[28:31], s44 offen offset:{1024*hh+512*f} sc1")
        a("s_waitcnt vmcnt(0)")
        for op in check_ops(g):
            a(op)
        a("v_cmp_eq_u32 vcc, 0, v81")
        a("s_sub_u32 s46, s46, 1")
        a(f"s_cbranch_scc1 K3_retry{g}_ret")
        a("s_cmp_lg_u64 vcc, 0")
        a(f"s_cbranch_scc1 K3_retry{g}_l")
        a(f"s_branch K3_retry{g}_ret")

    lg.q = []
    BS = [48, 64]

    def breads(h):
        out = []
        st = h & 1
        if h < 16:
            vb, off = 4, h * 4096
        elif h < 28:
            vb, off = 8, (h - 16) * 4096
        else:
            vb, off = 13, (h - 28) * CV_REG
        for f in range(2):
            for nb in range(2):
                for hf in range(2):
                    out.append(((h, f, nb), f"ds_read_b64_tr_b16 {vr(BS[st]+8*f+4*nb+2*hf,2)}, v{vb} offset:{off + f*1024 + hf*2048 + nb*256}"))
        return out

    for tag, txt in breads(0):
        a(txt); lg.issue(tag)
    vm.wait_for([("A", 3)])
    for op in check_ops(0):
        a(op)
    check_branch(0)
    chk = []
    for h in range(32):
        nxt = []
        if h == GS and not CPOST:
            lds_signal(a, 9, S_G2, 11)
            lg.issue("sig")
        if h + 1 < 32:
            if h + 1 == 28:
                lg.drain()
                lds_wait(a, "K3_wwt", 10, S_WOT, 4, 80, 42)
            nxt = breads(h + 1)
        if h % 4 == 2 and h + 2 < 32:
            vm.wait_for([("A", h + 5)])
            chk = check_ops(h // 4 + 1) if "k" not in XP else []
        for f in range(2):
            for nb in range(2):
                lg.wait_for([(h, f, nb)])
                d = 16 + 16 * nb
                cs = "0" if (h == 0 and f == 0) else vr(d, 16)
                a(f"v_mfma_f32_32x32x16_bf16 {vr(d,16)}, {vr(BS[h&1]+8*f+4*nb)}, {vr(AR+8*(h%D)+4*f)}, {cs}")
                for _ in range(2):
                    if nxt:
                        tag, txt = nxt.pop(0)
                        a(txt); lg.issue(tag)
                    if chk:
                        a(chk.pop(0))
        if h % 4 == 3 and h + 1 < 32:
            assert not chk
            check_branch(h // 4 + 1)
        for _ in range(2):
            if anext[0] < 32 and anext[0] <= h + D and "n" not in XP:
                aload(anext[0]); anext[0] += 1
    stamp(a, 8)
    cstamp(a, 13)
    a("v_and_b32 v4, 31, v2")
    a("v_lshlrev_b32 v4, 12, v4")
    a("v_lshl_add_u32 v4, v5, 4, v4")
    a("s_lshr_b32 s36, s10, 2")
    a("s_lshl_b32 s36, s36, 3")
    a("s_lshr_b32 s37, s11, 2")
    a("s_add_u32 s36, s36, s37")
    a("s_lshl_b32 s38, s41, 16")
    a("s_lshl_b32 s39, s36, 7")
    a("s_add_u32 s38, s38, s39")
    a("s_add_u32 s38, s38, 2048")
    if TRO:
        a("v_and_b32 v6, 31, v2")
        a("v_and_b32 v7, 7, v2")
        a("v_xor_b32 v7, v7, v5")
        a("v_lshlrev_b32 v6, 7, v6")
        a(f"s_add_u32 s39, s7, {CV_UB}")
        a("v_add_u32 v6, s39, v6")
        a("v_lshrrev_b32 v8, 3, v2")
        a("v_and_b32 v13, 7, v2")
        a("v_xor_b32 v96, v13, v8")
        a("v_lshlrev_b32 v96, 4, v96")
        a("v_lshl_add_u32 v96, v8, 7, v96")
        a("v_add_u32 v96, s39, v96")
        a("v_lshlrev_b32 v4, 12, v8")
        a("v_lshl_add_u32 v4, v13, 4, v4")
    for nb in range(2):
        for kp in range(2):
            P = 80 + 8 * nb + 4 * kp
            t0 = 16 + 16 * nb + 8 * kp
            for i in range(4):
                a(f"v_cvt_pk_bf16_f32 v{P+i}, v{t0+2*i}, v{t0+2*i+1}")
            a(f"v_permlane32_swap_b32 v{P}, v{P+2}")
            a(f"v_permlane32_swap_b32 v{P+1}, v{P+3}")
            if TRO:
                a(f"v_xor_b32 v97, {4*nb+2*kp}, v7")
                a("v_lshl_add_u32 v97, v97, 4, v6")
                a(f"ds_write_b128 v97, {vr(P)}")
            else:
                a(f"buffer_store_dwordx4 {vr(P)}, v4, s[32:35], s38 offen offset:{64*nb+32*kp}{NTS}{OS2}")
    if TRO:
        for i in range(4):
            a(f"ds_read_b128 {vr(100+4*i)}, v96 offset:{1024*i}")
        for i in range(4):
            a(f"s_waitcnt lgkmcnt({3-i})")
            a(f"buffer_store_dwordx4 {vr(100+4*i)}, v4, s[32:35], s38 offen{NTS}{OS2}")
            a("s_add_u32 s38, s38, 32768")
    stamp_flush(a, 9)
    a("s_endpgm")
    for g in range(8):
        retry_block(g)
    for slot in range(4):
        a.label(f"K3_event{slot}")
        a("s_add_u32 s54, s54, 1")
        a("s_cmp_lg_u32 s54, 1")
        a(f"s_cbranch_scc1 K3_ev2_{slot}")
        a(f"buffer_load_dword v195, v192, s[40:43], s44 offen{NTT}")
        if L2PF:
            a(f"buffer_load_dword v195, v193, s[48:51], s45 offen{NTT}")
            a("s_mov_b32 s55, 1000")
        else:
            a("s_mov_b32 s55, s52")
        a(f"s_branch K3_noev{slot}")
        a.label(f"K3_ev2_{slot}")
        if PREC or FILLC:
            a("s_waitcnt vmcnt(0)")
        a(f"buffer_load_dword v195, v193, s[48:51], s45 offen{NTT}")
        a("s_mov_b32 s55, 1000")
        a(f"s_branch K3_noev{slot}")
        a.label(f"K3_evB{slot}")
        a(f"buffer_load_dword v195, v194, s[64:67], s68 offen{NTT}")
        a(f"buffer_load_dword v195, v194, s[64:67], s69 offen{NTT}")
        a(f"s_branch K3_noevB{slot}")
        a.label(f"K3_evC{slot}")
        a("s_add_u32 s53, s53, 1")
        a("s_cmp_lg_u32 s53, 1")
        a(f"s_cbranch_scc1 K3_ev4_{slot}")
        a("buffer_load_dword v196, v199, s[56:59], 0 offen sc1")
        a(f"s_mov_b32 s71, {NLEAD-1}")
        a(f"s_branch K3_noevC{slot}")
        a.label(f"K3_ev4_{slot}")
        a("s_cmp_lg_u32 s53, 2")
        a(f"s_cbranch_scc1 K3_ev6_{slot}")
        a("s_waitcnt vmcnt(0)")
        a("v_readfirstlane_b32 s46, v196")
        a("s_mov_b64 exec, 1")
        a("s_cmp_lg_u32 s46, 0")
        a(f"s_cbranch_scc1 K3_ev5_{slot}")
        a("v_mov_b32 v196, v198")
        a("v_mov_b32 v197, 0")
        a("buffer_atomic_cmpswap v[196:197], v199, s[56:59], 0 offen sc0 sc1")
        a("s_waitcnt vmcnt(0)")
        a("v_cmp_eq_u32 vcc, 0, v196")
        a("v_cndmask_b32 v196, v196, v198, vcc")
        a.label(f"K3_ev5_{slot}")
        a("buffer_store_dword v196, v199, s[60:63], s47 offen sc1")
        a("s_mov_b64 exec, -1")
        a(f"s_mov_b32 s71, {FLAGN-F1N-1 if not POSTPRE else 1000}")
        a(f"s_branch K3_noevC{slot}")
        a.label(f"K3_ev6_{slot}")
        a("s_mov_b64 exec, 1")
        a("buffer_store_dword v196, v199, s[60:63], s47 offen offset:32 sc1")
        a("s_mov_b64 exec, -1")
        a("s_mov_b32 s71, 1000")
        a(f"s_branch K3_noevC{slot}")

    a.label("K3_L")
    a("v_lshrrev_b32 v4, 3, v2")
    a("v_and_b32 v5, 7, v2")
    for jl in range(4):
        a(f"v_add_u32 v6, {4*(jl&1)}, v14")
        a("v_xor_b32 v6, v6, v5")
        a("v_lshlrev_b32 v6, 4, v6")
        a("v_lshl_add_u32 v6, v4, 11, v6")
        a(f"v_add_u32 v{240+jl}, {jl*(16384-1024)}, v6")
    a("v_lshrrev_b32 v6, 5, v2")
    a("v_bfe_u32 v7, v2, 2, 2")
    a("v_lshl_add_u32 v6, v6, 2, v7")
    a("v_mul_u32_u24 v6, 6144, v6")
    a("v_bfe_u32 v7, v2, 4, 1")
    a("v_lshl_add_u32 v6, v7, 6, v6")
    a("v_and_b32 v7, 3, v2")
    a("v_lshl_add_u32 v6, v7, 4, v6")
    a("v_xor_b32 v7, 32, v6")
    a("s_and_b32 s40, s13, 1")
    a("s_lshl_b32 s40, s40, 7")
    a(f"s_xor_b32 s41, s40, {128 if QX else 0}")
    binst = []
    for seg in range(3):
        for gg in range(2):
            ldsoff = seg * 2048 + gg * 1024
            m0sel, ioff = ldsoff // 4096, ldsoff % 4096
            reg = 244 + seg * 2 + gg
            a(f"v_add_u32 v{reg}, {8*gg*6144 + seg*2048 - ioff}, v{6+gg}")
            a(f"v_add_u32 v{reg}, s{41 if seg == 0 else 40}, v{reg}")
            binst.append((reg, m0sel, ioff))
    a("s_lshl_b32 s38, s12, 7")
    a("s_lshl_b32 s40, s4, 5")
    a("s_add_u32 s38, s38, s40")
    a("s_lshl_b32 s38, s38, 11")
    a("s_mul_i32 s39, s4, 98304")
    a("s_lshr_b32 s40, s13, 1")
    a("s_lshl_b32 s40, s40, 8")
    a("s_add_u32 s39, s39, s40")
    a("s_lshl_b32 s41, s4, 12")
    a("s_mul_i32 s42, s4, 6144")
    a("s_add_u32 s42, s42, 16384")
    if EARLYB:
        a("s_waitcnt lgkmcnt(0)")
        stamp(a, 0)
    srd(a, 16, P_X, 4 * MB)
    srd(a, 20, P_W, 6 * MB)
    vm = Cnt(a, "vmcnt", 63)

    def issue(kt):
        sb = (kt % NS) * STAGE
        a(f"s_add_u32 m0, s41, {sb}")
        for jl in range(4):
            a(f"buffer_load_dwordx4 v{240+jl}, s[16:19], s38 offen offset:{jl*1024}{NTG} lds")
            vm.issue(("st", kt))
        cur = -1
        for reg, m0sel, ioff in binst:
            if m0sel != cur:
                a(f"s_add_u32 m0, s42, {sb + 4096*m0sel}")
                cur = m0sel
            a(f"buffer_load_dwordx4 v{reg}, s[20:23], s39 offen offset:{ioff}{NTG} lds")
            vm.issue(("st", kt))
        a("s_add_u32 s38, s38, 128")
        a(f"s_add_u32 s39, s39, {64*6144}")

    if env("ST0", 0):
        stamp(a, 10)
    for kt in range(PRO):
        issue(kt)
        if env("ST0", 0):
            stamp(a, 11 + kt)
    srd(a, 24, P_K, 4 * MB)
    srd(a, 28, P_V, 4 * MB)
    srd(a, 32, P_SHK, 8192)
    srd_off(a, 44, P_WS, WS_UT, 4 * MB)
    srd_off(a, 48, P_WS, WS_OF, 4 * MB)
    srd_off(a, 52, P_WS, WS_KVP, 2 * MB)
    srd_off(a, 56, P_WS, WS_ZP, 64 * 1024)
    a("s_lshl_b32 s60, s2, 2")
    a("s_add_u32 s60, s60, s4")
    if UTF:
        a("s_and_b32 s61, s60, 31")
        a("s_lshr_b32 s60, s60, 5")
        a("s_lshl_b32 s62, s60, 17")
        a("s_lshl_b32 s63, s61, 6")
        a("s_add_u32 s62, s62, s63")
        a("v_lshrrev_b32 v18, 3, v2")
        a("v_and_b32 v20, 7, v2")
        a("v_lshlrev_b32 v21, 14, v18")
        a("v_lshl_add_u32 v21, v20, 3, v21")
        a("v_add_u32 v21, s62, v21")
        a("s_lshl_b32 s63, s61, 8")
        a("v_lshlrev_b32 v22, 5, v20")
        a("s_lshl_b32 s62, s61, 17")
        a("s_lshl_b32 s64, s60, 7")
        a("s_add_u32 s62, s62, s64")
        a("v_lshlrev_b32 v19, 14, v20")
        a("v_lshl_add_u32 v19, v18, 4, v19")
    else:
        a("s_and_b32 s61, s60, 15")
        a("s_lshr_b32 s60, s60, 4")
        a("s_lshl_b32 s62, s60, 16")
        a("s_lshl_b32 s63, s61, 7")
        a("s_add_u32 s62, s62, s63")
        a("v_lshlrev_b32 v21, 14, v14")
        a("v_lshl_add_u32 v21, v15, 3, v21")
        a("v_add_u32 v21, s62, v21")
        a("s_lshl_b32 s63, s61, 9")
        a("v_lshlrev_b32 v22, 5, v15")
        a("s_lshl_b32 s62, s61, 18")
        a("s_lshl_b32 s64, s60, 6")
        a("s_add_u32 s62, s62, s64")
        a("v_lshlrev_b32 v19, 14, v15")
        a("v_lshl_add_u32 v19, v14, 4, v19")
    a("s_lshl_b32 s64, s12, 3")
    a("s_lshl_b32 s65, s4, 1")
    a("s_add_u32 s64, s64, s65")
    a("s_lshl_b32 s64, s64, 15")
    a("s_lshr_b32 s65, s15, 1")
    a("s_lshl_b32 s65, s65, 11")
    a("s_add_u32 s64, s64, s65")
    a("s_add_u32 s65, s64, 32768")
    a("s_lshl_b32 s66, s5, 4")
    a("s_add_u32 s66, s66, s12")
    a("s_lshl_b32 s67, s66, 7")
    a("s_lshl_b32 s66, s66, 12")
    a(f"s_lshl_b32 s68, s36, {10 if BP else 11}")
    a("s_add_u32 s66, s66, s68")
    for i in range(4):
        a(f"v_mov_b32 v{160+i}, 0")
    a("v_and_b32 v18, 7, v2")
    a("v_lshlrev_b32 v18, 4, v18")
    fills = [
        f"buffer_store_dwordx4 v[160:163], v3, s[48:51], s64 offen sc1{NTF}",
        f"buffer_store_dwordx4 v[160:163], v3, s[48:51], s64 offen offset:1024 sc1{NTF}",
        f"buffer_store_dwordx4 v[160:163], v3, s[48:51], s65 offen sc1{NTF}",
        f"buffer_store_dwordx4 v[160:163], v3, s[48:51], s65 offen offset:1024 sc1{NTF}",
        f"buffer_store_dwordx4 v[160:163], v3, s[52:55], s66 offen sc1{NTF}",
        f"buffer_store_dwordx4 v[160:163], v3, s[52:55], s66 offen offset:1024 sc1{NTF}",
        f"buffer_store_dwordx4 v[160:163], v18, s[56:59], s67 offen sc1{NTF}",
    ]
    if BP:
        del fills[5]
    W, KF, VF, KS = 72, 88, 110, 126
    loads = []
    for i in range(2):
        loads.append([f"buffer_load_dwordx4 {vr(24+4*i)}, v22, s[32:35], s63 offen offset:{16*i}"])
    for i in range(11):
        loads.append([f"v_add_u32 v23, {((i-3)*2048) & 0xffffffff}, v21", f"buffer_load_dwordx2 {vr(32+2*i,2)}, v23, s[24:27], 0 offen{NTK}"])
    for i in range(8):
        loads.append([f"v_add_u32 v23, {i*2048}, v21", f"buffer_load_dwordx2 {vr(54+2*i,2)}, v23, s[28:31], 0 offen{NTK}"])
    comp = []
    for ci in range(4):
        comp += [f"v_lshlrev_b32 v{W+ci}, 16, v{24+2*ci}", f"v_and_b32 v{W+4+ci}, 0xffff0000, v{24+2*ci}",
                 f"v_lshlrev_b32 v{W+8+ci}, 16, v{25+2*ci}", f"v_and_b32 v{W+12+ci}, 0xffff0000, v{25+2*ci}"]
    for cp in range(2):
        for i in range(11):
            comp += [f"v_lshlrev_b32 v{KF+2*i}, 16, v{32+2*i+cp}", f"v_and_b32 v{KF+2*i+1}, 0xffff0000, v{32+2*i+cp}"]
        for i in range(8):
            comp += [f"v_lshlrev_b32 v{VF+2*i}, 16, v{54+2*i+cp}", f"v_and_b32 v{VF+2*i+1}, 0xffff0000, v{54+2*i+cp}"]
        for i in range(16):
            comp.append(f"v_mul_f32 v{KS+i}, v{KF+i}, v{W+12+2*cp+(i&1)}")
        for j in (2, 1, 0):
            for i in range(16):
                comp.append(f"v_fmac_f32 v{KS+i}, v{KF+2*(3-j)+i}, v{W+4*j+2*cp+(i&1)}")
        for i in range(16):
            comp.append(f"v_mul_f32 v{KS+i}, v{KS+i}, v{VF+i}")
        O = 144 + 8 * cp
        for e in range(2):
            for i in range(4):
                comp.append(f"v_cvt_pk_bf16_f32 v{O+4*e+i}, v{KS+4*i+e}, v{KS+4*i+2+e}")
        for i in range(8):
            comp.append(f"v_and_b32 v{O+i}, -2, v{O+i}")
        for e in range(2):
            comp.append(("st", f"buffer_store_dwordx4 {vr(O+4*e)}, v19, s[44:47], s62 offen sc1"))
            comp.append("s_add_u32 s62, s62, 4096")
    PCE = env("PCE", FLAGN - 3)
    PCS = PL0 + NPL + env("PGAP", 0)
    NPC = PCE - PCS
    per = -(-len(comp) // NPC)
    a("v_lshrrev_b32 v6, 5, v2")
    a("v_bfe_u32 v7, v2, 2, 2")
    a("v_lshl_add_u32 v7, v6, 2, v7")
    a("v_lshlrev_b32 v7, 11, v7")
    a("v_bfe_u32 v8, v2, 4, 1")
    a("v_lshl_add_u32 v7, v8, 6, v7")
    a("v_and_b32 v8, 3, v2")
    a("v_lshlrev_b32 v6, 1, v6")
    a("v_xor_b32 v8, v8, v6")
    a("v_lshl_add_u32 v7, v8, 4, v7")
    for i in range(4):
        a(f"v_add_u32 v{232+i}, {i*(16384-1024)}, v7")
    a("s_lshl_b32 s69, s4, 16")
    a("s_lshr_b32 s70, s10, 2")
    a("s_lshl_b32 s70, s70, 3")
    a("s_lshr_b32 s71, s11, 2")
    a("s_add_u32 s70, s70, s71")
    a("s_lshl_b32 s70, s70, 7")
    a("s_add_u32 s69, s69, s70")
    a("s_lshl_b32 s70, s4, 12")
    a(f"s_add_u32 s70, s70, {WO_BASE}")
    a("s_lshl_b32 s71, s6, 12")
    a(f"v_mov_b32 v10, {SYNC}")
    a("v_mov_b32 v11, 1")
    a("s_lshl_b32 s43, s4, 2")
    a("v_add_u32 v9, s43, v10")

    def wo_issue(k):
        if k < 7:
            a(f"s_add_u32 m0, s70, {k*16384}")
        else:
            a("s_mov_b32 m0, s7")
        for i in range(4):
            a(f"buffer_load_dwordx4 v{232+i}, s[20:23], s69 offen offset:{i*1024}{NTG} lds")
            vm.issue("wo")
        a(f"s_add_u32 s69, s69, {128*2048}")

    def post_setup():
        a("s_lshl_b32 s16, s10, 1")
        a("s_lshr_b32 s17, s11, 4")
        a("s_add_u32 s16, s16, s17")
        a("s_and_b32 s17, s11, 15")
        a("s_lshl_b32 s17, s17, 2")
        a("s_add_u32 s17, s17, s4")
        a("s_lshr_b32 s18, s17, 4")
        a("s_and_b32 s17, s17, 15")
        a("s_lshl_b32 s19, s18, 9")
        a("s_lshl_b32 s64, s17, 2")
        a("s_add_u32 s19, s19, s64")
        a("s_lshl_b32 s64, s19, 11")
        a("s_lshl_b32 s65, s16, 7")
        a("s_add_u32 s64, s64, s65")
        a("s_lshl_b32 s72, s19, 12")
        a("s_add_u32 s72, s72, s65")
        a("s_lshl_b32 s73, s16, 18")
        a("s_lshl_b32 s65, s18, 10")
        a("s_add_u32 s73, s73, s65")
        a("s_lshl_b32 s65, s17, 6")
        a("s_add_u32 s73, s73, s65")
        a("s_add_u32 s65, s73, 4096")
        a("s_add_u32 s66, s73, 8192")
        a("s_add_u32 s67, s73, 12288")
        a("v_lshlrev_b32 v224, 12, v14")
        a("v_lshl_add_u32 v224, v15, 3, v224")
        a("v_lshlrev_b32 v225, 14, v15")
        a("v_lshl_add_u32 v225, v14, 4, v225")

    def q_loads():
        srd(a, 16, P_Q, 4 * MB)
        a("v_lshlrev_b32 v4, 11, v14")
        a("v_lshl_add_u32 v4, v15, 3, v4")
        for jj in range(8):
            a(f"buffer_load_dwordx2 {vr(QR+2*jj,2)}, v4, s[16:19], s64 offen{NTO}")
            vm.issue("q")
            a(f"s_add_u32 s64, s64, {64*2048}")

    QR = 208

    def h_issue():
        a(f"s_add_u32 m0, s7, {CV_HB}")
        for c in range(4):
            a(f"buffer_load_dwordx4 v3, s[16:19], s71 offen offset:{1024*c}{NTO} lds")
            vm.issue("h")
        a("s_lshl_b32 s43, s6, 1")
        a("v_mov_b32 v4, 0")
        a("buffer_load_ushort v164, v4, s[20:23], s43 offen")
        vm.issue("h")
        srd(a, 20, P_WO, 2 * MB)

    for kt in range(16):
        tags = [("st", kt)]
        if kt == F1N + 1:
            tags += ["fill"]
        if kt == FLAGN + 1:
            tags += ["ust"]
        vm.wait_for(tags)
        if kt == 14:
            a("s_waitcnt lgkmcnt(0)")
        a("s_barrier")
        if kt in (2, 5, 8, 11, 14) and not env("ST0", 0):
            stamp(a, 10 + (2, 5, 8, 11, 14).index(kt))
        if kt == 0:
            for k2 in range(PRO, NS - 1):
                issue(k2)
        if kt + NS - 1 < 16:
            issue(kt + NS - 1)
        for op in spf[SPF_C + kt * SPF_L: SPF_C + (kt + 1) * SPF_L]:
            a(op)
        if FL0 <= kt < FL0 + len(fills) and "f" not in XP and not FILLC:
            a(fills[kt - FL0]); vm.issue("fill")
        if POSTPRE and kt in (14, 15):
            for grp in (loads[:13] if kt == 14 else loads[13:]):
                for op in grp:
                    a(op)
                vm.issue("pre")
        if PL0 <= kt < PL0 + NPL and "l" not in XP and not POSTPRE and not PREC:
            q = -(-len(loads) // NPL)
            for grp in loads[(kt - PL0) * q: (kt - PL0 + 1) * q]:
                for op in grp:
                    a(op)
                vm.issue("pre")
        if kt == 13:
            post_setup()
            srd(a, 16, P_H, 4 * MB)
            srd(a, 20, P_D, 2048)
            a("v_mov_b32 v4, 0")
            a("v_lshlrev_b32 v5, 2, v2")
            a(f"v_add_u32 v6, {SYNC}, v5")
            a("ds_write_b32 v6, v4")
            a("v_add_u32 v6, s7, v5")
            a(f"ds_write_b32 v6, v4 offset:{CV_UB-256}")
            if CV32:
                a(f"ds_write_b32 v6, v4 offset:{CV_UB-512}")
            a(f"v_and_b32 v6, {15 if CV32 else 7}, v2")
            a("v_lshlrev_b32 v6, 2, v6")
            a("v_add_u32 v6, s7, v6")
            a("ds_write_b32 v6, v4")
            h_issue()
            if QEARLY:
                q_loads()
        if PCS <= kt < PCE and not POSTPRE and not PREC:
            if kt == PCS:
                vm.wait_for(["pre"])
            for op in comp[:per]:
                if "c" in XP and not isinstance(op, tuple):
                    continue
                if isinstance(op, tuple):
                    if "u" in XP:
                        continue
                    a(op[1]); vm.issue("ust")
                else:
                    a(op)
            comp = comp[per:]
        if kt == 14 and EARLYWO >= 2:
            wo_issue(0); wo_issue(1)
        if kt == 15 and EARLYWO >= 4:
            wo_issue(2); wo_issue(3)
    assert POSTPRE or PREC or not comp
    a("s_barrier")
    stamp(a, 1)
    if POSTPRE:
        vm.wait_for(["pre"])
        for ci in range(4):
            a(f"v_lshlrev_b32 v{W+ci}, 16, v{24+2*ci}")
            a(f"v_and_b32 v{W+4+ci}, 0xffff0000, v{24+2*ci}")
            a(f"v_lshlrev_b32 v{W+8+ci}, 16, v{25+2*ci}")
            a(f"v_and_b32 v{W+12+ci}, 0xffff0000, v{25+2*ci}")
        for cp in range(2):
            for i in range(11):
                a(f"v_lshlrev_b32 v{KF+2*i}, 16, v{32+2*i+cp}")
                a(f"v_and_b32 v{KF+2*i+1}, 0xffff0000, v{32+2*i+cp}")
            for i in range(8):
                a(f"v_lshlrev_b32 v{VF+2*i}, 16, v{54+2*i+cp}")
                a(f"v_and_b32 v{VF+2*i+1}, 0xffff0000, v{54+2*i+cp}")
            for i in range(8):
                a(f"v_pk_mul_f32 {vr(KS+2*i,2)}, {vr(KF+2*i,2)}, {vr(W+12+2*cp,2)}")
            for j in (2, 1, 0):
                for i in range(8):
                    a(f"v_pk_fma_f32 {vr(KS+2*i,2)}, {vr(KF+2*(i+3-j),2)}, {vr(W+4*j+2*cp,2)}, {vr(KS+2*i,2)}")
            for i in range(8):
                a(f"v_pk_mul_f32 {vr(KS+2*i,2)}, {vr(KS+2*i,2)}, {vr(VF+2*i,2)}")
            O = 144 + 8 * cp
            for e in range(2):
                for i in range(4):
                    a(f"v_cvt_pk_bf16_f32 v{O+4*e+i}, v{KS+4*i+e}, v{KS+4*i+2+e}")
            for i in range(8):
                a(f"v_and_b32 v{O+i}, -2, v{O+i}")
            for e in range(2):
                a(f"buffer_store_dwordx4 {vr(O+4*e)}, v19, s[44:47], s62 offen sc1")
                a("s_add_u32 s62, s62, 4096")
    srd(a, 24, P_DBG, 256)
    srd(a, 32, P_OUT, 8 * MB)
    a("s_mov_b32 s40, 0")
    a("s_mov_b32 s42, 0")
    a("v_lshrrev_b32 v5, 1, v2")
    a("v_lshlrev_b32 v5, 7, v5")
    a("v_and_b32 v4, 1, v2")
    a("v_lshl_add_u32 v5, v4, 4, v5")
    a("v_mov_b32 v4, 0")
    a("buffer_load_dword v226, v4, s[24:27], 0 offen sc1")
    srd_off(a, 24, P_WS, WS_FLAG, 4096)
    a("v_lshlrev_b32 v6, 7, v15")
    a("v_lshl_add_u32 v6, v14, 4, v6")
    a("s_lshl_b32 s60, s15, 11")
    a("s_lshl_b32 s61, s15, 16")
    a(f"s_lshl_b32 s62, s36, {10 if BP else 11}")
    a("s_add_u32 s61, s61, s62")

    def flagcmp(r):
        for i in range(4):
            a(f"v_xor_b32 v{r+i}, v{r+i}, v226")
        a(f"v_or3_b32 v{r}, v{r}, v{r+1}, v{r+2}")
        a(f"v_or_b32 v{r}, v{r}, v{r+3}")
        a(f"v_cmp_ne_u32 vcc, 0, v{r}")

    def u_block(ret):
        a(f"s_add_u32 m0, s7, {CV_UB}")
        for c in range(4):
            a(f"buffer_load_dwordx4 v3, s[44:47], s71 offen offset:{1024*c} sc1 lds")
        a("s_mov_b32 s42, 1")
        a("s_waitcnt vmcnt(0) lgkmcnt(0)")
        lds_signal(a, 9, S_HU, 11)
        stamp(a, 3)
    a(f"s_mov_b32 s43, {RETRY_MAX}")
    a.label("K3_fp")
    a(f"buffer_load_dwordx4 {vr(24)}, v5, s[24:27], 0 offen sc1")
    a(f"buffer_load_dwordx4 {vr(28)}, v5, s[24:27], 0 offen offset:32 sc1")
    a("s_waitcnt vmcnt(0)")
    vm.q = []
    flagcmp(24)
    a("s_sub_u32 s43, s43, 1")
    a("s_cbranch_scc1 K3_fp_ok")
    a("s_cmp_eq_u64 vcc, 0")
    a("s_cbranch_scc1 K3_fp_ok")
    a("s_add_u32 s75, s75, 1")
    a("s_sleep 8")
    a("s_branch K3_fp")
    a.label("K3_fp_ok")
    if POSTPRE:
        a("s_mov_b64 exec, 1")
        a(f"ds_add_rtn_u32 v7, v10, v11 offset:{S_GO}")
        a("s_waitcnt lgkmcnt(0)")
        a("v_readfirstlane_b32 s43, v7")
        a("s_lshl_b32 s62, s11, 7")
        a("s_lshl_b32 s63, s10, 2")
        a("s_add_u32 s62, s62, s63")
        a("s_cmp_lg_u32 s43, 3")
        a("s_cbranch_scc1 K3_nof2")
        a("buffer_store_dword v226, v4, s[24:27], s62 offen offset:32 sc1")
        a.label("K3_nof2")
        a("s_mov_b64 exec, -1")
    stamp(a, 2)
    a("v_mov_b32 v4, s7")
    a(f"ds_read_u16 v7, v4 offset:{CV_HB}")
    a("v_lshlrev_b32 v164, 16, v164")
    a("s_waitcnt lgkmcnt(0)")
    a("v_lshlrev_b32 v7, 16, v7")
    a("v_add_f32 v7, v7, v164")
    a("v_cvt_pk_bf16_f32 v7, v7, v7")
    a(f"ds_write_b16 v4, v7 offset:{CV_HB}")
    flagcmp(28)
    a("s_cmp_lg_u64 vcc, 0")
    a("s_cbranch_scc1 K3_nou0")
    u_block(0)
    a.label("K3_nou0")
    if WAITKV:
        lds_wait(a, "K3_wkvs", 10, S_KVS, 2, 16, 62, sleep=1)
    PQR = 192

    def bulkA():
        for k in range(EARLYWO, 6):
            wo_issue(k)
        a("v_and_b32 v7, 31, v2")
        a("v_lshlrev_b32 v7, 11, v7")
        a(f"s_add_u32 s62, s69, {128*2048}")
        a("buffer_load_dword v165, v7, s[20:23], s62 offen")
        if CPOST:
            srd(a, 16, P_Q, 4 * MB)
            a("v_bfe_u32 v7, v2, 2, 3")
            a("v_lshlrev_b32 v7, 17, v7")
            a("v_and_b32 v8, 3, v2")
            a("v_lshl_add_u32 v7, v8, 11, v7")
            a("buffer_load_dword v165, v7, s[16:19], s64 offen")

    def pq_pick():
        a("s_lshl_b32 s43, s4, 12")
        a(f"s_add_u32 s43, s43, {PQ_BASE}")
        a("v_add_u32 v8, s43, v3")
        lds_wait(a, "K3_wpq", 9, S_PQ, 1, 16, 62, sleep=1)
        for mt in range(4):
            a(f"ds_read_b128 {vr(PQR+4*mt)}, v8 offset:{1024*mt}")
        a("s_waitcnt lgkmcnt(0)")

    if not ZFIRST:
        bulkA()
        pq_pick()
    if PG:
        vm.q = []
        a("s_setprio 2")
        a("s_mov_b32 s62, s61")
        for p in range(16):
            for dt in range(2):
                a(f"buffer_load_dwordx4 {vr(64+8*p+4*dt)}, v3, s[52:55], s62 offen offset:{1024*dt}{GSC}")
                vm.issue(("kv", p))
            a("s_add_u32 s62, s62, 4096")
    if not ZFIRST:
        wo_issue(6)
    if PG:
        if not QEARLY and not CPOST:
            q_loads()
        for i in range(8):
            a(f"v_mov_b32 v{56+i}, 0")
        a("s_mov_b32 s63, 0")
        for p in range(16):
            vm.wait_for([("kv", p)])
            r = 64 + 8 * p
            and_reduce(a, 16, range(r, r + 8))
            a("v_cmp_eq_u32 vcc, 0, v16")
            a(f"s_bitset1_b32 s63, {p}")
            a("s_cmp_lg_u64 vcc, 0")
            a(f"s_cbranch_scc1 K3_pg{p}")
            a(f"s_bitset0_b32 s63, {p}")
            for i in range(8):
                a(f"v_add_f32 v{56+i}, v{56+i}, v{r+i}")
            a.label(f"K3_pg{p}")
    a(f"s_mov_b32 s43, {RETRY_MAX}")
    a.label("K3_zp")
    for dt in range(2):
        a(f"buffer_load_dwordx4 {vr(32+4*dt)}, v6, s[56:59], s60 offen offset:{64*dt} sc1")
    a("s_cmp_lg_u32 s42, 0")
    a("s_cbranch_scc1 K3_zp_nf")
    a(f"buffer_load_dwordx4 {vr(28)}, v5, s[24:27], 0 offen offset:32 sc1")
    a("s_waitcnt vmcnt(0)")
    flagcmp(28)
    a("s_cmp_lg_u64 vcc, 0")
    a("s_cbranch_scc1 K3_zp_nf")
    u_block(1)
    a.label("K3_zp_nf")
    a(f"ds_read_b32 v17, v9 offset:{S_CD}")
    a("s_waitcnt vmcnt(0) lgkmcnt(0)")
    vm.q = []
    and_reduce(a, 16, range(32, 40))
    a("v_readfirstlane_b32 s41, v17")
    a("v_cmp_eq_u32 vcc, 0, v16")
    a("s_sub_u32 s43, s43, 1")
    a("s_cbranch_scc1 K3_zp_ok")
    a("s_cmp_eq_u64 vcc, 0")
    a("s_cbranch_scc1 K3_zp_ok")
    a("s_cmp_lg_u32 s40, 0")
    a("s_cbranch_scc1 K3_zp_s2")
    if QEARLY:
        a("s_cmp_lg_u32 s41, 0")
        a("s_cbranch_scc1 K3_post")
    a.label("K3_zp_s2")
    a(f"s_sleep {ZSLEEP}")
    a("s_branch K3_zp")
    a.label("K3_zp_ok")
    if PG:
        stamp(a, 4)
        a(f"s_mov_b32 s43, {RETRY_MAX}")
        a.label("K3_ml")
        a("s_cmp_eq_u32 s63, 0")
        a("s_cbranch_scc1 K3_ml_done")
        a("s_ff1_i32_b32 s41, s63")
        a("s_lshl_b32 s62, s41, 12")
        a("s_add_u32 s62, s62, s61")
        for dt in range(2):
            a(f"buffer_load_dwordx4 {vr(64+4*dt)}, v3, s[52:55], s62 offen offset:{1024*dt} sc1")
        a("s_add_u32 s75, s75, 1")
        a("s_waitcnt vmcnt(0)")
        and_reduce(a, 16, range(64, 72))
        a("v_cmp_eq_u32 vcc, 0, v16")
        a("s_sub_u32 s43, s43, 1")
        a("s_cbranch_scc1 K3_ml_done")
        a("s_cmp_lg_u64 vcc, 0")
        a("s_cbranch_scc1 K3_ml")
        a("s_bitset0_b32 s63, s41")
        for i in range(8):
            a(f"v_add_f32 v{56+i}, v{56+i}, v{64+i}")
        a("s_branch K3_ml")
        a.label("K3_ml_done")
        for i in range(8):
            a(f"v_add_f32_dpp v{40+i}, v{32+i}, v{32+i} row_ror:8 {DPP}")
        for sh in (4, 2, 1):
            for i in range(8):
                a(f"v_add_f32_dpp v{40+i}, v{40+i}, v{40+i} row_ror:{sh} {DPP}")
        for i in range(4):
            a(f"v_cvt_pk_bf16_f32 v{48+i}, v{40+2*i}, v{41+2*i}")
        for i in range(8):
            a(f"v_mov_b32 v{64+i}, v{56+i}")
    else:
        stamp(a, 4)
        a("s_setprio 2")
        a(f"s_mov_b32 s43, {RETRY_MAX}")
        def gloads(fl, track):
            a("s_mov_b32 s62, s61")
            for p in range(16):
                for dt in range(1 if BP else 2):
                    r = 96 + 4 * p if BP else 64 + 8 * p + 4 * dt
                    a(f"buffer_load_dwordx4 {vr(r)}, v3, s[52:55], s62 offen offset:{1024*dt}{fl}")
                    if track:
                        vm.issue(("kv", p))
                a("s_add_u32 s62, s62, 4096")
        gloads(GSC, True)
        if ZFIRST:
            bulkA()
            vm.issue("t")
        if not QEARLY and not CPOST:
            q_loads()
        a.label("K3_gl")
        for i in range(8):
            a(f"v_add_f32_dpp v{40+i}, v{32+i}, v{32+i} row_ror:8 {DPP}")
        for sh in (4, 2, 1):
            for i in range(8):
                a(f"v_add_f32_dpp v{40+i}, v{40+i}, v{40+i} row_ror:{sh} {DPP}")
        for i in range(4):
            a(f"v_cvt_pk_bf16_f32 v{48+i}, v{40+2*i}, v{41+2*i}")
        a("v_mov_b32 v16, 1")
        for p in range(16):
            vm.wait_for([("kv", p)])
            if BP:
                r = 96 + 4 * p
                for i in range(0, 4, 2):
                    a(f"v_bitop3_b32 v16, v16, v{r+i}, v{r+i+1} bitop3:0x80")
                t = 64 if p == 0 else 72
                for i in range(4):
                    a(f"v_lshlrev_b32 v{t+2*i}, 16, v{r+i}")
                    a(f"v_and_b32 v{t+2*i+1}, 0xffff0000, v{r+i}")
                if p >= 1:
                    for i in range(8):
                        a(f"v_add_f32 v{64+i}, v{64+i}, v{72+i}")
            else:
                r = 64 + 8 * p
                for i in range(0, 8, 2):
                    a(f"v_bitop3_b32 v16, v16, v{r+i}, v{r+i+1} bitop3:0x80")
                if p >= 1:
                    for i in range(8):
                        a(f"v_add_f32 v{64+i}, v{64+i}, v{r+i}")
        a("v_cmp_eq_u32 vcc, 0, v16")
        a("s_sub_u32 s43, s43, 1")
        a("s_cbranch_scc1 K3_gl_ok")
        a("s_cmp_eq_u64 vcc, 0")
        a("s_cbranch_scc1 K3_gl_ok")
        a("s_add_u32 s75, s75, 1")
        a("s_sleep 4")
        gloads(" sc1", False)
        a("s_waitcnt vmcnt(0)")
        a("s_branch K3_gl")
    a.label("K3_gl_ok")
    for i in range(4):
        a(f"v_cvt_pk_bf16_f32 v{40+i}, v{64+2*i}, v{65+2*i}")
    a("s_lshl_b32 s43, s4, 10")
    a(f"s_add_u32 s43, s43, {KVT}")
    a("v_add_u32 v5, s43, v3")
    a(f"ds_write_b128 v5, {vr(40)}")
    a("s_lshl_b32 s43, s37, 2")
    a("v_add_u32 v7, s43, v10")
    a("s_lshl_b32 s43, s37, 11")
    a(f"s_add_u32 s43, s43, {KVT}")
    a("v_add_u32 v5, s43, v3")
    a("s_waitcnt lgkmcnt(0)")
    lds_signal(a, 7, S_KVT, 11)
    if ZFIRST:
        pq_pick()
        wo_issue(6)
    lds_wait(a, "K3_wkt", 7, S_KVT, 2, 52, 60)
    a(f"ds_read_b128 {vr(40)}, v5")
    a(f"ds_read_b128 {vr(44)}, v5 offset:1024")
    a("s_waitcnt lgkmcnt(0)")
    stamp(a, 5)
    for mt in range(4):
        b = 64 + 12 * mt
        mfma16(a, b + 8, 48, PQR + 4 * mt, "0")
        mfma16(a, b, 40, PQR + 4 * mt, "0")
        mfma16(a, b + 4, 44, PQR + 4 * mt, "0")
    a("s_lshl_b32 s60, s12, 3")
    a("s_lshl_b32 s61, s36, 2")
    a("s_add_u32 s60, s60, s61")
    a("s_lshl_b32 s60, s60, 5")
    a("s_add_u32 s60, s60, s15")
    a("s_lshl_b32 s60, s60, 10")
    a(f"s_mov_b32 s61, {EPS}")
    for mt in range(4):
        a(f"v_add_f32 v{112+mt}, s61, v{64+12*mt+8}")
        a(f"v_rcp_f32 v{112+mt}, v{112+mt}")
    for mt in range(4):
        b = 64 + 12 * mt
        for i in range(8):
            a(f"v_mul_f32 v{b+i}, v{b+i}, v{112+mt}")
        for i in range(4):
            a(f"v_cvt_pk_bf16_f32 v{120+4*mt+i}, v{b+2*i}, v{b+2*i+1}")
        for i in range(4):
            a(f"v_or_b32 v{120+4*mt+i}, 1, v{120+4*mt+i}")
        a(f"buffer_store_dwordx4 {vr(120+4*mt)}, v3, s[48:51], s60 offen sc1")
        a("s_add_u32 s60, s60, 32768")
    a("s_setprio 0")
    stamp(a, 6)
    a(f"s_mov_b32 s43, {RETRY_MAX}")
    a("v_lshrrev_b32 v5, 1, v2")
    a("v_lshlrev_b32 v5, 7, v5")
    a("v_and_b32 v4, 1, v2")
    a("v_lshl_add_u32 v5, v4, 4, v5")
    a.label("K3_ul")
    a("s_cmp_lg_u32 s42, 0")
    a("s_cbranch_scc1 K3_ul_done")
    a(f"buffer_load_dwordx4 {vr(28)}, v5, s[24:27], 0 offen offset:32 sc1")
    a("s_waitcnt vmcnt(0)")
    flagcmp(28)
    a("s_sub_u32 s43, s43, 1")
    a("s_cbranch_scc1 K3_ul_go")
    a("s_cmp_eq_u64 vcc, 0")
    a("s_cbranch_scc1 K3_ul_go")
    a("s_sleep 4")
    a("s_branch K3_ul")
    a.label("K3_ul_go")
    u_block(2)
    a.label("K3_ul_done")
    a("s_and_b32 s60, s10, 3")
    a("s_lshl_b32 s60, s60, 2")
    a("s_and_b32 s61, s11, 3")
    a("s_add_u32 s60, s60, s61")
    a("s_lshl_b32 s60, s60, 18")
    a("s_lshr_b32 s61, s11, 2")
    a("s_lshl_b32 s61, s61, 2")
    a("s_add_u32 s61, s61, s4")
    a("s_lshl_b32 s61, s61, 13")
    a("s_add_u32 s63, s60, s61")
    a("v_lshlrev_b32 v8, 7, v2")
    a("s_waitcnt vmcnt(0)")
    a("buffer_load_dword v60, v8, s[48:51], s63 offen")
    a(f"s_waitcnt vmcnt({0 if TWAIT else 1})")
    lds_signal(a, 10, S_WOM, 11)
    lds_wait(a, "K3_wcd", 9, S_CD, 1, 16, 60, sleep=1)
    wo_issue(7)
    a("s_waitcnt vmcnt(0)")
    lds_signal(a, 10, S_WOT, 11)
    vm.q = []
    stamp(a, 7)
    a("s_cmp_eq_u32 s40, 1")
    a("s_cbranch_scc1 K3_fin")
    if CPOST:
        lds_wait(a, "K3_wg2", 9, S_G2, 1, 16, 60, sleep=2)
        a(f"ds_read_b32 v16, v9 offset:{S_PD}")
        a("s_waitcnt lgkmcnt(0)")
        a("v_readfirstlane_b32 s60, v16")
        a("s_cmp_lg_u32 s60, 0")
        a("s_cbranch_scc1 K3_fin")
        q_loads()
    if GS >= 0 and not CPOST:
        lds_wait(a, "K3_wg2", 9, S_G2, 1, 16, 60, sleep=2)
    a("s_mov_b32 s40, 2")
    if PDELAY:
        a(f"s_sleep {PDELAY}")
    a(f"s_mov_b32 s43, {RETRY_MAX}")
    a.label("K3_post")
    for ci, sr in enumerate((73, 65, 66, 67)):
        a(f"buffer_load_dwordx4 {vr(16+4*ci)}, v225, s[44:47], s{sr} offen sc1")
    a("s_waitcnt vmcnt(0)")
    and_reduce(a, 48, range(16, 32))
    a("v_cmp_eq_u32 vcc, 0, v48")
    a("s_cmp_eq_u64 vcc, 0")
    a("s_cbranch_scc1 K3_yok")
    a("s_add_u32 s75, s75, 1")
    a("s_cmp_eq_u32 s40, 0")
    a("s_cbranch_scc1 K3_zp_s2")
    if PREPOST:
        a("s_cmp_eq_u32 s40, 3")
        a("s_cbranch_scc1 K3_pw")
    a("s_sub_u32 s43, s43, 1")
    a("s_cbranch_scc1 K3_yok")
    a("s_sleep 8")
    a("s_branch K3_post")
    a.label("K3_yok")
    stamp(a, 8)
    post_compute(a, QR, False)
    a("s_mov_b32 s41, s40")
    a("s_mov_b32 s40, 1")
    a("s_cmp_eq_u32 s41, 0")
    a("s_cbranch_scc1 K3_zp")
    if PREPOST:
        a("s_cmp_eq_u32 s41, 3")
        a("s_cbranch_scc1 K3_pw")
    a.label("K3_fin")
    stamp_flush(a, 9)
    a.label("K3_end")
    a("s_endpgm")
    a.label("K3_code_end")
    return a.finalize(), 252
```

```python
import os
from asmlib import *
from common import prepass, k2_prefetch_setup, MB, vr, mfma16, phi8, unpack4, env, LOG2E, EPS, WS_KVP, WS_ZP, WS_FLAG, WS_UT, WS_DBG, STAMP

WS_OF = 0
NS = 4
STAGE = 40960
K3_LDS = NS * STAGE
CV32 = env("CV32", 0)
CV_REG = 8960 if CV32 else 8704
CV_HB = 64 if CV32 else 32
CV_UB = 4672 if CV32 else 4384
KVT = 4 * CV_REG
SYNC = KVT + 4096
WO_BASE = 40960
PQ_BASE = WO_BASE + 24 * 4096
XCH = WO_BASE + 28 * 4096
XCZ = SYNC + 256
S_KVS = 84
S_PD = 96
S_G2 = 112
S_X, S_HU, S_PQ, S_KVT, S_WOM, S_WOT, S_CD, S_GO, S_NONCE, S_WO2 = 0, 8, 24, 40, 48, 52, 56, 72, 76, 80
SPIN_MAX = 1 << 17
RETRY_MAX = 4000
DPP = "row_mask:0xf bank_mask:0xf"
DUTY0 = env("DUTY0", 0)
NDUTY = env("NDUTY", 4)
E2_0 = env("E2_0", 4)
E2_N = env("E2_N", 4)
E3_0 = env("E3_0", 8)
E3_N = env("E3_N", 4)
F1N = env("F1N", 11)
NLEAD = env("NLEAD", 4)
FLAGN = env("FLAGN", 12)
AINIT = env("AINIT", 12)
PDELAY = env("PDELAY", 0)
G2PRIO = env("G2PRIO", 1)
CPOST = env("CPOST", 0)
PG = env("PG", 0)
BP = env("BP", 1)
TWAIT = env("TWAIT", 1)
ZFIRST = env("ZFIRST", 0)
GS = env("GS", 16)
FILLC = env("FILLC", 0)
PRO = env("PRO", 3)
TRO = env("TRO", 1)
EARLYB = env("EARLYB", 1)
LFRONT = env("LFRONT", 1)
UTF = env("UTF", 0)
NTK = " nt" if env("NTK", 1) else ""
OS1 = env("OS1", " sc1")
OS2 = env("OS2", " sc1")
NPL = env("NPL", 2)
FL0 = env("FL0", 0)
PL0 = env("PL0", 4)
SPF_C = env("SPF_C", 0)
SPF_L = env("SPF_L", 0)
ADEPTH = env("ADEPTH", 16)
YDELAY = env("YDELAY", 8)
ZSLEEP = env("ZSLEEP", 10)
ATOUCH = env("ATOUCH", 1)
XP = env("XP", "23")
LATE = env("LATE", 1)
PREPOST = env("PREPOST", 0)
EARLYWO = env("EARLYWO", 4)
WAITKV = env("WAITKV", 1)
GSC = env("GSC", "")
QX = env("QX", 1)
PREC = env("PREC", 0)
L2PF = env("L2PF", 0)
TLBW = env("TLBW", 0)
CODEPF = env("CODEPF", 0)
DBGOUT = env("DBGOUT", 0)
NTF = " nt" if env("NTF", 0) else ""
NTG = " nt" if env("NTG", 0) else ""
NTO = " nt" if env("NTO", 1) else ""
NTT = " nt" if env("NTT", 0) else ""
NTS = " nt" if env("NTS", 0) else ""
E3W = env("E3W", 1)
QEARLY = env("QEARLY", 0)
POSTPRE = env("POSTPRE", 0)
ASC = env("ASC", "")
P_Q, P_K, P_V, P_SHK, P_H, P_D, P_X, P_W, P_WO, P_OUT, P_DBG, P_WS = [76 + 2 * i for i in range(12)]
SV = 231


def stamp(a, i):
    if STAMP:
        a("s_memrealtime s[100:101]")
        a("s_waitcnt lgkmcnt(0)")
        a(f"v_writelane_b32 v{SV}, s100, {i}")


def cstamp(a, i):
    if STAMP:
        a("s_memtime s[100:101]")
        a("s_waitcnt lgkmcnt(0)")
        a(f"v_writelane_b32 v{SV}, s100, {i}")


def stamp_flush(a, n):
    if not STAMP:
        return
    a("s_mov_b64 exec, -1")
    a("s_waitcnt vmcnt(0)")
    stamp(a, n)
    a(f"v_writelane_b32 v{SV}, s75, 15")
    if DBGOUT:
        lab = "K3_dbg%d" % len(a.ins)
        a(f"s_cmp_lg_u32 s2, {DBGOUT-1}")
        a(f"s_cbranch_scc1 {lab}")
        a("s_cmp_lg_u32 s4, 0")
        a(f"s_cbranch_scc1 {lab}")
        srd(a, 16, P_DBG, 256)
        a(f"v_readlane_b32 s20, v{SV}, 0")
        a("s_lshr_b32 s21, s3, 1")
        a("v_lshlrev_b32 v0, 2, v2")
        a(f"v_subrev_u32 v1, s20, v{SV}")
        a("s_mov_b64 exec, 0x3fe")
        a("buffer_store_short v1, v0, s[16:19], s21 offen")
        a("s_mov_b64 exec, -1")
        a.label(lab)
    srd_off(a, 16, P_WS, WS_DBG, 4 * MB)
    a("s_add_u32 s20, s2, 512")
    a("s_lshl_b32 s20, s20, 4")
    a("s_add_u32 s20, s20, s3")
    a("s_lshl_b32 s20, s20, 6")
    a("v_lshlrev_b32 v0, 2, v2")
    a("s_mov_b64 exec, 0xffff")
    a(f"buffer_store_dword v{SV}, v0, s[16:19], s20 offen")


def lds_wait(a, name, vaddr, off, val, vtmp, stmp, sleep=0):
    a(f"s_mov_b32 s{stmp+1}, {SPIN_MAX}")
    a.label(name)
    if sleep:
        a(f"s_sleep {sleep}")
    a(f"ds_read_b32 v{vtmp}, v{vaddr} offset:{off}")
    a("s_waitcnt lgkmcnt(0)")
    a(f"v_readfirstlane_b32 s{stmp}, v{vtmp}")
    a(f"s_sub_u32 s{stmp+1}, s{stmp+1}, 1")
    a(f"s_cbranch_scc1 {name}_ok")
    a(f"s_cmp_lt_u32 s{stmp}, {val}")
    a(f"s_cbranch_scc1 {name}")
    a.label(name + "_ok")


def lds_signal(a, vaddr, off, vone):
    a("s_mov_b64 exec, 1")
    a(f"ds_add_u32 v{vaddr}, v{vone} offset:{off}")
    a("s_mov_b64 exec, -1")


def and_reduce(a, dst, regs):
    regs = list(regs)
    a(f"v_bitop3_b32 v{dst}, v{regs[0]}, v{regs[1]}, 1 bitop3:0x80")
    i = 2
    while i + 1 < len(regs):
        a(f"v_bitop3_b32 v{dst}, v{dst}, v{regs[i]}, v{regs[i+1]} bitop3:0x80")
        i += 2
    if i < len(regs):
        a(f"v_and_b32 v{dst}, v{dst}, v{regs[i]}")


def post_compute(a, QR, pk):
    for jj in range(8):
        T = 48 + 8 * (jj & 1)
        for ci in range(4):
            if jj & 1:
                a(f"v_and_b32 v{T+ci}, 0xffff0000, v{16+4*ci+jj//2}")
            else:
                a(f"v_lshlrev_b32 v{T+ci}, 16, v{16+4*ci+jj//2}")
        for cp in range(2):
            a(f"v_lshlrev_b32 v{T+4+2*cp}, 16, v{QR+2*jj+cp}")
            a(f"v_and_b32 v{T+5+2*cp}, 0xffff0000, v{QR+2*jj+cp}")
        if pk:
            for cp in range(2):
                a(f"v_pk_mul_f32 {vr(T+2*cp,2)}, {vr(T+2*cp,2)}, {vr(T+4+2*cp,2)}")
        else:
            for ci in range(4):
                a(f"v_mul_f32 v{T+ci}, v{T+ci}, v{T+4+ci}")
        O = 64 + 2 * jj
        for cp in range(2):
            a(f"v_cvt_pk_bf16_f32 v{O+cp}, v{T+2*cp}, v{T+2*cp+1}")
        a(f"buffer_store_dwordx2 {vr(O,2)}, v224, s[32:35], s72 offen{NTS}{OS1}")
        a(f"s_add_u32 s72, s72, {64*4096}")


def conv32(a, lg, PK):
    FU, HR, NH = 96, 16, 4
    ACCS = [[32, 48], [64, 80]]
    T2, T1, YV, R3PREV = [224, 225], [226, 227], [228, 229], 230

    def epilogue_ops(p):
        ops = []
        for ql in range(8):
            Q = 8 * p + ql
            acc = ACCS[p & 1][ql // 4] + 4 * (ql % 4)
            R0, R1, R2, R3 = acc, acc + 1, acc + 2, acc + 3
            cur, prv = Q & 1, (Q & 1) ^ 1
            r3p = R3PREV if ql == 0 else ACCS[p & 1][(ql - 1) // 4] + 4 * ((ql - 1) % 4) + 3
            if Q == 0:
                ops.append(f"v_add_f32_dpp v{T2[cur]}, v{R3}, v{R2} wave_shr:1 {DPP} bound_ctrl:0")
                ops.append(f"v_add_f32_dpp v{T1[cur]}, v{T2[cur]}, v{R1} wave_shr:1 {DPP} bound_ctrl:0")
                ops.append(f"v_add_f32_dpp v{YV[cur]}, v{T1[cur]}, v{R0} wave_shr:1 {DPP} bound_ctrl:0")
            else:
                ops.append(f"v_add_f32_dpp v{T2[cur]}, v{r3p}, v{R2} wave_ror:1 {DPP}")
                ops.append(f"v_add_f32_dpp v{T1[cur]}, v{T2[prv]}, v{R1} wave_ror:1 {DPP}")
                ops.append(f"v_add_f32_dpp v{YV[cur]}, v{T1[prv]}, v{R0} wave_ror:1 {DPP}")
                ops.append(f"v_add_f32_dpp v{T2[cur]}, v{R3}, v{R2} wave_shr:1 {DPP}")
                ops.append(f"v_add_f32_dpp v{T1[cur]}, v{T2[cur]}, v{R1} wave_shr:1 {DPP}")
                ops.append(f"v_add_f32_dpp v{YV[cur]}, v{T1[cur]}, v{R0} wave_shr:1 {DPP}")
            if ql & 1:
                d = PK[p] + ql // 2
                ops.append(f"v_cvt_pk_bf16_f32 v{d}, v{YV[0]}, v{YV[1]}")
                ops.append(f"v_or_b32 v{d}, 1, v{d}")
            if ql == 7:
                ops.append(f"v_mov_b32 v{R3PREV}, v{R3}")
        return ops

    steps = [(p, t) for p in range(4) for t in range(8 * p + 8)]
    issued = set()
    hslot = {}

    def issue_h(idx):
        p, t = steps[idx]
        slot = idx % NH
        hslot[idx] = slot
        for h in range(2):
            a(f"ds_read_b64_tr_b16 {vr(HR+4*slot+2*h,2)}, v12 offset:{128*t+32*(1-h)}")
            lg.issue(("h", slot))

    def issue_fu(s):
        if s in issued:
            return
        issued.add(s)
        for h in range(2):
            a(f"ds_read_b64_tr_b16 {vr(FU+4*(s+3)+2*h,2)}, v13 offset:{128*(s+3)+32*h}")
            lg.issue(("fu", s))

    def need(idx):
        p, t = steps[idx]
        r = [8 * p + 4 - t]
        if t <= 8 * p + 3:
            r.append(8 * p - t)
        return r

    PRE = 3
    for idx in range(PRE):
        for s in need(idx):
            issue_fu(s)
        issue_h(idx)
    pending = []
    for idx, (p, t) in enumerate(steps):
        if t == 0 and p > 0:
            assert not pending
            pending = epilogue_ops(p - 1)
        slot = hslot[idx]
        lg.wait_for([("h", slot)] + [("fu", s) for s in need(idx)])
        mf = [(1, 8 * p + 4 - t)]
        if t <= 8 * p + 3:
            mf.append((0, 8 * p - t))
        for k, (tile, s) in enumerate(mf):
            d = ACCS[p & 1][tile]
            cs = "0" if t == 0 else vr(d, 16)
            a(f"v_mfma_f32_32x32x16_bf16 {vr(d,16)}, {vr(FU+4*(s+3))}, {vr(HR+4*slot)}, {cs}")
            if k == 0 and idx + PRE < len(steps):
                for s2 in need(idx + PRE):
                    issue_fu(s2)
                issue_h(idx + PRE)
            if pending and t >= 2:
                for _ in range(3):
                    if pending:
                        a(pending.pop(0))
    assert not pending
    for op in epilogue_ops(3):
        a(op)


def gen_k3():
    a = Asm()
    a.label("K3_code_begin")
    a("s_cmp_ge_u32 s2, 256")
    a("s_cbranch_scc1 K3_end")
    a("s_load_dwordx8 s[84:91], s[0:1], 32")
    a("s_load_dwordx8 s[92:99], s[0:1], 64")
    a("s_load_dwordx8 s[76:83], s[0:1], 0")
    a("v_lshrrev_b32 v1, 6, v0")
    a("v_and_b32 v2, 63, v0")
    a("s_and_b32 s10, s2, 7")
    a("v_readfirstlane_b32 s3, v1")
    a("s_lshr_b32 s11, s2, 3")
    a("s_and_b32 s12, s10, 1")
    a("s_lshl_b32 s12, s12, 3")
    a("s_and_b32 s13, s11, 7")
    a("s_add_u32 s12, s12, s13")
    a("s_lshr_b32 s13, s10, 1")
    a("s_lshl_b32 s13, s13, 2")
    a("s_lshr_b32 s14, s11, 3")
    a("s_add_u32 s13, s13, s14")
    a("s_mov_b32 s75, 0")
    a("s_and_b32 s4, s3, 3")
    a("s_and_b32 s36, s3, 1")
    a("s_bfe_u32 s37, s3, 0x10001")
    a("s_lshl_b32 s5, s13, 1")
    a("s_add_u32 s5, s5, s37")
    a(f"s_xor_b32 s15, s5, {2 if QX else 0}")
    a("s_lshl_b32 s6, s10, 7")
    a("s_lshl_b32 s7, s11, 2")
    a("s_add_u32 s6, s6, s7")
    a("s_add_u32 s6, s6, s4")
    a(f"s_mul_i32 s7, s4, {CV_REG}")
    a("v_lshlrev_b32 v3, 4, v2")
    a("v_lshrrev_b32 v14, 4, v2")
    a("v_and_b32 v15, 15, v2")
    spf = []
    if not EARLYB:
        a("s_waitcnt lgkmcnt(0)")
        stamp(a, 0)
    if LFRONT:
        a("s_cmp_lt_u32 s3, 4")
        a("s_cbranch_scc1 K3_C")
        mark = len(a.ins)
        a.label("K3_C")
    else:
        a("s_cmp_ge_u32 s3, 4")
        a("s_cbranch_scc1 K3_L")
    if EARLYB:
        a("s_waitcnt lgkmcnt(0)")
        stamp(a, 0)

    if L2PF:
        srd(a, 40, P_X, 4 * MB)
        srd(a, 48, P_W, 6 * MB)
        a("v_lshrrev_b32 v192, 3, v2")
        a("v_lshlrev_b32 v192, 11, v192")
        a("v_and_b32 v16, 7, v2")
        a("v_lshl_add_u32 v192, v16, 7, v192")
        a("s_and_b32 s44, s10, 1")
        a("s_lshl_b32 s44, s44, 21")
        a("s_lshl_b32 s45, s11, 16")
        a("s_add_u32 s44, s44, s45")
        a("s_lshl_b32 s45, s3, 14")
        a("s_add_u32 s44, s44, s45")
        a(f"buffer_load_dword v195, v192, s[40:43], s44 offen{NTT}")
        a("v_lshrrev_b32 v193, 2, v2")
        a("v_mul_u32_u24 v193, 6144, v193")
        a("v_and_b32 v16, 3, v2")
        a("v_lshl_add_u32 v193, v16, 7, v193")
        a("s_mul_i32 s45, s11, 98304")
        a("s_lshl_b32 s46, s3, 11")
        a("s_add_u32 s45, s45, s46")
        a("s_lshr_b32 s46, s10, 1")
        a("s_lshl_b32 s46, s46, 9")
        a("s_add_u32 s45, s45, s46")
        a("s_cmp_eq_u32 s3, 3")
        a(f"s_cselect_b32 s45, {16*MB}, s45")
        a(f"buffer_load_dword v195, v193, s[48:51], s45 offen{NTT}")
        a("s_add_u32 s44, s44, 1024")
        a(f"s_add_u32 s45, s45, {512*6144}")
    else:
        a("s_cmp_lg_u32 s3, 0")
        a("s_cbranch_scc1 K3_pfw")
        srd(a, 40, P_X, 4 * MB)
        a("v_lshrrev_b32 v192, 3, v2")
        a("v_lshlrev_b32 v192, 11, v192")
        a("v_and_b32 v16, 7, v2")
        a("v_lshl_add_u32 v192, v16, 7, v192")
        a("s_lshl_b32 s45, s2, 14")
        a("s_add_u32 s44, s45, 1024")
        a("s_branch K3_pfd")
        a.label("K3_pfw")
        srd(a, 40, P_W, 6 * MB)
        a("v_lshlrev_b32 v192, 7, v2")
        a("s_mul_i32 s45, s2, 12288")
        a("s_sub_u32 s44, s3, 1")
        a("s_lshl_b32 s44, s44, 12")
        a("s_add_u32 s45, s45, s44")
        a(f"s_add_u32 s44, s45, {3*MB}")
        a("s_cmp_eq_u32 s3, 3")
        a(f"s_cselect_b32 s45, {8*MB}, s45")
        a(f"s_cselect_b32 s44, {8*MB}, s44")
        a.label("K3_pfd")
        if "1" in XP:
            a(f"s_mov_b32 s45, {16*MB}")
            a(f"s_mov_b32 s44, {16*MB}")
        a(f"buffer_load_dword v195, v192, s[40:43], s45 offen{NTT}")
    srd(a, 56, P_DBG, 256)
    srd_off(a, 60, P_WS, WS_FLAG, 4096)
    a("s_memrealtime s[16:17]")
    a("v_mov_b32 v199, 0")
    a("s_waitcnt lgkmcnt(0)")
    a("s_or_b32 s16, s16, 1")
    a("v_mov_b32 v198, s16")
    a("s_cmp_lg_u32 s3, 3")
    a("s_cbranch_scc1 K3_noseed")
    a("s_cmp_lg_u32 s11, 0")
    a("s_cbranch_scc1 K3_noseed")
    a("v_mov_b32 v196, s16")
    a("v_mov_b32 v197, 0")
    a("s_mov_b64 exec, 1")
    a("buffer_atomic_cmpswap v[196:197], v199, s[56:59], 0 offen sc1")
    a("s_mov_b64 exec, -1")
    a.label("K3_noseed")
    if CODEPF:
        a("s_cmp_lg_u32 s3, 3")
        a("s_cbranch_scc1 K3_nocpf")
        a(f"s_cmp_ge_u32 s11, {CODEPF}")
        a("s_cbranch_scc1 K3_nocpf")
        a("s_getpc_b64 s[16:17]")
        a.label("K3_pc")
        a("s_sub_u32 s16, s16, K3_pc-K3_code_begin")
        a("s_subb_u32 s17, s17, 0")
        a("s_mov_b32 s18, K3_code_end-K3_code_begin")
        a("s_mov_b32 s19, 0x20000")
        a("v_lshlrev_b32 v16, 7, v2")
        for i in range(6):
            a(f"s_mov_b32 s20, {8192*i}")
            a("buffer_load_dword v195, v16, s[16:19], s20 offen")
        a.label("K3_nocpf")
    if TLBW:
        a("s_cmp_lg_u32 s3, 3")
        a("s_cbranch_scc1 K3_notlb")
        a(f"s_cmp_ge_u32 s11, {TLBW}")
        a("s_cbranch_scc1 K3_notlb")
        a("v_lshlrev_b32 v16, 16, v2")
        for p, nb, offs in ((P_K, 4, (0,)), (P_V, 4, (0,)), (P_H, 4, (0,)), (P_Q, 4, (0,)), (P_WO, 2, (0,)), (P_OUT, 8, (0, 4)), (P_WS, 20, (0, 8, 12, 16))):
            srd(a, 16, p, nb * MB)
            for o in offs:
                a(f"s_mov_b32 s20, {o*MB}")
                a("buffer_load_dword v195, v16, s[16:19], s20 offen nt")
        a.label("K3_notlb")
    a("s_lshl_b32 s46, s11, 7")
    a("s_lshl_b32 s47, s10, 2")
    a("s_add_u32 s47, s47, s46")
    if PREC:
        pre_compute = prepass(a, 3, P_K, P_V, P_SHK, " sc1", P_WS, NTO)
    if not L2PF:
        a("s_cmp_ge_u32 s3, 2")
        a(f"s_cselect_b32 s48, s{P_V}, s{P_K}")
        a(f"s_cselect_b32 s49, s{P_V+1}, s{P_K+1}")
        a(f"s_mov_b32 s50, {4*MB}")
        a("s_mov_b32 s51, 0x20000")
        a("v_lshrrev_b32 v193, 2, v2")
        a("v_lshlrev_b32 v193, 11, v193")
        a("v_and_b32 v16, 3, v2")
        a("v_lshl_add_u32 v193, v16, 7, v193")
        a("s_lshr_b32 s45, s2, 2")
        a("s_lshl_b32 s45, s45, 16")
        a("s_lshl_b32 s46, s36, 15")
        a("s_add_u32 s45, s45, s46")
        a("s_and_b32 s46, s2, 3")
        a("s_lshl_b32 s46, s46, 9")
        a("s_add_u32 s45, s45, s46")
        if "2" in XP:
            a(f"s_mov_b32 s45, {16*MB}")
    a("v_mov_b32 v200, v15")
    for part in range(4):
        if part < 3:
            a(f"s_cmp_lg_u32 s3, {part}")
            a(f"s_cbranch_scc1 K3_e3_{part+1}")
        k2_prefetch_setup(a, part, 194, 64, 68, P_H, P_Q, P_WO)
        if part < 3:
            a("s_branch K3_e3_done")
            a.label(f"K3_e3_{part+1}")
    a.label("K3_e3_done")
    a("v_mov_b32 v15, v200")
    a(f"s_and_b32 s55, s11, {NDUTY-1}")
    a(f"s_add_u32 s55, s55, {DUTY0}")
    a(f"s_and_b32 s52, s11, {E2_N-1}")
    a(f"s_add_u32 s52, s52, {E2_0}")
    a("s_sub_u32 s52, s52, s55")
    a("s_sub_u32 s52, s52, 1")
    a("s_mov_b32 s54, 0")
    a("s_lshr_b32 s70, s11, 2")
    a(f"s_and_b32 s70, s70, {E3_N-1}")
    a(f"s_add_u32 s70, s70, {E3_0 if '3' not in XP else 1000}")
    if E3W:
        a("s_cmp_lt_u32 s3, 2")
        a("s_cselect_b32 s70, 1000, s70")
    a("s_cmp_eq_u32 s3, 3")
    a(f"s_cselect_b32 s71, {F1N-NLEAD}, 1000")
    a("s_mov_b32 s53, 0")
    if PREC:
        pre_compute()
    if FILLC:
        srd_off(a, 16, P_WS, WS_OF, 4 * MB)
        srd_off(a, 20, P_WS, WS_KVP, 2 * MB)
        srd_off(a, 24, P_WS, WS_ZP, 64 * 1024)
        a("s_lshl_b32 s28, s12, 3")
        a("s_lshl_b32 s29, s4, 1")
        a("s_add_u32 s28, s28, s29")
        a("s_lshl_b32 s28, s28, 15")
        a("s_lshr_b32 s29, s15, 1")
        a("s_lshl_b32 s29, s29, 11")
        a("s_add_u32 s28, s28, s29")
        a("s_add_u32 s29, s28, 32768")
        a("s_lshl_b32 s30, s5, 4")
        a("s_add_u32 s30, s30, s12")
        a("s_lshl_b32 s31, s30, 7")
        a("s_lshl_b32 s30, s30, 12")
        a("s_lshl_b32 s32, s36, 10")
        a("s_add_u32 s30, s30, s32")
        for i in range(4):
            a(f"v_mov_b32 v{20+i}, 0")
        a("v_and_b32 v18, 7, v2")
        a("v_lshlrev_b32 v18, 4, v18")
        a("buffer_store_dwordx4 v[20:23], v3, s[16:19], s28 offen sc1")
        a("buffer_store_dwordx4 v[20:23], v3, s[16:19], s28 offen offset:1024 sc1")
        a("buffer_store_dwordx4 v[20:23], v3, s[16:19], s29 offen sc1")
        a("buffer_store_dwordx4 v[20:23], v3, s[16:19], s29 offen offset:1024 sc1")
        a("buffer_store_dwordx4 v[20:23], v3, s[20:23], s30 offen sc1")
        a("buffer_store_dwordx4 v[20:23], v18, s[24:27], s31 offen sc1")
    a("s_lshl_b32 s38, s36, 6")
    a("v_add_u32 v16, s38, v15")
    a("v_lshrrev_b32 v17, 1, v15")
    a("v_lshlrev_b32 v16, 7, v16")
    a("v_xor_b32 v17, v14, v17")
    a("v_lshl_add_u32 v4, v17, 4, v16")
    a("v_xor_b32 v5, 64, v4")
    a(f"v_add_u32 v6, {2*STAGE}, v4")
    a(f"v_add_u32 v7, {2*STAGE}, v5")
    a("v_bfe_u32 v17, v2, 2, 2")
    a("v_and_b32 v18, 3, v2")
    a("v_lshlrev_b32 v17, 6, v17")
    a("v_lshl_add_u32 v17, v18, 3, v17")
    a("v_and_b32 v18, 1, v14")
    a("v_lshl_add_u32 v17, v18, 10, v17")
    a("v_lshl_add_u32 v17, v18, 5, v17")
    a("v_lshrrev_b32 v18, 1, v14")
    a("v_mul_u32_u24 v18, 6144, v18")
    a("v_add_u32 v17, v17, v18")
    a("s_lshl_b32 s38, s37, 8")
    a("s_add_u32 s38, s38, 16384")
    a("v_add_u32 v8, s38, v17")
    a("v_xor_b32 v9, 32, v8")
    a(f"v_add_u32 v10, {2*STAGE}, v8")
    a(f"v_add_u32 v11, {2*STAGE}, v9")
    SB = [16, 56]

    def accr(kind, mt, dt):
        return 96 + 32 * kind + (mt * 2 + dt) * 4

    for i in range(96, 192):
        a(f"v_mov_b32 v{i}, 0")
    for op in spf[:SPF_C]:
        a(op)
    a("s_waitcnt lgkmcnt(0)")
    srd_off(a, 28, P_WS, WS_KVP, 2 * MB)
    srd_off(a, 32, P_WS, WS_ZP, 64 * 1024)
    lg = Cnt(a, "lgkmcnt", 15)

    def reads(slot, t, st):
        sb = (slot & 1) * STAGE
        va = 4 + t + (2 if slot >= 2 else 0)
        vb = 10 if slot >= 2 else 8
        R = SB[st]

        def A(mt):
            return [(("A", mt, st), f"ds_read_b128 {vr(R+4*mt)}, v{va} offset:{sb + 2048*mt}")]

        def B(cb):
            seg, nh = cb // 2, cb % 2
            return [(("B", cb, st), f"ds_read_b64_tr_b16 {vr(R+16+4*cb+2*h,2)}, v{vb+nh} offset:{sb + t*12288 + seg*2048 + 512*h}") for h in range(2)]
        return A(0) + B(0) + A(1) + A(2) + A(3) + B(1) + B(2) + B(3) + B(4) + B(5)

    def group(st, nxt):
        R = SB[st]
        nxt = list(nxt)
        for cb in range(6):
            kind, dt = cb // 2, cb % 2
            for mt in range(4):
                lg.wait_for([("A", mt, st), ("B", cb, st)])
                fa, fb = R + 4 * mt, R + 16 + 4 * cb
                if kind == 0:
                    mfma16(a, accr(0, mt, dt), fb, fa)
                else:
                    mfma16(a, accr(kind, mt, dt), fa, fb)
                if nxt:
                    tag, txt = nxt.pop(0)
                    a(txt)
                    lg.issue(tag)

    a("s_barrier")
    stamp(a, 1)
    cstamp(a, 10)
    for tag, txt in reads(0, 0, 0):
        a(txt)
        lg.issue(tag)
    lg.drain()
    a("s_mov_b32 s39, 4")
    a.label("K3_loop")
    for slot in range(4):
        group(0, reads(slot, 1, 1))
        lg.drain()
        a("s_barrier")
        a("s_sub_u32 s55, s55, 1")
        a(f"s_cbranch_scc1 K3_event{slot}")
        a.label(f"K3_noev{slot}")
        a("s_sub_u32 s70, s70, 1")
        a(f"s_cbranch_scc1 K3_evB{slot}")
        a.label(f"K3_noevB{slot}")
        a("s_sub_u32 s71, s71, 1")
        a(f"s_cbranch_scc1 K3_evC{slot}")
        a.label(f"K3_noevC{slot}")
        group(1, reads((slot + 1) % 4, 0, 0))
        if slot == 3:
            a("s_sub_u32 s39, s39, 1")
            a("s_cmp_lg_u32 s39, 0")
            lg.drain()
    a("s_cbranch_scc1 K3_loop")
    stamp(a, 2)
    cstamp(a, 11)

    a(f"s_mov_b32 s44, {LOG2E}")
    a(f"s_mov_b32 s45, {LOG2E}")
    a(f"s_mov_b32 s46, {EPS}")
    a(f"s_mov_b32 s47, {EPS}")
    a(f"v_mov_b32 v10, {SYNC}")
    a("v_mov_b32 v11, 1")
    for et in range(2):
        for m in range(2):
            d = 16 + 4 * (2 * et + m)
            for hh in range(2):
                s = accr(2, 2 * m + hh, et)
                a(f"v_cvt_pk_bf16_f32 v{d+2*hh}, v{s}, v{s+1}")
                a(f"v_cvt_pk_bf16_f32 v{d+2*hh+1}, v{s+2}, v{s+3}")
    for i in range(4):
        a(f"v_mov_b32 v{48+i}, 0x3f803f80")
    KV, ZZ, T = 160, 176, 52
    for m in range(2):
        for dt in range(2):
            for hh in range(2):
                s = accr(1, 2 * m + hh, dt)
                a(f"v_cvt_pk_bf16_f32 v{T+2*hh}, v{s}, v{s+1}")
                a(f"v_cvt_pk_bf16_f32 v{T+2*hh+1}, v{s+2}, v{s+3}")
            unpack4(a, T, T)
            kf = 32 + 4 * (2 * dt + m)
            phi8(a, T, kf, 44, 46)
            for et in range(2):
                mfma16(a, KV + 4 * (2 * et + dt), kf, 16 + 4 * (2 * et + m), "0" if m == 0 else None)
            mfma16(a, ZZ + 4 * dt, kf, 48, "0" if m == 0 else None)
    a("s_lshl_b32 s43, s37, 12")
    a(f"s_add_u32 s43, s43, {XCH}")
    a("v_add_u32 v4, s43, v3")
    a("s_lshl_b32 s43, s37, 7")
    a(f"s_add_u32 s43, s43, {XCZ}")
    a("v_lshlrev_b32 v5, 5, v14")
    a("v_add_u32 v5, s43, v5")
    a("s_lshl_b32 s43, s37, 2")
    a("v_add_u32 v6, s43, v10")
    a("s_cmp_eq_u32 s36, 0")
    a("s_cbranch_scc1 K3_wr0")
    for qd in range(4):
        a(f"ds_write_b128 v4, {vr(KV+4*qd)} offset:{1024*qd}")
    for dt in range(2):
        a(f"ds_write_b128 v5, {vr(ZZ+4*dt)} offset:{16*dt}")
    a("s_waitcnt lgkmcnt(0)")
    lds_signal(a, 6, S_X, 11)
    a("s_branch K3_q")
    a.label("K3_wr0")
    a("s_lshl_b32 s48, s5, 4")
    a("s_add_u32 s48, s48, s12")
    a("s_lshl_b32 s49, s48, 12")
    a("s_lshl_b32 s50, s48, 7")
    a("v_lshlrev_b32 v7, 4, v14")
    lds_wait(a, "K3_wx", 6, S_X, 1, 8, 42)
    for qd in range(4):
        a(f"ds_read_b128 {vr(16+4*qd)}, v4 offset:{1024*qd}")
    for dt in range(2):
        a(f"ds_read_b128 {vr(32+4*dt)}, v5 offset:{16*dt}")
    for qd in range(6):
        a(f"s_waitcnt lgkmcnt({5-qd})")
        a(f"v_pk_add_f32 {vr(KV+4*qd,2)}, {vr(KV+4*qd,2)}, {vr(16+4*qd,2)}")
        a(f"v_pk_add_f32 {vr(KV+4*qd+2,2)}, {vr(KV+4*qd+2,2)}, {vr(16+4*qd+2,2)}")
        if BP and qd < 4:
            d = 40 + 2 * qd
            a(f"v_cvt_pk_bf16_f32 v{d}, v{KV+4*qd}, v{KV+4*qd+1}")
            a(f"v_cvt_pk_bf16_f32 v{d+1}, v{KV+4*qd+2}, v{KV+4*qd+3}")
            a(f"v_or_b32 v{d}, 1, v{d}")
            a(f"v_or_b32 v{d+1}, 1, v{d+1}")
            if qd & 1:
                a(f"buffer_store_dwordx4 {vr(d-2)}, v3, s[28:31], s49 offen offset:{1024*(qd//2)} sc1")
            continue
        for i in range(4):
            a(f"v_or_b32 v{KV+4*qd+i}, 1, v{KV+4*qd+i}")
        if qd < 4:
            a(f"buffer_store_dwordx4 {vr(KV+4*qd)}, v3, s[28:31], s49 offen offset:{1024*qd} sc1")
    a("s_mov_b32 exec_lo, 0x00010001")
    a("s_mov_b32 exec_hi, 0x00010001")
    for dt in range(2):
        a(f"buffer_store_dwordx4 {vr(ZZ+4*dt)}, v7, s[32:35], s50 offen offset:{64*dt} sc1")
    a("s_mov_b64 exec, -1")
    lds_signal(a, 10, S_KVS, 11)
    a.label("K3_q")
    stamp(a, 3)
    a("s_lshl_b32 s43, s3, 12")
    a(f"s_add_u32 s43, s43, {PQ_BASE}")
    a("v_add_u32 v4, s43, v3")
    for mt in range(4):
        d = 80 + 4 * mt
        for dt in range(2):
            sr = accr(0, mt, dt)
            a(f"v_cvt_pk_bf16_f32 v{T+2*dt}, v{sr}, v{sr+1}")
            a(f"v_cvt_pk_bf16_f32 v{T+2*dt+1}, v{sr+2}, v{sr+3}")
        unpack4(a, T, T)
        phi8(a, T, d, 44, 46)
        a(f"ds_write_b128 v4, {vr(d)} offset:{1024*mt}")
    a("s_lshl_b32 s43, s3, 2")
    a("v_add_u32 v9, s43, v10")
    if CV32:
        a("v_and_b32 v6, 3, v2")
        a("v_bfe_u32 v7, v2, 2, 2")
        a("v_bfe_u32 v4, v2, 4, 1")
        a("v_lshrrev_b32 v5, 5, v2")
        a("v_lshlrev_b32 v12, 5, v4")
        a("v_lshl_add_u32 v12, v6, 3, v12")
        a("v_lshl_add_u32 v12, v5, 6, v12")
        a("v_lshlrev_b32 v7, 3, v7")
        a("v_sub_u32 v12, v12, v7")
        a("s_add_u32 s43, s7, 32")
        a("v_add_u32 v12, s43, v12")
        a("v_lshlrev_b32 v13, 8, v4")
        a("v_lshl_add_u32 v13, v6, 6, v13")
        a("v_add_u32 v13, v13, v7")
        a("v_lshlrev_b32 v5, 6, v5")
        a("v_sub_u32 v13, v13, v5")
        a(f"s_add_u32 s43, s7, {CV_UB-384}")
        a("v_add_u32 v13, s43, v13")
    else:
        a("v_and_b32 v6, 3, v2")
        a("v_bfe_u32 v7, v2, 2, 2")
        a("v_add_u32 v12, v6, v7")
        a("v_lshlrev_b32 v12, 3, v12")
        a("v_lshl_add_u32 v12, v14, 6, v12")
        a(f"s_add_u32 s43, s7, {CV_HB-24}")
        a("v_add_u32 v12, s43, v12")
        a("v_lshlrev_b32 v13, 5, v6")
        a("v_lshlrev_b32 v7, 3, v7")
        a("v_sub_u32 v13, v13, v7")
        a("v_lshlrev_b32 v7, 6, v14")
        a("v_sub_u32 v13, v13, v7")
        a(f"s_add_u32 s43, s7, {CV_UB+24-32}")
        a("v_add_u32 v13, s43, v13")
    a(f"s_add_u32 s43, s7, {CV_UB}")
    a("v_add_u32 v8, s43, v3")
    a("s_waitcnt lgkmcnt(0)")
    lds_signal(a, 9, S_PQ, 11)
    stamp(a, 4)
    lds_wait(a, "K3_whu", 9, S_HU, 1, 16, 42)
    stamp(a, 5)

    HH, FU = 32, 96
    ACC = [16, 20, 24, 28]
    T2, T1, YV, PK = [224, 225], [226, 227], [228, 229], [232, 236, 240, 244]
    lg.q = []

    def fu_reads(s):
        for hf in range(2):
            a(f"ds_read_b64_tr_b16 {vr(FU+4*s+2*hf,2)}, v13 offset:{128*s + 32*(1-hf)}")
            lg.issue(("fu", s))

    def h_reads(t):
        for hf in range(2):
            a(f"ds_read_b64_tr_b16 {vr(HH+4*t+2*hf,2)}, v12 offset:{256*t + 32*hf}")
            lg.issue(("h", t))

    def epi(Q):
        ops = []
        R0 = ACC[Q % 4]
        R1, R2, R3 = R0 + 1, R0 + 2, R0 + 3
        cur, prv = Q & 1, (Q & 1) ^ 1
        if Q == 0:
            ops.append(f"v_add_f32_dpp v{T2[cur]}, v{R3}, v{R2} wave_shr:1 {DPP} bound_ctrl:0")
            ops.append(f"v_add_f32_dpp v{T1[cur]}, v{T2[cur]}, v{R1} wave_shr:1 {DPP} bound_ctrl:0")
            ops.append(f"v_add_f32_dpp v{YV[cur]}, v{T1[cur]}, v{R0} wave_shr:1 {DPP} bound_ctrl:0")
        else:
            r3p = ACC[(Q - 1) % 4] + 3
            ops.append(f"v_add_f32_dpp v{T2[cur]}, v{r3p}, v{R2} wave_ror:1 {DPP}")
            ops.append(f"v_add_f32_dpp v{T1[cur]}, v{T2[prv]}, v{R1} wave_ror:1 {DPP}")
            ops.append(f"v_add_f32_dpp v{YV[cur]}, v{T1[prv]}, v{R0} wave_ror:1 {DPP}")
            ops.append(f"v_add_f32_dpp v{T2[cur]}, v{R3}, v{R2} wave_shr:1 {DPP}")
            ops.append(f"v_add_f32_dpp v{T1[cur]}, v{T2[cur]}, v{R1} wave_shr:1 {DPP}")
            ops.append(f"v_add_f32_dpp v{YV[cur]}, v{T1[cur]}, v{R0} wave_shr:1 {DPP}")
        if Q & 1:
            p = PK[Q // 8] + (Q % 8) // 2
            ops.append(f"v_cvt_pk_bf16_f32 v{p}, v{YV[0]}, v{YV[1]}")
            ops.append(f"v_or_b32 v{p}, 1, v{p}")
        return ops

    if CV32:
        conv32(a, lg, PK)
    else:
        PRE = 3
        for c in range(PRE):
            fu_reads(c)
            if c % 2 == 0:
                h_reads(c // 2)
        pending = []
        for c in range(32):
            nst = c // 2 + 1
            for t in range(nst):
                s = c - 2 * t
                lg.wait_for([("fu", s), ("h", t)])
                mfma16(a, ACC[c % 4], FU + 4 * s, HH + 4 * t, "0" if t == 0 else None)
                if t == 0 and c + PRE < 32:
                    fu_reads(c + PRE)
                    if (c + PRE) % 2 == 0:
                        h_reads((c + PRE) // 2)
                if t == 0 and c >= 2:
                    assert not pending
                    pending = epi(c - 2)
                k = max(1, -(-len(pending) // (nst - t))) if pending else 0
                for _ in range(k):
                    a(pending.pop(0))
        for Q in (30, 31):
            for op in epi(Q):
                a(op)
    srd_off(a, 28, P_WS, WS_UT, 4 * MB)
    a("s_lshl_b32 s40, s6, 12")
    for g in range(4):
        a(f"buffer_store_dwordx4 {vr(PK[g])}, v3, s[28:31], s40 offen offset:{1024*g} sc1")
    a("s_and_b32 s40, s10, 3")
    a("s_lshl_b32 s40, s40, 2")
    a("s_and_b32 s41, s11, 3")
    a("s_add_u32 s40, s40, s41")
    a("s_lshl_b32 s41, s40, 3")
    a("s_lshl_b32 s42, s3, 1")
    a("s_add_u32 s41, s41, s42")
    a("s_lshl_b32 s48, s41, 15")
    a("s_mov_b32 s47, s48")
    a("v_lshrrev_b32 v5, 5, v2")
    a("v_and_b32 v6, 1, v14")
    a("v_lshlrev_b32 v12, 15, v6")
    a("v_lshl_add_u32 v12, v5, 8, v12")
    a("v_lshl_add_u32 v12, v15, 4, v12")
    srd_off(a, 28, P_WS, WS_OF, 4 * MB)
    srd(a, 32, P_OUT, 8 * MB)
    a("s_waitcnt lgkmcnt(0)")
    lds_signal(a, 9, S_CD, 11)
    stamp(a, 6)
    if CPOST:
        a("s_lshl_b32 s16, s10, 1")
        a("s_lshr_b32 s17, s11, 4")
        a("s_add_u32 s16, s16, s17")
        a("s_and_b32 s17, s11, 15")
        a("s_lshl_b32 s17, s17, 2")
        a("s_add_u32 s17, s17, s4")
        a("s_lshr_b32 s18, s17, 4")
        a("s_and_b32 s17, s17, 15")
        a("s_lshl_b32 s19, s18, 9")
        a("s_lshl_b32 s64, s17, 2")
        a("s_add_u32 s19, s19, s64")
        a("s_lshl_b32 s64, s19, 11")
        a("s_lshl_b32 s65, s16, 7")
        a("s_add_u32 s64, s64, s65")
        a("s_lshl_b32 s72, s19, 12")
        a("s_add_u32 s72, s72, s65")
        a("s_lshl_b32 s73, s16, 18")
        a("s_lshl_b32 s65, s18, 10")
        a("s_add_u32 s73, s73, s65")
        a("s_lshl_b32 s65, s17, 6")
        a("s_add_u32 s73, s73, s65")
        a("s_add_u32 s65, s73, 4096")
        a("s_add_u32 s66, s73, 8192")
        a("s_add_u32 s67, s73, 12288")
        a("v_lshlrev_b32 v224, 12, v14")
        a("v_lshl_add_u32 v224, v15, 3, v224")
        a("v_lshlrev_b32 v225, 14, v15")
        a("v_lshl_add_u32 v225, v14, 4, v225")
        a("v_lshlrev_b32 v4, 11, v14")
        a("v_lshl_add_u32 v4, v15, 3, v4")
        srd(a, 16, P_Q, 4 * MB)
        srd_off(a, 20, P_WS, WS_UT, 4 * MB)
        for jj in range(8):
            a(f"buffer_load_dwordx2 {vr(208+2*jj,2)}, v4, s[16:19], s64 offen")
            a(f"s_add_u32 s64, s64, {64*2048}")
        a("s_waitcnt vmcnt(0)")
        a(f"s_mov_b32 s43, {RETRY_MAX}")
        a.label("K3_cp")
        for ci, sr in enumerate((73, 65, 66, 67)):
            a(f"buffer_load_dwordx4 {vr(16+4*ci)}, v225, s[20:23], s{sr} offen sc1")
        a(f"ds_read_b32 v49, v10 offset:{S_WOM}")
        a("s_waitcnt vmcnt(0) lgkmcnt(0)")
        and_reduce(a, 48, range(16, 32))
        a("v_readfirstlane_b32 s42, v49")
        a("v_cmp_eq_u32 vcc, 0, v48")
        a("s_cmp_eq_u64 vcc, 0")
        a("s_cbranch_scc1 K3_cp_ok")
        a("s_cmp_ge_u32 s42, 4")
        a("s_cbranch_scc1 K3_cp_skip")
        a("s_sub_u32 s43, s43, 1")
        a("s_cbranch_scc1 K3_cp_skip")
        a("s_sleep 6")
        a("s_branch K3_cp")
        a.label("K3_cp_ok")
        lds_signal(a, 9, S_PD, 11)
        post_compute(a, 208, True)
        a.label("K3_cp_skip")
    lds_wait(a, "K3_wwo", 10, S_WOM, 4, 80, 42)
    if CPOST:
        lds_signal(a, 9, S_G2, 11)
    stamp(a, 7)
    cstamp(a, 12)
    vm = Cnt(a, "vmcnt", 63)
    AR = 96
    D = ADEPTH
    if "a" in XP:
        srd(a, 28, P_X, 4 * MB)
        a("s_lshl_b32 s48, s12, 18")
        a("s_lshl_b32 s47, s3, 16")
        a("s_add_u32 s48, s48, s47")

    def aload(h):
        for f in range(2):
            r = AR + 8 * (h % D) + 4 * f
            a(f"buffer_load_dwordx4 {vr(r)}, v12, s[28:31], s48 offen offset:{1024*(h%4)+512*f}{ASC}")
            vm.issue(("A", h))
        if h % 4 == 3:
            a("s_add_u32 s48, s48, 4096")

    if G2PRIO:
        a(f"s_setprio {G2PRIO}")
    for h in range(AINIT):
        aload(h)
    anext = [AINIT]
    a("v_bfe_u32 v4, v2, 2, 2")
    a("v_and_b32 v7, 3, v2")
    a("v_lshlrev_b32 v4, 6, v4")
    a("v_lshl_add_u32 v4, v7, 3, v4")
    a("v_lshl_add_u32 v4, v5, 9, v4")
    a("v_xor_b32 v7, v6, v5")
    a("v_lshl_add_u32 v13, v7, 5, v4")
    a(f"v_add_u32 v4, {WO_BASE}, v13")
    a(f"v_add_u32 v8, {WO_BASE + 65536}, v13")

    def check_ops(g):
        r = AR + 8 * ((4 * g) % D)
        ops = [f"v_bitop3_b32 v81, v{r}, v{r+1}, v{r+2} bitop3:0x80"]
        for i in range(3, 31, 2):
            ops.append(f"v_bitop3_b32 v81, v81, v{r+i}, v{r+i+1} bitop3:0x80")
        ops.append(f"v_bitop3_b32 v81, v81, v{r+31}, 1 bitop3:0x80")
        return ops

    def check_branch(g):
        if "a" in XP:
            a.label(f"K3_retry{g}_ret")
            return
        a("v_cmp_eq_u32 vcc, 0, v81")
        a("s_cmp_lg_u64 vcc, 0")
        a(f"s_cbranch_scc1 K3_retry{g}")
        a.label(f"K3_retry{g}_ret")

    def retry_block(g):
        a.label(f"K3_retry{g}")
        a(f"s_mov_b32 s46, {RETRY_MAX}")
        a(f"s_add_u32 s44, s47, {4096*g}")
        a.label(f"K3_retry{g}_l")
        a("s_add_u32 s75, s75, 1")
        a("s_sleep 4")
        for hh in range(4):
            for f in range(2):
                r = AR + 8 * ((4 * g + hh) % D) + 4 * f
                a(f"buffer_load_dwordx4 {vr(r)}, v12, s[28:31], s44 offen offset:{1024*hh+512*f} sc1")
        a("s_waitcnt vmcnt(0)")
        for op in check_ops(g):
            a(op)
        a("v_cmp_eq_u32 vcc, 0, v81")
        a("s_sub_u32 s46, s46, 1")
        a(f"s_cbranch_scc1 K3_retry{g}_ret")
        a("s_cmp_lg_u64 vcc, 0")
        a(f"s_cbranch_scc1 K3_retry{g}_l")
        a(f"s_branch K3_retry{g}_ret")

    lg.q = []
    BS = [48, 64]

    def breads(h):
        out = []
        st = h & 1
        if h < 16:
            vb, off = 4, h * 4096
        elif h < 28:
            vb, off = 8, (h - 16) * 4096
        else:
            vb, off = 13, (h - 28) * CV_REG
        for f in range(2):
            for nb in range(2):
                for hf in range(2):
                    out.append(((h, f, nb), f"ds_read_b64_tr_b16 {vr(BS[st]+8*f+4*nb+2*hf,2)}, v{vb} offset:{off + f*1024 + hf*2048 + nb*256}"))
        return out

    for tag, txt in breads(0):
        a(txt); lg.issue(tag)
    vm.wait_for([("A", 3)])
    for op in check_ops(0):
        a(op)
    check_branch(0)
    chk = []
    for h in range(32):
        nxt = []
        if h == GS and not CPOST:
            lds_signal(a, 9, S_G2, 11)
            lg.issue("sig")
        if h + 1 < 32:
            if h + 1 == 28:
                lg.drain()
                lds_wait(a, "K3_wwt", 10, S_WOT, 4, 80, 42)
            nxt = breads(h + 1)
        if h % 4 == 2 and h + 2 < 32:
            vm.wait_for([("A", h + 5)])
            chk = check_ops(h // 4 + 1) if "k" not in XP else []
        for f in range(2):
            for nb in range(2):
                lg.wait_for([(h, f, nb)])
                d = 16 + 16 * nb
                cs = "0" if (h == 0 and f == 0) else vr(d, 16)
                a(f"v_mfma_f32_32x32x16_bf16 {vr(d,16)}, {vr(BS[h&1]+8*f+4*nb)}, {vr(AR+8*(h%D)+4*f)}, {cs}")
                for _ in range(2):
                    if nxt:
                        tag, txt = nxt.pop(0)
                        a(txt); lg.issue(tag)
                    if chk:
                        a(chk.pop(0))
        if h % 4 == 3 and h + 1 < 32:
            assert not chk
            check_branch(h // 4 + 1)
        for _ in range(2):
            if anext[0] < 32 and anext[0] <= h + D and "n" not in XP:
                aload(anext[0]); anext[0] += 1
    stamp(a, 8)
    cstamp(a, 13)
    a("v_and_b32 v4, 31, v2")
    a("v_lshlrev_b32 v4, 12, v4")
    a("v_lshl_add_u32 v4, v5, 4, v4")
    a("s_lshr_b32 s36, s10, 2")
    a("s_lshl_b32 s36, s36, 3")
    a("s_lshr_b32 s37, s11, 2")
    a("s_add_u32 s36, s36, s37")
    a("s_lshl_b32 s38, s41, 16")
    a("s_lshl_b32 s39, s36, 7")
    a("s_add_u32 s38, s38, s39")
    a("s_add_u32 s38, s38, 2048")
    if TRO:
        a("v_and_b32 v6, 31, v2")
        a("v_and_b32 v7, 7, v2")
        a("v_xor_b32 v7, v7, v5")
        a("v_lshlrev_b32 v6, 7, v6")
        a(f"s_add_u32 s39, s7, {CV_UB}")
        a("v_add_u32 v6, s39, v6")
        a("v_lshrrev_b32 v8, 3, v2")
        a("v_and_b32 v13, 7, v2")
        a("v_xor_b32 v96, v13, v8")
        a("v_lshlrev_b32 v96, 4, v96")
        a("v_lshl_add_u32 v96, v8, 7, v96")
        a("v_add_u32 v96, s39, v96")
        a("v_lshlrev_b32 v4, 12, v8")
        a("v_lshl_add_u32 v4, v13, 4, v4")
    for nb in range(2):
        for kp in range(2):
            P = 80 + 8 * nb + 4 * kp
            t0 = 16 + 16 * nb + 8 * kp
            for i in range(4):
                a(f"v_cvt_pk_bf16_f32 v{P+i}, v{t0+2*i}, v{t0+2*i+1}")
            a(f"v_permlane32_swap_b32 v{P}, v{P+2}")
            a(f"v_permlane32_swap_b32 v{P+1}, v{P+3}")
            if TRO:
                a(f"v_xor_b32 v97, {4*nb+2*kp}, v7")
                a("v_lshl_add_u32 v97, v97, 4, v6")
                a(f"ds_write_b128 v97, {vr(P)}")
            else:
                a(f"buffer_store_dwordx4 {vr(P)}, v4, s[32:35], s38 offen offset:{64*nb+32*kp}{NTS}{OS2}")
    if TRO:
        for i in range(4):
            a(f"ds_read_b128 {vr(100+4*i)}, v96 offset:{1024*i}")
        for i in range(4):
            a(f"s_waitcnt lgkmcnt({3-i})")
            a(f"buffer_store_dwordx4 {vr(100+4*i)}, v4, s[32:35], s38 offen{NTS}{OS2}")
            a("s_add_u32 s38, s38, 32768")
    stamp_flush(a, 9)
    a("s_endpgm")
    for g in range(8):
        retry_block(g)
    for slot in range(4):
        a.label(f"K3_event{slot}")
        a("s_add_u32 s54, s54, 1")
        a("s_cmp_lg_u32 s54, 1")
        a(f"s_cbranch_scc1 K3_ev2_{slot}")
        a(f"buffer_load_dword v195, v192, s[40:43], s44 offen{NTT}")
        if L2PF:
            a(f"buffer_load_dword v195, v193, s[48:51], s45 offen{NTT}")
            a("s_mov_b32 s55, 1000")
        else:
            a("s_mov_b32 s55, s52")
        a(f"s_branch K3_noev{slot}")
        a.label(f"K3_ev2_{slot}")
        if PREC or FILLC:
            a("s_waitcnt vmcnt(0)")
        a(f"buffer_load_dword v195, v193, s[48:51], s45 offen{NTT}")
        a("s_mov_b32 s55, 1000")
        a(f"s_branch K3_noev{slot}")
        a.label(f"K3_evB{slot}")
        a(f"buffer_load_dword v195, v194, s[64:67], s68 offen{NTT}")
        a(f"buffer_load_dword v195, v194, s[64:67], s69 offen{NTT}")
        a(f"s_branch K3_noevB{slot}")
        a.label(f"K3_evC{slot}")
        a("s_add_u32 s53, s53, 1")
        a("s_cmp_lg_u32 s53, 1")
        a(f"s_cbranch_scc1 K3_ev4_{slot}")
        a("buffer_load_dword v196, v199, s[56:59], 0 offen sc1")
        a(f"s_mov_b32 s71, {NLEAD-1}")
        a(f"s_branch K3_noevC{slot}")
        a.label(f"K3_ev4_{slot}")
        a("s_cmp_lg_u32 s53, 2")
        a(f"s_cbranch_scc1 K3_ev6_{slot}")
        a("s_waitcnt vmcnt(0)")
        a("v_readfirstlane_b32 s46, v196")
        a("s_mov_b64 exec, 1")
        a("s_cmp_lg_u32 s46, 0")
        a(f"s_cbranch_scc1 K3_ev5_{slot}")
        a("v_mov_b32 v196, v198")
        a("v_mov_b32 v197, 0")
        a("buffer_atomic_cmpswap v[196:197], v199, s[56:59], 0 offen sc0 sc1")
        a("s_waitcnt vmcnt(0)")
        a("v_cmp_eq_u32 vcc, 0, v196")
        a("v_cndmask_b32 v196, v196, v198, vcc")
        a.label(f"K3_ev5_{slot}")
        a("buffer_store_dword v196, v199, s[60:63], s47 offen sc1")
        a("s_mov_b64 exec, -1")
        a(f"s_mov_b32 s71, {FLAGN-F1N-1 if not POSTPRE else 1000}")
        a(f"s_branch K3_noevC{slot}")
        a.label(f"K3_ev6_{slot}")
        a("s_mov_b64 exec, 1")
        a("buffer_store_dword v196, v199, s[60:63], s47 offen offset:32 sc1")
        a("s_mov_b64 exec, -1")
        a("s_mov_b32 s71, 1000")
        a(f"s_branch K3_noevC{slot}")

    lbeg = len(a.ins)
    a.label("K3_L")
    a("v_lshrrev_b32 v4, 3, v2")
    a("v_and_b32 v5, 7, v2")
    for jl in range(4):
        a(f"v_add_u32 v6, {4*(jl&1)}, v14")
        a("v_xor_b32 v6, v6, v5")
        a("v_lshlrev_b32 v6, 4, v6")
        a("v_lshl_add_u32 v6, v4, 11, v6")
        a(f"v_add_u32 v{240+jl}, {jl*(16384-1024)}, v6")
    a("v_lshrrev_b32 v6, 5, v2")
    a("v_bfe_u32 v7, v2, 2, 2")
    a("v_lshl_add_u32 v6, v6, 2, v7")
    a("v_mul_u32_u24 v6, 6144, v6")
    a("v_bfe_u32 v7, v2, 4, 1")
    a("v_lshl_add_u32 v6, v7, 6, v6")
    a("v_and_b32 v7, 3, v2")
    a("v_lshl_add_u32 v6, v7, 4, v6")
    a("v_xor_b32 v7, 32, v6")
    a("s_and_b32 s40, s13, 1")
    a("s_lshl_b32 s40, s40, 7")
    a(f"s_xor_b32 s41, s40, {128 if QX else 0}")
    binst = []
    for seg in range(3):
        for gg in range(2):
            ldsoff = seg * 2048 + gg * 1024
            m0sel, ioff = ldsoff // 4096, ldsoff % 4096
            reg = 244 + seg * 2 + gg
            a(f"v_add_u32 v{reg}, {8*gg*6144 + seg*2048 - ioff}, v{6+gg}")
            a(f"v_add_u32 v{reg}, s{41 if seg == 0 else 40}, v{reg}")
            binst.append((reg, m0sel, ioff))
    a("s_lshl_b32 s38, s12, 7")
    a("s_lshl_b32 s40, s4, 5")
    a("s_add_u32 s38, s38, s40")
    a("s_lshl_b32 s38, s38, 11")
    a("s_mul_i32 s39, s4, 98304")
    a("s_lshr_b32 s40, s13, 1")
    a("s_lshl_b32 s40, s40, 8")
    a("s_add_u32 s39, s39, s40")
    a("s_lshl_b32 s41, s4, 12")
    a("s_mul_i32 s42, s4, 6144")
    a("s_add_u32 s42, s42, 16384")
    if EARLYB:
        a("s_waitcnt lgkmcnt(0)")
        stamp(a, 0)
    srd(a, 16, P_X, 4 * MB)
    srd(a, 20, P_W, 6 * MB)
    vm = Cnt(a, "vmcnt", 63)

    def issue(kt):
        sb = (kt % NS) * STAGE
        a(f"s_add_u32 m0, s41, {sb}")
        for jl in range(4):
            a(f"buffer_load_dwordx4 v{240+jl}, s[16:19], s38 offen offset:{jl*1024}{NTG} lds")
            vm.issue(("st", kt))
        cur = -1
        for reg, m0sel, ioff in binst:
            if m0sel != cur:
                a(f"s_add_u32 m0, s42, {sb + 4096*m0sel}")
                cur = m0sel
            a(f"buffer_load_dwordx4 v{reg}, s[20:23], s39 offen offset:{ioff}{NTG} lds")
            vm.issue(("st", kt))
        a("s_add_u32 s38, s38, 128")
        a(f"s_add_u32 s39, s39, {64*6144}")

    if env("ST0", 0):
        stamp(a, 10)
    for kt in range(PRO):
        issue(kt)
        if env("ST0", 0):
            stamp(a, 11 + kt)
    if LFRONT:
        a("s_branch K3_L2")
        blk = a.ins[lbeg:]
        del a.ins[lbeg:]
        a.ins[mark:mark] = blk
        a.label("K3_L2")
    srd(a, 24, P_K, 4 * MB)
    srd(a, 28, P_V, 4 * MB)
    srd(a, 32, P_SHK, 8192)
    srd_off(a, 44, P_WS, WS_UT, 4 * MB)
    srd_off(a, 48, P_WS, WS_OF, 4 * MB)
    srd_off(a, 52, P_WS, WS_KVP, 2 * MB)
    srd_off(a, 56, P_WS, WS_ZP, 64 * 1024)
    a("s_lshl_b32 s60, s2, 2")
    a("s_add_u32 s60, s60, s4")
    if UTF:
        a("s_and_b32 s61, s60, 31")
        a("s_lshr_b32 s60, s60, 5")
        a("s_lshl_b32 s62, s60, 17")
        a("s_lshl_b32 s63, s61, 6")
        a("s_add_u32 s62, s62, s63")
        a("v_lshrrev_b32 v18, 3, v2")
        a("v_and_b32 v20, 7, v2")
        a("v_lshlrev_b32 v21, 14, v18")
        a("v_lshl_add_u32 v21, v20, 3, v21")
        a("v_add_u32 v21, s62, v21")
        a("s_lshl_b32 s63, s61, 8")
        a("v_lshlrev_b32 v22, 5, v20")
        a("s_lshl_b32 s62, s61, 17")
        a("s_lshl_b32 s64, s60, 7")
        a("s_add_u32 s62, s62, s64")
        a("v_lshlrev_b32 v19, 14, v20")
        a("v_lshl_add_u32 v19, v18, 4, v19")
    else:
        a("s_and_b32 s61, s60, 15")
        a("s_lshr_b32 s60, s60, 4")
        a("s_lshl_b32 s62, s60, 16")
        a("s_lshl_b32 s63, s61, 7")
        a("s_add_u32 s62, s62, s63")
        a("v_lshlrev_b32 v21, 14, v14")
        a("v_lshl_add_u32 v21, v15, 3, v21")
        a("v_add_u32 v21, s62, v21")
        a("s_lshl_b32 s63, s61, 9")
        a("v_lshlrev_b32 v22, 5, v15")
        a("s_lshl_b32 s62, s61, 18")
        a("s_lshl_b32 s64, s60, 6")
        a("s_add_u32 s62, s62, s64")
        a("v_lshlrev_b32 v19, 14, v15")
        a("v_lshl_add_u32 v19, v14, 4, v19")
    a("s_lshl_b32 s64, s12, 3")
    a("s_lshl_b32 s65, s4, 1")
    a("s_add_u32 s64, s64, s65")
    a("s_lshl_b32 s64, s64, 15")
    a("s_lshr_b32 s65, s15, 1")
    a("s_lshl_b32 s65, s65, 11")
    a("s_add_u32 s64, s64, s65")
    a("s_add_u32 s65, s64, 32768")
    a("s_lshl_b32 s66, s5, 4")
    a("s_add_u32 s66, s66, s12")
    a("s_lshl_b32 s67, s66, 7")
    a("s_lshl_b32 s66, s66, 12")
    a(f"s_lshl_b32 s68, s36, {10 if BP else 11}")
    a("s_add_u32 s66, s66, s68")
    for i in range(4):
        a(f"v_mov_b32 v{160+i}, 0")
    a("v_and_b32 v18, 7, v2")
    a("v_lshlrev_b32 v18, 4, v18")
    fills = [
        f"buffer_store_dwordx4 v[160:163], v3, s[48:51], s64 offen sc1{NTF}",
        f"buffer_store_dwordx4 v[160:163], v3, s[48:51], s64 offen offset:1024 sc1{NTF}",
        f"buffer_store_dwordx4 v[160:163], v3, s[48:51], s65 offen sc1{NTF}",
        f"buffer_store_dwordx4 v[160:163], v3, s[48:51], s65 offen offset:1024 sc1{NTF}",
        f"buffer_store_dwordx4 v[160:163], v3, s[52:55], s66 offen sc1{NTF}",
        f"buffer_store_dwordx4 v[160:163], v3, s[52:55], s66 offen offset:1024 sc1{NTF}",
        f"buffer_store_dwordx4 v[160:163], v18, s[56:59], s67 offen sc1{NTF}",
    ]
    if BP:
        del fills[5]
    W, KF, VF, KS = 72, 88, 110, 126
    loads = []
    for i in range(2):
        loads.append([f"buffer_load_dwordx4 {vr(24+4*i)}, v22, s[32:35], s63 offen offset:{16*i}"])
    for i in range(11):
        loads.append([f"v_add_u32 v23, {((i-3)*2048) & 0xffffffff}, v21", f"buffer_load_dwordx2 {vr(32+2*i,2)}, v23, s[24:27], 0 offen{NTK}"])
    for i in range(8):
        loads.append([f"v_add_u32 v23, {i*2048}, v21", f"buffer_load_dwordx2 {vr(54+2*i,2)}, v23, s[28:31], 0 offen{NTK}"])
    comp = []
    for ci in range(4):
        comp += [f"v_lshlrev_b32 v{W+ci}, 16, v{24+2*ci}", f"v_and_b32 v{W+4+ci}, 0xffff0000, v{24+2*ci}",
                 f"v_lshlrev_b32 v{W+8+ci}, 16, v{25+2*ci}", f"v_and_b32 v{W+12+ci}, 0xffff0000, v{25+2*ci}"]
    for cp in range(2):
        for i in range(11):
            comp += [f"v_lshlrev_b32 v{KF+2*i}, 16, v{32+2*i+cp}", f"v_and_b32 v{KF+2*i+1}, 0xffff0000, v{32+2*i+cp}"]
        for i in range(8):
            comp += [f"v_lshlrev_b32 v{VF+2*i}, 16, v{54+2*i+cp}", f"v_and_b32 v{VF+2*i+1}, 0xffff0000, v{54+2*i+cp}"]
        for i in range(16):
            comp.append(f"v_mul_f32 v{KS+i}, v{KF+i}, v{W+12+2*cp+(i&1)}")
        for j in (2, 1, 0):
            for i in range(16):
                comp.append(f"v_fmac_f32 v{KS+i}, v{KF+2*(3-j)+i}, v{W+4*j+2*cp+(i&1)}")
        for i in range(16):
            comp.append(f"v_mul_f32 v{KS+i}, v{KS+i}, v{VF+i}")
        O = 144 + 8 * cp
        for e in range(2):
            for i in range(4):
                comp.append(f"v_cvt_pk_bf16_f32 v{O+4*e+i}, v{KS+4*i+e}, v{KS+4*i+2+e}")
        for i in range(8):
            comp.append(f"v_and_b32 v{O+i}, -2, v{O+i}")
        for e in range(2):
            comp.append(("st", f"buffer_store_dwordx4 {vr(O+4*e)}, v19, s[44:47], s62 offen sc1"))
            comp.append("s_add_u32 s62, s62, 4096")
    PCE = env("PCE", FLAGN - 3)
    PCS = PL0 + NPL + env("PGAP", 0)
    NPC = PCE - PCS
    per = -(-len(comp) // NPC)
    a("v_lshrrev_b32 v6, 5, v2")
    a("v_bfe_u32 v7, v2, 2, 2")
    a("v_lshl_add_u32 v7, v6, 2, v7")
    a("v_lshlrev_b32 v7, 11, v7")
    a("v_bfe_u32 v8, v2, 4, 1")
    a("v_lshl_add_u32 v7, v8, 6, v7")
    a("v_and_b32 v8, 3, v2")
    a("v_lshlrev_b32 v6, 1, v6")
    a("v_xor_b32 v8, v8, v6")
    a("v_lshl_add_u32 v7, v8, 4, v7")
    for i in range(4):
        a(f"v_add_u32 v{232+i}, {i*(16384-1024)}, v7")
    a("s_lshl_b32 s69, s4, 16")
    a("s_lshr_b32 s70, s10, 2")
    a("s_lshl_b32 s70, s70, 3")
    a("s_lshr_b32 s71, s11, 2")
    a("s_add_u32 s70, s70, s71")
    a("s_lshl_b32 s70, s70, 7")
    a("s_add_u32 s69, s69, s70")
    a("s_lshl_b32 s70, s4, 12")
    a(f"s_add_u32 s70, s70, {WO_BASE}")
    a("s_lshl_b32 s71, s6, 12")
    a(f"v_mov_b32 v10, {SYNC}")
    a("v_mov_b32 v11, 1")
    a("s_lshl_b32 s43, s4, 2")
    a("v_add_u32 v9, s43, v10")

    def wo_issue(k):
        if k < 7:
            a(f"s_add_u32 m0, s70, {k*16384}")
        else:
            a("s_mov_b32 m0, s7")
        for i in range(4):
            a(f"buffer_load_dwordx4 v{232+i}, s[20:23], s69 offen offset:{i*1024}{NTG} lds")
            vm.issue("wo")
        a(f"s_add_u32 s69, s69, {128*2048}")

    def post_setup():
        a("s_lshl_b32 s16, s10, 1")
        a("s_lshr_b32 s17, s11, 4")
        a("s_add_u32 s16, s16, s17")
        a("s_and_b32 s17, s11, 15")
        a("s_lshl_b32 s17, s17, 2")
        a("s_add_u32 s17, s17, s4")
        a("s_lshr_b32 s18, s17, 4")
        a("s_and_b32 s17, s17, 15")
        a("s_lshl_b32 s19, s18, 9")
        a("s_lshl_b32 s64, s17, 2")
        a("s_add_u32 s19, s19, s64")
        a("s_lshl_b32 s64, s19, 11")
        a("s_lshl_b32 s65, s16, 7")
        a("s_add_u32 s64, s64, s65")
        a("s_lshl_b32 s72, s19, 12")
        a("s_add_u32 s72, s72, s65")
        a("s_lshl_b32 s73, s16, 18")
        a("s_lshl_b32 s65, s18, 10")
        a("s_add_u32 s73, s73, s65")
        a("s_lshl_b32 s65, s17, 6")
        a("s_add_u32 s73, s73, s65")
        a("s_add_u32 s65, s73, 4096")
        a("s_add_u32 s66, s73, 8192")
        a("s_add_u32 s67, s73, 12288")
        a("v_lshlrev_b32 v224, 12, v14")
        a("v_lshl_add_u32 v224, v15, 3, v224")
        a("v_lshlrev_b32 v225, 14, v15")
        a("v_lshl_add_u32 v225, v14, 4, v225")

    def q_loads():
        srd(a, 16, P_Q, 4 * MB)
        a("v_lshlrev_b32 v4, 11, v14")
        a("v_lshl_add_u32 v4, v15, 3, v4")
        for jj in range(8):
            a(f"buffer_load_dwordx2 {vr(QR+2*jj,2)}, v4, s[16:19], s64 offen{NTO}")
            vm.issue("q")
            a(f"s_add_u32 s64, s64, {64*2048}")

    QR = 208

    def h_issue():
        a(f"s_add_u32 m0, s7, {CV_HB}")
        for c in range(4):
            a(f"buffer_load_dwordx4 v3, s[16:19], s71 offen offset:{1024*c}{NTO} lds")
            vm.issue("h")
        a("s_lshl_b32 s43, s6, 1")
        a("v_mov_b32 v4, 0")
        a("buffer_load_ushort v164, v4, s[20:23], s43 offen")
        vm.issue("h")
        srd(a, 20, P_WO, 2 * MB)

    for kt in range(16):
        tags = [("st", kt)]
        if kt == F1N + 1:
            tags += ["fill"]
        if kt == FLAGN + 1:
            tags += ["ust"]
        vm.wait_for(tags)
        if kt == 14:
            a("s_waitcnt lgkmcnt(0)")
        a("s_barrier")
        if kt in (2, 5, 8, 11, 14) and not env("ST0", 0):
            stamp(a, 10 + (2, 5, 8, 11, 14).index(kt))
        if kt == 0:
            for k2 in range(PRO, NS - 1):
                issue(k2)
        if kt + NS - 1 < 16:
            issue(kt + NS - 1)
        for op in spf[SPF_C + kt * SPF_L: SPF_C + (kt + 1) * SPF_L]:
            a(op)
        if FL0 <= kt < FL0 + len(fills) and "f" not in XP and not FILLC:
            a(fills[kt - FL0]); vm.issue("fill")
        if POSTPRE and kt in (14, 15):
            for grp in (loads[:13] if kt == 14 else loads[13:]):
                for op in grp:
                    a(op)
                vm.issue("pre")
        if PL0 <= kt < PL0 + NPL and "l" not in XP and not POSTPRE and not PREC:
            q = -(-len(loads) // NPL)
            for grp in loads[(kt - PL0) * q: (kt - PL0 + 1) * q]:
                for op in grp:
                    a(op)
                vm.issue("pre")
        if kt == 13:
            post_setup()
            srd(a, 16, P_H, 4 * MB)
            srd(a, 20, P_D, 2048)
            a("v_mov_b32 v4, 0")
            a("v_lshlrev_b32 v5, 2, v2")
            a(f"v_add_u32 v6, {SYNC}, v5")
            a("ds_write_b32 v6, v4")
            a("v_add_u32 v6, s7, v5")
            a(f"ds_write_b32 v6, v4 offset:{CV_UB-256}")
            if CV32:
                a(f"ds_write_b32 v6, v4 offset:{CV_UB-512}")
            a(f"v_and_b32 v6, {15 if CV32 else 7}, v2")
            a("v_lshlrev_b32 v6, 2, v6")
            a("v_add_u32 v6, s7, v6")
            a("ds_write_b32 v6, v4")
            h_issue()
            if QEARLY:
                q_loads()
        if PCS <= kt < PCE and not POSTPRE and not PREC:
            if kt == PCS:
                vm.wait_for(["pre"])
            for op in comp[:per]:
                if "c" in XP and not isinstance(op, tuple):
                    continue
                if isinstance(op, tuple):
                    if "u" in XP:
                        continue
                    a(op[1]); vm.issue("ust")
                else:
                    a(op)
            comp = comp[per:]
        if kt == 14 and EARLYWO >= 2:
            wo_issue(0); wo_issue(1)
        if kt == 15 and EARLYWO >= 4:
            wo_issue(2); wo_issue(3)
    assert POSTPRE or PREC or not comp
    a("s_barrier")
    stamp(a, 1)
    if POSTPRE:
        vm.wait_for(["pre"])
        for ci in range(4):
            a(f"v_lshlrev_b32 v{W+ci}, 16, v{24+2*ci}")
            a(f"v_and_b32 v{W+4+ci}, 0xffff0000, v{24+2*ci}")
            a(f"v_lshlrev_b32 v{W+8+ci}, 16, v{25+2*ci}")
            a(f"v_and_b32 v{W+12+ci}, 0xffff0000, v{25+2*ci}")
        for cp in range(2):
            for i in range(11):
                a(f"v_lshlrev_b32 v{KF+2*i}, 16, v{32+2*i+cp}")
                a(f"v_and_b32 v{KF+2*i+1}, 0xffff0000, v{32+2*i+cp}")
            for i in range(8):
                a(f"v_lshlrev_b32 v{VF+2*i}, 16, v{54+2*i+cp}")
                a(f"v_and_b32 v{VF+2*i+1}, 0xffff0000, v{54+2*i+cp}")
            for i in range(8):
                a(f"v_pk_mul_f32 {vr(KS+2*i,2)}, {vr(KF+2*i,2)}, {vr(W+12+2*cp,2)}")
            for j in (2, 1, 0):
                for i in range(8):
                    a(f"v_pk_fma_f32 {vr(KS+2*i,2)}, {vr(KF+2*(i+3-j),2)}, {vr(W+4*j+2*cp,2)}, {vr(KS+2*i,2)}")
            for i in range(8):
                a(f"v_pk_mul_f32 {vr(KS+2*i,2)}, {vr(KS+2*i,2)}, {vr(VF+2*i,2)}")
            O = 144 + 8 * cp
            for e in range(2):
                for i in range(4):
                    a(f"v_cvt_pk_bf16_f32 v{O+4*e+i}, v{KS+4*i+e}, v{KS+4*i+2+e}")
            for i in range(8):
                a(f"v_and_b32 v{O+i}, -2, v{O+i}")
            for e in range(2):
                a(f"buffer_store_dwordx4 {vr(O+4*e)}, v19, s[44:47], s62 offen sc1")
                a("s_add_u32 s62, s62, 4096")
    srd(a, 24, P_DBG, 256)
    srd(a, 32, P_OUT, 8 * MB)
    a("s_mov_b32 s40, 0")
    a("s_mov_b32 s42, 0")
    a("v_lshrrev_b32 v5, 1, v2")
    a("v_lshlrev_b32 v5, 7, v5")
    a("v_and_b32 v4, 1, v2")
    a("v_lshl_add_u32 v5, v4, 4, v5")
    a("v_mov_b32 v4, 0")
    a("buffer_load_dword v226, v4, s[24:27], 0 offen sc1")
    srd_off(a, 24, P_WS, WS_FLAG, 4096)
    a("v_lshlrev_b32 v6, 7, v15")
    a("v_lshl_add_u32 v6, v14, 4, v6")
    a("s_lshl_b32 s60, s15, 11")
    a("s_lshl_b32 s61, s15, 16")
    a(f"s_lshl_b32 s62, s36, {10 if BP else 11}")
    a("s_add_u32 s61, s61, s62")

    def flagcmp(r):
        for i in range(4):
            a(f"v_xor_b32 v{r+i}, v{r+i}, v226")
        a(f"v_or3_b32 v{r}, v{r}, v{r+1}, v{r+2}")
        a(f"v_or_b32 v{r}, v{r}, v{r+3}")
        a(f"v_cmp_ne_u32 vcc, 0, v{r}")

    def u_block(ret):
        a(f"s_add_u32 m0, s7, {CV_UB}")
        for c in range(4):
            a(f"buffer_load_dwordx4 v3, s[44:47], s71 offen offset:{1024*c} sc1 lds")
        a("s_mov_b32 s42, 1")
        a("s_waitcnt vmcnt(0) lgkmcnt(0)")
        lds_signal(a, 9, S_HU, 11)
        stamp(a, 3)
    a(f"s_mov_b32 s43, {RETRY_MAX}")
    a.label("K3_fp")
    a(f"buffer_load_dwordx4 {vr(24)}, v5, s[24:27], 0 offen sc1")
    a(f"buffer_load_dwordx4 {vr(28)}, v5, s[24:27], 0 offen offset:32 sc1")
    a("s_waitcnt vmcnt(0)")
    vm.q = []
    flagcmp(24)
    a("s_sub_u32 s43, s43, 1")
    a("s_cbranch_scc1 K3_fp_ok")
    a("s_cmp_eq_u64 vcc, 0")
    a("s_cbranch_scc1 K3_fp_ok")
    a("s_add_u32 s75, s75, 1")
    a("s_sleep 8")
    a("s_branch K3_fp")
    a.label("K3_fp_ok")
    if POSTPRE:
        a("s_mov_b64 exec, 1")
        a(f"ds_add_rtn_u32 v7, v10, v11 offset:{S_GO}")
        a("s_waitcnt lgkmcnt(0)")
        a("v_readfirstlane_b32 s43, v7")
        a("s_lshl_b32 s62, s11, 7")
        a("s_lshl_b32 s63, s10, 2")
        a("s_add_u32 s62, s62, s63")
        a("s_cmp_lg_u32 s43, 3")
        a("s_cbranch_scc1 K3_nof2")
        a("buffer_store_dword v226, v4, s[24:27], s62 offen offset:32 sc1")
        a.label("K3_nof2")
        a("s_mov_b64 exec, -1")
    stamp(a, 2)
    a("v_mov_b32 v4, s7")
    a(f"ds_read_u16 v7, v4 offset:{CV_HB}")
    a("v_lshlrev_b32 v164, 16, v164")
    a("s_waitcnt lgkmcnt(0)")
    a("v_lshlrev_b32 v7, 16, v7")
    a("v_add_f32 v7, v7, v164")
    a("v_cvt_pk_bf16_f32 v7, v7, v7")
    a(f"ds_write_b16 v4, v7 offset:{CV_HB}")
    flagcmp(28)
    a("s_cmp_lg_u64 vcc, 0")
    a("s_cbranch_scc1 K3_nou0")
    u_block(0)
    a.label("K3_nou0")
    if WAITKV:
        lds_wait(a, "K3_wkvs", 10, S_KVS, 2, 16, 62, sleep=1)
    PQR = 192

    def bulkA():
        for k in range(EARLYWO, 6):
            wo_issue(k)
        a("v_and_b32 v7, 31, v2")
        a("v_lshlrev_b32 v7, 11, v7")
        a(f"s_add_u32 s62, s69, {128*2048}")
        a("buffer_load_dword v165, v7, s[20:23], s62 offen")
        if CPOST:
            srd(a, 16, P_Q, 4 * MB)
            a("v_bfe_u32 v7, v2, 2, 3")
            a("v_lshlrev_b32 v7, 17, v7")
            a("v_and_b32 v8, 3, v2")
            a("v_lshl_add_u32 v7, v8, 11, v7")
            a("buffer_load_dword v165, v7, s[16:19], s64 offen")

    def pq_pick():
        a("s_lshl_b32 s43, s4, 12")
        a(f"s_add_u32 s43, s43, {PQ_BASE}")
        a("v_add_u32 v8, s43, v3")
        lds_wait(a, "K3_wpq", 9, S_PQ, 1, 16, 62, sleep=1)
        for mt in range(4):
            a(f"ds_read_b128 {vr(PQR+4*mt)}, v8 offset:{1024*mt}")
        a("s_waitcnt lgkmcnt(0)")

    if not ZFIRST:
        bulkA()
        pq_pick()
    if PG:
        vm.q = []
        a("s_setprio 2")
        a("s_mov_b32 s62, s61")
        for p in range(16):
            for dt in range(2):
                a(f"buffer_load_dwordx4 {vr(64+8*p+4*dt)}, v3, s[52:55], s62 offen offset:{1024*dt}{GSC}")
                vm.issue(("kv", p))
            a("s_add_u32 s62, s62, 4096")
    if not ZFIRST:
        wo_issue(6)
    if PG:
        if not QEARLY and not CPOST:
            q_loads()
        for i in range(8):
            a(f"v_mov_b32 v{56+i}, 0")
        a("s_mov_b32 s63, 0")
        for p in range(16):
            vm.wait_for([("kv", p)])
            r = 64 + 8 * p
            and_reduce(a, 16, range(r, r + 8))
            a("v_cmp_eq_u32 vcc, 0, v16")
            a(f"s_bitset1_b32 s63, {p}")
            a("s_cmp_lg_u64 vcc, 0")
            a(f"s_cbranch_scc1 K3_pg{p}")
            a(f"s_bitset0_b32 s63, {p}")
            for i in range(8):
                a(f"v_add_f32 v{56+i}, v{56+i}, v{r+i}")
            a.label(f"K3_pg{p}")
    a(f"s_mov_b32 s43, {RETRY_MAX}")
    a.label("K3_zp")
    for dt in range(2):
        a(f"buffer_load_dwordx4 {vr(32+4*dt)}, v6, s[56:59], s60 offen offset:{64*dt} sc1")
    a("s_cmp_lg_u32 s42, 0")
    a("s_cbranch_scc1 K3_zp_nf")
    a(f"buffer_load_dwordx4 {vr(28)}, v5, s[24:27], 0 offen offset:32 sc1")
    a("s_waitcnt vmcnt(0)")
    flagcmp(28)
    a("s_cmp_lg_u64 vcc, 0")
    a("s_cbranch_scc1 K3_zp_nf")
    u_block(1)
    a.label("K3_zp_nf")
    a(f"ds_read_b32 v17, v9 offset:{S_CD}")
    a("s_waitcnt vmcnt(0) lgkmcnt(0)")
    vm.q = []
    and_reduce(a, 16, range(32, 40))
    a("v_readfirstlane_b32 s41, v17")
    a("v_cmp_eq_u32 vcc, 0, v16")
    a("s_sub_u32 s43, s43, 1")
    a("s_cbranch_scc1 K3_zp_ok")
    a("s_cmp_eq_u64 vcc, 0")
    a("s_cbranch_scc1 K3_zp_ok")
    a("s_cmp_lg_u32 s40, 0")
    a("s_cbranch_scc1 K3_zp_s2")
    if QEARLY:
        a("s_cmp_lg_u32 s41, 0")
        a("s_cbranch_scc1 K3_post")
    a.label("K3_zp_s2")
    a(f"s_sleep {ZSLEEP}")
    a("s_branch K3_zp")
    a.label("K3_zp_ok")
    if PG:
        stamp(a, 4)
        a(f"s_mov_b32 s43, {RETRY_MAX}")
        a.label("K3_ml")
        a("s_cmp_eq_u32 s63, 0")
        a("s_cbranch_scc1 K3_ml_done")
        a("s_ff1_i32_b32 s41, s63")
        a("s_lshl_b32 s62, s41, 12")
        a("s_add_u32 s62, s62, s61")
        for dt in range(2):
            a(f"buffer_load_dwordx4 {vr(64+4*dt)}, v3, s[52:55], s62 offen offset:{1024*dt} sc1")
        a("s_add_u32 s75, s75, 1")
        a("s_waitcnt vmcnt(0)")
        and_reduce(a, 16, range(64, 72))
        a("v_cmp_eq_u32 vcc, 0, v16")
        a("s_sub_u32 s43, s43, 1")
        a("s_cbranch_scc1 K3_ml_done")
        a("s_cmp_lg_u64 vcc, 0")
        a("s_cbranch_scc1 K3_ml")
        a("s_bitset0_b32 s63, s41")
        for i in range(8):
            a(f"v_add_f32 v{56+i}, v{56+i}, v{64+i}")
        a("s_branch K3_ml")
        a.label("K3_ml_done")
        for i in range(8):
            a(f"v_add_f32_dpp v{40+i}, v{32+i}, v{32+i} row_ror:8 {DPP}")
        for sh in (4, 2, 1):
            for i in range(8):
                a(f"v_add_f32_dpp v{40+i}, v{40+i}, v{40+i} row_ror:{sh} {DPP}")
        for i in range(4):
            a(f"v_cvt_pk_bf16_f32 v{48+i}, v{40+2*i}, v{41+2*i}")
        for i in range(8):
            a(f"v_mov_b32 v{64+i}, v{56+i}")
    else:
        stamp(a, 4)
        a("s_setprio 2")
        a(f"s_mov_b32 s43, {RETRY_MAX}")
        def gloads(fl, track):
            a("s_mov_b32 s62, s61")
            for p in range(16):
                for dt in range(1 if BP else 2):
                    r = 96 + 4 * p if BP else 64 + 8 * p + 4 * dt
                    a(f"buffer_load_dwordx4 {vr(r)}, v3, s[52:55], s62 offen offset:{1024*dt}{fl}")
                    if track:
                        vm.issue(("kv", p))
                a("s_add_u32 s62, s62, 4096")
        gloads(GSC, True)
        if ZFIRST:
            bulkA()
            vm.issue("t")
        if not QEARLY and not CPOST:
            q_loads()
        a.label("K3_gl")
        for i in range(8):
            a(f"v_add_f32_dpp v{40+i}, v{32+i}, v{32+i} row_ror:8 {DPP}")
        for sh in (4, 2, 1):
            for i in range(8):
                a(f"v_add_f32_dpp v{40+i}, v{40+i}, v{40+i} row_ror:{sh} {DPP}")
        for i in range(4):
            a(f"v_cvt_pk_bf16_f32 v{48+i}, v{40+2*i}, v{41+2*i}")
        a("v_mov_b32 v16, 1")
        for p in range(16):
            vm.wait_for([("kv", p)])
            if BP:
                r = 96 + 4 * p
                for i in range(0, 4, 2):
                    a(f"v_bitop3_b32 v16, v16, v{r+i}, v{r+i+1} bitop3:0x80")
                t = 64 if p == 0 else 72
                for i in range(4):
                    a(f"v_lshlrev_b32 v{t+2*i}, 16, v{r+i}")
                    a(f"v_and_b32 v{t+2*i+1}, 0xffff0000, v{r+i}")
                if p >= 1:
                    for i in range(8):
                        a(f"v_add_f32 v{64+i}, v{64+i}, v{72+i}")
            else:
                r = 64 + 8 * p
                for i in range(0, 8, 2):
                    a(f"v_bitop3_b32 v16, v16, v{r+i}, v{r+i+1} bitop3:0x80")
                if p >= 1:
                    for i in range(8):
                        a(f"v_add_f32 v{64+i}, v{64+i}, v{r+i}")
        a("v_cmp_eq_u32 vcc, 0, v16")
        a("s_sub_u32 s43, s43, 1")
        a("s_cbranch_scc1 K3_gl_ok")
        a("s_cmp_eq_u64 vcc, 0")
        a("s_cbranch_scc1 K3_gl_ok")
        a("s_add_u32 s75, s75, 1")
        a("s_sleep 4")
        gloads(" sc1", False)
        a("s_waitcnt vmcnt(0)")
        a("s_branch K3_gl")
    a.label("K3_gl_ok")
    for i in range(4):
        a(f"v_cvt_pk_bf16_f32 v{40+i}, v{64+2*i}, v{65+2*i}")
    a("s_lshl_b32 s43, s4, 10")
    a(f"s_add_u32 s43, s43, {KVT}")
    a("v_add_u32 v5, s43, v3")
    a(f"ds_write_b128 v5, {vr(40)}")
    a("s_lshl_b32 s43, s37, 2")
    a("v_add_u32 v7, s43, v10")
    a("s_lshl_b32 s43, s37, 11")
    a(f"s_add_u32 s43, s43, {KVT}")
    a("v_add_u32 v5, s43, v3")
    a("s_waitcnt lgkmcnt(0)")
    lds_signal(a, 7, S_KVT, 11)
    if ZFIRST:
        pq_pick()
        wo_issue(6)
    lds_wait(a, "K3_wkt", 7, S_KVT, 2, 52, 60)
    a(f"ds_read_b128 {vr(40)}, v5")
    a(f"ds_read_b128 {vr(44)}, v5 offset:1024")
    a("s_waitcnt lgkmcnt(0)")
    stamp(a, 5)
    for mt in range(4):
        b = 64 + 12 * mt
        mfma16(a, b + 8, 48, PQR + 4 * mt, "0")
        mfma16(a, b, 40, PQR + 4 * mt, "0")
        mfma16(a, b + 4, 44, PQR + 4 * mt, "0")
    a("s_lshl_b32 s60, s12, 3")
    a("s_lshl_b32 s61, s36, 2")
    a("s_add_u32 s60, s60, s61")
    a("s_lshl_b32 s60, s60, 5")
    a("s_add_u32 s60, s60, s15")
    a("s_lshl_b32 s60, s60, 10")
    a(f"s_mov_b32 s61, {EPS}")
    for mt in range(4):
        a(f"v_add_f32 v{112+mt}, s61, v{64+12*mt+8}")
        a(f"v_rcp_f32 v{112+mt}, v{112+mt}")
    for mt in range(4):
        b = 64 + 12 * mt
        for i in range(8):
            a(f"v_mul_f32 v{b+i}, v{b+i}, v{112+mt}")
        for i in range(4):
            a(f"v_cvt_pk_bf16_f32 v{120+4*mt+i}, v{b+2*i}, v{b+2*i+1}")
        for i in range(4):
            a(f"v_or_b32 v{120+4*mt+i}, 1, v{120+4*mt+i}")
        a(f"buffer_store_dwordx4 {vr(120+4*mt)}, v3, s[48:51], s60 offen sc1")
        a("s_add_u32 s60, s60, 32768")
    a("s_setprio 0")
    stamp(a, 6)
    a(f"s_mov_b32 s43, {RETRY_MAX}")
    a("v_lshrrev_b32 v5, 1, v2")
    a("v_lshlrev_b32 v5, 7, v5")
    a("v_and_b32 v4, 1, v2")
    a("v_lshl_add_u32 v5, v4, 4, v5")
    a.label("K3_ul")
    a("s_cmp_lg_u32 s42, 0")
    a("s_cbranch_scc1 K3_ul_done")
    a(f"buffer_load_dwordx4 {vr(28)}, v5, s[24:27], 0 offen offset:32 sc1")
    a("s_waitcnt vmcnt(0)")
    flagcmp(28)
    a("s_sub_u32 s43, s43, 1")
    a("s_cbranch_scc1 K3_ul_go")
    a("s_cmp_eq_u64 vcc, 0")
    a("s_cbranch_scc1 K3_ul_go")
    a("s_sleep 4")
    a("s_branch K3_ul")
    a.label("K3_ul_go")
    u_block(2)
    a.label("K3_ul_done")
    a("s_and_b32 s60, s10, 3")
    a("s_lshl_b32 s60, s60, 2")
    a("s_and_b32 s61, s11, 3")
    a("s_add_u32 s60, s60, s61")
    a("s_lshl_b32 s60, s60, 18")
    a("s_lshr_b32 s61, s11, 2")
    a("s_lshl_b32 s61, s61, 2")
    a("s_add_u32 s61, s61, s4")
    a("s_lshl_b32 s61, s61, 13")
    a("s_add_u32 s63, s60, s61")
    a("v_lshlrev_b32 v8, 7, v2")
    a("s_waitcnt vmcnt(0)")
    a("buffer_load_dword v60, v8, s[48:51], s63 offen")
    a(f"s_waitcnt vmcnt({0 if TWAIT else 1})")
    lds_signal(a, 10, S_WOM, 11)
    lds_wait(a, "K3_wcd", 9, S_CD, 1, 16, 60, sleep=1)
    wo_issue(7)
    a("s_waitcnt vmcnt(0)")
    lds_signal(a, 10, S_WOT, 11)
    vm.q = []
    stamp(a, 7)
    a("s_cmp_eq_u32 s40, 1")
    a("s_cbranch_scc1 K3_fin")
    if CPOST:
        lds_wait(a, "K3_wg2", 9, S_G2, 1, 16, 60, sleep=2)
        a(f"ds_read_b32 v16, v9 offset:{S_PD}")
        a("s_waitcnt lgkmcnt(0)")
        a("v_readfirstlane_b32 s60, v16")
        a("s_cmp_lg_u32 s60, 0")
        a("s_cbranch_scc1 K3_fin")
        q_loads()
    if GS >= 0 and not CPOST:
        lds_wait(a, "K3_wg2", 9, S_G2, 1, 16, 60, sleep=2)
    a("s_mov_b32 s40, 2")
    if PDELAY:
        a(f"s_sleep {PDELAY}")
    a(f"s_mov_b32 s43, {RETRY_MAX}")
    a.label("K3_post")
    for ci, sr in enumerate((73, 65, 66, 67)):
        a(f"buffer_load_dwordx4 {vr(16+4*ci)}, v225, s[44:47], s{sr} offen sc1")
    a("s_waitcnt vmcnt(0)")
    and_reduce(a, 48, range(16, 32))
    a("v_cmp_eq_u32 vcc, 0, v48")
    a("s_cmp_eq_u64 vcc, 0")
    a("s_cbranch_scc1 K3_yok")
    a("s_add_u32 s75, s75, 1")
    a("s_cmp_eq_u32 s40, 0")
    a("s_cbranch_scc1 K3_zp_s2")
    if PREPOST:
        a("s_cmp_eq_u32 s40, 3")
        a("s_cbranch_scc1 K3_pw")
    a("s_sub_u32 s43, s43, 1")
    a("s_cbranch_scc1 K3_yok")
    a("s_sleep 8")
    a("s_branch K3_post")
    a.label("K3_yok")
    stamp(a, 8)
    post_compute(a, QR, False)
    a("s_mov_b32 s41, s40")
    a("s_mov_b32 s40, 1")
    a("s_cmp_eq_u32 s41, 0")
    a("s_cbranch_scc1 K3_zp")
    if PREPOST:
        a("s_cmp_eq_u32 s41, 3")
        a("s_cbranch_scc1 K3_pw")
    a.label("K3_fin")
    stamp_flush(a, 9)
    a.label("K3_end")
    a("s_endpgm")
    a.label("K3_code_end")
    return a.finalize(), 252
```

```python
import os
from asmlib import *
from common import prepass, k2_prefetch_setup, MB, vr, mfma16, phi8, unpack4, env, LOG2E, EPS, WS_KVP, WS_ZP, WS_FLAG, WS_UT, WS_DBG, STAMP

WS_OF = 0
NS = 4
STAGE = 40960
K3_LDS = NS * STAGE
CV32 = env("CV32", 0)
CV_REG = 8960 if CV32 else 8704
CV_HB = 64 if CV32 else 32
CV_UB = 4672 if CV32 else 4384
KVT = 4 * CV_REG
SYNC = KVT + 4096
WO_BASE = 40960
PQ_BASE = WO_BASE + 24 * 4096
XCH = WO_BASE + 28 * 4096
XCZ = SYNC + 256
S_KVS = 84
S_PD = 96
S_G2 = 112
S_X, S_HU, S_PQ, S_KVT, S_WOM, S_WOT, S_CD, S_GO, S_NONCE, S_WO2 = 0, 8, 24, 40, 48, 52, 56, 72, 76, 80
SPIN_MAX = 1 << 17
RETRY_MAX = 4000
DPP = "row_mask:0xf bank_mask:0xf"
DUTY0 = env("DUTY0", 0)
NDUTY = env("NDUTY", 4)
E2_0 = env("E2_0", 4)
E2_N = env("E2_N", 4)
E3_0 = env("E3_0", 8)
E3_N = env("E3_N", 4)
F1N = env("F1N", 11)
NLEAD = env("NLEAD", 4)
FLAGN = env("FLAGN", 12)
AINIT = env("AINIT", 12)
PDELAY = env("PDELAY", 0)
G2PRIO = env("G2PRIO", 1)
CPOST = env("CPOST", 0)
PG = env("PG", 0)
BP = env("BP", 1)
TWAIT = env("TWAIT", 1)
ZFIRST = env("ZFIRST", 0)
GS = env("GS", 16)
FILLC = env("FILLC", 0)
PRO = env("PRO", 3)
TRO = env("TRO", 1)
EARLYB = env("EARLYB", 1)
LFRONT = env("LFRONT", 0)
ALN = env("ALN", 0)
UTF = env("UTF", 0)
NTK = " nt" if env("NTK", 1) else ""
OS1 = env("OS1", " sc1")
OS2 = env("OS2", " sc1")
NPL = env("NPL", 2)
FL0 = env("FL0", 0)
PL0 = env("PL0", 4)
SPF_C = env("SPF_C", 0)
SPF_L = env("SPF_L", 0)
ADEPTH = env("ADEPTH", 16)
YDELAY = env("YDELAY", 8)
ZSLEEP = env("ZSLEEP", 10)
ATOUCH = env("ATOUCH", 1)
XP = env("XP", "23")
LATE = env("LATE", 1)
PREPOST = env("PREPOST", 0)
EARLYWO = env("EARLYWO", 4)
WAITKV = env("WAITKV", 1)
GSC = env("GSC", "")
QX = env("QX", 1)
PREC = env("PREC", 0)
L2PF = env("L2PF", 0)
TLBW = env("TLBW", 0)
CODEPF = env("CODEPF", 0)
DBGOUT = env("DBGOUT", 0)
NTF = " nt" if env("NTF", 0) else ""
NTG = " nt" if env("NTG", 0) else ""
NTO = " nt" if env("NTO", 1) else ""
NTT = " nt" if env("NTT", 0) else ""
NTS = " nt" if env("NTS", 0) else ""
E3W = env("E3W", 1)
QEARLY = env("QEARLY", 0)
POSTPRE = env("POSTPRE", 0)
ASC = env("ASC", "")
P_Q, P_K, P_V, P_SHK, P_H, P_D, P_X, P_W, P_WO, P_OUT, P_DBG, P_WS = [76 + 2 * i for i in range(12)]
SV = 231


def stamp(a, i):
    if STAMP:
        a("s_memrealtime s[100:101]")
        a("s_waitcnt lgkmcnt(0)")
        a(f"v_writelane_b32 v{SV}, s100, {i}")


def cstamp(a, i):
    if STAMP:
        a("s_memtime s[100:101]")
        a("s_waitcnt lgkmcnt(0)")
        a(f"v_writelane_b32 v{SV}, s100, {i}")


def stamp_flush(a, n):
    if not STAMP:
        return
    a("s_mov_b64 exec, -1")
    a("s_waitcnt vmcnt(0)")
    stamp(a, n)
    a(f"v_writelane_b32 v{SV}, s75, 15")
    if DBGOUT:
        lab = "K3_dbg%d" % len(a.ins)
        a(f"s_cmp_lg_u32 s2, {DBGOUT-1}")
        a(f"s_cbranch_scc1 {lab}")
        a("s_cmp_lg_u32 s4, 0")
        a(f"s_cbranch_scc1 {lab}")
        srd(a, 16, P_DBG, 256)
        a(f"v_readlane_b32 s20, v{SV}, 0")
        a("s_lshr_b32 s21, s3, 1")
        a("v_lshlrev_b32 v0, 2, v2")
        a(f"v_subrev_u32 v1, s20, v{SV}")
        a("s_mov_b64 exec, 0x3fe")
        a("buffer_store_short v1, v0, s[16:19], s21 offen")
        a("s_mov_b64 exec, -1")
        a.label(lab)
    srd_off(a, 16, P_WS, WS_DBG, 4 * MB)
    a("s_add_u32 s20, s2, 512")
    a("s_lshl_b32 s20, s20, 4")
    a("s_add_u32 s20, s20, s3")
    a("s_lshl_b32 s20, s20, 6")
    a("v_lshlrev_b32 v0, 2, v2")
    a("s_mov_b64 exec, 0xffff")
    a(f"buffer_store_dword v{SV}, v0, s[16:19], s20 offen")


def lds_wait(a, name, vaddr, off, val, vtmp, stmp, sleep=0):
    a(f"s_mov_b32 s{stmp+1}, {SPIN_MAX}")
    a.label(name)
    if sleep:
        a(f"s_sleep {sleep}")
    a(f"ds_read_b32 v{vtmp}, v{vaddr} offset:{off}")
    a("s_waitcnt lgkmcnt(0)")
    a(f"v_readfirstlane_b32 s{stmp}, v{vtmp}")
    a(f"s_sub_u32 s{stmp+1}, s{stmp+1}, 1")
    a(f"s_cbranch_scc1 {name}_ok")
    a(f"s_cmp_lt_u32 s{stmp}, {val}")
    a(f"s_cbranch_scc1 {name}")
    a.label(name + "_ok")


def lds_signal(a, vaddr, off, vone):
    a("s_mov_b64 exec, 1")
    a(f"ds_add_u32 v{vaddr}, v{vone} offset:{off}")
    a("s_mov_b64 exec, -1")


def and_reduce(a, dst, regs):
    regs = list(regs)
    a(f"v_bitop3_b32 v{dst}, v{regs[0]}, v{regs[1]}, 1 bitop3:0x80")
    i = 2
    while i + 1 < len(regs):
        a(f"v_bitop3_b32 v{dst}, v{dst}, v{regs[i]}, v{regs[i+1]} bitop3:0x80")
        i += 2
    if i < len(regs):
        a(f"v_and_b32 v{dst}, v{dst}, v{regs[i]}")


def post_compute(a, QR, pk):
    for jj in range(8):
        T = 48 + 8 * (jj & 1)
        for ci in range(4):
            if jj & 1:
                a(f"v_and_b32 v{T+ci}, 0xffff0000, v{16+4*ci+jj//2}")
            else:
                a(f"v_lshlrev_b32 v{T+ci}, 16, v{16+4*ci+jj//2}")
        for cp in range(2):
            a(f"v_lshlrev_b32 v{T+4+2*cp}, 16, v{QR+2*jj+cp}")
            a(f"v_and_b32 v{T+5+2*cp}, 0xffff0000, v{QR+2*jj+cp}")
        if pk:
            for cp in range(2):
                a(f"v_pk_mul_f32 {vr(T+2*cp,2)}, {vr(T+2*cp,2)}, {vr(T+4+2*cp,2)}")
        else:
            for ci in range(4):
                a(f"v_mul_f32 v{T+ci}, v{T+ci}, v{T+4+ci}")
        O = 64 + 2 * jj
        for cp in range(2):
            a(f"v_cvt_pk_bf16_f32 v{O+cp}, v{T+2*cp}, v{T+2*cp+1}")
        a(f"buffer_store_dwordx2 {vr(O,2)}, v224, s[32:35], s72 offen{NTS}{OS1}")
        a(f"s_add_u32 s72, s72, {64*4096}")


def conv32(a, lg, PK):
    FU, HR, NH = 96, 16, 4
    ACCS = [[32, 48], [64, 80]]
    T2, T1, YV, R3PREV = [224, 225], [226, 227], [228, 229], 230

    def epilogue_ops(p):
        ops = []
        for ql in range(8):
            Q = 8 * p + ql
            acc = ACCS[p & 1][ql // 4] + 4 * (ql % 4)
            R0, R1, R2, R3 = acc, acc + 1, acc + 2, acc + 3
            cur, prv = Q & 1, (Q & 1) ^ 1
            r3p = R3PREV if ql == 0 else ACCS[p & 1][(ql - 1) // 4] + 4 * ((ql - 1) % 4) + 3
            if Q == 0:
                ops.append(f"v_add_f32_dpp v{T2[cur]}, v{R3}, v{R2} wave_shr:1 {DPP} bound_ctrl:0")
                ops.append(f"v_add_f32_dpp v{T1[cur]}, v{T2[cur]}, v{R1} wave_shr:1 {DPP} bound_ctrl:0")
                ops.append(f"v_add_f32_dpp v{YV[cur]}, v{T1[cur]}, v{R0} wave_shr:1 {DPP} bound_ctrl:0")
            else:
                ops.append(f"v_add_f32_dpp v{T2[cur]}, v{r3p}, v{R2} wave_ror:1 {DPP}")
                ops.append(f"v_add_f32_dpp v{T1[cur]}, v{T2[prv]}, v{R1} wave_ror:1 {DPP}")
                ops.append(f"v_add_f32_dpp v{YV[cur]}, v{T1[prv]}, v{R0} wave_ror:1 {DPP}")
                ops.append(f"v_add_f32_dpp v{T2[cur]}, v{R3}, v{R2} wave_shr:1 {DPP}")
                ops.append(f"v_add_f32_dpp v{T1[cur]}, v{T2[cur]}, v{R1} wave_shr:1 {DPP}")
                ops.append(f"v_add_f32_dpp v{YV[cur]}, v{T1[cur]}, v{R0} wave_shr:1 {DPP}")
            if ql & 1:
                d = PK[p] + ql // 2
                ops.append(f"v_cvt_pk_bf16_f32 v{d}, v{YV[0]}, v{YV[1]}")
                ops.append(f"v_or_b32 v{d}, 1, v{d}")
            if ql == 7:
                ops.append(f"v_mov_b32 v{R3PREV}, v{R3}")
        return ops

    steps = [(p, t) for p in range(4) for t in range(8 * p + 8)]
    issued = set()
    hslot = {}

    def issue_h(idx):
        p, t = steps[idx]
        slot = idx % NH
        hslot[idx] = slot
        for h in range(2):
            a(f"ds_read_b64_tr_b16 {vr(HR+4*slot+2*h,2)}, v12 offset:{128*t+32*(1-h)}")
            lg.issue(("h", slot))

    def issue_fu(s):
        if s in issued:
            return
        issued.add(s)
        for h in range(2):
            a(f"ds_read_b64_tr_b16 {vr(FU+4*(s+3)+2*h,2)}, v13 offset:{128*(s+3)+32*h}")
            lg.issue(("fu", s))

    def need(idx):
        p, t = steps[idx]
        r = [8 * p + 4 - t]
        if t <= 8 * p + 3:
            r.append(8 * p - t)
        return r

    PRE = 3
    for idx in range(PRE):
        for s in need(idx):
            issue_fu(s)
        issue_h(idx)
    pending = []
    for idx, (p, t) in enumerate(steps):
        if t == 0 and p > 0:
            assert not pending
            pending = epilogue_ops(p - 1)
        slot = hslot[idx]
        lg.wait_for([("h", slot)] + [("fu", s) for s in need(idx)])
        mf = [(1, 8 * p + 4 - t)]
        if t <= 8 * p + 3:
            mf.append((0, 8 * p - t))
        for k, (tile, s) in enumerate(mf):
            d = ACCS[p & 1][tile]
            cs = "0" if t == 0 else vr(d, 16)
            a(f"v_mfma_f32_32x32x16_bf16 {vr(d,16)}, {vr(FU+4*(s+3))}, {vr(HR+4*slot)}, {cs}")
            if k == 0 and idx + PRE < len(steps):
                for s2 in need(idx + PRE):
                    issue_fu(s2)
                issue_h(idx + PRE)
            if pending and t >= 2:
                for _ in range(3):
                    if pending:
                        a(pending.pop(0))
    assert not pending
    for op in epilogue_ops(3):
        a(op)


def gen_k3():
    a = Asm()
    a.label("K3_code_begin")
    a("s_cmp_ge_u32 s2, 256")
    a("s_cbranch_scc1 K3_end")
    a("s_load_dwordx8 s[84:91], s[0:1], 32")
    a("s_load_dwordx8 s[92:99], s[0:1], 64")
    a("s_load_dwordx8 s[76:83], s[0:1], 0")
    a("v_lshrrev_b32 v1, 6, v0")
    a("v_and_b32 v2, 63, v0")
    a("s_and_b32 s10, s2, 7")
    a("v_readfirstlane_b32 s3, v1")
    a("s_lshr_b32 s11, s2, 3")
    a("s_and_b32 s12, s10, 1")
    a("s_lshl_b32 s12, s12, 3")
    a("s_and_b32 s13, s11, 7")
    a("s_add_u32 s12, s12, s13")
    a("s_lshr_b32 s13, s10, 1")
    a("s_lshl_b32 s13, s13, 2")
    a("s_lshr_b32 s14, s11, 3")
    a("s_add_u32 s13, s13, s14")
    a("s_mov_b32 s75, 0")
    a("s_and_b32 s4, s3, 3")
    a("s_and_b32 s36, s3, 1")
    a("s_bfe_u32 s37, s3, 0x10001")
    a("s_lshl_b32 s5, s13, 1")
    a("s_add_u32 s5, s5, s37")
    a(f"s_xor_b32 s15, s5, {2 if QX else 0}")
    a("s_lshl_b32 s6, s10, 7")
    a("s_lshl_b32 s7, s11, 2")
    a("s_add_u32 s6, s6, s7")
    a("s_add_u32 s6, s6, s4")
    a(f"s_mul_i32 s7, s4, {CV_REG}")
    a("v_lshlrev_b32 v3, 4, v2")
    a("v_lshrrev_b32 v14, 4, v2")
    a("v_and_b32 v15, 15, v2")
    spf = []
    if not EARLYB:
        a("s_waitcnt lgkmcnt(0)")
        stamp(a, 0)
    if LFRONT:
        a("s_cmp_lt_u32 s3, 4")
        a("s_cbranch_scc1 K3_C")
        mark = len(a.ins)
        a.label("K3_C")
    else:
        a("s_cmp_ge_u32 s3, 4")
        a("s_cbranch_scc1 K3_L")
    if EARLYB:
        a("s_waitcnt lgkmcnt(0)")
        stamp(a, 0)

    if L2PF:
        srd(a, 40, P_X, 4 * MB)
        srd(a, 48, P_W, 6 * MB)
        a("v_lshrrev_b32 v192, 3, v2")
        a("v_lshlrev_b32 v192, 11, v192")
        a("v_and_b32 v16, 7, v2")
        a("v_lshl_add_u32 v192, v16, 7, v192")
        a("s_and_b32 s44, s10, 1")
        a("s_lshl_b32 s44, s44, 21")
        a("s_lshl_b32 s45, s11, 16")
        a("s_add_u32 s44, s44, s45")
        a("s_lshl_b32 s45, s3, 14")
        a("s_add_u32 s44, s44, s45")
        a(f"buffer_load_dword v195, v192, s[40:43], s44 offen{NTT}")
        a("v_lshrrev_b32 v193, 2, v2")
        a("v_mul_u32_u24 v193, 6144, v193")
        a("v_and_b32 v16, 3, v2")
        a("v_lshl_add_u32 v193, v16, 7, v193")
        a("s_mul_i32 s45, s11, 98304")
        a("s_lshl_b32 s46, s3, 11")
        a("s_add_u32 s45, s45, s46")
        a("s_lshr_b32 s46, s10, 1")
        a("s_lshl_b32 s46, s46, 9")
        a("s_add_u32 s45, s45, s46")
        a("s_cmp_eq_u32 s3, 3")
        a(f"s_cselect_b32 s45, {16*MB}, s45")
        a(f"buffer_load_dword v195, v193, s[48:51], s45 offen{NTT}")
        a("s_add_u32 s44, s44, 1024")
        a(f"s_add_u32 s45, s45, {512*6144}")
    else:
        a("s_cmp_lg_u32 s3, 0")
        a("s_cbranch_scc1 K3_pfw")
        srd(a, 40, P_X, 4 * MB)
        a("v_lshrrev_b32 v192, 3, v2")
        a("v_lshlrev_b32 v192, 11, v192")
        a("v_and_b32 v16, 7, v2")
        a("v_lshl_add_u32 v192, v16, 7, v192")
        a("s_lshl_b32 s45, s2, 14")
        a("s_add_u32 s44, s45, 1024")
        a("s_branch K3_pfd")
        a.label("K3_pfw")
        srd(a, 40, P_W, 6 * MB)
        a("v_lshlrev_b32 v192, 7, v2")
        a("s_mul_i32 s45, s2, 12288")
        a("s_sub_u32 s44, s3, 1")
        a("s_lshl_b32 s44, s44, 12")
        a("s_add_u32 s45, s45, s44")
        a(f"s_add_u32 s44, s45, {3*MB}")
        a("s_cmp_eq_u32 s3, 3")
        a(f"s_cselect_b32 s45, {8*MB}, s45")
        a(f"s_cselect_b32 s44, {8*MB}, s44")
        a.label("K3_pfd")
        if "1" in XP:
            a(f"s_mov_b32 s45, {16*MB}")
            a(f"s_mov_b32 s44, {16*MB}")
        a(f"buffer_load_dword v195, v192, s[40:43], s45 offen{NTT}")
    srd(a, 56, P_DBG, 256)
    srd_off(a, 60, P_WS, WS_FLAG, 4096)
    a("s_memrealtime s[16:17]")
    a("v_mov_b32 v199, 0")
    a("s_waitcnt lgkmcnt(0)")
    a("s_or_b32 s16, s16, 1")
    a("v_mov_b32 v198, s16")
    a("s_cmp_lg_u32 s3, 3")
    a("s_cbranch_scc1 K3_noseed")
    a("s_cmp_lg_u32 s11, 0")
    a("s_cbranch_scc1 K3_noseed")
    a("v_mov_b32 v196, s16")
    a("v_mov_b32 v197, 0")
    a("s_mov_b64 exec, 1")
    a("buffer_atomic_cmpswap v[196:197], v199, s[56:59], 0 offen sc1")
    a("s_mov_b64 exec, -1")
    a.label("K3_noseed")
    if CODEPF:
        a("s_cmp_lg_u32 s3, 3")
        a("s_cbranch_scc1 K3_nocpf")
        a(f"s_cmp_ge_u32 s11, {CODEPF}")
        a("s_cbranch_scc1 K3_nocpf")
        a("s_getpc_b64 s[16:17]")
        a.label("K3_pc")
        a("s_sub_u32 s16, s16, K3_pc-K3_code_begin")
        a("s_subb_u32 s17, s17, 0")
        a("s_mov_b32 s18, K3_code_end-K3_code_begin")
        a("s_mov_b32 s19, 0x20000")
        a("v_lshlrev_b32 v16, 7, v2")
        for i in range(6):
            a(f"s_mov_b32 s20, {8192*i}")
            a("buffer_load_dword v195, v16, s[16:19], s20 offen")
        a.label("K3_nocpf")
    if TLBW:
        a("s_cmp_lg_u32 s3, 3")
        a("s_cbranch_scc1 K3_notlb")
        a(f"s_cmp_ge_u32 s11, {TLBW}")
        a("s_cbranch_scc1 K3_notlb")
        a("v_lshlrev_b32 v16, 16, v2")
        for p, nb, offs in ((P_K, 4, (0,)), (P_V, 4, (0,)), (P_H, 4, (0,)), (P_Q, 4, (0,)), (P_WO, 2, (0,)), (P_OUT, 8, (0, 4)), (P_WS, 20, (0, 8, 12, 16))):
            srd(a, 16, p, nb * MB)
            for o in offs:
                a(f"s_mov_b32 s20, {o*MB}")
                a("buffer_load_dword v195, v16, s[16:19], s20 offen nt")
        a.label("K3_notlb")
    a("s_lshl_b32 s46, s11, 7")
    a("s_lshl_b32 s47, s10, 2")
    a("s_add_u32 s47, s47, s46")
    if PREC:
        pre_compute = prepass(a, 3, P_K, P_V, P_SHK, " sc1", P_WS, NTO)
    if not L2PF:
        a("s_cmp_ge_u32 s3, 2")
        a(f"s_cselect_b32 s48, s{P_V}, s{P_K}")
        a(f"s_cselect_b32 s49, s{P_V+1}, s{P_K+1}")
        a(f"s_mov_b32 s50, {4*MB}")
        a("s_mov_b32 s51, 0x20000")
        a("v_lshrrev_b32 v193, 2, v2")
        a("v_lshlrev_b32 v193, 11, v193")
        a("v_and_b32 v16, 3, v2")
        a("v_lshl_add_u32 v193, v16, 7, v193")
        a("s_lshr_b32 s45, s2, 2")
        a("s_lshl_b32 s45, s45, 16")
        a("s_lshl_b32 s46, s36, 15")
        a("s_add_u32 s45, s45, s46")
        a("s_and_b32 s46, s2, 3")
        a("s_lshl_b32 s46, s46, 9")
        a("s_add_u32 s45, s45, s46")
        if "2" in XP:
            a(f"s_mov_b32 s45, {16*MB}")
    a("v_mov_b32 v200, v15")
    for part in range(4):
        if part < 3:
            a(f"s_cmp_lg_u32 s3, {part}")
            a(f"s_cbranch_scc1 K3_e3_{part+1}")
        k2_prefetch_setup(a, part, 194, 64, 68, P_H, P_Q, P_WO)
        if part < 3:
            a("s_branch K3_e3_done")
            a.label(f"K3_e3_{part+1}")
    a.label("K3_e3_done")
    a("v_mov_b32 v15, v200")
    a(f"s_and_b32 s55, s11, {NDUTY-1}")
    a(f"s_add_u32 s55, s55, {DUTY0}")
    a(f"s_and_b32 s52, s11, {E2_N-1}")
    a(f"s_add_u32 s52, s52, {E2_0}")
    a("s_sub_u32 s52, s52, s55")
    a("s_sub_u32 s52, s52, 1")
    a("s_mov_b32 s54, 0")
    a("s_lshr_b32 s70, s11, 2")
    a(f"s_and_b32 s70, s70, {E3_N-1}")
    a(f"s_add_u32 s70, s70, {E3_0 if '3' not in XP else 1000}")
    if E3W:
        a("s_cmp_lt_u32 s3, 2")
        a("s_cselect_b32 s70, 1000, s70")
    a("s_cmp_eq_u32 s3, 3")
    a(f"s_cselect_b32 s71, {F1N-NLEAD}, 1000")
    a("s_mov_b32 s53, 0")
    if PREC:
        pre_compute()
    if FILLC:
        srd_off(a, 16, P_WS, WS_OF, 4 * MB)
        srd_off(a, 20, P_WS, WS_KVP, 2 * MB)
        srd_off(a, 24, P_WS, WS_ZP, 64 * 1024)
        a("s_lshl_b32 s28, s12, 3")
        a("s_lshl_b32 s29, s4, 1")
        a("s_add_u32 s28, s28, s29")
        a("s_lshl_b32 s28, s28, 15")
        a("s_lshr_b32 s29, s15, 1")
        a("s_lshl_b32 s29, s29, 11")
        a("s_add_u32 s28, s28, s29")
        a("s_add_u32 s29, s28, 32768")
        a("s_lshl_b32 s30, s5, 4")
        a("s_add_u32 s30, s30, s12")
        a("s_lshl_b32 s31, s30, 7")
        a("s_lshl_b32 s30, s30, 12")
        a("s_lshl_b32 s32, s36, 10")
        a("s_add_u32 s30, s30, s32")
        for i in range(4):
            a(f"v_mov_b32 v{20+i}, 0")
        a("v_and_b32 v18, 7, v2")
        a("v_lshlrev_b32 v18, 4, v18")
        a("buffer_store_dwordx4 v[20:23], v3, s[16:19], s28 offen sc1")
        a("buffer_store_dwordx4 v[20:23], v3, s[16:19], s28 offen offset:1024 sc1")
        a("buffer_store_dwordx4 v[20:23], v3, s[16:19], s29 offen sc1")
        a("buffer_store_dwordx4 v[20:23], v3, s[16:19], s29 offen offset:1024 sc1")
        a("buffer_store_dwordx4 v[20:23], v3, s[20:23], s30 offen sc1")
        a("buffer_store_dwordx4 v[20:23], v18, s[24:27], s31 offen sc1")
    a("s_lshl_b32 s38, s36, 6")
    a("v_add_u32 v16, s38, v15")
    a("v_lshrrev_b32 v17, 1, v15")
    a("v_lshlrev_b32 v16, 7, v16")
    a("v_xor_b32 v17, v14, v17")
    a("v_lshl_add_u32 v4, v17, 4, v16")
    a("v_xor_b32 v5, 64, v4")
    a(f"v_add_u32 v6, {2*STAGE}, v4")
    a(f"v_add_u32 v7, {2*STAGE}, v5")
    a("v_bfe_u32 v17, v2, 2, 2")
    a("v_and_b32 v18, 3, v2")
    a("v_lshlrev_b32 v17, 6, v17")
    a("v_lshl_add_u32 v17, v18, 3, v17")
    a("v_and_b32 v18, 1, v14")
    a("v_lshl_add_u32 v17, v18, 10, v17")
    a("v_lshl_add_u32 v17, v18, 5, v17")
    a("v_lshrrev_b32 v18, 1, v14")
    a("v_mul_u32_u24 v18, 6144, v18")
    a("v_add_u32 v17, v17, v18")
    a("s_lshl_b32 s38, s37, 8")
    a("s_add_u32 s38, s38, 16384")
    a("v_add_u32 v8, s38, v17")
    a("v_xor_b32 v9, 32, v8")
    a(f"v_add_u32 v10, {2*STAGE}, v8")
    a(f"v_add_u32 v11, {2*STAGE}, v9")
    SB = [16, 56]

    def accr(kind, mt, dt):
        return 96 + 32 * kind + (mt * 2 + dt) * 4

    for i in range(96, 192):
        a(f"v_mov_b32 v{i}, 0")
    for op in spf[:SPF_C]:
        a(op)
    a("s_waitcnt lgkmcnt(0)")
    srd_off(a, 28, P_WS, WS_KVP, 2 * MB)
    srd_off(a, 32, P_WS, WS_ZP, 64 * 1024)
    lg = Cnt(a, "lgkmcnt", 15)

    def reads(slot, t, st):
        sb = (slot & 1) * STAGE
        va = 4 + t + (2 if slot >= 2 else 0)
        vb = 10 if slot >= 2 else 8
        R = SB[st]

        def A(mt):
            return [(("A", mt, st), f"ds_read_b128 {vr(R+4*mt)}, v{va} offset:{sb + 2048*mt}")]

        def B(cb):
            seg, nh = cb // 2, cb % 2
            return [(("B", cb, st), f"ds_read_b64_tr_b16 {vr(R+16+4*cb+2*h,2)}, v{vb+nh} offset:{sb + t*12288 + seg*2048 + 512*h}") for h in range(2)]
        return A(0) + B(0) + A(1) + A(2) + A(3) + B(1) + B(2) + B(3) + B(4) + B(5)

    def group(st, nxt):
        R = SB[st]
        nxt = list(nxt)
        for cb in range(6):
            kind, dt = cb // 2, cb % 2
            for mt in range(4):
                lg.wait_for([("A", mt, st), ("B", cb, st)])
                fa, fb = R + 4 * mt, R + 16 + 4 * cb
                if kind == 0:
                    mfma16(a, accr(0, mt, dt), fb, fa)
                else:
                    mfma16(a, accr(kind, mt, dt), fa, fb)
                if nxt:
                    tag, txt = nxt.pop(0)
                    a(txt)
                    lg.issue(tag)

    a("s_barrier")
    stamp(a, 1)
    cstamp(a, 10)
    for tag, txt in reads(0, 0, 0):
        a(txt)
        lg.issue(tag)
    lg.drain()
    a("s_mov_b32 s39, 4")
    if ALN:
        a(".p2align 6")
        if ALN == 2:
            a("s_nop 0")
    a.label("K3_loop")
    for slot in range(4):
        group(0, reads(slot, 1, 1))
        lg.drain()
        a("s_barrier")
        a("s_sub_u32 s55, s55, 1")
        a(f"s_cbranch_scc1 K3_event{slot}")
        a.label(f"K3_noev{slot}")
        a("s_sub_u32 s70, s70, 1")
        a(f"s_cbranch_scc1 K3_evB{slot}")
        a.label(f"K3_noevB{slot}")
        a("s_sub_u32 s71, s71, 1")
        a(f"s_cbranch_scc1 K3_evC{slot}")
        a.label(f"K3_noevC{slot}")
        group(1, reads((slot + 1) % 4, 0, 0))
        if slot == 3:
            a("s_sub_u32 s39, s39, 1")
            a("s_cmp_lg_u32 s39, 0")
            lg.drain()
    a("s_cbranch_scc1 K3_loop")
    stamp(a, 2)
    cstamp(a, 11)

    a(f"s_mov_b32 s44, {LOG2E}")
    a(f"s_mov_b32 s45, {LOG2E}")
    a(f"s_mov_b32 s46, {EPS}")
    a(f"s_mov_b32 s47, {EPS}")
    a(f"v_mov_b32 v10, {SYNC}")
    a("v_mov_b32 v11, 1")
    for et in range(2):
        for m in range(2):
            d = 16 + 4 * (2 * et + m)
            for hh in range(2):
                s = accr(2, 2 * m + hh, et)
                a(f"v_cvt_pk_bf16_f32 v{d+2*hh}, v{s}, v{s+1}")
                a(f"v_cvt_pk_bf16_f32 v{d+2*hh+1}, v{s+2}, v{s+3}")
    for i in range(4):
        a(f"v_mov_b32 v{48+i}, 0x3f803f80")
    KV, ZZ, T = 160, 176, 52
    for m in range(2):
        for dt in range(2):
            for hh in range(2):
                s = accr(1, 2 * m + hh, dt)
                a(f"v_cvt_pk_bf16_f32 v{T+2*hh}, v{s}, v{s+1}")
                a(f"v_cvt_pk_bf16_f32 v{T+2*hh+1}, v{s+2}, v{s+3}")
            unpack4(a, T, T)
            kf = 32 + 4 * (2 * dt + m)
            phi8(a, T, kf, 44, 46)
            for et in range(2):
                mfma16(a, KV + 4 * (2 * et + dt), kf, 16 + 4 * (2 * et + m), "0" if m == 0 else None)
            mfma16(a, ZZ + 4 * dt, kf, 48, "0" if m == 0 else None)
    a("s_lshl_b32 s43, s37, 12")
    a(f"s_add_u32 s43, s43, {XCH}")
    a("v_add_u32 v4, s43, v3")
    a("s_lshl_b32 s43, s37, 7")
    a(f"s_add_u32 s43, s43, {XCZ}")
    a("v_lshlrev_b32 v5, 5, v14")
    a("v_add_u32 v5, s43, v5")
    a("s_lshl_b32 s43, s37, 2")
    a("v_add_u32 v6, s43, v10")
    a("s_cmp_eq_u32 s36, 0")
    a("s_cbranch_scc1 K3_wr0")
    for qd in range(4):
        a(f"ds_write_b128 v4, {vr(KV+4*qd)} offset:{1024*qd}")
    for dt in range(2):
        a(f"ds_write_b128 v5, {vr(ZZ+4*dt)} offset:{16*dt}")
    a("s_waitcnt lgkmcnt(0)")
    lds_signal(a, 6, S_X, 11)
    a("s_branch K3_q")
    a.label("K3_wr0")
    a("s_lshl_b32 s48, s5, 4")
    a("s_add_u32 s48, s48, s12")
    a("s_lshl_b32 s49, s48, 12")
    a("s_lshl_b32 s50, s48, 7")
    a("v_lshlrev_b32 v7, 4, v14")
    lds_wait(a, "K3_wx", 6, S_X, 1, 8, 42)
    for qd in range(4):
        a(f"ds_read_b128 {vr(16+4*qd)}, v4 offset:{1024*qd}")
    for dt in range(2):
        a(f"ds_read_b128 {vr(32+4*dt)}, v5 offset:{16*dt}")
    for qd in range(6):
        a(f"s_waitcnt lgkmcnt({5-qd})")
        a(f"v_pk_add_f32 {vr(KV+4*qd,2)}, {vr(KV+4*qd,2)}, {vr(16+4*qd,2)}")
        a(f"v_pk_add_f32 {vr(KV+4*qd+2,2)}, {vr(KV+4*qd+2,2)}, {vr(16+4*qd+2,2)}")
        if BP and qd < 4:
            d = 40 + 2 * qd
            a(f"v_cvt_pk_bf16_f32 v{d}, v{KV+4*qd}, v{KV+4*qd+1}")
            a(f"v_cvt_pk_bf16_f32 v{d+1}, v{KV+4*qd+2}, v{KV+4*qd+3}")
            a(f"v_or_b32 v{d}, 1, v{d}")
            a(f"v_or_b32 v{d+1}, 1, v{d+1}")
            if qd & 1:
                a(f"buffer_store_dwordx4 {vr(d-2)}, v3, s[28:31], s49 offen offset:{1024*(qd//2)} sc1")
            continue
        for i in range(4):
            a(f"v_or_b32 v{KV+4*qd+i}, 1, v{KV+4*qd+i}")
        if qd < 4:
            a(f"buffer_store_dwordx4 {vr(KV+4*qd)}, v3, s[28:31], s49 offen offset:{1024*qd} sc1")
    a("s_mov_b32 exec_lo, 0x00010001")
    a("s_mov_b32 exec_hi, 0x00010001")
    for dt in range(2):
        a(f"buffer_store_dwordx4 {vr(ZZ+4*dt)}, v7, s[32:35], s50 offen offset:{64*dt} sc1")
    a("s_mov_b64 exec, -1")
    lds_signal(a, 10, S_KVS, 11)
    a.label("K3_q")
    stamp(a, 3)
    a("s_lshl_b32 s43, s3, 12")
    a(f"s_add_u32 s43, s43, {PQ_BASE}")
    a("v_add_u32 v4, s43, v3")
    for mt in range(4):
        d = 80 + 4 * mt
        for dt in range(2):
            sr = accr(0, mt, dt)
            a(f"v_cvt_pk_bf16_f32 v{T+2*dt}, v{sr}, v{sr+1}")
            a(f"v_cvt_pk_bf16_f32 v{T+2*dt+1}, v{sr+2}, v{sr+3}")
        unpack4(a, T, T)
        phi8(a, T, d, 44, 46)
        a(f"ds_write_b128 v4, {vr(d)} offset:{1024*mt}")
    a("s_lshl_b32 s43, s3, 2")
    a("v_add_u32 v9, s43, v10")
    if CV32:
        a("v_and_b32 v6, 3, v2")
        a("v_bfe_u32 v7, v2, 2, 2")
        a("v_bfe_u32 v4, v2, 4, 1")
        a("v_lshrrev_b32 v5, 5, v2")
        a("v_lshlrev_b32 v12, 5, v4")
        a("v_lshl_add_u32 v12, v6, 3, v12")
        a("v_lshl_add_u32 v12, v5, 6, v12")
        a("v_lshlrev_b32 v7, 3, v7")
        a("v_sub_u32 v12, v12, v7")
        a("s_add_u32 s43, s7, 32")
        a("v_add_u32 v12, s43, v12")
        a("v_lshlrev_b32 v13, 8, v4")
        a("v_lshl_add_u32 v13, v6, 6, v13")
        a("v_add_u32 v13, v13, v7")
        a("v_lshlrev_b32 v5, 6, v5")
        a("v_sub_u32 v13, v13, v5")
        a(f"s_add_u32 s43, s7, {CV_UB-384}")
        a("v_add_u32 v13, s43, v13")
    else:
        a("v_and_b32 v6, 3, v2")
        a("v_bfe_u32 v7, v2, 2, 2")
        a("v_add_u32 v12, v6, v7")
        a("v_lshlrev_b32 v12, 3, v12")
        a("v_lshl_add_u32 v12, v14, 6, v12")
        a(f"s_add_u32 s43, s7, {CV_HB-24}")
        a("v_add_u32 v12, s43, v12")
        a("v_lshlrev_b32 v13, 5, v6")
        a("v_lshlrev_b32 v7, 3, v7")
        a("v_sub_u32 v13, v13, v7")
        a("v_lshlrev_b32 v7, 6, v14")
        a("v_sub_u32 v13, v13, v7")
        a(f"s_add_u32 s43, s7, {CV_UB+24-32}")
        a("v_add_u32 v13, s43, v13")
    a(f"s_add_u32 s43, s7, {CV_UB}")
    a("v_add_u32 v8, s43, v3")
    a("s_waitcnt lgkmcnt(0)")
    lds_signal(a, 9, S_PQ, 11)
    stamp(a, 4)
    lds_wait(a, "K3_whu", 9, S_HU, 1, 16, 42)
    stamp(a, 5)

    if ALN:
        a(".p2align 3")
        if ALN == 3:
            a("s_nop 0")
    HH, FU = 32, 96
    ACC = [16, 20, 24, 28]
    T2, T1, YV, PK = [224, 225], [226, 227], [228, 229], [232, 236, 240, 244]
    lg.q = []

    def fu_reads(s):
        for hf in range(2):
            a(f"ds_read_b64_tr_b16 {vr(FU+4*s+2*hf,2)}, v13 offset:{128*s + 32*(1-hf)}")
            lg.issue(("fu", s))

    def h_reads(t):
        for hf in range(2):
            a(f"ds_read_b64_tr_b16 {vr(HH+4*t+2*hf,2)}, v12 offset:{256*t + 32*hf}")
            lg.issue(("h", t))

    def epi(Q):
        ops = []
        R0 = ACC[Q % 4]
        R1, R2, R3 = R0 + 1, R0 + 2, R0 + 3
        cur, prv = Q & 1, (Q & 1) ^ 1
        if Q == 0:
            ops.append(f"v_add_f32_dpp v{T2[cur]}, v{R3}, v{R2} wave_shr:1 {DPP} bound_ctrl:0")
            ops.append(f"v_add_f32_dpp v{T1[cur]}, v{T2[cur]}, v{R1} wave_shr:1 {DPP} bound_ctrl:0")
            ops.append(f"v_add_f32_dpp v{YV[cur]}, v{T1[cur]}, v{R0} wave_shr:1 {DPP} bound_ctrl:0")
        else:
            r3p = ACC[(Q - 1) % 4] + 3
            ops.append(f"v_add_f32_dpp v{T2[cur]}, v{r3p}, v{R2} wave_ror:1 {DPP}")
            ops.append(f"v_add_f32_dpp v{T1[cur]}, v{T2[prv]}, v{R1} wave_ror:1 {DPP}")
            ops.append(f"v_add_f32_dpp v{YV[cur]}, v{T1[prv]}, v{R0} wave_ror:1 {DPP}")
            ops.append(f"v_add_f32_dpp v{T2[cur]}, v{R3}, v{R2} wave_shr:1 {DPP}")
            ops.append(f"v_add_f32_dpp v{T1[cur]}, v{T2[cur]}, v{R1} wave_shr:1 {DPP}")
            ops.append(f"v_add_f32_dpp v{YV[cur]}, v{T1[cur]}, v{R0} wave_shr:1 {DPP}")
        if Q & 1:
            p = PK[Q // 8] + (Q % 8) // 2
            ops.append(f"v_cvt_pk_bf16_f32 v{p}, v{YV[0]}, v{YV[1]}")
            ops.append(f"v_or_b32 v{p}, 1, v{p}")
        return ops

    if CV32:
        conv32(a, lg, PK)
    else:
        PRE = 3
        for c in range(PRE):
            fu_reads(c)
            if c % 2 == 0:
                h_reads(c // 2)
        pending = []
        for c in range(32):
            nst = c // 2 + 1
            for t in range(nst):
                s = c - 2 * t
                lg.wait_for([("fu", s), ("h", t)])
                mfma16(a, ACC[c % 4], FU + 4 * s, HH + 4 * t, "0" if t == 0 else None)
                if t == 0 and c + PRE < 32:
                    fu_reads(c + PRE)
                    if (c + PRE) % 2 == 0:
                        h_reads((c + PRE) // 2)
                if t == 0 and c >= 2:
                    assert not pending
                    pending = epi(c - 2)
                k = max(1, -(-len(pending) // (nst - t))) if pending else 0
                for _ in range(k):
                    a(pending.pop(0))
        for Q in (30, 31):
            for op in epi(Q):
                a(op)
    srd_off(a, 28, P_WS, WS_UT, 4 * MB)
    a("s_lshl_b32 s40, s6, 12")
    for g in range(4):
        a(f"buffer_store_dwordx4 {vr(PK[g])}, v3, s[28:31], s40 offen offset:{1024*g} sc1")
    a("s_and_b32 s40, s10, 3")
    a("s_lshl_b32 s40, s40, 2")
    a("s_and_b32 s41, s11, 3")
    a("s_add_u32 s40, s40, s41")
    a("s_lshl_b32 s41, s40, 3")
    a("s_lshl_b32 s42, s3, 1")
    a("s_add_u32 s41, s41, s42")
    a("s_lshl_b32 s48, s41, 15")
    a("s_mov_b32 s47, s48")
    a("v_lshrrev_b32 v5, 5, v2")
    a("v_and_b32 v6, 1, v14")
    a("v_lshlrev_b32 v12, 15, v6")
    a("v_lshl_add_u32 v12, v5, 8, v12")
    a("v_lshl_add_u32 v12, v15, 4, v12")
    srd_off(a, 28, P_WS, WS_OF, 4 * MB)
    srd(a, 32, P_OUT, 8 * MB)
    a("s_waitcnt lgkmcnt(0)")
    lds_signal(a, 9, S_CD, 11)
    stamp(a, 6)
    if CPOST:
        a("s_lshl_b32 s16, s10, 1")
        a("s_lshr_b32 s17, s11, 4")
        a("s_add_u32 s16, s16, s17")
        a("s_and_b32 s17, s11, 15")
        a("s_lshl_b32 s17, s17, 2")
        a("s_add_u32 s17, s17, s4")
        a("s_lshr_b32 s18, s17, 4")
        a("s_and_b32 s17, s17, 15")
        a("s_lshl_b32 s19, s18, 9")
        a("s_lshl_b32 s64, s17, 2")
        a("s_add_u32 s19, s19, s64")
        a("s_lshl_b32 s64, s19, 11")
        a("s_lshl_b32 s65, s16, 7")
        a("s_add_u32 s64, s64, s65")
        a("s_lshl_b32 s72, s19, 12")
        a("s_add_u32 s72, s72, s65")
        a("s_lshl_b32 s73, s16, 18")
        a("s_lshl_b32 s65, s18, 10")
        a("s_add_u32 s73, s73, s65")
        a("s_lshl_b32 s65, s17, 6")
        a("s_add_u32 s73, s73, s65")
        a("s_add_u32 s65, s73, 4096")
        a("s_add_u32 s66, s73, 8192")
        a("s_add_u32 s67, s73, 12288")
        a("v_lshlrev_b32 v224, 12, v14")
        a("v_lshl_add_u32 v224, v15, 3, v224")
        a("v_lshlrev_b32 v225, 14, v15")
        a("v_lshl_add_u32 v225, v14, 4, v225")
        a("v_lshlrev_b32 v4, 11, v14")
        a("v_lshl_add_u32 v4, v15, 3, v4")
        srd(a, 16, P_Q, 4 * MB)
        srd_off(a, 20, P_WS, WS_UT, 4 * MB)
        for jj in range(8):
            a(f"buffer_load_dwordx2 {vr(208+2*jj,2)}, v4, s[16:19], s64 offen")
            a(f"s_add_u32 s64, s64, {64*2048}")
        a("s_waitcnt vmcnt(0)")
        a(f"s_mov_b32 s43, {RETRY_MAX}")
        a.label("K3_cp")
        for ci, sr in enumerate((73, 65, 66, 67)):
            a(f"buffer_load_dwordx4 {vr(16+4*ci)}, v225, s[20:23], s{sr} offen sc1")
        a(f"ds_read_b32 v49, v10 offset:{S_WOM}")
        a("s_waitcnt vmcnt(0) lgkmcnt(0)")
        and_reduce(a, 48, range(16, 32))
        a("v_readfirstlane_b32 s42, v49")
        a("v_cmp_eq_u32 vcc, 0, v48")
        a("s_cmp_eq_u64 vcc, 0")
        a("s_cbranch_scc1 K3_cp_ok")
        a("s_cmp_ge_u32 s42, 4")
        a("s_cbranch_scc1 K3_cp_skip")
        a("s_sub_u32 s43, s43, 1")
        a("s_cbranch_scc1 K3_cp_skip")
        a("s_sleep 6")
        a("s_branch K3_cp")
        a.label("K3_cp_ok")
        lds_signal(a, 9, S_PD, 11)
        post_compute(a, 208, True)
        a.label("K3_cp_skip")
    lds_wait(a, "K3_wwo", 10, S_WOM, 4, 80, 42)
    if CPOST:
        lds_signal(a, 9, S_G2, 11)
    stamp(a, 7)
    cstamp(a, 12)
    vm = Cnt(a, "vmcnt", 63)
    AR = 96
    D = ADEPTH
    if "a" in XP:
        srd(a, 28, P_X, 4 * MB)
        a("s_lshl_b32 s48, s12, 18")
        a("s_lshl_b32 s47, s3, 16")
        a("s_add_u32 s48, s48, s47")

    def aload(h):
        for f in range(2):
            r = AR + 8 * (h % D) + 4 * f
            a(f"buffer_load_dwordx4 {vr(r)}, v12, s[28:31], s48 offen offset:{1024*(h%4)+512*f}{ASC}")
            vm.issue(("A", h))
        if h % 4 == 3:
            a("s_add_u32 s48, s48, 4096")

    if G2PRIO:
        a(f"s_setprio {G2PRIO}")
    for h in range(AINIT):
        aload(h)
    anext = [AINIT]
    a("v_bfe_u32 v4, v2, 2, 2")
    a("v_and_b32 v7, 3, v2")
    a("v_lshlrev_b32 v4, 6, v4")
    a("v_lshl_add_u32 v4, v7, 3, v4")
    a("v_lshl_add_u32 v4, v5, 9, v4")
    a("v_xor_b32 v7, v6, v5")
    a("v_lshl_add_u32 v13, v7, 5, v4")
    a(f"v_add_u32 v4, {WO_BASE}, v13")
    a(f"v_add_u32 v8, {WO_BASE + 65536}, v13")

    def check_ops(g):
        r = AR + 8 * ((4 * g) % D)
        ops = [f"v_bitop3_b32 v81, v{r}, v{r+1}, v{r+2} bitop3:0x80"]
        for i in range(3, 31, 2):
            ops.append(f"v_bitop3_b32 v81, v81, v{r+i}, v{r+i+1} bitop3:0x80")
        ops.append(f"v_bitop3_b32 v81, v81, v{r+31}, 1 bitop3:0x80")
        return ops

    def check_branch(g):
        if "a" in XP:
            a.label(f"K3_retry{g}_ret")
            return
        a("v_cmp_eq_u32 vcc, 0, v81")
        a("s_cmp_lg_u64 vcc, 0")
        a(f"s_cbranch_scc1 K3_retry{g}")
        a.label(f"K3_retry{g}_ret")

    def retry_block(g):
        a.label(f"K3_retry{g}")
        a(f"s_mov_b32 s46, {RETRY_MAX}")
        a(f"s_add_u32 s44, s47, {4096*g}")
        a.label(f"K3_retry{g}_l")
        a("s_add_u32 s75, s75, 1")
        a("s_sleep 4")
        for hh in range(4):
            for f in range(2):
                r = AR + 8 * ((4 * g + hh) % D) + 4 * f
                a(f"buffer_load_dwordx4 {vr(r)}, v12, s[28:31], s44 offen offset:{1024*hh+512*f} sc1")
        a("s_waitcnt vmcnt(0)")
        for op in check_ops(g):
            a(op)
        a("v_cmp_eq_u32 vcc, 0, v81")
        a("s_sub_u32 s46, s46, 1")
        a(f"s_cbranch_scc1 K3_retry{g}_ret")
        a("s_cmp_lg_u64 vcc, 0")
        a(f"s_cbranch_scc1 K3_retry{g}_l")
        a(f"s_branch K3_retry{g}_ret")

    lg.q = []
    BS = [48, 64]

    def breads(h):
        out = []
        st = h & 1
        if h < 16:
            vb, off = 4, h * 4096
        elif h < 28:
            vb, off = 8, (h - 16) * 4096
        else:
            vb, off = 13, (h - 28) * CV_REG
        for f in range(2):
            for nb in range(2):
                for hf in range(2):
                    out.append(((h, f, nb), f"ds_read_b64_tr_b16 {vr(BS[st]+8*f+4*nb+2*hf,2)}, v{vb} offset:{off + f*1024 + hf*2048 + nb*256}"))
        return out

    for tag, txt in breads(0):
        a(txt); lg.issue(tag)
    vm.wait_for([("A", 3)])
    for op in check_ops(0):
        a(op)
    check_branch(0)
    chk = []
    if ALN:
        a(".p2align 3")
        if ALN == 3:
            a("s_nop 0")
    for h in range(32):
        nxt = []
        if h == GS and not CPOST:
            lds_signal(a, 9, S_G2, 11)
            lg.issue("sig")
        if h + 1 < 32:
            if h + 1 == 28:
                lg.drain()
                lds_wait(a, "K3_wwt", 10, S_WOT, 4, 80, 42)
            nxt = breads(h + 1)
        if h % 4 == 2 and h + 2 < 32:
            vm.wait_for([("A", h + 5)])
            chk = check_ops(h // 4 + 1) if "k" not in XP else []
        for f in range(2):
            for nb in range(2):
                lg.wait_for([(h, f, nb)])
                d = 16 + 16 * nb
                cs = "0" if (h == 0 and f == 0) else vr(d, 16)
                a(f"v_mfma_f32_32x32x16_bf16 {vr(d,16)}, {vr(BS[h&1]+8*f+4*nb)}, {vr(AR+8*(h%D)+4*f)}, {cs}")
                for _ in range(2):
                    if nxt:
                        tag, txt = nxt.pop(0)
                        a(txt); lg.issue(tag)
                    if chk:
                        a(chk.pop(0))
        if h % 4 == 3 and h + 1 < 32:
            assert not chk
            check_branch(h // 4 + 1)
        for _ in range(2):
            if anext[0] < 32 and anext[0] <= h + D and "n" not in XP:
                aload(anext[0]); anext[0] += 1
    stamp(a, 8)
    cstamp(a, 13)
    a("v_and_b32 v4, 31, v2")
    a("v_lshlrev_b32 v4, 12, v4")
    a("v_lshl_add_u32 v4, v5, 4, v4")
    a("s_lshr_b32 s36, s10, 2")
    a("s_lshl_b32 s36, s36, 3")
    a("s_lshr_b32 s37, s11, 2")
    a("s_add_u32 s36, s36, s37")
    a("s_lshl_b32 s38, s41, 16")
    a("s_lshl_b32 s39, s36, 7")
    a("s_add_u32 s38, s38, s39")
    a("s_add_u32 s38, s38, 2048")
    if TRO:
        a("v_and_b32 v6, 31, v2")
        a("v_and_b32 v7, 7, v2")
        a("v_xor_b32 v7, v7, v5")
        a("v_lshlrev_b32 v6, 7, v6")
        a(f"s_add_u32 s39, s7, {CV_UB}")
        a("v_add_u32 v6, s39, v6")
        a("v_lshrrev_b32 v8, 3, v2")
        a("v_and_b32 v13, 7, v2")
        a("v_xor_b32 v96, v13, v8")
        a("v_lshlrev_b32 v96, 4, v96")
        a("v_lshl_add_u32 v96, v8, 7, v96")
        a("v_add_u32 v96, s39, v96")
        a("v_lshlrev_b32 v4, 12, v8")
        a("v_lshl_add_u32 v4, v13, 4, v4")
    for nb in range(2):
        for kp in range(2):
            P = 80 + 8 * nb + 4 * kp
            t0 = 16 + 16 * nb + 8 * kp
            for i in range(4):
                a(f"v_cvt_pk_bf16_f32 v{P+i}, v{t0+2*i}, v{t0+2*i+1}")
            a(f"v_permlane32_swap_b32 v{P}, v{P+2}")
            a(f"v_permlane32_swap_b32 v{P+1}, v{P+3}")
            if TRO:
                a(f"v_xor_b32 v97, {4*nb+2*kp}, v7")
                a("v_lshl_add_u32 v97, v97, 4, v6")
                a(f"ds_write_b128 v97, {vr(P)}")
            else:
                a(f"buffer_store_dwordx4 {vr(P)}, v4, s[32:35], s38 offen offset:{64*nb+32*kp}{NTS}{OS2}")
    if TRO:
        for i in range(4):
            a(f"ds_read_b128 {vr(100+4*i)}, v96 offset:{1024*i}")
        for i in range(4):
            a(f"s_waitcnt lgkmcnt({3-i})")
            a(f"buffer_store_dwordx4 {vr(100+4*i)}, v4, s[32:35], s38 offen{NTS}{OS2}")
            a("s_add_u32 s38, s38, 32768")
    stamp_flush(a, 9)
    a("s_endpgm")
    for g in range(8):
        retry_block(g)
    for slot in range(4):
        a.label(f"K3_event{slot}")
        a("s_add_u32 s54, s54, 1")
        a("s_cmp_lg_u32 s54, 1")
        a(f"s_cbranch_scc1 K3_ev2_{slot}")
        a(f"buffer_load_dword v195, v192, s[40:43], s44 offen{NTT}")
        if L2PF:
            a(f"buffer_load_dword v195, v193, s[48:51], s45 offen{NTT}")
            a("s_mov_b32 s55, 1000")
        else:
            a("s_mov_b32 s55, s52")
        a(f"s_branch K3_noev{slot}")
        a.label(f"K3_ev2_{slot}")
        if PREC or FILLC:
            a("s_waitcnt vmcnt(0)")
        a(f"buffer_load_dword v195, v193, s[48:51], s45 offen{NTT}")
        a("s_mov_b32 s55, 1000")
        a(f"s_branch K3_noev{slot}")
        a.label(f"K3_evB{slot}")
        a(f"buffer_load_dword v195, v194, s[64:67], s68 offen{NTT}")
        a(f"buffer_load_dword v195, v194, s[64:67], s69 offen{NTT}")
        a(f"s_branch K3_noevB{slot}")
        a.label(f"K3_evC{slot}")
        a("s_add_u32 s53, s53, 1")
        a("s_cmp_lg_u32 s53, 1")
        a(f"s_cbranch_scc1 K3_ev4_{slot}")
        a("buffer_load_dword v196, v199, s[56:59], 0 offen sc1")
        a(f"s_mov_b32 s71, {NLEAD-1}")
        a(f"s_branch K3_noevC{slot}")
        a.label(f"K3_ev4_{slot}")
        a("s_cmp_lg_u32 s53, 2")
        a(f"s_cbranch_scc1 K3_ev6_{slot}")
        a("s_waitcnt vmcnt(0)")
        a("v_readfirstlane_b32 s46, v196")
        a("s_mov_b64 exec, 1")
        a("s_cmp_lg_u32 s46, 0")
        a(f"s_cbranch_scc1 K3_ev5_{slot}")
        a("v_mov_b32 v196, v198")
        a("v_mov_b32 v197, 0")
        a("buffer_atomic_cmpswap v[196:197], v199, s[56:59], 0 offen sc0 sc1")
        a("s_waitcnt vmcnt(0)")
        a("v_cmp_eq_u32 vcc, 0, v196")
        a("v_cndmask_b32 v196, v196, v198, vcc")
        a.label(f"K3_ev5_{slot}")
        a("buffer_store_dword v196, v199, s[60:63], s47 offen sc1")
        a("s_mov_b64 exec, -1")
        a(f"s_mov_b32 s71, {FLAGN-F1N-1 if not POSTPRE else 1000}")
        a(f"s_branch K3_noevC{slot}")
        a.label(f"K3_ev6_{slot}")
        a("s_mov_b64 exec, 1")
        a("buffer_store_dword v196, v199, s[60:63], s47 offen offset:32 sc1")
        a("s_mov_b64 exec, -1")
        a("s_mov_b32 s71, 1000")
        a(f"s_branch K3_noevC{slot}")

    lbeg = len(a.ins)
    a.label("K3_L")
    a("v_lshrrev_b32 v4, 3, v2")
    a("v_and_b32 v5, 7, v2")
    for jl in range(4):
        a(f"v_add_u32 v6, {4*(jl&1)}, v14")
        a("v_xor_b32 v6, v6, v5")
        a("v_lshlrev_b32 v6, 4, v6")
        a("v_lshl_add_u32 v6, v4, 11, v6")
        a(f"v_add_u32 v{240+jl}, {jl*(16384-1024)}, v6")
    a("v_lshrrev_b32 v6, 5, v2")
    a("v_bfe_u32 v7, v2, 2, 2")
    a("v_lshl_add_u32 v6, v6, 2, v7")
    a("v_mul_u32_u24 v6, 6144, v6")
    a("v_bfe_u32 v7, v2, 4, 1")
    a("v_lshl_add_u32 v6, v7, 6, v6")
    a("v_and_b32 v7, 3, v2")
    a("v_lshl_add_u32 v6, v7, 4, v6")
    a("v_xor_b32 v7, 32, v6")
    a("s_and_b32 s40, s13, 1")
    a("s_lshl_b32 s40, s40, 7")
    a(f"s_xor_b32 s41, s40, {128 if QX else 0}")
    binst = []
    for seg in range(3):
        for gg in range(2):
            ldsoff = seg * 2048 + gg * 1024
            m0sel, ioff = ldsoff // 4096, ldsoff % 4096
            reg = 244 + seg * 2 + gg
            a(f"v_add_u32 v{reg}, {8*gg*6144 + seg*2048 - ioff}, v{6+gg}")
            a(f"v_add_u32 v{reg}, s{41 if seg == 0 else 40}, v{reg}")
            binst.append((reg, m0sel, ioff))
    a("s_lshl_b32 s38, s12, 7")
    a("s_lshl_b32 s40, s4, 5")
    a("s_add_u32 s38, s38, s40")
    a("s_lshl_b32 s38, s38, 11")
    a("s_mul_i32 s39, s4, 98304")
    a("s_lshr_b32 s40, s13, 1")
    a("s_lshl_b32 s40, s40, 8")
    a("s_add_u32 s39, s39, s40")
    a("s_lshl_b32 s41, s4, 12")
    a("s_mul_i32 s42, s4, 6144")
    a("s_add_u32 s42, s42, 16384")
    if EARLYB:
        a("s_waitcnt lgkmcnt(0)")
        stamp(a, 0)
    srd(a, 16, P_X, 4 * MB)
    srd(a, 20, P_W, 6 * MB)
    vm = Cnt(a, "vmcnt", 63)

    def issue(kt):
        sb = (kt % NS) * STAGE
        a(f"s_add_u32 m0, s41, {sb}")
        for jl in range(4):
            a(f"buffer_load_dwordx4 v{240+jl}, s[16:19], s38 offen offset:{jl*1024}{NTG} lds")
            vm.issue(("st", kt))
        cur = -1
        for reg, m0sel, ioff in binst:
            if m0sel != cur:
                a(f"s_add_u32 m0, s42, {sb + 4096*m0sel}")
                cur = m0sel
            a(f"buffer_load_dwordx4 v{reg}, s[20:23], s39 offen offset:{ioff}{NTG} lds")
            vm.issue(("st", kt))
        a("s_add_u32 s38, s38, 128")
        a(f"s_add_u32 s39, s39, {64*6144}")

    if env("ST0", 0):
        stamp(a, 10)
    for kt in range(PRO):
        issue(kt)
        if env("ST0", 0):
            stamp(a, 11 + kt)
    if LFRONT:
        a("s_branch K3_L2")
        blk = a.ins[lbeg:]
        del a.ins[lbeg:]
        a.ins[mark:mark] = blk
        a.label("K3_L2")
    srd(a, 24, P_K, 4 * MB)
    srd(a, 28, P_V, 4 * MB)
    srd(a, 32, P_SHK, 8192)
    srd_off(a, 44, P_WS, WS_UT, 4 * MB)
    srd_off(a, 48, P_WS, WS_OF, 4 * MB)
    srd_off(a, 52, P_WS, WS_KVP, 2 * MB)
    srd_off(a, 56, P_WS, WS_ZP, 64 * 1024)
    a("s_lshl_b32 s60, s2, 2")
    a("s_add_u32 s60, s60, s4")
    if UTF:
        a("s_and_b32 s61, s60, 31")
        a("s_lshr_b32 s60, s60, 5")
        a("s_lshl_b32 s62, s60, 17")
        a("s_lshl_b32 s63, s61, 6")
        a("s_add_u32 s62, s62, s63")
        a("v_lshrrev_b32 v18, 3, v2")
        a("v_and_b32 v20, 7, v2")
        a("v_lshlrev_b32 v21, 14, v18")
        a("v_lshl_add_u32 v21, v20, 3, v21")
        a("v_add_u32 v21, s62, v21")
        a("s_lshl_b32 s63, s61, 8")
        a("v_lshlrev_b32 v22, 5, v20")
        a("s_lshl_b32 s62, s61, 17")
        a("s_lshl_b32 s64, s60, 7")
        a("s_add_u32 s62, s62, s64")
        a("v_lshlrev_b32 v19, 14, v20")
        a("v_lshl_add_u32 v19, v18, 4, v19")
    else:
        a("s_and_b32 s61, s60, 15")
        a("s_lshr_b32 s60, s60, 4")
        a("s_lshl_b32 s62, s60, 16")
        a("s_lshl_b32 s63, s61, 7")
        a("s_add_u32 s62, s62, s63")
        a("v_lshlrev_b32 v21, 14, v14")
        a("v_lshl_add_u32 v21, v15, 3, v21")
        a("v_add_u32 v21, s62, v21")
        a("s_lshl_b32 s63, s61, 9")
        a("v_lshlrev_b32 v22, 5, v15")
        a("s_lshl_b32 s62, s61, 18")
        a("s_lshl_b32 s64, s60, 6")
        a("s_add_u32 s62, s62, s64")
        a("v_lshlrev_b32 v19, 14, v15")
        a("v_lshl_add_u32 v19, v14, 4, v19")
    a("s_lshl_b32 s64, s12, 3")
    a("s_lshl_b32 s65, s4, 1")
    a("s_add_u32 s64, s64, s65")
    a("s_lshl_b32 s64, s64, 15")
    a("s_lshr_b32 s65, s15, 1")
    a("s_lshl_b32 s65, s65, 11")
    a("s_add_u32 s64, s64, s65")
    a("s_add_u32 s65, s64, 32768")
    a("s_lshl_b32 s66, s5, 4")
    a("s_add_u32 s66, s66, s12")
    a("s_lshl_b32 s67, s66, 7")
    a("s_lshl_b32 s66, s66, 12")
    a(f"s_lshl_b32 s68, s36, {10 if BP else 11}")
    a("s_add_u32 s66, s66, s68")
    for i in range(4):
        a(f"v_mov_b32 v{160+i}, 0")
    a("v_and_b32 v18, 7, v2")
    a("v_lshlrev_b32 v18, 4, v18")
    fills = [
        f"buffer_store_dwordx4 v[160:163], v3, s[48:51], s64 offen sc1{NTF}",
        f"buffer_store_dwordx4 v[160:163], v3, s[48:51], s64 offen offset:1024 sc1{NTF}",
        f"buffer_store_dwordx4 v[160:163], v3, s[48:51], s65 offen sc1{NTF}",
        f"buffer_store_dwordx4 v[160:163], v3, s[48:51], s65 offen offset:1024 sc1{NTF}",
        f"buffer_store_dwordx4 v[160:163], v3, s[52:55], s66 offen sc1{NTF}",
        f"buffer_store_dwordx4 v[160:163], v3, s[52:55], s66 offen offset:1024 sc1{NTF}",
        f"buffer_store_dwordx4 v[160:163], v18, s[56:59], s67 offen sc1{NTF}",
    ]
    if BP:
        del fills[5]
    W, KF, VF, KS = 72, 88, 110, 126
    loads = []
    for i in range(2):
        loads.append([f"buffer_load_dwordx4 {vr(24+4*i)}, v22, s[32:35], s63 offen offset:{16*i}"])
    for i in range(11):
        loads.append([f"v_add_u32 v23, {((i-3)*2048) & 0xffffffff}, v21", f"buffer_load_dwordx2 {vr(32+2*i,2)}, v23, s[24:27], 0 offen{NTK}"])
    for i in range(8):
        loads.append([f"v_add_u32 v23, {i*2048}, v21", f"buffer_load_dwordx2 {vr(54+2*i,2)}, v23, s[28:31], 0 offen{NTK}"])
    comp = []
    for ci in range(4):
        comp += [f"v_lshlrev_b32 v{W+ci}, 16, v{24+2*ci}", f"v_and_b32 v{W+4+ci}, 0xffff0000, v{24+2*ci}",
                 f"v_lshlrev_b32 v{W+8+ci}, 16, v{25+2*ci}", f"v_and_b32 v{W+12+ci}, 0xffff0000, v{25+2*ci}"]
    for cp in range(2):
        for i in range(11):
            comp += [f"v_lshlrev_b32 v{KF+2*i}, 16, v{32+2*i+cp}", f"v_and_b32 v{KF+2*i+1}, 0xffff0000, v{32+2*i+cp}"]
        for i in range(8):
            comp += [f"v_lshlrev_b32 v{VF+2*i}, 16, v{54+2*i+cp}", f"v_and_b32 v{VF+2*i+1}, 0xffff0000, v{54+2*i+cp}"]
        for i in range(16):
            comp.append(f"v_mul_f32 v{KS+i}, v{KF+i}, v{W+12+2*cp+(i&1)}")
        for j in (2, 1, 0):
            for i in range(16):
                comp.append(f"v_fmac_f32 v{KS+i}, v{KF+2*(3-j)+i}, v{W+4*j+2*cp+(i&1)}")
        for i in range(16):
            comp.append(f"v_mul_f32 v{KS+i}, v{KS+i}, v{VF+i}")
        O = 144 + 8 * cp
        for e in range(2):
            for i in range(4):
                comp.append(f"v_cvt_pk_bf16_f32 v{O+4*e+i}, v{KS+4*i+e}, v{KS+4*i+2+e}")
        for i in range(8):
            comp.append(f"v_and_b32 v{O+i}, -2, v{O+i}")
        for e in range(2):
            comp.append(("st", f"buffer_store_dwordx4 {vr(O+4*e)}, v19, s[44:47], s62 offen sc1"))
            comp.append("s_add_u32 s62, s62, 4096")
    PCE = env("PCE", FLAGN - 3)
    PCS = PL0 + NPL + env("PGAP", 0)
    NPC = PCE - PCS
    per = -(-len(comp) // NPC)
    a("v_lshrrev_b32 v6, 5, v2")
    a("v_bfe_u32 v7, v2, 2, 2")
    a("v_lshl_add_u32 v7, v6, 2, v7")
    a("v_lshlrev_b32 v7, 11, v7")
    a("v_bfe_u32 v8, v2, 4, 1")
    a("v_lshl_add_u32 v7, v8, 6, v7")
    a("v_and_b32 v8, 3, v2")
    a("v_lshlrev_b32 v6, 1, v6")
    a("v_xor_b32 v8, v8, v6")
    a("v_lshl_add_u32 v7, v8, 4, v7")
    for i in range(4):
        a(f"v_add_u32 v{232+i}, {i*(16384-1024)}, v7")
    a("s_lshl_b32 s69, s4, 16")
    a("s_lshr_b32 s70, s10, 2")
    a("s_lshl_b32 s70, s70, 3")
    a("s_lshr_b32 s71, s11, 2")
    a("s_add_u32 s70, s70, s71")
    a("s_lshl_b32 s70, s70, 7")
    a("s_add_u32 s69, s69, s70")
    a("s_lshl_b32 s70, s4, 12")
    a(f"s_add_u32 s70, s70, {WO_BASE}")
    a("s_lshl_b32 s71, s6, 12")
    a(f"v_mov_b32 v10, {SYNC}")
    a("v_mov_b32 v11, 1")
    a("s_lshl_b32 s43, s4, 2")
    a("v_add_u32 v9, s43, v10")

    def wo_issue(k):
        if k < 7:
            a(f"s_add_u32 m0, s70, {k*16384}")
        else:
            a("s_mov_b32 m0, s7")
        for i in range(4):
            a(f"buffer_load_dwordx4 v{232+i}, s[20:23], s69 offen offset:{i*1024}{NTG} lds")
            vm.issue("wo")
        a(f"s_add_u32 s69, s69, {128*2048}")

    def post_setup():
        a("s_lshl_b32 s16, s10, 1")
        a("s_lshr_b32 s17, s11, 4")
        a("s_add_u32 s16, s16, s17")
        a("s_and_b32 s17, s11, 15")
        a("s_lshl_b32 s17, s17, 2")
        a("s_add_u32 s17, s17, s4")
        a("s_lshr_b32 s18, s17, 4")
        a("s_and_b32 s17, s17, 15")
        a("s_lshl_b32 s19, s18, 9")
        a("s_lshl_b32 s64, s17, 2")
        a("s_add_u32 s19, s19, s64")
        a("s_lshl_b32 s64, s19, 11")
        a("s_lshl_b32 s65, s16, 7")
        a("s_add_u32 s64, s64, s65")
        a("s_lshl_b32 s72, s19, 12")
        a("s_add_u32 s72, s72, s65")
        a("s_lshl_b32 s73, s16, 18")
        a("s_lshl_b32 s65, s18, 10")
        a("s_add_u32 s73, s73, s65")
        a("s_lshl_b32 s65, s17, 6")
        a("s_add_u32 s73, s73, s65")
        a("s_add_u32 s65, s73, 4096")
        a("s_add_u32 s66, s73, 8192")
        a("s_add_u32 s67, s73, 12288")
        a("v_lshlrev_b32 v224, 12, v14")
        a("v_lshl_add_u32 v224, v15, 3, v224")
        a("v_lshlrev_b32 v225, 14, v15")
        a("v_lshl_add_u32 v225, v14, 4, v225")

    def q_loads():
        srd(a, 16, P_Q, 4 * MB)
        a("v_lshlrev_b32 v4, 11, v14")
        a("v_lshl_add_u32 v4, v15, 3, v4")
        for jj in range(8):
            a(f"buffer_load_dwordx2 {vr(QR+2*jj,2)}, v4, s[16:19], s64 offen{NTO}")
            vm.issue("q")
            a(f"s_add_u32 s64, s64, {64*2048}")

    QR = 208

    def h_issue():
        a(f"s_add_u32 m0, s7, {CV_HB}")
        for c in range(4):
            a(f"buffer_load_dwordx4 v3, s[16:19], s71 offen offset:{1024*c}{NTO} lds")
            vm.issue("h")
        a("s_lshl_b32 s43, s6, 1")
        a("v_mov_b32 v4, 0")
        a("buffer_load_ushort v164, v4, s[20:23], s43 offen")
        vm.issue("h")
        srd(a, 20, P_WO, 2 * MB)

    for kt in range(16):
        tags = [("st", kt)]
        if kt == F1N + 1:
            tags += ["fill"]
        if kt == FLAGN + 1:
            tags += ["ust"]
        vm.wait_for(tags)
        if kt == 14:
            a("s_waitcnt lgkmcnt(0)")
        a("s_barrier")
        if kt in (2, 5, 8, 11, 14) and not env("ST0", 0):
            stamp(a, 10 + (2, 5, 8, 11, 14).index(kt))
        if kt == 0:
            for k2 in range(PRO, NS - 1):
                issue(k2)
        if kt + NS - 1 < 16:
            issue(kt + NS - 1)
        for op in spf[SPF_C + kt * SPF_L: SPF_C + (kt + 1) * SPF_L]:
            a(op)
        if FL0 <= kt < FL0 + len(fills) and "f" not in XP and not FILLC:
            a(fills[kt - FL0]); vm.issue("fill")
        if POSTPRE and kt in (14, 15):
            for grp in (loads[:13] if kt == 14 else loads[13:]):
                for op in grp:
                    a(op)
                vm.issue("pre")
        if PL0 <= kt < PL0 + NPL and "l" not in XP and not POSTPRE and not PREC:
            q = -(-len(loads) // NPL)
            for grp in loads[(kt - PL0) * q: (kt - PL0 + 1) * q]:
                for op in grp:
                    a(op)
                vm.issue("pre")
        if kt == 13:
            post_setup()
            srd(a, 16, P_H, 4 * MB)
            srd(a, 20, P_D, 2048)
            a("v_mov_b32 v4, 0")
            a("v_lshlrev_b32 v5, 2, v2")
            a(f"v_add_u32 v6, {SYNC}, v5")
            a("ds_write_b32 v6, v4")
            a("v_add_u32 v6, s7, v5")
            a(f"ds_write_b32 v6, v4 offset:{CV_UB-256}")
            if CV32:
                a(f"ds_write_b32 v6, v4 offset:{CV_UB-512}")
            a(f"v_and_b32 v6, {15 if CV32 else 7}, v2")
            a("v_lshlrev_b32 v6, 2, v6")
            a("v_add_u32 v6, s7, v6")
            a("ds_write_b32 v6, v4")
            h_issue()
            if QEARLY:
                q_loads()
        if PCS <= kt < PCE and not POSTPRE and not PREC:
            if kt == PCS:
                vm.wait_for(["pre"])
            for op in comp[:per]:
                if "c" in XP and not isinstance(op, tuple):
                    continue
                if isinstance(op, tuple):
                    if "u" in XP:
                        continue
                    a(op[1]); vm.issue("ust")
                else:
                    a(op)
            comp = comp[per:]
        if kt == 14 and EARLYWO >= 2:
            wo_issue(0); wo_issue(1)
        if kt == 15 and EARLYWO >= 4:
            wo_issue(2); wo_issue(3)
    assert POSTPRE or PREC or not comp
    a("s_barrier")
    stamp(a, 1)
    if POSTPRE:
        vm.wait_for(["pre"])
        for ci in range(4):
            a(f"v_lshlrev_b32 v{W+ci}, 16, v{24+2*ci}")
            a(f"v_and_b32 v{W+4+ci}, 0xffff0000, v{24+2*ci}")
            a(f"v_lshlrev_b32 v{W+8+ci}, 16, v{25+2*ci}")
            a(f"v_and_b32 v{W+12+ci}, 0xffff0000, v{25+2*ci}")
        for cp in range(2):
            for i in range(11):
                a(f"v_lshlrev_b32 v{KF+2*i}, 16, v{32+2*i+cp}")
                a(f"v_and_b32 v{KF+2*i+1}, 0xffff0000, v{32+2*i+cp}")
            for i in range(8):
                a(f"v_lshlrev_b32 v{VF+2*i}, 16, v{54+2*i+cp}")
                a(f"v_and_b32 v{VF+2*i+1}, 0xffff0000, v{54+2*i+cp}")
            for i in range(8):
                a(f"v_pk_mul_f32 {vr(KS+2*i,2)}, {vr(KF+2*i,2)}, {vr(W+12+2*cp,2)}")
            for j in (2, 1, 0):
                for i in range(8):
                    a(f"v_pk_fma_f32 {vr(KS+2*i,2)}, {vr(KF+2*(i+3-j),2)}, {vr(W+4*j+2*cp,2)}, {vr(KS+2*i,2)}")
            for i in range(8):
                a(f"v_pk_mul_f32 {vr(KS+2*i,2)}, {vr(KS+2*i,2)}, {vr(VF+2*i,2)}")
            O = 144 + 8 * cp
            for e in range(2):
                for i in range(4):
                    a(f"v_cvt_pk_bf16_f32 v{O+4*e+i}, v{KS+4*i+e}, v{KS+4*i+2+e}")
            for i in range(8):
                a(f"v_and_b32 v{O+i}, -2, v{O+i}")
            for e in range(2):
                a(f"buffer_store_dwordx4 {vr(O+4*e)}, v19, s[44:47], s62 offen sc1")
                a("s_add_u32 s62, s62, 4096")
    srd(a, 24, P_DBG, 256)
    srd(a, 32, P_OUT, 8 * MB)
    a("s_mov_b32 s40, 0")
    a("s_mov_b32 s42, 0")
    a("v_lshrrev_b32 v5, 1, v2")
    a("v_lshlrev_b32 v5, 7, v5")
    a("v_and_b32 v4, 1, v2")
    a("v_lshl_add_u32 v5, v4, 4, v5")
    a("v_mov_b32 v4, 0")
    a("buffer_load_dword v226, v4, s[24:27], 0 offen sc1")
    srd_off(a, 24, P_WS, WS_FLAG, 4096)
    a("v_lshlrev_b32 v6, 7, v15")
    a("v_lshl_add_u32 v6, v14, 4, v6")
    a("s_lshl_b32 s60, s15, 11")
    a("s_lshl_b32 s61, s15, 16")
    a(f"s_lshl_b32 s62, s36, {10 if BP else 11}")
    a("s_add_u32 s61, s61, s62")

    def flagcmp(r):
        for i in range(4):
            a(f"v_xor_b32 v{r+i}, v{r+i}, v226")
        a(f"v_or3_b32 v{r}, v{r}, v{r+1}, v{r+2}")
        a(f"v_or_b32 v{r}, v{r}, v{r+3}")
        a(f"v_cmp_ne_u32 vcc, 0, v{r}")

    def u_block(ret):
        a(f"s_add_u32 m0, s7, {CV_UB}")
        for c in range(4):
            a(f"buffer_load_dwordx4 v3, s[44:47], s71 offen offset:{1024*c} sc1 lds")
        a("s_mov_b32 s42, 1")
        a("s_waitcnt vmcnt(0) lgkmcnt(0)")
        lds_signal(a, 9, S_HU, 11)
        stamp(a, 3)
    a(f"s_mov_b32 s43, {RETRY_MAX}")
    a.label("K3_fp")
    a(f"buffer_load_dwordx4 {vr(24)}, v5, s[24:27], 0 offen sc1")
    a(f"buffer_load_dwordx4 {vr(28)}, v5, s[24:27], 0 offen offset:32 sc1")
    a("s_waitcnt vmcnt(0)")
    vm.q = []
    flagcmp(24)
    a("s_sub_u32 s43, s43, 1")
    a("s_cbranch_scc1 K3_fp_ok")
    a("s_cmp_eq_u64 vcc, 0")
    a("s_cbranch_scc1 K3_fp_ok")
    a("s_add_u32 s75, s75, 1")
    a("s_sleep 8")
    a("s_branch K3_fp")
    a.label("K3_fp_ok")
    if POSTPRE:
        a("s_mov_b64 exec, 1")
        a(f"ds_add_rtn_u32 v7, v10, v11 offset:{S_GO}")
        a("s_waitcnt lgkmcnt(0)")
        a("v_readfirstlane_b32 s43, v7")
        a("s_lshl_b32 s62, s11, 7")
        a("s_lshl_b32 s63, s10, 2")
        a("s_add_u32 s62, s62, s63")
        a("s_cmp_lg_u32 s43, 3")
        a("s_cbranch_scc1 K3_nof2")
        a("buffer_store_dword v226, v4, s[24:27], s62 offen offset:32 sc1")
        a.label("K3_nof2")
        a("s_mov_b64 exec, -1")
    stamp(a, 2)
    a("v_mov_b32 v4, s7")
    a(f"ds_read_u16 v7, v4 offset:{CV_HB}")
    a("v_lshlrev_b32 v164, 16, v164")
    a("s_waitcnt lgkmcnt(0)")
    a("v_lshlrev_b32 v7, 16, v7")
    a("v_add_f32 v7, v7, v164")
    a("v_cvt_pk_bf16_f32 v7, v7, v7")
    a(f"ds_write_b16 v4, v7 offset:{CV_HB}")
    flagcmp(28)
    a("s_cmp_lg_u64 vcc, 0")
    a("s_cbranch_scc1 K3_nou0")
    u_block(0)
    a.label("K3_nou0")
    if WAITKV:
        lds_wait(a, "K3_wkvs", 10, S_KVS, 2, 16, 62, sleep=1)
    PQR = 192

    def bulkA():
        for k in range(EARLYWO, 6):
            wo_issue(k)
        a("v_and_b32 v7, 31, v2")
        a("v_lshlrev_b32 v7, 11, v7")
        a(f"s_add_u32 s62, s69, {128*2048}")
        a("buffer_load_dword v165, v7, s[20:23], s62 offen")
        if CPOST:
            srd(a, 16, P_Q, 4 * MB)
            a("v_bfe_u32 v7, v2, 2, 3")
            a("v_lshlrev_b32 v7, 17, v7")
            a("v_and_b32 v8, 3, v2")
            a("v_lshl_add_u32 v7, v8, 11, v7")
            a("buffer_load_dword v165, v7, s[16:19], s64 offen")

    def pq_pick():
        a("s_lshl_b32 s43, s4, 12")
        a(f"s_add_u32 s43, s43, {PQ_BASE}")
        a("v_add_u32 v8, s43, v3")
        lds_wait(a, "K3_wpq", 9, S_PQ, 1, 16, 62, sleep=1)
        for mt in range(4):
            a(f"ds_read_b128 {vr(PQR+4*mt)}, v8 offset:{1024*mt}")
        a("s_waitcnt lgkmcnt(0)")

    if not ZFIRST:
        bulkA()
        pq_pick()
    if PG:
        vm.q = []
        a("s_setprio 2")
        a("s_mov_b32 s62, s61")
        for p in range(16):
            for dt in range(2):
                a(f"buffer_load_dwordx4 {vr(64+8*p+4*dt)}, v3, s[52:55], s62 offen offset:{1024*dt}{GSC}")
                vm.issue(("kv", p))
            a("s_add_u32 s62, s62, 4096")
    if not ZFIRST:
        wo_issue(6)
    if PG:
        if not QEARLY and not CPOST:
            q_loads()
        for i in range(8):
            a(f"v_mov_b32 v{56+i}, 0")
        a("s_mov_b32 s63, 0")
        for p in range(16):
            vm.wait_for([("kv", p)])
            r = 64 + 8 * p
            and_reduce(a, 16, range(r, r + 8))
            a("v_cmp_eq_u32 vcc, 0, v16")
            a(f"s_bitset1_b32 s63, {p}")
            a("s_cmp_lg_u64 vcc, 0")
            a(f"s_cbranch_scc1 K3_pg{p}")
            a(f"s_bitset0_b32 s63, {p}")
            for i in range(8):
                a(f"v_add_f32 v{56+i}, v{56+i}, v{r+i}")
            a.label(f"K3_pg{p}")
    a(f"s_mov_b32 s43, {RETRY_MAX}")
    a.label("K3_zp")
    for dt in range(2):
        a(f"buffer_load_dwordx4 {vr(32+4*dt)}, v6, s[56:59], s60 offen offset:{64*dt} sc1")
    a("s_cmp_lg_u32 s42, 0")
    a("s_cbranch_scc1 K3_zp_nf")
    a(f"buffer_load_dwordx4 {vr(28)}, v5, s[24:27], 0 offen offset:32 sc1")
    a("s_waitcnt vmcnt(0)")
    flagcmp(28)
    a("s_cmp_lg_u64 vcc, 0")
    a("s_cbranch_scc1 K3_zp_nf")
    u_block(1)
    a.label("K3_zp_nf")
    a(f"ds_read_b32 v17, v9 offset:{S_CD}")
    a("s_waitcnt vmcnt(0) lgkmcnt(0)")
    vm.q = []
    and_reduce(a, 16, range(32, 40))
    a("v_readfirstlane_b32 s41, v17")
    a("v_cmp_eq_u32 vcc, 0, v16")
    a("s_sub_u32 s43, s43, 1")
    a("s_cbranch_scc1 K3_zp_ok")
    a("s_cmp_eq_u64 vcc, 0")
    a("s_cbranch_scc1 K3_zp_ok")
    a("s_cmp_lg_u32 s40, 0")
    a("s_cbranch_scc1 K3_zp_s2")
    if QEARLY:
        a("s_cmp_lg_u32 s41, 0")
        a("s_cbranch_scc1 K3_post")
    a.label("K3_zp_s2")
    a(f"s_sleep {ZSLEEP}")
    a("s_branch K3_zp")
    a.label("K3_zp_ok")
    if PG:
        stamp(a, 4)
        a(f"s_mov_b32 s43, {RETRY_MAX}")
        a.label("K3_ml")
        a("s_cmp_eq_u32 s63, 0")
        a("s_cbranch_scc1 K3_ml_done")
        a("s_ff1_i32_b32 s41, s63")
        a("s_lshl_b32 s62, s41, 12")
        a("s_add_u32 s62, s62, s61")
        for dt in range(2):
            a(f"buffer_load_dwordx4 {vr(64+4*dt)}, v3, s[52:55], s62 offen offset:{1024*dt} sc1")
        a("s_add_u32 s75, s75, 1")
        a("s_waitcnt vmcnt(0)")
        and_reduce(a, 16, range(64, 72))
        a("v_cmp_eq_u32 vcc, 0, v16")
        a("s_sub_u32 s43, s43, 1")
        a("s_cbranch_scc1 K3_ml_done")
        a("s_cmp_lg_u64 vcc, 0")
        a("s_cbranch_scc1 K3_ml")
        a("s_bitset0_b32 s63, s41")
        for i in range(8):
            a(f"v_add_f32 v{56+i}, v{56+i}, v{64+i}")
        a("s_branch K3_ml")
        a.label("K3_ml_done")
        for i in range(8):
            a(f"v_add_f32_dpp v{40+i}, v{32+i}, v{32+i} row_ror:8 {DPP}")
        for sh in (4, 2, 1):
            for i in range(8):
                a(f"v_add_f32_dpp v{40+i}, v{40+i}, v{40+i} row_ror:{sh} {DPP}")
        for i in range(4):
            a(f"v_cvt_pk_bf16_f32 v{48+i}, v{40+2*i}, v{41+2*i}")
        for i in range(8):
            a(f"v_mov_b32 v{64+i}, v{56+i}")
    else:
        stamp(a, 4)
        a("s_setprio 2")
        a(f"s_mov_b32 s43, {RETRY_MAX}")
        def gloads(fl, track):
            a("s_mov_b32 s62, s61")
            for p in range(16):
                for dt in range(1 if BP else 2):
                    r = 96 + 4 * p if BP else 64 + 8 * p + 4 * dt
                    a(f"buffer_load_dwordx4 {vr(r)}, v3, s[52:55], s62 offen offset:{1024*dt}{fl}")
                    if track:
                        vm.issue(("kv", p))
                a("s_add_u32 s62, s62, 4096")
        gloads(GSC, True)
        if ZFIRST:
            bulkA()
            vm.issue("t")
        if not QEARLY and not CPOST:
            q_loads()
        a.label("K3_gl")
        for i in range(8):
            a(f"v_add_f32_dpp v{40+i}, v{32+i}, v{32+i} row_ror:8 {DPP}")
        for sh in (4, 2, 1):
            for i in range(8):
                a(f"v_add_f32_dpp v{40+i}, v{40+i}, v{40+i} row_ror:{sh} {DPP}")
        for i in range(4):
            a(f"v_cvt_pk_bf16_f32 v{48+i}, v{40+2*i}, v{41+2*i}")
        a("v_mov_b32 v16, 1")
        for p in range(16):
            vm.wait_for([("kv", p)])
            if BP:
                r = 96 + 4 * p
                for i in range(0, 4, 2):
                    a(f"v_bitop3_b32 v16, v16, v{r+i}, v{r+i+1} bitop3:0x80")
                t = 64 if p == 0 else 72
                for i in range(4):
                    a(f"v_lshlrev_b32 v{t+2*i}, 16, v{r+i}")
                    a(f"v_and_b32 v{t+2*i+1}, 0xffff0000, v{r+i}")
                if p >= 1:
                    for i in range(8):
                        a(f"v_add_f32 v{64+i}, v{64+i}, v{72+i}")
            else:
                r = 64 + 8 * p
                for i in range(0, 8, 2):
                    a(f"v_bitop3_b32 v16, v16, v{r+i}, v{r+i+1} bitop3:0x80")
                if p >= 1:
                    for i in range(8):
                        a(f"v_add_f32 v{64+i}, v{64+i}, v{r+i}")
        a("v_cmp_eq_u32 vcc, 0, v16")
        a("s_sub_u32 s43, s43, 1")
        a("s_cbranch_scc1 K3_gl_ok")
        a("s_cmp_eq_u64 vcc, 0")
        a("s_cbranch_scc1 K3_gl_ok")
        a("s_add_u32 s75, s75, 1")
        a("s_sleep 4")
        gloads(" sc1", False)
        a("s_waitcnt vmcnt(0)")
        a("s_branch K3_gl")
    a.label("K3_gl_ok")
    for i in range(4):
        a(f"v_cvt_pk_bf16_f32 v{40+i}, v{64+2*i}, v{65+2*i}")
    a("s_lshl_b32 s43, s4, 10")
    a(f"s_add_u32 s43, s43, {KVT}")
    a("v_add_u32 v5, s43, v3")
    a(f"ds_write_b128 v5, {vr(40)}")
    a("s_lshl_b32 s43, s37, 2")
    a("v_add_u32 v7, s43, v10")
    a("s_lshl_b32 s43, s37, 11")
    a(f"s_add_u32 s43, s43, {KVT}")
    a("v_add_u32 v5, s43, v3")
    a("s_waitcnt lgkmcnt(0)")
    lds_signal(a, 7, S_KVT, 11)
    if ZFIRST:
        pq_pick()
        wo_issue(6)
    lds_wait(a, "K3_wkt", 7, S_KVT, 2, 52, 60)
    a(f"ds_read_b128 {vr(40)}, v5")
    a(f"ds_read_b128 {vr(44)}, v5 offset:1024")
    a("s_waitcnt lgkmcnt(0)")
    stamp(a, 5)
    for mt in range(4):
        b = 64 + 12 * mt
        mfma16(a, b + 8, 48, PQR + 4 * mt, "0")
        mfma16(a, b, 40, PQR + 4 * mt, "0")
        mfma16(a, b + 4, 44, PQR + 4 * mt, "0")
    a("s_lshl_b32 s60, s12, 3")
    a("s_lshl_b32 s61, s36, 2")
    a("s_add_u32 s60, s60, s61")
    a("s_lshl_b32 s60, s60, 5")
    a("s_add_u32 s60, s60, s15")
    a("s_lshl_b32 s60, s60, 10")
    a(f"s_mov_b32 s61, {EPS}")
    for mt in range(4):
        a(f"v_add_f32 v{112+mt}, s61, v{64+12*mt+8}")
        a(f"v_rcp_f32 v{112+mt}, v{112+mt}")
    for mt in range(4):
        b = 64 + 12 * mt
        for i in range(8):
            a(f"v_mul_f32 v{b+i}, v{b+i}, v{112+mt}")
        for i in range(4):
            a(f"v_cvt_pk_bf16_f32 v{120+4*mt+i}, v{b+2*i}, v{b+2*i+1}")
        for i in range(4):
            a(f"v_or_b32 v{120+4*mt+i}, 1, v{120+4*mt+i}")
        a(f"buffer_store_dwordx4 {vr(120+4*mt)}, v3, s[48:51], s60 offen sc1")
        a("s_add_u32 s60, s60, 32768")
    a("s_setprio 0")
    stamp(a, 6)
    a(f"s_mov_b32 s43, {RETRY_MAX}")
    a("v_lshrrev_b32 v5, 1, v2")
    a("v_lshlrev_b32 v5, 7, v5")
    a("v_and_b32 v4, 1, v2")
    a("v_lshl_add_u32 v5, v4, 4, v5")
    a.label("K3_ul")
    a("s_cmp_lg_u32 s42, 0")
    a("s_cbranch_scc1 K3_ul_done")
    a(f"buffer_load_dwordx4 {vr(28)}, v5, s[24:27], 0 offen offset:32 sc1")
    a("s_waitcnt vmcnt(0)")
    flagcmp(28)
    a("s_sub_u32 s43, s43, 1")
    a("s_cbranch_scc1 K3_ul_go")
    a("s_cmp_eq_u64 vcc, 0")
    a("s_cbranch_scc1 K3_ul_go")
    a("s_sleep 4")
    a("s_branch K3_ul")
    a.label("K3_ul_go")
    u_block(2)
    a.label("K3_ul_done")
    a("s_and_b32 s60, s10, 3")
    a("s_lshl_b32 s60, s60, 2")
    a("s_and_b32 s61, s11, 3")
    a("s_add_u32 s60, s60, s61")
    a("s_lshl_b32 s60, s60, 18")
    a("s_lshr_b32 s61, s11, 2")
    a("s_lshl_b32 s61, s61, 2")
    a("s_add_u32 s61, s61, s4")
    a("s_lshl_b32 s61, s61, 13")
    a("s_add_u32 s63, s60, s61")
    a("v_lshlrev_b32 v8, 7, v2")
    a("s_waitcnt vmcnt(0)")
    a("buffer_load_dword v60, v8, s[48:51], s63 offen")
    a(f"s_waitcnt vmcnt({0 if TWAIT else 1})")
    lds_signal(a, 10, S_WOM, 11)
    lds_wait(a, "K3_wcd", 9, S_CD, 1, 16, 60, sleep=1)
    wo_issue(7)
    a("s_waitcnt vmcnt(0)")
    lds_signal(a, 10, S_WOT, 11)
    vm.q = []
    stamp(a, 7)
    a("s_cmp_eq_u32 s40, 1")
    a("s_cbranch_scc1 K3_fin")
    if CPOST:
        lds_wait(a, "K3_wg2", 9, S_G2, 1, 16, 60, sleep=2)
        a(f"ds_read_b32 v16, v9 offset:{S_PD}")
        a("s_waitcnt lgkmcnt(0)")
        a("v_readfirstlane_b32 s60, v16")
        a("s_cmp_lg_u32 s60, 0")
        a("s_cbranch_scc1 K3_fin")
        q_loads()
    if GS >= 0 and not CPOST:
        lds_wait(a, "K3_wg2", 9, S_G2, 1, 16, 60, sleep=2)
    a("s_mov_b32 s40, 2")
    if PDELAY:
        a(f"s_sleep {PDELAY}")
    a(f"s_mov_b32 s43, {RETRY_MAX}")
    a.label("K3_post")
    for ci, sr in enumerate((73, 65, 66, 67)):
        a(f"buffer_load_dwordx4 {vr(16+4*ci)}, v225, s[44:47], s{sr} offen sc1")
    a("s_waitcnt vmcnt(0)")
    and_reduce(a, 48, range(16, 32))
    a("v_cmp_eq_u32 vcc, 0, v48")
    a("s_cmp_eq_u64 vcc, 0")
    a("s_cbranch_scc1 K3_yok")
    a("s_add_u32 s75, s75, 1")
    a("s_cmp_eq_u32 s40, 0")
    a("s_cbranch_scc1 K3_zp_s2")
    if PREPOST:
        a("s_cmp_eq_u32 s40, 3")
        a("s_cbranch_scc1 K3_pw")
    a("s_sub_u32 s43, s43, 1")
    a("s_cbranch_scc1 K3_yok")
    a("s_sleep 8")
    a("s_branch K3_post")
    a.label("K3_yok")
    stamp(a, 8)
    post_compute(a, QR, False)
    a("s_mov_b32 s41, s40")
    a("s_mov_b32 s40, 1")
    a("s_cmp_eq_u32 s41, 0")
    a("s_cbranch_scc1 K3_zp")
    if PREPOST:
        a("s_cmp_eq_u32 s41, 3")
        a("s_cbranch_scc1 K3_pw")
    a.label("K3_fin")
    stamp_flush(a, 9)
    a.label("K3_end")
    a("s_endpgm")
    a.label("K3_code_end")
    return a.finalize(), 252
```

```python
import os
from asmlib import *
from common import prepass, k2_prefetch_setup, MB, vr, mfma16, phi8, unpack4, env, LOG2E, EPS, WS_KVP, WS_ZP, WS_FLAG, WS_UT, WS_DBG, STAMP

WS_OF = 0
NS = 4
STAGE = 40960
K3_LDS = NS * STAGE
CV32 = env("CV32", 0)
CV_REG = 8960 if CV32 else 8704
CV_HB = 64 if CV32 else 32
CV_UB = 4672 if CV32 else 4384
KVT = 4 * CV_REG
SYNC = KVT + 4096
WO_BASE = 40960
PQ_BASE = WO_BASE + 24 * 4096
XCH = WO_BASE + 28 * 4096
XCZ = SYNC + 256
S_KVS = 84
S_PD = 96
S_G2 = 112
S_OT = 128
S_X, S_HU, S_PQ, S_KVT, S_WOM, S_WOT, S_CD, S_GO, S_NONCE, S_WO2 = 0, 8, 24, 40, 48, 52, 56, 72, 76, 80
SPIN_MAX = 1 << 17
RETRY_MAX = 4000
DPP = "row_mask:0xf bank_mask:0xf"
DUTY0 = env("DUTY0", 0)
NDUTY = env("NDUTY", 4)
E2_0 = env("E2_0", 4)
E2_N = env("E2_N", 4)
E3_0 = env("E3_0", 8)
E3_N = env("E3_N", 4)
F1N = env("F1N", 11)
NLEAD = env("NLEAD", 4)
FLAGN = env("FLAGN", 12)
AINIT = env("AINIT", 12)
PDELAY = env("PDELAY", 0)
G2PRIO = env("G2PRIO", 1)
CPOST = env("CPOST", 0)
PG = env("PG", 0)
BP = env("BP", 1)
TWAIT = env("TWAIT", 1)
ZFIRST = env("ZFIRST", 0)
GS = env("GS", 16)
FILLC = env("FILLC", 0)
PRO = env("PRO", 3)
TRO = env("TRO", 1)
EARLYB = env("EARLYB", 1)
LFRONT = env("LFRONT", 0)
ALN = env("ALN", 0)
PW = env("PW", 0)
UTF = env("UTF", 0)
NTK = " nt" if env("NTK", 1) else ""
OS1 = env("OS1", " sc1")
OS2 = env("OS2", " sc1")
NPL = env("NPL", 2)
FL0 = env("FL0", 0)
PL0 = env("PL0", 4)
SPF_C = env("SPF_C", 0)
SPF_L = env("SPF_L", 0)
ADEPTH = env("ADEPTH", 16)
YDELAY = env("YDELAY", 8)
ZSLEEP = env("ZSLEEP", 10)
ATOUCH = env("ATOUCH", 1)
XP = env("XP", "23")
LATE = env("LATE", 1)
PREPOST = env("PREPOST", 0)
EARLYWO = env("EARLYWO", 4)
WAITKV = env("WAITKV", 1)
GSC = env("GSC", "")
QX = env("QX", 1)
PREC = env("PREC", 0)
L2PF = env("L2PF", 0)
TLBW = env("TLBW", 0)
CODEPF = env("CODEPF", 0)
DBGOUT = env("DBGOUT", 0)
NTF = " nt" if env("NTF", 0) else ""
NTG = " nt" if env("NTG", 0) else ""
NTO = " nt" if env("NTO", 1) else ""
NTT = " nt" if env("NTT", 0) else ""
NTS = " nt" if env("NTS", 0) else ""
E3W = env("E3W", 1)
QEARLY = env("QEARLY", 0)
POSTPRE = env("POSTPRE", 0)
ASC = env("ASC", "")
P_Q, P_K, P_V, P_SHK, P_H, P_D, P_X, P_W, P_WO, P_OUT, P_DBG, P_WS = [76 + 2 * i for i in range(12)]
SV = 231


def stamp(a, i):
    if STAMP:
        a("s_memrealtime s[100:101]")
        a("s_waitcnt lgkmcnt(0)")
        a(f"v_writelane_b32 v{SV}, s100, {i}")


def cstamp(a, i):
    if STAMP:
        a("s_memtime s[100:101]")
        a("s_waitcnt lgkmcnt(0)")
        a(f"v_writelane_b32 v{SV}, s100, {i}")


def stamp_flush(a, n):
    if not STAMP:
        return
    a("s_mov_b64 exec, -1")
    a("s_waitcnt vmcnt(0)")
    stamp(a, n)
    a(f"v_writelane_b32 v{SV}, s75, 15")
    if DBGOUT:
        lab = "K3_dbg%d" % len(a.ins)
        a(f"s_cmp_lg_u32 s2, {DBGOUT-1}")
        a(f"s_cbranch_scc1 {lab}")
        a("s_cmp_lg_u32 s4, 0")
        a(f"s_cbranch_scc1 {lab}")
        srd(a, 16, P_DBG, 256)
        a(f"v_readlane_b32 s20, v{SV}, 0")
        a("s_lshr_b32 s21, s3, 1")
        a("v_lshlrev_b32 v0, 2, v2")
        a(f"v_subrev_u32 v1, s20, v{SV}")
        a("s_mov_b64 exec, 0x3fe")
        a("buffer_store_short v1, v0, s[16:19], s21 offen")
        a("s_mov_b64 exec, -1")
        a.label(lab)
    srd_off(a, 16, P_WS, WS_DBG, 4 * MB)
    a("s_add_u32 s20, s2, 512")
    a("s_lshl_b32 s20, s20, 4")
    a("s_add_u32 s20, s20, s3")
    a("s_lshl_b32 s20, s20, 6")
    a("v_lshlrev_b32 v0, 2, v2")
    a("s_mov_b64 exec, 0xffff")
    a(f"buffer_store_dword v{SV}, v0, s[16:19], s20 offen")


def lds_wait(a, name, vaddr, off, val, vtmp, stmp, sleep=0):
    a(f"s_mov_b32 s{stmp+1}, {SPIN_MAX}")
    a.label(name)
    if sleep:
        a(f"s_sleep {sleep}")
    a(f"ds_read_b32 v{vtmp}, v{vaddr} offset:{off}")
    a("s_waitcnt lgkmcnt(0)")
    a(f"v_readfirstlane_b32 s{stmp}, v{vtmp}")
    a(f"s_sub_u32 s{stmp+1}, s{stmp+1}, 1")
    a(f"s_cbranch_scc1 {name}_ok")
    a(f"s_cmp_lt_u32 s{stmp}, {val}")
    a(f"s_cbranch_scc1 {name}")
    a.label(name + "_ok")


def lds_signal(a, vaddr, off, vone):
    a("s_mov_b64 exec, 1")
    a(f"ds_add_u32 v{vaddr}, v{vone} offset:{off}")
    a("s_mov_b64 exec, -1")


def and_reduce(a, dst, regs):
    regs = list(regs)
    a(f"v_bitop3_b32 v{dst}, v{regs[0]}, v{regs[1]}, 1 bitop3:0x80")
    i = 2
    while i + 1 < len(regs):
        a(f"v_bitop3_b32 v{dst}, v{dst}, v{regs[i]}, v{regs[i+1]} bitop3:0x80")
        i += 2
    if i < len(regs):
        a(f"v_and_b32 v{dst}, v{dst}, v{regs[i]}")


def post_compute(a, QR, pk):
    for jj in range(8):
        T = 48 + 8 * (jj & 1)
        for ci in range(4):
            if jj & 1:
                a(f"v_and_b32 v{T+ci}, 0xffff0000, v{16+4*ci+jj//2}")
            else:
                a(f"v_lshlrev_b32 v{T+ci}, 16, v{16+4*ci+jj//2}")
        for cp in range(2):
            a(f"v_lshlrev_b32 v{T+4+2*cp}, 16, v{QR+2*jj+cp}")
            a(f"v_and_b32 v{T+5+2*cp}, 0xffff0000, v{QR+2*jj+cp}")
        if pk:
            for cp in range(2):
                a(f"v_pk_mul_f32 {vr(T+2*cp,2)}, {vr(T+2*cp,2)}, {vr(T+4+2*cp,2)}")
        else:
            for ci in range(4):
                a(f"v_mul_f32 v{T+ci}, v{T+ci}, v{T+4+ci}")
        O = 64 + 2 * jj
        for cp in range(2):
            a(f"v_cvt_pk_bf16_f32 v{O+cp}, v{T+2*cp}, v{T+2*cp+1}")
        a(f"buffer_store_dwordx2 {vr(O,2)}, v224, s[32:35], s72 offen{NTS}{OS1}")
        a(f"s_add_u32 s72, s72, {64*4096}")


def conv32(a, lg, PK):
    FU, HR, NH = 96, 16, 4
    ACCS = [[32, 48], [64, 80]]
    T2, T1, YV, R3PREV = [224, 225], [226, 227], [228, 229], 230

    def epilogue_ops(p):
        ops = []
        for ql in range(8):
            Q = 8 * p + ql
            acc = ACCS[p & 1][ql // 4] + 4 * (ql % 4)
            R0, R1, R2, R3 = acc, acc + 1, acc + 2, acc + 3
            cur, prv = Q & 1, (Q & 1) ^ 1
            r3p = R3PREV if ql == 0 else ACCS[p & 1][(ql - 1) // 4] + 4 * ((ql - 1) % 4) + 3
            if Q == 0:
                ops.append(f"v_add_f32_dpp v{T2[cur]}, v{R3}, v{R2} wave_shr:1 {DPP} bound_ctrl:0")
                ops.append(f"v_add_f32_dpp v{T1[cur]}, v{T2[cur]}, v{R1} wave_shr:1 {DPP} bound_ctrl:0")
                ops.append(f"v_add_f32_dpp v{YV[cur]}, v{T1[cur]}, v{R0} wave_shr:1 {DPP} bound_ctrl:0")
            else:
                ops.append(f"v_add_f32_dpp v{T2[cur]}, v{r3p}, v{R2} wave_ror:1 {DPP}")
                ops.append(f"v_add_f32_dpp v{T1[cur]}, v{T2[prv]}, v{R1} wave_ror:1 {DPP}")
                ops.append(f"v_add_f32_dpp v{YV[cur]}, v{T1[prv]}, v{R0} wave_ror:1 {DPP}")
                ops.append(f"v_add_f32_dpp v{T2[cur]}, v{R3}, v{R2} wave_shr:1 {DPP}")
                ops.append(f"v_add_f32_dpp v{T1[cur]}, v{T2[cur]}, v{R1} wave_shr:1 {DPP}")
                ops.append(f"v_add_f32_dpp v{YV[cur]}, v{T1[cur]}, v{R0} wave_shr:1 {DPP}")
            if ql & 1:
                d = PK[p] + ql // 2
                ops.append(f"v_cvt_pk_bf16_f32 v{d}, v{YV[0]}, v{YV[1]}")
                ops.append(f"v_or_b32 v{d}, 1, v{d}")
            if ql == 7:
                ops.append(f"v_mov_b32 v{R3PREV}, v{R3}")
        return ops

    steps = [(p, t) for p in range(4) for t in range(8 * p + 8)]
    issued = set()
    hslot = {}

    def issue_h(idx):
        p, t = steps[idx]
        slot = idx % NH
        hslot[idx] = slot
        for h in range(2):
            a(f"ds_read_b64_tr_b16 {vr(HR+4*slot+2*h,2)}, v12 offset:{128*t+32*(1-h)}")
            lg.issue(("h", slot))

    def issue_fu(s):
        if s in issued:
            return
        issued.add(s)
        for h in range(2):
            a(f"ds_read_b64_tr_b16 {vr(FU+4*(s+3)+2*h,2)}, v13 offset:{128*(s+3)+32*h}")
            lg.issue(("fu", s))

    def need(idx):
        p, t = steps[idx]
        r = [8 * p + 4 - t]
        if t <= 8 * p + 3:
            r.append(8 * p - t)
        return r

    PRE = 3
    for idx in range(PRE):
        for s in need(idx):
            issue_fu(s)
        issue_h(idx)
    pending = []
    for idx, (p, t) in enumerate(steps):
        if t == 0 and p > 0:
            assert not pending
            pending = epilogue_ops(p - 1)
        slot = hslot[idx]
        lg.wait_for([("h", slot)] + [("fu", s) for s in need(idx)])
        mf = [(1, 8 * p + 4 - t)]
        if t <= 8 * p + 3:
            mf.append((0, 8 * p - t))
        for k, (tile, s) in enumerate(mf):
            d = ACCS[p & 1][tile]
            cs = "0" if t == 0 else vr(d, 16)
            a(f"v_mfma_f32_32x32x16_bf16 {vr(d,16)}, {vr(FU+4*(s+3))}, {vr(HR+4*slot)}, {cs}")
            if k == 0 and idx + PRE < len(steps):
                for s2 in need(idx + PRE):
                    issue_fu(s2)
                issue_h(idx + PRE)
            if pending and t >= 2:
                for _ in range(3):
                    if pending:
                        a(pending.pop(0))
    assert not pending
    for op in epilogue_ops(3):
        a(op)


def gen_k3():
    a = Asm()
    a.label("K3_code_begin")
    a("s_cmp_ge_u32 s2, 256")
    a("s_cbranch_scc1 K3_end")
    a("s_load_dwordx8 s[84:91], s[0:1], 32")
    a("s_load_dwordx8 s[92:99], s[0:1], 64")
    a("s_load_dwordx8 s[76:83], s[0:1], 0")
    a("v_lshrrev_b32 v1, 6, v0")
    a("v_and_b32 v2, 63, v0")
    a("s_and_b32 s10, s2, 7")
    a("v_readfirstlane_b32 s3, v1")
    a("s_lshr_b32 s11, s2, 3")
    a("s_and_b32 s12, s10, 1")
    a("s_lshl_b32 s12, s12, 3")
    a("s_and_b32 s13, s11, 7")
    a("s_add_u32 s12, s12, s13")
    a("s_lshr_b32 s13, s10, 1")
    a("s_lshl_b32 s13, s13, 2")
    a("s_lshr_b32 s14, s11, 3")
    a("s_add_u32 s13, s13, s14")
    a("s_mov_b32 s75, 0")
    a("s_and_b32 s4, s3, 3")
    a("s_and_b32 s36, s3, 1")
    a("s_bfe_u32 s37, s3, 0x10001")
    a("s_lshl_b32 s5, s13, 1")
    a("s_add_u32 s5, s5, s37")
    a(f"s_xor_b32 s15, s5, {2 if QX else 0}")
    a("s_lshl_b32 s6, s10, 7")
    a("s_lshl_b32 s7, s11, 2")
    a("s_add_u32 s6, s6, s7")
    a("s_add_u32 s6, s6, s4")
    a(f"s_mul_i32 s7, s4, {CV_REG}")
    a("v_lshlrev_b32 v3, 4, v2")
    a("v_lshrrev_b32 v14, 4, v2")
    a("v_and_b32 v15, 15, v2")
    spf = []
    if not EARLYB:
        a("s_waitcnt lgkmcnt(0)")
        stamp(a, 0)
    if LFRONT:
        a("s_cmp_lt_u32 s3, 4")
        a("s_cbranch_scc1 K3_C")
        mark = len(a.ins)
        a.label("K3_C")
    else:
        a("s_cmp_ge_u32 s3, 4")
        a("s_cbranch_scc1 K3_L")
    if EARLYB:
        a("s_waitcnt lgkmcnt(0)")
        stamp(a, 0)

    if L2PF:
        srd(a, 40, P_X, 4 * MB)
        srd(a, 48, P_W, 6 * MB)
        a("v_lshrrev_b32 v192, 3, v2")
        a("v_lshlrev_b32 v192, 11, v192")
        a("v_and_b32 v16, 7, v2")
        a("v_lshl_add_u32 v192, v16, 7, v192")
        a("s_and_b32 s44, s10, 1")
        a("s_lshl_b32 s44, s44, 21")
        a("s_lshl_b32 s45, s11, 16")
        a("s_add_u32 s44, s44, s45")
        a("s_lshl_b32 s45, s3, 14")
        a("s_add_u32 s44, s44, s45")
        a(f"buffer_load_dword v195, v192, s[40:43], s44 offen{NTT}")
        a("v_lshrrev_b32 v193, 2, v2")
        a("v_mul_u32_u24 v193, 6144, v193")
        a("v_and_b32 v16, 3, v2")
        a("v_lshl_add_u32 v193, v16, 7, v193")
        a("s_mul_i32 s45, s11, 98304")
        a("s_lshl_b32 s46, s3, 11")
        a("s_add_u32 s45, s45, s46")
        a("s_lshr_b32 s46, s10, 1")
        a("s_lshl_b32 s46, s46, 9")
        a("s_add_u32 s45, s45, s46")
        a("s_cmp_eq_u32 s3, 3")
        a(f"s_cselect_b32 s45, {16*MB}, s45")
        a(f"buffer_load_dword v195, v193, s[48:51], s45 offen{NTT}")
        a("s_add_u32 s44, s44, 1024")
        a(f"s_add_u32 s45, s45, {512*6144}")
    else:
        a("s_cmp_lg_u32 s3, 0")
        a("s_cbranch_scc1 K3_pfw")
        srd(a, 40, P_X, 4 * MB)
        a("v_lshrrev_b32 v192, 3, v2")
        a("v_lshlrev_b32 v192, 11, v192")
        a("v_and_b32 v16, 7, v2")
        a("v_lshl_add_u32 v192, v16, 7, v192")
        a("s_lshl_b32 s45, s2, 14")
        a("s_add_u32 s44, s45, 1024")
        a("s_branch K3_pfd")
        a.label("K3_pfw")
        srd(a, 40, P_W, 6 * MB)
        a("v_lshlrev_b32 v192, 7, v2")
        a("s_mul_i32 s45, s2, 12288")
        a("s_sub_u32 s44, s3, 1")
        a("s_lshl_b32 s44, s44, 12")
        a("s_add_u32 s45, s45, s44")
        a(f"s_add_u32 s44, s45, {3*MB}")
        a("s_cmp_eq_u32 s3, 3")
        a(f"s_cselect_b32 s45, {8*MB}, s45")
        a(f"s_cselect_b32 s44, {8*MB}, s44")
        a.label("K3_pfd")
        if "1" in XP:
            a(f"s_mov_b32 s45, {16*MB}")
            a(f"s_mov_b32 s44, {16*MB}")
        a(f"buffer_load_dword v195, v192, s[40:43], s45 offen{NTT}")
    srd(a, 56, P_DBG, 256)
    srd_off(a, 60, P_WS, WS_FLAG, 4096)
    a("s_memrealtime s[16:17]")
    a("v_mov_b32 v199, 0")
    a("s_waitcnt lgkmcnt(0)")
    a("s_or_b32 s16, s16, 1")
    a("v_mov_b32 v198, s16")
    a("s_cmp_lg_u32 s3, 3")
    a("s_cbranch_scc1 K3_noseed")
    a("s_cmp_lg_u32 s11, 0")
    a("s_cbranch_scc1 K3_noseed")
    a("v_mov_b32 v196, s16")
    a("v_mov_b32 v197, 0")
    a("s_mov_b64 exec, 1")
    a("buffer_atomic_cmpswap v[196:197], v199, s[56:59], 0 offen sc1")
    a("s_mov_b64 exec, -1")
    a.label("K3_noseed")
    if CODEPF:
        a("s_cmp_lg_u32 s3, 3")
        a("s_cbranch_scc1 K3_nocpf")
        a(f"s_cmp_ge_u32 s11, {CODEPF}")
        a("s_cbranch_scc1 K3_nocpf")
        a("s_getpc_b64 s[16:17]")
        a.label("K3_pc")
        a("s_sub_u32 s16, s16, K3_pc-K3_code_begin")
        a("s_subb_u32 s17, s17, 0")
        a("s_mov_b32 s18, K3_code_end-K3_code_begin")
        a("s_mov_b32 s19, 0x20000")
        a("v_lshlrev_b32 v16, 7, v2")
        for i in range(6):
            a(f"s_mov_b32 s20, {8192*i}")
            a("buffer_load_dword v195, v16, s[16:19], s20 offen")
        a.label("K3_nocpf")
    if TLBW:
        a("s_cmp_lg_u32 s3, 3")
        a("s_cbranch_scc1 K3_notlb")
        a(f"s_cmp_ge_u32 s11, {TLBW}")
        a("s_cbranch_scc1 K3_notlb")
        a("v_lshlrev_b32 v16, 16, v2")
        for p, nb, offs in ((P_K, 4, (0,)), (P_V, 4, (0,)), (P_H, 4, (0,)), (P_Q, 4, (0,)), (P_WO, 2, (0,)), (P_OUT, 8, (0, 4)), (P_WS, 20, (0, 8, 12, 16))):
            srd(a, 16, p, nb * MB)
            for o in offs:
                a(f"s_mov_b32 s20, {o*MB}")
                a("buffer_load_dword v195, v16, s[16:19], s20 offen nt")
        a.label("K3_notlb")
    a("s_lshl_b32 s46, s11, 7")
    a("s_lshl_b32 s47, s10, 2")
    a("s_add_u32 s47, s47, s46")
    if PREC:
        pre_compute = prepass(a, 3, P_K, P_V, P_SHK, " sc1", P_WS, NTO)
    if not L2PF:
        a("s_cmp_ge_u32 s3, 2")
        a(f"s_cselect_b32 s48, s{P_V}, s{P_K}")
        a(f"s_cselect_b32 s49, s{P_V+1}, s{P_K+1}")
        a(f"s_mov_b32 s50, {4*MB}")
        a("s_mov_b32 s51, 0x20000")
        a("v_lshrrev_b32 v193, 2, v2")
        a("v_lshlrev_b32 v193, 11, v193")
        a("v_and_b32 v16, 3, v2")
        a("v_lshl_add_u32 v193, v16, 7, v193")
        a("s_lshr_b32 s45, s2, 2")
        a("s_lshl_b32 s45, s45, 16")
        a("s_lshl_b32 s46, s36, 15")
        a("s_add_u32 s45, s45, s46")
        a("s_and_b32 s46, s2, 3")
        a("s_lshl_b32 s46, s46, 9")
        a("s_add_u32 s45, s45, s46")
        if "2" in XP:
            a(f"s_mov_b32 s45, {16*MB}")
    a("v_mov_b32 v200, v15")
    for part in range(4):
        if part < 3:
            a(f"s_cmp_lg_u32 s3, {part}")
            a(f"s_cbranch_scc1 K3_e3_{part+1}")
        k2_prefetch_setup(a, part, 194, 64, 68, P_H, P_Q, P_WO)
        if part < 3:
            a("s_branch K3_e3_done")
            a.label(f"K3_e3_{part+1}")
    a.label("K3_e3_done")
    a("v_mov_b32 v15, v200")
    a(f"s_and_b32 s55, s11, {NDUTY-1}")
    a(f"s_add_u32 s55, s55, {DUTY0}")
    a(f"s_and_b32 s52, s11, {E2_N-1}")
    a(f"s_add_u32 s52, s52, {E2_0}")
    a("s_sub_u32 s52, s52, s55")
    a("s_sub_u32 s52, s52, 1")
    a("s_mov_b32 s54, 0")
    a("s_lshr_b32 s70, s11, 2")
    a(f"s_and_b32 s70, s70, {E3_N-1}")
    a(f"s_add_u32 s70, s70, {E3_0 if '3' not in XP else 1000}")
    if E3W:
        a("s_cmp_lt_u32 s3, 2")
        a("s_cselect_b32 s70, 1000, s70")
    a("s_cmp_eq_u32 s3, 3")
    a(f"s_cselect_b32 s71, {F1N-NLEAD}, 1000")
    a("s_mov_b32 s53, 0")
    if PREC:
        pre_compute()
    if FILLC:
        srd_off(a, 16, P_WS, WS_OF, 4 * MB)
        srd_off(a, 20, P_WS, WS_KVP, 2 * MB)
        srd_off(a, 24, P_WS, WS_ZP, 64 * 1024)
        a("s_lshl_b32 s28, s12, 3")
        a("s_lshl_b32 s29, s4, 1")
        a("s_add_u32 s28, s28, s29")
        a("s_lshl_b32 s28, s28, 15")
        a("s_lshr_b32 s29, s15, 1")
        a("s_lshl_b32 s29, s29, 11")
        a("s_add_u32 s28, s28, s29")
        a("s_add_u32 s29, s28, 32768")
        a("s_lshl_b32 s30, s5, 4")
        a("s_add_u32 s30, s30, s12")
        a("s_lshl_b32 s31, s30, 7")
        a("s_lshl_b32 s30, s30, 12")
        a("s_lshl_b32 s32, s36, 10")
        a("s_add_u32 s30, s30, s32")
        for i in range(4):
            a(f"v_mov_b32 v{20+i}, 0")
        a("v_and_b32 v18, 7, v2")
        a("v_lshlrev_b32 v18, 4, v18")
        a("buffer_store_dwordx4 v[20:23], v3, s[16:19], s28 offen sc1")
        a("buffer_store_dwordx4 v[20:23], v3, s[16:19], s28 offen offset:1024 sc1")
        a("buffer_store_dwordx4 v[20:23], v3, s[16:19], s29 offen sc1")
        a("buffer_store_dwordx4 v[20:23], v3, s[16:19], s29 offen offset:1024 sc1")
        a("buffer_store_dwordx4 v[20:23], v3, s[20:23], s30 offen sc1")
        a("buffer_store_dwordx4 v[20:23], v18, s[24:27], s31 offen sc1")
    a("s_lshl_b32 s38, s36, 6")
    a("v_add_u32 v16, s38, v15")
    a("v_lshrrev_b32 v17, 1, v15")
    a("v_lshlrev_b32 v16, 7, v16")
    a("v_xor_b32 v17, v14, v17")
    a("v_lshl_add_u32 v4, v17, 4, v16")
    a("v_xor_b32 v5, 64, v4")
    a(f"v_add_u32 v6, {2*STAGE}, v4")
    a(f"v_add_u32 v7, {2*STAGE}, v5")
    a("v_bfe_u32 v17, v2, 2, 2")
    a("v_and_b32 v18, 3, v2")
    a("v_lshlrev_b32 v17, 6, v17")
    a("v_lshl_add_u32 v17, v18, 3, v17")
    a("v_and_b32 v18, 1, v14")
    a("v_lshl_add_u32 v17, v18, 10, v17")
    a("v_lshl_add_u32 v17, v18, 5, v17")
    a("v_lshrrev_b32 v18, 1, v14")
    a("v_mul_u32_u24 v18, 6144, v18")
    a("v_add_u32 v17, v17, v18")
    a("s_lshl_b32 s38, s37, 8")
    a("s_add_u32 s38, s38, 16384")
    a("v_add_u32 v8, s38, v17")
    a("v_xor_b32 v9, 32, v8")
    a(f"v_add_u32 v10, {2*STAGE}, v8")
    a(f"v_add_u32 v11, {2*STAGE}, v9")
    SB = [16, 56]

    def accr(kind, mt, dt):
        return 96 + 32 * kind + (mt * 2 + dt) * 4

    for i in range(96, 192):
        a(f"v_mov_b32 v{i}, 0")
    for op in spf[:SPF_C]:
        a(op)
    a("s_waitcnt lgkmcnt(0)")
    srd_off(a, 28, P_WS, WS_KVP, 2 * MB)
    srd_off(a, 32, P_WS, WS_ZP, 64 * 1024)
    lg = Cnt(a, "lgkmcnt", 15)

    def reads(slot, t, st):
        sb = (slot & 1) * STAGE
        va = 4 + t + (2 if slot >= 2 else 0)
        vb = 10 if slot >= 2 else 8
        R = SB[st]

        def A(mt):
            return [(("A", mt, st), f"ds_read_b128 {vr(R+4*mt)}, v{va} offset:{sb + 2048*mt}")]

        def B(cb):
            seg, nh = cb // 2, cb % 2
            return [(("B", cb, st), f"ds_read_b64_tr_b16 {vr(R+16+4*cb+2*h,2)}, v{vb+nh} offset:{sb + t*12288 + seg*2048 + 512*h}") for h in range(2)]
        return A(0) + B(0) + A(1) + A(2) + A(3) + B(1) + B(2) + B(3) + B(4) + B(5)

    def group(st, nxt):
        R = SB[st]
        nxt = list(nxt)
        for cb in range(6):
            kind, dt = cb // 2, cb % 2
            for mt in range(4):
                lg.wait_for([("A", mt, st), ("B", cb, st)])
                fa, fb = R + 4 * mt, R + 16 + 4 * cb
                if kind == 0:
                    mfma16(a, accr(0, mt, dt), fb, fa)
                else:
                    mfma16(a, accr(kind, mt, dt), fa, fb)
                if nxt:
                    tag, txt = nxt.pop(0)
                    a(txt)
                    lg.issue(tag)

    a("s_barrier")
    stamp(a, 1)
    cstamp(a, 10)
    for tag, txt in reads(0, 0, 0):
        a(txt)
        lg.issue(tag)
    lg.drain()
    a("s_mov_b32 s39, 4")
    if ALN:
        a(".p2align 6")
        if ALN == 2:
            a("s_nop 0")
    a.label("K3_loop")
    for slot in range(4):
        group(0, reads(slot, 1, 1))
        lg.drain()
        a("s_barrier")
        a("s_sub_u32 s55, s55, 1")
        a(f"s_cbranch_scc1 K3_event{slot}")
        a.label(f"K3_noev{slot}")
        a("s_sub_u32 s70, s70, 1")
        a(f"s_cbranch_scc1 K3_evB{slot}")
        a.label(f"K3_noevB{slot}")
        a("s_sub_u32 s71, s71, 1")
        a(f"s_cbranch_scc1 K3_evC{slot}")
        a.label(f"K3_noevC{slot}")
        group(1, reads((slot + 1) % 4, 0, 0))
        if slot == 3:
            a("s_sub_u32 s39, s39, 1")
            a("s_cmp_lg_u32 s39, 0")
            lg.drain()
    a("s_cbranch_scc1 K3_loop")
    stamp(a, 2)
    cstamp(a, 11)

    a(f"s_mov_b32 s44, {LOG2E}")
    a(f"s_mov_b32 s45, {LOG2E}")
    a(f"s_mov_b32 s46, {EPS}")
    a(f"s_mov_b32 s47, {EPS}")
    a(f"v_mov_b32 v10, {SYNC}")
    a("v_mov_b32 v11, 1")
    for et in range(2):
        for m in range(2):
            d = 16 + 4 * (2 * et + m)
            for hh in range(2):
                s = accr(2, 2 * m + hh, et)
                a(f"v_cvt_pk_bf16_f32 v{d+2*hh}, v{s}, v{s+1}")
                a(f"v_cvt_pk_bf16_f32 v{d+2*hh+1}, v{s+2}, v{s+3}")
    for i in range(4):
        a(f"v_mov_b32 v{48+i}, 0x3f803f80")
    KV, ZZ, T = 160, 176, 52
    for m in range(2):
        for dt in range(2):
            for hh in range(2):
                s = accr(1, 2 * m + hh, dt)
                a(f"v_cvt_pk_bf16_f32 v{T+2*hh}, v{s}, v{s+1}")
                a(f"v_cvt_pk_bf16_f32 v{T+2*hh+1}, v{s+2}, v{s+3}")
            unpack4(a, T, T)
            kf = 32 + 4 * (2 * dt + m)
            phi8(a, T, kf, 44, 46)
            for et in range(2):
                mfma16(a, KV + 4 * (2 * et + dt), kf, 16 + 4 * (2 * et + m), "0" if m == 0 else None)
            mfma16(a, ZZ + 4 * dt, kf, 48, "0" if m == 0 else None)
    a("s_lshl_b32 s43, s37, 12")
    a(f"s_add_u32 s43, s43, {XCH}")
    a("v_add_u32 v4, s43, v3")
    a("s_lshl_b32 s43, s37, 7")
    a(f"s_add_u32 s43, s43, {XCZ}")
    a("v_lshlrev_b32 v5, 5, v14")
    a("v_add_u32 v5, s43, v5")
    a("s_lshl_b32 s43, s37, 2")
    a("v_add_u32 v6, s43, v10")
    a("s_cmp_eq_u32 s36, 0")
    a("s_cbranch_scc1 K3_wr0")
    for qd in range(4):
        a(f"ds_write_b128 v4, {vr(KV+4*qd)} offset:{1024*qd}")
    for dt in range(2):
        a(f"ds_write_b128 v5, {vr(ZZ+4*dt)} offset:{16*dt}")
    a("s_waitcnt lgkmcnt(0)")
    lds_signal(a, 6, S_X, 11)
    a("s_branch K3_q")
    a.label("K3_wr0")
    a("s_lshl_b32 s48, s5, 4")
    a("s_add_u32 s48, s48, s12")
    a("s_lshl_b32 s49, s48, 12")
    a("s_lshl_b32 s50, s48, 7")
    a("v_lshlrev_b32 v7, 4, v14")
    lds_wait(a, "K3_wx", 6, S_X, 1, 8, 42)
    for qd in range(4):
        a(f"ds_read_b128 {vr(16+4*qd)}, v4 offset:{1024*qd}")
    for dt in range(2):
        a(f"ds_read_b128 {vr(32+4*dt)}, v5 offset:{16*dt}")
    for qd in range(6):
        a(f"s_waitcnt lgkmcnt({5-qd})")
        a(f"v_pk_add_f32 {vr(KV+4*qd,2)}, {vr(KV+4*qd,2)}, {vr(16+4*qd,2)}")
        a(f"v_pk_add_f32 {vr(KV+4*qd+2,2)}, {vr(KV+4*qd+2,2)}, {vr(16+4*qd+2,2)}")
        if BP and qd < 4:
            d = 40 + 2 * qd
            a(f"v_cvt_pk_bf16_f32 v{d}, v{KV+4*qd}, v{KV+4*qd+1}")
            a(f"v_cvt_pk_bf16_f32 v{d+1}, v{KV+4*qd+2}, v{KV+4*qd+3}")
            a(f"v_or_b32 v{d}, 1, v{d}")
            a(f"v_or_b32 v{d+1}, 1, v{d+1}")
            if qd & 1:
                a(f"buffer_store_dwordx4 {vr(d-2)}, v3, s[28:31], s49 offen offset:{1024*(qd//2)} sc1")
            continue
        for i in range(4):
            a(f"v_or_b32 v{KV+4*qd+i}, 1, v{KV+4*qd+i}")
        if qd < 4:
            a(f"buffer_store_dwordx4 {vr(KV+4*qd)}, v3, s[28:31], s49 offen offset:{1024*qd} sc1")
    a("s_mov_b32 exec_lo, 0x00010001")
    a("s_mov_b32 exec_hi, 0x00010001")
    for dt in range(2):
        a(f"buffer_store_dwordx4 {vr(ZZ+4*dt)}, v7, s[32:35], s50 offen offset:{64*dt} sc1")
    a("s_mov_b64 exec, -1")
    lds_signal(a, 10, S_KVS, 11)
    a.label("K3_q")
    stamp(a, 3)
    a("s_lshl_b32 s43, s3, 12")
    a(f"s_add_u32 s43, s43, {PQ_BASE}")
    a("v_add_u32 v4, s43, v3")
    for mt in range(4):
        d = 80 + 4 * mt
        for dt in range(2):
            sr = accr(0, mt, dt)
            a(f"v_cvt_pk_bf16_f32 v{T+2*dt}, v{sr}, v{sr+1}")
            a(f"v_cvt_pk_bf16_f32 v{T+2*dt+1}, v{sr+2}, v{sr+3}")
        unpack4(a, T, T)
        phi8(a, T, d, 44, 46)
        a(f"ds_write_b128 v4, {vr(d)} offset:{1024*mt}")
    a("s_lshl_b32 s43, s3, 2")
    a("v_add_u32 v9, s43, v10")
    if CV32:
        a("v_and_b32 v6, 3, v2")
        a("v_bfe_u32 v7, v2, 2, 2")
        a("v_bfe_u32 v4, v2, 4, 1")
        a("v_lshrrev_b32 v5, 5, v2")
        a("v_lshlrev_b32 v12, 5, v4")
        a("v_lshl_add_u32 v12, v6, 3, v12")
        a("v_lshl_add_u32 v12, v5, 6, v12")
        a("v_lshlrev_b32 v7, 3, v7")
        a("v_sub_u32 v12, v12, v7")
        a("s_add_u32 s43, s7, 32")
        a("v_add_u32 v12, s43, v12")
        a("v_lshlrev_b32 v13, 8, v4")
        a("v_lshl_add_u32 v13, v6, 6, v13")
        a("v_add_u32 v13, v13, v7")
        a("v_lshlrev_b32 v5, 6, v5")
        a("v_sub_u32 v13, v13, v5")
        a(f"s_add_u32 s43, s7, {CV_UB-384}")
        a("v_add_u32 v13, s43, v13")
    else:
        a("v_and_b32 v6, 3, v2")
        a("v_bfe_u32 v7, v2, 2, 2")
        a("v_add_u32 v12, v6, v7")
        a("v_lshlrev_b32 v12, 3, v12")
        a("v_lshl_add_u32 v12, v14, 6, v12")
        a(f"s_add_u32 s43, s7, {CV_HB-24}")
        a("v_add_u32 v12, s43, v12")
        a("v_lshlrev_b32 v13, 5, v6")
        a("v_lshlrev_b32 v7, 3, v7")
        a("v_sub_u32 v13, v13, v7")
        a("v_lshlrev_b32 v7, 6, v14")
        a("v_sub_u32 v13, v13, v7")
        a(f"s_add_u32 s43, s7, {CV_UB+24-32}")
        a("v_add_u32 v13, s43, v13")
    a(f"s_add_u32 s43, s7, {CV_UB}")
    a("v_add_u32 v8, s43, v3")
    a("s_waitcnt lgkmcnt(0)")
    lds_signal(a, 9, S_PQ, 11)
    stamp(a, 4)
    lds_wait(a, "K3_whu", 9, S_HU, 1, 16, 42)
    stamp(a, 5)

    if ALN:
        a(".p2align 3")
        if ALN == 3:
            a("s_nop 0")
    HH, FU = 32, 96
    ACC = [16, 20, 24, 28]
    T2, T1, YV, PK = [224, 225], [226, 227], [228, 229], [232, 236, 240, 244]
    lg.q = []

    def fu_reads(s):
        for hf in range(2):
            a(f"ds_read_b64_tr_b16 {vr(FU+4*s+2*hf,2)}, v13 offset:{128*s + 32*(1-hf)}")
            lg.issue(("fu", s))

    def h_reads(t):
        for hf in range(2):
            a(f"ds_read_b64_tr_b16 {vr(HH+4*t+2*hf,2)}, v12 offset:{256*t + 32*hf}")
            lg.issue(("h", t))

    def epi(Q):
        ops = []
        R0 = ACC[Q % 4]
        R1, R2, R3 = R0 + 1, R0 + 2, R0 + 3
        cur, prv = Q & 1, (Q & 1) ^ 1
        if Q == 0:
            ops.append(f"v_add_f32_dpp v{T2[cur]}, v{R3}, v{R2} wave_shr:1 {DPP} bound_ctrl:0")
            ops.append(f"v_add_f32_dpp v{T1[cur]}, v{T2[cur]}, v{R1} wave_shr:1 {DPP} bound_ctrl:0")
            ops.append(f"v_add_f32_dpp v{YV[cur]}, v{T1[cur]}, v{R0} wave_shr:1 {DPP} bound_ctrl:0")
        else:
            r3p = ACC[(Q - 1) % 4] + 3
            ops.append(f"v_add_f32_dpp v{T2[cur]}, v{r3p}, v{R2} wave_ror:1 {DPP}")
            ops.append(f"v_add_f32_dpp v{T1[cur]}, v{T2[prv]}, v{R1} wave_ror:1 {DPP}")
            ops.append(f"v_add_f32_dpp v{YV[cur]}, v{T1[prv]}, v{R0} wave_ror:1 {DPP}")
            ops.append(f"v_add_f32_dpp v{T2[cur]}, v{R3}, v{R2} wave_shr:1 {DPP}")
            ops.append(f"v_add_f32_dpp v{T1[cur]}, v{T2[cur]}, v{R1} wave_shr:1 {DPP}")
            ops.append(f"v_add_f32_dpp v{YV[cur]}, v{T1[cur]}, v{R0} wave_shr:1 {DPP}")
        if Q & 1:
            p = PK[Q // 8] + (Q % 8) // 2
            ops.append(f"v_cvt_pk_bf16_f32 v{p}, v{YV[0]}, v{YV[1]}")
            ops.append(f"v_or_b32 v{p}, 1, v{p}")
        return ops

    if CV32:
        conv32(a, lg, PK)
    else:
        PRE = 3
        for c in range(PRE):
            fu_reads(c)
            if c % 2 == 0:
                h_reads(c // 2)
        pending = []
        for c in range(32):
            nst = c // 2 + 1
            for t in range(nst):
                s = c - 2 * t
                lg.wait_for([("fu", s), ("h", t)])
                mfma16(a, ACC[c % 4], FU + 4 * s, HH + 4 * t, "0" if t == 0 else None)
                if t == 0 and c + PRE < 32:
                    fu_reads(c + PRE)
                    if (c + PRE) % 2 == 0:
                        h_reads((c + PRE) // 2)
                if t == 0 and c >= 2:
                    assert not pending
                    pending = epi(c - 2)
                k = max(1, -(-len(pending) // (nst - t))) if pending else 0
                for _ in range(k):
                    a(pending.pop(0))
        for Q in (30, 31):
            for op in epi(Q):
                a(op)
    srd_off(a, 28, P_WS, WS_UT, 4 * MB)
    a("s_lshl_b32 s40, s6, 12")
    for g in range(4):
        a(f"buffer_store_dwordx4 {vr(PK[g])}, v3, s[28:31], s40 offen offset:{1024*g} sc1")
    a("s_and_b32 s40, s10, 3")
    a("s_lshl_b32 s40, s40, 2")
    a("s_and_b32 s41, s11, 3")
    a("s_add_u32 s40, s40, s41")
    a("s_lshl_b32 s41, s40, 3")
    a("s_lshl_b32 s42, s3, 1")
    a("s_add_u32 s41, s41, s42")
    a("s_lshl_b32 s48, s41, 15")
    a("s_mov_b32 s47, s48")
    a("v_lshrrev_b32 v5, 5, v2")
    a("v_and_b32 v6, 1, v14")
    a("v_lshlrev_b32 v12, 15, v6")
    a("v_lshl_add_u32 v12, v5, 8, v12")
    a("v_lshl_add_u32 v12, v15, 4, v12")
    srd_off(a, 28, P_WS, WS_OF, 4 * MB)
    srd(a, 32, P_OUT, 8 * MB)
    a("s_waitcnt lgkmcnt(0)")
    lds_signal(a, 9, S_CD, 11)
    stamp(a, 6)
    if CPOST:
        a("s_lshl_b32 s16, s10, 1")
        a("s_lshr_b32 s17, s11, 4")
        a("s_add_u32 s16, s16, s17")
        a("s_and_b32 s17, s11, 15")
        a("s_lshl_b32 s17, s17, 2")
        a("s_add_u32 s17, s17, s4")
        a("s_lshr_b32 s18, s17, 4")
        a("s_and_b32 s17, s17, 15")
        a("s_lshl_b32 s19, s18, 9")
        a("s_lshl_b32 s64, s17, 2")
        a("s_add_u32 s19, s19, s64")
        a("s_lshl_b32 s64, s19, 11")
        a("s_lshl_b32 s65, s16, 7")
        a("s_add_u32 s64, s64, s65")
        a("s_lshl_b32 s72, s19, 12")
        a("s_add_u32 s72, s72, s65")
        a("s_lshl_b32 s73, s16, 18")
        a("s_lshl_b32 s65, s18, 10")
        a("s_add_u32 s73, s73, s65")
        a("s_lshl_b32 s65, s17, 6")
        a("s_add_u32 s73, s73, s65")
        a("s_add_u32 s65, s73, 4096")
        a("s_add_u32 s66, s73, 8192")
        a("s_add_u32 s67, s73, 12288")
        a("v_lshlrev_b32 v224, 12, v14")
        a("v_lshl_add_u32 v224, v15, 3, v224")
        a("v_lshlrev_b32 v225, 14, v15")
        a("v_lshl_add_u32 v225, v14, 4, v225")
        a("v_lshlrev_b32 v4, 11, v14")
        a("v_lshl_add_u32 v4, v15, 3, v4")
        srd(a, 16, P_Q, 4 * MB)
        srd_off(a, 20, P_WS, WS_UT, 4 * MB)
        for jj in range(8):
            a(f"buffer_load_dwordx2 {vr(208+2*jj,2)}, v4, s[16:19], s64 offen")
            a(f"s_add_u32 s64, s64, {64*2048}")
        a("s_waitcnt vmcnt(0)")
        a(f"s_mov_b32 s43, {RETRY_MAX}")
        a.label("K3_cp")
        for ci, sr in enumerate((73, 65, 66, 67)):
            a(f"buffer_load_dwordx4 {vr(16+4*ci)}, v225, s[20:23], s{sr} offen sc1")
        a(f"ds_read_b32 v49, v10 offset:{S_WOM}")
        a("s_waitcnt vmcnt(0) lgkmcnt(0)")
        and_reduce(a, 48, range(16, 32))
        a("v_readfirstlane_b32 s42, v49")
        a("v_cmp_eq_u32 vcc, 0, v48")
        a("s_cmp_eq_u64 vcc, 0")
        a("s_cbranch_scc1 K3_cp_ok")
        a("s_cmp_ge_u32 s42, 4")
        a("s_cbranch_scc1 K3_cp_skip")
        a("s_sub_u32 s43, s43, 1")
        a("s_cbranch_scc1 K3_cp_skip")
        a("s_sleep 6")
        a("s_branch K3_cp")
        a.label("K3_cp_ok")
        lds_signal(a, 9, S_PD, 11)
        post_compute(a, 208, True)
        a.label("K3_cp_skip")
    lds_wait(a, "K3_wwo", 10, S_WOM, 4, 80, 42)
    if PW:
        lds_wait(a, "K3_wot", 9, S_OT, 1, 80, 42)
    if CPOST:
        lds_signal(a, 9, S_G2, 11)
    stamp(a, 7)
    cstamp(a, 12)
    vm = Cnt(a, "vmcnt", 63)
    AR = 96
    D = ADEPTH
    if "a" in XP:
        srd(a, 28, P_X, 4 * MB)
        a("s_lshl_b32 s48, s12, 18")
        a("s_lshl_b32 s47, s3, 16")
        a("s_add_u32 s48, s48, s47")

    def aload(h):
        for f in range(2):
            r = AR + 8 * (h % D) + 4 * f
            a(f"buffer_load_dwordx4 {vr(r)}, v12, s[28:31], s48 offen offset:{1024*(h%4)+512*f}{ASC}")
            vm.issue(("A", h))
        if h % 4 == 3:
            a("s_add_u32 s48, s48, 4096")

    if G2PRIO:
        a(f"s_setprio {G2PRIO}")
    for h in range(AINIT):
        aload(h)
    anext = [AINIT]
    a("v_bfe_u32 v4, v2, 2, 2")
    a("v_and_b32 v7, 3, v2")
    a("v_lshlrev_b32 v4, 6, v4")
    a("v_lshl_add_u32 v4, v7, 3, v4")
    a("v_lshl_add_u32 v4, v5, 9, v4")
    a("v_xor_b32 v7, v6, v5")
    a("v_lshl_add_u32 v13, v7, 5, v4")
    a(f"v_add_u32 v4, {WO_BASE}, v13")
    a(f"v_add_u32 v8, {WO_BASE + 65536}, v13")

    def check_ops(g):
        r = AR + 8 * ((4 * g) % D)
        ops = [f"v_bitop3_b32 v81, v{r}, v{r+1}, v{r+2} bitop3:0x80"]
        for i in range(3, 31, 2):
            ops.append(f"v_bitop3_b32 v81, v81, v{r+i}, v{r+i+1} bitop3:0x80")
        ops.append(f"v_bitop3_b32 v81, v81, v{r+31}, 1 bitop3:0x80")
        return ops

    def check_branch(g):
        if "a" in XP:
            a.label(f"K3_retry{g}_ret")
            return
        a("v_cmp_eq_u32 vcc, 0, v81")
        a("s_cmp_lg_u64 vcc, 0")
        a(f"s_cbranch_scc1 K3_retry{g}")
        a.label(f"K3_retry{g}_ret")

    def retry_block(g):
        a.label(f"K3_retry{g}")
        a(f"s_mov_b32 s46, {RETRY_MAX}")
        a(f"s_add_u32 s44, s47, {4096*g}")
        a.label(f"K3_retry{g}_l")
        a("s_add_u32 s75, s75, 1")
        a("s_sleep 4")
        for hh in range(4):
            for f in range(2):
                r = AR + 8 * ((4 * g + hh) % D) + 4 * f
                a(f"buffer_load_dwordx4 {vr(r)}, v12, s[28:31], s44 offen offset:{1024*hh+512*f} sc1")
        a("s_waitcnt vmcnt(0)")
        for op in check_ops(g):
            a(op)
        a("v_cmp_eq_u32 vcc, 0, v81")
        a("s_sub_u32 s46, s46, 1")
        a(f"s_cbranch_scc1 K3_retry{g}_ret")
        a("s_cmp_lg_u64 vcc, 0")
        a(f"s_cbranch_scc1 K3_retry{g}_l")
        a(f"s_branch K3_retry{g}_ret")

    lg.q = []
    BS = [48, 64]

    def breads(h):
        out = []
        st = h & 1
        if h < 16:
            vb, off = 4, h * 4096
        elif h < 28:
            vb, off = 8, (h - 16) * 4096
        else:
            vb, off = 13, (h - 28) * CV_REG
        for f in range(2):
            for nb in range(2):
                for hf in range(2):
                    out.append(((h, f, nb), f"ds_read_b64_tr_b16 {vr(BS[st]+8*f+4*nb+2*hf,2)}, v{vb} offset:{off + f*1024 + hf*2048 + nb*256}"))
        return out

    for tag, txt in breads(0):
        a(txt); lg.issue(tag)
    vm.wait_for([("A", 3)])
    for op in check_ops(0):
        a(op)
    check_branch(0)
    chk = []
    if ALN:
        a(".p2align 3")
        if ALN == 3:
            a("s_nop 0")
    for h in range(32):
        nxt = []
        if h == GS and not CPOST:
            lds_signal(a, 9, S_G2, 11)
            lg.issue("sig")
        if h + 1 < 32:
            if h + 1 == 28:
                lg.drain()
                lds_wait(a, "K3_wwt", 10, S_WOT, 4, 80, 42)
            nxt = breads(h + 1)
        if h % 4 == 2 and h + 2 < 32:
            vm.wait_for([("A", h + 5)])
            chk = check_ops(h // 4 + 1) if "k" not in XP else []
        for f in range(2):
            for nb in range(2):
                lg.wait_for([(h, f, nb)])
                d = 16 + 16 * nb
                cs = "0" if (h == 0 and f == 0) else vr(d, 16)
                a(f"v_mfma_f32_32x32x16_bf16 {vr(d,16)}, {vr(BS[h&1]+8*f+4*nb)}, {vr(AR+8*(h%D)+4*f)}, {cs}")
                for _ in range(2):
                    if nxt:
                        tag, txt = nxt.pop(0)
                        a(txt); lg.issue(tag)
                    if chk:
                        a(chk.pop(0))
        if h % 4 == 3 and h + 1 < 32:
            assert not chk
            check_branch(h // 4 + 1)
        for _ in range(2):
            if anext[0] < 32 and anext[0] <= h + D and "n" not in XP:
                aload(anext[0]); anext[0] += 1
    stamp(a, 8)
    cstamp(a, 13)
    a("v_and_b32 v4, 31, v2")
    a("v_lshlrev_b32 v4, 12, v4")
    a("v_lshl_add_u32 v4, v5, 4, v4")
    a("s_lshr_b32 s36, s10, 2")
    a("s_lshl_b32 s36, s36, 3")
    a("s_lshr_b32 s37, s11, 2")
    a("s_add_u32 s36, s36, s37")
    a("s_lshl_b32 s38, s41, 16")
    a("s_lshl_b32 s39, s36, 7")
    a("s_add_u32 s38, s38, s39")
    a("s_add_u32 s38, s38, 2048")
    if TRO:
        a("v_and_b32 v6, 31, v2")
        a("v_and_b32 v7, 7, v2")
        a("v_xor_b32 v7, v7, v5")
        a("v_lshlrev_b32 v6, 7, v6")
        a(f"s_add_u32 s39, s7, {CV_UB}")
        a("v_add_u32 v6, s39, v6")
        a("v_lshrrev_b32 v8, 3, v2")
        a("v_and_b32 v13, 7, v2")
        a("v_xor_b32 v96, v13, v8")
        a("v_lshlrev_b32 v96, 4, v96")
        a("v_lshl_add_u32 v96, v8, 7, v96")
        a("v_add_u32 v96, s39, v96")
        a("v_lshlrev_b32 v4, 12, v8")
        a("v_lshl_add_u32 v4, v13, 4, v4")
    for nb in range(2):
        for kp in range(2):
            P = 80 + 8 * nb + 4 * kp
            t0 = 16 + 16 * nb + 8 * kp
            for i in range(4):
                a(f"v_cvt_pk_bf16_f32 v{P+i}, v{t0+2*i}, v{t0+2*i+1}")
            a(f"v_permlane32_swap_b32 v{P}, v{P+2}")
            a(f"v_permlane32_swap_b32 v{P+1}, v{P+3}")
            if TRO:
                a(f"v_xor_b32 v97, {4*nb+2*kp}, v7")
                a("v_lshl_add_u32 v97, v97, 4, v6")
                a(f"ds_write_b128 v97, {vr(P)}")
            else:
                a(f"buffer_store_dwordx4 {vr(P)}, v4, s[32:35], s38 offen offset:{64*nb+32*kp}{NTS}{OS2}")
    if TRO:
        for i in range(4):
            a(f"ds_read_b128 {vr(100+4*i)}, v96 offset:{1024*i}")
        for i in range(4):
            a(f"s_waitcnt lgkmcnt({3-i})")
            a(f"buffer_store_dwordx4 {vr(100+4*i)}, v4, s[32:35], s38 offen{NTS}{OS2}")
            a("s_add_u32 s38, s38, 32768")
    stamp_flush(a, 9)
    a("s_endpgm")
    for g in range(8):
        retry_block(g)
    for slot in range(4):
        a.label(f"K3_event{slot}")
        a("s_add_u32 s54, s54, 1")
        a("s_cmp_lg_u32 s54, 1")
        a(f"s_cbranch_scc1 K3_ev2_{slot}")
        a(f"buffer_load_dword v195, v192, s[40:43], s44 offen{NTT}")
        if L2PF:
            a(f"buffer_load_dword v195, v193, s[48:51], s45 offen{NTT}")
            a("s_mov_b32 s55, 1000")
        else:
            a("s_mov_b32 s55, s52")
        a(f"s_branch K3_noev{slot}")
        a.label(f"K3_ev2_{slot}")
        if PREC or FILLC:
            a("s_waitcnt vmcnt(0)")
        a(f"buffer_load_dword v195, v193, s[48:51], s45 offen{NTT}")
        a("s_mov_b32 s55, 1000")
        a(f"s_branch K3_noev{slot}")
        a.label(f"K3_evB{slot}")
        a(f"buffer_load_dword v195, v194, s[64:67], s68 offen{NTT}")
        a(f"buffer_load_dword v195, v194, s[64:67], s69 offen{NTT}")
        a(f"s_branch K3_noevB{slot}")
        a.label(f"K3_evC{slot}")
        a("s_add_u32 s53, s53, 1")
        a("s_cmp_lg_u32 s53, 1")
        a(f"s_cbranch_scc1 K3_ev4_{slot}")
        a("buffer_load_dword v196, v199, s[56:59], 0 offen sc1")
        a(f"s_mov_b32 s71, {NLEAD-1}")
        a(f"s_branch K3_noevC{slot}")
        a.label(f"K3_ev4_{slot}")
        a("s_cmp_lg_u32 s53, 2")
        a(f"s_cbranch_scc1 K3_ev6_{slot}")
        a("s_waitcnt vmcnt(0)")
        a("v_readfirstlane_b32 s46, v196")
        a("s_mov_b64 exec, 1")
        a("s_cmp_lg_u32 s46, 0")
        a(f"s_cbranch_scc1 K3_ev5_{slot}")
        a("v_mov_b32 v196, v198")
        a("v_mov_b32 v197, 0")
        a("buffer_atomic_cmpswap v[196:197], v199, s[56:59], 0 offen sc0 sc1")
        a("s_waitcnt vmcnt(0)")
        a("v_cmp_eq_u32 vcc, 0, v196")
        a("v_cndmask_b32 v196, v196, v198, vcc")
        a.label(f"K3_ev5_{slot}")
        a("buffer_store_dword v196, v199, s[60:63], s47 offen sc1")
        a("s_mov_b64 exec, -1")
        a(f"s_mov_b32 s71, {FLAGN-F1N-1 if not POSTPRE else 1000}")
        a(f"s_branch K3_noevC{slot}")
        a.label(f"K3_ev6_{slot}")
        a("s_mov_b64 exec, 1")
        a("buffer_store_dword v196, v199, s[60:63], s47 offen offset:32 sc1")
        a("s_mov_b64 exec, -1")
        a("s_mov_b32 s71, 1000")
        a(f"s_branch K3_noevC{slot}")

    lbeg = len(a.ins)
    a.label("K3_L")
    a("v_lshrrev_b32 v4, 3, v2")
    a("v_and_b32 v5, 7, v2")
    for jl in range(4):
        a(f"v_add_u32 v6, {4*(jl&1)}, v14")
        a("v_xor_b32 v6, v6, v5")
        a("v_lshlrev_b32 v6, 4, v6")
        a("v_lshl_add_u32 v6, v4, 11, v6")
        a(f"v_add_u32 v{240+jl}, {jl*(16384-1024)}, v6")
    a("v_lshrrev_b32 v6, 5, v2")
    a("v_bfe_u32 v7, v2, 2, 2")
    a("v_lshl_add_u32 v6, v6, 2, v7")
    a("v_mul_u32_u24 v6, 6144, v6")
    a("v_bfe_u32 v7, v2, 4, 1")
    a("v_lshl_add_u32 v6, v7, 6, v6")
    a("v_and_b32 v7, 3, v2")
    a("v_lshl_add_u32 v6, v7, 4, v6")
    a("v_xor_b32 v7, 32, v6")
    a("s_and_b32 s40, s13, 1")
    a("s_lshl_b32 s40, s40, 7")
    a(f"s_xor_b32 s41, s40, {128 if QX else 0}")
    binst = []
    for seg in range(3):
        for gg in range(2):
            ldsoff = seg * 2048 + gg * 1024
            m0sel, ioff = ldsoff // 4096, ldsoff % 4096
            reg = 244 + seg * 2 + gg
            a(f"v_add_u32 v{reg}, {8*gg*6144 + seg*2048 - ioff}, v{6+gg}")
            a(f"v_add_u32 v{reg}, s{41 if seg == 0 else 40}, v{reg}")
            binst.append((reg, m0sel, ioff))
    a("s_lshl_b32 s38, s12, 7")
    a("s_lshl_b32 s40, s4, 5")
    a("s_add_u32 s38, s38, s40")
    a("s_lshl_b32 s38, s38, 11")
    a("s_mul_i32 s39, s4, 98304")
    a("s_lshr_b32 s40, s13, 1")
    a("s_lshl_b32 s40, s40, 8")
    a("s_add_u32 s39, s39, s40")
    a("s_lshl_b32 s41, s4, 12")
    a("s_mul_i32 s42, s4, 6144")
    a("s_add_u32 s42, s42, 16384")
    if EARLYB:
        a("s_waitcnt lgkmcnt(0)")
        stamp(a, 0)
    srd(a, 16, P_X, 4 * MB)
    srd(a, 20, P_W, 6 * MB)
    vm = Cnt(a, "vmcnt", 63)

    def issue(kt):
        sb = (kt % NS) * STAGE
        a(f"s_add_u32 m0, s41, {sb}")
        for jl in range(4):
            a(f"buffer_load_dwordx4 v{240+jl}, s[16:19], s38 offen offset:{jl*1024}{NTG} lds")
            vm.issue(("st", kt))
        cur = -1
        for reg, m0sel, ioff in binst:
            if m0sel != cur:
                a(f"s_add_u32 m0, s42, {sb + 4096*m0sel}")
                cur = m0sel
            a(f"buffer_load_dwordx4 v{reg}, s[20:23], s39 offen offset:{ioff}{NTG} lds")
            vm.issue(("st", kt))
        a("s_add_u32 s38, s38, 128")
        a(f"s_add_u32 s39, s39, {64*6144}")

    if env("ST0", 0):
        stamp(a, 10)
    for kt in range(PRO):
        issue(kt)
        if env("ST0", 0):
            stamp(a, 11 + kt)
    if LFRONT:
        a("s_branch K3_L2")
        blk = a.ins[lbeg:]
        del a.ins[lbeg:]
        a.ins[mark:mark] = blk
        a.label("K3_L2")
    srd(a, 24, P_K, 4 * MB)
    srd(a, 28, P_V, 4 * MB)
    srd(a, 32, P_SHK, 8192)
    srd_off(a, 44, P_WS, WS_UT, 4 * MB)
    srd_off(a, 48, P_WS, WS_OF, 4 * MB)
    srd_off(a, 52, P_WS, WS_KVP, 2 * MB)
    srd_off(a, 56, P_WS, WS_ZP, 64 * 1024)
    a("s_lshl_b32 s60, s2, 2")
    a("s_add_u32 s60, s60, s4")
    if UTF:
        a("s_and_b32 s61, s60, 31")
        a("s_lshr_b32 s60, s60, 5")
        a("s_lshl_b32 s62, s60, 17")
        a("s_lshl_b32 s63, s61, 6")
        a("s_add_u32 s62, s62, s63")
        a("v_lshrrev_b32 v18, 3, v2")
        a("v_and_b32 v20, 7, v2")
        a("v_lshlrev_b32 v21, 14, v18")
        a("v_lshl_add_u32 v21, v20, 3, v21")
        a("v_add_u32 v21, s62, v21")
        a("s_lshl_b32 s63, s61, 8")
        a("v_lshlrev_b32 v22, 5, v20")
        a("s_lshl_b32 s62, s61, 17")
        a("s_lshl_b32 s64, s60, 7")
        a("s_add_u32 s62, s62, s64")
        a("v_lshlrev_b32 v19, 14, v20")
        a("v_lshl_add_u32 v19, v18, 4, v19")
    else:
        a("s_and_b32 s61, s60, 15")
        a("s_lshr_b32 s60, s60, 4")
        a("s_lshl_b32 s62, s60, 16")
        a("s_lshl_b32 s63, s61, 7")
        a("s_add_u32 s62, s62, s63")
        a("v_lshlrev_b32 v21, 14, v14")
        a("v_lshl_add_u32 v21, v15, 3, v21")
        a("v_add_u32 v21, s62, v21")
        a("s_lshl_b32 s63, s61, 9")
        a("v_lshlrev_b32 v22, 5, v15")
        a("s_lshl_b32 s62, s61, 18")
        a("s_lshl_b32 s64, s60, 6")
        a("s_add_u32 s62, s62, s64")
        a("v_lshlrev_b32 v19, 14, v15")
        a("v_lshl_add_u32 v19, v14, 4, v19")
    a("s_lshl_b32 s64, s12, 3")
    a("s_lshl_b32 s65, s4, 1")
    a("s_add_u32 s64, s64, s65")
    a("s_lshl_b32 s64, s64, 15")
    a("s_lshr_b32 s65, s15, 1")
    a("s_lshl_b32 s65, s65, 11")
    a("s_add_u32 s64, s64, s65")
    a("s_add_u32 s65, s64, 32768")
    a("s_lshl_b32 s66, s5, 4")
    a("s_add_u32 s66, s66, s12")
    a("s_lshl_b32 s67, s66, 7")
    a("s_lshl_b32 s66, s66, 12")
    a(f"s_lshl_b32 s68, s36, {10 if BP else 11}")
    a("s_add_u32 s66, s66, s68")
    for i in range(4):
        a(f"v_mov_b32 v{160+i}, 0")
    a("v_and_b32 v18, 7, v2")
    a("v_lshlrev_b32 v18, 4, v18")
    fills = [
        f"buffer_store_dwordx4 v[160:163], v3, s[48:51], s64 offen sc1{NTF}",
        f"buffer_store_dwordx4 v[160:163], v3, s[48:51], s64 offen offset:1024 sc1{NTF}",
        f"buffer_store_dwordx4 v[160:163], v3, s[48:51], s65 offen sc1{NTF}",
        f"buffer_store_dwordx4 v[160:163], v3, s[48:51], s65 offen offset:1024 sc1{NTF}",
        f"buffer_store_dwordx4 v[160:163], v3, s[52:55], s66 offen sc1{NTF}",
        f"buffer_store_dwordx4 v[160:163], v3, s[52:55], s66 offen offset:1024 sc1{NTF}",
        f"buffer_store_dwordx4 v[160:163], v18, s[56:59], s67 offen sc1{NTF}",
    ]
    if BP:
        del fills[5]
    W, KF, VF, KS = 72, 88, 110, 126
    loads = []
    for i in range(2):
        loads.append([f"buffer_load_dwordx4 {vr(24+4*i)}, v22, s[32:35], s63 offen offset:{16*i}"])
    for i in range(11):
        loads.append([f"v_add_u32 v23, {((i-3)*2048) & 0xffffffff}, v21", f"buffer_load_dwordx2 {vr(32+2*i,2)}, v23, s[24:27], 0 offen{NTK}"])
    for i in range(8):
        loads.append([f"v_add_u32 v23, {i*2048}, v21", f"buffer_load_dwordx2 {vr(54+2*i,2)}, v23, s[28:31], 0 offen{NTK}"])
    comp = []
    for ci in range(4):
        comp += [f"v_lshlrev_b32 v{W+ci}, 16, v{24+2*ci}", f"v_and_b32 v{W+4+ci}, 0xffff0000, v{24+2*ci}",
                 f"v_lshlrev_b32 v{W+8+ci}, 16, v{25+2*ci}", f"v_and_b32 v{W+12+ci}, 0xffff0000, v{25+2*ci}"]
    for cp in range(2):
        for i in range(11):
            comp += [f"v_lshlrev_b32 v{KF+2*i}, 16, v{32+2*i+cp}", f"v_and_b32 v{KF+2*i+1}, 0xffff0000, v{32+2*i+cp}"]
        for i in range(8):
            comp += [f"v_lshlrev_b32 v{VF+2*i}, 16, v{54+2*i+cp}", f"v_and_b32 v{VF+2*i+1}, 0xffff0000, v{54+2*i+cp}"]
        for i in range(16):
            comp.append(f"v_mul_f32 v{KS+i}, v{KF+i}, v{W+12+2*cp+(i&1)}")
        for j in (2, 1, 0):
            for i in range(16):
                comp.append(f"v_fmac_f32 v{KS+i}, v{KF+2*(3-j)+i}, v{W+4*j+2*cp+(i&1)}")
        for i in range(16):
            comp.append(f"v_mul_f32 v{KS+i}, v{KS+i}, v{VF+i}")
        O = 144 + 8 * cp
        for e in range(2):
            for i in range(4):
                comp.append(f"v_cvt_pk_bf16_f32 v{O+4*e+i}, v{KS+4*i+e}, v{KS+4*i+2+e}")
        for i in range(8):
            comp.append(f"v_and_b32 v{O+i}, -2, v{O+i}")
        for e in range(2):
            comp.append(("st", f"buffer_store_dwordx4 {vr(O+4*e)}, v19, s[44:47], s62 offen sc1"))
            comp.append("s_add_u32 s62, s62, 4096")
    PCE = env("PCE", FLAGN - 3)
    PCS = PL0 + NPL + env("PGAP", 0)
    NPC = PCE - PCS
    per = -(-len(comp) // NPC)
    a("v_lshrrev_b32 v6, 5, v2")
    a("v_bfe_u32 v7, v2, 2, 2")
    a("v_lshl_add_u32 v7, v6, 2, v7")
    a("v_lshlrev_b32 v7, 11, v7")
    a("v_bfe_u32 v8, v2, 4, 1")
    a("v_lshl_add_u32 v7, v8, 6, v7")
    a("v_and_b32 v8, 3, v2")
    a("v_lshlrev_b32 v6, 1, v6")
    a("v_xor_b32 v8, v8, v6")
    a("v_lshl_add_u32 v7, v8, 4, v7")
    for i in range(4):
        a(f"v_add_u32 v{232+i}, {i*(16384-1024)}, v7")
    a("s_lshl_b32 s69, s4, 16")
    a("s_lshr_b32 s70, s10, 2")
    a("s_lshl_b32 s70, s70, 3")
    a("s_lshr_b32 s71, s11, 2")
    a("s_add_u32 s70, s70, s71")
    a("s_lshl_b32 s70, s70, 7")
    a("s_add_u32 s69, s69, s70")
    a("s_lshl_b32 s70, s4, 12")
    a(f"s_add_u32 s70, s70, {WO_BASE}")
    a("s_lshl_b32 s71, s6, 12")
    a(f"v_mov_b32 v10, {SYNC}")
    a("v_mov_b32 v11, 1")
    a("s_lshl_b32 s43, s4, 2")
    a("v_add_u32 v9, s43, v10")

    def wo_issue(k):
        if k < 7:
            a(f"s_add_u32 m0, s70, {k*16384}")
        else:
            a("s_mov_b32 m0, s7")
        for i in range(4):
            a(f"buffer_load_dwordx4 v{232+i}, s[20:23], s69 offen offset:{i*1024}{NTG} lds")
            vm.issue("wo")
        a(f"s_add_u32 s69, s69, {128*2048}")

    def post_setup():
        a("s_lshl_b32 s16, s10, 1")
        a("s_lshr_b32 s17, s11, 4")
        a("s_add_u32 s16, s16, s17")
        a("s_and_b32 s17, s11, 15")
        a("s_lshl_b32 s17, s17, 2")
        a("s_add_u32 s17, s17, s4")
        a("s_lshr_b32 s18, s17, 4")
        a("s_and_b32 s17, s17, 15")
        a("s_lshl_b32 s19, s18, 9")
        a("s_lshl_b32 s64, s17, 2")
        a("s_add_u32 s19, s19, s64")
        a("s_lshl_b32 s64, s19, 11")
        a("s_lshl_b32 s65, s16, 7")
        a("s_add_u32 s64, s64, s65")
        a("s_lshl_b32 s72, s19, 12")
        a("s_add_u32 s72, s72, s65")
        a("s_lshl_b32 s73, s16, 18")
        a("s_lshl_b32 s65, s18, 10")
        a("s_add_u32 s73, s73, s65")
        a("s_lshl_b32 s65, s17, 6")
        a("s_add_u32 s73, s73, s65")
        a("s_add_u32 s65, s73, 4096")
        a("s_add_u32 s66, s73, 8192")
        a("s_add_u32 s67, s73, 12288")
        a("v_lshlrev_b32 v224, 12, v14")
        a("v_lshl_add_u32 v224, v15, 3, v224")
        a("v_lshlrev_b32 v225, 14, v15")
        a("v_lshl_add_u32 v225, v14, 4, v225")

    def q_loads():
        srd(a, 16, P_Q, 4 * MB)
        a("v_lshlrev_b32 v4, 11, v14")
        a("v_lshl_add_u32 v4, v15, 3, v4")
        for jj in range(8):
            a(f"buffer_load_dwordx2 {vr(QR+2*jj,2)}, v4, s[16:19], s64 offen{NTO}")
            vm.issue("q")
            a(f"s_add_u32 s64, s64, {64*2048}")

    QR = 208

    def h_issue():
        a(f"s_add_u32 m0, s7, {CV_HB}")
        for c in range(4):
            a(f"buffer_load_dwordx4 v3, s[16:19], s71 offen offset:{1024*c}{NTO} lds")
            vm.issue("h")
        a("s_lshl_b32 s43, s6, 1")
        a("v_mov_b32 v4, 0")
        a("buffer_load_ushort v164, v4, s[20:23], s43 offen")
        vm.issue("h")
        srd(a, 20, P_WO, 2 * MB)

    for kt in range(16):
        tags = [("st", kt)]
        if kt == F1N + 1:
            tags += ["fill"]
        if kt == FLAGN + 1:
            tags += ["ust"]
        vm.wait_for(tags)
        if kt == 14:
            a("s_waitcnt lgkmcnt(0)")
        a("s_barrier")
        if kt in (2, 5, 8, 11, 14) and not env("ST0", 0):
            stamp(a, 10 + (2, 5, 8, 11, 14).index(kt))
        if kt == 0:
            for k2 in range(PRO, NS - 1):
                issue(k2)
        if kt + NS - 1 < 16:
            issue(kt + NS - 1)
        for op in spf[SPF_C + kt * SPF_L: SPF_C + (kt + 1) * SPF_L]:
            a(op)
        if FL0 <= kt < FL0 + len(fills) and "f" not in XP and not FILLC:
            a(fills[kt - FL0]); vm.issue("fill")
        if POSTPRE and kt in (14, 15):
            for grp in (loads[:13] if kt == 14 else loads[13:]):
                for op in grp:
                    a(op)
                vm.issue("pre")
        if PL0 <= kt < PL0 + NPL and "l" not in XP and not POSTPRE and not PREC:
            q = -(-len(loads) // NPL)
            for grp in loads[(kt - PL0) * q: (kt - PL0 + 1) * q]:
                for op in grp:
                    a(op)
                vm.issue("pre")
        if kt == 13:
            post_setup()
            srd(a, 16, P_H, 4 * MB)
            srd(a, 20, P_D, 2048)
            a("v_mov_b32 v4, 0")
            a("v_lshlrev_b32 v5, 2, v2")
            a(f"v_add_u32 v6, {SYNC}, v5")
            a("ds_write_b32 v6, v4")
            a("v_add_u32 v6, s7, v5")
            a(f"ds_write_b32 v6, v4 offset:{CV_UB-256}")
            if CV32:
                a(f"ds_write_b32 v6, v4 offset:{CV_UB-512}")
            a(f"v_and_b32 v6, {15 if CV32 else 7}, v2")
            a("v_lshlrev_b32 v6, 2, v6")
            a("v_add_u32 v6, s7, v6")
            a("ds_write_b32 v6, v4")
            h_issue()
            if QEARLY:
                q_loads()
        if PCS <= kt < PCE and not POSTPRE and not PREC:
            if kt == PCS:
                vm.wait_for(["pre"])
            for op in comp[:per]:
                if "c" in XP and not isinstance(op, tuple):
                    continue
                if isinstance(op, tuple):
                    if "u" in XP:
                        continue
                    a(op[1]); vm.issue("ust")
                else:
                    a(op)
            comp = comp[per:]
        if kt == 14 and EARLYWO >= 2:
            wo_issue(0); wo_issue(1)
        if kt == 15 and EARLYWO >= 4:
            wo_issue(2); wo_issue(3)
    assert POSTPRE or PREC or not comp
    a("s_barrier")
    stamp(a, 1)
    if POSTPRE:
        vm.wait_for(["pre"])
        for ci in range(4):
            a(f"v_lshlrev_b32 v{W+ci}, 16, v{24+2*ci}")
            a(f"v_and_b32 v{W+4+ci}, 0xffff0000, v{24+2*ci}")
            a(f"v_lshlrev_b32 v{W+8+ci}, 16, v{25+2*ci}")
            a(f"v_and_b32 v{W+12+ci}, 0xffff0000, v{25+2*ci}")
        for cp in range(2):
            for i in range(11):
                a(f"v_lshlrev_b32 v{KF+2*i}, 16, v{32+2*i+cp}")
                a(f"v_and_b32 v{KF+2*i+1}, 0xffff0000, v{32+2*i+cp}")
            for i in range(8):
                a(f"v_lshlrev_b32 v{VF+2*i}, 16, v{54+2*i+cp}")
                a(f"v_and_b32 v{VF+2*i+1}, 0xffff0000, v{54+2*i+cp}")
            for i in range(8):
                a(f"v_pk_mul_f32 {vr(KS+2*i,2)}, {vr(KF+2*i,2)}, {vr(W+12+2*cp,2)}")
            for j in (2, 1, 0):
                for i in range(8):
                    a(f"v_pk_fma_f32 {vr(KS+2*i,2)}, {vr(KF+2*(i+3-j),2)}, {vr(W+4*j+2*cp,2)}, {vr(KS+2*i,2)}")
            for i in range(8):
                a(f"v_pk_mul_f32 {vr(KS+2*i,2)}, {vr(KS+2*i,2)}, {vr(VF+2*i,2)}")
            O = 144 + 8 * cp
            for e in range(2):
                for i in range(4):
                    a(f"v_cvt_pk_bf16_f32 v{O+4*e+i}, v{KS+4*i+e}, v{KS+4*i+2+e}")
            for i in range(8):
                a(f"v_and_b32 v{O+i}, -2, v{O+i}")
            for e in range(2):
                a(f"buffer_store_dwordx4 {vr(O+4*e)}, v19, s[44:47], s62 offen sc1")
                a("s_add_u32 s62, s62, 4096")
    srd(a, 24, P_DBG, 256)
    srd(a, 32, P_OUT, 8 * MB)
    a("s_mov_b32 s40, 0")
    a("s_mov_b32 s42, 0")
    a("v_lshrrev_b32 v5, 1, v2")
    a("v_lshlrev_b32 v5, 7, v5")
    a("v_and_b32 v4, 1, v2")
    a("v_lshl_add_u32 v5, v4, 4, v5")
    a("v_mov_b32 v4, 0")
    a("buffer_load_dword v226, v4, s[24:27], 0 offen sc1")
    srd_off(a, 24, P_WS, WS_FLAG, 4096)
    a("v_lshlrev_b32 v6, 7, v15")
    a("v_lshl_add_u32 v6, v14, 4, v6")
    a("s_lshl_b32 s60, s15, 11")
    a("s_lshl_b32 s61, s15, 16")
    a(f"s_lshl_b32 s62, s36, {10 if BP else 11}")
    a("s_add_u32 s61, s61, s62")

    def flagcmp(r):
        for i in range(4):
            a(f"v_xor_b32 v{r+i}, v{r+i}, v226")
        a(f"v_or3_b32 v{r}, v{r}, v{r+1}, v{r+2}")
        a(f"v_or_b32 v{r}, v{r}, v{r+3}")
        a(f"v_cmp_ne_u32 vcc, 0, v{r}")

    def u_block(ret):
        a(f"s_add_u32 m0, s7, {CV_UB}")
        for c in range(4):
            a(f"buffer_load_dwordx4 v3, s[44:47], s71 offen offset:{1024*c} sc1 lds")
        a("s_mov_b32 s42, 1")
        a("s_waitcnt vmcnt(0) lgkmcnt(0)")
        lds_signal(a, 9, S_HU, 11)
        stamp(a, 3)
    a(f"s_mov_b32 s43, {RETRY_MAX}")
    a.label("K3_fp")
    a(f"buffer_load_dwordx4 {vr(24)}, v5, s[24:27], 0 offen sc1")
    a(f"buffer_load_dwordx4 {vr(28)}, v5, s[24:27], 0 offen offset:32 sc1")
    a("s_waitcnt vmcnt(0)")
    vm.q = []
    flagcmp(24)
    a("s_sub_u32 s43, s43, 1")
    a("s_cbranch_scc1 K3_fp_ok")
    a("s_cmp_eq_u64 vcc, 0")
    a("s_cbranch_scc1 K3_fp_ok")
    a("s_add_u32 s75, s75, 1")
    a("s_sleep 8")
    a("s_branch K3_fp")
    a.label("K3_fp_ok")
    if POSTPRE:
        a("s_mov_b64 exec, 1")
        a(f"ds_add_rtn_u32 v7, v10, v11 offset:{S_GO}")
        a("s_waitcnt lgkmcnt(0)")
        a("v_readfirstlane_b32 s43, v7")
        a("s_lshl_b32 s62, s11, 7")
        a("s_lshl_b32 s63, s10, 2")
        a("s_add_u32 s62, s62, s63")
        a("s_cmp_lg_u32 s43, 3")
        a("s_cbranch_scc1 K3_nof2")
        a("buffer_store_dword v226, v4, s[24:27], s62 offen offset:32 sc1")
        a.label("K3_nof2")
        a("s_mov_b64 exec, -1")
    stamp(a, 2)
    a("v_mov_b32 v4, s7")
    a(f"ds_read_u16 v7, v4 offset:{CV_HB}")
    a("v_lshlrev_b32 v164, 16, v164")
    a("s_waitcnt lgkmcnt(0)")
    a("v_lshlrev_b32 v7, 16, v7")
    a("v_add_f32 v7, v7, v164")
    a("v_cvt_pk_bf16_f32 v7, v7, v7")
    a(f"ds_write_b16 v4, v7 offset:{CV_HB}")
    flagcmp(28)
    a("s_cmp_lg_u64 vcc, 0")
    a("s_cbranch_scc1 K3_nou0")
    u_block(0)
    a.label("K3_nou0")
    if WAITKV:
        lds_wait(a, "K3_wkvs", 10, S_KVS, 2, 16, 62, sleep=1)
    PQR = 192

    def bulkA():
        for k in range(EARLYWO, 6):
            wo_issue(k)
        a("v_and_b32 v7, 31, v2")
        a("v_lshlrev_b32 v7, 11, v7")
        a(f"s_add_u32 s62, s69, {128*2048}")
        a("buffer_load_dword v165, v7, s[20:23], s62 offen")
        if CPOST:
            srd(a, 16, P_Q, 4 * MB)
            a("v_bfe_u32 v7, v2, 2, 3")
            a("v_lshlrev_b32 v7, 17, v7")
            a("v_and_b32 v8, 3, v2")
            a("v_lshl_add_u32 v7, v8, 11, v7")
            a("buffer_load_dword v165, v7, s[16:19], s64 offen")

    def pq_pick():
        a("s_lshl_b32 s43, s4, 12")
        a(f"s_add_u32 s43, s43, {PQ_BASE}")
        a("v_add_u32 v8, s43, v3")
        lds_wait(a, "K3_wpq", 9, S_PQ, 1, 16, 62, sleep=1)
        for mt in range(4):
            a(f"ds_read_b128 {vr(PQR+4*mt)}, v8 offset:{1024*mt}")
        a("s_waitcnt lgkmcnt(0)")

    if not ZFIRST:
        bulkA()
        pq_pick()
    if PG:
        vm.q = []
        a("s_setprio 2")
        a("s_mov_b32 s62, s61")
        for p in range(16):
            for dt in range(2):
                a(f"buffer_load_dwordx4 {vr(64+8*p+4*dt)}, v3, s[52:55], s62 offen offset:{1024*dt}{GSC}")
                vm.issue(("kv", p))
            a("s_add_u32 s62, s62, 4096")
    if not ZFIRST:
        wo_issue(6)
    if PG:
        if not QEARLY and not CPOST:
            q_loads()
        for i in range(8):
            a(f"v_mov_b32 v{56+i}, 0")
        a("s_mov_b32 s63, 0")
        for p in range(16):
            vm.wait_for([("kv", p)])
            r = 64 + 8 * p
            and_reduce(a, 16, range(r, r + 8))
            a("v_cmp_eq_u32 vcc, 0, v16")
            a(f"s_bitset1_b32 s63, {p}")
            a("s_cmp_lg_u64 vcc, 0")
            a(f"s_cbranch_scc1 K3_pg{p}")
            a(f"s_bitset0_b32 s63, {p}")
            for i in range(8):
                a(f"v_add_f32 v{56+i}, v{56+i}, v{r+i}")
            a.label(f"K3_pg{p}")
    a(f"s_mov_b32 s43, {RETRY_MAX}")
    a.label("K3_zp")
    for dt in range(2):
        a(f"buffer_load_dwordx4 {vr(32+4*dt)}, v6, s[56:59], s60 offen offset:{64*dt} sc1")
    a("s_cmp_lg_u32 s42, 0")
    a("s_cbranch_scc1 K3_zp_nf")
    a(f"buffer_load_dwordx4 {vr(28)}, v5, s[24:27], 0 offen offset:32 sc1")
    a("s_waitcnt vmcnt(0)")
    flagcmp(28)
    a("s_cmp_lg_u64 vcc, 0")
    a("s_cbranch_scc1 K3_zp_nf")
    u_block(1)
    a.label("K3_zp_nf")
    a(f"ds_read_b32 v17, v9 offset:{S_CD}")
    a("s_waitcnt vmcnt(0) lgkmcnt(0)")
    vm.q = []
    and_reduce(a, 16, range(32, 40))
    a("v_readfirstlane_b32 s41, v17")
    a("v_cmp_eq_u32 vcc, 0, v16")
    a("s_sub_u32 s43, s43, 1")
    a("s_cbranch_scc1 K3_zp_ok")
    a("s_cmp_eq_u64 vcc, 0")
    a("s_cbranch_scc1 K3_zp_ok")
    a("s_cmp_lg_u32 s40, 0")
    a("s_cbranch_scc1 K3_zp_s2")
    if QEARLY:
        a("s_cmp_lg_u32 s41, 0")
        a("s_cbranch_scc1 K3_post")
    a.label("K3_zp_s2")
    a(f"s_sleep {ZSLEEP}")
    a("s_branch K3_zp")
    a.label("K3_zp_ok")
    if PW:
        lds_signal(a, 10, S_WOM, 11)
    if PG:
        stamp(a, 4)
        a(f"s_mov_b32 s43, {RETRY_MAX}")
        a.label("K3_ml")
        a("s_cmp_eq_u32 s63, 0")
        a("s_cbranch_scc1 K3_ml_done")
        a("s_ff1_i32_b32 s41, s63")
        a("s_lshl_b32 s62, s41, 12")
        a("s_add_u32 s62, s62, s61")
        for dt in range(2):
            a(f"buffer_load_dwordx4 {vr(64+4*dt)}, v3, s[52:55], s62 offen offset:{1024*dt} sc1")
        a("s_add_u32 s75, s75, 1")
        a("s_waitcnt vmcnt(0)")
        and_reduce(a, 16, range(64, 72))
        a("v_cmp_eq_u32 vcc, 0, v16")
        a("s_sub_u32 s43, s43, 1")
        a("s_cbranch_scc1 K3_ml_done")
        a("s_cmp_lg_u64 vcc, 0")
        a("s_cbranch_scc1 K3_ml")
        a("s_bitset0_b32 s63, s41")
        for i in range(8):
            a(f"v_add_f32 v{56+i}, v{56+i}, v{64+i}")
        a("s_branch K3_ml")
        a.label("K3_ml_done")
        for i in range(8):
            a(f"v_add_f32_dpp v{40+i}, v{32+i}, v{32+i} row_ror:8 {DPP}")
        for sh in (4, 2, 1):
            for i in range(8):
                a(f"v_add_f32_dpp v{40+i}, v{40+i}, v{40+i} row_ror:{sh} {DPP}")
        for i in range(4):
            a(f"v_cvt_pk_bf16_f32 v{48+i}, v{40+2*i}, v{41+2*i}")
        for i in range(8):
            a(f"v_mov_b32 v{64+i}, v{56+i}")
    else:
        stamp(a, 4)
        a("s_setprio 2")
        a(f"s_mov_b32 s43, {RETRY_MAX}")
        def gloads(fl, track):
            a("s_mov_b32 s62, s61")
            for p in range(16):
                for dt in range(1 if BP else 2):
                    r = 96 + 4 * p if BP else 64 + 8 * p + 4 * dt
                    a(f"buffer_load_dwordx4 {vr(r)}, v3, s[52:55], s62 offen offset:{1024*dt}{fl}")
                    if track:
                        vm.issue(("kv", p))
                a("s_add_u32 s62, s62, 4096")
        gloads(GSC, True)
        if ZFIRST:
            bulkA()
            vm.issue("t")
        if not QEARLY and not CPOST:
            q_loads()
        a.label("K3_gl")
        for i in range(8):
            a(f"v_add_f32_dpp v{40+i}, v{32+i}, v{32+i} row_ror:8 {DPP}")
        for sh in (4, 2, 1):
            for i in range(8):
                a(f"v_add_f32_dpp v{40+i}, v{40+i}, v{40+i} row_ror:{sh} {DPP}")
        for i in range(4):
            a(f"v_cvt_pk_bf16_f32 v{48+i}, v{40+2*i}, v{41+2*i}")
        a("v_mov_b32 v16, 1")
        for p in range(16):
            vm.wait_for([("kv", p)])
            if BP:
                r = 96 + 4 * p
                for i in range(0, 4, 2):
                    a(f"v_bitop3_b32 v16, v16, v{r+i}, v{r+i+1} bitop3:0x80")
                t = 64 if p == 0 else 72
                for i in range(4):
                    a(f"v_lshlrev_b32 v{t+2*i}, 16, v{r+i}")
                    a(f"v_and_b32 v{t+2*i+1}, 0xffff0000, v{r+i}")
                if p >= 1:
                    for i in range(8):
                        a(f"v_add_f32 v{64+i}, v{64+i}, v{72+i}")
            else:
                r = 64 + 8 * p
                for i in range(0, 8, 2):
                    a(f"v_bitop3_b32 v16, v16, v{r+i}, v{r+i+1} bitop3:0x80")
                if p >= 1:
                    for i in range(8):
                        a(f"v_add_f32 v{64+i}, v{64+i}, v{r+i}")
        a("v_cmp_eq_u32 vcc, 0, v16")
        a("s_sub_u32 s43, s43, 1")
        a("s_cbranch_scc1 K3_gl_ok")
        a("s_cmp_eq_u64 vcc, 0")
        a("s_cbranch_scc1 K3_gl_ok")
        a("s_add_u32 s75, s75, 1")
        a("s_sleep 4")
        gloads(" sc1", False)
        a("s_waitcnt vmcnt(0)")
        a("s_branch K3_gl")
    a.label("K3_gl_ok")
    for i in range(4):
        a(f"v_cvt_pk_bf16_f32 v{40+i}, v{64+2*i}, v{65+2*i}")
    a("s_lshl_b32 s43, s4, 10")
    a(f"s_add_u32 s43, s43, {KVT}")
    a("v_add_u32 v5, s43, v3")
    a(f"ds_write_b128 v5, {vr(40)}")
    a("s_lshl_b32 s43, s37, 2")
    a("v_add_u32 v7, s43, v10")
    a("s_lshl_b32 s43, s37, 11")
    a(f"s_add_u32 s43, s43, {KVT}")
    a("v_add_u32 v5, s43, v3")
    a("s_waitcnt lgkmcnt(0)")
    lds_signal(a, 7, S_KVT, 11)
    if ZFIRST:
        pq_pick()
        wo_issue(6)
    lds_wait(a, "K3_wkt", 7, S_KVT, 2, 52, 60)
    a(f"ds_read_b128 {vr(40)}, v5")
    a(f"ds_read_b128 {vr(44)}, v5 offset:1024")
    a("s_waitcnt lgkmcnt(0)")
    stamp(a, 5)
    for mt in range(4):
        b = 64 + 12 * mt
        mfma16(a, b + 8, 48, PQR + 4 * mt, "0")
        mfma16(a, b, 40, PQR + 4 * mt, "0")
        mfma16(a, b + 4, 44, PQR + 4 * mt, "0")
    a("s_lshl_b32 s60, s12, 3")
    a("s_lshl_b32 s61, s36, 2")
    a("s_add_u32 s60, s60, s61")
    a("s_lshl_b32 s60, s60, 5")
    a("s_add_u32 s60, s60, s15")
    a("s_lshl_b32 s60, s60, 10")
    a(f"s_mov_b32 s61, {EPS}")
    for mt in range(4):
        a(f"v_add_f32 v{112+mt}, s61, v{64+12*mt+8}")
        a(f"v_rcp_f32 v{112+mt}, v{112+mt}")
    for mt in range(4):
        b = 64 + 12 * mt
        for i in range(8):
            a(f"v_mul_f32 v{b+i}, v{b+i}, v{112+mt}")
        for i in range(4):
            a(f"v_cvt_pk_bf16_f32 v{120+4*mt+i}, v{b+2*i}, v{b+2*i+1}")
        for i in range(4):
            a(f"v_or_b32 v{120+4*mt+i}, 1, v{120+4*mt+i}")
        a(f"buffer_store_dwordx4 {vr(120+4*mt)}, v3, s[48:51], s60 offen sc1")
        a("s_add_u32 s60, s60, 32768")
    a("s_setprio 0")
    stamp(a, 6)
    a(f"s_mov_b32 s43, {RETRY_MAX}")
    a("v_lshrrev_b32 v5, 1, v2")
    a("v_lshlrev_b32 v5, 7, v5")
    a("v_and_b32 v4, 1, v2")
    a("v_lshl_add_u32 v5, v4, 4, v5")
    a.label("K3_ul")
    a("s_cmp_lg_u32 s42, 0")
    a("s_cbranch_scc1 K3_ul_done")
    a(f"buffer_load_dwordx4 {vr(28)}, v5, s[24:27], 0 offen offset:32 sc1")
    a("s_waitcnt vmcnt(0)")
    flagcmp(28)
    a("s_sub_u32 s43, s43, 1")
    a("s_cbranch_scc1 K3_ul_go")
    a("s_cmp_eq_u64 vcc, 0")
    a("s_cbranch_scc1 K3_ul_go")
    a("s_sleep 4")
    a("s_branch K3_ul")
    a.label("K3_ul_go")
    u_block(2)
    a.label("K3_ul_done")
    a("s_and_b32 s60, s10, 3")
    a("s_lshl_b32 s60, s60, 2")
    a("s_and_b32 s61, s11, 3")
    a("s_add_u32 s60, s60, s61")
    a("s_lshl_b32 s60, s60, 18")
    a("s_lshr_b32 s61, s11, 2")
    a("s_lshl_b32 s61, s61, 2")
    a("s_add_u32 s61, s61, s4")
    a("s_lshl_b32 s61, s61, 13")
    a("s_add_u32 s63, s60, s61")
    a("v_lshlrev_b32 v8, 7, v2")
    a("s_waitcnt vmcnt(0)")
    a("buffer_load_dword v60, v8, s[48:51], s63 offen")
    a(f"s_waitcnt vmcnt({0 if TWAIT else 1})")
    if PW:
        lds_signal(a, 9, S_OT, 11)
    else:
        lds_signal(a, 10, S_WOM, 11)
    lds_wait(a, "K3_wcd", 9, S_CD, 1, 16, 60, sleep=1)
    wo_issue(7)
    a("s_waitcnt vmcnt(0)")
    lds_signal(a, 10, S_WOT, 11)
    vm.q = []
    stamp(a, 7)
    a("s_cmp_eq_u32 s40, 1")
    a("s_cbranch_scc1 K3_fin")
    if CPOST:
        lds_wait(a, "K3_wg2", 9, S_G2, 1, 16, 60, sleep=2)
        a(f"ds_read_b32 v16, v9 offset:{S_PD}")
        a("s_waitcnt lgkmcnt(0)")
        a("v_readfirstlane_b32 s60, v16")
        a("s_cmp_lg_u32 s60, 0")
        a("s_cbranch_scc1 K3_fin")
        q_loads()
    if GS >= 0 and not CPOST:
        lds_wait(a, "K3_wg2", 9, S_G2, 1, 16, 60, sleep=2)
    a("s_mov_b32 s40, 2")
    if PDELAY:
        a(f"s_sleep {PDELAY}")
    a(f"s_mov_b32 s43, {RETRY_MAX}")
    a.label("K3_post")
    for ci, sr in enumerate((73, 65, 66, 67)):
        a(f"buffer_load_dwordx4 {vr(16+4*ci)}, v225, s[44:47], s{sr} offen sc1")
    a("s_waitcnt vmcnt(0)")
    and_reduce(a, 48, range(16, 32))
    a("v_cmp_eq_u32 vcc, 0, v48")
    a("s_cmp_eq_u64 vcc, 0")
    a("s_cbranch_scc1 K3_yok")
    a("s_add_u32 s75, s75, 1")
    a("s_cmp_eq_u32 s40, 0")
    a("s_cbranch_scc1 K3_zp_s2")
    if PREPOST:
        a("s_cmp_eq_u32 s40, 3")
        a("s_cbranch_scc1 K3_pw")
    a("s_sub_u32 s43, s43, 1")
    a("s_cbranch_scc1 K3_yok")
    a("s_sleep 8")
    a("s_branch K3_post")
    a.label("K3_yok")
    stamp(a, 8)
    post_compute(a, QR, False)
    a("s_mov_b32 s41, s40")
    a("s_mov_b32 s40, 1")
    a("s_cmp_eq_u32 s41, 0")
    a("s_cbranch_scc1 K3_zp")
    if PREPOST:
        a("s_cmp_eq_u32 s41, 3")
        a("s_cbranch_scc1 K3_pw")
    a.label("K3_fin")
    stamp_flush(a, 9)
    a.label("K3_end")
    a("s_endpgm")
    a.label("K3_code_end")
    return a.finalize(), 252
```

```python
import os
from asmlib import *
from common import prepass, k2_prefetch_setup, MB, vr, mfma16, phi8, unpack4, env, LOG2E, EPS, WS_KVP, WS_ZP, WS_FLAG, WS_UT, WS_DBG, STAMP

WS_OF = 0
NS = 4
STAGE = 40960
K3_LDS = NS * STAGE
CV32 = env("CV32", 0)
CV_REG = 8960 if CV32 else 8704
CV_HB = 64 if CV32 else 32
CV_UB = 4672 if CV32 else 4384
KVT = 4 * CV_REG
SYNC = KVT + 4096
WO_BASE = 40960
PQ_BASE = WO_BASE + 24 * 4096
XCH = WO_BASE + 28 * 4096
XCZ = SYNC + 256
S_KVS = 84
S_PD = 96
S_G2 = 112
S_OT = 128
S_X, S_HU, S_PQ, S_KVT, S_WOM, S_WOT, S_CD, S_GO, S_NONCE, S_WO2 = 0, 8, 24, 40, 48, 52, 56, 72, 76, 80
SPIN_MAX = 1 << 17
RETRY_MAX = 4000
DPP = "row_mask:0xf bank_mask:0xf"
DUTY0 = env("DUTY0", 0)
NDUTY = env("NDUTY", 4)
E2_0 = env("E2_0", 4)
E2_N = env("E2_N", 4)
E3_0 = env("E3_0", 8)
E3_N = env("E3_N", 4)
F1N = env("F1N", 11)
NLEAD = env("NLEAD", 4)
FLAGN = env("FLAGN", 12)
AINIT = env("AINIT", 12)
PDELAY = env("PDELAY", 0)
G2PRIO = env("G2PRIO", 1)
CPOST = env("CPOST", 0)
PG = env("PG", 0)
BP = env("BP", 1)
TWAIT = env("TWAIT", 1)
ZFIRST = env("ZFIRST", 0)
GS = env("GS", 16)
FILLC = env("FILLC", 0)
PRO = env("PRO", 3)
TRO = env("TRO", 1)
EARLYB = env("EARLYB", 1)
LFRONT = env("LFRONT", 0)
ALN = env("ALN", 0)
PW = env("PW", 0)
PHID = env("PHID", 0)
UTF = env("UTF", 0)
NTK = " nt" if env("NTK", 1) else ""
OS1 = env("OS1", " sc1")
OS2 = env("OS2", " sc1")
NPL = env("NPL", 2)
FL0 = env("FL0", 0)
PL0 = env("PL0", 4)
SPF_C = env("SPF_C", 0)
SPF_L = env("SPF_L", 0)
ADEPTH = env("ADEPTH", 16)
YDELAY = env("YDELAY", 8)
ZSLEEP = env("ZSLEEP", 10)
ATOUCH = env("ATOUCH", 1)
XP = env("XP", "23")
LATE = env("LATE", 1)
PREPOST = env("PREPOST", 0)
EARLYWO = env("EARLYWO", 4)
WAITKV = env("WAITKV", 1)
GSC = env("GSC", "")
QX = env("QX", 1)
PREC = env("PREC", 0)
L2PF = env("L2PF", 0)
TLBW = env("TLBW", 0)
CODEPF = env("CODEPF", 0)
DBGOUT = env("DBGOUT", 0)
NTF = " nt" if env("NTF", 0) else ""
NTG = " nt" if env("NTG", 0) else ""
NTO = " nt" if env("NTO", 1) else ""
NTT = " nt" if env("NTT", 0) else ""
NTS = " nt" if env("NTS", 0) else ""
E3W = env("E3W", 1)
QEARLY = env("QEARLY", 0)
POSTPRE = env("POSTPRE", 0)
ASC = env("ASC", "")
P_Q, P_K, P_V, P_SHK, P_H, P_D, P_X, P_W, P_WO, P_OUT, P_DBG, P_WS = [76 + 2 * i for i in range(12)]
SV = 231


def stamp(a, i):
    if STAMP:
        a("s_memrealtime s[100:101]")
        a("s_waitcnt lgkmcnt(0)")
        a(f"v_writelane_b32 v{SV}, s100, {i}")


def cstamp(a, i):
    if STAMP:
        a("s_memtime s[100:101]")
        a("s_waitcnt lgkmcnt(0)")
        a(f"v_writelane_b32 v{SV}, s100, {i}")


def stamp_flush(a, n):
    if not STAMP:
        return
    a("s_mov_b64 exec, -1")
    a("s_waitcnt vmcnt(0)")
    stamp(a, n)
    a(f"v_writelane_b32 v{SV}, s75, 15")
    if DBGOUT:
        lab = "K3_dbg%d" % len(a.ins)
        a(f"s_cmp_lg_u32 s2, {DBGOUT-1}")
        a(f"s_cbranch_scc1 {lab}")
        a("s_cmp_lg_u32 s4, 0")
        a(f"s_cbranch_scc1 {lab}")
        srd(a, 16, P_DBG, 256)
        a(f"v_readlane_b32 s20, v{SV}, 0")
        a("s_lshr_b32 s21, s3, 1")
        a("v_lshlrev_b32 v0, 2, v2")
        a(f"v_subrev_u32 v1, s20, v{SV}")
        a("s_mov_b64 exec, 0x3fe")
        a("buffer_store_short v1, v0, s[16:19], s21 offen")
        a("s_mov_b64 exec, -1")
        a.label(lab)
    srd_off(a, 16, P_WS, WS_DBG, 4 * MB)
    a("s_add_u32 s20, s2, 512")
    a("s_lshl_b32 s20, s20, 4")
    a("s_add_u32 s20, s20, s3")
    a("s_lshl_b32 s20, s20, 6")
    a("v_lshlrev_b32 v0, 2, v2")
    a("s_mov_b64 exec, 0xffff")
    a(f"buffer_store_dword v{SV}, v0, s[16:19], s20 offen")


def lds_wait(a, name, vaddr, off, val, vtmp, stmp, sleep=0):
    a(f"s_mov_b32 s{stmp+1}, {SPIN_MAX}")
    a.label(name)
    if sleep:
        a(f"s_sleep {sleep}")
    a(f"ds_read_b32 v{vtmp}, v{vaddr} offset:{off}")
    a("s_waitcnt lgkmcnt(0)")
    a(f"v_readfirstlane_b32 s{stmp}, v{vtmp}")
    a(f"s_sub_u32 s{stmp+1}, s{stmp+1}, 1")
    a(f"s_cbranch_scc1 {name}_ok")
    a(f"s_cmp_lt_u32 s{stmp}, {val}")
    a(f"s_cbranch_scc1 {name}")
    a.label(name + "_ok")


def lds_signal(a, vaddr, off, vone):
    a("s_mov_b64 exec, 1")
    a(f"ds_add_u32 v{vaddr}, v{vone} offset:{off}")
    a("s_mov_b64 exec, -1")


def and_reduce(a, dst, regs):
    regs = list(regs)
    a(f"v_bitop3_b32 v{dst}, v{regs[0]}, v{regs[1]}, 1 bitop3:0x80")
    i = 2
    while i + 1 < len(regs):
        a(f"v_bitop3_b32 v{dst}, v{dst}, v{regs[i]}, v{regs[i+1]} bitop3:0x80")
        i += 2
    if i < len(regs):
        a(f"v_and_b32 v{dst}, v{dst}, v{regs[i]}")


def phi8d(a, s0, s1, T, dst, sl2e, seps):
    src = [s0, s0 + 1, s0 + 2, s0 + 3, s1, s1 + 1, s1 + 2, s1 + 3]
    for j in range(8):
        a(f"v_min_f32 v{T+j}, 0, v{src[j]}")
    for j in range(4):
        a(f"v_pk_mul_f32 {vr(T+8+2*j,2)}, {vr(T+2*j,2)}, s[{sl2e}:{sl2e+1}]")
    for j in range(8):
        a(f"v_exp_f32 v{T+8+j}, v{T+8+j}")
    for j in range(4):
        a(f"v_pk_add_f32 {vr(src[2*j],2)}, {vr(src[2*j],2)}, {vr(T+2*j,2)} neg_lo:[0,1] neg_hi:[0,1]")
    for j in range(4):
        a(f"v_pk_add_f32 {vr(src[2*j],2)}, {vr(src[2*j],2)}, s[{seps}:{seps+1}]")
    for j in range(4):
        a(f"v_pk_add_f32 {vr(src[2*j],2)}, {vr(src[2*j],2)}, {vr(T+8+2*j,2)}")
    for j in range(4):
        a(f"v_cvt_pk_bf16_f32 v{dst+j}, v{src[2*j]}, v{src[2*j+1]}")


def post_compute(a, QR, pk):
    for jj in range(8):
        T = 48 + 8 * (jj & 1)
        for ci in range(4):
            if jj & 1:
                a(f"v_and_b32 v{T+ci}, 0xffff0000, v{16+4*ci+jj//2}")
            else:
                a(f"v_lshlrev_b32 v{T+ci}, 16, v{16+4*ci+jj//2}")
        for cp in range(2):
            a(f"v_lshlrev_b32 v{T+4+2*cp}, 16, v{QR+2*jj+cp}")
            a(f"v_and_b32 v{T+5+2*cp}, 0xffff0000, v{QR+2*jj+cp}")
        if pk:
            for cp in range(2):
                a(f"v_pk_mul_f32 {vr(T+2*cp,2)}, {vr(T+2*cp,2)}, {vr(T+4+2*cp,2)}")
        else:
            for ci in range(4):
                a(f"v_mul_f32 v{T+ci}, v{T+ci}, v{T+4+ci}")
        O = 64 + 2 * jj
        for cp in range(2):
            a(f"v_cvt_pk_bf16_f32 v{O+cp}, v{T+2*cp}, v{T+2*cp+1}")
        a(f"buffer_store_dwordx2 {vr(O,2)}, v224, s[32:35], s72 offen{NTS}{OS1}")
        a(f"s_add_u32 s72, s72, {64*4096}")


def conv32(a, lg, PK):
    FU, HR, NH = 96, 16, 4
    ACCS = [[32, 48], [64, 80]]
    T2, T1, YV, R3PREV = [224, 225], [226, 227], [228, 229], 230

    def epilogue_ops(p):
        ops = []
        for ql in range(8):
            Q = 8 * p + ql
            acc = ACCS[p & 1][ql // 4] + 4 * (ql % 4)
            R0, R1, R2, R3 = acc, acc + 1, acc + 2, acc + 3
            cur, prv = Q & 1, (Q & 1) ^ 1
            r3p = R3PREV if ql == 0 else ACCS[p & 1][(ql - 1) // 4] + 4 * ((ql - 1) % 4) + 3
            if Q == 0:
                ops.append(f"v_add_f32_dpp v{T2[cur]}, v{R3}, v{R2} wave_shr:1 {DPP} bound_ctrl:0")
                ops.append(f"v_add_f32_dpp v{T1[cur]}, v{T2[cur]}, v{R1} wave_shr:1 {DPP} bound_ctrl:0")
                ops.append(f"v_add_f32_dpp v{YV[cur]}, v{T1[cur]}, v{R0} wave_shr:1 {DPP} bound_ctrl:0")
            else:
                ops.append(f"v_add_f32_dpp v{T2[cur]}, v{r3p}, v{R2} wave_ror:1 {DPP}")
                ops.append(f"v_add_f32_dpp v{T1[cur]}, v{T2[prv]}, v{R1} wave_ror:1 {DPP}")
                ops.append(f"v_add_f32_dpp v{YV[cur]}, v{T1[prv]}, v{R0} wave_ror:1 {DPP}")
                ops.append(f"v_add_f32_dpp v{T2[cur]}, v{R3}, v{R2} wave_shr:1 {DPP}")
                ops.append(f"v_add_f32_dpp v{T1[cur]}, v{T2[cur]}, v{R1} wave_shr:1 {DPP}")
                ops.append(f"v_add_f32_dpp v{YV[cur]}, v{T1[cur]}, v{R0} wave_shr:1 {DPP}")
            if ql & 1:
                d = PK[p] + ql // 2
                ops.append(f"v_cvt_pk_bf16_f32 v{d}, v{YV[0]}, v{YV[1]}")
                ops.append(f"v_or_b32 v{d}, 1, v{d}")
            if ql == 7:
                ops.append(f"v_mov_b32 v{R3PREV}, v{R3}")
        return ops

    steps = [(p, t) for p in range(4) for t in range(8 * p + 8)]
    issued = set()
    hslot = {}

    def issue_h(idx):
        p, t = steps[idx]
        slot = idx % NH
        hslot[idx] = slot
        for h in range(2):
            a(f"ds_read_b64_tr_b16 {vr(HR+4*slot+2*h,2)}, v12 offset:{128*t+32*(1-h)}")
            lg.issue(("h", slot))

    def issue_fu(s):
        if s in issued:
            return
        issued.add(s)
        for h in range(2):
            a(f"ds_read_b64_tr_b16 {vr(FU+4*(s+3)+2*h,2)}, v13 offset:{128*(s+3)+32*h}")
            lg.issue(("fu", s))

    def need(idx):
        p, t = steps[idx]
        r = [8 * p + 4 - t]
        if t <= 8 * p + 3:
            r.append(8 * p - t)
        return r

    PRE = 3
    for idx in range(PRE):
        for s in need(idx):
            issue_fu(s)
        issue_h(idx)
    pending = []
    for idx, (p, t) in enumerate(steps):
        if t == 0 and p > 0:
            assert not pending
            pending = epilogue_ops(p - 1)
        slot = hslot[idx]
        lg.wait_for([("h", slot)] + [("fu", s) for s in need(idx)])
        mf = [(1, 8 * p + 4 - t)]
        if t <= 8 * p + 3:
            mf.append((0, 8 * p - t))
        for k, (tile, s) in enumerate(mf):
            d = ACCS[p & 1][tile]
            cs = "0" if t == 0 else vr(d, 16)
            a(f"v_mfma_f32_32x32x16_bf16 {vr(d,16)}, {vr(FU+4*(s+3))}, {vr(HR+4*slot)}, {cs}")
            if k == 0 and idx + PRE < len(steps):
                for s2 in need(idx + PRE):
                    issue_fu(s2)
                issue_h(idx + PRE)
            if pending and t >= 2:
                for _ in range(3):
                    if pending:
                        a(pending.pop(0))
    assert not pending
    for op in epilogue_ops(3):
        a(op)


def gen_k3():
    a = Asm()
    a.label("K3_code_begin")
    a("s_cmp_ge_u32 s2, 256")
    a("s_cbranch_scc1 K3_end")
    a("s_load_dwordx8 s[84:91], s[0:1], 32")
    a("s_load_dwordx8 s[92:99], s[0:1], 64")
    a("s_load_dwordx8 s[76:83], s[0:1], 0")
    a("v_lshrrev_b32 v1, 6, v0")
    a("v_and_b32 v2, 63, v0")
    a("s_and_b32 s10, s2, 7")
    a("v_readfirstlane_b32 s3, v1")
    a("s_lshr_b32 s11, s2, 3")
    a("s_and_b32 s12, s10, 1")
    a("s_lshl_b32 s12, s12, 3")
    a("s_and_b32 s13, s11, 7")
    a("s_add_u32 s12, s12, s13")
    a("s_lshr_b32 s13, s10, 1")
    a("s_lshl_b32 s13, s13, 2")
    a("s_lshr_b32 s14, s11, 3")
    a("s_add_u32 s13, s13, s14")
    a("s_mov_b32 s75, 0")
    a("s_and_b32 s4, s3, 3")
    a("s_and_b32 s36, s3, 1")
    a("s_bfe_u32 s37, s3, 0x10001")
    a("s_lshl_b32 s5, s13, 1")
    a("s_add_u32 s5, s5, s37")
    a(f"s_xor_b32 s15, s5, {2 if QX else 0}")
    a("s_lshl_b32 s6, s10, 7")
    a("s_lshl_b32 s7, s11, 2")
    a("s_add_u32 s6, s6, s7")
    a("s_add_u32 s6, s6, s4")
    a(f"s_mul_i32 s7, s4, {CV_REG}")
    a("v_lshlrev_b32 v3, 4, v2")
    a("v_lshrrev_b32 v14, 4, v2")
    a("v_and_b32 v15, 15, v2")
    spf = []
    if not EARLYB:
        a("s_waitcnt lgkmcnt(0)")
        stamp(a, 0)
    if LFRONT == 1:
        a("s_cmp_lt_u32 s3, 4")
        a("s_cbranch_scc1 K3_C")
        mark = len(a.ins)
        a.label("K3_C")
    else:
        a("s_cmp_ge_u32 s3, 4")
        a("s_cbranch_scc1 K3_L")
    if EARLYB:
        a("s_waitcnt lgkmcnt(0)")
        stamp(a, 0)

    if L2PF:
        srd(a, 40, P_X, 4 * MB)
        srd(a, 48, P_W, 6 * MB)
        a("v_lshrrev_b32 v192, 3, v2")
        a("v_lshlrev_b32 v192, 11, v192")
        a("v_and_b32 v16, 7, v2")
        a("v_lshl_add_u32 v192, v16, 7, v192")
        a("s_and_b32 s44, s10, 1")
        a("s_lshl_b32 s44, s44, 21")
        a("s_lshl_b32 s45, s11, 16")
        a("s_add_u32 s44, s44, s45")
        a("s_lshl_b32 s45, s3, 14")
        a("s_add_u32 s44, s44, s45")
        a(f"buffer_load_dword v195, v192, s[40:43], s44 offen{NTT}")
        a("v_lshrrev_b32 v193, 2, v2")
        a("v_mul_u32_u24 v193, 6144, v193")
        a("v_and_b32 v16, 3, v2")
        a("v_lshl_add_u32 v193, v16, 7, v193")
        a("s_mul_i32 s45, s11, 98304")
        a("s_lshl_b32 s46, s3, 11")
        a("s_add_u32 s45, s45, s46")
        a("s_lshr_b32 s46, s10, 1")
        a("s_lshl_b32 s46, s46, 9")
        a("s_add_u32 s45, s45, s46")
        a("s_cmp_eq_u32 s3, 3")
        a(f"s_cselect_b32 s45, {16*MB}, s45")
        a(f"buffer_load_dword v195, v193, s[48:51], s45 offen{NTT}")
        a("s_add_u32 s44, s44, 1024")
        a(f"s_add_u32 s45, s45, {512*6144}")
    else:
        a("s_cmp_lg_u32 s3, 0")
        a("s_cbranch_scc1 K3_pfw")
        srd(a, 40, P_X, 4 * MB)
        a("v_lshrrev_b32 v192, 3, v2")
        a("v_lshlrev_b32 v192, 11, v192")
        a("v_and_b32 v16, 7, v2")
        a("v_lshl_add_u32 v192, v16, 7, v192")
        a("s_lshl_b32 s45, s2, 14")
        a("s_add_u32 s44, s45, 1024")
        a("s_branch K3_pfd")
        a.label("K3_pfw")
        srd(a, 40, P_W, 6 * MB)
        a("v_lshlrev_b32 v192, 7, v2")
        a("s_mul_i32 s45, s2, 12288")
        a("s_sub_u32 s44, s3, 1")
        a("s_lshl_b32 s44, s44, 12")
        a("s_add_u32 s45, s45, s44")
        a(f"s_add_u32 s44, s45, {3*MB}")
        a("s_cmp_eq_u32 s3, 3")
        a(f"s_cselect_b32 s45, {8*MB}, s45")
        a(f"s_cselect_b32 s44, {8*MB}, s44")
        a.label("K3_pfd")
        if "1" in XP:
            a(f"s_mov_b32 s45, {16*MB}")
            a(f"s_mov_b32 s44, {16*MB}")
        a(f"buffer_load_dword v195, v192, s[40:43], s45 offen{NTT}")
    if LFRONT == 2:
        a("s_branch K3_C2")
        mark = len(a.ins)
        a.label("K3_C2")
    srd(a, 56, P_DBG, 256)
    srd_off(a, 60, P_WS, WS_FLAG, 4096)
    a("s_memrealtime s[16:17]")
    a("v_mov_b32 v199, 0")
    a("s_waitcnt lgkmcnt(0)")
    a("s_or_b32 s16, s16, 1")
    a("v_mov_b32 v198, s16")
    a("s_cmp_lg_u32 s3, 3")
    a("s_cbranch_scc1 K3_noseed")
    a("s_cmp_lg_u32 s11, 0")
    a("s_cbranch_scc1 K3_noseed")
    a("v_mov_b32 v196, s16")
    a("v_mov_b32 v197, 0")
    a("s_mov_b64 exec, 1")
    a("buffer_atomic_cmpswap v[196:197], v199, s[56:59], 0 offen sc1")
    a("s_mov_b64 exec, -1")
    a.label("K3_noseed")
    if CODEPF:
        a("s_cmp_lg_u32 s3, 3")
        a("s_cbranch_scc1 K3_nocpf")
        a(f"s_cmp_ge_u32 s11, {CODEPF}")
        a("s_cbranch_scc1 K3_nocpf")
        a("s_getpc_b64 s[16:17]")
        a.label("K3_pc")
        a("s_sub_u32 s16, s16, K3_pc-K3_code_begin")
        a("s_subb_u32 s17, s17, 0")
        a("s_mov_b32 s18, K3_code_end-K3_code_begin")
        a("s_mov_b32 s19, 0x20000")
        a("v_lshlrev_b32 v16, 7, v2")
        for i in range(6):
            a(f"s_mov_b32 s20, {8192*i}")
            a("buffer_load_dword v195, v16, s[16:19], s20 offen")
        a.label("K3_nocpf")
    if TLBW:
        a("s_cmp_lg_u32 s3, 3")
        a("s_cbranch_scc1 K3_notlb")
        a(f"s_cmp_ge_u32 s11, {TLBW}")
        a("s_cbranch_scc1 K3_notlb")
        a("v_lshlrev_b32 v16, 16, v2")
        for p, nb, offs in ((P_K, 4, (0,)), (P_V, 4, (0,)), (P_H, 4, (0,)), (P_Q, 4, (0,)), (P_WO, 2, (0,)), (P_OUT, 8, (0, 4)), (P_WS, 20, (0, 8, 12, 16))):
            srd(a, 16, p, nb * MB)
            for o in offs:
                a(f"s_mov_b32 s20, {o*MB}")
                a("buffer_load_dword v195, v16, s[16:19], s20 offen nt")
        a.label("K3_notlb")
    a("s_lshl_b32 s46, s11, 7")
    a("s_lshl_b32 s47, s10, 2")
    a("s_add_u32 s47, s47, s46")
    if PREC:
        pre_compute = prepass(a, 3, P_K, P_V, P_SHK, " sc1", P_WS, NTO)
    if not L2PF:
        a("s_cmp_ge_u32 s3, 2")
        a(f"s_cselect_b32 s48, s{P_V}, s{P_K}")
        a(f"s_cselect_b32 s49, s{P_V+1}, s{P_K+1}")
        a(f"s_mov_b32 s50, {4*MB}")
        a("s_mov_b32 s51, 0x20000")
        a("v_lshrrev_b32 v193, 2, v2")
        a("v_lshlrev_b32 v193, 11, v193")
        a("v_and_b32 v16, 3, v2")
        a("v_lshl_add_u32 v193, v16, 7, v193")
        a("s_lshr_b32 s45, s2, 2")
        a("s_lshl_b32 s45, s45, 16")
        a("s_lshl_b32 s46, s36, 15")
        a("s_add_u32 s45, s45, s46")
        a("s_and_b32 s46, s2, 3")
        a("s_lshl_b32 s46, s46, 9")
        a("s_add_u32 s45, s45, s46")
        if "2" in XP:
            a(f"s_mov_b32 s45, {16*MB}")
    a("v_mov_b32 v200, v15")
    for part in range(4):
        if part < 3:
            a(f"s_cmp_lg_u32 s3, {part}")
            a(f"s_cbranch_scc1 K3_e3_{part+1}")
        k2_prefetch_setup(a, part, 194, 64, 68, P_H, P_Q, P_WO)
        if part < 3:
            a("s_branch K3_e3_done")
            a.label(f"K3_e3_{part+1}")
    a.label("K3_e3_done")
    a("v_mov_b32 v15, v200")
    a(f"s_and_b32 s55, s11, {NDUTY-1}")
    a(f"s_add_u32 s55, s55, {DUTY0}")
    a(f"s_and_b32 s52, s11, {E2_N-1}")
    a(f"s_add_u32 s52, s52, {E2_0}")
    a("s_sub_u32 s52, s52, s55")
    a("s_sub_u32 s52, s52, 1")
    a("s_mov_b32 s54, 0")
    a("s_lshr_b32 s70, s11, 2")
    a(f"s_and_b32 s70, s70, {E3_N-1}")
    a(f"s_add_u32 s70, s70, {E3_0 if '3' not in XP else 1000}")
    if E3W:
        a("s_cmp_lt_u32 s3, 2")
        a("s_cselect_b32 s70, 1000, s70")
    a("s_cmp_eq_u32 s3, 3")
    a(f"s_cselect_b32 s71, {F1N-NLEAD}, 1000")
    a("s_mov_b32 s53, 0")
    if PREC:
        pre_compute()
    if FILLC:
        srd_off(a, 16, P_WS, WS_OF, 4 * MB)
        srd_off(a, 20, P_WS, WS_KVP, 2 * MB)
        srd_off(a, 24, P_WS, WS_ZP, 64 * 1024)
        a("s_lshl_b32 s28, s12, 3")
        a("s_lshl_b32 s29, s4, 1")
        a("s_add_u32 s28, s28, s29")
        a("s_lshl_b32 s28, s28, 15")
        a("s_lshr_b32 s29, s15, 1")
        a("s_lshl_b32 s29, s29, 11")
        a("s_add_u32 s28, s28, s29")
        a("s_add_u32 s29, s28, 32768")
        a("s_lshl_b32 s30, s5, 4")
        a("s_add_u32 s30, s30, s12")
        a("s_lshl_b32 s31, s30, 7")
        a("s_lshl_b32 s30, s30, 12")
        a("s_lshl_b32 s32, s36, 10")
        a("s_add_u32 s30, s30, s32")
        for i in range(4):
            a(f"v_mov_b32 v{20+i}, 0")
        a("v_and_b32 v18, 7, v2")
        a("v_lshlrev_b32 v18, 4, v18")
        a("buffer_store_dwordx4 v[20:23], v3, s[16:19], s28 offen sc1")
        a("buffer_store_dwordx4 v[20:23], v3, s[16:19], s28 offen offset:1024 sc1")
        a("buffer_store_dwordx4 v[20:23], v3, s[16:19], s29 offen sc1")
        a("buffer_store_dwordx4 v[20:23], v3, s[16:19], s29 offen offset:1024 sc1")
        a("buffer_store_dwordx4 v[20:23], v3, s[20:23], s30 offen sc1")
        a("buffer_store_dwordx4 v[20:23], v18, s[24:27], s31 offen sc1")
    a("s_lshl_b32 s38, s36, 6")
    a("v_add_u32 v16, s38, v15")
    a("v_lshrrev_b32 v17, 1, v15")
    a("v_lshlrev_b32 v16, 7, v16")
    a("v_xor_b32 v17, v14, v17")
    a("v_lshl_add_u32 v4, v17, 4, v16")
    a("v_xor_b32 v5, 64, v4")
    a(f"v_add_u32 v6, {2*STAGE}, v4")
    a(f"v_add_u32 v7, {2*STAGE}, v5")
    a("v_bfe_u32 v17, v2, 2, 2")
    a("v_and_b32 v18, 3, v2")
    a("v_lshlrev_b32 v17, 6, v17")
    a("v_lshl_add_u32 v17, v18, 3, v17")
    a("v_and_b32 v18, 1, v14")
    a("v_lshl_add_u32 v17, v18, 10, v17")
    a("v_lshl_add_u32 v17, v18, 5, v17")
    a("v_lshrrev_b32 v18, 1, v14")
    a("v_mul_u32_u24 v18, 6144, v18")
    a("v_add_u32 v17, v17, v18")
    a("s_lshl_b32 s38, s37, 8")
    a("s_add_u32 s38, s38, 16384")
    a("v_add_u32 v8, s38, v17")
    a("v_xor_b32 v9, 32, v8")
    a(f"v_add_u32 v10, {2*STAGE}, v8")
    a(f"v_add_u32 v11, {2*STAGE}, v9")
    SB = [16, 56]

    def accr(kind, mt, dt):
        return 96 + 32 * kind + (mt * 2 + dt) * 4

    for i in range(96, 192):
        a(f"v_mov_b32 v{i}, 0")
    for op in spf[:SPF_C]:
        a(op)
    a("s_waitcnt lgkmcnt(0)")
    srd_off(a, 28, P_WS, WS_KVP, 2 * MB)
    srd_off(a, 32, P_WS, WS_ZP, 64 * 1024)
    lg = Cnt(a, "lgkmcnt", 15)

    def reads(slot, t, st):
        sb = (slot & 1) * STAGE
        va = 4 + t + (2 if slot >= 2 else 0)
        vb = 10 if slot >= 2 else 8
        R = SB[st]

        def A(mt):
            return [(("A", mt, st), f"ds_read_b128 {vr(R+4*mt)}, v{va} offset:{sb + 2048*mt}")]

        def B(cb):
            seg, nh = cb // 2, cb % 2
            return [(("B", cb, st), f"ds_read_b64_tr_b16 {vr(R+16+4*cb+2*h,2)}, v{vb+nh} offset:{sb + t*12288 + seg*2048 + 512*h}") for h in range(2)]
        return A(0) + B(0) + A(1) + A(2) + A(3) + B(1) + B(2) + B(3) + B(4) + B(5)

    def group(st, nxt):
        R = SB[st]
        nxt = list(nxt)
        for cb in range(6):
            kind, dt = cb // 2, cb % 2
            for mt in range(4):
                lg.wait_for([("A", mt, st), ("B", cb, st)])
                fa, fb = R + 4 * mt, R + 16 + 4 * cb
                if kind == 0:
                    mfma16(a, accr(0, mt, dt), fb, fa)
                else:
                    mfma16(a, accr(kind, mt, dt), fa, fb)
                if nxt:
                    tag, txt = nxt.pop(0)
                    a(txt)
                    lg.issue(tag)

    a("s_barrier")
    stamp(a, 1)
    cstamp(a, 10)
    for tag, txt in reads(0, 0, 0):
        a(txt)
        lg.issue(tag)
    lg.drain()
    a("s_mov_b32 s39, 4")
    if ALN:
        a(".p2align 6")
        if ALN == 2:
            a("s_nop 0")
    a.label("K3_loop")
    for slot in range(4):
        group(0, reads(slot, 1, 1))
        lg.drain()
        a("s_barrier")
        a("s_sub_u32 s55, s55, 1")
        a(f"s_cbranch_scc1 K3_event{slot}")
        a.label(f"K3_noev{slot}")
        a("s_sub_u32 s70, s70, 1")
        a(f"s_cbranch_scc1 K3_evB{slot}")
        a.label(f"K3_noevB{slot}")
        a("s_sub_u32 s71, s71, 1")
        a(f"s_cbranch_scc1 K3_evC{slot}")
        a.label(f"K3_noevC{slot}")
        group(1, reads((slot + 1) % 4, 0, 0))
        if slot == 3:
            a("s_sub_u32 s39, s39, 1")
            a("s_cmp_lg_u32 s39, 0")
            lg.drain()
    a("s_cbranch_scc1 K3_loop")
    stamp(a, 2)
    cstamp(a, 11)

    a(f"s_mov_b32 s44, {LOG2E}")
    a(f"s_mov_b32 s45, {LOG2E}")
    a(f"s_mov_b32 s46, {EPS}")
    a(f"s_mov_b32 s47, {EPS}")
    a(f"v_mov_b32 v10, {SYNC}")
    a("v_mov_b32 v11, 1")
    for et in range(2):
        for m in range(2):
            d = 16 + 4 * (2 * et + m)
            for hh in range(2):
                s = accr(2, 2 * m + hh, et)
                a(f"v_cvt_pk_bf16_f32 v{d+2*hh}, v{s}, v{s+1}")
                a(f"v_cvt_pk_bf16_f32 v{d+2*hh+1}, v{s+2}, v{s+3}")
    for i in range(4):
        a(f"v_mov_b32 v{48+i}, 0x3f803f80")
    KV, ZZ, T = 160, 176, 52
    for m in range(2):
        for dt in range(2):
            kf = 32 + 4 * (2 * dt + m)
            if PHID:
                phi8d(a, accr(1, 2 * m, dt), accr(1, 2 * m + 1, dt), T, kf, 44, 46)
            else:
                for hh in range(2):
                    s = accr(1, 2 * m + hh, dt)
                    a(f"v_cvt_pk_bf16_f32 v{T+2*hh}, v{s}, v{s+1}")
                    a(f"v_cvt_pk_bf16_f32 v{T+2*hh+1}, v{s+2}, v{s+3}")
                unpack4(a, T, T)
                phi8(a, T, kf, 44, 46)
            for et in range(2):
                mfma16(a, KV + 4 * (2 * et + dt), kf, 16 + 4 * (2 * et + m), "0" if m == 0 else None)
            mfma16(a, ZZ + 4 * dt, kf, 48, "0" if m == 0 else None)
    a("s_lshl_b32 s43, s37, 12")
    a(f"s_add_u32 s43, s43, {XCH}")
    a("v_add_u32 v4, s43, v3")
    a("s_lshl_b32 s43, s37, 7")
    a(f"s_add_u32 s43, s43, {XCZ}")
    a("v_lshlrev_b32 v5, 5, v14")
    a("v_add_u32 v5, s43, v5")
    a("s_lshl_b32 s43, s37, 2")
    a("v_add_u32 v6, s43, v10")
    a("s_cmp_eq_u32 s36, 0")
    a("s_cbranch_scc1 K3_wr0")
    for qd in range(4):
        a(f"ds_write_b128 v4, {vr(KV+4*qd)} offset:{1024*qd}")
    for dt in range(2):
        a(f"ds_write_b128 v5, {vr(ZZ+4*dt)} offset:{16*dt}")
    a("s_waitcnt lgkmcnt(0)")
    lds_signal(a, 6, S_X, 11)
    a("s_branch K3_q")
    a.label("K3_wr0")
    a("s_lshl_b32 s48, s5, 4")
    a("s_add_u32 s48, s48, s12")
    a("s_lshl_b32 s49, s48, 12")
    a("s_lshl_b32 s50, s48, 7")
    a("v_lshlrev_b32 v7, 4, v14")
    lds_wait(a, "K3_wx", 6, S_X, 1, 8, 42)
    for qd in range(4):
        a(f"ds_read_b128 {vr(16+4*qd)}, v4 offset:{1024*qd}")
    for dt in range(2):
        a(f"ds_read_b128 {vr(32+4*dt)}, v5 offset:{16*dt}")
    for qd in range(6):
        a(f"s_waitcnt lgkmcnt({5-qd})")
        a(f"v_pk_add_f32 {vr(KV+4*qd,2)}, {vr(KV+4*qd,2)}, {vr(16+4*qd,2)}")
        a(f"v_pk_add_f32 {vr(KV+4*qd+2,2)}, {vr(KV+4*qd+2,2)}, {vr(16+4*qd+2,2)}")
        if BP and qd < 4:
            d = 40 + 2 * qd
            a(f"v_cvt_pk_bf16_f32 v{d}, v{KV+4*qd}, v{KV+4*qd+1}")
            a(f"v_cvt_pk_bf16_f32 v{d+1}, v{KV+4*qd+2}, v{KV+4*qd+3}")
            a(f"v_or_b32 v{d}, 1, v{d}")
            a(f"v_or_b32 v{d+1}, 1, v{d+1}")
            if qd & 1:
                a(f"buffer_store_dwordx4 {vr(d-2)}, v3, s[28:31], s49 offen offset:{1024*(qd//2)} sc1")
            continue
        for i in range(4):
            a(f"v_or_b32 v{KV+4*qd+i}, 1, v{KV+4*qd+i}")
        if qd < 4:
            a(f"buffer_store_dwordx4 {vr(KV+4*qd)}, v3, s[28:31], s49 offen offset:{1024*qd} sc1")
    a("s_mov_b32 exec_lo, 0x00010001")
    a("s_mov_b32 exec_hi, 0x00010001")
    for dt in range(2):
        a(f"buffer_store_dwordx4 {vr(ZZ+4*dt)}, v7, s[32:35], s50 offen offset:{64*dt} sc1")
    a("s_mov_b64 exec, -1")
    lds_signal(a, 10, S_KVS, 11)
    a.label("K3_q")
    stamp(a, 3)
    a("s_lshl_b32 s43, s3, 12")
    a(f"s_add_u32 s43, s43, {PQ_BASE}")
    a("v_add_u32 v4, s43, v3")
    for mt in range(4):
        d = 80 + 4 * mt
        if PHID:
            phi8d(a, accr(0, mt, 0), accr(0, mt, 1), T, d, 44, 46)
        else:
            for dt in range(2):
                sr = accr(0, mt, dt)
                a(f"v_cvt_pk_bf16_f32 v{T+2*dt}, v{sr}, v{sr+1}")
                a(f"v_cvt_pk_bf16_f32 v{T+2*dt+1}, v{sr+2}, v{sr+3}")
            unpack4(a, T, T)
            phi8(a, T, d, 44, 46)
        a(f"ds_write_b128 v4, {vr(d)} offset:{1024*mt}")
    a("s_lshl_b32 s43, s3, 2")
    a("v_add_u32 v9, s43, v10")
    if CV32:
        a("v_and_b32 v6, 3, v2")
        a("v_bfe_u32 v7, v2, 2, 2")
        a("v_bfe_u32 v4, v2, 4, 1")
        a("v_lshrrev_b32 v5, 5, v2")
        a("v_lshlrev_b32 v12, 5, v4")
        a("v_lshl_add_u32 v12, v6, 3, v12")
        a("v_lshl_add_u32 v12, v5, 6, v12")
        a("v_lshlrev_b32 v7, 3, v7")
        a("v_sub_u32 v12, v12, v7")
        a("s_add_u32 s43, s7, 32")
        a("v_add_u32 v12, s43, v12")
        a("v_lshlrev_b32 v13, 8, v4")
        a("v_lshl_add_u32 v13, v6, 6, v13")
        a("v_add_u32 v13, v13, v7")
        a("v_lshlrev_b32 v5, 6, v5")
        a("v_sub_u32 v13, v13, v5")
        a(f"s_add_u32 s43, s7, {CV_UB-384}")
        a("v_add_u32 v13, s43, v13")
    else:
        a("v_and_b32 v6, 3, v2")
        a("v_bfe_u32 v7, v2, 2, 2")
        a("v_add_u32 v12, v6, v7")
        a("v_lshlrev_b32 v12, 3, v12")
        a("v_lshl_add_u32 v12, v14, 6, v12")
        a(f"s_add_u32 s43, s7, {CV_HB-24}")
        a("v_add_u32 v12, s43, v12")
        a("v_lshlrev_b32 v13, 5, v6")
        a("v_lshlrev_b32 v7, 3, v7")
        a("v_sub_u32 v13, v13, v7")
        a("v_lshlrev_b32 v7, 6, v14")
        a("v_sub_u32 v13, v13, v7")
        a(f"s_add_u32 s43, s7, {CV_UB+24-32}")
        a("v_add_u32 v13, s43, v13")
    a(f"s_add_u32 s43, s7, {CV_UB}")
    a("v_add_u32 v8, s43, v3")
    a("s_waitcnt lgkmcnt(0)")
    lds_signal(a, 9, S_PQ, 11)
    stamp(a, 4)
    lds_wait(a, "K3_whu", 9, S_HU, 1, 16, 42)
    stamp(a, 5)

    if ALN:
        a(".p2align 3")
        if ALN == 3:
            a("s_nop 0")
    HH, FU = 32, 96
    ACC = [16, 20, 24, 28]
    T2, T1, YV, PK = [224, 225], [226, 227], [228, 229], [232, 236, 240, 244]
    lg.q = []

    def fu_reads(s):
        for hf in range(2):
            a(f"ds_read_b64_tr_b16 {vr(FU+4*s+2*hf,2)}, v13 offset:{128*s + 32*(1-hf)}")
            lg.issue(("fu", s))

    def h_reads(t):
        for hf in range(2):
            a(f"ds_read_b64_tr_b16 {vr(HH+4*t+2*hf,2)}, v12 offset:{256*t + 32*hf}")
            lg.issue(("h", t))

    def epi(Q):
        ops = []
        R0 = ACC[Q % 4]
        R1, R2, R3 = R0 + 1, R0 + 2, R0 + 3
        cur, prv = Q & 1, (Q & 1) ^ 1
        if Q == 0:
            ops.append(f"v_add_f32_dpp v{T2[cur]}, v{R3}, v{R2} wave_shr:1 {DPP} bound_ctrl:0")
            ops.append(f"v_add_f32_dpp v{T1[cur]}, v{T2[cur]}, v{R1} wave_shr:1 {DPP} bound_ctrl:0")
            ops.append(f"v_add_f32_dpp v{YV[cur]}, v{T1[cur]}, v{R0} wave_shr:1 {DPP} bound_ctrl:0")
        else:
            r3p = ACC[(Q - 1) % 4] + 3
            ops.append(f"v_add_f32_dpp v{T2[cur]}, v{r3p}, v{R2} wave_ror:1 {DPP}")
            ops.append(f"v_add_f32_dpp v{T1[cur]}, v{T2[prv]}, v{R1} wave_ror:1 {DPP}")
            ops.append(f"v_add_f32_dpp v{YV[cur]}, v{T1[prv]}, v{R0} wave_ror:1 {DPP}")
            ops.append(f"v_add_f32_dpp v{T2[cur]}, v{R3}, v{R2} wave_shr:1 {DPP}")
            ops.append(f"v_add_f32_dpp v{T1[cur]}, v{T2[cur]}, v{R1} wave_shr:1 {DPP}")
            ops.append(f"v_add_f32_dpp v{YV[cur]}, v{T1[cur]}, v{R0} wave_shr:1 {DPP}")
        if Q & 1:
            p = PK[Q // 8] + (Q % 8) // 2
            ops.append(f"v_cvt_pk_bf16_f32 v{p}, v{YV[0]}, v{YV[1]}")
            ops.append(f"v_or_b32 v{p}, 1, v{p}")
        return ops

    if CV32:
        conv32(a, lg, PK)
    else:
        PRE = 3
        for c in range(PRE):
            fu_reads(c)
            if c % 2 == 0:
                h_reads(c // 2)
        pending = []
        for c in range(32):
            nst = c // 2 + 1
            for t in range(nst):
                s = c - 2 * t
                lg.wait_for([("fu", s), ("h", t)])
                mfma16(a, ACC[c % 4], FU + 4 * s, HH + 4 * t, "0" if t == 0 else None)
                if t == 0 and c + PRE < 32:
                    fu_reads(c + PRE)
                    if (c + PRE) % 2 == 0:
                        h_reads((c + PRE) // 2)
                if t == 0 and c >= 2:
                    assert not pending
                    pending = epi(c - 2)
                k = max(1, -(-len(pending) // (nst - t))) if pending else 0
                for _ in range(k):
                    a(pending.pop(0))
        for Q in (30, 31):
            for op in epi(Q):
                a(op)
    srd_off(a, 28, P_WS, WS_UT, 4 * MB)
    a("s_lshl_b32 s40, s6, 12")
    for g in range(4):
        a(f"buffer_store_dwordx4 {vr(PK[g])}, v3, s[28:31], s40 offen offset:{1024*g} sc1")
    a("s_and_b32 s40, s10, 3")
    a("s_lshl_b32 s40, s40, 2")
    a("s_and_b32 s41, s11, 3")
    a("s_add_u32 s40, s40, s41")
    a("s_lshl_b32 s41, s40, 3")
    a("s_lshl_b32 s42, s3, 1")
    a("s_add_u32 s41, s41, s42")
    a("s_lshl_b32 s48, s41, 15")
    a("s_mov_b32 s47, s48")
    a("v_lshrrev_b32 v5, 5, v2")
    a("v_and_b32 v6, 1, v14")
    a("v_lshlrev_b32 v12, 15, v6")
    a("v_lshl_add_u32 v12, v5, 8, v12")
    a("v_lshl_add_u32 v12, v15, 4, v12")
    srd_off(a, 28, P_WS, WS_OF, 4 * MB)
    srd(a, 32, P_OUT, 8 * MB)
    a("s_waitcnt lgkmcnt(0)")
    lds_signal(a, 9, S_CD, 11)
    stamp(a, 6)
    if CPOST:
        a("s_lshl_b32 s16, s10, 1")
        a("s_lshr_b32 s17, s11, 4")
        a("s_add_u32 s16, s16, s17")
        a("s_and_b32 s17, s11, 15")
        a("s_lshl_b32 s17, s17, 2")
        a("s_add_u32 s17, s17, s4")
        a("s_lshr_b32 s18, s17, 4")
        a("s_and_b32 s17, s17, 15")
        a("s_lshl_b32 s19, s18, 9")
        a("s_lshl_b32 s64, s17, 2")
        a("s_add_u32 s19, s19, s64")
        a("s_lshl_b32 s64, s19, 11")
        a("s_lshl_b32 s65, s16, 7")
        a("s_add_u32 s64, s64, s65")
        a("s_lshl_b32 s72, s19, 12")
        a("s_add_u32 s72, s72, s65")
        a("s_lshl_b32 s73, s16, 18")
        a("s_lshl_b32 s65, s18, 10")
        a("s_add_u32 s73, s73, s65")
        a("s_lshl_b32 s65, s17, 6")
        a("s_add_u32 s73, s73, s65")
        a("s_add_u32 s65, s73, 4096")
        a("s_add_u32 s66, s73, 8192")
        a("s_add_u32 s67, s73, 12288")
        a("v_lshlrev_b32 v224, 12, v14")
        a("v_lshl_add_u32 v224, v15, 3, v224")
        a("v_lshlrev_b32 v225, 14, v15")
        a("v_lshl_add_u32 v225, v14, 4, v225")
        a("v_lshlrev_b32 v4, 11, v14")
        a("v_lshl_add_u32 v4, v15, 3, v4")
        srd(a, 16, P_Q, 4 * MB)
        srd_off(a, 20, P_WS, WS_UT, 4 * MB)
        for jj in range(8):
            a(f"buffer_load_dwordx2 {vr(208+2*jj,2)}, v4, s[16:19], s64 offen")
            a(f"s_add_u32 s64, s64, {64*2048}")
        a("s_waitcnt vmcnt(0)")
        a(f"s_mov_b32 s43, {RETRY_MAX}")
        a.label("K3_cp")
        for ci, sr in enumerate((73, 65, 66, 67)):
            a(f"buffer_load_dwordx4 {vr(16+4*ci)}, v225, s[20:23], s{sr} offen sc1")
        a(f"ds_read_b32 v49, v10 offset:{S_WOM}")
        a("s_waitcnt vmcnt(0) lgkmcnt(0)")
        and_reduce(a, 48, range(16, 32))
        a("v_readfirstlane_b32 s42, v49")
        a("v_cmp_eq_u32 vcc, 0, v48")
        a("s_cmp_eq_u64 vcc, 0")
        a("s_cbranch_scc1 K3_cp_ok")
        a("s_cmp_ge_u32 s42, 4")
        a("s_cbranch_scc1 K3_cp_skip")
        a("s_sub_u32 s43, s43, 1")
        a("s_cbranch_scc1 K3_cp_skip")
        a("s_sleep 6")
        a("s_branch K3_cp")
        a.label("K3_cp_ok")
        lds_signal(a, 9, S_PD, 11)
        post_compute(a, 208, True)
        a.label("K3_cp_skip")
    lds_wait(a, "K3_wwo", 10, S_WOM, 4, 80, 42)
    if PW:
        lds_wait(a, "K3_wot", 9, S_OT, 1, 80, 42)
    if CPOST:
        lds_signal(a, 9, S_G2, 11)
    stamp(a, 7)
    cstamp(a, 12)
    vm = Cnt(a, "vmcnt", 63)
    AR = 96
    D = ADEPTH
    if "a" in XP:
        srd(a, 28, P_X, 4 * MB)
        a("s_lshl_b32 s48, s12, 18")
        a("s_lshl_b32 s47, s3, 16")
        a("s_add_u32 s48, s48, s47")

    def aload(h):
        for f in range(2):
            r = AR + 8 * (h % D) + 4 * f
            a(f"buffer_load_dwordx4 {vr(r)}, v12, s[28:31], s48 offen offset:{1024*(h%4)+512*f}{ASC}")
            vm.issue(("A", h))
        if h % 4 == 3:
            a("s_add_u32 s48, s48, 4096")

    if G2PRIO:
        a(f"s_setprio {G2PRIO}")
    for h in range(AINIT):
        aload(h)
    anext = [AINIT]
    a("v_bfe_u32 v4, v2, 2, 2")
    a("v_and_b32 v7, 3, v2")
    a("v_lshlrev_b32 v4, 6, v4")
    a("v_lshl_add_u32 v4, v7, 3, v4")
    a("v_lshl_add_u32 v4, v5, 9, v4")
    a("v_xor_b32 v7, v6, v5")
    a("v_lshl_add_u32 v13, v7, 5, v4")
    a(f"v_add_u32 v4, {WO_BASE}, v13")
    a(f"v_add_u32 v8, {WO_BASE + 65536}, v13")

    def check_ops(g):
        r = AR + 8 * ((4 * g) % D)
        ops = [f"v_bitop3_b32 v81, v{r}, v{r+1}, v{r+2} bitop3:0x80"]
        for i in range(3, 31, 2):
            ops.append(f"v_bitop3_b32 v81, v81, v{r+i}, v{r+i+1} bitop3:0x80")
        ops.append(f"v_bitop3_b32 v81, v81, v{r+31}, 1 bitop3:0x80")
        return ops

    def check_branch(g):
        if "a" in XP:
            a.label(f"K3_retry{g}_ret")
            return
        a("v_cmp_eq_u32 vcc, 0, v81")
        a("s_cmp_lg_u64 vcc, 0")
        a(f"s_cbranch_scc1 K3_retry{g}")
        a.label(f"K3_retry{g}_ret")

    def retry_block(g):
        a.label(f"K3_retry{g}")
        a(f"s_mov_b32 s46, {RETRY_MAX}")
        a(f"s_add_u32 s44, s47, {4096*g}")
        a.label(f"K3_retry{g}_l")
        a("s_add_u32 s75, s75, 1")
        a("s_sleep 4")
        for hh in range(4):
            for f in range(2):
                r = AR + 8 * ((4 * g + hh) % D) + 4 * f
                a(f"buffer_load_dwordx4 {vr(r)}, v12, s[28:31], s44 offen offset:{1024*hh+512*f} sc1")
        a("s_waitcnt vmcnt(0)")
        for op in check_ops(g):
            a(op)
        a("v_cmp_eq_u32 vcc, 0, v81")
        a("s_sub_u32 s46, s46, 1")
        a(f"s_cbranch_scc1 K3_retry{g}_ret")
        a("s_cmp_lg_u64 vcc, 0")
        a(f"s_cbranch_scc1 K3_retry{g}_l")
        a(f"s_branch K3_retry{g}_ret")

    lg.q = []
    BS = [48, 64]

    def breads(h):
        out = []
        st = h & 1
        if h < 16:
            vb, off = 4, h * 4096
        elif h < 28:
            vb, off = 8, (h - 16) * 4096
        else:
            vb, off = 13, (h - 28) * CV_REG
        for f in range(2):
            for nb in range(2):
                for hf in range(2):
                    out.append(((h, f, nb), f"ds_read_b64_tr_b16 {vr(BS[st]+8*f+4*nb+2*hf,2)}, v{vb} offset:{off + f*1024 + hf*2048 + nb*256}"))
        return out

    for tag, txt in breads(0):
        a(txt); lg.issue(tag)
    vm.wait_for([("A", 3)])
    for op in check_ops(0):
        a(op)
    check_branch(0)
    chk = []
    if ALN:
        a(".p2align 3")
        if ALN == 3:
            a("s_nop 0")
    for h in range(32):
        nxt = []
        if h == GS and not CPOST:
            lds_signal(a, 9, S_G2, 11)
            lg.issue("sig")
        if h + 1 < 32:
            if h + 1 == 28:
                lg.drain()
                lds_wait(a, "K3_wwt", 10, S_WOT, 4, 80, 42)
            nxt = breads(h + 1)
        if h % 4 == 2 and h + 2 < 32:
            vm.wait_for([("A", h + 5)])
            chk = check_ops(h // 4 + 1) if "k" not in XP else []
        for f in range(2):
            for nb in range(2):
                lg.wait_for([(h, f, nb)])
                d = 16 + 16 * nb
                cs = "0" if (h == 0 and f == 0) else vr(d, 16)
                a(f"v_mfma_f32_32x32x16_bf16 {vr(d,16)}, {vr(BS[h&1]+8*f+4*nb)}, {vr(AR+8*(h%D)+4*f)}, {cs}")
                for _ in range(2):
                    if nxt:
                        tag, txt = nxt.pop(0)
                        a(txt); lg.issue(tag)
                    if chk:
                        a(chk.pop(0))
        if h % 4 == 3 and h + 1 < 32:
            assert not chk
            check_branch(h // 4 + 1)
        for _ in range(2):
            if anext[0] < 32 and anext[0] <= h + D and "n" not in XP:
                aload(anext[0]); anext[0] += 1
    stamp(a, 8)
    cstamp(a, 13)
    a("v_and_b32 v4, 31, v2")
    a("v_lshlrev_b32 v4, 12, v4")
    a("v_lshl_add_u32 v4, v5, 4, v4")
    a("s_lshr_b32 s36, s10, 2")
    a("s_lshl_b32 s36, s36, 3")
    a("s_lshr_b32 s37, s11, 2")
    a("s_add_u32 s36, s36, s37")
    a("s_lshl_b32 s38, s41, 16")
    a("s_lshl_b32 s39, s36, 7")
    a("s_add_u32 s38, s38, s39")
    a("s_add_u32 s38, s38, 2048")
    if TRO:
        a("v_and_b32 v6, 31, v2")
        a("v_and_b32 v7, 7, v2")
        a("v_xor_b32 v7, v7, v5")
        a("v_lshlrev_b32 v6, 7, v6")
        a(f"s_add_u32 s39, s7, {CV_UB}")
        a("v_add_u32 v6, s39, v6")
        a("v_lshrrev_b32 v8, 3, v2")
        a("v_and_b32 v13, 7, v2")
        a("v_xor_b32 v96, v13, v8")
        a("v_lshlrev_b32 v96, 4, v96")
        a("v_lshl_add_u32 v96, v8, 7, v96")
        a("v_add_u32 v96, s39, v96")
        a("v_lshlrev_b32 v4, 12, v8")
        a("v_lshl_add_u32 v4, v13, 4, v4")
    for nb in range(2):
        for kp in range(2):
            P = 80 + 8 * nb + 4 * kp
            t0 = 16 + 16 * nb + 8 * kp
            for i in range(4):
                a(f"v_cvt_pk_bf16_f32 v{P+i}, v{t0+2*i}, v{t0+2*i+1}")
            a(f"v_permlane32_swap_b32 v{P}, v{P+2}")
            a(f"v_permlane32_swap_b32 v{P+1}, v{P+3}")
            if TRO:
                a(f"v_xor_b32 v97, {4*nb+2*kp}, v7")
                a("v_lshl_add_u32 v97, v97, 4, v6")
                a(f"ds_write_b128 v97, {vr(P)}")
            else:
                a(f"buffer_store_dwordx4 {vr(P)}, v4, s[32:35], s38 offen offset:{64*nb+32*kp}{NTS}{OS2}")
    if TRO:
        for i in range(4):
            a(f"ds_read_b128 {vr(100+4*i)}, v96 offset:{1024*i}")
        for i in range(4):
            a(f"s_waitcnt lgkmcnt({3-i})")
            a(f"buffer_store_dwordx4 {vr(100+4*i)}, v4, s[32:35], s38 offen{NTS}{OS2}")
            a("s_add_u32 s38, s38, 32768")
    stamp_flush(a, 9)
    a("s_endpgm")
    for g in range(8):
        retry_block(g)
    for slot in range(4):
        a.label(f"K3_event{slot}")
        a("s_add_u32 s54, s54, 1")
        a("s_cmp_lg_u32 s54, 1")
        a(f"s_cbranch_scc1 K3_ev2_{slot}")
        a(f"buffer_load_dword v195, v192, s[40:43], s44 offen{NTT}")
        if L2PF:
            a(f"buffer_load_dword v195, v193, s[48:51], s45 offen{NTT}")
            a("s_mov_b32 s55, 1000")
        else:
            a("s_mov_b32 s55, s52")
        a(f"s_branch K3_noev{slot}")
        a.label(f"K3_ev2_{slot}")
        if PREC or FILLC:
            a("s_waitcnt vmcnt(0)")
        a(f"buffer_load_dword v195, v193, s[48:51], s45 offen{NTT}")
        a("s_mov_b32 s55, 1000")
        a(f"s_branch K3_noev{slot}")
        a.label(f"K3_evB{slot}")
        a(f"buffer_load_dword v195, v194, s[64:67], s68 offen{NTT}")
        a(f"buffer_load_dword v195, v194, s[64:67], s69 offen{NTT}")
        a(f"s_branch K3_noevB{slot}")
        a.label(f"K3_evC{slot}")
        a("s_add_u32 s53, s53, 1")
        a("s_cmp_lg_u32 s53, 1")
        a(f"s_cbranch_scc1 K3_ev4_{slot}")
        a("buffer_load_dword v196, v199, s[56:59], 0 offen sc1")
        a(f"s_mov_b32 s71, {NLEAD-1}")
        a(f"s_branch K3_noevC{slot}")
        a.label(f"K3_ev4_{slot}")
        a("s_cmp_lg_u32 s53, 2")
        a(f"s_cbranch_scc1 K3_ev6_{slot}")
        a("s_waitcnt vmcnt(0)")
        a("v_readfirstlane_b32 s46, v196")
        a("s_mov_b64 exec, 1")
        a("s_cmp_lg_u32 s46, 0")
        a(f"s_cbranch_scc1 K3_ev5_{slot}")
        a("v_mov_b32 v196, v198")
        a("v_mov_b32 v197, 0")
        a("buffer_atomic_cmpswap v[196:197], v199, s[56:59], 0 offen sc0 sc1")
        a("s_waitcnt vmcnt(0)")
        a("v_cmp_eq_u32 vcc, 0, v196")
        a("v_cndmask_b32 v196, v196, v198, vcc")
        a.label(f"K3_ev5_{slot}")
        a("buffer_store_dword v196, v199, s[60:63], s47 offen sc1")
        a("s_mov_b64 exec, -1")
        a(f"s_mov_b32 s71, {FLAGN-F1N-1 if not POSTPRE else 1000}")
        a(f"s_branch K3_noevC{slot}")
        a.label(f"K3_ev6_{slot}")
        a("s_mov_b64 exec, 1")
        a("buffer_store_dword v196, v199, s[60:63], s47 offen offset:32 sc1")
        a("s_mov_b64 exec, -1")
        a("s_mov_b32 s71, 1000")
        a(f"s_branch K3_noevC{slot}")

    lbeg = len(a.ins)
    a.label("K3_L")
    a("v_lshrrev_b32 v4, 3, v2")
    a("v_and_b32 v5, 7, v2")
    for jl in range(4):
        a(f"v_add_u32 v6, {4*(jl&1)}, v14")
        a("v_xor_b32 v6, v6, v5")
        a("v_lshlrev_b32 v6, 4, v6")
        a("v_lshl_add_u32 v6, v4, 11, v6")
        a(f"v_add_u32 v{240+jl}, {jl*(16384-1024)}, v6")
    a("v_lshrrev_b32 v6, 5, v2")
    a("v_bfe_u32 v7, v2, 2, 2")
    a("v_lshl_add_u32 v6, v6, 2, v7")
    a("v_mul_u32_u24 v6, 6144, v6")
    a("v_bfe_u32 v7, v2, 4, 1")
    a("v_lshl_add_u32 v6, v7, 6, v6")
    a("v_and_b32 v7, 3, v2")
    a("v_lshl_add_u32 v6, v7, 4, v6")
    a("v_xor_b32 v7, 32, v6")
    a("s_and_b32 s40, s13, 1")
    a("s_lshl_b32 s40, s40, 7")
    a(f"s_xor_b32 s41, s40, {128 if QX else 0}")
    binst = []
    for seg in range(3):
        for gg in range(2):
            ldsoff = seg * 2048 + gg * 1024
            m0sel, ioff = ldsoff // 4096, ldsoff % 4096
            reg = 244 + seg * 2 + gg
            a(f"v_add_u32 v{reg}, {8*gg*6144 + seg*2048 - ioff}, v{6+gg}")
            a(f"v_add_u32 v{reg}, s{41 if seg == 0 else 40}, v{reg}")
            binst.append((reg, m0sel, ioff))
    a("s_lshl_b32 s38, s12, 7")
    a("s_lshl_b32 s40, s4, 5")
    a("s_add_u32 s38, s38, s40")
    a("s_lshl_b32 s38, s38, 11")
    a("s_mul_i32 s39, s4, 98304")
    a("s_lshr_b32 s40, s13, 1")
    a("s_lshl_b32 s40, s40, 8")
    a("s_add_u32 s39, s39, s40")
    a("s_lshl_b32 s41, s4, 12")
    a("s_mul_i32 s42, s4, 6144")
    a("s_add_u32 s42, s42, 16384")
    if EARLYB:
        a("s_waitcnt lgkmcnt(0)")
        stamp(a, 0)
    srd(a, 16, P_X, 4 * MB)
    srd(a, 20, P_W, 6 * MB)
    vm = Cnt(a, "vmcnt", 63)

    def issue(kt):
        sb = (kt % NS) * STAGE
        a(f"s_add_u32 m0, s41, {sb}")
        for jl in range(4):
            a(f"buffer_load_dwordx4 v{240+jl}, s[16:19], s38 offen offset:{jl*1024}{NTG} lds")
            vm.issue(("st", kt))
        cur = -1
        for reg, m0sel, ioff in binst:
            if m0sel != cur:
                a(f"s_add_u32 m0, s42, {sb + 4096*m0sel}")
                cur = m0sel
            a(f"buffer_load_dwordx4 v{reg}, s[20:23], s39 offen offset:{ioff}{NTG} lds")
            vm.issue(("st", kt))
        a("s_add_u32 s38, s38, 128")
        a(f"s_add_u32 s39, s39, {64*6144}")

    if env("ST0", 0):
        stamp(a, 10)
    for kt in range(PRO):
        issue(kt)
        if env("ST0", 0):
            stamp(a, 11 + kt)
    if LFRONT:
        a("s_branch K3_L2")
        blk = a.ins[lbeg:]
        del a.ins[lbeg:]
        a.ins[mark:mark] = blk
        a.label("K3_L2")
    srd(a, 24, P_K, 4 * MB)
    srd(a, 28, P_V, 4 * MB)
    srd(a, 32, P_SHK, 8192)
    srd_off(a, 44, P_WS, WS_UT, 4 * MB)
    srd_off(a, 48, P_WS, WS_OF, 4 * MB)
    srd_off(a, 52, P_WS, WS_KVP, 2 * MB)
    srd_off(a, 56, P_WS, WS_ZP, 64 * 1024)
    a("s_lshl_b32 s60, s2, 2")
    a("s_add_u32 s60, s60, s4")
    if UTF:
        a("s_and_b32 s61, s60, 31")
        a("s_lshr_b32 s60, s60, 5")
        a("s_lshl_b32 s62, s60, 17")
        a("s_lshl_b32 s63, s61, 6")
        a("s_add_u32 s62, s62, s63")
        a("v_lshrrev_b32 v18, 3, v2")
        a("v_and_b32 v20, 7, v2")
        a("v_lshlrev_b32 v21, 14, v18")
        a("v_lshl_add_u32 v21, v20, 3, v21")
        a("v_add_u32 v21, s62, v21")
        a("s_lshl_b32 s63, s61, 8")
        a("v_lshlrev_b32 v22, 5, v20")
        a("s_lshl_b32 s62, s61, 17")
        a("s_lshl_b32 s64, s60, 7")
        a("s_add_u32 s62, s62, s64")
        a("v_lshlrev_b32 v19, 14, v20")
        a("v_lshl_add_u32 v19, v18, 4, v19")
    else:
        a("s_and_b32 s61, s60, 15")
        a("s_lshr_b32 s60, s60, 4")
        a("s_lshl_b32 s62, s60, 16")
        a("s_lshl_b32 s63, s61, 7")
        a("s_add_u32 s62, s62, s63")
        a("v_lshlrev_b32 v21, 14, v14")
        a("v_lshl_add_u32 v21, v15, 3, v21")
        a("v_add_u32 v21, s62, v21")
        a("s_lshl_b32 s63, s61, 9")
        a("v_lshlrev_b32 v22, 5, v15")
        a("s_lshl_b32 s62, s61, 18")
        a("s_lshl_b32 s64, s60, 6")
        a("s_add_u32 s62, s62, s64")
        a("v_lshlrev_b32 v19, 14, v15")
        a("v_lshl_add_u32 v19, v14, 4, v19")
    a("s_lshl_b32 s64, s12, 3")
    a("s_lshl_b32 s65, s4, 1")
    a("s_add_u32 s64, s64, s65")
    a("s_lshl_b32 s64, s64, 15")
    a("s_lshr_b32 s65, s15, 1")
    a("s_lshl_b32 s65, s65, 11")
    a("s_add_u32 s64, s64, s65")
    a("s_add_u32 s65, s64, 32768")
    a("s_lshl_b32 s66, s5, 4")
    a("s_add_u32 s66, s66, s12")
    a("s_lshl_b32 s67, s66, 7")
    a("s_lshl_b32 s66, s66, 12")
    a(f"s_lshl_b32 s68, s36, {10 if BP else 11}")
    a("s_add_u32 s66, s66, s68")
    for i in range(4):
        a(f"v_mov_b32 v{160+i}, 0")
    a("v_and_b32 v18, 7, v2")
    a("v_lshlrev_b32 v18, 4, v18")
    fills = [
        f"buffer_store_dwordx4 v[160:163], v3, s[48:51], s64 offen sc1{NTF}",
        f"buffer_store_dwordx4 v[160:163], v3, s[48:51], s64 offen offset:1024 sc1{NTF}",
        f"buffer_store_dwordx4 v[160:163], v3, s[48:51], s65 offen sc1{NTF}",
        f"buffer_store_dwordx4 v[160:163], v3, s[48:51], s65 offen offset:1024 sc1{NTF}",
        f"buffer_store_dwordx4 v[160:163], v3, s[52:55], s66 offen sc1{NTF}",
        f"buffer_store_dwordx4 v[160:163], v3, s[52:55], s66 offen offset:1024 sc1{NTF}",
        f"buffer_store_dwordx4 v[160:163], v18, s[56:59], s67 offen sc1{NTF}",
    ]
    if BP:
        del fills[5]
    W, KF, VF, KS = 72, 88, 110, 126
    loads = []
    for i in range(2):
        loads.append([f"buffer_load_dwordx4 {vr(24+4*i)}, v22, s[32:35], s63 offen offset:{16*i}"])
    for i in range(11):
        loads.append([f"v_add_u32 v23, {((i-3)*2048) & 0xffffffff}, v21", f"buffer_load_dwordx2 {vr(32+2*i,2)}, v23, s[24:27], 0 offen{NTK}"])
    for i in range(8):
        loads.append([f"v_add_u32 v23, {i*2048}, v21", f"buffer_load_dwordx2 {vr(54+2*i,2)}, v23, s[28:31], 0 offen{NTK}"])
    comp = []
    for ci in range(4):
        comp += [f"v_lshlrev_b32 v{W+ci}, 16, v{24+2*ci}", f"v_and_b32 v{W+4+ci}, 0xffff0000, v{24+2*ci}",
                 f"v_lshlrev_b32 v{W+8+ci}, 16, v{25+2*ci}", f"v_and_b32 v{W+12+ci}, 0xffff0000, v{25+2*ci}"]
    for cp in range(2):
        for i in range(11):
            comp += [f"v_lshlrev_b32 v{KF+2*i}, 16, v{32+2*i+cp}", f"v_and_b32 v{KF+2*i+1}, 0xffff0000, v{32+2*i+cp}"]
        for i in range(8):
            comp += [f"v_lshlrev_b32 v{VF+2*i}, 16, v{54+2*i+cp}", f"v_and_b32 v{VF+2*i+1}, 0xffff0000, v{54+2*i+cp}"]
        for i in range(16):
            comp.append(f"v_mul_f32 v{KS+i}, v{KF+i}, v{W+12+2*cp+(i&1)}")
        for j in (2, 1, 0):
            for i in range(16):
                comp.append(f"v_fmac_f32 v{KS+i}, v{KF+2*(3-j)+i}, v{W+4*j+2*cp+(i&1)}")
        for i in range(16):
            comp.append(f"v_mul_f32 v{KS+i}, v{KS+i}, v{VF+i}")
        O = 144 + 8 * cp
        for e in range(2):
            for i in range(4):
                comp.append(f"v_cvt_pk_bf16_f32 v{O+4*e+i}, v{KS+4*i+e}, v{KS+4*i+2+e}")
        for i in range(8):
            comp.append(f"v_and_b32 v{O+i}, -2, v{O+i}")
        for e in range(2):
            comp.append(("st", f"buffer_store_dwordx4 {vr(O+4*e)}, v19, s[44:47], s62 offen sc1"))
            comp.append("s_add_u32 s62, s62, 4096")
    PCE = env("PCE", FLAGN - 3)
    PCS = PL0 + NPL + env("PGAP", 0)
    NPC = PCE - PCS
    per = -(-len(comp) // NPC)
    a("v_lshrrev_b32 v6, 5, v2")
    a("v_bfe_u32 v7, v2, 2, 2")
    a("v_lshl_add_u32 v7, v6, 2, v7")
    a("v_lshlrev_b32 v7, 11, v7")
    a("v_bfe_u32 v8, v2, 4, 1")
    a("v_lshl_add_u32 v7, v8, 6, v7")
    a("v_and_b32 v8, 3, v2")
    a("v_lshlrev_b32 v6, 1, v6")
    a("v_xor_b32 v8, v8, v6")
    a("v_lshl_add_u32 v7, v8, 4, v7")
    for i in range(4):
        a(f"v_add_u32 v{232+i}, {i*(16384-1024)}, v7")
    a("s_lshl_b32 s69, s4, 16")
    a("s_lshr_b32 s70, s10, 2")
    a("s_lshl_b32 s70, s70, 3")
    a("s_lshr_b32 s71, s11, 2")
    a("s_add_u32 s70, s70, s71")
    a("s_lshl_b32 s70, s70, 7")
    a("s_add_u32 s69, s69, s70")
    a("s_lshl_b32 s70, s4, 12")
    a(f"s_add_u32 s70, s70, {WO_BASE}")
    a("s_lshl_b32 s71, s6, 12")
    a(f"v_mov_b32 v10, {SYNC}")
    a("v_mov_b32 v11, 1")
    a("s_lshl_b32 s43, s4, 2")
    a("v_add_u32 v9, s43, v10")

    def wo_issue(k):
        if k < 7:
            a(f"s_add_u32 m0, s70, {k*16384}")
        else:
            a("s_mov_b32 m0, s7")
        for i in range(4):
            a(f"buffer_load_dwordx4 v{232+i}, s[20:23], s69 offen offset:{i*1024}{NTG} lds")
            vm.issue("wo")
        a(f"s_add_u32 s69, s69, {128*2048}")

    def post_setup():
        a("s_lshl_b32 s16, s10, 1")
        a("s_lshr_b32 s17, s11, 4")
        a("s_add_u32 s16, s16, s17")
        a("s_and_b32 s17, s11, 15")
        a("s_lshl_b32 s17, s17, 2")
        a("s_add_u32 s17, s17, s4")
        a("s_lshr_b32 s18, s17, 4")
        a("s_and_b32 s17, s17, 15")
        a("s_lshl_b32 s19, s18, 9")
        a("s_lshl_b32 s64, s17, 2")
        a("s_add_u32 s19, s19, s64")
        a("s_lshl_b32 s64, s19, 11")
        a("s_lshl_b32 s65, s16, 7")
        a("s_add_u32 s64, s64, s65")
        a("s_lshl_b32 s72, s19, 12")
        a("s_add_u32 s72, s72, s65")
        a("s_lshl_b32 s73, s16, 18")
        a("s_lshl_b32 s65, s18, 10")
        a("s_add_u32 s73, s73, s65")
        a("s_lshl_b32 s65, s17, 6")
        a("s_add_u32 s73, s73, s65")
        a("s_add_u32 s65, s73, 4096")
        a("s_add_u32 s66, s73, 8192")
        a("s_add_u32 s67, s73, 12288")
        a("v_lshlrev_b32 v224, 12, v14")
        a("v_lshl_add_u32 v224, v15, 3, v224")
        a("v_lshlrev_b32 v225, 14, v15")
        a("v_lshl_add_u32 v225, v14, 4, v225")

    def q_loads():
        srd(a, 16, P_Q, 4 * MB)
        a("v_lshlrev_b32 v4, 11, v14")
        a("v_lshl_add_u32 v4, v15, 3, v4")
        for jj in range(8):
            a(f"buffer_load_dwordx2 {vr(QR+2*jj,2)}, v4, s[16:19], s64 offen{NTO}")
            vm.issue("q")
            a(f"s_add_u32 s64, s64, {64*2048}")

    QR = 208

    def h_issue():
        a(f"s_add_u32 m0, s7, {CV_HB}")
        for c in range(4):
            a(f"buffer_load_dwordx4 v3, s[16:19], s71 offen offset:{1024*c}{NTO} lds")
            vm.issue("h")
        a("s_lshl_b32 s43, s6, 1")
        a("v_mov_b32 v4, 0")
        a("buffer_load_ushort v164, v4, s[20:23], s43 offen")
        vm.issue("h")
        srd(a, 20, P_WO, 2 * MB)

    for kt in range(16):
        tags = [("st", kt)]
        if kt == F1N + 1:
            tags += ["fill"]
        if kt == FLAGN + 1:
            tags += ["ust"]
        vm.wait_for(tags)
        if kt == 14:
            a("s_waitcnt lgkmcnt(0)")
        a("s_barrier")
        if kt in (2, 5, 8, 11, 14) and not env("ST0", 0):
            stamp(a, 10 + (2, 5, 8, 11, 14).index(kt))
        if kt == 0:
            for k2 in range(PRO, NS - 1):
                issue(k2)
        if kt + NS - 1 < 16:
            issue(kt + NS - 1)
        for op in spf[SPF_C + kt * SPF_L: SPF_C + (kt + 1) * SPF_L]:
            a(op)
        if FL0 <= kt < FL0 + len(fills) and "f" not in XP and not FILLC:
            a(fills[kt - FL0]); vm.issue("fill")
        if POSTPRE and kt in (14, 15):
            for grp in (loads[:13] if kt == 14 else loads[13:]):
                for op in grp:
                    a(op)
                vm.issue("pre")
        if PL0 <= kt < PL0 + NPL and "l" not in XP and not POSTPRE and not PREC:
            q = -(-len(loads) // NPL)
            for grp in loads[(kt - PL0) * q: (kt - PL0 + 1) * q]:
                for op in grp:
                    a(op)
                vm.issue("pre")
        if kt == 13:
            post_setup()
            srd(a, 16, P_H, 4 * MB)
            srd(a, 20, P_D, 2048)
            a("v_mov_b32 v4, 0")
            a("v_lshlrev_b32 v5, 2, v2")
            a(f"v_add_u32 v6, {SYNC}, v5")
            a("ds_write_b32 v6, v4")
            a("v_add_u32 v6, s7, v5")
            a(f"ds_write_b32 v6, v4 offset:{CV_UB-256}")
            if CV32:
                a(f"ds_write_b32 v6, v4 offset:{CV_UB-512}")
            a(f"v_and_b32 v6, {15 if CV32 else 7}, v2")
            a("v_lshlrev_b32 v6, 2, v6")
            a("v_add_u32 v6, s7, v6")
            a("ds_write_b32 v6, v4")
            h_issue()
            if QEARLY:
                q_loads()
        if PCS <= kt < PCE and not POSTPRE and not PREC:
            if kt == PCS:
                vm.wait_for(["pre"])
            for op in comp[:per]:
                if "c" in XP and not isinstance(op, tuple):
                    continue
                if isinstance(op, tuple):
                    if "u" in XP:
                        continue
                    a(op[1]); vm.issue("ust")
                else:
                    a(op)
            comp = comp[per:]
        if kt == 14 and EARLYWO >= 2:
            wo_issue(0); wo_issue(1)
        if kt == 15 and EARLYWO >= 4:
            wo_issue(2); wo_issue(3)
    assert POSTPRE or PREC or not comp
    a("s_barrier")
    stamp(a, 1)
    if POSTPRE:
        vm.wait_for(["pre"])
        for ci in range(4):
            a(f"v_lshlrev_b32 v{W+ci}, 16, v{24+2*ci}")
            a(f"v_and_b32 v{W+4+ci}, 0xffff0000, v{24+2*ci}")
            a(f"v_lshlrev_b32 v{W+8+ci}, 16, v{25+2*ci}")
            a(f"v_and_b32 v{W+12+ci}, 0xffff0000, v{25+2*ci}")
        for cp in range(2):
            for i in range(11):
                a(f"v_lshlrev_b32 v{KF+2*i}, 16, v{32+2*i+cp}")
                a(f"v_and_b32 v{KF+2*i+1}, 0xffff0000, v{32+2*i+cp}")
            for i in range(8):
                a(f"v_lshlrev_b32 v{VF+2*i}, 16, v{54+2*i+cp}")
                a(f"v_and_b32 v{VF+2*i+1}, 0xffff0000, v{54+2*i+cp}")
            for i in range(8):
                a(f"v_pk_mul_f32 {vr(KS+2*i,2)}, {vr(KF+2*i,2)}, {vr(W+12+2*cp,2)}")
            for j in (2, 1, 0):
                for i in range(8):
                    a(f"v_pk_fma_f32 {vr(KS+2*i,2)}, {vr(KF+2*(i+3-j),2)}, {vr(W+4*j+2*cp,2)}, {vr(KS+2*i,2)}")
            for i in range(8):
                a(f"v_pk_mul_f32 {vr(KS+2*i,2)}, {vr(KS+2*i,2)}, {vr(VF+2*i,2)}")
            O = 144 + 8 * cp
            for e in range(2):
                for i in range(4):
                    a(f"v_cvt_pk_bf16_f32 v{O+4*e+i}, v{KS+4*i+e}, v{KS+4*i+2+e}")
            for i in range(8):
                a(f"v_and_b32 v{O+i}, -2, v{O+i}")
            for e in range(2):
                a(f"buffer_store_dwordx4 {vr(O+4*e)}, v19, s[44:47], s62 offen sc1")
                a("s_add_u32 s62, s62, 4096")
    srd(a, 24, P_DBG, 256)
    srd(a, 32, P_OUT, 8 * MB)
    a("s_mov_b32 s40, 0")
    a("s_mov_b32 s42, 0")
    a("v_lshrrev_b32 v5, 1, v2")
    a("v_lshlrev_b32 v5, 7, v5")
    a("v_and_b32 v4, 1, v2")
    a("v_lshl_add_u32 v5, v4, 4, v5")
    a("v_mov_b32 v4, 0")
    a("buffer_load_dword v226, v4, s[24:27], 0 offen sc1")
    srd_off(a, 24, P_WS, WS_FLAG, 4096)
    a("v_lshlrev_b32 v6, 7, v15")
    a("v_lshl_add_u32 v6, v14, 4, v6")
    a("s_lshl_b32 s60, s15, 11")
    a("s_lshl_b32 s61, s15, 16")
    a(f"s_lshl_b32 s62, s36, {10 if BP else 11}")
    a("s_add_u32 s61, s61, s62")

    def flagcmp(r):
        for i in range(4):
            a(f"v_xor_b32 v{r+i}, v{r+i}, v226")
        a(f"v_or3_b32 v{r}, v{r}, v{r+1}, v{r+2}")
        a(f"v_or_b32 v{r}, v{r}, v{r+3}")
        a(f"v_cmp_ne_u32 vcc, 0, v{r}")

    def u_block(ret):
        a(f"s_add_u32 m0, s7, {CV_UB}")
        for c in range(4):
            a(f"buffer_load_dwordx4 v3, s[44:47], s71 offen offset:{1024*c} sc1 lds")
        a("s_mov_b32 s42, 1")
        a("s_waitcnt vmcnt(0) lgkmcnt(0)")
        lds_signal(a, 9, S_HU, 11)
        stamp(a, 3)
    a(f"s_mov_b32 s43, {RETRY_MAX}")
    a.label("K3_fp")
    a(f"buffer_load_dwordx4 {vr(24)}, v5, s[24:27], 0 offen sc1")
    a(f"buffer_load_dwordx4 {vr(28)}, v5, s[24:27], 0 offen offset:32 sc1")
    a("s_waitcnt vmcnt(0)")
    vm.q = []
    flagcmp(24)
    a("s_sub_u32 s43, s43, 1")
    a("s_cbranch_scc1 K3_fp_ok")
    a("s_cmp_eq_u64 vcc, 0")
    a("s_cbranch_scc1 K3_fp_ok")
    a("s_add_u32 s75, s75, 1")
    a("s_sleep 8")
    a("s_branch K3_fp")
    a.label("K3_fp_ok")
    if POSTPRE:
        a("s_mov_b64 exec, 1")
        a(f"ds_add_rtn_u32 v7, v10, v11 offset:{S_GO}")
        a("s_waitcnt lgkmcnt(0)")
        a("v_readfirstlane_b32 s43, v7")
        a("s_lshl_b32 s62, s11, 7")
        a("s_lshl_b32 s63, s10, 2")
        a("s_add_u32 s62, s62, s63")
        a("s_cmp_lg_u32 s43, 3")
        a("s_cbranch_scc1 K3_nof2")
        a("buffer_store_dword v226, v4, s[24:27], s62 offen offset:32 sc1")
        a.label("K3_nof2")
        a("s_mov_b64 exec, -1")
    stamp(a, 2)
    a("v_mov_b32 v4, s7")
    a(f"ds_read_u16 v7, v4 offset:{CV_HB}")
    a("v_lshlrev_b32 v164, 16, v164")
    a("s_waitcnt lgkmcnt(0)")
    a("v_lshlrev_b32 v7, 16, v7")
    a("v_add_f32 v7, v7, v164")
    a("v_cvt_pk_bf16_f32 v7, v7, v7")
    a(f"ds_write_b16 v4, v7 offset:{CV_HB}")
    flagcmp(28)
    a("s_cmp_lg_u64 vcc, 0")
    a("s_cbranch_scc1 K3_nou0")
    u_block(0)
    a.label("K3_nou0")
    if WAITKV:
        lds_wait(a, "K3_wkvs", 10, S_KVS, 2, 16, 62, sleep=1)
    PQR = 192

    def bulkA():
        for k in range(EARLYWO, 6):
            wo_issue(k)
        a("v_and_b32 v7, 31, v2")
        a("v_lshlrev_b32 v7, 11, v7")
        a(f"s_add_u32 s62, s69, {128*2048}")
        a("buffer_load_dword v165, v7, s[20:23], s62 offen")
        if CPOST:
            srd(a, 16, P_Q, 4 * MB)
            a("v_bfe_u32 v7, v2, 2, 3")
            a("v_lshlrev_b32 v7, 17, v7")
            a("v_and_b32 v8, 3, v2")
            a("v_lshl_add_u32 v7, v8, 11, v7")
            a("buffer_load_dword v165, v7, s[16:19], s64 offen")

    def pq_pick():
        a("s_lshl_b32 s43, s4, 12")
        a(f"s_add_u32 s43, s43, {PQ_BASE}")
        a("v_add_u32 v8, s43, v3")
        lds_wait(a, "K3_wpq", 9, S_PQ, 1, 16, 62, sleep=1)
        for mt in range(4):
            a(f"ds_read_b128 {vr(PQR+4*mt)}, v8 offset:{1024*mt}")
        a("s_waitcnt lgkmcnt(0)")

    if not ZFIRST:
        bulkA()
        pq_pick()
    if PG:
        vm.q = []
        a("s_setprio 2")
        a("s_mov_b32 s62, s61")
        for p in range(16):
            for dt in range(2):
                a(f"buffer_load_dwordx4 {vr(64+8*p+4*dt)}, v3, s[52:55], s62 offen offset:{1024*dt}{GSC}")
                vm.issue(("kv", p))
            a("s_add_u32 s62, s62, 4096")
    if not ZFIRST:
        wo_issue(6)
    if PG:
        if not QEARLY and not CPOST:
            q_loads()
        for i in range(8):
            a(f"v_mov_b32 v{56+i}, 0")
        a("s_mov_b32 s63, 0")
        for p in range(16):
            vm.wait_for([("kv", p)])
            r = 64 + 8 * p
            and_reduce(a, 16, range(r, r + 8))
            a("v_cmp_eq_u32 vcc, 0, v16")
            a(f"s_bitset1_b32 s63, {p}")
            a("s_cmp_lg_u64 vcc, 0")
            a(f"s_cbranch_scc1 K3_pg{p}")
            a(f"s_bitset0_b32 s63, {p}")
            for i in range(8):
                a(f"v_add_f32 v{56+i}, v{56+i}, v{r+i}")
            a.label(f"K3_pg{p}")
    a(f"s_mov_b32 s43, {RETRY_MAX}")
    a.label("K3_zp")
    for dt in range(2):
        a(f"buffer_load_dwordx4 {vr(32+4*dt)}, v6, s[56:59], s60 offen offset:{64*dt} sc1")
    a("s_cmp_lg_u32 s42, 0")
    a("s_cbranch_scc1 K3_zp_nf")
    a(f"buffer_load_dwordx4 {vr(28)}, v5, s[24:27], 0 offen offset:32 sc1")
    a("s_waitcnt vmcnt(0)")
    flagcmp(28)
    a("s_cmp_lg_u64 vcc, 0")
    a("s_cbranch_scc1 K3_zp_nf")
    u_block(1)
    a.label("K3_zp_nf")
    a(f"ds_read_b32 v17, v9 offset:{S_CD}")
    a("s_waitcnt vmcnt(0) lgkmcnt(0)")
    vm.q = []
    and_reduce(a, 16, range(32, 40))
    a("v_readfirstlane_b32 s41, v17")
    a("v_cmp_eq_u32 vcc, 0, v16")
    a("s_sub_u32 s43, s43, 1")
    a("s_cbranch_scc1 K3_zp_ok")
    a("s_cmp_eq_u64 vcc, 0")
    a("s_cbranch_scc1 K3_zp_ok")
    a("s_cmp_lg_u32 s40, 0")
    a("s_cbranch_scc1 K3_zp_s2")
    if QEARLY:
        a("s_cmp_lg_u32 s41, 0")
        a("s_cbranch_scc1 K3_post")
    a.label("K3_zp_s2")
    a(f"s_sleep {ZSLEEP}")
    a("s_branch K3_zp")
    a.label("K3_zp_ok")
    if PW:
        lds_signal(a, 10, S_WOM, 11)
    if PG:
        stamp(a, 4)
        a(f"s_mov_b32 s43, {RETRY_MAX}")
        a.label("K3_ml")
        a("s_cmp_eq_u32 s63, 0")
        a("s_cbranch_scc1 K3_ml_done")
        a("s_ff1_i32_b32 s41, s63")
        a("s_lshl_b32 s62, s41, 12")
        a("s_add_u32 s62, s62, s61")
        for dt in range(2):
            a(f"buffer_load_dwordx4 {vr(64+4*dt)}, v3, s[52:55], s62 offen offset:{1024*dt} sc1")
        a("s_add_u32 s75, s75, 1")
        a("s_waitcnt vmcnt(0)")
        and_reduce(a, 16, range(64, 72))
        a("v_cmp_eq_u32 vcc, 0, v16")
        a("s_sub_u32 s43, s43, 1")
        a("s_cbranch_scc1 K3_ml_done")
        a("s_cmp_lg_u64 vcc, 0")
        a("s_cbranch_scc1 K3_ml")
        a("s_bitset0_b32 s63, s41")
        for i in range(8):
            a(f"v_add_f32 v{56+i}, v{56+i}, v{64+i}")
        a("s_branch K3_ml")
        a.label("K3_ml_done")
        for i in range(8):
            a(f"v_add_f32_dpp v{40+i}, v{32+i}, v{32+i} row_ror:8 {DPP}")
        for sh in (4, 2, 1):
            for i in range(8):
                a(f"v_add_f32_dpp v{40+i}, v{40+i}, v{40+i} row_ror:{sh} {DPP}")
        for i in range(4):
            a(f"v_cvt_pk_bf16_f32 v{48+i}, v{40+2*i}, v{41+2*i}")
        for i in range(8):
            a(f"v_mov_b32 v{64+i}, v{56+i}")
    else:
        stamp(a, 4)
        a("s_setprio 2")
        a(f"s_mov_b32 s43, {RETRY_MAX}")
        def gloads(fl, track):
            a("s_mov_b32 s62, s61")
            for p in range(16):
                for dt in range(1 if BP else 2):
                    r = 96 + 4 * p if BP else 64 + 8 * p + 4 * dt
                    a(f"buffer_load_dwordx4 {vr(r)}, v3, s[52:55], s62 offen offset:{1024*dt}{fl}")
                    if track:
                        vm.issue(("kv", p))
                a("s_add_u32 s62, s62, 4096")
        gloads(GSC, True)
        if ZFIRST:
            bulkA()
            vm.issue("t")
        if not QEARLY and not CPOST:
            q_loads()
        a.label("K3_gl")
        for i in range(8):
            a(f"v_add_f32_dpp v{40+i}, v{32+i}, v{32+i} row_ror:8 {DPP}")
        for sh in (4, 2, 1):
            for i in range(8):
                a(f"v_add_f32_dpp v{40+i}, v{40+i}, v{40+i} row_ror:{sh} {DPP}")
        for i in range(4):
            a(f"v_cvt_pk_bf16_f32 v{48+i}, v{40+2*i}, v{41+2*i}")
        a("v_mov_b32 v16, 1")
        for p in range(16):
            vm.wait_for([("kv", p)])
            if BP:
                r = 96 + 4 * p
                for i in range(0, 4, 2):
                    a(f"v_bitop3_b32 v16, v16, v{r+i}, v{r+i+1} bitop3:0x80")
                t = 64 if p == 0 else 72
                for i in range(4):
                    a(f"v_lshlrev_b32 v{t+2*i}, 16, v{r+i}")
                    a(f"v_and_b32 v{t+2*i+1}, 0xffff0000, v{r+i}")
                if p >= 1:
                    for i in range(8):
                        a(f"v_add_f32 v{64+i}, v{64+i}, v{72+i}")
            else:
                r = 64 + 8 * p
                for i in range(0, 8, 2):
                    a(f"v_bitop3_b32 v16, v16, v{r+i}, v{r+i+1} bitop3:0x80")
                if p >= 1:
                    for i in range(8):
                        a(f"v_add_f32 v{64+i}, v{64+i}, v{r+i}")
        a("v_cmp_eq_u32 vcc, 0, v16")
        a("s_sub_u32 s43, s43, 1")
        a("s_cbranch_scc1 K3_gl_ok")
        a("s_cmp_eq_u64 vcc, 0")
        a("s_cbranch_scc1 K3_gl_ok")
        a("s_add_u32 s75, s75, 1")
        a("s_sleep 4")
        gloads(" sc1", False)
        a("s_waitcnt vmcnt(0)")
        a("s_branch K3_gl")
    a.label("K3_gl_ok")
    for i in range(4):
        a(f"v_cvt_pk_bf16_f32 v{40+i}, v{64+2*i}, v{65+2*i}")
    a("s_lshl_b32 s43, s4, 10")
    a(f"s_add_u32 s43, s43, {KVT}")
    a("v_add_u32 v5, s43, v3")
    a(f"ds_write_b128 v5, {vr(40)}")
    a("s_lshl_b32 s43, s37, 2")
    a("v_add_u32 v7, s43, v10")
    a("s_lshl_b32 s43, s37, 11")
    a(f"s_add_u32 s43, s43, {KVT}")
    a("v_add_u32 v5, s43, v3")
    a("s_waitcnt lgkmcnt(0)")
    lds_signal(a, 7, S_KVT, 11)
    if ZFIRST:
        pq_pick()
        wo_issue(6)
    lds_wait(a, "K3_wkt", 7, S_KVT, 2, 52, 60)
    a(f"ds_read_b128 {vr(40)}, v5")
    a(f"ds_read_b128 {vr(44)}, v5 offset:1024")
    a("s_waitcnt lgkmcnt(0)")
    stamp(a, 5)
    for mt in range(4):
        b = 64 + 12 * mt
        mfma16(a, b + 8, 48, PQR + 4 * mt, "0")
        mfma16(a, b, 40, PQR + 4 * mt, "0")
        mfma16(a, b + 4, 44, PQR + 4 * mt, "0")
    a("s_lshl_b32 s60, s12, 3")
    a("s_lshl_b32 s61, s36, 2")
    a("s_add_u32 s60, s60, s61")
    a("s_lshl_b32 s60, s60, 5")
    a("s_add_u32 s60, s60, s15")
    a("s_lshl_b32 s60, s60, 10")
    a(f"s_mov_b32 s61, {EPS}")
    for mt in range(4):
        a(f"v_add_f32 v{112+mt}, s61, v{64+12*mt+8}")
        a(f"v_rcp_f32 v{112+mt}, v{112+mt}")
    for mt in range(4):
        b = 64 + 12 * mt
        for i in range(8):
            a(f"v_mul_f32 v{b+i}, v{b+i}, v{112+mt}")
        for i in range(4):
            a(f"v_cvt_pk_bf16_f32 v{120+4*mt+i}, v{b+2*i}, v{b+2*i+1}")
        for i in range(4):
            a(f"v_or_b32 v{120+4*mt+i}, 1, v{120+4*mt+i}")
        a(f"buffer_store_dwordx4 {vr(120+4*mt)}, v3, s[48:51], s60 offen sc1")
        a("s_add_u32 s60, s60, 32768")
    a("s_setprio 0")
    stamp(a, 6)
    a(f"s_mov_b32 s43, {RETRY_MAX}")
    a("v_lshrrev_b32 v5, 1, v2")
    a("v_lshlrev_b32 v5, 7, v5")
    a("v_and_b32 v4, 1, v2")
    a("v_lshl_add_u32 v5, v4, 4, v5")
    a.label("K3_ul")
    a("s_cmp_lg_u32 s42, 0")
    a("s_cbranch_scc1 K3_ul_done")
    a(f"buffer_load_dwordx4 {vr(28)}, v5, s[24:27], 0 offen offset:32 sc1")
    a("s_waitcnt vmcnt(0)")
    flagcmp(28)
    a("s_sub_u32 s43, s43, 1")
    a("s_cbranch_scc1 K3_ul_go")
    a("s_cmp_eq_u64 vcc, 0")
    a("s_cbranch_scc1 K3_ul_go")
    a("s_sleep 4")
    a("s_branch K3_ul")
    a.label("K3_ul_go")
    u_block(2)
    a.label("K3_ul_done")
    a("s_and_b32 s60, s10, 3")
    a("s_lshl_b32 s60, s60, 2")
    a("s_and_b32 s61, s11, 3")
    a("s_add_u32 s60, s60, s61")
    a("s_lshl_b32 s60, s60, 18")
    a("s_lshr_b32 s61, s11, 2")
    a("s_lshl_b32 s61, s61, 2")
    a("s_add_u32 s61, s61, s4")
    a("s_lshl_b32 s61, s61, 13")
    a("s_add_u32 s63, s60, s61")
    a("v_lshlrev_b32 v8, 7, v2")
    a("s_waitcnt vmcnt(0)")
    a("buffer_load_dword v60, v8, s[48:51], s63 offen")
    a(f"s_waitcnt vmcnt({0 if TWAIT else 1})")
    if PW:
        lds_signal(a, 9, S_OT, 11)
    else:
        lds_signal(a, 10, S_WOM, 11)
    lds_wait(a, "K3_wcd", 9, S_CD, 1, 16, 60, sleep=1)
    wo_issue(7)
    a("s_waitcnt vmcnt(0)")
    lds_signal(a, 10, S_WOT, 11)
    vm.q = []
    stamp(a, 7)
    a("s_cmp_eq_u32 s40, 1")
    a("s_cbranch_scc1 K3_fin")
    if CPOST:
        lds_wait(a, "K3_wg2", 9, S_G2, 1, 16, 60, sleep=2)
        a(f"ds_read_b32 v16, v9 offset:{S_PD}")
        a("s_waitcnt lgkmcnt(0)")
        a("v_readfirstlane_b32 s60, v16")
        a("s_cmp_lg_u32 s60, 0")
        a("s_cbranch_scc1 K3_fin")
        q_loads()
    if GS >= 0 and not CPOST:
        lds_wait(a, "K3_wg2", 9, S_G2, 1, 16, 60, sleep=2)
    a("s_mov_b32 s40, 2")
    if PDELAY:
        a(f"s_sleep {PDELAY}")
    a(f"s_mov_b32 s43, {RETRY_MAX}")
    a.label("K3_post")
    for ci, sr in enumerate((73, 65, 66, 67)):
        a(f"buffer_load_dwordx4 {vr(16+4*ci)}, v225, s[44:47], s{sr} offen sc1")
    a("s_waitcnt vmcnt(0)")
    and_reduce(a, 48, range(16, 32))
    a("v_cmp_eq_u32 vcc, 0, v48")
    a("s_cmp_eq_u64 vcc, 0")
    a("s_cbranch_scc1 K3_yok")
    a("s_add_u32 s75, s75, 1")
    a("s_cmp_eq_u32 s40, 0")
    a("s_cbranch_scc1 K3_zp_s2")
    if PREPOST:
        a("s_cmp_eq_u32 s40, 3")
        a("s_cbranch_scc1 K3_pw")
    a("s_sub_u32 s43, s43, 1")
    a("s_cbranch_scc1 K3_yok")
    a("s_sleep 8")
    a("s_branch K3_post")
    a.label("K3_yok")
    stamp(a, 8)
    post_compute(a, QR, False)
    a("s_mov_b32 s41, s40")
    a("s_mov_b32 s40, 1")
    a("s_cmp_eq_u32 s41, 0")
    a("s_cbranch_scc1 K3_zp")
    if PREPOST:
        a("s_cmp_eq_u32 s41, 3")
        a("s_cbranch_scc1 K3_pw")
    a.label("K3_fin")
    stamp_flush(a, 9)
    a.label("K3_end")
    a("s_endpgm")
    a.label("K3_code_end")
    return a.finalize(), 252
```

```python
import os
from asmlib import *
from common import prepass, k2_prefetch_setup, MB, vr, mfma16, phi8, unpack4, env, LOG2E, EPS, WS_KVP, WS_ZP, WS_FLAG, WS_UT, WS_DBG, STAMP

WS_OF = 0
NS = 4
STAGE = 40960
K3_LDS = NS * STAGE
CV32 = env("CV32", 0)
CV_REG = 8960 if CV32 else 8704
CV_HB = 64 if CV32 else 32
CV_UB = 4672 if CV32 else 4384
KVT = 4 * CV_REG
SYNC = KVT + 4096
WO_BASE = 40960
PQ_BASE = WO_BASE + 24 * 4096
XCH = WO_BASE + 28 * 4096
XCZ = SYNC + 256
S_KVS = 84
S_PD = 96
S_G2 = 112
S_OT = 128
S_X, S_HU, S_PQ, S_KVT, S_WOM, S_WOT, S_CD, S_GO, S_NONCE, S_WO2 = 0, 8, 24, 40, 48, 52, 56, 72, 76, 80
SPIN_MAX = 1 << 17
RETRY_MAX = 4000
DPP = "row_mask:0xf bank_mask:0xf"
DUTY0 = env("DUTY0", 0)
NDUTY = env("NDUTY", 4)
E2_0 = env("E2_0", 4)
E2_N = env("E2_N", 4)
E3_0 = env("E3_0", 8)
E3_N = env("E3_N", 4)
F1N = env("F1N", 11)
NLEAD = env("NLEAD", 4)
FLAGN = env("FLAGN", 12)
AINIT = env("AINIT", 12)
PDELAY = env("PDELAY", 0)
G2PRIO = env("G2PRIO", 1)
CPOST = env("CPOST", 0)
PG = env("PG", 0)
BP = env("BP", 1)
TWAIT = env("TWAIT", 1)
ZFIRST = env("ZFIRST", 0)
GS = env("GS", 16)
FILLC = env("FILLC", 0)
PRO = env("PRO", 3)
TRO = env("TRO", 1)
EARLYB = env("EARLYB", 1)
LFRONT = env("LFRONT", 0)
ALN = env("ALN", 0)
PW = env("PW", 0)
PHID = env("PHID", 0)
WIDE = env("WIDE", 0)
UTF = env("UTF", 0)
NTK = " nt" if env("NTK", 1) else ""
OS1 = env("OS1", " sc1")
OS2 = env("OS2", " sc1")
NPL = env("NPL", 2)
FL0 = env("FL0", 0)
PL0 = env("PL0", 4)
SPF_C = env("SPF_C", 0)
SPF_L = env("SPF_L", 0)
ADEPTH = env("ADEPTH", 16)
YDELAY = env("YDELAY", 8)
ZSLEEP = env("ZSLEEP", 10)
ATOUCH = env("ATOUCH", 1)
XP = env("XP", "23")
LATE = env("LATE", 1)
PREPOST = env("PREPOST", 0)
EARLYWO = env("EARLYWO", 4)
WAITKV = env("WAITKV", 1)
GSC = env("GSC", "")
QX = env("QX", 1)
PREC = env("PREC", 0)
L2PF = env("L2PF", 0)
TLBW = env("TLBW", 0)
CODEPF = env("CODEPF", 0)
DBGOUT = env("DBGOUT", 0)
NTF = " nt" if env("NTF", 0) else ""
NTG = " nt" if env("NTG", 0) else ""
NTO = " nt" if env("NTO", 1) else ""
NTT = " nt" if env("NTT", 0) else ""
NTS = " nt" if env("NTS", 0) else ""
E3W = env("E3W", 1)
QEARLY = env("QEARLY", 0)
POSTPRE = env("POSTPRE", 0)
ASC = env("ASC", "")
P_Q, P_K, P_V, P_SHK, P_H, P_D, P_X, P_W, P_WO, P_OUT, P_DBG, P_WS = [76 + 2 * i for i in range(12)]
SV = 231


def stamp(a, i):
    if STAMP:
        a("s_memrealtime s[100:101]")
        a("s_waitcnt lgkmcnt(0)")
        a(f"v_writelane_b32 v{SV}, s100, {i}")


def cstamp(a, i):
    if STAMP:
        a("s_memtime s[100:101]")
        a("s_waitcnt lgkmcnt(0)")
        a(f"v_writelane_b32 v{SV}, s100, {i}")


def stamp_flush(a, n):
    if not STAMP:
        return
    a("s_mov_b64 exec, -1")
    a("s_waitcnt vmcnt(0)")
    stamp(a, n)
    a(f"v_writelane_b32 v{SV}, s75, 15")
    if DBGOUT:
        lab = "K3_dbg%d" % len(a.ins)
        a(f"s_cmp_lg_u32 s2, {DBGOUT-1}")
        a(f"s_cbranch_scc1 {lab}")
        a("s_cmp_lg_u32 s4, 0")
        a(f"s_cbranch_scc1 {lab}")
        srd(a, 16, P_DBG, 256)
        a(f"v_readlane_b32 s20, v{SV}, 0")
        a("s_lshr_b32 s21, s3, 1")
        a("v_lshlrev_b32 v0, 2, v2")
        a(f"v_subrev_u32 v1, s20, v{SV}")
        a("s_mov_b64 exec, 0x3fe")
        a("buffer_store_short v1, v0, s[16:19], s21 offen")
        a("s_mov_b64 exec, -1")
        a.label(lab)
    srd_off(a, 16, P_WS, WS_DBG, 4 * MB)
    a("s_add_u32 s20, s2, 512")
    a("s_lshl_b32 s20, s20, 4")
    a("s_add_u32 s20, s20, s3")
    a("s_lshl_b32 s20, s20, 6")
    a("v_lshlrev_b32 v0, 2, v2")
    a("s_mov_b64 exec, 0xffff")
    a(f"buffer_store_dword v{SV}, v0, s[16:19], s20 offen")


def lds_wait(a, name, vaddr, off, val, vtmp, stmp, sleep=0):
    a(f"s_mov_b32 s{stmp+1}, {SPIN_MAX}")
    a.label(name)
    if sleep:
        a(f"s_sleep {sleep}")
    a(f"ds_read_b32 v{vtmp}, v{vaddr} offset:{off}")
    a("s_waitcnt lgkmcnt(0)")
    a(f"v_readfirstlane_b32 s{stmp}, v{vtmp}")
    a(f"s_sub_u32 s{stmp+1}, s{stmp+1}, 1")
    a(f"s_cbranch_scc1 {name}_ok")
    a(f"s_cmp_lt_u32 s{stmp}, {val}")
    a(f"s_cbranch_scc1 {name}")
    a.label(name + "_ok")


def lds_signal(a, vaddr, off, vone):
    a("s_mov_b64 exec, 1")
    a(f"ds_add_u32 v{vaddr}, v{vone} offset:{off}")
    a("s_mov_b64 exec, -1")


def and_reduce(a, dst, regs):
    regs = list(regs)
    a(f"v_bitop3_b32 v{dst}, v{regs[0]}, v{regs[1]}, 1 bitop3:0x80")
    i = 2
    while i + 1 < len(regs):
        a(f"v_bitop3_b32 v{dst}, v{dst}, v{regs[i]}, v{regs[i+1]} bitop3:0x80")
        i += 2
    if i < len(regs):
        a(f"v_and_b32 v{dst}, v{dst}, v{regs[i]}")


def phi8d(a, s0, s1, T, dst, sl2e, seps):
    src = [s0, s0 + 1, s0 + 2, s0 + 3, s1, s1 + 1, s1 + 2, s1 + 3]
    for j in range(8):
        a(f"v_min_f32 v{T+j}, 0, v{src[j]}")
    for j in range(4):
        a(f"v_pk_mul_f32 {vr(T+8+2*j,2)}, {vr(T+2*j,2)}, s[{sl2e}:{sl2e+1}]")
    for j in range(8):
        a(f"v_exp_f32 v{T+8+j}, v{T+8+j}")
    for j in range(4):
        a(f"v_pk_add_f32 {vr(src[2*j],2)}, {vr(src[2*j],2)}, {vr(T+2*j,2)} neg_lo:[0,1] neg_hi:[0,1]")
    for j in range(4):
        a(f"v_pk_add_f32 {vr(src[2*j],2)}, {vr(src[2*j],2)}, s[{seps}:{seps+1}]")
    for j in range(4):
        a(f"v_pk_add_f32 {vr(src[2*j],2)}, {vr(src[2*j],2)}, {vr(T+8+2*j,2)}")
    for j in range(4):
        a(f"v_cvt_pk_bf16_f32 v{dst+j}, v{src[2*j]}, v{src[2*j+1]}")


def post_compute(a, QR, pk):
    for jj in range(8):
        T = 48 + 8 * (jj & 1)
        for ci in range(4):
            if jj & 1:
                a(f"v_and_b32 v{T+ci}, 0xffff0000, v{16+4*ci+jj//2}")
            else:
                a(f"v_lshlrev_b32 v{T+ci}, 16, v{16+4*ci+jj//2}")
        for cp in range(2):
            a(f"v_lshlrev_b32 v{T+4+2*cp}, 16, v{QR+2*jj+cp}")
            a(f"v_and_b32 v{T+5+2*cp}, 0xffff0000, v{QR+2*jj+cp}")
        if pk:
            for cp in range(2):
                a(f"v_pk_mul_f32 {vr(T+2*cp,2)}, {vr(T+2*cp,2)}, {vr(T+4+2*cp,2)}")
        else:
            for ci in range(4):
                a(f"v_mul_f32 v{T+ci}, v{T+ci}, v{T+4+ci}")
        O = 64 + 2 * jj
        for cp in range(2):
            a(f"v_cvt_pk_bf16_f32 v{O+cp}, v{T+2*cp}, v{T+2*cp+1}")
        a(f"buffer_store_dwordx2 {vr(O,2)}, v224, s[32:35], s72 offen{NTS}{OS1}")
        a(f"s_add_u32 s72, s72, {64*4096}")


def conv32(a, lg, PK):
    FU, HR, NH = 96, 16, 4
    ACCS = [[32, 48], [64, 80]]
    T2, T1, YV, R3PREV = [224, 225], [226, 227], [228, 229], 230

    def epilogue_ops(p):
        ops = []
        for ql in range(8):
            Q = 8 * p + ql
            acc = ACCS[p & 1][ql // 4] + 4 * (ql % 4)
            R0, R1, R2, R3 = acc, acc + 1, acc + 2, acc + 3
            cur, prv = Q & 1, (Q & 1) ^ 1
            r3p = R3PREV if ql == 0 else ACCS[p & 1][(ql - 1) // 4] + 4 * ((ql - 1) % 4) + 3
            if Q == 0:
                ops.append(f"v_add_f32_dpp v{T2[cur]}, v{R3}, v{R2} wave_shr:1 {DPP} bound_ctrl:0")
                ops.append(f"v_add_f32_dpp v{T1[cur]}, v{T2[cur]}, v{R1} wave_shr:1 {DPP} bound_ctrl:0")
                ops.append(f"v_add_f32_dpp v{YV[cur]}, v{T1[cur]}, v{R0} wave_shr:1 {DPP} bound_ctrl:0")
            else:
                ops.append(f"v_add_f32_dpp v{T2[cur]}, v{r3p}, v{R2} wave_ror:1 {DPP}")
                ops.append(f"v_add_f32_dpp v{T1[cur]}, v{T2[prv]}, v{R1} wave_ror:1 {DPP}")
                ops.append(f"v_add_f32_dpp v{YV[cur]}, v{T1[prv]}, v{R0} wave_ror:1 {DPP}")
                ops.append(f"v_add_f32_dpp v{T2[cur]}, v{R3}, v{R2} wave_shr:1 {DPP}")
                ops.append(f"v_add_f32_dpp v{T1[cur]}, v{T2[cur]}, v{R1} wave_shr:1 {DPP}")
                ops.append(f"v_add_f32_dpp v{YV[cur]}, v{T1[cur]}, v{R0} wave_shr:1 {DPP}")
            if ql & 1:
                d = PK[p] + ql // 2
                ops.append(f"v_cvt_pk_bf16_f32 v{d}, v{YV[0]}, v{YV[1]}")
                ops.append(f"v_or_b32 v{d}, 1, v{d}")
            if ql == 7:
                ops.append(f"v_mov_b32 v{R3PREV}, v{R3}")
        return ops

    steps = [(p, t) for p in range(4) for t in range(8 * p + 8)]
    issued = set()
    hslot = {}

    def issue_h(idx):
        p, t = steps[idx]
        slot = idx % NH
        hslot[idx] = slot
        for h in range(2):
            a(f"ds_read_b64_tr_b16 {vr(HR+4*slot+2*h,2)}, v12 offset:{128*t+32*(1-h)}")
            lg.issue(("h", slot))

    def issue_fu(s):
        if s in issued:
            return
        issued.add(s)
        for h in range(2):
            a(f"ds_read_b64_tr_b16 {vr(FU+4*(s+3)+2*h,2)}, v13 offset:{128*(s+3)+32*h}")
            lg.issue(("fu", s))

    def need(idx):
        p, t = steps[idx]
        r = [8 * p + 4 - t]
        if t <= 8 * p + 3:
            r.append(8 * p - t)
        return r

    PRE = 3
    for idx in range(PRE):
        for s in need(idx):
            issue_fu(s)
        issue_h(idx)
    pending = []
    for idx, (p, t) in enumerate(steps):
        if t == 0 and p > 0:
            assert not pending
            pending = epilogue_ops(p - 1)
        slot = hslot[idx]
        lg.wait_for([("h", slot)] + [("fu", s) for s in need(idx)])
        mf = [(1, 8 * p + 4 - t)]
        if t <= 8 * p + 3:
            mf.append((0, 8 * p - t))
        for k, (tile, s) in enumerate(mf):
            d = ACCS[p & 1][tile]
            cs = "0" if t == 0 else vr(d, 16)
            a(f"v_mfma_f32_32x32x16_bf16 {vr(d,16)}, {vr(FU+4*(s+3))}, {vr(HR+4*slot)}, {cs}")
            if k == 0 and idx + PRE < len(steps):
                for s2 in need(idx + PRE):
                    issue_fu(s2)
                issue_h(idx + PRE)
            if pending and t >= 2:
                for _ in range(3):
                    if pending:
                        a(pending.pop(0))
    assert not pending
    for op in epilogue_ops(3):
        a(op)


def gen_k3():
    a = Asm()
    a.label("K3_code_begin")
    a("s_cmp_ge_u32 s2, 256")
    a("s_cbranch_scc1 K3_end")
    a("s_load_dwordx8 s[84:91], s[0:1], 32")
    a("s_load_dwordx8 s[92:99], s[0:1], 64")
    a("s_load_dwordx8 s[76:83], s[0:1], 0")
    a("v_lshrrev_b32 v1, 6, v0")
    a("v_and_b32 v2, 63, v0")
    a("s_and_b32 s10, s2, 7")
    a("v_readfirstlane_b32 s3, v1")
    a("s_lshr_b32 s11, s2, 3")
    a("s_and_b32 s12, s10, 1")
    a("s_lshl_b32 s12, s12, 3")
    a("s_and_b32 s13, s11, 7")
    a("s_add_u32 s12, s12, s13")
    a("s_lshr_b32 s13, s10, 1")
    a("s_lshl_b32 s13, s13, 2")
    a("s_lshr_b32 s14, s11, 3")
    a("s_add_u32 s13, s13, s14")
    a("s_mov_b32 s75, 0")
    a("s_and_b32 s4, s3, 3")
    a("s_and_b32 s36, s3, 1")
    a("s_bfe_u32 s37, s3, 0x10001")
    a("s_lshl_b32 s5, s13, 1")
    a("s_add_u32 s5, s5, s37")
    a(f"s_xor_b32 s15, s5, {2 if QX else 0}")
    a("s_lshl_b32 s6, s10, 7")
    a("s_lshl_b32 s7, s11, 2")
    a("s_add_u32 s6, s6, s7")
    a("s_add_u32 s6, s6, s4")
    a(f"s_mul_i32 s7, s4, {CV_REG}")
    a("v_lshlrev_b32 v3, 4, v2")
    a("v_lshrrev_b32 v14, 4, v2")
    a("v_and_b32 v15, 15, v2")
    spf = []
    if not EARLYB:
        a("s_waitcnt lgkmcnt(0)")
        stamp(a, 0)
    if LFRONT == 1:
        a("s_cmp_lt_u32 s3, 4")
        a("s_cbranch_scc1 K3_C")
        mark = len(a.ins)
        a.label("K3_C")
    else:
        a("s_cmp_ge_u32 s3, 4")
        a("s_cbranch_scc1 K3_L")
    if EARLYB:
        a("s_waitcnt lgkmcnt(0)")
        stamp(a, 0)

    if L2PF:
        srd(a, 40, P_X, 4 * MB)
        srd(a, 48, P_W, 6 * MB)
        a("v_lshrrev_b32 v192, 3, v2")
        a("v_lshlrev_b32 v192, 11, v192")
        a("v_and_b32 v16, 7, v2")
        a("v_lshl_add_u32 v192, v16, 7, v192")
        a("s_and_b32 s44, s10, 1")
        a("s_lshl_b32 s44, s44, 21")
        a("s_lshl_b32 s45, s11, 16")
        a("s_add_u32 s44, s44, s45")
        a("s_lshl_b32 s45, s3, 14")
        a("s_add_u32 s44, s44, s45")
        a(f"buffer_load_dword v195, v192, s[40:43], s44 offen{NTT}")
        a("v_lshrrev_b32 v193, 2, v2")
        a("v_mul_u32_u24 v193, 6144, v193")
        a("v_and_b32 v16, 3, v2")
        a("v_lshl_add_u32 v193, v16, 7, v193")
        a("s_mul_i32 s45, s11, 98304")
        a("s_lshl_b32 s46, s3, 11")
        a("s_add_u32 s45, s45, s46")
        a("s_lshr_b32 s46, s10, 1")
        a("s_lshl_b32 s46, s46, 9")
        a("s_add_u32 s45, s45, s46")
        a("s_cmp_eq_u32 s3, 3")
        a(f"s_cselect_b32 s45, {16*MB}, s45")
        a(f"buffer_load_dword v195, v193, s[48:51], s45 offen{NTT}")
        a("s_add_u32 s44, s44, 1024")
        a(f"s_add_u32 s45, s45, {512*6144}")
    else:
        a("s_cmp_lg_u32 s3, 0")
        a("s_cbranch_scc1 K3_pfw")
        srd(a, 40, P_X, 4 * MB)
        a("v_lshrrev_b32 v192, 3, v2")
        a("v_lshlrev_b32 v192, 11, v192")
        a("v_and_b32 v16, 7, v2")
        a("v_lshl_add_u32 v192, v16, 7, v192")
        a("s_lshl_b32 s45, s2, 14")
        a("s_add_u32 s44, s45, 1024")
        a("s_branch K3_pfd")
        a.label("K3_pfw")
        srd(a, 40, P_W, 6 * MB)
        a("v_lshlrev_b32 v192, 7, v2")
        a("s_mul_i32 s45, s2, 12288")
        a("s_sub_u32 s44, s3, 1")
        a("s_lshl_b32 s44, s44, 12")
        a("s_add_u32 s45, s45, s44")
        a(f"s_add_u32 s44, s45, {3*MB}")
        a("s_cmp_eq_u32 s3, 3")
        a(f"s_cselect_b32 s45, {8*MB}, s45")
        a(f"s_cselect_b32 s44, {8*MB}, s44")
        a.label("K3_pfd")
        if "1" in XP:
            a(f"s_mov_b32 s45, {16*MB}")
            a(f"s_mov_b32 s44, {16*MB}")
        a(f"buffer_load_dword v195, v192, s[40:43], s45 offen{NTT}")
    if env("E1NOW", 0):
        a("buffer_load_dword v195, v192, s[40:43], s44 offen")
        a(f"s_mov_b32 s44, {16*MB}")
    if LFRONT == 2:
        a("s_branch K3_C2")
        mark = len(a.ins)
        a.label("K3_C2")
    srd(a, 56, P_DBG, 256)
    srd_off(a, 60, P_WS, WS_FLAG, 4096)
    a("s_memrealtime s[16:17]")
    a("v_mov_b32 v199, 0")
    a("s_waitcnt lgkmcnt(0)")
    a("s_or_b32 s16, s16, 1")
    a("v_mov_b32 v198, s16")
    a("s_cmp_lg_u32 s3, 3")
    a("s_cbranch_scc1 K3_noseed")
    a("s_cmp_lg_u32 s11, 0")
    a("s_cbranch_scc1 K3_noseed")
    a("v_mov_b32 v196, s16")
    a("v_mov_b32 v197, 0")
    a("s_mov_b64 exec, 1")
    a("buffer_atomic_cmpswap v[196:197], v199, s[56:59], 0 offen sc1")
    a("s_mov_b64 exec, -1")
    a.label("K3_noseed")
    if CODEPF:
        a("s_cmp_lg_u32 s3, 3")
        a("s_cbranch_scc1 K3_nocpf")
        a(f"s_cmp_ge_u32 s11, {CODEPF}")
        a("s_cbranch_scc1 K3_nocpf")
        a("s_getpc_b64 s[16:17]")
        a.label("K3_pc")
        a("s_sub_u32 s16, s16, K3_pc-K3_code_begin")
        a("s_subb_u32 s17, s17, 0")
        a("s_mov_b32 s18, K3_code_end-K3_code_begin")
        a("s_mov_b32 s19, 0x20000")
        a("v_lshlrev_b32 v16, 7, v2")
        for i in range(6):
            a(f"s_mov_b32 s20, {8192*i}")
            a("buffer_load_dword v195, v16, s[16:19], s20 offen")
        a.label("K3_nocpf")
    if TLBW:
        a("s_cmp_lg_u32 s3, 3")
        a("s_cbranch_scc1 K3_notlb")
        a(f"s_cmp_ge_u32 s11, {TLBW}")
        a("s_cbranch_scc1 K3_notlb")
        a("v_lshlrev_b32 v16, 16, v2")
        for p, nb, offs in ((P_K, 4, (0,)), (P_V, 4, (0,)), (P_H, 4, (0,)), (P_Q, 4, (0,)), (P_WO, 2, (0,)), (P_OUT, 8, (0, 4)), (P_WS, 20, (0, 8, 12, 16))):
            srd(a, 16, p, nb * MB)
            for o in offs:
                a(f"s_mov_b32 s20, {o*MB}")
                a("buffer_load_dword v195, v16, s[16:19], s20 offen nt")
        a.label("K3_notlb")
    a("s_lshl_b32 s46, s11, 7")
    a("s_lshl_b32 s47, s10, 2")
    a("s_add_u32 s47, s47, s46")
    if PREC:
        pre_compute = prepass(a, 3, P_K, P_V, P_SHK, " sc1", P_WS, NTO)
    if not L2PF:
        a("s_cmp_ge_u32 s3, 2")
        a(f"s_cselect_b32 s48, s{P_V}, s{P_K}")
        a(f"s_cselect_b32 s49, s{P_V+1}, s{P_K+1}")
        a(f"s_mov_b32 s50, {4*MB}")
        a("s_mov_b32 s51, 0x20000")
        a("v_lshrrev_b32 v193, 2, v2")
        a("v_lshlrev_b32 v193, 11, v193")
        a("v_and_b32 v16, 3, v2")
        a("v_lshl_add_u32 v193, v16, 7, v193")
        a("s_lshr_b32 s45, s2, 2")
        a("s_lshl_b32 s45, s45, 16")
        a("s_lshl_b32 s46, s36, 15")
        a("s_add_u32 s45, s45, s46")
        a("s_and_b32 s46, s2, 3")
        a("s_lshl_b32 s46, s46, 9")
        a("s_add_u32 s45, s45, s46")
        if "2" in XP:
            a(f"s_mov_b32 s45, {16*MB}")
    a("v_mov_b32 v200, v15")
    for part in range(4):
        if part < 3:
            a(f"s_cmp_lg_u32 s3, {part}")
            a(f"s_cbranch_scc1 K3_e3_{part+1}")
        k2_prefetch_setup(a, part, 194, 64, 68, P_H, P_Q, P_WO)
        if part < 3:
            a("s_branch K3_e3_done")
            a.label(f"K3_e3_{part+1}")
    a.label("K3_e3_done")
    a("v_mov_b32 v15, v200")
    a(f"s_and_b32 s55, s11, {NDUTY-1}")
    a(f"s_add_u32 s55, s55, {DUTY0}")
    a(f"s_and_b32 s52, s11, {E2_N-1}")
    a(f"s_add_u32 s52, s52, {E2_0}")
    a("s_sub_u32 s52, s52, s55")
    a("s_sub_u32 s52, s52, 1")
    a("s_mov_b32 s54, 0")
    a("s_lshr_b32 s70, s11, 2")
    a(f"s_and_b32 s70, s70, {E3_N-1}")
    a(f"s_add_u32 s70, s70, {E3_0 if '3' not in XP else 1000}")
    if E3W:
        a("s_cmp_lt_u32 s3, 2")
        a("s_cselect_b32 s70, 1000, s70")
    a("s_cmp_eq_u32 s3, 3")
    a(f"s_cselect_b32 s71, {F1N-NLEAD}, 1000")
    a("s_mov_b32 s53, 0")
    if PREC:
        pre_compute()
    if FILLC:
        srd_off(a, 16, P_WS, WS_OF, 4 * MB)
        srd_off(a, 20, P_WS, WS_KVP, 2 * MB)
        srd_off(a, 24, P_WS, WS_ZP, 64 * 1024)
        a("s_lshl_b32 s28, s12, 3")
        a("s_lshl_b32 s29, s4, 1")
        a("s_add_u32 s28, s28, s29")
        a("s_lshl_b32 s28, s28, 15")
        a("s_lshr_b32 s29, s15, 1")
        a("s_lshl_b32 s29, s29, 11")
        a("s_add_u32 s28, s28, s29")
        a("s_add_u32 s29, s28, 32768")
        a("s_lshl_b32 s30, s5, 4")
        a("s_add_u32 s30, s30, s12")
        a("s_lshl_b32 s31, s30, 7")
        a("s_lshl_b32 s30, s30, 12")
        a("s_lshl_b32 s32, s36, 10")
        a("s_add_u32 s30, s30, s32")
        for i in range(4):
            a(f"v_mov_b32 v{20+i}, 0")
        a("v_and_b32 v18, 7, v2")
        a("v_lshlrev_b32 v18, 4, v18")
        a("buffer_store_dwordx4 v[20:23], v3, s[16:19], s28 offen sc1")
        a("buffer_store_dwordx4 v[20:23], v3, s[16:19], s28 offen offset:1024 sc1")
        a("buffer_store_dwordx4 v[20:23], v3, s[16:19], s29 offen sc1")
        a("buffer_store_dwordx4 v[20:23], v3, s[16:19], s29 offen offset:1024 sc1")
        a("buffer_store_dwordx4 v[20:23], v3, s[20:23], s30 offen sc1")
        a("buffer_store_dwordx4 v[20:23], v18, s[24:27], s31 offen sc1")
    a("s_lshl_b32 s38, s36, 6")
    a("v_add_u32 v16, s38, v15")
    a("v_lshrrev_b32 v17, 1, v15")
    a("v_lshlrev_b32 v16, 7, v16")
    a("v_xor_b32 v17, v14, v17")
    a("v_lshl_add_u32 v4, v17, 4, v16")
    a("v_xor_b32 v5, 64, v4")
    a(f"v_add_u32 v6, {2*STAGE}, v4")
    a(f"v_add_u32 v7, {2*STAGE}, v5")
    a("v_bfe_u32 v17, v2, 2, 2")
    a("v_and_b32 v18, 3, v2")
    a("v_lshlrev_b32 v17, 6, v17")
    a("v_lshl_add_u32 v17, v18, 3, v17")
    a("v_and_b32 v18, 1, v14")
    a("v_lshl_add_u32 v17, v18, 10, v17")
    a("v_lshl_add_u32 v17, v18, 5, v17")
    a("v_lshrrev_b32 v18, 1, v14")
    a("v_mul_u32_u24 v18, 6144, v18")
    a("v_add_u32 v17, v17, v18")
    a("s_lshl_b32 s38, s37, 8")
    a("s_add_u32 s38, s38, 16384")
    a("v_add_u32 v8, s38, v17")
    a("v_xor_b32 v9, 32, v8")
    a(f"v_add_u32 v10, {2*STAGE}, v8")
    a(f"v_add_u32 v11, {2*STAGE}, v9")
    SB = [16, 56]

    def accr(kind, mt, dt):
        return 96 + 32 * kind + (mt * 2 + dt) * 4

    for i in range(96, 192):
        a(f"v_mov_b32 v{i}, 0")
    for op in spf[:SPF_C]:
        a(op)
    a("s_waitcnt lgkmcnt(0)")
    srd_off(a, 28, P_WS, WS_KVP, 2 * MB)
    srd_off(a, 32, P_WS, WS_ZP, 64 * 1024)
    lg = Cnt(a, "lgkmcnt", 15)

    def reads(slot, t, st):
        sb = (slot & 1) * STAGE
        va = 4 + t + (2 if slot >= 2 else 0)
        vb = 10 if slot >= 2 else 8
        R = SB[st]

        def A(mt):
            return [(("A", mt, st), f"ds_read_b128 {vr(R+4*mt)}, v{va} offset:{sb + 2048*mt}")]

        def B(cb):
            seg, nh = cb // 2, cb % 2
            return [(("B", cb, st), f"ds_read_b64_tr_b16 {vr(R+16+4*cb+2*h,2)}, v{vb+nh} offset:{sb + t*12288 + seg*2048 + 512*h}") for h in range(2)]
        return A(0) + B(0) + A(1) + A(2) + A(3) + B(1) + B(2) + B(3) + B(4) + B(5)

    def group(st, nxt):
        R = SB[st]
        nxt = list(nxt)
        for cb in range(6):
            kind, dt = cb // 2, cb % 2
            for mt in range(4):
                lg.wait_for([("A", mt, st), ("B", cb, st)])
                fa, fb = R + 4 * mt, R + 16 + 4 * cb
                if kind == 0:
                    mfma16(a, accr(0, mt, dt), fb, fa)
                else:
                    mfma16(a, accr(kind, mt, dt), fa, fb)
                if nxt:
                    tag, txt = nxt.pop(0)
                    a(txt)
                    lg.issue(tag)

    a("s_barrier")
    stamp(a, 1)
    cstamp(a, 10)
    for tag, txt in reads(0, 0, 0):
        a(txt)
        lg.issue(tag)
    lg.drain()
    a("s_mov_b32 s39, 4")
    if env("CPR", 0):
        a(f"s_setprio {env('CPR', 0)}")
    if ALN:
        a(".p2align 6")
        if ALN == 2:
            a("s_nop 0")
    a.label("K3_loop")
    for slot in range(4):
        group(0, reads(slot, 1, 1))
        lg.drain()
        a("s_barrier")
        a("s_sub_u32 s55, s55, 1")
        a(f"s_cbranch_scc1 K3_event{slot}")
        a.label(f"K3_noev{slot}")
        a("s_sub_u32 s70, s70, 1")
        a(f"s_cbranch_scc1 K3_evB{slot}")
        a.label(f"K3_noevB{slot}")
        a("s_sub_u32 s71, s71, 1")
        a(f"s_cbranch_scc1 K3_evC{slot}")
        a.label(f"K3_noevC{slot}")
        group(1, reads((slot + 1) % 4, 0, 0))
        if slot == 3:
            a("s_sub_u32 s39, s39, 1")
            a("s_cmp_lg_u32 s39, 0")
            lg.drain()
    a("s_cbranch_scc1 K3_loop")
    stamp(a, 2)
    cstamp(a, 11)

    a(f"s_mov_b32 s44, {LOG2E}")
    a(f"s_mov_b32 s45, {LOG2E}")
    a(f"s_mov_b32 s46, {EPS}")
    a(f"s_mov_b32 s47, {EPS}")
    a(f"v_mov_b32 v10, {SYNC}")
    a("v_mov_b32 v11, 1")
    for et in range(2):
        for m in range(2):
            d = 16 + 4 * (2 * et + m)
            for hh in range(2):
                s = accr(2, 2 * m + hh, et)
                a(f"v_cvt_pk_bf16_f32 v{d+2*hh}, v{s}, v{s+1}")
                a(f"v_cvt_pk_bf16_f32 v{d+2*hh+1}, v{s+2}, v{s+3}")
    for i in range(4):
        a(f"v_mov_b32 v{48+i}, 0x3f803f80")
    KV, ZZ, T = 160, 176, 52
    for m in range(2):
        for dt in range(2):
            kf = 32 + 4 * (2 * dt + m)
            if PHID:
                phi8d(a, accr(1, 2 * m, dt), accr(1, 2 * m + 1, dt), T, kf, 44, 46)
            else:
                for hh in range(2):
                    s = accr(1, 2 * m + hh, dt)
                    a(f"v_cvt_pk_bf16_f32 v{T+2*hh}, v{s}, v{s+1}")
                    a(f"v_cvt_pk_bf16_f32 v{T+2*hh+1}, v{s+2}, v{s+3}")
                unpack4(a, T, T)
                phi8(a, T, kf, 44, 46)
            for et in range(2):
                mfma16(a, KV + 4 * (2 * et + dt), kf, 16 + 4 * (2 * et + m), "0" if m == 0 else None)
            mfma16(a, ZZ + 4 * dt, kf, 48, "0" if m == 0 else None)
    a("s_lshl_b32 s43, s37, 12")
    a(f"s_add_u32 s43, s43, {XCH}")
    a("v_add_u32 v4, s43, v3")
    a("s_lshl_b32 s43, s37, 7")
    a(f"s_add_u32 s43, s43, {XCZ}")
    a("v_lshlrev_b32 v5, 5, v14")
    a("v_add_u32 v5, s43, v5")
    a("s_lshl_b32 s43, s37, 2")
    a("v_add_u32 v6, s43, v10")
    a("s_cmp_eq_u32 s36, 0")
    a("s_cbranch_scc1 K3_wr0")
    for qd in range(4):
        a(f"ds_write_b128 v4, {vr(KV+4*qd)} offset:{1024*qd}")
    for dt in range(2):
        a(f"ds_write_b128 v5, {vr(ZZ+4*dt)} offset:{16*dt}")
    a("s_waitcnt lgkmcnt(0)")
    lds_signal(a, 6, S_X, 11)
    a("s_branch K3_q")
    a.label("K3_wr0")
    a("s_lshl_b32 s48, s5, 4")
    a("s_add_u32 s48, s48, s12")
    a("s_lshl_b32 s49, s48, 12")
    a("s_lshl_b32 s50, s48, 7")
    a("v_lshlrev_b32 v7, 4, v14")
    lds_wait(a, "K3_wx", 6, S_X, 1, 8, 42)
    for qd in range(4):
        a(f"ds_read_b128 {vr(16+4*qd)}, v4 offset:{1024*qd}")
    for dt in range(2):
        a(f"ds_read_b128 {vr(32+4*dt)}, v5 offset:{16*dt}")
    for qd in range(6):
        a(f"s_waitcnt lgkmcnt({5-qd})")
        a(f"v_pk_add_f32 {vr(KV+4*qd,2)}, {vr(KV+4*qd,2)}, {vr(16+4*qd,2)}")
        a(f"v_pk_add_f32 {vr(KV+4*qd+2,2)}, {vr(KV+4*qd+2,2)}, {vr(16+4*qd+2,2)}")
        if BP and qd < 4:
            d = 40 + 2 * qd
            a(f"v_cvt_pk_bf16_f32 v{d}, v{KV+4*qd}, v{KV+4*qd+1}")
            a(f"v_cvt_pk_bf16_f32 v{d+1}, v{KV+4*qd+2}, v{KV+4*qd+3}")
            a(f"v_or_b32 v{d}, 1, v{d}")
            a(f"v_or_b32 v{d+1}, 1, v{d+1}")
            if qd & 1:
                a(f"buffer_store_dwordx4 {vr(d-2)}, v3, s[28:31], s49 offen offset:{1024*(qd//2)} sc1")
            continue
        for i in range(4):
            a(f"v_or_b32 v{KV+4*qd+i}, 1, v{KV+4*qd+i}")
        if qd < 4:
            a(f"buffer_store_dwordx4 {vr(KV+4*qd)}, v3, s[28:31], s49 offen offset:{1024*qd} sc1")
    a("s_mov_b32 exec_lo, 0x00010001")
    a("s_mov_b32 exec_hi, 0x00010001")
    for dt in range(2):
        a(f"buffer_store_dwordx4 {vr(ZZ+4*dt)}, v7, s[32:35], s50 offen offset:{64*dt} sc1")
    a("s_mov_b64 exec, -1")
    lds_signal(a, 10, S_KVS, 11)
    a.label("K3_q")
    stamp(a, 3)
    a("s_lshl_b32 s43, s3, 12")
    a(f"s_add_u32 s43, s43, {PQ_BASE}")
    a("v_add_u32 v4, s43, v3")
    for mt in range(4):
        d = 80 + 4 * mt
        if PHID:
            phi8d(a, accr(0, mt, 0), accr(0, mt, 1), T, d, 44, 46)
        else:
            for dt in range(2):
                sr = accr(0, mt, dt)
                a(f"v_cvt_pk_bf16_f32 v{T+2*dt}, v{sr}, v{sr+1}")
                a(f"v_cvt_pk_bf16_f32 v{T+2*dt+1}, v{sr+2}, v{sr+3}")
            unpack4(a, T, T)
            phi8(a, T, d, 44, 46)
        a(f"ds_write_b128 v4, {vr(d)} offset:{1024*mt}")
    a("s_lshl_b32 s43, s3, 2")
    a("v_add_u32 v9, s43, v10")
    if CV32:
        a("v_and_b32 v6, 3, v2")
        a("v_bfe_u32 v7, v2, 2, 2")
        a("v_bfe_u32 v4, v2, 4, 1")
        a("v_lshrrev_b32 v5, 5, v2")
        a("v_lshlrev_b32 v12, 5, v4")
        a("v_lshl_add_u32 v12, v6, 3, v12")
        a("v_lshl_add_u32 v12, v5, 6, v12")
        a("v_lshlrev_b32 v7, 3, v7")
        a("v_sub_u32 v12, v12, v7")
        a("s_add_u32 s43, s7, 32")
        a("v_add_u32 v12, s43, v12")
        a("v_lshlrev_b32 v13, 8, v4")
        a("v_lshl_add_u32 v13, v6, 6, v13")
        a("v_add_u32 v13, v13, v7")
        a("v_lshlrev_b32 v5, 6, v5")
        a("v_sub_u32 v13, v13, v5")
        a(f"s_add_u32 s43, s7, {CV_UB-384}")
        a("v_add_u32 v13, s43, v13")
    else:
        a("v_and_b32 v6, 3, v2")
        a("v_bfe_u32 v7, v2, 2, 2")
        a("v_add_u32 v12, v6, v7")
        a("v_lshlrev_b32 v12, 3, v12")
        a("v_lshl_add_u32 v12, v14, 6, v12")
        a(f"s_add_u32 s43, s7, {CV_HB-24}")
        a("v_add_u32 v12, s43, v12")
        a("v_lshlrev_b32 v13, 5, v6")
        a("v_lshlrev_b32 v7, 3, v7")
        a("v_sub_u32 v13, v13, v7")
        a("v_lshlrev_b32 v7, 6, v14")
        a("v_sub_u32 v13, v13, v7")
        a(f"s_add_u32 s43, s7, {CV_UB+24-32}")
        a("v_add_u32 v13, s43, v13")
    a(f"s_add_u32 s43, s7, {CV_UB}")
    a("v_add_u32 v8, s43, v3")
    a("s_waitcnt lgkmcnt(0)")
    lds_signal(a, 9, S_PQ, 11)
    stamp(a, 4)
    lds_wait(a, "K3_whu", 9, S_HU, 1, 16, 42)
    stamp(a, 5)

    if env("CPR", 0):
        a("s_setprio 0")
    if ALN:
        a(".p2align 3")
        if ALN == 3:
            a("s_nop 0")
    HH, FU = 32, 96
    ACC = [16, 20, 24, 28]
    T2, T1, YV, PK = [224, 225], [226, 227], [228, 229], [232, 236, 240, 244]
    lg.q = []

    def fu_reads(s):
        for hf in range(2):
            a(f"ds_read_b64_tr_b16 {vr(FU+4*s+2*hf,2)}, v13 offset:{128*s + 32*(1-hf)}")
            lg.issue(("fu", s))

    def h_reads(t):
        for hf in range(2):
            a(f"ds_read_b64_tr_b16 {vr(HH+4*t+2*hf,2)}, v12 offset:{256*t + 32*hf}")
            lg.issue(("h", t))

    def epi(Q):
        ops = []
        R0 = ACC[Q % 4]
        R1, R2, R3 = R0 + 1, R0 + 2, R0 + 3
        cur, prv = Q & 1, (Q & 1) ^ 1
        if Q == 0:
            ops.append(f"v_add_f32_dpp v{T2[cur]}, v{R3}, v{R2} wave_shr:1 {DPP} bound_ctrl:0")
            ops.append(f"v_add_f32_dpp v{T1[cur]}, v{T2[cur]}, v{R1} wave_shr:1 {DPP} bound_ctrl:0")
            ops.append(f"v_add_f32_dpp v{YV[cur]}, v{T1[cur]}, v{R0} wave_shr:1 {DPP} bound_ctrl:0")
        else:
            r3p = ACC[(Q - 1) % 4] + 3
            ops.append(f"v_add_f32_dpp v{T2[cur]}, v{r3p}, v{R2} wave_ror:1 {DPP}")
            ops.append(f"v_add_f32_dpp v{T1[cur]}, v{T2[prv]}, v{R1} wave_ror:1 {DPP}")
            ops.append(f"v_add_f32_dpp v{YV[cur]}, v{T1[prv]}, v{R0} wave_ror:1 {DPP}")
            ops.append(f"v_add_f32_dpp v{T2[cur]}, v{R3}, v{R2} wave_shr:1 {DPP}")
            ops.append(f"v_add_f32_dpp v{T1[cur]}, v{T2[cur]}, v{R1} wave_shr:1 {DPP}")
            ops.append(f"v_add_f32_dpp v{YV[cur]}, v{T1[cur]}, v{R0} wave_shr:1 {DPP}")
        if Q & 1:
            p = PK[Q // 8] + (Q % 8) // 2
            ops.append(f"v_cvt_pk_bf16_f32 v{p}, v{YV[0]}, v{YV[1]}")
            ops.append(f"v_or_b32 v{p}, 1, v{p}")
        return ops

    if CV32:
        conv32(a, lg, PK)
    else:
        PRE = 3
        for c in range(PRE):
            fu_reads(c)
            if c % 2 == 0:
                h_reads(c // 2)
        pending = []
        for c in range(32):
            nst = c // 2 + 1
            for t in range(nst):
                s = c - 2 * t
                lg.wait_for([("fu", s), ("h", t)])
                mfma16(a, ACC[c % 4], FU + 4 * s, HH + 4 * t, "0" if t == 0 else None)
                if t == 0 and c + PRE < 32:
                    fu_reads(c + PRE)
                    if (c + PRE) % 2 == 0:
                        h_reads((c + PRE) // 2)
                if t == 0 and c >= 2:
                    assert not pending
                    pending = epi(c - 2)
                k = max(1, -(-len(pending) // (nst - t))) if pending else 0
                for _ in range(k):
                    a(pending.pop(0))
        for Q in (30, 31):
            for op in epi(Q):
                a(op)
    srd_off(a, 28, P_WS, WS_UT, 4 * MB)
    a("s_lshl_b32 s40, s6, 12")
    for g in range(4):
        a(f"buffer_store_dwordx4 {vr(PK[g])}, v3, s[28:31], s40 offen offset:{1024*g} sc1")
    a("s_and_b32 s40, s10, 3")
    a("s_lshl_b32 s40, s40, 2")
    a("s_and_b32 s41, s11, 3")
    a("s_add_u32 s40, s40, s41")
    a("s_lshl_b32 s41, s40, 3")
    a("s_lshl_b32 s42, s3, 1")
    a("s_add_u32 s41, s41, s42")
    a("s_lshl_b32 s48, s41, 15")
    a("s_mov_b32 s47, s48")
    a("v_lshrrev_b32 v5, 5, v2")
    a("v_and_b32 v6, 1, v14")
    a("v_lshlrev_b32 v12, 15, v6")
    a("v_lshl_add_u32 v12, v5, 8, v12")
    a("v_lshl_add_u32 v12, v15, 4, v12")
    srd_off(a, 28, P_WS, WS_OF, 4 * MB)
    srd(a, 32, P_OUT, 8 * MB)
    a("s_waitcnt lgkmcnt(0)")
    lds_signal(a, 9, S_CD, 11)
    stamp(a, 6)
    if CPOST:
        a("s_lshl_b32 s16, s10, 1")
        a("s_lshr_b32 s17, s11, 4")
        a("s_add_u32 s16, s16, s17")
        a("s_and_b32 s17, s11, 15")
        a("s_lshl_b32 s17, s17, 2")
        a("s_add_u32 s17, s17, s4")
        a("s_lshr_b32 s18, s17, 4")
        a("s_and_b32 s17, s17, 15")
        a("s_lshl_b32 s19, s18, 9")
        a("s_lshl_b32 s64, s17, 2")
        a("s_add_u32 s19, s19, s64")
        a("s_lshl_b32 s64, s19, 11")
        a("s_lshl_b32 s65, s16, 7")
        a("s_add_u32 s64, s64, s65")
        a("s_lshl_b32 s72, s19, 12")
        a("s_add_u32 s72, s72, s65")
        a("s_lshl_b32 s73, s16, 18")
        a("s_lshl_b32 s65, s18, 10")
        a("s_add_u32 s73, s73, s65")
        a("s_lshl_b32 s65, s17, 6")
        a("s_add_u32 s73, s73, s65")
        a("s_add_u32 s65, s73, 4096")
        a("s_add_u32 s66, s73, 8192")
        a("s_add_u32 s67, s73, 12288")
        a("v_lshlrev_b32 v224, 12, v14")
        a("v_lshl_add_u32 v224, v15, 3, v224")
        a("v_lshlrev_b32 v225, 14, v15")
        a("v_lshl_add_u32 v225, v14, 4, v225")
        a("v_lshlrev_b32 v4, 11, v14")
        a("v_lshl_add_u32 v4, v15, 3, v4")
        srd(a, 16, P_Q, 4 * MB)
        srd_off(a, 20, P_WS, WS_UT, 4 * MB)
        for jj in range(8):
            a(f"buffer_load_dwordx2 {vr(208+2*jj,2)}, v4, s[16:19], s64 offen")
            a(f"s_add_u32 s64, s64, {64*2048}")
        a("s_waitcnt vmcnt(0)")
        a(f"s_mov_b32 s43, {RETRY_MAX}")
        a.label("K3_cp")
        for ci, sr in enumerate((73, 65, 66, 67)):
            a(f"buffer_load_dwordx4 {vr(16+4*ci)}, v225, s[20:23], s{sr} offen sc1")
        a(f"ds_read_b32 v49, v10 offset:{S_WOM}")
        a("s_waitcnt vmcnt(0) lgkmcnt(0)")
        and_reduce(a, 48, range(16, 32))
        a("v_readfirstlane_b32 s42, v49")
        a("v_cmp_eq_u32 vcc, 0, v48")
        a("s_cmp_eq_u64 vcc, 0")
        a("s_cbranch_scc1 K3_cp_ok")
        a("s_cmp_ge_u32 s42, 4")
        a("s_cbranch_scc1 K3_cp_skip")
        a("s_sub_u32 s43, s43, 1")
        a("s_cbranch_scc1 K3_cp_skip")
        a("s_sleep 6")
        a("s_branch K3_cp")
        a.label("K3_cp_ok")
        lds_signal(a, 9, S_PD, 11)
        post_compute(a, 208, True)
        a.label("K3_cp_skip")
    lds_wait(a, "K3_wwo", 10, S_WOM, 4, 80, 42)
    if PW:
        lds_wait(a, "K3_wot", 9, S_OT, 1, 80, 42)
    if CPOST:
        lds_signal(a, 9, S_G2, 11)
    stamp(a, 7)
    cstamp(a, 12)
    vm = Cnt(a, "vmcnt", 63)
    AR = 96
    D = ADEPTH
    if "a" in XP:
        srd(a, 28, P_X, 4 * MB)
        a("s_lshl_b32 s48, s12, 18")
        a("s_lshl_b32 s47, s3, 16")
        a("s_add_u32 s48, s48, s47")

    def aload(h):
        for f in range(2):
            r = AR + 8 * (h % D) + 4 * f
            a(f"buffer_load_dwordx4 {vr(r)}, v12, s[28:31], s48 offen offset:{1024*(h%4)+512*f}{ASC}")
            vm.issue(("A", h))
        if h % 4 == 3:
            a("s_add_u32 s48, s48, 4096")

    if G2PRIO:
        a(f"s_setprio {G2PRIO}")
    for h in range(AINIT):
        aload(h)
    anext = [AINIT]
    a("v_bfe_u32 v4, v2, 2, 2")
    a("v_and_b32 v7, 3, v2")
    a("v_lshlrev_b32 v4, 6, v4")
    a("v_lshl_add_u32 v4, v7, 3, v4")
    a("v_lshl_add_u32 v4, v5, 9, v4")
    a("v_xor_b32 v7, v6, v5")
    a("v_lshl_add_u32 v13, v7, 5, v4")
    a(f"v_add_u32 v4, {WO_BASE}, v13")
    a(f"v_add_u32 v8, {WO_BASE + 65536}, v13")

    def check_ops(g):
        r = AR + 8 * ((4 * g) % D)
        ops = [f"v_bitop3_b32 v81, v{r}, v{r+1}, v{r+2} bitop3:0x80"]
        for i in range(3, 31, 2):
            ops.append(f"v_bitop3_b32 v81, v81, v{r+i}, v{r+i+1} bitop3:0x80")
        ops.append(f"v_bitop3_b32 v81, v81, v{r+31}, 1 bitop3:0x80")
        return ops

    def check_branch(g):
        if "a" in XP:
            a.label(f"K3_retry{g}_ret")
            return
        a("v_cmp_eq_u32 vcc, 0, v81")
        a("s_cmp_lg_u64 vcc, 0")
        a(f"s_cbranch_scc1 K3_retry{g}")
        a.label(f"K3_retry{g}_ret")

    def retry_block(g):
        a.label(f"K3_retry{g}")
        a(f"s_mov_b32 s46, {RETRY_MAX}")
        a(f"s_add_u32 s44, s47, {4096*g}")
        a.label(f"K3_retry{g}_l")
        a("s_add_u32 s75, s75, 1")
        a("s_sleep 4")
        for hh in range(4):
            for f in range(2):
                r = AR + 8 * ((4 * g + hh) % D) + 4 * f
                a(f"buffer_load_dwordx4 {vr(r)}, v12, s[28:31], s44 offen offset:{1024*hh+512*f} sc1")
        a("s_waitcnt vmcnt(0)")
        for op in check_ops(g):
            a(op)
        a("v_cmp_eq_u32 vcc, 0, v81")
        a("s_sub_u32 s46, s46, 1")
        a(f"s_cbranch_scc1 K3_retry{g}_ret")
        a("s_cmp_lg_u64 vcc, 0")
        a(f"s_cbranch_scc1 K3_retry{g}_l")
        a(f"s_branch K3_retry{g}_ret")

    lg.q = []
    BS = [48, 64]

    def breads(h):
        out = []
        st = h & 1
        if h < 16:
            vb, off = 4, h * 4096
        elif h < 28:
            vb, off = 8, (h - 16) * 4096
        else:
            vb, off = 13, (h - 28) * CV_REG
        for f in range(2):
            for nb in range(2):
                for hf in range(2):
                    out.append(((h, f, nb), f"ds_read_b64_tr_b16 {vr(BS[st]+8*f+4*nb+2*hf,2)}, v{vb} offset:{off + f*1024 + hf*2048 + nb*256}"))
        return out

    for tag, txt in breads(0):
        a(txt); lg.issue(tag)
    vm.wait_for([("A", 3)])
    for op in check_ops(0):
        a(op)
    check_branch(0)
    chk = []
    if ALN:
        a(".p2align 3")
        if ALN == 3:
            a("s_nop 0")
    for h in range(32):
        nxt = []
        if h == GS and not CPOST:
            lds_signal(a, 9, S_G2, 11)
            lg.issue("sig")
        if h + 1 < 32:
            if h + 1 == 28:
                lg.drain()
                lds_wait(a, "K3_wwt", 10, S_WOT, 4, 80, 42)
            nxt = breads(h + 1)
        if h % 4 == 2 and h + 2 < 32:
            vm.wait_for([("A", h + 5)])
            chk = check_ops(h // 4 + 1) if "k" not in XP else []
        for f in range(2):
            for nb in range(2):
                lg.wait_for([(h, f, nb)])
                d = 16 + 16 * nb
                cs = "0" if (h == 0 and f == 0) else vr(d, 16)
                a(f"v_mfma_f32_32x32x16_bf16 {vr(d,16)}, {vr(BS[h&1]+8*f+4*nb)}, {vr(AR+8*(h%D)+4*f)}, {cs}")
                for _ in range(2):
                    if nxt:
                        tag, txt = nxt.pop(0)
                        a(txt); lg.issue(tag)
                    if chk:
                        a(chk.pop(0))
        if h % 4 == 3 and h + 1 < 32:
            assert not chk
            check_branch(h // 4 + 1)
        for _ in range(2):
            if anext[0] < 32 and anext[0] <= h + D and "n" not in XP:
                aload(anext[0]); anext[0] += 1
    stamp(a, 8)
    cstamp(a, 13)
    a("v_and_b32 v4, 31, v2")
    a("v_lshlrev_b32 v4, 12, v4")
    a("v_lshl_add_u32 v4, v5, 4, v4")
    a("s_lshr_b32 s36, s10, 2")
    a("s_lshl_b32 s36, s36, 3")
    a("s_lshr_b32 s37, s11, 2")
    a("s_add_u32 s36, s36, s37")
    a("s_lshl_b32 s38, s41, 16")
    a("s_lshl_b32 s39, s36, 7")
    a("s_add_u32 s38, s38, s39")
    a("s_add_u32 s38, s38, 2048")
    if TRO:
        a("v_and_b32 v6, 31, v2")
        a("v_and_b32 v7, 7, v2")
        a("v_xor_b32 v7, v7, v5")
        a("v_lshlrev_b32 v6, 7, v6")
        a(f"s_add_u32 s39, s7, {CV_UB}")
        a("v_add_u32 v6, s39, v6")
        a("v_lshrrev_b32 v8, 3, v2")
        a("v_and_b32 v13, 7, v2")
        a("v_xor_b32 v96, v13, v8")
        a("v_lshlrev_b32 v96, 4, v96")
        a("v_lshl_add_u32 v96, v8, 7, v96")
        a("v_add_u32 v96, s39, v96")
        a("v_lshlrev_b32 v4, 12, v8")
        a("v_lshl_add_u32 v4, v13, 4, v4")
    for nb in range(2):
        for kp in range(2):
            P = 80 + 8 * nb + 4 * kp
            t0 = 16 + 16 * nb + 8 * kp
            for i in range(4):
                a(f"v_cvt_pk_bf16_f32 v{P+i}, v{t0+2*i}, v{t0+2*i+1}")
            a(f"v_permlane32_swap_b32 v{P}, v{P+2}")
            a(f"v_permlane32_swap_b32 v{P+1}, v{P+3}")
            if TRO:
                a(f"v_xor_b32 v97, {4*nb+2*kp}, v7")
                a("v_lshl_add_u32 v97, v97, 4, v6")
                a(f"ds_write_b128 v97, {vr(P)}")
            else:
                a(f"buffer_store_dwordx4 {vr(P)}, v4, s[32:35], s38 offen offset:{64*nb+32*kp}{NTS}{OS2}")
    if TRO:
        for i in range(4):
            a(f"ds_read_b128 {vr(100+4*i)}, v96 offset:{1024*i}")
        for i in range(4):
            a(f"s_waitcnt lgkmcnt({3-i})")
            a(f"buffer_store_dwordx4 {vr(100+4*i)}, v4, s[32:35], s38 offen{NTS}{OS2}")
            a("s_add_u32 s38, s38, 32768")
    stamp_flush(a, 9)
    a("s_endpgm")
    for g in range(8):
        retry_block(g)
    for slot in range(4):
        a.label(f"K3_event{slot}")
        a("s_add_u32 s54, s54, 1")
        a("s_cmp_lg_u32 s54, 1")
        a(f"s_cbranch_scc1 K3_ev2_{slot}")
        a(f"buffer_load_dword v195, v192, s[40:43], s44 offen{NTT}")
        if L2PF:
            a(f"buffer_load_dword v195, v193, s[48:51], s45 offen{NTT}")
            a("s_mov_b32 s55, 1000")
        else:
            a("s_mov_b32 s55, s52")
        a(f"s_branch K3_noev{slot}")
        a.label(f"K3_ev2_{slot}")
        if PREC or FILLC:
            a("s_waitcnt vmcnt(0)")
        a(f"buffer_load_dword v195, v193, s[48:51], s45 offen{NTT}")
        a("s_mov_b32 s55, 1000")
        a(f"s_branch K3_noev{slot}")
        a.label(f"K3_evB{slot}")
        a(f"buffer_load_dword v195, v194, s[64:67], s68 offen{NTT}")
        a(f"buffer_load_dword v195, v194, s[64:67], s69 offen{NTT}")
        a(f"s_branch K3_noevB{slot}")
        a.label(f"K3_evC{slot}")
        a("s_add_u32 s53, s53, 1")
        a("s_cmp_lg_u32 s53, 1")
        a(f"s_cbranch_scc1 K3_ev4_{slot}")
        a("buffer_load_dword v196, v199, s[56:59], 0 offen sc1")
        a(f"s_mov_b32 s71, {NLEAD-1}")
        a(f"s_branch K3_noevC{slot}")
        a.label(f"K3_ev4_{slot}")
        a("s_cmp_lg_u32 s53, 2")
        a(f"s_cbranch_scc1 K3_ev6_{slot}")
        a("s_waitcnt vmcnt(0)")
        a("v_readfirstlane_b32 s46, v196")
        a("s_mov_b64 exec, 1")
        a("s_cmp_lg_u32 s46, 0")
        a(f"s_cbranch_scc1 K3_ev5_{slot}")
        a("v_mov_b32 v196, v198")
        a("v_mov_b32 v197, 0")
        a("buffer_atomic_cmpswap v[196:197], v199, s[56:59], 0 offen sc0 sc1")
        a("s_waitcnt vmcnt(0)")
        a("v_cmp_eq_u32 vcc, 0, v196")
        a("v_cndmask_b32 v196, v196, v198, vcc")
        a.label(f"K3_ev5_{slot}")
        a("buffer_store_dword v196, v199, s[60:63], s47 offen sc1")
        a("s_mov_b64 exec, -1")
        a(f"s_mov_b32 s71, {FLAGN-F1N-1 if not POSTPRE else 1000}")
        a(f"s_branch K3_noevC{slot}")
        a.label(f"K3_ev6_{slot}")
        a("s_mov_b64 exec, 1")
        a("buffer_store_dword v196, v199, s[60:63], s47 offen offset:32 sc1")
        a("s_mov_b64 exec, -1")
        a("s_mov_b32 s71, 1000")
        a(f"s_branch K3_noevC{slot}")

    lbeg = len(a.ins)
    a.label("K3_L")
    a("v_lshrrev_b32 v4, 3, v2")
    a("v_and_b32 v5, 7, v2")
    for jl in range(4):
        a(f"v_add_u32 v6, {4*(jl&1)}, v14")
        a("v_xor_b32 v6, v6, v5")
        a("v_lshlrev_b32 v6, 4, v6")
        a("v_lshl_add_u32 v6, v4, 11, v6")
        a(f"v_add_u32 v{240+jl}, {jl*(16384-1024)}, v6")
    a("v_lshrrev_b32 v6, 5, v2")
    a("v_bfe_u32 v7, v2, 2, 2")
    a("v_lshl_add_u32 v6, v6, 2, v7")
    a("v_mul_u32_u24 v6, 6144, v6")
    a("v_bfe_u32 v7, v2, 4, 1")
    a("v_lshl_add_u32 v6, v7, 6, v6")
    a("v_and_b32 v7, 3, v2")
    a("v_lshl_add_u32 v6, v7, 4, v6")
    a("v_xor_b32 v7, 32, v6")
    a("s_and_b32 s40, s13, 1")
    a("s_lshl_b32 s40, s40, 7")
    a(f"s_xor_b32 s41, s40, {128 if QX else 0}")
    binst = []
    for seg in range(3):
        for gg in range(2):
            ldsoff = seg * 2048 + gg * 1024
            m0sel, ioff = ldsoff // 4096, ldsoff % 4096
            reg = 244 + seg * 2 + gg
            a(f"v_add_u32 v{reg}, {8*gg*6144 + seg*2048 - ioff}, v{6+gg}")
            a(f"v_add_u32 v{reg}, s{41 if seg == 0 else 40}, v{reg}")
            binst.append((reg, m0sel, ioff))
    a("s_lshl_b32 s38, s12, 7")
    a("s_lshl_b32 s40, s4, 5")
    a("s_add_u32 s38, s38, s40")
    a("s_lshl_b32 s38, s38, 11")
    a("s_mul_i32 s39, s4, 98304")
    a("s_lshr_b32 s40, s13, 1")
    a("s_lshl_b32 s40, s40, 8")
    a("s_add_u32 s39, s39, s40")
    a("s_lshl_b32 s41, s4, 12")
    a("s_mul_i32 s42, s4, 6144")
    a("s_add_u32 s42, s42, 16384")
    if EARLYB:
        a("s_waitcnt lgkmcnt(0)")
        stamp(a, 0)
    srd(a, 16, P_X, 4 * MB)
    srd(a, 20, P_W, 6 * MB)
    vm = Cnt(a, "vmcnt", 63)

    def issue(kt):
        sb = (kt % NS) * STAGE
        a(f"s_add_u32 m0, s41, {sb}")
        for jl in range(4):
            a(f"buffer_load_dwordx4 v{240+jl}, s[16:19], s38 offen offset:{jl*1024}{NTG} lds")
            vm.issue(("st", kt))
        cur = -1
        for reg, m0sel, ioff in binst:
            if m0sel != cur:
                a(f"s_add_u32 m0, s42, {sb + 4096*m0sel}")
                cur = m0sel
            a(f"buffer_load_dwordx4 v{reg}, s[20:23], s39 offen offset:{ioff}{NTG} lds")
            vm.issue(("st", kt))
        a("s_add_u32 s38, s38, 128")
        a(f"s_add_u32 s39, s39, {64*6144}")

    if env("ST0", 0):
        stamp(a, 10)
    for kt in range(PRO):
        issue(kt)
        if env("ST0", 0):
            stamp(a, 11 + kt)
    if LFRONT:
        a("s_branch K3_L2")
        blk = a.ins[lbeg:]
        del a.ins[lbeg:]
        a.ins[mark:mark] = blk
        a.label("K3_L2")
    srd(a, 24, P_K, 4 * MB)
    srd(a, 28, P_V, 4 * MB)
    srd(a, 32, P_SHK, 8192)
    srd_off(a, 44, P_WS, WS_UT, 4 * MB)
    srd_off(a, 48, P_WS, WS_OF, 4 * MB)
    srd_off(a, 52, P_WS, WS_KVP, 2 * MB)
    srd_off(a, 56, P_WS, WS_ZP, 64 * 1024)
    a("s_lshl_b32 s60, s2, 2")
    a("s_add_u32 s60, s60, s4")
    if UTF:
        a("s_and_b32 s61, s60, 31")
        a("s_lshr_b32 s60, s60, 5")
        a("s_lshl_b32 s62, s60, 17")
        a("s_lshl_b32 s63, s61, 6")
        a("s_add_u32 s62, s62, s63")
        a("v_lshrrev_b32 v18, 3, v2")
        a("v_and_b32 v20, 7, v2")
        a("v_lshlrev_b32 v21, 14, v18")
        a("v_lshl_add_u32 v21, v20, 3, v21")
        a("v_add_u32 v21, s62, v21")
        a("s_lshl_b32 s63, s61, 8")
        a("v_lshlrev_b32 v22, 5, v20")
        a("s_lshl_b32 s62, s61, 17")
        a("s_lshl_b32 s64, s60, 7")
        a("s_add_u32 s62, s62, s64")
        a("v_lshlrev_b32 v19, 14, v20")
        a("v_lshl_add_u32 v19, v18, 4, v19")
    else:
        a("s_and_b32 s61, s60, 15")
        a("s_lshr_b32 s60, s60, 4")
        a("s_lshl_b32 s62, s60, 16")
        a("s_lshl_b32 s63, s61, 7")
        a("s_add_u32 s62, s62, s63")
        a("v_lshlrev_b32 v21, 14, v14")
        a("v_lshl_add_u32 v21, v15, 3, v21")
        a("v_add_u32 v21, s62, v21")
        a("s_lshl_b32 s63, s61, 9")
        a("v_lshlrev_b32 v22, 5, v15")
        a("s_lshl_b32 s62, s61, 18")
        a("s_lshl_b32 s64, s60, 6")
        a("s_add_u32 s62, s62, s64")
        a("v_lshlrev_b32 v19, 14, v15")
        a("v_lshl_add_u32 v19, v14, 4, v19")
    a("s_lshl_b32 s64, s12, 3")
    a("s_lshl_b32 s65, s4, 1")
    a("s_add_u32 s64, s64, s65")
    a("s_lshl_b32 s64, s64, 15")
    a("s_lshr_b32 s65, s15, 1")
    a("s_lshl_b32 s65, s65, 11")
    a("s_add_u32 s64, s64, s65")
    a("s_add_u32 s65, s64, 32768")
    a("s_lshl_b32 s66, s5, 4")
    a("s_add_u32 s66, s66, s12")
    a("s_lshl_b32 s67, s66, 7")
    a("s_lshl_b32 s66, s66, 12")
    a(f"s_lshl_b32 s68, s36, {10 if BP else 11}")
    a("s_add_u32 s66, s66, s68")
    for i in range(4):
        a(f"v_mov_b32 v{160+i}, 0")
    a("v_and_b32 v18, 7, v2")
    a("v_lshlrev_b32 v18, 4, v18")
    fills = [
        f"buffer_store_dwordx4 v[160:163], v3, s[48:51], s64 offen sc1{NTF}",
        f"buffer_store_dwordx4 v[160:163], v3, s[48:51], s64 offen offset:1024 sc1{NTF}",
        f"buffer_store_dwordx4 v[160:163], v3, s[48:51], s65 offen sc1{NTF}",
        f"buffer_store_dwordx4 v[160:163], v3, s[48:51], s65 offen offset:1024 sc1{NTF}",
        f"buffer_store_dwordx4 v[160:163], v3, s[52:55], s66 offen sc1{NTF}",
        f"buffer_store_dwordx4 v[160:163], v3, s[52:55], s66 offen offset:1024 sc1{NTF}",
        f"buffer_store_dwordx4 v[160:163], v18, s[56:59], s67 offen sc1{NTF}",
    ]
    if BP:
        del fills[5]
    W, KF, VF, KS = 72, 88, 110, 126
    loads = []
    for i in range(2):
        loads.append([f"buffer_load_dwordx4 {vr(24+4*i)}, v22, s[32:35], s63 offen offset:{16*i}"])
    for i in range(11):
        loads.append([f"v_add_u32 v23, {((i-3)*2048) & 0xffffffff}, v21", f"buffer_load_dwordx2 {vr(32+2*i,2)}, v23, s[24:27], 0 offen{NTK}"])
    for i in range(8):
        loads.append([f"v_add_u32 v23, {i*2048}, v21", f"buffer_load_dwordx2 {vr(54+2*i,2)}, v23, s[28:31], 0 offen{NTK}"])
    comp = []
    for ci in range(4):
        comp += [f"v_lshlrev_b32 v{W+ci}, 16, v{24+2*ci}", f"v_and_b32 v{W+4+ci}, 0xffff0000, v{24+2*ci}",
                 f"v_lshlrev_b32 v{W+8+ci}, 16, v{25+2*ci}", f"v_and_b32 v{W+12+ci}, 0xffff0000, v{25+2*ci}"]
    for cp in range(2):
        for i in range(11):
            comp += [f"v_lshlrev_b32 v{KF+2*i}, 16, v{32+2*i+cp}", f"v_and_b32 v{KF+2*i+1}, 0xffff0000, v{32+2*i+cp}"]
        for i in range(8):
            comp += [f"v_lshlrev_b32 v{VF+2*i}, 16, v{54+2*i+cp}", f"v_and_b32 v{VF+2*i+1}, 0xffff0000, v{54+2*i+cp}"]
        for i in range(16):
            comp.append(f"v_mul_f32 v{KS+i}, v{KF+i}, v{W+12+2*cp+(i&1)}")
        for j in (2, 1, 0):
            for i in range(16):
                comp.append(f"v_fmac_f32 v{KS+i}, v{KF+2*(3-j)+i}, v{W+4*j+2*cp+(i&1)}")
        for i in range(16):
            comp.append(f"v_mul_f32 v{KS+i}, v{KS+i}, v{VF+i}")
        O = 144 + 8 * cp
        for e in range(2):
            for i in range(4):
                comp.append(f"v_cvt_pk_bf16_f32 v{O+4*e+i}, v{KS+4*i+e}, v{KS+4*i+2+e}")
        for i in range(8):
            comp.append(f"v_and_b32 v{O+i}, -2, v{O+i}")
        for e in range(2):
            comp.append(("st", f"buffer_store_dwordx4 {vr(O+4*e)}, v19, s[44:47], s62 offen sc1"))
            comp.append("s_add_u32 s62, s62, 4096")
    if WIDE:
        a("s_lshl_b32 s43, s60, 16")
        a("s_lshl_b32 s68, s61, 7")
        a("s_add_u32 s43, s43, s68")
        a("v_and_b32 v20, 7, v2")
        a("v_lshrrev_b32 v17, 3, v2")
        a("v_lshlrev_b32 v21, 13, v17")
        a("v_lshl_add_u32 v21, v20, 4, v21")
        a("v_add_u32 v21, s43, v21")
        a("v_lshlrev_b32 v22, 6, v20")
        a("v_lshlrev_b32 v19, 15, v20")
        a("v_and_b32 v23, 1, v17")
        a("v_lshl_add_u32 v19, v23, 14, v19")
        a("v_lshl_add_u32 v19, v14, 4, v19")
        KR, VR, SR, WW, KF2, VF2, KS2, OO, RR = 24, 52, 68, 84, 92, 106, 114, 124, 140
        loads = []
        for i in range(7):
            loads.append([f"v_add_u32 v23, {((i-3)*2048) & 0xffffffff}, v21", f"buffer_load_dwordx4 {vr(KR+4*i)}, v23, s[24:27], 0 offen{NTK}"])
        for i in range(4):
            loads.append([f"v_add_u32 v23, {i*2048}, v21", f"buffer_load_dwordx4 {vr(VR+4*i)}, v23, s[28:31], 0 offen{NTK}"])
        for i in range(4):
            loads.append([f"buffer_load_dwordx4 {vr(SR+4*i)}, v22, s[32:35], s63 offen offset:{16*i}"])
        comp = []
        for cp in range(4):
            for e in range(2):
                c = 2 * cp + e
                comp += [f"v_lshlrev_b32 v{WW+e}, 16, v{SR+2*c}", f"v_and_b32 v{WW+2+e}, 0xffff0000, v{SR+2*c}",
                         f"v_lshlrev_b32 v{WW+4+e}, 16, v{SR+2*c+1}", f"v_and_b32 v{WW+6+e}, 0xffff0000, v{SR+2*c+1}"]
            for i in range(7):
                comp += [f"v_lshlrev_b32 v{KF2+2*i}, 16, v{KR+4*i+cp}", f"v_and_b32 v{KF2+2*i+1}, 0xffff0000, v{KR+4*i+cp}"]
            for i in range(4):
                comp += [f"v_lshlrev_b32 v{VF2+2*i}, 16, v{VR+4*i+cp}", f"v_and_b32 v{VF2+2*i+1}, 0xffff0000, v{VR+4*i+cp}"]
            for i in range(8):
                comp.append(f"v_mul_f32 v{KS2+i}, v{KF2+i}, v{WW+6+(i&1)}")
            for j in (2, 1, 0):
                for i in range(8):
                    comp.append(f"v_fmac_f32 v{KS2+i}, v{KF2+2*(3-j)+i}, v{WW+2*j+(i&1)}")
            for i in range(8):
                comp.append(f"v_mul_f32 v{KS2+i}, v{KS2+i}, v{VF2+i}")
            for e in range(2):
                for hh in range(2):
                    d = OO + 2 * (2 * cp + e) + hh
                    comp.append(f"v_cvt_pk_bf16_f32 v{d}, v{KS2+4*hh+e}, v{KS2+4*hh+2+e}")
                    comp.append(f"v_and_b32 v{d}, -2, v{d}")
        for j in range(4):
            R = RR + 4 * j
            for hh in range(2):
                comp.append(f"v_mov_b32 v{R+hh}, v{OO+2*j+hh}")
                comp.append(f"v_mov_b32 v{R+2+hh}, v{OO+2*(j+4)+hh}")
            for hh in range(2):
                comp.append(f"v_mov_b32_dpp v{R+hh}, v{OO+2*(j+4)+hh} row_ror:8 row_mask:0xf bank_mask:0xc")
                comp.append(f"v_mov_b32_dpp v{R+2+hh}, v{OO+2*j+hh} row_ror:8 row_mask:0xf bank_mask:0x3")
            comp.append(("st", f"buffer_store_dwordx4 {vr(R)}, v19, s[44:47], s62 offen sc1"))
            comp.append("s_add_u32 s62, s62, 4096")
    PCE = env("PCE", FLAGN - 3)
    PCS = PL0 + NPL + env("PGAP", 0)
    NPC = PCE - PCS
    per = -(-len(comp) // NPC)
    a("v_lshrrev_b32 v6, 5, v2")
    a("v_bfe_u32 v7, v2, 2, 2")
    a("v_lshl_add_u32 v7, v6, 2, v7")
    a("v_lshlrev_b32 v7, 11, v7")
    a("v_bfe_u32 v8, v2, 4, 1")
    a("v_lshl_add_u32 v7, v8, 6, v7")
    a("v_and_b32 v8, 3, v2")
    a("v_lshlrev_b32 v6, 1, v6")
    a("v_xor_b32 v8, v8, v6")
    a("v_lshl_add_u32 v7, v8, 4, v7")
    for i in range(4):
        a(f"v_add_u32 v{232+i}, {i*(16384-1024)}, v7")
    a("s_lshl_b32 s69, s4, 16")
    a("s_lshr_b32 s70, s10, 2")
    a("s_lshl_b32 s70, s70, 3")
    a("s_lshr_b32 s71, s11, 2")
    a("s_add_u32 s70, s70, s71")
    a("s_lshl_b32 s70, s70, 7")
    a("s_add_u32 s69, s69, s70")
    a("s_lshl_b32 s70, s4, 12")
    a(f"s_add_u32 s70, s70, {WO_BASE}")
    a("s_lshl_b32 s71, s6, 12")
    a(f"v_mov_b32 v10, {SYNC}")
    a("v_mov_b32 v11, 1")
    a("s_lshl_b32 s43, s4, 2")
    a("v_add_u32 v9, s43, v10")

    def wo_issue(k):
        if k < 7:
            a(f"s_add_u32 m0, s70, {k*16384}")
        else:
            a("s_mov_b32 m0, s7")
        for i in range(4):
            a(f"buffer_load_dwordx4 v{232+i}, s[20:23], s69 offen offset:{i*1024}{NTG} lds")
            vm.issue("wo")
        a(f"s_add_u32 s69, s69, {128*2048}")

    def post_setup():
        a("s_lshl_b32 s16, s10, 1")
        a("s_lshr_b32 s17, s11, 4")
        a("s_add_u32 s16, s16, s17")
        a("s_and_b32 s17, s11, 15")
        a("s_lshl_b32 s17, s17, 2")
        a("s_add_u32 s17, s17, s4")
        a("s_lshr_b32 s18, s17, 4")
        a("s_and_b32 s17, s17, 15")
        a("s_lshl_b32 s19, s18, 9")
        a("s_lshl_b32 s64, s17, 2")
        a("s_add_u32 s19, s19, s64")
        a("s_lshl_b32 s64, s19, 11")
        a("s_lshl_b32 s65, s16, 7")
        a("s_add_u32 s64, s64, s65")
        a("s_lshl_b32 s72, s19, 12")
        a("s_add_u32 s72, s72, s65")
        a("s_lshl_b32 s73, s16, 18")
        a("s_lshl_b32 s65, s18, 10")
        a("s_add_u32 s73, s73, s65")
        a("s_lshl_b32 s65, s17, 6")
        a("s_add_u32 s73, s73, s65")
        a("s_add_u32 s65, s73, 4096")
        a("s_add_u32 s66, s73, 8192")
        a("s_add_u32 s67, s73, 12288")
        a("v_lshlrev_b32 v224, 12, v14")
        a("v_lshl_add_u32 v224, v15, 3, v224")
        a("v_lshlrev_b32 v225, 14, v15")
        a("v_lshl_add_u32 v225, v14, 4, v225")

    def q_loads():
        srd(a, 16, P_Q, 4 * MB)
        a("v_lshlrev_b32 v4, 11, v14")
        a("v_lshl_add_u32 v4, v15, 3, v4")
        for jj in range(8):
            a(f"buffer_load_dwordx2 {vr(QR+2*jj,2)}, v4, s[16:19], s64 offen{NTO}")
            vm.issue("q")
            a(f"s_add_u32 s64, s64, {64*2048}")

    QR = 208

    def h_issue():
        a(f"s_add_u32 m0, s7, {CV_HB}")
        for c in range(4):
            a(f"buffer_load_dwordx4 v3, s[16:19], s71 offen offset:{1024*c}{NTO} lds")
            vm.issue("h")
        a("s_lshl_b32 s43, s6, 1")
        a("v_mov_b32 v4, 0")
        a("buffer_load_ushort v164, v4, s[20:23], s43 offen")
        vm.issue("h")
        srd(a, 20, P_WO, 2 * MB)

    if env("LPR", 0):
        a(f"s_setprio {env('LPR', 0)}")
    for kt in range(16):
        tags = [("st", kt)]
        if kt == F1N + 1:
            tags += ["fill"]
        if kt == FLAGN + 1:
            tags += ["ust"]
        vm.wait_for(tags)
        if kt == 14:
            a("s_waitcnt lgkmcnt(0)")
        a("s_barrier")
        if kt in (2, 5, 8, 11, 14) and not env("ST0", 0):
            stamp(a, 10 + (2, 5, 8, 11, 14).index(kt))
        if kt == 0:
            for k2 in range(PRO, NS - 1):
                issue(k2)
        if kt + NS - 1 < 16:
            issue(kt + NS - 1)
        for op in spf[SPF_C + kt * SPF_L: SPF_C + (kt + 1) * SPF_L]:
            a(op)
        if FL0 <= kt < FL0 + len(fills) and "f" not in XP and not FILLC:
            a(fills[kt - FL0]); vm.issue("fill")
        if POSTPRE and kt in (14, 15):
            for grp in (loads[:13] if kt == 14 else loads[13:]):
                for op in grp:
                    a(op)
                vm.issue("pre")
        if PL0 <= kt < PL0 + NPL and "l" not in XP and not POSTPRE and not PREC:
            q = -(-len(loads) // NPL)
            for grp in loads[(kt - PL0) * q: (kt - PL0 + 1) * q]:
                for op in grp:
                    a(op)
                vm.issue("pre")
        if kt == 13:
            post_setup()
            srd(a, 16, P_H, 4 * MB)
            srd(a, 20, P_D, 2048)
            a("v_mov_b32 v4, 0")
            a("v_lshlrev_b32 v5, 2, v2")
            a(f"v_add_u32 v6, {SYNC}, v5")
            a("ds_write_b32 v6, v4")
            a("v_add_u32 v6, s7, v5")
            a(f"ds_write_b32 v6, v4 offset:{CV_UB-256}")
            if CV32:
                a(f"ds_write_b32 v6, v4 offset:{CV_UB-512}")
            a(f"v_and_b32 v6, {15 if CV32 else 7}, v2")
            a("v_lshlrev_b32 v6, 2, v6")
            a("v_add_u32 v6, s7, v6")
            a("ds_write_b32 v6, v4")
            h_issue()
            if QEARLY:
                q_loads()
        if PCS <= kt < PCE and not POSTPRE and not PREC:
            if kt == PCS:
                vm.wait_for(["pre"])
            for op in comp[:per]:
                if "c" in XP and not isinstance(op, tuple):
                    continue
                if isinstance(op, tuple):
                    if "u" in XP:
                        continue
                    a(op[1]); vm.issue("ust")
                else:
                    a(op)
            comp = comp[per:]
        if kt == 14 and EARLYWO >= 2:
            wo_issue(0); wo_issue(1)
        if kt == 15 and EARLYWO >= 4:
            wo_issue(2); wo_issue(3)
    assert POSTPRE or PREC or not comp
    a("s_barrier")
    stamp(a, 1)
    if POSTPRE:
        vm.wait_for(["pre"])
        for ci in range(4):
            a(f"v_lshlrev_b32 v{W+ci}, 16, v{24+2*ci}")
            a(f"v_and_b32 v{W+4+ci}, 0xffff0000, v{24+2*ci}")
            a(f"v_lshlrev_b32 v{W+8+ci}, 16, v{25+2*ci}")
            a(f"v_and_b32 v{W+12+ci}, 0xffff0000, v{25+2*ci}")
        for cp in range(2):
            for i in range(11):
                a(f"v_lshlrev_b32 v{KF+2*i}, 16, v{32+2*i+cp}")
                a(f"v_and_b32 v{KF+2*i+1}, 0xffff0000, v{32+2*i+cp}")
            for i in range(8):
                a(f"v_lshlrev_b32 v{VF+2*i}, 16, v{54+2*i+cp}")
                a(f"v_and_b32 v{VF+2*i+1}, 0xffff0000, v{54+2*i+cp}")
            for i in range(8):
                a(f"v_pk_mul_f32 {vr(KS+2*i,2)}, {vr(KF+2*i,2)}, {vr(W+12+2*cp,2)}")
            for j in (2, 1, 0):
                for i in range(8):
                    a(f"v_pk_fma_f32 {vr(KS+2*i,2)}, {vr(KF+2*(i+3-j),2)}, {vr(W+4*j+2*cp,2)}, {vr(KS+2*i,2)}")
            for i in range(8):
                a(f"v_pk_mul_f32 {vr(KS+2*i,2)}, {vr(KS+2*i,2)}, {vr(VF+2*i,2)}")
            O = 144 + 8 * cp
            for e in range(2):
                for i in range(4):
                    a(f"v_cvt_pk_bf16_f32 v{O+4*e+i}, v{KS+4*i+e}, v{KS+4*i+2+e}")
            for i in range(8):
                a(f"v_and_b32 v{O+i}, -2, v{O+i}")
            for e in range(2):
                a(f"buffer_store_dwordx4 {vr(O+4*e)}, v19, s[44:47], s62 offen sc1")
                a("s_add_u32 s62, s62, 4096")
    srd(a, 24, P_DBG, 256)
    srd(a, 32, P_OUT, 8 * MB)
    a("s_mov_b32 s40, 0")
    a("s_mov_b32 s42, 0")
    a("v_lshrrev_b32 v5, 1, v2")
    a("v_lshlrev_b32 v5, 7, v5")
    a("v_and_b32 v4, 1, v2")
    a("v_lshl_add_u32 v5, v4, 4, v5")
    a("v_mov_b32 v4, 0")
    a("buffer_load_dword v226, v4, s[24:27], 0 offen sc1")
    srd_off(a, 24, P_WS, WS_FLAG, 4096)
    a("v_lshlrev_b32 v6, 7, v15")
    a("v_lshl_add_u32 v6, v14, 4, v6")
    a("s_lshl_b32 s60, s15, 11")
    a("s_lshl_b32 s61, s15, 16")
    a(f"s_lshl_b32 s62, s36, {10 if BP else 11}")
    a("s_add_u32 s61, s61, s62")

    def flagcmp(r):
        for i in range(4):
            a(f"v_xor_b32 v{r+i}, v{r+i}, v226")
        a(f"v_or3_b32 v{r}, v{r}, v{r+1}, v{r+2}")
        a(f"v_or_b32 v{r}, v{r}, v{r+3}")
        a(f"v_cmp_ne_u32 vcc, 0, v{r}")

    def u_block(ret):
        a(f"s_add_u32 m0, s7, {CV_UB}")
        for c in range(4):
            a(f"buffer_load_dwordx4 v3, s[44:47], s71 offen offset:{1024*c} sc1 lds")
        a("s_mov_b32 s42, 1")
        a("s_waitcnt vmcnt(0) lgkmcnt(0)")
        lds_signal(a, 9, S_HU, 11)
        stamp(a, 3)
    a(f"s_mov_b32 s43, {RETRY_MAX}")
    a.label("K3_fp")
    a(f"buffer_load_dwordx4 {vr(24)}, v5, s[24:27], 0 offen sc1")
    a(f"buffer_load_dwordx4 {vr(28)}, v5, s[24:27], 0 offen offset:32 sc1")
    a("s_waitcnt vmcnt(0)")
    vm.q = []
    flagcmp(24)
    a("s_sub_u32 s43, s43, 1")
    a("s_cbranch_scc1 K3_fp_ok")
    a("s_cmp_eq_u64 vcc, 0")
    a("s_cbranch_scc1 K3_fp_ok")
    a("s_add_u32 s75, s75, 1")
    a("s_sleep 8")
    a("s_branch K3_fp")
    a.label("K3_fp_ok")
    if POSTPRE:
        a("s_mov_b64 exec, 1")
        a(f"ds_add_rtn_u32 v7, v10, v11 offset:{S_GO}")
        a("s_waitcnt lgkmcnt(0)")
        a("v_readfirstlane_b32 s43, v7")
        a("s_lshl_b32 s62, s11, 7")
        a("s_lshl_b32 s63, s10, 2")
        a("s_add_u32 s62, s62, s63")
        a("s_cmp_lg_u32 s43, 3")
        a("s_cbranch_scc1 K3_nof2")
        a("buffer_store_dword v226, v4, s[24:27], s62 offen offset:32 sc1")
        a.label("K3_nof2")
        a("s_mov_b64 exec, -1")
    stamp(a, 2)
    a("v_mov_b32 v4, s7")
    a(f"ds_read_u16 v7, v4 offset:{CV_HB}")
    a("v_lshlrev_b32 v164, 16, v164")
    a("s_waitcnt lgkmcnt(0)")
    a("v_lshlrev_b32 v7, 16, v7")
    a("v_add_f32 v7, v7, v164")
    a("v_cvt_pk_bf16_f32 v7, v7, v7")
    a(f"ds_write_b16 v4, v7 offset:{CV_HB}")
    flagcmp(28)
    a("s_cmp_lg_u64 vcc, 0")
    a("s_cbranch_scc1 K3_nou0")
    u_block(0)
    a.label("K3_nou0")
    if WAITKV:
        lds_wait(a, "K3_wkvs", 10, S_KVS, 2, 16, 62, sleep=1)
    PQR = 192

    def bulkA():
        for k in range(EARLYWO, 6):
            wo_issue(k)
        a("v_and_b32 v7, 31, v2")
        a("v_lshlrev_b32 v7, 11, v7")
        a(f"s_add_u32 s62, s69, {128*2048}")
        a("buffer_load_dword v165, v7, s[20:23], s62 offen")
        if CPOST:
            srd(a, 16, P_Q, 4 * MB)
            a("v_bfe_u32 v7, v2, 2, 3")
            a("v_lshlrev_b32 v7, 17, v7")
            a("v_and_b32 v8, 3, v2")
            a("v_lshl_add_u32 v7, v8, 11, v7")
            a("buffer_load_dword v165, v7, s[16:19], s64 offen")

    def pq_pick():
        a("s_lshl_b32 s43, s4, 12")
        a(f"s_add_u32 s43, s43, {PQ_BASE}")
        a("v_add_u32 v8, s43, v3")
        lds_wait(a, "K3_wpq", 9, S_PQ, 1, 16, 62, sleep=1)
        for mt in range(4):
            a(f"ds_read_b128 {vr(PQR+4*mt)}, v8 offset:{1024*mt}")
        a("s_waitcnt lgkmcnt(0)")

    if not ZFIRST:
        bulkA()
        pq_pick()
    if PG:
        vm.q = []
        a("s_setprio 2")
        a("s_mov_b32 s62, s61")
        for p in range(16):
            for dt in range(2):
                a(f"buffer_load_dwordx4 {vr(64+8*p+4*dt)}, v3, s[52:55], s62 offen offset:{1024*dt}{GSC}")
                vm.issue(("kv", p))
            a("s_add_u32 s62, s62, 4096")
    if not ZFIRST:
        wo_issue(6)
    if PG:
        if not QEARLY and not CPOST:
            q_loads()
        for i in range(8):
            a(f"v_mov_b32 v{56+i}, 0")
        a("s_mov_b32 s63, 0")
        for p in range(16):
            vm.wait_for([("kv", p)])
            r = 64 + 8 * p
            and_reduce(a, 16, range(r, r + 8))
            a("v_cmp_eq_u32 vcc, 0, v16")
            a(f"s_bitset1_b32 s63, {p}")
            a("s_cmp_lg_u64 vcc, 0")
            a(f"s_cbranch_scc1 K3_pg{p}")
            a(f"s_bitset0_b32 s63, {p}")
            for i in range(8):
                a(f"v_add_f32 v{56+i}, v{56+i}, v{r+i}")
            a.label(f"K3_pg{p}")
    a(f"s_mov_b32 s43, {RETRY_MAX}")
    a.label("K3_zp")
    for dt in range(2):
        a(f"buffer_load_dwordx4 {vr(32+4*dt)}, v6, s[56:59], s60 offen offset:{64*dt} sc1")
    a("s_cmp_lg_u32 s42, 0")
    a("s_cbranch_scc1 K3_zp_nf")
    a(f"buffer_load_dwordx4 {vr(28)}, v5, s[24:27], 0 offen offset:32 sc1")
    a("s_waitcnt vmcnt(0)")
    flagcmp(28)
    a("s_cmp_lg_u64 vcc, 0")
    a("s_cbranch_scc1 K3_zp_nf")
    u_block(1)
    a.label("K3_zp_nf")
    a(f"ds_read_b32 v17, v9 offset:{S_CD}")
    a("s_waitcnt vmcnt(0) lgkmcnt(0)")
    vm.q = []
    and_reduce(a, 16, range(32, 40))
    a("v_readfirstlane_b32 s41, v17")
    a("v_cmp_eq_u32 vcc, 0, v16")
    a("s_sub_u32 s43, s43, 1")
    a("s_cbranch_scc1 K3_zp_ok")
    a("s_cmp_eq_u64 vcc, 0")
    a("s_cbranch_scc1 K3_zp_ok")
    a("s_cmp_lg_u32 s40, 0")
    a("s_cbranch_scc1 K3_zp_s2")
    if QEARLY:
        a("s_cmp_lg_u32 s41, 0")
        a("s_cbranch_scc1 K3_post")
    a.label("K3_zp_s2")
    a(f"s_sleep {ZSLEEP}")
    a("s_branch K3_zp")
    a.label("K3_zp_ok")
    if PW:
        lds_signal(a, 10, S_WOM, 11)
    if PG:
        stamp(a, 4)
        a(f"s_mov_b32 s43, {RETRY_MAX}")
        a.label("K3_ml")
        a("s_cmp_eq_u32 s63, 0")
        a("s_cbranch_scc1 K3_ml_done")
        a("s_ff1_i32_b32 s41, s63")
        a("s_lshl_b32 s62, s41, 12")
        a("s_add_u32 s62, s62, s61")
        for dt in range(2):
            a(f"buffer_load_dwordx4 {vr(64+4*dt)}, v3, s[52:55], s62 offen offset:{1024*dt} sc1")
        a("s_add_u32 s75, s75, 1")
        a("s_waitcnt vmcnt(0)")
        and_reduce(a, 16, range(64, 72))
        a("v_cmp_eq_u32 vcc, 0, v16")
        a("s_sub_u32 s43, s43, 1")
        a("s_cbranch_scc1 K3_ml_done")
        a("s_cmp_lg_u64 vcc, 0")
        a("s_cbranch_scc1 K3_ml")
        a("s_bitset0_b32 s63, s41")
        for i in range(8):
            a(f"v_add_f32 v{56+i}, v{56+i}, v{64+i}")
        a("s_branch K3_ml")
        a.label("K3_ml_done")
        for i in range(8):
            a(f"v_add_f32_dpp v{40+i}, v{32+i}, v{32+i} row_ror:8 {DPP}")
        for sh in (4, 2, 1):
            for i in range(8):
                a(f"v_add_f32_dpp v{40+i}, v{40+i}, v{40+i} row_ror:{sh} {DPP}")
        for i in range(4):
            a(f"v_cvt_pk_bf16_f32 v{48+i}, v{40+2*i}, v{41+2*i}")
        for i in range(8):
            a(f"v_mov_b32 v{64+i}, v{56+i}")
    else:
        stamp(a, 4)
        a("s_setprio 2")
        a(f"s_mov_b32 s43, {RETRY_MAX}")
        def gloads(fl, track):
            a("s_mov_b32 s62, s61")
            for p in range(16):
                for dt in range(1 if BP else 2):
                    r = 96 + 4 * p if BP else 64 + 8 * p + 4 * dt
                    a(f"buffer_load_dwordx4 {vr(r)}, v3, s[52:55], s62 offen offset:{1024*dt}{fl}")
                    if track:
                        vm.issue(("kv", p))
                a("s_add_u32 s62, s62, 4096")
        gloads(GSC, True)
        if ZFIRST:
            bulkA()
            vm.issue("t")
        if not QEARLY and not CPOST:
            q_loads()
        a.label("K3_gl")
        for i in range(8):
            a(f"v_add_f32_dpp v{40+i}, v{32+i}, v{32+i} row_ror:8 {DPP}")
        for sh in (4, 2, 1):
            for i in range(8):
                a(f"v_add_f32_dpp v{40+i}, v{40+i}, v{40+i} row_ror:{sh} {DPP}")
        for i in range(4):
            a(f"v_cvt_pk_bf16_f32 v{48+i}, v{40+2*i}, v{41+2*i}")
        a("v_mov_b32 v16, 1")
        for p in range(16):
            vm.wait_for([("kv", p)])
            if BP:
                r = 96 + 4 * p
                for i in range(0, 4, 2):
                    a(f"v_bitop3_b32 v16, v16, v{r+i}, v{r+i+1} bitop3:0x80")
                t = 64 if p == 0 else 72
                for i in range(4):
                    a(f"v_lshlrev_b32 v{t+2*i}, 16, v{r+i}")
                    a(f"v_and_b32 v{t+2*i+1}, 0xffff0000, v{r+i}")
                if p >= 1:
                    for i in range(8):
                        a(f"v_add_f32 v{64+i}, v{64+i}, v{72+i}")
            else:
                r = 64 + 8 * p
                for i in range(0, 8, 2):
                    a(f"v_bitop3_b32 v16, v16, v{r+i}, v{r+i+1} bitop3:0x80")
                if p >= 1:
                    for i in range(8):
                        a(f"v_add_f32 v{64+i}, v{64+i}, v{r+i}")
        a("v_cmp_eq_u32 vcc, 0, v16")
        a("s_sub_u32 s43, s43, 1")
        a("s_cbranch_scc1 K3_gl_ok")
        a("s_cmp_eq_u64 vcc, 0")
        a("s_cbranch_scc1 K3_gl_ok")
        a("s_add_u32 s75, s75, 1")
        a("s_sleep 4")
        gloads(" sc1", False)
        a("s_waitcnt vmcnt(0)")
        a("s_branch K3_gl")
    a.label("K3_gl_ok")
    for i in range(4):
        a(f"v_cvt_pk_bf16_f32 v{40+i}, v{64+2*i}, v{65+2*i}")
    a("s_lshl_b32 s43, s4, 10")
    a(f"s_add_u32 s43, s43, {KVT}")
    a("v_add_u32 v5, s43, v3")
    a(f"ds_write_b128 v5, {vr(40)}")
    a("s_lshl_b32 s43, s37, 2")
    a("v_add_u32 v7, s43, v10")
    a("s_lshl_b32 s43, s37, 11")
    a(f"s_add_u32 s43, s43, {KVT}")
    a("v_add_u32 v5, s43, v3")
    a("s_waitcnt lgkmcnt(0)")
    lds_signal(a, 7, S_KVT, 11)
    if ZFIRST:
        pq_pick()
        wo_issue(6)
    lds_wait(a, "K3_wkt", 7, S_KVT, 2, 52, 60)
    a(f"ds_read_b128 {vr(40)}, v5")
    a(f"ds_read_b128 {vr(44)}, v5 offset:1024")
    a("s_waitcnt lgkmcnt(0)")
    stamp(a, 5)
    for mt in range(4):
        b = 64 + 12 * mt
        mfma16(a, b + 8, 48, PQR + 4 * mt, "0")
        mfma16(a, b, 40, PQR + 4 * mt, "0")
        mfma16(a, b + 4, 44, PQR + 4 * mt, "0")
    a("s_lshl_b32 s60, s12, 3")
    a("s_lshl_b32 s61, s36, 2")
    a("s_add_u32 s60, s60, s61")
    a("s_lshl_b32 s60, s60, 5")
    a("s_add_u32 s60, s60, s15")
    a("s_lshl_b32 s60, s60, 10")
    a(f"s_mov_b32 s61, {EPS}")
    for mt in range(4):
        a(f"v_add_f32 v{112+mt}, s61, v{64+12*mt+8}")
        a(f"v_rcp_f32 v{112+mt}, v{112+mt}")
    for mt in range(4):
        b = 64 + 12 * mt
        for i in range(8):
            a(f"v_mul_f32 v{b+i}, v{b+i}, v{112+mt}")
        for i in range(4):
            a(f"v_cvt_pk_bf16_f32 v{120+4*mt+i}, v{b+2*i}, v{b+2*i+1}")
        for i in range(4):
            a(f"v_or_b32 v{120+4*mt+i}, 1, v{120+4*mt+i}")
        a(f"buffer_store_dwordx4 {vr(120+4*mt)}, v3, s[48:51], s60 offen sc1")
        a("s_add_u32 s60, s60, 32768")
    a("s_setprio 0")
    stamp(a, 6)
    a(f"s_mov_b32 s43, {RETRY_MAX}")
    a("v_lshrrev_b32 v5, 1, v2")
    a("v_lshlrev_b32 v5, 7, v5")
    a("v_and_b32 v4, 1, v2")
    a("v_lshl_add_u32 v5, v4, 4, v5")
    a.label("K3_ul")
    a("s_cmp_lg_u32 s42, 0")
    a("s_cbranch_scc1 K3_ul_done")
    a(f"buffer_load_dwordx4 {vr(28)}, v5, s[24:27], 0 offen offset:32 sc1")
    a("s_waitcnt vmcnt(0)")
    flagcmp(28)
    a("s_sub_u32 s43, s43, 1")
    a("s_cbranch_scc1 K3_ul_go")
    a("s_cmp_eq_u64 vcc, 0")
    a("s_cbranch_scc1 K3_ul_go")
    a("s_sleep 4")
    a("s_branch K3_ul")
    a.label("K3_ul_go")
    u_block(2)
    a.label("K3_ul_done")
    a("s_and_b32 s60, s10, 3")
    a("s_lshl_b32 s60, s60, 2")
    a("s_and_b32 s61, s11, 3")
    a("s_add_u32 s60, s60, s61")
    a("s_lshl_b32 s60, s60, 18")
    a("s_lshr_b32 s61, s11, 2")
    a("s_lshl_b32 s61, s61, 2")
    a("s_add_u32 s61, s61, s4")
    a("s_lshl_b32 s61, s61, 13")
    a("s_add_u32 s63, s60, s61")
    a("v_lshlrev_b32 v8, 7, v2")
    a("s_waitcnt vmcnt(0)")
    a("buffer_load_dword v60, v8, s[48:51], s63 offen")
    a(f"s_waitcnt vmcnt({0 if TWAIT else 1})")
    if PW:
        lds_signal(a, 9, S_OT, 11)
    else:
        lds_signal(a, 10, S_WOM, 11)
    lds_wait(a, "K3_wcd", 9, S_CD, 1, 16, 60, sleep=1)
    wo_issue(7)
    a("s_waitcnt vmcnt(0)")
    lds_signal(a, 10, S_WOT, 11)
    vm.q = []
    stamp(a, 7)
    a("s_cmp_eq_u32 s40, 1")
    a("s_cbranch_scc1 K3_fin")
    if CPOST:
        lds_wait(a, "K3_wg2", 9, S_G2, 1, 16, 60, sleep=2)
        a(f"ds_read_b32 v16, v9 offset:{S_PD}")
        a("s_waitcnt lgkmcnt(0)")
        a("v_readfirstlane_b32 s60, v16")
        a("s_cmp_lg_u32 s60, 0")
        a("s_cbranch_scc1 K3_fin")
        q_loads()
    if GS >= 0 and not CPOST:
        lds_wait(a, "K3_wg2", 9, S_G2, 1, 16, 60, sleep=2)
    a("s_mov_b32 s40, 2")
    if PDELAY:
        a(f"s_sleep {PDELAY}")
    a(f"s_mov_b32 s43, {RETRY_MAX}")
    a.label("K3_post")
    for ci, sr in enumerate((73, 65, 66, 67)):
        a(f"buffer_load_dwordx4 {vr(16+4*ci)}, v225, s[44:47], s{sr} offen sc1")
    a("s_waitcnt vmcnt(0)")
    and_reduce(a, 48, range(16, 32))
    a("v_cmp_eq_u32 vcc, 0, v48")
    a("s_cmp_eq_u64 vcc, 0")
    a("s_cbranch_scc1 K3_yok")
    a("s_add_u32 s75, s75, 1")
    a("s_cmp_eq_u32 s40, 0")
    a("s_cbranch_scc1 K3_zp_s2")
    if PREPOST:
        a("s_cmp_eq_u32 s40, 3")
        a("s_cbranch_scc1 K3_pw")
    a("s_sub_u32 s43, s43, 1")
    a("s_cbranch_scc1 K3_yok")
    a("s_sleep 8")
    a("s_branch K3_post")
    a.label("K3_yok")
    stamp(a, 8)
    post_compute(a, QR, False)
    a("s_mov_b32 s41, s40")
    a("s_mov_b32 s40, 1")
    a("s_cmp_eq_u32 s41, 0")
    a("s_cbranch_scc1 K3_zp")
    if PREPOST:
        a("s_cmp_eq_u32 s41, 3")
        a("s_cbranch_scc1 K3_pw")
    a.label("K3_fin")
    stamp_flush(a, 9)
    a.label("K3_end")
    a("s_endpgm")
    a.label("K3_code_end")
    return a.finalize(), 252
```
